```python
import torch

def _softmax(x, axis=-1):
    return torch.softmax(x, dim=axis)

def _gelu(x):
    return torch.nn.functional.gelu(x, approximate='tanh')

def _silu(x):
    return torch.nn.functional.silu(x)

def _sigmoid(x):
    return torch.sigmoid(x)

def _layernorm(x, axis=-1, eps=1e-05):
    m = x.mean(dim=axis, keepdim=True)
    v = x.var(dim=axis, keepdim=True, unbiased=False)
    return (x - m) / torch.sqrt(v + eps)

def _scatter_add(tgt, idx, src, axis=0):
    return tgt.clone().index_add_(axis, idx, src)

def _segment_sum(src, seg, n):
    out = torch.zeros((n,) + src.shape[1:], dtype=src.dtype)
    return out.index_add_(0, seg, src)

def _pad(x, pw):
    flat = tuple((v for pair in reversed(pw) for v in pair))
    return torch.nn.functional.pad(x, flat)
kernel_name = 'adaLN_cond__memory_aug_recurrent_mem_tr__swiglu_ffn__prompt'

def setup_inputs():

    _w = lambda a: (lambda t: t.to(torch.bfloat16) if t.is_floating_point() else t)(torch.as_tensor(a))

    def _A_setup():
        B, S, Dm = (1, 2048, 576)
        H, Dh = (32, 128)
        M, seg = (8, 32)
        seg = min(seg, S)
        S = S // seg * seg
        return {'x': _w((lambda *s: torch.randn(*s, dtype=torch.bfloat16) * 0.05)(B, S, Dm)), 'mem0': _w((lambda *s: torch.randn(*s, dtype=torch.bfloat16) * 0.4)(B, M, Dm)), 'Wq': _w((lambda *s: torch.randn(*s, dtype=torch.bfloat16) * 3.2)(Dm, H, Dh) * Dm ** (-0.5)), 'Wk': _w((lambda *s: torch.randn(*s, dtype=torch.bfloat16) * 3.2)(Dm, H, Dh) * Dm ** (-0.5)), 'Wv': _w((lambda *s: torch.randn(*s, dtype=torch.bfloat16) * 0.4)(Dm, H, Dh) * Dm ** (-0.5)), 'Wo': _w((lambda *s: torch.randn(*s, dtype=torch.bfloat16) * 0.4)(H, Dh, Dm) * (H * Dh) ** (-0.5)), 'seg_len': seg}
    _A_in = _A_setup()

    def _B_setup():
        B, S, D, F = (1, 2048, 576, 4608)
        return {'x': _w((lambda *s: torch.randn(*s, dtype=torch.bfloat16) * 0.05)(B, S, D)), 'w_gate': _w((lambda *s: torch.randn(*s, dtype=torch.bfloat16) * 0.05)(D, F)), 'w_up': _w((lambda *s: torch.randn(*s, dtype=torch.bfloat16) * 0.05)(D, F)), 'w_down': _w((lambda *s: torch.randn(*s, dtype=torch.bfloat16) * 0.05)(F, D))}
    _B_in = _B_setup()
    return {'A_x': _A_in['x'], 'A_mem0': _A_in['mem0'], 'A_Wq': _A_in['Wq'], 'A_Wk': _A_in['Wk'], 'A_Wv': _A_in['Wv'], 'A_Wo': _A_in['Wo'], 'A_seg_len': _A_in['seg_len'], 'B_x': _B_in['x'], 'B_w_gate': _B_in['w_gate'], 'B_w_up': _B_in['w_up'], 'B_w_down': _B_in['w_down'], 'c': _w((lambda *s: torch.randn(*s, dtype=torch.bfloat16) * 0.1)(1, 576) * 8.0), 'w_mod': _w((lambda *s: torch.randn(*s, dtype=torch.bfloat16) * 0.1)(576, 6 * 576) * 576 ** (-0.5) * 8.0)}

def reference(A_x, A_mem0, A_Wq, A_Wk, A_Wv, A_Wo, A_seg_len, B_x, B_w_gate, B_w_up, B_w_down, c, w_mod):

    def _A_ref(x, mem0, Wq, Wk, Wv, Wo, seg_len):
        B, S, Dm = x.shape
        H, Dh = (Wq.shape[1], Wq.shape[2])
        M = mem0.shape[1]
        scale = Dh ** (-0.5)
        n_seg = S // seg_len
        L = M + seg_len
        idx = torch.arange(L)
        mask = (idx[:, None] < M) | (idx[:, None] >= idx[None, :])
        mem = mem0
        outs = []
        for s in range(n_seg):
            xs = x[:, s * seg_len:(s + 1) * seg_len, :].clone()
            h = torch.concatenate([mem, xs], axis=1)
            q = torch.einsum('btd,dhe->bhte', h, Wq)
            k = torch.einsum('btd,dhe->bhte', h, Wk)
            v = torch.einsum('btd,dhe->bhte', h, Wv)
            scores = torch.einsum('bhqe,bhke->bhqk', q, k) * scale
            scores = torch.where(mask[None, None], scores, -1000000000.0)
            p = _softmax(scores, axis=-1)
            o = torch.einsum('bhqk,bhke->bhqe', p, v)
            o = torch.einsum('bhte,hed->btd', o, Wo)
            mem = o[:, :M, :].clone()
            outs.append(o[:, M:, :])
        return torch.concatenate(outs, axis=1)

    def _B_ref(x, w_gate, w_up, w_down):
        g = _silu(x @ w_gate)
        u = x @ w_up
        return g * u @ w_down
    x = A_x
    mod = (_silu(c) @ w_mod).reshape(c.shape[0], 6, 1, -1)
    sa, ca, ga, sb, cb, gb = (mod[:, 0].clone(), mod[:, 1].clone(), mod[:, 2].clone(), mod[:, 3].clone(), mod[:, 4].clone(), mod[:, 5].clone())
    h = _layernorm(x, axis=-1) * (1 + ca) + sa
    x = x + ga * _A_ref(h, A_mem0, A_Wq, A_Wk, A_Wv, A_Wo, A_seg_len)
    h = _layernorm(x, axis=-1) * (1 + cb) + sb
    x = x + gb * _B_ref(h, B_w_gate, B_w_up, B_w_down)
    return x
```

```python
import re

def v(i, n=1):
    return f"v{i}" if n == 1 else f"v[{i}:{i+n-1}]"
def a(i, n=1):
    return f"a{i}" if n == 1 else f"a[{i}:{i+n-1}]"
def s(i, n=1):
    return f"s{i}" if n == 1 else f"s[{i}:{i+n-1}]"
def u(i, n=1):
    if i >= 256:
        assert i + n <= 512
        return a(i - 256, n)
    assert i + n <= 256, (i, n)
    return v(i, n)

_REG = re.compile(r'^(-?)(?:abs\()?([vas])(?:(\d+)|\[(\d+):(\d+)\])\)?$')

def parse_reg(tok):
    tok = tok.strip()
    if tok == 'vcc': return {('s', 106), ('s', 107)}
    if tok == 'vcc_lo': return {('s', 106)}
    if tok == 'vcc_hi': return {('s', 107)}
    if tok == 'exec': return {('s', 126), ('s', 127)}
    if tok == 'exec_lo': return {('s', 126)}
    if tok == 'exec_hi': return {('s', 127)}
    if tok == 'm0': return {('s', 124)}
    m = _REG.match(tok)
    if not m: return set()
    k = m.group(2)
    lo = int(m.group(3) if m.group(3) is not None else m.group(4))
    hi = int(m.group(3) if m.group(3) is not None else m.group(5))
    if k == 'a': return {('v', 256 + i) for i in range(lo, hi + 1)}
    return {(k, i) for i in range(lo, hi + 1)}

TRANS = ('v_exp_f32', 'v_log_f32', 'v_rcp_f32', 'v_rsq_f32', 'v_sqrt_f32', 'v_sin_f32', 'v_cos_f32', 'v_rcp_iflag_f32')

class Ins:
    __slots__ = ('text', 'op', 'ops', 'cls', 'wr', 'rd', 'srcc', 'ab', 'passes', 'dpp', 'target', 'states', 'stdata', 'label')
    def __init__(self, text):
        self.text = text
        self.label = None
        t = text.split(';')[0].strip()
        self.op = ''; self.ops = []; self.cls = 'none'
        self.wr = set(); self.rd = set(); self.srcc = set(); self.ab = set(); self.stdata = set()
        self.passes = 0; self.dpp = False; self.target = None; self.states = 0
        if not t or t.startswith('.'):
            return
        if t.endswith(':'):
            self.label = t[:-1]; self.cls = 'label'; return
        parts = t.split(None, 1)
        op = parts[0]; self.op = op
        rest = parts[1] if len(parts) > 1 else ''
        ops = []; depth = 0; cur = ''
        for ch in rest:
            if ch in '[(': depth += 1
            if ch in '])': depth -= 1
            if ch == ',' and depth == 0:
                ops.append(cur.strip()); cur = ''
            else: cur += ch
        if cur.strip(): ops.append(cur.strip())
        mods = ''
        if ops:
            sp = ops[-1].split(None, 1)
            ops[-1] = sp[0]
            if len(sp) > 1: mods = sp[1]
        self.ops = ops
        self.states = 1
        R = [parse_reg(o) for o in ops]
        base = re.sub(r'_(e32|e64|dpp|sdwa)$', '', op)
        if op == 's_nop':
            self.cls = 'nop'; self.states = int(ops[0], 0) + 1
        elif op.startswith('v_mfma') or op.startswith('v_smfmac'):
            self.cls = 'mfma'
            self.passes = 8 if '32x32' in op else 4
            self.wr = R[0]
            self.ab = R[1] | R[2]
            if op.startswith('v_smfmac'):
                self.ab |= R[3]; self.srcc = R[0]
            else:
                self.srcc = R[3]
            self.rd = self.ab | self.srcc
        elif op.startswith('v_'):
            self.cls = 'trans' if base in TRANS else 'valu'
            self.dpp = op.endswith('_dpp') or 'row_' in mods or 'quad_perm' in mods
            if base == 'v_swap_b32':
                self.wr = R[0] | R[1]; self.rd = R[0] | R[1]
            elif base.startswith('v_permlane') and 'swap' in base:
                self.cls = 'perm'; self.wr = R[0] | R[1]; self.rd = R[0] | R[1]
            elif base.startswith('v_cmp'):
                self.wr = set(R[0]);
                if base.startswith('v_cmpx'): self.wr |= parse_reg('exec')
                for r in R[1:]: self.rd |= r
            elif base in ('v_add_co_u32', 'v_sub_co_u32', 'v_addc_co_u32', 'v_subb_co_u32', 'v_div_scale_f32'):
                self.wr = R[0] | R[1]
                for r in R[2:]: self.rd |= r
            else:
                self.wr = set(R[0])
                for r in R[1:]: self.rd |= r
                if base in ('v_fmac_f32', 'v_dot2c_f32_bf16', 'v_pk_fmac_f16') or self.dpp: self.rd |= R[0]
                if base == 'v_div_fmas_f32': self.rd |= parse_reg('vcc')
                if base in ('v_readfirstlane_b32', 'v_readlane_b32'): self.cls = 'rdlane'
        elif op.startswith('ds_'):
            self.cls = 'ds'
            if 'read' in op or 'permute' in op or 'swizzle' in op or '_rtn' in op:
                self.wr = R[0]
                for r in R[1:]: self.rd |= r
            else:
                for r in R: self.rd |= r
        elif op.startswith('global_') or op.startswith('buffer_') or op.startswith('flat_'):
            self.cls = 'vmem'
            islds = '_lds_' in op or ' lds' in (' ' + mods)
            if islds:
                self.cls = 'dma'
                for r in R: self.rd |= r
                self.rd |= parse_reg('m0')
            elif 'load' in op or ('atomic' in op and 'sc0' in mods):
                self.wr = R[0]
                for r in R[1:]: self.rd |= r
            else:
                for r in R: self.rd |= r
                if 'store' in op and ('x4' in op or 'x3' in op):
                    self.stdata = R[1] if op.startswith('global_') or op.startswith('flat_') else R[0]
        elif op.startswith('s_cbranch') or op == 's_branch':
            self.cls = 'branch'; self.target = ops[0]
        elif op.startswith('s_'):
            self.cls = 'salu'
            if op.startswith('s_cmp') or op in ('s_waitcnt', 's_barrier', 's_sleep', 's_endpgm', 's_setprio', 's_bitcmp1_b32', 's_bitcmp0_b32'):
                for r in R: self.rd |= r
            else:
                if R: self.wr = set(R[0])
                for r in R[1:]: self.rd |= r
                if 'saveexec' in op: self.wr |= parse_reg('exec')

VALU_CLS = ('valu', 'trans', 'perm', 'rdlane')

def need(p, c):
    n = 0
    if p.cls in VALU_CLS:
        wv = {r for r in p.wr if r[0] == 'v'}
        wsr = {r for r in p.wr if r[0] == 's'}
        if wv:
            if c.cls == 'mfma' and (wv & c.rd): n = max(n, 2)
            if c.cls in VALU_CLS and c.dpp and (wv & c.rd): n = max(n, 2)
            if c.cls == 'perm' and (wv & c.rd): n = max(n, 2)
            if c.cls == 'rdlane' and (wv & c.rd): n = max(n, 1)
            if p.cls == 'trans' and c.cls in ('valu', 'perm', 'rdlane', 'ds', 'vmem') and (wv & c.rd): n = max(n, 1)
        if wsr:
            if c.cls in VALU_CLS and (wsr & c.rd): n = max(n, 4 if c.cls == 'rdlane' or c.op.startswith('v_div_fmas') else 2)
            if c.cls in VALU_CLS and c.op.startswith('v_cndmask') and len(c.ops) == 3 and (wsr & parse_reg('vcc')): n = max(n, 2)
            if c.cls in ('vmem', 'dma') and (wsr & c.rd): n = max(n, 5)
            if (wsr & parse_reg('exec')):
                if c.cls == 'mfma' or c.cls == 'perm' or c.cls == 'rdlane': n = max(n, 4)
                if c.dpp: n = max(n, 5)
    if p.cls == 'mfma':
        big = p.passes == 8
        if c.cls == 'mfma':
            if p.wr & c.ab: n = max(n, 12 if big else 8)
            if p.wr & c.srcc:
                if not (p.wr == c.srcc and p.op == c.op): n = max(n, 10 if big else 6)
            elif p.wr & c.wr:
                n = max(n, 10 if big else 6)
        elif c.cls in VALU_CLS or c.cls in ('ds', 'vmem', 'dma'):
            if p.wr & (c.rd | c.wr): n = max(n, 12 if big else 8)
            if (p.srcc & c.wr): n = max(n, 7 if big else 3)
    if p.cls == 'salu':
        if (p.wr & parse_reg('m0')) and c.cls == 'dma': n = max(n, 1)
    if p.stdata:
        if p.stdata & c.wr: n = max(n, 2 if c.cls in VALU_CLS or c.cls == 'mfma' else 1)
    return n

MAXD = 13

class Asm:
    def __init__(self):
        self.ins = []
        self._lab = 0
    def __call__(self, text):
        for line in text.split('\n'):
            if line.strip():
                self.ins.append(Ins('    ' + line.strip() if not line.strip().endswith(':') and not line.strip().startswith('.') else line.strip()))
    def label(self, name):
        self.ins.append(Ins(name + ':'))
    def newlabel(self, p='L'):
        self._lab += 1
        return f"{p}_{self._lab}"
    def raw(self, text):
        i = Ins(''); i.text = text; self.ins.append(i)
    def finalize(self):
        labels = {i.label: k for k, i in enumerate(self.ins) if i.cls == 'label'}
        out = []
        window = []
        nn = 0
        def req(c, win, extra=0):
            r = 0
            for p, age in win:
                r = max(r, need(p, c) - age - extra)
            return r
        def lookahead(k, win, dist, depth=0):
            r = 0
            while k < len(self.ins) and dist < MAXD:
                c = self.ins[k]
                if c.states:
                    r = max(r, req(c, win, dist))
                    dist += c.states
                    if c.op == 's_endpgm': break
                    if c.cls == 'branch' and depth < 3 and c.target in labels:
                        r = max(r, lookahead(labels[c.target], win, dist, depth + 1))
                        if c.op == 's_branch': break
                k += 1
            return r
        for k, c in enumerate(self.ins):
            if c.states:
                r = req(c, window)
                if c.cls == 'branch' and c.target in labels:
                    r = max(r, lookahead(labels[c.target], window, 1))
                while r > 0:
                    m = min(r, 16)
                    out.append(f"    s_nop {m-1}")
                    nn += m
                    for w in window: w[1] += m
                    r -= m
                for w in window: w[1] += c.states
                window = [w for w in window if w[1] < MAXD]
                if c.cls in VALU_CLS or c.cls == 'mfma' or c.stdata or (c.cls == 'salu' and c.wr):
                    window.append([c, 0])
                if c.op in ('s_branch', 's_endpgm'):
                    window = []
            out.append(c.text)
        self.nops = nn
        return '\n'.join(out) + '\n'

def kernel_begin(A, name):
    A.raw(f".globl {name}\n.p2align 8\n.type {name},@function")
    A.label(name)

def kernel_desc(name, vgpr, sgpr, accum):
    return f""".p2align 6
.amdhsa_kernel {name}
  .amdhsa_next_free_vgpr {vgpr}
  .amdhsa_next_free_sgpr {sgpr}
  .amdhsa_accum_offset {accum}
  .amdhsa_group_segment_fixed_size 0
  .amdhsa_kernarg_size 128
  .amdhsa_user_sgpr_count 2
  .amdhsa_user_sgpr_kernarg_segment_ptr 1
  .amdhsa_system_sgpr_workgroup_id_x 1
  .amdhsa_float_denorm_mode_32 3
.end_amdhsa_kernel
"""
```

```python
from asmlib import *

KA_X, KA_MEM0, KA_WQ, KA_WK, KA_WV, KA_WO, KA_SEG, KA_BX, KA_WG, KA_WU, KA_WD, KA_C, KA_WMOD, KA_OUT, KA_DBG, KA_WS = [8 * i for i in range(16)]

WS_MOD   = 0x0
WS_KVPROG = 0x10000
WS_RPROG = 0x18000
WS_H2FLAG = 0x1A000
WS_XF    = 0x1C000
WS_STAMP = 0x20000
WS_H     = 0x100000
WS_H2    = 0x400000
WS_X1    = 0x700000
WS_KV    = 0x1000000
WS_KVM   = 0x3000000
WS_RP    = 0x3800000
WS_RM    = 0x3900000
WS_XP    = 0x4000000
RP_SLOT = 72 * 32 * 128
XP_SLOT = 32 * 32 * 2304
SEG_H = 36864

DBG_TICKET = 0
DBG_CLR = 8
DBG_RBAR = 34
DBG_MODCNT = 32
DBG_HCNT = 33
DBG_ERR = 40

S_WS = 4
S_DBG = 6
S_GRP, S_MEM, S_WAVE, S_FAST = 8, 9, 10, 11
SPIN_MAX = 400000

class Lds:
    def __init__(self, A):
        self.A = A; self.q = []
    def op(self, text, tag=None):
        self.A(text); self.q.append(tag)
    def wait(self, tag):
        if tag not in self.q: return
        i = len(self.q) - 1 - self.q[::-1].index(tag)
        n = len(self.q) - 1 - i
        self.A(f"s_waitcnt lgkmcnt({min(n, 15)})")
        if n > 15:
            self.q = self.q[len(self.q) - 15:]
        else:
            self.q = self.q[i + 1:]
    def waitall(self):
        self.A("s_waitcnt lgkmcnt(0)"); self.q = []

def add64(A, dst, src, off):
    A(f"s_add_u32 s{dst}, s{src}, {off}")
    A(f"s_addc_u32 s{dst+1}, s{src+1}, 0")

def preamble(A, nwg=256, clear=True):
    A(f"s_cmp_ge_u32 s2, {nwg}")
    A("s_cbranch_scc1 L_exit")
    A(f"s_load_dwordx4 s[4:7], s[0:1], {KA_DBG}")
    A("s_getreg_b32 s8, hwreg(HW_REG_XCC_ID, 0, 4)")
    A("v_lshrrev_b32 v1, 6, v0")
    A("v_readfirstlane_b32 s10, v1")
    A("s_waitcnt lgkmcnt(0)")
    A("s_mov_b64 s[12:13], s[4:5]")
    A("s_mov_b64 s[4:5], s[6:7]")
    A("s_mov_b64 s[6:7], s[12:13]")
    A("s_and_b32 s8, s8, 7")
    l1 = A.newlabel('L_tk'); l2 = A.newlabel('L_tk2')
    A("v_mov_b32 v2, 1")
    A("s_cmp_lg_u32 s10, 0")
    A(f"s_cbranch_scc1 {l1}")
    A("s_lshl_b32 s12, s8, 2")
    A("v_mov_b32 v1, s12")
    A("s_mov_b64 exec, 1")
    A(f"global_atomic_add v3, v1, v2, s[6:7] sc0 sc1")
    A("v_mov_b32 v1, 0")
    A("s_waitcnt vmcnt(0)")
    A("ds_write_b32 v1, v3")
    A("s_waitcnt lgkmcnt(0)")
    A("s_mov_b64 exec, -1")
    A.label(l1)
    A("s_cmp_lg_u32 s10, 1")
    A(f"s_cbranch_scc1 {l2}")
    if clear:
        A("s_lshl_b32 s12, s2, 8")
        A(f"s_add_u32 s12, s12, {WS_KVPROG - 256}")
        A("v_lshl_add_u32 v1, v0, 2, s12")
        A("v_mov_b32 v3, 0")
        A("global_store_dword v1, v3, s[4:5] sc1")
        A("s_waitcnt vmcnt(0)")
    A("s_and_b32 s12, s2, 7")
    A("s_lshl_b32 s12, s12, 2")
    A(f"s_add_u32 s12, s12, {DBG_CLR * 4}")
    A("v_mov_b32 v1, s12")
    A("s_mov_b64 exec, 1")
    A("global_atomic_add v1, v2, s[6:7] sc1")
    A("s_mov_b64 exec, -1")
    A.label(l2)
    A("s_barrier")
    A("v_mov_b32 v1, 0")
    A("ds_read_b32 v2, v1")
    A("s_waitcnt lgkmcnt(0)")
    A("v_readfirstlane_b32 s9, v2")
    A("s_barrier")
    A("s_mov_b32 s11, 1")
    A("s_min_u32 s9, s9, 31")

def mode_check(A, restart_label, tv=1, ts=12):
    done = A.newlabel('L_mc_done'); loop = A.newlabel('L_mc'); again = A.newlabel('L_mc_ag')
    A("s_cmp_eq_u32 s11, 0")
    A(f"s_cbranch_scc1 {done}")
    A(f"v_and_b32 v{tv}, 15, v0")
    A(f"v_lshlrev_b32 v{tv}, 2, v{tv}")
    A(f"s_mov_b32 s{ts}, 0")
    A.label(loop)
    A(f"global_load_dword v{tv+1}, v{tv}, s[6:7] sc1")
    A(f"s_add_u32 s{ts}, s{ts}, 1")
    A(f"s_cmp_gt_u32 s{ts}, {SPIN_MAX}")
    A(f"s_cbranch_scc1 L_exit")
    A("s_waitcnt vmcnt(0)")
    A(f"v_cmp_ne_u32 vcc, 32, v{tv+1}")
    A(f"s_cbranch_vccz {done}")
    A("s_and_b32 vcc_lo, vcc_lo, 0xff00")
    A(f"s_cbranch_scc1 {again}")
    A(f"v_cmp_lt_u32 vcc, 32, v{tv+1}")
    A(f"s_cbranch_vccz {again}")
    A("s_mov_b32 s11, 0")
    A("s_lshr_b32 s8, s2, 5")
    A("s_and_b32 s9, s2, 31")
    A("s_waitcnt vmcnt(0) lgkmcnt(0)")
    A("s_barrier")
    A(f"s_branch {restart_label}")
    A.label(again)
    A("s_sleep 2")
    A(f"s_branch {loop}")
    A.label(done)

def counter_arrive(A, word, tv=1):
    l = A.newlabel('L_arr')
    A("s_cmp_lg_u32 s10, 0")
    A(f"s_cbranch_scc1 {l}")
    A(f"v_mov_b32 v{tv}, {word*4}")
    A(f"v_mov_b32 v{tv+1}, 1")
    A("s_mov_b64 exec, 1")
    A(f"global_atomic_add v{tv}, v{tv+1}, s[6:7] sc1")
    A("s_mov_b64 exec, -1")
    A.label(l)

def counter_wait(A, word, count, tv=1, ts=12, sleep=2):
    loop = A.newlabel('L_cw'); done = A.newlabel('L_cwd')
    A(f"v_mov_b32 v{tv}, {word*4}")
    A(f"s_mov_b32 s{ts}, 0")
    A.label(loop)
    A(f"global_load_dword v{tv+1}, v{tv}, s[6:7] sc1")
    A(f"s_add_u32 s{ts}, s{ts}, 1")
    A(f"s_cmp_gt_u32 s{ts}, {SPIN_MAX}")
    A(f"s_cbranch_scc1 L_exit")
    A("s_waitcnt vmcnt(0)")
    A(f"v_cmp_gt_u32 vcc, {count}, v{tv+1}")
    A(f"s_cbranch_vccz {done}")
    A(f"s_sleep {sleep}")
    A(f"s_branch {loop}")
    A.label(done)

def lane_const(A, dst, f, src=0, nbits=8, tmp=None, mode=None, acc=False):
    N = 1 << nbits
    f0 = f(0)
    def check(m):
        d = [(f(1 << k) ^ f0) if m == 'xor' else (f(1 << k) - f0) for k in range(nbits)]
        for x in range(N):
            y = f0
            for k in range(nbits):
                if x >> k & 1: y = (y ^ d[k]) if m == 'xor' else y + d[k]
            if y != f(x): return None
        return d
    for m in ([mode] if mode else ['add', 'xor']):
        d = check(m)
        if d is not None: break
    assert d is not None, "function not affine"
    assert tmp is not None and tmp != dst and dst != src
    work = dst
    if acc and m == 'xor':
        work = tmp + 1
    if acc and m == 'add':
        if f0: A(f"v_add_u32 v{dst}, {f0 & 0xffffffff:#x}, v{dst}")
    else:
        A(f"v_mov_b32 v{work}, {f0 & 0xffffffff:#x}")
    k = 0
    while k < nbits:
        if d[k] == 0: k += 1; continue
        n = 1
        while k + n < nbits and d[k + n] == d[k] << n: n += 1
        c = d[k]
        if c > 0 and c & (c - 1) == 0:
            sh = c.bit_length() - 1
            A(f"v_bfe_u32 v{tmp}, v{src}, {k}, {n}")
            if m == 'add': A(f"v_lshl_add_u32 v{work}, v{tmp}, {sh}, v{work}")
            else:
                A(f"v_lshlrev_b32 v{tmp}, {sh}, v{tmp}")
                A(f"v_xor_b32 v{work}, v{work}, v{tmp}")
        elif m == 'add' and 0 < c < (1 << 24):
            A(f"v_bfe_u32 v{tmp}, v{src}, {k}, {n}")
            A(f"v_mul_u32_u24 v{tmp}, {c:#x}, v{tmp}")
            A(f"v_add_u32 v{work}, v{work}, v{tmp}")
        else:
            n = 1
            A(f"v_bfe_i32 v{tmp}, v{src}, {k}, 1")
            A(f"v_and_b32 v{tmp}, {c & 0xffffffff:#x}, v{tmp}")
            A(f"v_{'xor_b32' if m == 'xor' else 'add_u32'} v{work}, v{work}, v{tmp}")
        k += n
    if work != dst:
        A(f"v_add_u32 v{dst}, v{dst}, v{work}")


MF32 = "v_mfma_f32_16x16x32_bf16"
MF16 = "v_mfma_f32_16x16x16_bf16"

def ring_load(A, chunks, nslots=8, lbase=0, tmp=28, sb=26):
    A(f"s_lshl_b32 s{sb}, s10, 12")
    if lbase: A(f"s_add_u32 s{sb}, s{sb}, {lbase}")
    def issue(j):
        c = chunks[j]
        add64(A, 12, c['ptr'], c['off'])
        for ip in range(4):
            A(f"s_add_u32 m0, s{sb}, {(j % nslots) * 16384 + ip * 1024}")
            A(f"global_load_lds_dwordx4 v{c['vb']+ip}, s[12:13]")
    n = len(chunks); ah = nslots - 1
    for j in range(min(ah, n)): issue(j)
    for j in range(n):
        A(f"s_waitcnt vmcnt({4 * (min(n - 1, j + ah - 1) - j)})")
        A("s_barrier")
        if j + ah < n: issue(j + ah)
        regs = sorted({r[1] for r in chunks[j]['reads']})
        for k, ar in enumerate(regs): A(f"v_add_u32 v{tmp+k}, {(j % nslots) * 16384 + lbase}, v{ar}")
        for dst, ar, imm in chunks[j]['reads']:
            A(f"ds_read_b64_tr_b16 {u(dst, 2)}, v{tmp + regs.index(ar)} offset:{imm}")
        if 'post' in chunks[j]: chunks[j]['post']()
        A("s_waitcnt lgkmcnt(0)")
    A("s_barrier")

def swzA(row): return 2 * ((row & 3) | ((row >> 3) & 1) << 2)
def swzB(row): return 2 * (((row >> 1) & 1) | ((row >> 2) & 1) << 1)
def dense256_consts(A, vb, tra, stride, tmp):
    for ip in range(4):
        lane_const(A, vb + ip, lambda t: (16 * (t >> 6) + 4 * ip + ((t & 63) >> 4)) * stride, tmp=tmp)
        lane_const(A, vb + ip, lambda t: ((t & 15) ^ swzA(16 * (t >> 6) + 4 * ip + ((t & 63) >> 4))) * 16, tmp=tmp, acc=True)
    for b in range(2):
        def f(t):
            w, l = t >> 6, t & 63
            row = 8 * (l >> 4) + ((l >> 2) & 3); c = l & 3
            return row * 256 + (((4 * w + 2 * b + (c >> 1)) ^ swzA(row)) * 16) + (c & 1) * 8
        lane_const(A, tra + b, f, tmp=tmp)
def dense256_reads(dstf, tra, c):
    return [(dstf(2 * c + kl, b) + 2 * hq, tra + b, (32 * kl + 4 * hq) * 256) for kl in range(2) for b in range(2) for hq in range(2)]
def dense128_consts(A, vb, tra, tmp):
    for ip in range(4):
        lane_const(A, vb + ip, lambda t: (32 * (t >> 6) + 8 * ip + ((t & 63) >> 3)) * 1152, tmp=tmp)
        lane_const(A, vb + ip, lambda t: ((t & 7) ^ swzB(32 * (t >> 6) + 8 * ip + ((t & 63) >> 3))) * 16, tmp=tmp, acc=True)
    def f(t):
        w, l = t >> 6, t & 63
        row = 4 * (l >> 4) + ((l >> 2) & 3); c = l & 3
        return row * 128 + (((2 * w + (c >> 1)) ^ swzB(row)) * 16) + (c & 1) * 8
    lane_const(A, tra, f, tmp=tmp)
def dense128_reads(dstf, tra, t):
    return [(dstf(t, j) + 2 * hq, tra, (32 * j + 16 * hq) * 128) for j in range(4) for hq in range(2)]

def seg_dma(A, vT16, src, ldsreg):
    A(f"s_mov_b64 s[12:13], s[{src}:{src+1}]")
    for j in range(9):
        A(f"s_add_u32 m0, s{ldsreg}, {j * 4096}")
        A(f"global_load_lds_dwordx4 v{vT16}, s[12:13]")
        if j < 8: add64(A, 12, 12, 4096)

def flag_wait(A, addr_v, base, val_s, tv, ts, sleep=1):
    loop = A.newlabel('L_fw'); done = A.newlabel('L_fwd')
    A(f"s_mov_b32 s{ts}, 0")
    A.label(loop)
    A(f"global_load_dword v{tv}, v{addr_v}, s[{base}:{base+1}] sc1")
    A(f"s_add_u32 s{ts}, s{ts}, 1")
    A(f"s_cmp_gt_u32 s{ts}, {SPIN_MAX}")
    A("s_cbranch_scc1 L_exit")
    A("s_waitcnt vmcnt(0)")
    A(f"v_cmp_gt_u32 vcc, s{val_s}, v{tv}")
    A(f"s_cbranch_vccz {done}")
    if sleep: A(f"s_sleep {sleep}")
    A(f"s_branch {loop}")
    A.label(done)

def xsum(A, r, t, op="v_add_f32", bits=(0, 1, 2, 3, 4, 5)):
    for b in bits:
        if b == 0: A(f"{op}_dpp v{r}, v{r}, v{r} quad_perm:[1,0,3,2] row_mask:0xf bank_mask:0xf")
        elif b == 1: A(f"{op}_dpp v{r}, v{r}, v{r} quad_perm:[2,3,0,1] row_mask:0xf bank_mask:0xf")
        elif b == 2: A(f"{op}_dpp v{r}, v{r}, v{r} row_ror:4 row_mask:0xf bank_mask:0xf")
        elif b == 3: A(f"{op}_dpp v{r}, v{r}, v{r} row_ror:8 row_mask:0xf bank_mask:0xf")
        else:
            A(f"v_mov_b32 v{t}, v{r}")
            A(f"v_permlane{16 if b == 4 else 32}_swap_b32 v{r}, v{t}")
            A(f"{op} v{r}, v{r}, v{t}")

def f32bits(x):
    import struct
    return struct.unpack('<I', struct.pack('<f', x))[0]
def rnd1(A, r, t=None):
    A(f"v_cvt_pk_bf16_f32 v{r}, v{r}, v{r}")
    A(f"v_lshlrev_b32 v{r}, 16, v{r}")
def rnd2(A, r):
    A(f"v_cvt_pk_bf16_f32 v{r+1}, v{r}, v{r+1}")
    A(f"v_lshlrev_b32 v{r}, 16, v{r+1}")
    A(f"v_and_b32 v{r+1}, 0xffff0000, v{r+1}")
```

```python
from common import *
import math
ROWB = 32 * 2304
T16, L16, XS, XS8, XL, RW, RW8, L4 = range(8)

def af_consts(A, l_red):
    lane_const(A, L16, lambda t: (t & 63) * 16, tmp=12)
    lane_const(A, XS, lambda t: ((t >> 4) & 3) * 4 * ROWB + (t & 15) * 16 + (t >> 6) * 512, tmp=12)
    lane_const(A, XS8, lambda t: ((t >> 4) & 3) * 4 * ROWB + (t & 15) * 4 + (t >> 6) * 64 + 2048, tmp=12)
    lane_const(A, XL, lambda t: (8 * (t >> 6) + ((t >> 4) & 3)) * 2304 + (t & 15) * 16, tmp=12)
    lane_const(A, RW, lambda t: l_red + (t >> 6) * 2304 + (64 * ((t >> 4) & 3) + (t & 15)) * 4, tmp=12)
    lane_const(A, RW8, lambda t: l_red + (t >> 6) * 2304 + 2048 + (4 * (t & 15) + ((t >> 4) & 3)) * 4, tmp=12)
    lane_const(A, L4, lambda t: (t & 63) * 4, tmp=12)
    A(f"s_mul_i32 s12, s8, {2 * XP_SLOT}")
    A(f"s_add_u32 s12, s12, {WS_XP}")
    A("s_mul_i32 s13, s9, 2304")
    A("s_add_u32 s13, s13, s12")
    add64(A, 40, S_WS, "s13")
    A(f"s_mul_i32 s13, s9, {ROWB}")
    A("s_add_u32 s13, s13, s12")
    add64(A, 42, S_WS, "s13")
    A("s_lshl_b32 s12, s8, 7")
    A(f"s_add_u32 s12, s12, {WS_XF}")
    add64(A, 44, S_WS, "s12")
    A("s_mov_b32 s46, 0")
    A("s_mov_b32 s47, 0")

def out_proj(A, st, wfrag, l_ox, l_red, k16=None):
    D = Lds(A)
    FR, AC, A8, W16 = 8, 28, 60, 64
    add64(A, 48, 40, "s46")
    for tt in range(2):
        for j in range(4): D.op(f"ds_read_b128 {v(FR + 4 * j, 4)}, v{L16} offset:{l_ox + (tt * 4 + j) * 1024}", ('f', j))
        if k16:
            A(f"v_lshrrev_b32 v26, 1, v{L16}")
            D.op(f"ds_read_b64 v[24:25], v26 offset:{k16[0] + tt * 512}", 'f16')
        pend = []
        for grp in range(3):
            tiles = [8] if grp == 2 else list(range(4 * grp, 4 * grp + 4))
            base = A8 if grp == 2 else AC + 16 * grp
            if k16:
                for i, t in enumerate(tiles): D.op(f"ds_read_b64_tr_b16 {v(W16 + 8 * (grp & 1) + 2 * i, 2)}, v{k16[1]} offset:{t * 128}", ('w16', t))
            for j in range(4):
                D.wait(('f', j))
                for i, t in enumerate(tiles):
                    d = v(base + 4 * i, 4)
                    A(f"{MF32} {d}, {v(FR + 4 * j, 4)}, {u(wfrag(t, j), 4)}, {d if j else 0}")
                    if j >= 2 or grp == 2:
                        for _ in range(2 if grp < 2 else 4):
                            if pend: A(pend.pop(0))
            if k16:
                D.wait('f16')
                for i, t in enumerate(tiles):
                    D.wait(('w16', t))
                    d = v(base + 4 * i, 4)
                    A(f"{MF16} {d}, v[24:25], {v(W16 + 8 * (grp & 1) + 2 * i, 2)}, {d}")
            for o in pend: A(o)
            pend = []
            if grp < 2:
                for a_ in range(4):
                    for b_ in range(a_ + 1, 4): pend.append(f"v_swap_b32 v{base+4*a_+b_}, v{base+4*b_+a_}")
                for r in range(4):
                    off = (16 * tt + r) * ROWB
                    pend.append(f"s_add_u32 s12, s48, {off}")
                    pend.append("s_addc_u32 s13, s49, 0")
                    pend.append(f"global_store_dwordx4 v{XS}, {v(base + 4 * r, 4)}, s[12:13] offset:{grp * 256} {st}")
            else:
                for r in range(4):
                    add64(A, 12, 48, (16 * tt + r) * ROWB)
                    A(f"global_store_dword v{XS8}, v{base+r}, s[12:13] {st}")
    A("s_add_u32 s47, s47, 1")
    A("s_waitcnt vmcnt(0)")
    A("s_barrier")
    l = A.newlabel('L_xf')
    A("s_cmp_lg_u32 s10, 0")
    A(f"s_cbranch_scc1 {l}")
    A("s_lshl_b32 s12, s9, 2")
    A("v_mov_b32 v8, s12")
    A("v_mov_b32 v9, s47")
    A("s_mov_b64 exec, 1")
    A(f"global_store_dword v8, v9, s[44:45] {st}")
    A("s_mov_b64 exec, -1")
    A.label(l)
    A(f"v_and_b32 v8, 0x7c, v{L4}")
    flag_wait(A, 8, 44, 47, 9, 12, sleep=0)
    add64(A, 48, 42, "s46")
    add64(A, 50, 48, 4 * 2304)
    for u_ in range(9):
        for hp in range(2):
            A(f"global_load_dwordx4 {v(8 + 8 * u_ + 4 * hp, 4)}, v{XL}, s[{48+2*hp}:{49+2*hp}] offset:{u_ * 256} sc1")
    A(f"s_xor_b32 s46, s46, {XP_SLOT}")
    for u_ in range(9):
        r = 8 + 8 * u_
        A(f"s_waitcnt vmcnt({16 - 2 * u_})")
        A(f"v_pk_add_f32 {v(r, 2)}, {v(r, 2)}, {v(r + 4, 2)}")
        A(f"v_pk_add_f32 {v(r + 2, 2)}, {v(r + 2, 2)}, {v(r + 6, 2)}")
        if u_ >= 1:
            p = r - 8
            A(f"v_permlane32_swap_b32 v{p}, v{p+2}")
            A(f"v_permlane32_swap_b32 v{p+1}, v{p+3}")
            A(f"v_pk_add_f32 {v(p, 2)}, {v(p, 2)}, {v(p + 2, 2)}")
        if u_ >= 2: fin(A, u_ - 2)
    p = 8 + 64
    A(f"v_permlane32_swap_b32 v{p}, v{p+2}")
    A(f"v_permlane32_swap_b32 v{p+1}, v{p+3}")
    A(f"v_pk_add_f32 {v(p, 2)}, {v(p, 2)}, {v(p + 2, 2)}")
    fin(A, 7); fin(A, 8)
    A("s_waitcnt lgkmcnt(0)")
    A("s_barrier")

def fin(A, u_):
    p = 8 + 8 * u_
    A(f"v_permlane16_swap_b32 v{p}, v{p+1}")
    A(f"v_add_f32 v{p}, v{p}, v{p+1}")
    if u_ < 8: A(f"ds_write_b32 v{RW}, v{p} offset:{(256 * (u_ & 1) + 16 * (u_ >> 1)) * 4}")
    else: A(f"ds_write_b32 v{RW8}, v{p}")

def row_gather(A, l_red):
    A(f"v_lshlrev_b32 v48, 1, v{L4}")
    for w in range(4):
        for i in range(5): A(f"ds_read_b64 {v(8 + 10 * w + 2 * i, 2)}, v48 offset:{l_red + w * 2304 + i * 512}")
    A("s_waitcnt lgkmcnt(0)")
    for i in range(5):
        r = 8 + 2 * i
        A(f"v_pk_add_f32 {v(r, 2)}, {v(r, 2)}, {v(r + 10, 2)}")
        A(f"v_pk_add_f32 {v(r + 20, 2)}, {v(r + 20, 2)}, {v(r + 30, 2)}")
        A(f"v_pk_add_f32 {v(r, 2)}, {v(r, 2)}, {v(r + 20, 2)}")
        rnd2(A, r)

def unpack(A, dst, src):
    A(f"v_lshlrev_b32 v{dst}, 16, v{src}")
    A(f"v_and_b32 v{dst+1}, 0xffff0000, v{src}")

def cached_wait(A, base, val_s, cache_s, tv):
    ok = A.newlabel('L_cw')
    A(f"s_cmp_ge_u32 s{cache_s}, s{val_s}")
    A(f"s_cbranch_scc1 {ok}")
    A(f"v_mov_b32 v{tv}, 0")
    flag_wait(A, tv, base, val_s, tv + 1, 12, sleep=1)
    A(f"v_readfirstlane_b32 s{cache_s}, v{tv+1}")
    A.label(ok)

def WA(i): return 256 + 4 * i if i < 64 else 224 + 4 * (i - 64)

def role_a(A, restart, na, ag0, kvg0, standalone=False):
    LQ, LO, LRED = 2 * SEG_H, 2 * SEG_H + 8192, 2 * SEG_H + 16384
    A(f"s_load_dwordx2 s[16:17], s[0:1], {KA_WQ}")
    A(f"s_load_dwordx2 s[18:19], s[0:1], {KA_WO}")
    A(f"s_load_dwordx2 s[34:35], s[0:1], {KA_X}")
    dense256_consts(A, 12, 16, 8192, 1)
    dense128_consts(A, 20, 18, 1)
    A("s_lshl_b32 s12, s9, 8")
    A("s_waitcnt lgkmcnt(0)")
    add64(A, 16, 16, "s12")
    A("s_mul_i32 s12, s9, 147456")
    add64(A, 18, 18, "s12")
    def wq(ks, b): return WA(ks * 2 + b)
    def wo(t, j): return WA(36 + t * 4 + j)
    chunks = [dict(ptr=16, off=c * 64 * 8192, vb=12, reads=dense256_reads(wq, 16, c)) for c in range(9)]
    chunks += [dict(ptr=18, off=t * 128, vb=20, reads=dense128_reads(wo, 18, t)) for t in range(9)]
    ring_load(A, chunks)
    mode_check(A, restart, tv=12)
    af_consts(A, LRED)
    HA, QRD, OWR, KMA, VOF, NEG, H2A = 80, 81, 82, 83, 84, 85, 86
    MODR, XR = 88, 104
    KF, VF, KM, VM = 112, 144, 160, 176
    lane_const(A, QRD, lambda t: LQ + (t >> 7) * 4096 + (t & 63) * 16, tmp=12)
    lane_const(A, OWR, lambda t: LO + (t >> 6) * 2048 + (t & 63) * 16, tmp=12)
    lane_const(A, KMA, lambda t: (((t & 15) >> 2) * 16 + 4 * ((t >> 4) & 3)) * 16 + (t & 1) * 4, tmp=12)
    lane_const(A, VOF, lambda t: ((t >> 6) & 1) * 2048 + (t & 63) * 16, tmp=12)
    A(f"v_mov_b32 v{NEG}, {f32bits(-1e9):#x}")
    A("s_bfe_u32 s12, s9, 0x30001")
    A("s_lshl_b32 s12, s12, 4")
    A(f"v_xor_b32 v{H2A}, s12, v{L4}")
    lane_const(A, 12, lambda t: 16 * (t >> 7) + (t & 15) - 4 * ((t >> 4) & 3), tmp=13)
    for k in range(8): A(f"v_cmp_le_i32 s[{64+2*k}:{65+2*k}], {(k & 3) + 16 * (k >> 2)}, v12")
    A(f"v_lshlrev_b32 v{T16}, 4, v0")
    A(f"s_sub_u32 s24, s8, {ag0}")
    A(f"s_mul_i32 s12, s24, {SEG_H}")
    A(f"s_add_u32 s13, s12, {WS_H}")
    add64(A, 20, S_WS, "s13")
    A("s_mul_i32 s13, s9, 1152")
    A("s_add_u32 s12, s12, s13")
    add64(A, 34, 34, "s12")
    A(f"s_add_u32 s13, s12, {WS_X1}")
    add64(A, 36, S_WS, "s13")
    A(f"s_add_u32 s13, s12, {WS_H2}")
    add64(A, 38, S_WS, "s13")
    A("s_lshl_b32 s12, s24, 5")
    A("s_add_u32 s12, s12, s9")
    A("s_lshl_b32 s13, s12, 14")
    A(f"s_add_u32 s13, s13, {WS_KV + 4096}")
    add64(A, 22, S_WS, "s13")
    A("s_lshl_b32 s13, s12, 12")
    A(f"s_add_u32 s13, s13, {WS_KVM}")
    add64(A, 30, S_WS, "s13")
    A("s_lshl_b32 s13, s12, 2")
    A(f"s_add_u32 s13, s13, {WS_H2FLAG}")
    add64(A, 52, S_WS, "s13")
    A("s_lshl_b32 s12, s9, 7")
    A(f"s_add_u32 s13, s12, {WS_KVPROG + kvg0 * 4096}")
    add64(A, 54, S_WS, "s13")
    A(f"s_add_u32 s13, s12, {WS_RPROG}")
    add64(A, 56, S_WS, "s13")
    A(f"s_mov_b32 s58, {64 if standalone else 0}")
    A(f"s_mov_b32 s59, {64 if standalone else 0}")
    A("s_lshl_b32 s26, s10, 10")
    A("s_mov_b32 s27, 0")
    A(f"s_mov_b32 s60, {f32bits(128 ** -0.5):#x}")
    A(f"s_mov_b32 s61, {f32bits(math.log2(math.e)):#x}")
    if not standalone: counter_wait(A, DBG_HCNT, 32, tv=12)
    for k, ch in enumerate((2, 4, 3)):
        add64(A, 12, S_WS, WS_MOD + ch * 1152)
        for i in range(5): A(f"global_load_dword v{MODR+5*k+i}, v{L4}, s[12:13] offset:{256 * i} sc1")
    def hdma():
        seg_dma(A, T16, 20, 26)
        add64(A, 20, 20, na * SEG_H)
        A(f"s_xor_b32 s26, s26, {SEG_H}")
    assert SEG_H & 3072 == 0
    hdma()
    A("s_cmp_eq_u32 s11, 0")
    A("s_cbranch_scc1 L_a_top_s")
    for fast in (True, False):
        st = "" if fast else "sc1"; sfx = "f" if fast else "s"
        A.label(f"L_a_top_{sfx}")
        A("s_add_u32 s25, s24, 1")
        cached_wait(A, 54, 25, 58, 8)
        for i in range(8): A(f"global_load_dwordx4 {v(KF + 4 * i, 4)}, v{L16}, s[22:23] offset:{i * 1024 - 4096}")
        A("s_and_b32 s12, s10, 1")
        A("s_lshl_b32 s12, s12, 12")
        A("s_add_u32 s12, s12, 4096")
        add64(A, 12, 22, "s12")
        for i in range(4): A(f"global_load_dwordx4 {v(VF + 4 * i, 4)}, v{L16}, s[12:13] offset:{i * 1024}")
        A("s_mov_b32 exec_hi, 0")
        A(f"global_load_dword v{XR+4}, v{L4}, s[34:35] offset:1024")
        A("s_mov_b64 exec, -1")
        for i in range(4): A(f"global_load_dword v{XR+i}, v{L4}, s[34:35] offset:{256 * i}")
        A(f"v_add_u32 v{HA}, s27, v{L16}")
        A("s_waitcnt vmcnt(17)")
        A("s_barrier")
        D = Lds(A)
        ACC, RING, NR = 8, 24, 6
        seq = [(ks, tt) for ks in range(18) for tt in range(2)]
        def rd(i):
            ks, tt = seq[i]
            D.op(f"ds_read_b128 {v(RING + 4 * (i % NR), 4)}, v{HA} offset:{(tt * 18 + ks) * 1024}", i)
        for i in range(NR - 1): rd(i)
        hdma()
        A(f"s_xor_b32 s27, s27, {SEG_H}")
        for i, (ks, tt) in enumerate(seq):
            if i + NR - 1 < 36: rd(i + NR - 1)
            D.wait(i)
            for b in range(2):
                d = v(ACC + (b * 2 + tt) * 4, 4)
                A(f"{MF32} {d}, {u(wq(ks, b), 4)}, {v(RING + 4 * (i % NR), 4)}, {d if ks else 0}")
        for tt in range(2):
            for r in range(4): A(f"v_cvt_pk_bf16_f32 v{48+4*tt+r}, v{ACC+4*tt+r}, v{ACC+8+4*tt+r}")
            A(f"v_add_u32 v56, {LQ + tt * 4096}, v{T16}")
            A(f"ds_write_b128 v56, {v(48 + 4 * tt, 4)}")
        A("s_waitcnt lgkmcnt(0)")
        A("s_barrier")
        QF = 24
        for j in range(4): A(f"ds_read_b128 {v(QF + 4 * j, 4)}, v{QRD} offset:{j * 1024}")
        A("s_waitcnt vmcnt(9) lgkmcnt(0)")
        T0, T1, T2 = 8, 12, 16
        for j in range(4):
            for kt in range(2):
                d = v(T0 + 4 * kt, 4)
                A(f"{MF32} {d}, {v(KF + 4 * (kt * 4 + j), 4)}, {v(QF + 4 * j, 4)}, {d if j else 0}")
        cached_wait(A, 56, 25, 59, 40)
        for j in range(4):
            for m in range(4): A(f"global_load_dword v{KM+4*j+m}, v{KMA}, s[30:31] offset:{j * 1024 + m * 16}")
        for i in range(2): A(f"global_load_dwordx2 {v(VM + 2 * i, 2)}, v{VOF}, s[30:31] offset:{i * 1024 + 8}")
        def scale(r):
            rnd2(A, r)
            A(f"v_pk_mul_f32 {v(r, 2)}, {v(r, 2)}, s[60:61] op_sel_hi:[1,0]")
            rnd2(A, r)
        for r in range(T0, T0 + 8, 2): scale(r)
        for k in range(8): A(f"v_cndmask_b32 v{T0+k}, v{NEG}, v{T0+k}, s[{64+2*k}:{65+2*k}]")
        M, TT, SUM = 20, 21, 22
        A(f"v_max3_f32 v{M}, v8, v9, v10")
        A(f"v_max3_f32 v{M}, v{M}, v11, v12")
        A(f"v_max3_f32 v{M}, v{M}, v13, v14")
        A(f"v_max_f32 v{M}, v{M}, v15")
        for j in range(4):
            A(f"s_waitcnt vmcnt({14 - 4 * j})")
            A(f"{MF32} {v(T2, 4)}, {v(KM + 4 * j, 4)}, {v(QF + 4 * j, 4)}, {v(T2, 4) if j else 0}")
        scale(T2)
        A(f"v_max3_f32 v{M}, v{M}, v16, v17")
        xsum(A, M, TT, op="v_max_f32", bits=(4, 5))
        for r in range(8, 18, 2): A(f"v_pk_add_f32 {v(r, 2)}, {v(r, 2)}, {v(M, 2)} op_sel_hi:[1,0] neg_lo:[0,1] neg_hi:[0,1]")
        for r in range(8, 18, 2): A(f"v_pk_mul_f32 {v(r, 2)}, {v(r, 2)}, s[60:61] op_sel:[0,1]")
        for r in range(8, 18): A(f"v_exp_f32 v{r}, v{r}")
        A(f"v_pk_add_f32 {v(SUM, 2)}, v[8:9], v[10:11]")
        for r in (12, 14, 16): A(f"v_pk_add_f32 {v(SUM, 2)}, {v(SUM, 2)}, {v(r, 2)}")
        A(f"v_add_f32 v{SUM}, v{SUM}, v{SUM+1}")
        xsum(A, SUM, TT, bits=(4, 5))
        A(f"v_rcp_f32 v{SUM}, v{SUM}")
        for r in range(8, 18, 2): A(f"v_pk_mul_f32 {v(r, 2)}, {v(r, 2)}, {v(SUM, 2)} op_sel_hi:[1,0]")
        BX, Z = 40, 44
        for q in range(4): A(f"v_cvt_pk_bf16_f32 v{BX+q}, v{8+2*q}, v{9+2*q}")
        A(f"v_cvt_pk_bf16_f32 v{Z}, v16, v17")
        A(f"v_mov_b32 v{Z+1}, 0")
        A(f"v_mov_b32 v{Z+2}, 0")
        A(f"v_mov_b32 v{Z+3}, v{Z}")
        OA = 24
        for t in range(4): A(f"{MF32} {v(OA + 4 * t, 4)}, {v(VF + 4 * t, 4)}, {v(BX, 4)}, 0")
        A("s_waitcnt vmcnt(0)")
        for t in range(4): A(f"{MF16} {v(OA + 4 * t, 4)}, {v(VM + 2 * (t >> 1), 2)}, {v(Z + 2 * (t & 1), 2)}, {v(OA + 4 * t, 4)}")
        for q in range(8): A(f"v_cvt_pk_bf16_f32 v{48+q}, v{OA+2*q}, v{OA+2*q+1}")
        A(f"ds_write_b128 v{OWR}, v[48:51]")
        A(f"ds_write_b128 v{OWR}, v[52:55] offset:1024")
        A("s_waitcnt lgkmcnt(0)")
        A("s_barrier")
        oa = Asm()
        A(f"v_add_u32 v{L16}, {LO}, v{L16}")
        out_proj(A, st, wo, 0, LRED)
        A(f"v_subrev_u32 v{L16}, {LO}, v{L16}")
        A("s_cmp_lg_u32 s10, 0")
        A(f"s_cbranch_scc1 L_a_next_{sfx}")
        A(f"v_add_u32 v{L4}, {LRED // 2}, v{L4}")
        row_gather(A, 0)
        A(f"v_subrev_u32 v{L4}, {LRED // 2}, v{L4}")
        A("v_mov_b64 v[20:21], 0")
        for i in range(5):
            r = 8 + 2 * i
            if i == 4: A("s_mov_b32 exec_hi, 0")
            unpack(A, 18, MODR + i)
            A(f"v_pk_mul_f32 {v(r, 2)}, {v(r, 2)}, v[18:19]")
            rnd2(A, r)
            unpack(A, 18, XR + i)
            A(f"v_pk_add_f32 {v(r, 2)}, {v(r, 2)}, v[18:19]")
            A(f"v_cvt_pk_bf16_f32 v{24+i}, v{r}, v{r+1}")
            unpack(A, r, 24 + i)
            A(f"global_store_dword v{L4}, v{24+i}, s[36:37] offset:{256 * i} sc1")
            A(f"v_pk_add_f32 v[20:21], v[20:21], {v(r, 2)}")
        A("s_mov_b64 exec, -1")
        A("v_add_f32 v20, v20, v21")
        xsum(A, 20, 21)
        A(f"v_mul_f32 v20, {f32bits(1.0 / 576):#x}, v20")
        A("v_mov_b64 v[22:23], 0")
        for i in range(5):
            if i == 4: A("s_mov_b32 exec_hi, 0")
            A(f"v_pk_add_f32 v[18:19], {v(8 + 2 * i, 2)}, v[20:21] op_sel_hi:[1,0] neg_lo:[0,1] neg_hi:[0,1]")
            A("v_pk_fma_f32 v[22:23], v[18:19], v[18:19], v[22:23]")
        A("s_mov_b64 exec, -1")
        A("v_add_f32 v22, v22, v23")
        xsum(A, 22, 23)
        A(f"v_mul_f32 v22, {f32bits(1.0 / 576):#x}, v22")
        rnd1(A, 22); rnd1(A, 20)
        A(f"v_add_f32 v22, {f32bits(1e-5):#x}, v22")
        rnd1(A, 22)
        A("v_sqrt_f32 v22, v22")
        rnd1(A, 22)
        A("v_rcp_f32 v22, v22")
        for i in range(5):
            r = 8 + 2 * i
            if i == 4: A("s_mov_b32 exec_hi, 0")
            A(f"v_pk_add_f32 {v(r, 2)}, {v(r, 2)}, v[20:21] op_sel_hi:[1,0] neg_lo:[0,1] neg_hi:[0,1]")
            rnd2(A, r)
            A(f"v_pk_mul_f32 {v(r, 2)}, {v(r, 2)}, v[22:23] op_sel_hi:[1,0]")
            rnd2(A, r)
            unpack(A, 18, MODR + 5 + i)
            A(f"v_pk_mul_f32 {v(r, 2)}, {v(r, 2)}, v[18:19]")
            rnd2(A, r)
            unpack(A, 18, MODR + 10 + i)
            A(f"v_pk_add_f32 {v(r, 2)}, {v(r, 2)}, v[18:19]")
            A(f"v_cvt_pk_bf16_f32 v{30+i}, v{r}, v{r+1}")
            A(f"global_store_dword v{H2A}, v{30+i}, s[38:39] offset:{256 * i} sc1")
        A("s_mov_b64 exec, 1")
        A("v_mov_b32 v18, 1")
        A("s_waitcnt vmcnt(0)")
        A(f"global_store_dword v{L4}, v18, s[52:53] sc1")
        A("s_mov_b64 exec, -1")
        A.label(f"L_a_next_{sfx}")
        add64(A, 34, 34, na * SEG_H); add64(A, 36, 36, na * SEG_H); add64(A, 38, 38, na * SEG_H)
        add64(A, 22, 22, na << 19); add64(A, 30, 30, na << 17); add64(A, 52, 52, na * 128)
        A(f"s_add_u32 s24, s24, {na}")
        A("s_cmp_lt_u32 s24, 64")
        A(f"s_cbranch_scc1 L_a_top_{sfx}")
        A("s_branch L_exit")

def WFF(i): return 256 + 4 * i if i < 64 else 80 + 4 * (i - 64)

def role_f(A, nf, fg0, standalone=False):
    LG8, LW16, LRING = 0, 36864, 57344
    LH2, LACT = LRING, LRING + SEG_H
    LRED = LACT + 9216
    A(f"s_load_dwordx4 s[16:19], s[0:1], {KA_WG}")
    A(f"s_load_dwordx2 s[20:21], s[0:1], {KA_WD}")
    A(f"s_load_dwordx2 s[34:35], s[0:1], {KA_OUT}")
    dense256_consts(A, 12, 16, 9216, 1)
    dense128_consts(A, 20, 18, 1)
    lane_const(A, 24, lambda t: (t >> 1) * 9216 + (t & 1) * 16 + 256, tmp=1)
    lane_const(A, 25, lambda t: t * 16, tmp=1)
    A("s_mul_i32 s12, s9, 288")
    A("s_waitcnt lgkmcnt(0)")
    add64(A, 16, 16, "s12"); add64(A, 18, 18, "s12")
    A(f"s_mul_i32 s12, s9, {144 * 1152}")
    add64(A, 20, 20, "s12")
    A("s_lshl_b32 s26, s10, 10")
    for m in range(2):
        for i in range(5):
            if i == 4:
                A("s_cmp_ge_u32 s10, 2"); l = A.newlabel('L_f8'); A(f"s_cbranch_scc1 {l}")
            add64(A, 12, 16 + 2 * m, i * 128 * 9216)
            A(f"s_add_u32 m0, s26, {LG8 + m * 18432 + i * 4096}")
            A("global_load_lds_dwordx4 v24, s[12:13]")
            if i == 4: A.label(l)
    for i in range(5):
        if i == 4:
            A("s_cmp_ge_u32 s10, 2"); l = A.newlabel('L_f16'); A(f"s_cbranch_scc1 {l}")
        add64(A, 12, 20, 128 * 1152 + i * 4096)
        A(f"s_add_u32 m0, s26, {LW16 + i * 4096}")
        A("global_load_lds_dwordx4 v25, s[12:13]")
        if i == 4: A.label(l)
    def wg(m, ks, b): return WFF(ks * 4 + m * 2 + b)
    def wd(t, j): return WFF(72 + t * 4 + j)
    chunks = []
    for c in range(9):
        for m in range(2):
            chunks.append(dict(ptr=16 + 2 * m, off=c * 64 * 9216, vb=12, reads=dense256_reads(lambda ks, b, m=m: wg(m, ks, b), 16, c)))
    chunks += [dict(ptr=20, off=t * 128, vb=20, reads=dense128_reads(wd, 18, t)) for t in range(9)]
    ring_load(A, chunks, nslots=6, lbase=LRING)
    af_consts(A, LRED)
    A("v_mov_b32 v79, v0")
    A(f"v_lshlrev_b32 v{T16}, 4, v0")
    A(f"s_sub_u32 s24, s8, {fg0}")
    A(f"s_mul_i32 s12, s24, {SEG_H}")
    A(f"s_add_u32 s13, s12, {WS_H2}")
    add64(A, 20, S_WS, "s13")
    A("s_mul_i32 s13, s9, 1152")
    A("s_add_u32 s12, s12, s13")
    add64(A, 34, 34, "s12")
    A(f"s_add_u32 s13, s12, {WS_X1}")
    add64(A, 36, S_WS, "s13")
    A("s_lshl_b32 s13, s24, 7")
    A(f"s_add_u32 s13, s13, {WS_H2FLAG}")
    add64(A, 52, S_WS, "s13")
    add64(A, 54, S_WS, WS_MOD + 5 * 1152)
    A("s_lshl_b32 s26, s10, 10")
    A(f"s_add_u32 s26, s26, {LH2}")
    A("s_mov_b32 s25, 1")
    A(f"s_mov_b32 s60, {f32bits(-math.log2(math.e)):#x}")
    A("s_cmp_eq_u32 s11, 0")
    A("s_cbranch_scc1 L_f_top_s")
    for fast in (True, False):
        st = "" if fast else "sc1"; sfx = "f" if fast else "s"
        A.label(f"L_f_top_{sfx}")
        if not standalone:
            A(f"v_and_b32 v8, 0x7c, v{L4}")
            flag_wait(A, 8, 52, 25, 9, 12, sleep=1)
        seg_dma(A, T16, 20, 26)
        HA0, HA1, G8A, H8 = 72, 73, 74, 75
        A(f"v_lshrrev_b32 v76, 4, v{T16}")
        for par in range(2):
            lane_const(A, HA0 + par, lambda t: LH2 + (t & 15) * 1152, src=76, tmp=77)
            lane_const(A, HA0 + par, lambda t: ((4 * par + ((t >> 4) & 3)) ^ ((t & 15) >> 1)) * 16, src=76, tmp=77, acc=True)
        lane_const(A, G8A, lambda t: LG8 + ((t >> 4) & 3) * 256 + (t & 15) * 8, src=76, tmp=77)
        A("s_waitcnt vmcnt(0)")
        A("s_barrier")
        D = Lds(A)
        ACC, RING, NR = 8, 40, 5
        seq = [(ks, tt) for ks in range(18) for tt in range(2)]
        def rd(i):
            ks, tt = seq[i]
            D.op(f"ds_read_b128 {v(RING + 4 * (i % NR), 4)}, v{HA0 + (ks & 1)} offset:{tt * 18432 + (ks >> 1) * 128}", i)
        for i in range(NR - 1): rd(i)
        def ac(m, b, tt): return ACC + ((m * 2 + b) * 2 + tt) * 4
        for i, (ks, tt) in enumerate(seq):
            if i + NR - 1 < 36: rd(i + NR - 1)
            D.wait(i)
            for m in range(2):
                for b in range(2):
                    d = v(ac(m, b, tt), 4)
                    A(f"{MF32} {d}, {u(wg(m, ks, b), 4)}, {v(RING + 4 * (i % NR), 4)}, {d if ks else 0}")
        def swiglu(g, u_, dst):
            for r in (0, 2):
                rnd2(A, g + r); rnd2(A, u_ + r)
                A(f"v_pk_mul_f32 v[60:61], {v(g + r, 2)}, s[60:61] op_sel_hi:[1,0]")
                A("v_exp_f32 v60, v60"); A("v_exp_f32 v61, v61")
                A("v_pk_add_f32 v[60:61], v[60:61], 1.0 op_sel_hi:[1,0]")
                A("v_rcp_f32 v60, v60"); A("v_rcp_f32 v61, v61")
                A(f"v_pk_mul_f32 {v(g + r, 2)}, {v(g + r, 2)}, v[60:61]")
                rnd2(A, g + r)
                A(f"v_pk_mul_f32 {v(g + r, 2)}, {v(g + r, 2)}, {v(u_ + r, 2)}")
                A(f"v_cvt_pk_bf16_f32 v{dst + r // 2}, v{g+r}, v{g+r+1}")
        for tt in range(2):
            for b in range(2): swiglu(ac(0, b, tt), ac(1, b, tt), 64 + 4 * tt + 2 * b)
            A(f"v_add_u32 v62, {LACT + tt * 4096}, v{T16}")
            A(f"ds_write_b128 v62, {v(64 + 4 * tt, 4)}")
        l = A.newlabel('L_f9')
        A("s_cmp_ge_u32 s10, 2")
        A(f"s_cbranch_scc1 {l}")
        A("s_mul_i32 s12, s10, 18432")
        A(f"v_add_u32 v{HA0}, s12, v{HA0}")
        A(f"v_add_u32 v{HA1}, s12, v{HA1}")
        D.waitall()
        def rd9(ks):
            r = 16 + 12 * (ks % 3)
            D.op(f"ds_read_b128 {v(r, 4)}, v{HA0 + (ks & 1)} offset:{(ks >> 1) * 128}")
            for m in range(2):
                for hq in range(2):
                    D.op(f"ds_read_b64_tr_b16 {v(r + 4 + 4 * m + 2 * hq, 2)}, v{G8A} offset:{m * 18432 + ks * 1024 + hq * 128}", ks)
        rd9(0); rd9(1)
        for ks in range(18):
            if ks + 2 < 18: rd9(ks + 2)
            D.wait(ks)
            r = 16 + 12 * (ks % 3)
            for m in range(2):
                d = v(8 + 4 * m, 4)
                A(f"{MF32} {d}, {v(r + 4 + 4 * m, 4)}, {v(r, 4)}, {d if ks else 0}")
        swiglu(8, 12, 64)
        A(f"v_lshrrev_b32 v62, 1, v{T16}")
        A(f"v_add_u32 v62, {LACT + 8192}, v62")
        A("ds_write_b64 v62, v[64:65]")
        A.label(l)
        lane_const(A, 27, lambda t: LW16 + (4 * ((t >> 4) & 3) + ((t >> 2) & 3)) * 1152 + (t >> 6) * 32 + (t & 3) * 8, src=76, tmp=77)
        A("s_waitcnt lgkmcnt(0)")
        A("s_barrier")
        A(f"v_add_u32 v{L16}, {LACT}, v{L16}")
        out_proj(A, st, wd, 0, LRED, k16=(LACT // 2 + 8192, 27))
        A(f"v_subrev_u32 v{L16}, {LACT}, v{L16}")
        A("s_cmp_lg_u32 s10, 0")
        A(f"s_cbranch_scc1 L_f_next_{sfx}")
        for i in range(5):
            if i == 4: A("s_mov_b32 exec_hi, 0")
            A(f"global_load_dword v{50+i}, v{L4}, s[54:55] offset:{256 * i}")
            A(f"global_load_dword v{56+i}, v{L4}, s[36:37] offset:{256 * i}")
        A("s_mov_b64 exec, -1")
        A(f"v_add_u32 v{L4}, {LRED // 2}, v{L4}")
        row_gather(A, 0)
        A(f"v_subrev_u32 v{L4}, {LRED // 2}, v{L4}")
        A("s_waitcnt vmcnt(0)")
        for i in range(5):
            r = 8 + 2 * i
            if i == 4: A("s_mov_b32 exec_hi, 0")
            unpack(A, 18, 50 + i)
            A(f"v_pk_mul_f32 {v(r, 2)}, {v(r, 2)}, v[18:19]")
            rnd2(A, r)
            unpack(A, 18, 56 + i)
            A(f"v_pk_add_f32 {v(r, 2)}, {v(r, 2)}, v[18:19]")
            A(f"v_cvt_pk_bf16_f32 v{24+i}, v{r}, v{r+1}")
            A(f"global_store_dword v{L4}, v{24+i}, s[34:35] offset:{256 * i}")
        A("s_mov_b64 exec, -1")
        A.label(f"L_f_next_{sfx}")
        add64(A, 20, 20, nf * SEG_H); add64(A, 34, 34, nf * SEG_H); add64(A, 36, 36, nf * SEG_H); add64(A, 52, 52, nf * 128)
        A(f"s_add_u32 s24, s24, {nf}")
        A("s_cmp_lt_u32 s24, 64")
        A(f"s_cbranch_scc1 L_f_top_{sfx}")
        A("s_branch L_exit")
```

```python
from common import *
import math

def stage_mod(A, idx_s):
    A(f"s_load_dwordx4 s[16:19], s[0:1], {KA_C}")
    lane_const(A, 2, lambda t: (t >> 3) * 6912 + (t & 7) * 16, tmp=1)
    lane_const(A, 3, lambda t: (t >> 3) * 2, tmp=1)
    A(f"s_lshl_b32 s12, {idx_s}, 7")
    A("s_waitcnt lgkmcnt(0)")
    add64(A, 18, 18, "s12")
    for i in range(18): A(f"global_load_ushort v{8+i}, v3, s[16:17] offset:{64 * i}")
    for i in range(18):
        A(f"global_load_dwordx4 {v(40 + 4 * i, 4)}, v2, s[18:19]")
        if i < 17: add64(A, 18, 18, 32 * 6912)
    A(f"s_mov_b32 s12, {f32bits(-math.log2(math.e)):#x}")
    A("s_waitcnt vmcnt(18)")
    for i in range(18):
        r = 8 + i
        A(f"v_lshlrev_b32 v{r}, 16, v{r}")
        A(f"v_mul_f32 v4, s12, v{r}")
        A("v_exp_f32 v4, v4")
        A("v_add_f32 v4, 1.0, v4")
        A("v_rcp_f32 v4, v4")
        A(f"v_mul_f32 v{r}, v{r}, v4")
        rnd1(A, r)
    for k in range(8): A(f"v_mov_b32 v{28+k}, 0")
    for i in range(18):
        A(f"s_waitcnt vmcnt({17 - i})")
        for q in range(4):
            A(f"v_lshlrev_b32 v4, 16, v{40+4*i+q}")
            A(f"v_and_b32 v5, 0xffff0000, v{40+4*i+q}")
            A(f"v_fmac_f32 v{28+2*q}, v4, v{8+i}")
            A(f"v_fmac_f32 v{29+2*q}, v5, v{8+i}")
    A("v_lshlrev_b32 v4, 5, v0")
    A("ds_write_b128 v4, v[28:31]")
    A("ds_write_b128 v4, v[32:35] offset:16")
    A("s_waitcnt lgkmcnt(0)")
    A("s_barrier")
    l = A.newlabel('L_md')
    A("s_cmp_lg_u32 s10, 0")
    A(f"s_cbranch_scc1 {l}")
    A("v_lshlrev_b32 v4, 2, v0")
    for i in range(32): A(f"ds_read_b32 v{8+i}, v4 offset:{256 * i}")
    A("s_waitcnt lgkmcnt(0)")
    for st in (16, 8, 4, 2, 1):
        for i in range(st): A(f"v_add_f32 v{8+i}, v{8+i}, v{8+i+st}")
    rnd1(A, 8)
    A("v_add_f32 v9, 1.0, v8")
    A(f"s_sub_u32 s12, {idx_s}, 9")
    A(f"s_sub_u32 s13, {idx_s}, 36")
    A("s_min_u32 s12, s12, s13")
    A("s_cmp_lt_u32 s12, 9")
    A("s_cselect_b64 vcc, -1, 0")
    A("v_cndmask_b32 v8, v8, v9, vcc")
    A("v_cvt_pk_bf16_f32 v8, v8, v8")
    A(f"s_lshl_b32 s12, {idx_s}, 7")
    A("v_lshl_add_u32 v4, v0, 1, s12")
    A(f"global_store_short v4, v8, s[4:5] offset:{WS_MOD} sc1")
    A("s_waitcnt vmcnt(0)")
    A.label(l)
    counter_arrive(A, DBG_MODCNT, tv=4)
    A("s_barrier")

def stage_ln1(A, idx_s):
    X = 16
    A(f"s_load_dwordx2 s[16:17], s[0:1], {KA_X}")
    lane_const(A, 2, lambda t: (16 * (t >> 6) + (t & 15)) * 1152 + ((t >> 4) & 3) * 16, tmp=1)
    lane_const(A, 3, lambda t: ((t >> 4) & 3) * 16, tmp=1)
    lane_const(A, 4, lambda t: (t >> 6) * 18432 + (t & 63) * 16, tmp=1)
    A(f"s_mul_i32 s12, {idx_s}, {64 * 1152}")
    A("s_waitcnt lgkmcnt(0)")
    add64(A, 16, 16, "s12")
    A(f"s_add_u32 s12, s12, {WS_H}")
    add64(A, 18, S_WS, "s12")
    for ks in range(18): A(f"global_load_dwordx4 {v(160 + 4 * ks, 4)}, v2, s[16:17] offset:{64 * ks}")
    A("v_mov_b64 v[6:7], 0")
    for ks in range(18):
        A(f"s_waitcnt vmcnt({17 - ks})")
        for q in range(4):
            r = X + 8 * ks + 2 * q
            A(f"v_lshlrev_b32 v{r}, 16, v{160+4*ks+q}")
            A(f"v_and_b32 v{r+1}, 0xffff0000, v{160+4*ks+q}")
            A(f"v_pk_add_f32 v[6:7], v[6:7], {v(r, 2)}")
    A("v_add_f32 v6, v6, v7")
    xsum(A, 6, 7, bits=(4, 5))
    A(f"v_mul_f32 v6, {f32bits(1.0 / 576):#x}, v6")
    A("v_mov_b64 v[8:9], 0")
    for i in range(72):
        A(f"v_pk_add_f32 v[10:11], {v(X + 2 * i, 2)}, v[6:7] op_sel_hi:[1,0] neg_lo:[0,1] neg_hi:[0,1]")
        A("v_pk_fma_f32 v[8:9], v[10:11], v[10:11], v[8:9]")
    A("v_add_f32 v8, v8, v9")
    xsum(A, 8, 9, bits=(4, 5))
    A(f"v_mul_f32 v8, {f32bits(1.0 / 576):#x}, v8")
    rnd1(A, 8); rnd1(A, 6)
    A(f"v_add_f32 v8, {f32bits(1e-5):#x}, v8")
    rnd1(A, 8)
    A("v_sqrt_f32 v8, v8")
    rnd1(A, 8)
    A("v_rcp_f32 v8, v8")
    for i in range(72):
        r = X + 2 * i
        A(f"v_pk_add_f32 {v(r, 2)}, {v(r, 2)}, v[6:7] op_sel_hi:[1,0] neg_lo:[0,1] neg_hi:[0,1]")
        rnd2(A, r)
        A(f"v_pk_mul_f32 {v(r, 2)}, {v(r, 2)}, v[8:9] op_sel_hi:[1,0]")
        rnd2(A, r)
    counter_wait(A, DBG_MODCNT, 54, tv=10)
    for half in range(2):
        for k in range(9):
            ks = 9 * half + k
            A(f"global_load_dwordx4 {v(160 + 8 * k, 4)}, v3, s[4:5] offset:{WS_MOD + 1152 + 64 * ks} sc1")
            A(f"global_load_dwordx4 {v(164 + 8 * k, 4)}, v3, s[4:5] offset:{WS_MOD + 64 * ks} sc1")
        for k in range(9):
            ks = 9 * half + k
            A(f"s_waitcnt vmcnt({2 * (8 - k) + k})")
            for q in range(4):
                r = X + 8 * ks + 2 * q
                A(f"v_lshlrev_b32 v10, 16, v{160+8*k+q}")
                A(f"v_and_b32 v11, 0xffff0000, v{160+8*k+q}")
                A(f"v_lshlrev_b32 v12, 16, v{164+8*k+q}")
                A(f"v_and_b32 v13, 0xffff0000, v{164+8*k+q}")
                A(f"v_pk_mul_f32 {v(r, 2)}, {v(r, 2)}, v[10:11]")
                rnd2(A, r)
                A(f"v_pk_add_f32 {v(r, 2)}, {v(r, 2)}, v[12:13]")
                A(f"v_cvt_pk_bf16_f32 v{X+8*ks+q}, v{r}, v{r+1}")
            A(f"global_store_dwordx4 v4, {v(X + 8 * ks, 4)}, s[18:19] offset:{(ks % 4) * 1024} sc1")
            if ks % 4 == 3: add64(A, 18, 18, 4096)
    A("s_waitcnt vmcnt(0)")
    A("s_barrier")
    counter_arrive(A, DBG_HCNT, tv=10)

def WF(i):
    return 256 + 4 * i if i < 64 else 224 + 4 * (i - 64)

def role_kv(A, restart, nkv, kvg0, wait_h=True):
    A(f"s_load_dwordx4 s[16:19], s[0:1], {KA_WK}")
    dense256_consts(A, 12, 16, 8192, 1)
    A("s_lshl_b32 s12, s9, 8")
    A("s_waitcnt lgkmcnt(0)")
    add64(A, 16, 16, "s12"); add64(A, 18, 18, "s12")
    def fr(m, ks, b): return WF(ks * 4 + m * 2 + b)
    chunks = []
    for c in range(9):
        for m in range(2):
            chunks.append(dict(ptr=16 + 2 * m, off=c * 64 * 8192, vb=12, reads=dense256_reads(lambda ks, b, m=m: fr(m, ks, b), 16, c)))
    ring_load(A, chunks)
    mode_check(A, restart, tv=12)
    T16, L16, HA = 1, 2, 3
    A(f"v_lshlrev_b32 v{T16}, 4, v0")
    lane_const(A, L16, lambda t: (t & 63) * 16, tmp=12)
    A(f"s_sub_u32 s24, s8, {kvg0}")
    A(f"s_mul_i32 s12, s24, {SEG_H}")
    A(f"s_add_u32 s12, s12, {WS_H}")
    add64(A, 20, S_WS, "s12")
    A("s_lshl_b32 s12, s24, 5")
    A("s_add_u32 s12, s12, s9")
    A("s_lshl_b32 s12, s12, 14")
    A(f"s_add_u32 s12, s12, {WS_KV + 2048}")
    add64(A, 22, S_WS, "s12")
    A("s_lshl_b32 s13, s10, 11")
    A("s_add_u32 s12, s12, s13")
    A("s_add_u32 s12, s12, 6144")
    add64(A, 30, S_WS, "s12")
    A("s_lshl_b32 s12, s8, 5")
    A("s_add_u32 s12, s12, s9")
    A("s_lshl_b32 s12, s12, 7")
    A(f"s_add_u32 s12, s12, {WS_KVPROG}")
    add64(A, 32, S_WS, "s12")
    A("s_lshl_b32 s26, s10, 10")
    A("s_mov_b32 s27, 0")
    A("s_mov_b32 s28, 0")
    if wait_h: counter_wait(A, DBG_HCNT, 32, tv=12)
    def adv():
        add64(A, 20, 20, nkv * SEG_H)
        A(f"s_add_u32 s26, s26, {SEG_H}")
        A(f"s_cmp_ge_u32 s26, {3 * SEG_H}")
        A(f"s_cselect_b32 s12, {3 * SEG_H}, 0")
        A("s_sub_u32 s26, s26, s12")
    for _ in range(2):
        seg_dma(A, T16, 20, 26); adv()
    A("s_waitcnt vmcnt(9)")
    A("s_branch L_kv_first")
    A.label("L_kv_top")
    A("s_waitcnt vmcnt(14)")
    A.label("L_kv_first")
    A("s_barrier")
    A("s_sub_u32 s12, s28, 1")
    A("s_max_i32 s12, s12, 0")
    A("v_mov_b32 v4, s12")
    A("s_mov_b64 exec, 1")
    A(f"global_store_dword v{L16}, v4, s[32:33] sc1")
    A("s_mov_b64 exec, -1")
    A(f"v_add_u32 v{HA}, s27, v{L16}")
    D = Lds(A)
    ACC, RING, NR = 8, 40, 6
    seq = [(ks, tt) for ks in range(18) for tt in range(2)]
    def rd(i):
        ks, tt = seq[i]
        D.op(f"ds_read_b128 {v(RING + 4 * (i % NR), 4)}, v{HA} offset:{(tt * 18 + ks) * 1024}", i)
    for i in range(NR - 1): rd(i)
    seg_dma(A, T16, 20, 26); adv()
    for i, (ks, tt) in enumerate(seq):
        if i + NR - 1 < 36: rd(i + NR - 1)
        D.wait(i)
        h = v(RING + 4 * (i % NR), 4)
        for m in range(2):
            for b in range(2):
                d = v(ACC + ((m * 2 + b) * 2 + tt) * 4, 4)
                w = u(fr(m, ks, b), 4)
                A(f"{MF32} {d}, {w if m == 0 else h}, {h if m == 0 else w}, {d if ks else 0}")
    def ac(m, b, tt): return ACC + ((m * 2 + b) * 2 + tt) * 4
    O = 64
    for tt in range(2):
        for r in range(4): A(f"v_cvt_pk_bf16_f32 v{O+4*tt+r}, v{ac(0,0,tt)+r}, v{ac(0,1,tt)+r}")
        A(f"global_store_dwordx4 v{T16}, {v(O + 4 * tt, 4)}, s[22:23] offset:{tt * 4096 - 2048} sc1")
    for b in range(2):
        for q in range(4): A(f"v_cvt_pk_bf16_f32 v{O+8+4*b+q}, v{ac(1,b,q>>1)+2*(q&1)}, v{ac(1,b,q>>1)+2*(q&1)+1}")
        A(f"global_store_dwordx4 v{L16}, {v(O + 8 + 4 * b, 4)}, s[30:31] offset:{b * 1024} sc1")
    add64(A, 22, 22, nkv << 19); add64(A, 30, 30, nkv << 19)
    A(f"s_add_u32 s27, s27, {SEG_H}")
    A(f"s_cmp_ge_u32 s27, {3 * SEG_H}")
    A("s_cselect_b32 s27, 0, s27")
    A("s_add_u32 s28, s28, 1")
    A(f"s_add_u32 s24, s24, {nkv}")
    A("s_cmp_lt_u32 s24, 64")
    A("s_cbranch_scc1 L_kv_top")
    A("s_waitcnt vmcnt(0)")
    A("s_barrier")
    A("v_mov_b32 v4, s28")
    A("s_mov_b64 exec, 1")
    A(f"global_store_dword v{L16}, v4, s[32:33] sc1")
    A("s_branch L_exit")
```

```python
from common import *
import math, struct

L_MEM, L_KX, L_VX = 0, 9216, 17408
L_QL, L_KL, L_OL = 25600, 27904, 30208
L_JUNK = 32256
L_WK = 32768
QSTR = 288
KL0 = L_KL - L_QL
T16, WKB, L16, MEMR, QR, QKW, OW, IDX = range(0, 8)
TMPC = WKB
def WQ(ks, b): return 256 + (ks * 2 + b) * 8
def WV(ks, b):
    i = ks * 2 + b
    return 400 + i * 8 if i < 14 else 64 + (i - 14) * 8
def WO(t, k2): return 96 + (t * 2 + k2) * 8
def WK8(b): return 240 + b * 8
ACCV0, ACCQ, ACCK, MRING, WRING, ACCV1 = 8, 12, 20, 28, 40, 40
SMF = "v_smfmac_f32_16x16x64_bf16"
MF32 = "v_mfma_f32_16x16x32_bf16"
MF16 = "v_mfma_f32_16x16x16_bf16"
IDQ = "quad_perm:[0,1,2,3]"
ROR8 = "row_ror:8 row_mask:0xf bank_mask:0xf"
def FSW(i): return 2 * (0, 2, 3, 1)[i >> 1] + (i & 1)
def img(i, pos): return i * 128 + ((pos ^ FSW(i)) * 16)
PI = [0, 1, 4, 5, 2, 3, 6, 7]
EXP = {}
PF = 3
ORD = [8, 0, 1, 2, 3, 4, 5, 6, 7]

def r_setup(A):
    A(f"s_load_dwordx4 s[16:19], s[0:1], {KA_WQ}")
    A(f"s_load_dwordx4 s[20:23], s[0:1], {KA_WV}")
    A(f"s_load_dwordx2 s[24:25], s[0:1], {KA_MEM0}")
    def swz(lr): return 2 * ((lr & 1) | ((lr >> 3) & 1) << 1 | ((lr >> 5) & 1) << 2)
    def swz2(row): return 2 * (((row >> 2) & 1) | ((row >> 4) & 1) << 1)
    for ip in range(4):
        def fq(t, last=False):
            w, l = t >> 6, t & 63
            lr = 16 * w + 4 * ip + (l >> 4); e, pos = lr >> 3, lr & 7
            d = 512 + 8 * pos + e if last else 64 * (e & 1) + 4 * pos + (e >> 1)
            return d * 8192 + (((l & 15) ^ swz(lr)) * 16)
        lane_const(A, 12 + ip, fq, tmp=1)
        lane_const(A, 16 + ip, lambda t: fq(t, True), tmp=1)
        lane_const(A, 20 + ip, lambda t: (32 * (t >> 6) + 8 * ip + ((t & 63) >> 3)) * 1152, tmp=1)
        lane_const(A, 20 + ip, lambda t: ((t & 7) ^ swz2(32 * (t >> 6) + 8 * ip + ((t & 63) >> 3))) * 16, tmp=1, acc=True)
    def ftr(t, b):
        w, l = t >> 6, t & 63
        gb, half, bp, c = l >> 4, (l >> 3) & 1, (l >> 2) & 1, l & 3
        lr = 32 * (gb & 1) + 8 * bp + 2 * (gb >> 1) + half
        return L_WK + lr * 256 + (((4 * w + 2 * b + (c >> 1)) ^ swz(lr)) * 16) + (c & 1) * 8
    lane_const(A, 24, lambda t: ftr(t, 0), tmp=1)
    lane_const(A, 25, lambda t: ftr(t, 1), tmp=1)
    def fto(t):
        w, l = t >> 6, t & 63
        gb, half, bp, c = l >> 4, (l >> 3) & 1, (l >> 2) & 1, l & 3
        row = 16 * (gb & 1) + 8 * (gb >> 1) + 4 * half + bp
        return L_WK + row * 128 + (((2 * w + (c >> 1)) ^ swz2(row)) * 16) + (c & 1) * 8
    lane_const(A, 26, fto, tmp=1)
    lane_const(A, 27, lambda t: L_WK + t * 16, tmp=1)
    A("s_waitcnt lgkmcnt(0)")
    A("s_lshl_b32 s12, s9, 8")
    for p in (16, 18, 20):
        add64(A, p, p, "s12")
    A("s_mul_i32 s12, s9, 147456")
    add64(A, 22, 22, "s12")
    A("s_lshl_b32 s26, s10, 12")
    A(f"s_add_u32 s26, s26, {L_WK}")
    chunks = [('q', k) for k in range(9)] + [('v', k) for k in range(9)] + [('o', t) for t in range(9)] + [('k', 7)] + [('k', ORD[j % 8]) for j in range(28, 36)]
    ptr = {'q': 16, 'k': 18, 'v': 20, 'o': 22}
    def issue(j):
        m, k = chunks[j]
        slot = j % 8
        if m == 'o': off, vb = k * 128, 20
        elif k < 8: off, vb = (128 * (k >> 1) + 32 * (k & 1)) * 8192, 12
        else: off, vb = 0, 16
        add64(A, 12, ptr[m], off)
        for ip in range(4):
            A(f"s_add_u32 m0, s26, {slot * 16384 + ip * 1024}")
            A(f"global_load_lds_dwordx4 v{vb+ip}, s[12:13]")
    for j in range(7): issue(j)
    n = len(chunks)
    for j in range(n + 1):
        if j < n:
            ahead = min(n - 1, j + 6) - j
            A(f"s_waitcnt vmcnt({4 * ahead})")
        A("s_barrier")
        if j + 7 < n: issue(j + 7)
        if j >= 29:
            pk = (j - 1) % 8; tb = 32 + ((j - 1) & 1) * 16
            A(f"v_add_u32 v28, {pk * 16384}, v27")
            for q in range(4):
                A(f"ds_write_b128 v28, {v(tb + 4 * q, 4)} offset:{q * 4096}")
        if j < n:
            m, k = chunks[j]; slot = j % 8
            if m == 'o':
                A(f"v_add_u32 v28, {slot * 16384}, v26")
                for k2 in range(2):
                    for jq in range(4):
                        off = (64 * k2 + 32 * (jq >> 1) + 2 * (jq & 1)) * 128
                        A(f"ds_read_b64_tr_b16 {u(WO(k, k2) + 2 * jq, 2)}, v28 offset:{off}")
            else:
                A(f"v_add_u32 v28, {slot * 16384}, v24")
                A(f"v_add_u32 v29, {slot * 16384}, v25")
                for b in range(2):
                    if m == 'q': dst = WQ(k, b)
                    elif m == 'v': dst = WV(k, b)
                    elif j == 27: dst = WK8(b)
                    else: dst = 32 + (j & 1) * 16 + b * 8
                    for jq in range(4):
                        off = (16 * (jq & 1) + 4 * (jq >> 1)) * 256
                        A(f"ds_read_b64_tr_b16 {u(dst + 2 * jq, 2)}, v{28+b} offset:{off}")
        A("s_waitcnt lgkmcnt(0)")
    for m in range(3):
        def fd(t): return 256 * m + t if m < 2 else 512 + (t & 63)
        def fa(t):
            d = fd(t)
            if d < 512: ks, e, pos = 2 * (d >> 7) + ((d >> 5) & 1), 2 * (d & 3) + ((d >> 6) & 1), (d >> 2) & 7
            else: ks, e, pos = 8, d & 7, (d >> 3) & 7
            return ks * 1024 + pos * 16 + e * 2
        lane_const(A, 4 + m, lambda t: 2 * fd(t), tmp=1)
        lane_const(A, 8 + m, fa, tmp=1)
        for i in range(8):
            A(f"v_add_u32 v2, {i * 1152}, v{4+m}")
            A(f"global_load_ushort v{12+8*m+i}, v2, s[24:25]")
    A("s_waitcnt vmcnt(0)")
    for m in range(3):
        for i in range(8):
            A(f"v_xor_b32 v2, {FSW(i) * 16}, v{8+m}")
            A(f"ds_write_b16 v2, v{12+8*m+i} offset:{L_MEM + i * 128}")
    A("s_waitcnt lgkmcnt(0)")

def r_consts(A):
    lane_const(A, L16, lambda t: (t & 63) * 16, tmp=12)
    lane_const(A, MEMR, lambda t: img((t & 15) >> 1, 2 * ((t >> 4) & 3) + (t & 1)), tmp=12)
    lane_const(A, QR, lambda t: L_QL + (t & 7) * QSTR + ((t >> 4) & 3) * 16, tmp=12)
    lane_const(A, QKW, lambda t: L_QL + (0, 4, 2, 6)[(t >> 4) & 3] * QSTR + (t >> 6) * 64 + (t & 15) * 4, tmp=12)
    lane_const(A, OW, lambda t: (t >> 7) * 1024 + img(PI[t & 7], 4 * ((t >> 6) & 1) + ((t >> 4) & 3)), tmp=12)
    A(f"v_add_u32 v{OW}, {L_OL}, v{OW}")
    lane_const(A, 14, lambda t: L_JUNK + (((t >> 4) & 3) * 8 + (t & 7)) * 16, tmp=12)
    A("v_and_b32 v12, 8, v0")
    A("v_cmp_ne_u32 vcc, 0, v12")
    A(f"v_cndmask_b32 v{OW}, v{OW}, v14, vcc")
    lane_const(A, IDX, lambda t: 0xEEEE if t & 1 else 0x4444, tmp=12)
    A(f"v_lshlrev_b32 v{T16}, 4, v0")
    A("s_lshl_b32 s12, s10, 5")
    A("s_add_u32 s12, s12, s9")
    A("s_lshr_b32 s13, s9, 2")
    A("s_add_u32 s13, s13, 64")
    A("s_cmp_lt_u32 s10, 2")
    A("s_cselect_b32 s37, s12, s13")
    A("s_cselect_b32 s36, 1, 0")
    A("s_and_b32 s12, s9, 3")
    A("s_lshl_b32 s12, s12, 2")
    A("s_or_b32 s12, s12, s10")
    A("s_cmp_eq_u32 s12, 2")
    A("s_cselect_b32 s36, 2, s36")
    A("v_mov_b32 v14, s37")
    lane_const(A, 15, lambda t: ms_fn(1, t, 0), src=14, nbits=6, tmp=12)
    lane_const(A, 16, lambda t: ms_fn(2, 64 + t, 0), src=14, nbits=3, tmp=12)
    A("v_readfirstlane_b32 s41, v15")
    A("v_readfirstlane_b32 s12, v16")
    A("s_cmp_lt_u32 s10, 2")
    A("s_cselect_b32 s41, s41, s12")
    A("s_lshl_b32 s12, s9, 7")
    A(f"s_add_u32 s12, s12, {WS_RP}")
    A("s_lshl_b32 s13, s10, 14")
    A("s_add_u32 s13, s13, s12")
    add64(A, 26, S_WS, "s13")
    for p in range(1, 4): add64(A, 88 + 2 * p, 26, p * 65536)
    A("s_lshl_b32 s13, s10, 13")
    A("s_add_u32 s13, s13, s12")
    A(f"s_add_u32 s13, s13, {64 * 4096}")
    add64(A, 42, S_WS, "s13")
    A("s_lshl_b32 s12, s37, 12")
    A(f"s_add_u32 s12, s12, {WS_RP}")
    add64(A, 28, S_WS, "s12")
    add64(A, 30, S_WS, WS_RM)
    A("s_mov_b32 s44, 0x00FF00FF")
    A("s_mov_b32 s45, 0")
    cc = struct.unpack('<I', struct.pack('<f', (128 ** -0.5) * math.log2(math.e)))[0]
    A(f"s_mov_b32 s46, {cc:#x}")
    A("s_bfe_u32 s40, s9, 0x10003")
    A("s_lshl_b32 s12, s9, 14")
    A("s_lshl_b32 s13, s10, 11")
    A("s_add_u32 s12, s12, s13")
    A(f"s_add_u32 s12, s12, {WS_KV}")
    add64(A, 48, S_WS, "s12")
    A("s_sub_u32 s12, s12, s13")
    add64(A, 88, S_WS, "s12")
    A("s_lshl_b32 s12, s9, 12")
    A(f"s_add_u32 s12, s12, {WS_KVM}")
    add64(A, 50, S_WS, "s12")
    A("s_lshl_b32 s12, s9, 7")
    A(f"s_add_u32 s12, s12, {WS_RPROG}")
    add64(A, 52, S_WS, "s12")
    A("s_lshl_b32 s62, s10, 11")
    A(f"s_add_u32 s62, s62, {L_KX}")
    A("s_lshl_b32 s63, s10, 10")
    A(f"s_add_u32 s63, s63, {L_VX}")
    A("s_sub_u32 s12, 3, s10")
    A("s_lshl_b32 s16, s12, 11")
    A("s_add_u32 s17, s16, 1024")
    A("s_cmp_eq_u32 s10, 0")
    A("s_cselect_b32 s16, 8192, s16")
    A("s_cselect_b32 s17, 8192, s17")
    A("s_lshl_b32 s18, s10, 10")
    A("s_add_u32 s18, s18, 4096")

def ms_fn(kind, t, l):
    q8, gp = l & 7, (l >> 4) & 1
    if kind == 1:
        w, g = (t >> 2) & 3, t & 3
        return (t >> 3) * 1024 + img(2 * g + gp, 4 * (w & 1) + (q8 >> 1)) + (q8 & 1) * 8
    w = (t >> 1) & 3
    row = 4 * (t & 1) + 2 * (q8 >> 2) + gp
    return 8192 + img(row, 2 * w + ((q8 >> 1) & 1)) + (q8 & 1) * 8

def ms_calc(A, kind, dst, tmp):
    t0 = 0 if kind == 1 else 64
    lane_const(A, dst, lambda x: ms_fn(kind, t0, x >> 4) ^ ms_fn(kind, t0, 0), src=L16, nbits=10, tmp=tmp, mode='xor')
    A(f"v_xor_b32 v{dst}, s41, v{dst}")

def r_init_rings(A, st):
    skip = A.newlabel('L_ri'); l2 = A.newlabel('L_ri2')
    A("s_cmp_eq_u32 s36, 0")
    A(f"s_cbranch_scc1 {skip}")
    for r in range(4): A(f"v_mov_b32 v{12+r}, 1")
    for r in range(4): A(f"v_mov_b32 v{16+r}, 0")
    for j in range(4):
        A(f"global_store_dwordx4 v{L16}, {v(12 + 4 * (j & 1), 4)}, s[28:29] offset:{j * 1024} {st}")
    A("v_mov_b32 v20, -1")
    A("v_mov_b32 v21, -1")
    ms_calc(A, 1, 22, 24)
    A("s_cmp_eq_u32 s36, 1")
    A(f"s_cbranch_scc1 {l2}")
    ms_calc(A, 2, 22, 24)
    A.label(l2)
    A("s_mov_b64 exec, s[44:45]")
    for sl in range(3):
        add64(A, 12, 30, sl * 9216)
        A(f"global_store_dwordx2 v22, v[20:21], s[12:13] {st}")
    A("s_mov_b64 exec, -1")
    A.label(skip)

def kv_wait(A, seg_sgpr, nkv, kvg0, tv):
    if nkv == 0: return
    ok = A.newlabel('L_kvok'); loop = A.newlabel('L_kvp')
    A(f"s_cmp_lt_u32 {seg_sgpr}, s54")
    A(f"s_cbranch_scc1 {ok}")
    A("s_mov_b32 s55, 0")
    A.label(loop)
    A(f"v_lshrrev_b32 v{tv}, 4, v{L16}")
    A(f"v_min_u32 v{tv}, {nkv - 1}, v{tv}")
    A(f"v_lshlrev_b32 v{tv+1}, 12, v{tv}")
    A("s_lshl_b32 s12, s9, 7")
    A(f"s_add_u32 s12, s12, {WS_KVPROG + kvg0 * 4096}")
    A(f"v_add_u32 v{tv+1}, s12, v{tv+1}")
    A(f"global_load_dword v{tv+1}, v{tv+1}, s[4:5] sc1")
    A("s_add_u32 s55, s55, 1")
    A(f"s_cmp_gt_u32 s55, {SPIN_MAX}")
    A("s_cbranch_scc1 L_exit")
    A("s_waitcnt vmcnt(0)")
    A(f"v_mul_u32_u24 v{tv+1}, {nkv}, v{tv+1}")
    A(f"v_add_u32 v{tv+1}, v{tv+1}, v{tv}")
    A(f"v_readlane_b32 s54, v{tv+1}, 0")
    for j in range(1, nkv):
        A(f"v_readlane_b32 s12, v{tv+1}, {j}")
        A("s_min_u32 s54, s54, s12")
    A(f"s_cmp_lt_u32 {seg_sgpr}, s54")
    A(f"s_cbranch_scc0 {loop}")
    A.label(ok)

def r_main(A, fast, nkv, kvg0, nsteps=64):
    st = "" if fast else "sc1"
    sfx = "f" if fast else "s"
    D = Lds(A)
    TR = EXP.get('trace', [])
    def tr(name):
        if name in TR:
            i = TR.index(name)
            A(f"{'s_memrealtime' if EXP.get('real') else 's_memtime'} s[{64+2*i}:{65+2*i}]")
    def k_dma():
        A("s_mov_b32 m0, s62")
        A(f"global_load_lds_dwordx4 v{L16}, s[32:33]")
        A(f"global_load_lds_dwordx4 v{L16}, s[32:33] offset:1024")
    def v_dma():
        A("s_mov_b32 m0, s63")
        A(f"global_load_lds_dwordx4 v{L16}, s[56:57]")
        A("s_add_u32 m0, s63, 3072")
        A(f"global_load_lds_dwordx4 v{L16}, s[56:57] offset:1024")
    def kv_dma_all():
        for i in range(16):
            dst = L_KX + i * 1024 if i < 8 else L_VX + ((i - 8) & 1) * 4096 + ((i - 8) >> 1) * 1024
            if i % 4 == 0 and i: add64(A, 32, 32, 4096)
            A(f"s_mov_b32 m0, {dst - (i % 4) * 1024}")
            A(f"global_load_lds_dwordx4 v{L16}, s[32:33] offset:{(i % 4) * 1024}")
        add64(A, 32, 32, (1 << 19) - 12288)
    def touch_addr(r):
        A(f"v_lshlrev_b32 v{r}, 2, v{T16}")
    def touch(r):
        A(f"s_mov_b32 m0, {L_JUNK}")
        A(f"global_load_lds_dword v{r}, s[58:59]")
    r_init_rings(A, st)
    A("s_waitcnt vmcnt(0)")
    A("s_barrier")
    counter_arrive(A, DBG_RBAR, tv=12)
    A("s_mov_b32 s24, 0")
    A("s_mov_b32 s34, 9216")
    A("s_mov_b32 s35, 0")
    A("s_mov_b32 s54, 0")
    if TR or EXP.get('rt'):
        for i in range(24 if TR else 16): A(f"s_mov_b32 s{64+i}, 0")
    counter_wait(A, DBG_RBAR, 32, tv=12)
    A(f"s_mov_b32 s25, {PF}")
    kv_wait(A, "s25", nkv, kvg0, 12)
    A("s_mov_b64 s[32:33], s[88:89]")
    kv_dma_all()
    touch_addr(12)
    for p in range(1, PF):
        add64(A, 58, 88, p << 19)
        touch(12)
    A("s_waitcnt vmcnt(0)")
    if EXP.get('rt'):
        A("s_memrealtime s[80:81]")
        A("s_memtime s[96:97]")

    wk_seq = [(ks, b) for ks in range(8) for b in range(2)]
    def wk_read(n):
        ks, b = wk_seq[n]
        off = L_WK + ks * 16384 + b * 8192
        base = (off // 65536) * 65536
        ar = T16 if base == 0 else WKB
        if (L_WK + wk_seq[n-1][0] * 16384 + wk_seq[n-1][1] * 8192) // 65536 * 65536 != base and n:
            A(f"v_add_u32 v{WKB}, {base:#x}, v{T16}")
        r = WRING + (n % 3) * 8
        D.op(f"ds_read_b128 {v(r, 4)}, v{ar} offset:{off - base}")
        D.op(f"ds_read_b128 {v(r + 4, 4)}, v{ar} offset:{off - base + 4096}", ('wk', n))
    def spill_read(r):
        D.op(f"ds_read_b32 v{r}, v{QKW} offset:{KL0}")
        D.op(f"ds_read_b32 v{r+1}, v{QKW} offset:{KL0 + QSTR}")
        D.op(f"ds_read2_b32 {v(r + 2, 2)}, v{QKW} offset0:0 offset1:{QSTR // 4}", 'spill')
    def scal_next(first=False):
        if first:
            add64(A, 38, S_WS, WS_STAMP + 0x8000)
            A("s_mov_b32 s47, 0")
            A(f"s_mov_b32 s12, {PF}")
        else:
            A("s_lshl_b32 s12, s24, 17")
            add64(A, 38, 50, "s12")
            A("s_mov_b32 s47, s24")
            A(f"s_add_u32 s12, s24, {PF + 1}")
            A(f"s_min_u32 s12, s12, {nsteps - 1}")
        A("s_lshl_b32 s12, s12, 19")
        add64(A, 58, 88, "s12")
    def zero_acc():
        for r in range(ACCV0, ACCV0 + 20, 2): A(f"v_mov_b64 {v(r, 2)}, 0")
    for n in range(3): wk_read(n)
    scal_next(True)
    def pre_top():
        spill_read(24)
        for r in range(ACCV0, ACCV0 + 14, 2): A(f"v_mov_b64 {v(r, 2)}, 0")
        touch_addr(22)
        A("v_mov_b32 v23, s47")
    pre_top()
    D.waitall()
    top = f"L_rtop_{sfx}"
    A.label(top)
    A("s_barrier")
    tr('b1')
    def mem_read(ks, r, tag):
        D.op(f"ds_read_b128 {v(r, 4)}, v{MEMR} offset:{L_MEM + ks * 1024}", tag)
    def mslot(p): return MRING + (p % 3) * 4
    for p in range(3): mem_read(ORD[p], mslot(p), ('m', p))
    touch(22)
    A("s_mov_b64 exec, 1")
    A(f"global_store_dword v{L16}, v23, s[52:53] sc1")
    A("s_mov_b64 exec, -1")
    A(f"global_store_dwordx4 v{T16}, v[24:27], s[38:39] sc1")
    tr('a0')
    if EXP.get('twait'):
        A("s_waitcnt vmcnt(2)")
        tr('tw1')
        A("s_waitcnt vmcnt(0)")
        tr('tw2')
    loc = {('m', 8): mslot(8), ('m', 7): mslot(7), ('m', 6): mslot(6)}
    def sread(tag, r):
        loc[tag] = r
        if tag[0] == 'q': D.op(f"ds_read_b128 {v(r, 4)}, v{QR} offset:{tag[1] * 64}", tag)
        elif tag[0] == 'km': D.op(f"ds_read_b128 {v(r, 4)}, v{QR} offset:{KL0 + tag[1] * 64}", tag)
        elif tag[0] == 'kx': D.op(f"ds_read_b128 {v(r, 4)}, v{L16} offset:{L_KX + (tag[1] * 4 + tag[2]) * 1024}", tag)
        elif tag[0] == 'm': mem_read(ORD[tag[1]], r, tag)
        elif tag[0] == 'vx': D.op(f"ds_read_b128 {v(r, 4)}, v{T16} offset:{L_VX + tag[1] * 4096}", tag)
    def smf(acc, ar, w): A(f"{SMF} {v(acc, 4)}, {v(ar, 4)}, {u(w, 8)}, v{IDX}")
    for p in range(8):
        ks = ORD[p]
        D.wait(('m', p))
        m = mslot(p)
        smf(ACCQ, m, WQ(ks, 0))
        if p == 0: A("v_mov_b64 v[22:23], 0")
        smf(ACCV0, m, WV(ks, 0))
        if p == 0:
            A("v_mov_b64 v[24:25], 0")
            smf(ACCQ + 4, m, WQ(ks, 1))
            A("v_mov_b64 v[26:27], 0")
        for b in range(2):
            n = 2 * p + b
            D.wait(('wk', n))
            smf(ACCK + 4 * b, m, WRING + (n % 3) * 8)
            if n + 3 < 16: wk_read(n + 3)
            if n == 13: sread(('kx', 0, 0), 48); sread(('kx', 1, 0), 52)
            if n == 14: sread(('kx', 0, 1), 56); sread(('kx', 1, 1), 60)
            if b == 0 and p: smf(ACCQ + 4, m, WQ(ks, 1))
        if p + 3 < 9: mem_read(ORD[p + 3], mslot(p), ('m', p + 3))
        tr(f'a{p+1}')
    sread(('m', 5), 44)
    D.wait(('m', 8))
    m = mslot(8); ks = ORD[8]
    smf(ACCQ, m, WQ(ks, 0)); smf(ACCQ + 4, m, WQ(ks, 1))
    A(f"v_mov_b64 {v(ACCV1, 2)}, 0")
    smf(ACCK, m, WK8(0))
    A(f"v_mov_b64 {v(ACCV1 + 2, 2)}, 0")
    smf(ACCK + 4, m, WK8(1))
    smf(ACCV0, m, WV(ks, 0))
    tr('a9')
    fill = list(range(8, -1, -1))
    def filler(cnt=1):
        for _ in range(cnt):
            if fill:
                p = fill.pop(0)
                D.wait(('m', p))
                smf(ACCV1, loc[('m', p)], WV(ORD[p], 1))
    filler(1)
    for acc, lo in ((ACCQ, 0), (ACCK, KL0)):
        for b in range(2):
            A(f"v_add_f32 v{acc+4*b}, v{acc+4*b}, v{acc+4*b+1}")
            A(f"v_add_f32 v{acc+4*b+2}, v{acc+4*b+2}, v{acc+4*b+3}")
        A(f"v_cvt_pk_bf16_f32 v{acc+1}, v{acc}, v{acc+4}")
        A(f"v_cvt_pk_bf16_f32 v{acc+3}, v{acc+2}, v{acc+6}")
        if lo == 0: D.op(f"ds_write2_b32 v{QKW}, v{acc+1}, v{acc+3} offset0:0 offset1:{QSTR // 4}")
        else:
            D.op(f"ds_write_b32 v{QKW}, v{acc+1} offset:{lo}")
            D.op(f"ds_write_b32 v{QKW}, v{acc+3} offset:{lo + QSTR}", 'qkw')
    sread(('m', 4), 16); sread(('m', 3), 24); sread(('m', 2), mslot(8))
    tr('qkw')
    filler(3)
    D.wait('qkw')
    A("s_barrier")
    tr('b2')
    T0, T1, T2 = 12, 16, 20
    sread(('q', 0), mslot(7)); sread(('km', 0), mslot(6)); sread(('q', 1), 44)
    filler(2)
    sread(('km', 1), 24)
    filler(1)
    sread(('q', 2), mslot(8))
    pend = [('kx', 0, 2), ('kx', 1, 2), ('km', 2), ('q', 3), ('kx', 0, 3), ('kx', 1, 3), ('km', 3),
            ('m', 1), ('m', 0), ('vx', 0), ('vx', 1)]
    free = []
    for j in range(4):
        for T, tag in ((T0, ('kx', 0, j)), (T1, ('kx', 1, j)), (T2, ('km', j))):
            D.wait(('q', j)); D.wait(tag)
            A(f"{MF32} {v(T, 4)}, {v(loc[tag], 4)}, {v(loc[('q', j)], 4)}, {v(T, 4) if j else 0}")
            if pend: sread(pend.pop(0), loc[tag])
            else: free.append(loc[tag])
        if pend: sread(pend.pop(0), loc[('q', j)])
        else: free.append(loc[('q', j)])
    tr('s_done')
    BX, Z, DA, DB = free[0], free[1], free[2], free[3]
    filler(2)
    assert not fill
    M, TT, SUM = 16, 17, 18
    VMR = 22
    AO = 28
    busy = set()
    for b_ in (BX, Z, DA, DB, loc[('vx', 0)], loc[('vx', 1)], ACCV1): busy |= set(range(b_, b_ + 4))
    zq = [r for r in range(AO, AO + 36, 2) if r not in busy]
    late = set(range(DA, DA + 4)) | set(range(DB, DB + 4))
    zm = [r for r in range(AO, AO + 36, 2) if r in busy and r not in late]
    zl = [r for r in range(AO, AO + 36, 2) if r in late]
    def zero(cnt=1):
        for _ in range(cnt):
            if zq: A(f"v_mov_b64 {v(zq.pop(0), 2)}, 0")
    A(f"v_mov_b32 v{Z+1}, 0")
    A(f"v_mov_b32 v{Z+2}, 0")
    for r in range(4): A(f"v_mov_b32_dpp v{T0+r}, v{T1+r} {IDQ} row_mask:0xf bank_mask:0xc")
    A(f"v_mov_b32_dpp v{T2+2}, v{T2+3} {IDQ} row_mask:0xf bank_mask:0xc")
    A(f"v_mov_b32_dpp v{T2}, v{T2+1} {IDQ} row_mask:0x3 bank_mask:0xc")
    A(f"v_max3_f32 v{M}, v12, v13, v14")
    A(f"v_add_f32 v{ACCV0}, v{ACCV0}, v{ACCV0+1}")
    A(f"v_mov_b32_dpp v{T2}, v{T2+2} {IDQ} row_mask:0xc bank_mask:0xf")
    A(f"v_max3_f32 v{M}, v{M}, v15, v20")
    tr('max0')
    A(f"v_add_f32 v{ACCV0+2}, v{ACCV0+2}, v{ACCV0+3}")
    A(f"v_add_f32 v{ACCV1}, v{ACCV1}, v{ACCV1+1}")
    A(f"v_max_f32_dpp v{M}, v{M}, v{M} {ROR8}")
    A(f"v_mov_b32 v{TT}, v{M}")
    A(f"v_add_f32 v{ACCV1+2}, v{ACCV1+2}, v{ACCV1+3}")
    A(f"v_cvt_pk_bf16_f32 v{VMR}, v{ACCV0}, v{ACCV0+2}")
    A(f"v_permlane16_swap_b32 v{M}, v{TT}")
    A(f"v_max_f32 v{M}, v{M}, v{TT}")
    A(f"v_mov_b32 v{TT}, v{M}")
    A(f"v_cvt_pk_bf16_f32 v{VMR+1}, v{ACCV1}, v{ACCV1+2}")
    zero(1)
    A(f"v_permlane32_swap_b32 v{M}, v{TT}")
    A(f"v_max_f32 v{M}, v{M}, v{TT}")
    A(f"v_mul_f32 v{M}, s46, v{M}")
    tr('max1')
    for e in (12, 13, 14, 15, 20): A(f"v_fma_f32 v{e}, v{e}, s46, -v{M}")
    for e in (12, 13, 14, 15): A(f"v_exp_f32 v{e}, v{e}")
    A(f"v_cvt_pk_bf16_f32 v{BX}, v12, v13")
    A(f"v_cvt_pk_bf16_f32 v{BX+1}, v14, v15")
    A("v_exp_f32 v20, v20")
    A(f"v_mov_b32_dpp v{BX+2}, v{BX} {ROR8}")
    A(f"v_mov_b32_dpp v{BX+3}, v{BX+1} {ROR8}")
    A(f"v_mov_b32_dpp v21, v20 {ROR8}")
    A(f"v_add_f32 v{SUM}, v12, v13")
    D.wait(('vx', 1))
    tr('pv0')
    A(f"{MF32} {v(DA, 4)}, {v(loc[('vx', 0)], 4)}, {v(BX, 4)}, 0")
    A(f"v_cvt_pk_bf16_f32 v{Z}, v20, v21")
    A(f"v_cvt_pk_bf16_f32 v{Z+3}, v20, v21")
    A(f"{MF32} {v(DB, 4)}, {v(loc[('vx', 1)], 4)}, {v(BX, 4)}, 0")
    A(f"v_add_f32 v{TT}, v14, v15")
    A(f"v_add_f32 v{SUM}, v{SUM}, v20")
    A(f"{MF16} {v(DA, 4)}, {v(VMR, 2)}, {v(Z, 2)}, {v(DA, 4)}")
    A(f"v_add_f32 v{SUM}, v{SUM}, v{TT}")
    zero(1)
    A(f"{MF16} {v(DB, 4)}, {v(VMR, 2)}, {v(Z + 2, 2)}, {v(DB, 4)}")
    tr('pv1')
    zq += zm
    A(f"v_add_f32_dpp v{SUM}, v{SUM}, v{SUM} {ROR8}")
    A(f"v_mov_b32 v{TT}, v{SUM}")
    zero(2)
    A(f"v_permlane16_swap_b32 v{SUM}, v{TT}")
    A(f"v_add_f32 v{SUM}, v{SUM}, v{TT}")
    A(f"v_mov_b32 v{TT}, v{SUM}")
    zero(2)
    A(f"v_permlane32_swap_b32 v{SUM}, v{TT}")
    A(f"v_add_f32 v{SUM}, v{SUM}, v{TT}")
    A(f"v_rcp_f32 v{SUM}, v{SUM}")
    tr('rcp')
    zero(1)
    for k, Dx in enumerate((DA, DB)):
        for r in (0, 2): A(f"v_pk_mul_f32 {v(Dx + r, 2)}, {v(Dx + r, 2)}, {v(SUM, 2)} op_sel_hi:[1,0]")
    A(f"v_cvt_pk_bf16_f32 v12, v{DA}, v{DA+1}")
    A(f"v_cvt_pk_bf16_f32 v13, v{DA+2}, v{DA+3}")
    A(f"v_cvt_pk_bf16_f32 v14, v{DB}, v{DB+1}")
    A(f"v_cvt_pk_bf16_f32 v15, v{DB+2}, v{DB+3}")
    D.op(f"ds_write_b128 v{OW}, v[12:15]")
    tr('ow')
    zq += zl
    zq.sort()
    zero(18)
    D.waitall()
    A("s_barrier")
    tr('b3')
    OF = 12
    PS, PL = 20, 21
    D.op(f"ds_read_b128 {v(OF, 4)}, v{MEMR} offset:{L_OL}", 'o0')
    D.op(f"ds_read_b128 {v(OF + 4, 4)}, v{MEMR} offset:{L_OL + 1024}", 'o1')
    misc = Asm()
    lane_const(misc, PL, lambda x: (x >> 9) * 4096 + ((x >> 4) & 31) * 4, src=L16, nbits=10, tmp=8)
    lane_const(misc, PS, lambda x: (x >> 8) * 4096 + ((x >> 4) & 15) * 8, src=L16, nbits=10, tmp=8)
    vq = [i.text.strip() for i in misc.ins]
    A(vq.pop(0)); A(vq.pop(0))
    D.op(f"ds_write2_b32 v{QKW}, v{VMR}, v{VMR+1} offset0:0 offset1:{QSTR // 4}")
    A(vq.pop(0))
    A(f"s_cmp_eq_u32 s24, {nsteps - 1}")
    A(f"s_cbranch_scc1 L_rlast_{sfx}")
    A(vq.pop(0))
    A("s_xor_b32 s12, s24, s40")
    A(vq.pop(0))
    A("s_and_b32 s12, s12, 1")
    A(f"v_mov_b32 v{TMPC}, s12")
    def acc(t): return AO + 4 * ORD.index(t)
    def wpost(t):
        c = acc(t)
        o = [f"v_add_f32 v{c}, v{c}, v{c+1}", f"v_add_f32 v{c+1}, v{c+2}, v{c+3}"]
        if t == 8:
            o.append(f"v_cvt_pk_bf16_f32 v{c+2}, v{c}, v{c+1}")
            o.append(f"v_bfi_b32 v{c+2}, 1, v{TMPC}, v{c+2}")
            o.append(f"global_store_dword v{PL}, v{c+2}, s[42:43] {st}")
        elif t & 1:
            p = acc(t - 1); sb = 26 if t == 1 else 88 + 2 * (t // 2)
            o.append(f"v_cvt_pk_bf16_f32 v{c+2}, v{p}, v{c}")
            o.append(f"v_cvt_pk_bf16_f32 v{c+3}, v{p+1}, v{c+1}")
            o.append(f"v_bfi_b32 v{c+2}, 1, v{TMPC}, v{c+2}")
            o.append(f"global_store_dwordx2 v{PS}, {v(c + 2, 2)}, s[{sb}:{sb+1}] {st}")
        return o
    sb_ = Asm()
    sb_("s_lshl_b32 s13, s24, 17")
    add64(sb_, 38, 50, "s13")
    sb_("s_mov_b32 s47, s24")
    sb_(f"s_add_u32 s13, s24, {PF + 1}")
    sb_(f"s_min_u32 s13, s13, {nsteps - 1}")
    sb_("s_mov_b32 s25, s13")
    sb_("s_lshl_b32 s13, s13, 19")
    add64(sb_, 58, 88, "s13")
    add64(sb_, 14, 30, "s34")
    add64(sb_, 60, 30, "s35")
    add64(sb_, 20, 14, 3072)
    sb_("s_and_b32 s12, s24, 1")
    sb_("s_xor_b32 s13, s12, 1")
    sb_("s_add_u32 s24, s24, 1")
    sb_("s_mov_b32 s35, s34")
    sb_("s_add_u32 s34, s34, 9216")
    sb_("s_cmp_eq_u32 s34, 27648")
    sb_("s_cselect_b32 s34, 0, s34")
    sb_("s_mov_b32 s55, 0")
    sq = [i.text.strip() for i in sb_.ins]
    D.wait('o0')
    tr('wo0')
    seq = []
    for t in ORD: seq += [(t, 0), (t, 1)]
    for k, (t, k2) in enumerate(seq):
        if k == 1: D.wait('o1')
        smf(acc(t), OF + 4 * k2, WO(t, k2))
        for _ in range(2):
            if sq: A(sq.pop(0))
        if k2 == 1 and k >= 5: vq += wpost(seq[k - 4][0])
        for _ in range(1 if k < 5 else 2):
            if vq: A(vq.pop(0))
    assert not sq
    tr('wo1')
    vq += wpost(6)
    vq += wpost(7)
    for o in vq: A(o)
    tr('wo2')
    D.q = []
    SEL, RD, MS, LD = 12, 16, 8, 24
    def loads():
        for j in range(4):
            A(f"global_load_dwordx4 {v(LD + 4 * j, 4)}, v{L16}, s[28:29] offset:{j * 1024} sc1")
    for n in range(3): wk_read(n)
    A("s_cmp_eq_u32 s36, 0")
    A(f"s_cbranch_scc1 L_rnt_{sfx}")
    A("s_cmp_lg_u32 s10, 0")
    A(f"s_cbranch_scc1 L_rw12_{sfx}")
    for wv in (0, 1, 2):
        kind = 2 if wv == 2 else 1
        lab = f"L_rp1{wv}_{sfx}"
        if wv == 1:
            A.label(f"L_rw12_{sfx}")
            A("s_cmp_eq_u32 s10, 2")
            A(f"s_cbranch_scc1 L_rw2_{sfx}")
        if wv == 2: A.label(f"L_rw2_{sfx}")
        A(f"s_waitcnt vmcnt({EXP.get('k' + str(wv), (2, 1, 2)[wv])})")
        tr('p1s')
        loads()
        if wv == 1: A("s_barrier")
        A("v_mov_b64 v[10:11], -1")
        if kind == 1:
            A(f"v_bfe_u32 v20, v{L16}, 4, 1")
            A(f"v_bfe_u32 v21, v{L16}, 5, 1")
            A(f"v_bfe_u32 v22, v{L16}, 6, 1")
            A("v_lshl_add_u32 v22, v21, 1, v22")
        else:
            A(f"v_bfe_u32 v20, v{L16}, 6, 1")
            A(f"v_bfe_u32 v22, v{L16}, 4, 2")
        A("v_lshlrev_b32 v20, 4, v20")
        A("v_mov_b32 v21, 0x3f80")
        A("v_lshlrev_b32 v21, v20, v21")
        m_ = Asm(); ms_calc(m_, kind, MS, 9); mq = [i.text.strip() for i in m_.ins]
        for j in range(4):
            A(f"v_cmp_eq_u32 vcc, {j}, v22")
            for _ in range(2):
                if mq: A(mq.pop(0))
            A(f"v_cndmask_b32 v{SEL+j}, 0, v21, vcc")
        for o in mq: A(o)
        if wv != 1: A("s_barrier")
        A.label(lab)
        for j in range(4):
            A(f"s_waitcnt vmcnt({3 - j})")
            tr(f'p1w{j}')
            A(f"{MF32} {v(RD, 4)}, {v(SEL, 4)}, {v(LD + 4 * j, 4)}, {v(RD, 4) if j else 0}")
            sg = 's13' if j & 1 else 's12'
            A(f"v_bitop3_b32 v{20 + j}, v{LD+4*j}, v{LD+4*j+2}, {sg} bitop3:0x7e")
            if kind == 2:
                A(f"v_bitop3_b32 v9, v{LD+4*j+1}, v{LD+4*j+3}, {sg} bitop3:0x7e")
                A(f"v_or_b32 v{20 + j}, v{20 + j}, v9")
            if j == 2: A("v_or3_b32 v20, v20, v21, v22")
        A("v_bitop3_b32 v20, v20, v23, 1 bitop3:0xa8")
        A("v_cmp_ne_u32 vcc, 0, v20")
        for r in range(4): A(f"v_add_f32_dpp v{RD+r}, v{RD+r}, v{RD+r} {ROR8}")
        A(f"v_cvt_pk_bf16_f32 v20, v{RD}, v{RD+1}")
        A(f"v_cvt_pk_bf16_f32 v21, v{RD+2}, v{RD+3}")
        A(f"s_cbranch_vccz {lab}_ok")
        A("s_mov_b64 exec, vcc")
        loads()
        A("s_mov_b64 exec, -1")
        A("s_add_u32 s55, s55, 1")
        A(f"s_cmp_gt_u32 s55, {SPIN_MAX}")
        A(f"s_cbranch_scc0 {lab}")
        A("s_branch L_exit")
        A.label(lab + "_ok")
        tr('p1ok')
        A("s_mov_b64 exec, s[44:45]")
        A(f"global_store_dwordx2 v{MS}, v[20:21], s[14:15] {st}")
        A(f"global_store_dwordx2 v{MS}, v[10:11], s[60:61] {st}")
        A("s_mov_b64 exec, -1")
        if EXP.get('rt'): A("s_add_u32 s76, s76, s55")
        A(f"s_branch L_rh2_{sfx}")
    A.label(f"L_rnt_{sfx}")
    A("s_barrier")
    A("s_cmp_lg_u32 s10, 3")
    A(f"s_cbranch_scc1 L_rh2_{sfx}")
    kv_dma_all()
    kv_wait(A, "s25", nkv, kvg0, 28)
    A.label(f"L_rh2_{sfx}")
    A("s_barrier")
    tr('b4')
    D.q = []
    if EXP.get('pre1', 1): pre_top()
    A("s_cmp_eq_u32 s10, 3")
    A(f"s_cbranch_scc1 L_rw3_{sfx}")
    A("s_mov_b32 s55, 0")
    for _ in range(EXP.get('d2', 0)): A("s_nop 3")
    tr('p2s')
    def loads2():
        for j in range(3):
            A(f"global_load_dwordx4 {v(MRING + 4 * j, 4)}, v{T16}, s[20:21] offset:{(j - 1) * 3072} sc1")
    loads2()
    if not EXP.get('pre1', 1): pre_top()
    A.label(f"L_rp2_{sfx}")
    A("s_waitcnt vmcnt(2)")
    tr('p2w0')
    A(f"ds_write_b128 v{T16}, v[28:31] offset:{L_MEM}")
    A(f"v_max3_u32 v{TMPC}, v28, v29, v30")
    A("s_waitcnt vmcnt(1)")
    A(f"ds_write_b128 v{T16}, v[32:35] offset:{L_MEM + 3072}")
    A(f"v_max3_u32 v{TMPC}, v{TMPC}, v31, v32")
    A(f"v_max3_u32 v{TMPC}, v{TMPC}, v33, v34")
    A("s_waitcnt vmcnt(0)")
    A(f"ds_write_b128 v{T16}, v[36:39] offset:{L_MEM + 6144}")
    A(f"v_max3_u32 v{TMPC}, v{TMPC}, v35, v36")
    A(f"v_max3_u32 v{TMPC}, v{TMPC}, v37, v38")
    A(f"v_max_u32 v{TMPC}, v{TMPC}, v39")
    A(f"v_cmp_eq_u32 vcc, -1, v{TMPC}")
    A(f"s_cbranch_vccz L_rp2ok_{sfx}")
    A("s_mov_b64 exec, vcc")
    loads2()
    A("s_mov_b64 exec, -1")
    A("s_add_u32 s55, s55, 1")
    A(f"s_cmp_gt_u32 s55, {SPIN_MAX}")
    A(f"s_cbranch_scc0 L_rp2_{sfx}")
    A("s_branch L_exit")
    A.label(f"L_rw3_{sfx}")
    if not EXP.get('pre1', 1): pre_top()
    A("s_waitcnt vmcnt(0)")
    A.label(f"L_rp2ok_{sfx}")
    tr('p2ok')
    if EXP.get('rt'): A("s_add_u32 s77, s77, s55")
    D.waitall()
    if TR:
        A("s_cmp_lg_u32 s24, 41")
        A(f"s_cbranch_scc1 {top}")
        A("s_lshl_b32 s12, s9, 2")
        A("s_add_u32 s12, s12, s10")
        A("s_lshl_b32 s12, s12, 6")
        A(f"s_add_u32 s12, s12, {WS_STAMP + 16384}")
        A(f"v_mov_b32 v{TMPC}, s12")
        for q in range(11):
            A(f"v_mov_b32 v28, s{64 + 2 * q}")
            A(f"global_store_dword v{TMPC}, v28, s[4:5] offset:{4 * q}")
            A("s_waitcnt vmcnt(0)")
    A(f"s_branch {top}")
    A.label(f"L_rlast_{sfx}")
    D.waitall()
    spill_read(24)
    A("s_lshl_b32 s12, s24, 17")
    add64(A, 38, 50, "s12")
    D.waitall()
    A(f"global_store_dwordx4 v{T16}, v[24:27], s[38:39] sc1")
    A("s_waitcnt vmcnt(0)")
    A("s_barrier")
    A(f"v_mov_b32 v{TMPC}, {nsteps}")
    A("s_mov_b64 exec, 1")
    A(f"global_store_dword v{L16}, v{TMPC}, s[52:53] sc1")
    A("s_mov_b64 exec, -1")
    if EXP.get('rt'):
        A("s_memrealtime s[82:83]")
        A("s_memtime s[98:99]")
        A("s_waitcnt lgkmcnt(0)")
        A("s_sub_u32 s75, s98, s96")
        A("s_sub_u32 s78, s80, s84")
        A("s_sub_u32 s79, s82, s80")
        A("s_lshl_b32 s12, s9, 2")
        A("s_add_u32 s12, s12, s10")
        A("s_lshl_b32 s12, s12, 6")
        A(f"s_add_u32 s12, s12, {WS_STAMP}")
        A("v_mov_b32 v12, s12")
        for q in range(4):
            for r in range(4): A(f"v_mov_b32 v{16+r}, s{64 + 4 * q + r}")
            A(f"global_store_dwordx4 v12, v[16:19], s[4:5] offset:{16 * q}")
            A("s_waitcnt vmcnt(0)")
    A("s_branch L_exit")

def role_r(A, restart, nkv, kvg0):
    if EXP.get('rt'):
        A("s_memrealtime s[84:85]")
        A("s_waitcnt lgkmcnt(0)")
    r_setup(A)
    mode_check(A, restart, tv=12)
    r_consts(A)
    A("s_cmp_eq_u32 s11, 0")
    A("s_cbranch_scc1 L_r_slow")
    r_main(A, True, nkv, kvg0)
    A.label("L_r_slow")
    r_main(A, False, nkv, kvg0)
```

```python
import sys
import role_r as RR
from common import *
from role_kv import stage_mod, stage_ln1, role_kv
import role_af as AF
NAME = "adaLN_cond__memory_aug_recurrent_mem_tr__swiglu_ffn__prompt"
out = sys.argv[1] if len(sys.argv) > 1 else f'cdna_kernels/{NAME}.s'
for a_ in sys.argv[2:]:
    k_, _, v_ = a_.partition('=')
    RR.EXP[k_] = v_.split(',') if k_ == 'trace' else (int(v_) if v_ else 1)
AF.EXP = RR.EXP
RR.EXP.setdefault('k0', 1); RR.EXP.setdefault('k2', 1); RR.EXP.setdefault('k1', 0)
K = NAME + "_kernel"
A = Asm()
kernel_begin(A, K)
preamble(A)
if RR.EXP.get('forceslow'):
    mode_check(A, "L_roles", tv=12)
    A("s_mov_b32 s11, 0")
    A("s_lshr_b32 s8, s2, 5")
    A("s_and_b32 s9, s2, 31")
A.label("L_roles")
A("s_cmp_eq_u32 s8, 0")
A("s_cbranch_scc1 L_role_r")
A("s_cmp_eq_u32 s8, 1")
A("s_cbranch_scc1 L_role_kv")
A("s_cmp_lt_u32 s8, 5")
A("s_cbranch_scc1 L_role_a")
mode_check(A, "L_roles", tv=12)
A("s_cmp_eq_u32 s8, 7")
A("s_cbranch_scc1 L_ln")
A("s_sub_u32 s14, s8, 5")
A("s_lshl_b32 s14, s14, 5")
A("s_add_u32 s14, s14, s9")
A("s_cmp_ge_u32 s14, 54")
A("s_cbranch_scc1 L_role_f")
stage_mod(A, "s14")
A("s_branch L_role_f")
A.label("L_ln")
stage_ln1(A, "s9")
A.label("L_role_f")
AF.role_f(A, 3, 5)
A.label("L_exit")
A("s_endpgm")
A.label("L_role_r")
RR.role_r(A, "L_roles", 1, 1)
A.label("L_role_kv")
role_kv(A, "L_roles", 1, 1)
A.label("L_role_a")
AF.role_a(A, "L_roles", 3, 2, 1)
body = A.finalize()
ref = open(f'cdna_kernels/{NAME}.s.ref').read()
hdr = ref[:ref.index('; Override launch geometry')]
kn = f'kernel={K} ' if 'dev/' in out else ''
hdr += f'; @launch {kn}grid=(256,1,1) block=(256,1,1) lds=163840\n.amdgcn_target "amdgcn-amd-amdhsa--gfx950"\n.text\n'
open(out, 'w').write(hdr + body + '.section .rodata,"a"\n' + kernel_desc(K, 512, 102, 256))
print("instructions", sum(1 for i in A.ins if i.states), "nops", A.nops)
```

```python
from common import *
import math
ROWB = 32 * 2304
T16, L16, XS, XS8, XL, RW, RW8, L4 = range(8)
EXP = {}
TRN = ['top', 'go', 'mm', 'flag', 'op0', 'op1', 'ack', 'xf', 'red', 'end']
def tr(A, name):
    if not EXP.get('aftrace'): return
    if name not in TRN: TRN.append(name)
    i = TRN.index(name)
    assert i < 11
    A(f"s_memtime s[{80+2*i}:{81+2*i}]")
def tr_dump(A, seg):
    if not EXP.get('aftrace'): return
    l = A.newlabel('L_trd')
    A(f"s_cmp_lg_u32 s47, {seg}")
    A(f"s_cbranch_scc1 {l}")
    A("s_waitcnt lgkmcnt(0)")
    A("s_lshl_b32 s12, s8, 5")
    A("s_add_u32 s12, s12, s9")
    A("s_lshl_b32 s12, s12, 2")
    A("s_add_u32 s12, s12, s10")
    A("s_lshl_b32 s12, s12, 6")
    A(f"s_add_u32 s12, s12, {WS_STAMP + 0x10000}")
    A("v_mov_b32 v8, s12")
    for q in range(11):
        A(f"v_mov_b32 v9, s{80 + 2 * q}")
        A(f"global_store_dword v8, v9, s[4:5] offset:{4 * q}")
        A("s_waitcnt vmcnt(0)")
    A.label(l)

def af_consts(A, l_red):
    lane_const(A, L16, lambda t: (t & 63) * 16, tmp=12)
    lane_const(A, XS, lambda t: ((t >> 4) & 3) * 4 * ROWB + (t & 15) * 16 + (t >> 6) * 512, tmp=12)
    lane_const(A, XS8, lambda t: ((t >> 4) & 3) * 4 * ROWB + (t & 15) * 4 + (t >> 6) * 64 + 2048, tmp=12)
    lane_const(A, XL, lambda t: (8 * (t >> 6) + ((t >> 4) & 3)) * 2304 + (t & 15) * 16, tmp=12)
    lane_const(A, RW, lambda t: l_red + (t >> 6) * 2304 + (64 * ((t >> 4) & 3) + (t & 15)) * 4, tmp=12)
    lane_const(A, RW8, lambda t: l_red + (t >> 6) * 2304 + 2048 + (4 * (t & 15) + ((t >> 4) & 3)) * 4, tmp=12)
    lane_const(A, L4, lambda t: (t & 63) * 4, tmp=12)
    A(f"s_mul_i32 s12, s8, {2 * XP_SLOT}")
    A(f"s_add_u32 s12, s12, {WS_XP}")
    A("s_mul_i32 s13, s9, 2304")
    A("s_add_u32 s13, s13, s12")
    add64(A, 40, S_WS, "s13")
    A(f"s_mul_i32 s13, s9, {ROWB}")
    A("s_add_u32 s13, s13, s12")
    add64(A, 42, S_WS, "s13")
    A("s_lshl_b32 s12, s8, 7")
    A(f"s_add_u32 s12, s12, {WS_XF}")
    add64(A, 44, S_WS, "s12")
    A("s_mov_b32 s46, 0")
    A("s_mov_b32 s47, 0")

def out_proj(A, st, wfrag, l_ox, l_red, k16=None):
    D = Lds(A)
    FR, AC, A8, W16 = 8, 28, 60, 64
    add64(A, 48, 40, "s46")
    tr(A, 'op0')
    for tt in range(2):
        for j in range(4): D.op(f"ds_read_b128 {v(FR + 4 * j, 4)}, v{L16} offset:{l_ox + (tt * 4 + j) * 1024}", ('f', j))
        if k16:
            A(f"v_lshrrev_b32 v26, 1, v{L16}")
            D.op(f"ds_read_b64 v[24:25], v26 offset:{k16[0] + tt * 512}", 'f16')
        pend = []
        for grp in range(3):
            tiles = [8] if grp == 2 else list(range(4 * grp, 4 * grp + 4))
            base = A8 if grp == 2 else AC + 16 * grp
            if k16:
                for i, t in enumerate(tiles): D.op(f"ds_read_b64_tr_b16 {v(W16 + 8 * (grp & 1) + 2 * i, 2)}, v{k16[1]} offset:{t * 128}", ('w16', t))
            for j in range(4):
                D.wait(('f', j))
                for i, t in enumerate(tiles):
                    d = v(base + 4 * i, 4)
                    A(f"{MF32} {d}, {v(FR + 4 * j, 4)}, {u(wfrag(t, j), 4)}, {d if j else 0}")
                    if j >= 2 or grp == 2:
                        for _ in range(2 if grp < 2 else 4):
                            if pend: A(pend.pop(0))
            if k16:
                D.wait('f16')
                for i, t in enumerate(tiles):
                    D.wait(('w16', t))
                    d = v(base + 4 * i, 4)
                    A(f"{MF16} {d}, v[24:25], {v(W16 + 8 * (grp & 1) + 2 * i, 2)}, {d}")
            for o in pend: A(o)
            pend = []
            if EXP.get('rndpart'):
                for r_ in range(base, base + 4 * len(tiles), 2): rnd2(A, r_)
            if grp < 2:
                for a_ in range(4):
                    for b_ in range(a_ + 1, 4): pend.append(f"v_swap_b32 v{base+4*a_+b_}, v{base+4*b_+a_}")
                for r in range(4):
                    off = (16 * tt + r) * ROWB
                    pend.append(f"s_add_u32 s12, s48, {off}")
                    pend.append("s_addc_u32 s13, s49, 0")
                    pend.append(f"global_store_dwordx4 v{XS}, {v(base + 4 * r, 4)}, s[12:13] offset:{grp * 256} {st}")
            else:
                for r in range(4):
                    add64(A, 12, 48, (16 * tt + r) * ROWB)
                    A(f"global_store_dword v{XS8}, v{base+r}, s[12:13] {st}")
    tr(A, 'op1')
    A("s_add_u32 s47, s47, 1")
    A("s_waitcnt vmcnt(0)")
    A("s_barrier")
    tr(A, 'ack')
    l = A.newlabel('L_xf')
    A("s_cmp_lg_u32 s10, 0")
    A(f"s_cbranch_scc1 {l}")
    A("s_lshl_b32 s12, s9, 2")
    A("v_mov_b32 v8, s12")
    A("v_mov_b32 v9, s47")
    A("s_mov_b64 exec, 1")
    A(f"global_store_dword v8, v9, s[44:45] {st}")
    A("s_mov_b64 exec, -1")
    A.label(l)
    A(f"v_and_b32 v8, 0x7c, v{L4}")
    flag_wait(A, 8, 44, 47, 9, 12, sleep=0)
    tr(A, 'xf')
    add64(A, 48, 42, "s46")
    add64(A, 50, 48, 4 * 2304)
    for u_ in range(9):
        for hp in range(2):
            A(f"global_load_dwordx4 {v(8 + 8 * u_ + 4 * hp, 4)}, v{XL}, s[{48+2*hp}:{49+2*hp}] offset:{u_ * 256} sc1")
    for u_ in range(9):
        r = 8 + 8 * u_
        A(f"s_waitcnt vmcnt({16 - 2 * u_})")
        A(f"v_pk_add_f32 {v(r, 2)}, {v(r, 2)}, {v(r + 4, 2)}")
        A(f"v_pk_add_f32 {v(r + 2, 2)}, {v(r + 2, 2)}, {v(r + 6, 2)}")
        if u_ >= 1:
            p = r - 8
            A(f"v_permlane32_swap_b32 v{p}, v{p+2}")
            A(f"v_permlane32_swap_b32 v{p+1}, v{p+3}")
            A(f"v_pk_add_f32 {v(p, 2)}, {v(p, 2)}, {v(p + 2, 2)}")
        if u_ >= 2: fin(A, u_ - 2)
    p = 8 + 64
    A(f"v_permlane32_swap_b32 v{p}, v{p+2}")
    A(f"v_permlane32_swap_b32 v{p+1}, v{p+3}")
    A(f"v_pk_add_f32 {v(p, 2)}, {v(p, 2)}, {v(p + 2, 2)}")
    fin(A, 7); fin(A, 8)
    A("s_waitcnt lgkmcnt(0)")
    A("s_barrier")
    tr(A, 'red')
    l = A.newlabel('L_cf')
    A("s_cmp_lg_u32 s10, 1")
    A(f"s_cbranch_scc1 {l}")
    A("s_lshl_b32 s12, s9, 2")
    A("v_mov_b32 v8, s12")
    A("v_mov_b32 v9, s47")
    A("s_mov_b64 exec, 1")
    A(f"global_store_dword v8, v9, s[44:45] offset:1024 {st}")
    A("s_mov_b64 exec, -1")
    A.label(l)

def consumed_wait(A, tv):
    A(f"v_and_b32 v{tv}, 0x7c, v{L4}")
    A(f"v_add_u32 v{tv}, 1024, v{tv}")
    flag_wait(A, tv, 44, 47, tv + 1, 12, sleep=0)

def fin(A, u_):
    p = 8 + 8 * u_
    A(f"v_permlane16_swap_b32 v{p}, v{p+1}")
    A(f"v_add_f32 v{p}, v{p}, v{p+1}")
    if u_ < 8: A(f"ds_write_b32 v{RW}, v{p} offset:{(256 * (u_ & 1) + 16 * (u_ >> 1)) * 4}")
    else: A(f"ds_write_b32 v{RW8}, v{p}")

def row_gather(A, l_red):
    A(f"v_lshlrev_b32 v48, 1, v{L4}")
    for w in range(4):
        for i in range(5): A(f"ds_read_b64 {v(8 + 10 * w + 2 * i, 2)}, v48 offset:{l_red + w * 2304 + i * 512}")
    A("s_waitcnt lgkmcnt(0)")
    for i in range(5):
        r = 8 + 2 * i
        A(f"v_pk_add_f32 {v(r, 2)}, {v(r, 2)}, {v(r + 10, 2)}")
        A(f"v_pk_add_f32 {v(r + 20, 2)}, {v(r + 20, 2)}, {v(r + 30, 2)}")
        A(f"v_pk_add_f32 {v(r, 2)}, {v(r, 2)}, {v(r + 20, 2)}")
        rnd2(A, r)

def unpack(A, dst, src):
    A(f"v_lshlrev_b32 v{dst}, 16, v{src}")
    A(f"v_and_b32 v{dst+1}, 0xffff0000, v{src}")

def cached_wait(A, base, val_s, cache_s, tv):
    ok = A.newlabel('L_cw')
    A(f"s_cmp_ge_u32 s{cache_s}, s{val_s}")
    A(f"s_cbranch_scc1 {ok}")
    A(f"v_mov_b32 v{tv}, 0")
    flag_wait(A, tv, base, val_s, tv + 1, 12, sleep=1)
    A(f"v_readfirstlane_b32 s{cache_s}, v{tv+1}")
    A.label(ok)

def WA(i): return 256 + 4 * i if i < 64 else 224 + 4 * (i - 64)

def role_a(A, restart, na, ag0, kvg0, standalone=False):
    LQ, LO, LRED = 2 * SEG_H, 2 * SEG_H + 8192, 2 * SEG_H + 16384
    A(f"s_load_dwordx2 s[16:17], s[0:1], {KA_WQ}")
    A(f"s_load_dwordx2 s[18:19], s[0:1], {KA_WO}")
    A(f"s_load_dwordx2 s[34:35], s[0:1], {KA_X}")
    dense256_consts(A, 12, 16, 8192, 1)
    dense128_consts(A, 20, 18, 1)
    A("s_lshl_b32 s12, s9, 8")
    A("s_waitcnt lgkmcnt(0)")
    add64(A, 16, 16, "s12")
    A("s_mul_i32 s12, s9, 147456")
    add64(A, 18, 18, "s12")
    def wq(ks, b): return WA(ks * 2 + b)
    def wo(t, j): return WA(36 + t * 4 + j)
    chunks = [dict(ptr=16, off=c * 64 * 8192, vb=12, reads=dense256_reads(wq, 16, c)) for c in range(9)]
    chunks += [dict(ptr=18, off=t * 128, vb=20, reads=dense128_reads(wo, 18, t)) for t in range(9)]
    ring_load(A, chunks)
    mode_check(A, restart, tv=12)
    af_consts(A, LRED)
    HA, QRD, OWR, KMA, VOF, NEG, H2A = 80, 81, 82, 83, 84, 85, 86
    MODR, XR = 88, 104
    KF, VF, KM, VM = 112, 144, 160, 176
    lane_const(A, QRD, lambda t: LQ + (t >> 7) * 4096 + (t & 63) * 16, tmp=12)
    lane_const(A, OWR, lambda t: LO + (t >> 6) * 2048 + (t & 63) * 16, tmp=12)
    lane_const(A, KMA, lambda t: (((t & 15) >> 2) * 16 + 4 * ((t >> 4) & 3)) * 16 + (t & 1) * 4, tmp=12)
    lane_const(A, VOF, lambda t: ((t >> 6) & 1) * 2048 + (t & 63) * 16, tmp=12)
    A(f"v_mov_b32 v{NEG}, {f32bits(-1e9):#x}")
    A("s_bfe_u32 s12, s9, 0x30001")
    A("s_lshl_b32 s12, s12, 4")
    A(f"v_xor_b32 v{H2A}, s12, v{L4}")
    lane_const(A, 12, lambda t: 16 * (t >> 7) + (t & 15) - 4 * ((t >> 4) & 3), tmp=13)
    for k in range(8): A(f"v_cmp_le_i32 s[{64+2*k}:{65+2*k}], {(k & 3) + 16 * (k >> 2)}, v12")
    A(f"v_lshlrev_b32 v{T16}, 4, v0")
    A(f"s_sub_u32 s24, s8, {ag0}")
    A(f"s_mul_i32 s12, s24, {SEG_H}")
    A(f"s_add_u32 s13, s12, {WS_H}")
    add64(A, 20, S_WS, "s13")
    A("s_mul_i32 s13, s9, 1152")
    A("s_add_u32 s12, s12, s13")
    add64(A, 34, 34, "s12")
    A(f"s_add_u32 s13, s12, {WS_X1}")
    add64(A, 36, S_WS, "s13")
    A(f"s_add_u32 s13, s12, {WS_H2}")
    add64(A, 38, S_WS, "s13")
    A("s_lshl_b32 s12, s24, 5")
    A("s_add_u32 s12, s12, s9")
    A("s_lshl_b32 s13, s12, 14")
    A(f"s_add_u32 s13, s13, {WS_KV + 4096}")
    add64(A, 22, S_WS, "s13")
    A("s_lshl_b32 s13, s12, 12")
    A(f"s_add_u32 s13, s13, {WS_KVM}")
    add64(A, 30, S_WS, "s13")
    A("s_lshl_b32 s13, s12, 2")
    A(f"s_add_u32 s13, s13, {WS_H2FLAG}")
    add64(A, 52, S_WS, "s13")
    A("s_lshl_b32 s12, s9, 7")
    A(f"s_add_u32 s13, s12, {WS_KVPROG + kvg0 * 4096}")
    add64(A, 54, S_WS, "s13")
    A(f"s_add_u32 s13, s12, {WS_RPROG}")
    add64(A, 56, S_WS, "s13")
    A(f"s_mov_b32 s58, {64 if standalone else 0}")
    A(f"s_mov_b32 s59, {64 if standalone else 0}")
    A("s_lshl_b32 s26, s10, 10")
    A("s_mov_b32 s27, 0")
    A(f"s_mov_b32 s60, {f32bits(128 ** -0.5):#x}")
    A(f"s_mov_b32 s61, {f32bits(math.log2(math.e)):#x}")
    if not standalone: counter_wait(A, DBG_HCNT, 32, tv=12)
    for k, ch in enumerate((2, 4, 3)):
        add64(A, 12, S_WS, WS_MOD + ch * 1152)
        for i in range(5): A(f"global_load_dword v{MODR+5*k+i}, v{L4}, s[12:13] offset:{256 * i} sc1")
    def hdma():
        seg_dma(A, T16, 20, 26)
        add64(A, 20, 20, na * SEG_H)
        A(f"s_xor_b32 s26, s26, {SEG_H}")
    assert SEG_H & 3072 == 0
    hdma()
    A("s_cmp_eq_u32 s11, 0")
    A("s_cbranch_scc1 L_a_top_s")
    for fast in (True, False):
        st = "" if fast else "sc1"; sfx = "f" if fast else "s"
        A.label(f"L_a_top_{sfx}")
        tr(A, 'top')
        A("s_add_u32 s25, s24, 1")
        cached_wait(A, 54, 25, 58, 8)
        for i in range(8): A(f"global_load_dwordx4 {v(KF + 4 * i, 4)}, v{L16}, s[22:23] offset:{i * 1024 - 4096}")
        A("s_and_b32 s12, s10, 1")
        A("s_lshl_b32 s12, s12, 12")
        A("s_add_u32 s12, s12, 4096")
        add64(A, 12, 22, "s12")
        for i in range(4): A(f"global_load_dwordx4 {v(VF + 4 * i, 4)}, v{L16}, s[12:13] offset:{i * 1024}")
        A("s_mov_b32 exec_hi, 0")
        A(f"global_load_dword v{XR+4}, v{L4}, s[34:35] offset:1024")
        A("s_mov_b64 exec, -1")
        for i in range(4): A(f"global_load_dword v{XR+i}, v{L4}, s[34:35] offset:{256 * i}")
        A(f"v_add_u32 v{HA}, s27, v{L16}")
        A("s_waitcnt vmcnt(17)")
        A("s_barrier")
        tr(A, 'go')
        D = Lds(A)
        ACC, RING, NR = 8, 24, 6
        seq = [(ks, tt) for ks in range(18) for tt in range(2)]
        def rd(i):
            ks, tt = seq[i]
            D.op(f"ds_read_b128 {v(RING + 4 * (i % NR), 4)}, v{HA} offset:{(tt * 18 + ks) * 1024}", i)
        for i in range(NR - 1): rd(i)
        hdma()
        A(f"s_xor_b32 s27, s27, {SEG_H}")
        for i, (ks, tt) in enumerate(seq):
            if i + NR - 1 < 36: rd(i + NR - 1)
            D.wait(i)
            for b in range(2):
                d = v(ACC + (b * 2 + tt) * 4, 4)
                A(f"{MF32} {d}, {u(wq(ks, b), 4)}, {v(RING + 4 * (i % NR), 4)}, {d if ks else 0}")
        for tt in range(2):
            for r in range(4): A(f"v_cvt_pk_bf16_f32 v{48+4*tt+r}, v{ACC+4*tt+r}, v{ACC+8+4*tt+r}")
            A(f"v_add_u32 v56, {LQ + tt * 4096}, v{T16}")
            A(f"ds_write_b128 v56, {v(48 + 4 * tt, 4)}")
        A("s_waitcnt lgkmcnt(0)")
        A("s_barrier")
        QF = 24
        for j in range(4): A(f"ds_read_b128 {v(QF + 4 * j, 4)}, v{QRD} offset:{j * 1024}")
        A("s_waitcnt vmcnt(9) lgkmcnt(0)")
        T0, T1, T2 = 8, 12, 16
        for j in range(4):
            for kt in range(2):
                d = v(T0 + 4 * kt, 4)
                A(f"{MF32} {d}, {v(KF + 4 * (kt * 4 + j), 4)}, {v(QF + 4 * j, 4)}, {d if j else 0}")
        consumed_wait(A, 40)
        tr(A, 'mm')
        cached_wait(A, 56, 25, 59, 40)
        tr(A, 'flag')
        for j in range(4):
            for m in range(4): A(f"global_load_dword v{KM+4*j+m}, v{KMA}, s[30:31] offset:{j * 1024 + m * 16}")
        for i in range(2): A(f"global_load_dwordx2 {v(VM + 2 * i, 2)}, v{VOF}, s[30:31] offset:{i * 1024 + 8}")
        def scale(r):
            if not EXP.get('nosr'): rnd2(A, r)
            A(f"v_pk_mul_f32 {v(r, 2)}, {v(r, 2)}, s[60:61] op_sel_hi:[1,0]")
            if not EXP.get('nosr'): rnd2(A, r)
        for r in range(T0, T0 + 8, 2): scale(r)
        for k in range(8): A(f"v_cndmask_b32 v{T0+k}, v{NEG}, v{T0+k}, s[{64+2*k}:{65+2*k}]")
        M, TT, SUM = 20, 21, 22
        A(f"v_max3_f32 v{M}, v8, v9, v10")
        A(f"v_max3_f32 v{M}, v{M}, v11, v12")
        A(f"v_max3_f32 v{M}, v{M}, v13, v14")
        A(f"v_max_f32 v{M}, v{M}, v15")
        for j in range(4):
            A(f"s_waitcnt vmcnt({14 - 4 * j})")
            A(f"{MF32} {v(T2, 4)}, {v(KM + 4 * j, 4)}, {v(QF + 4 * j, 4)}, {v(T2, 4) if j else 0}")
        scale(T2)
        A(f"v_max3_f32 v{M}, v{M}, v16, v17")
        xsum(A, M, TT, op="v_max_f32", bits=(4, 5))
        for r in range(8, 18, 2): A(f"v_pk_add_f32 {v(r, 2)}, {v(r, 2)}, {v(M, 2)} op_sel_hi:[1,0] neg_lo:[0,1] neg_hi:[0,1]")
        for r in range(8, 18, 2): A(f"v_pk_mul_f32 {v(r, 2)}, {v(r, 2)}, s[60:61] op_sel:[0,1]")
        for r in range(8, 18): A(f"v_exp_f32 v{r}, v{r}")
        A(f"v_pk_add_f32 {v(SUM, 2)}, v[8:9], v[10:11]")
        for r in (12, 14, 16): A(f"v_pk_add_f32 {v(SUM, 2)}, {v(SUM, 2)}, {v(r, 2)}")
        A(f"v_add_f32 v{SUM}, v{SUM}, v{SUM+1}")
        xsum(A, SUM, TT, bits=(4, 5))
        A(f"v_rcp_f32 v{SUM}, v{SUM}")
        for r in range(8, 18, 2): A(f"v_pk_mul_f32 {v(r, 2)}, {v(r, 2)}, {v(SUM, 2)} op_sel_hi:[1,0]")
        BX, Z = 40, 44
        for q in range(4): A(f"v_cvt_pk_bf16_f32 v{BX+q}, v{8+2*q}, v{9+2*q}")
        A(f"v_cvt_pk_bf16_f32 v{Z}, v16, v17")
        A(f"v_mov_b32 v{Z+1}, 0")
        A(f"v_mov_b32 v{Z+2}, 0")
        A(f"v_mov_b32 v{Z+3}, v{Z}")
        OA = 24
        for t in range(4): A(f"{MF32} {v(OA + 4 * t, 4)}, {v(VF + 4 * t, 4)}, {v(BX, 4)}, 0")
        A("s_waitcnt vmcnt(0)")
        for t in range(4): A(f"{MF16} {v(OA + 4 * t, 4)}, {v(VM + 2 * (t >> 1), 2)}, {v(Z + 2 * (t & 1), 2)}, {v(OA + 4 * t, 4)}")
        for q in range(8): A(f"v_cvt_pk_bf16_f32 v{48+q}, v{OA+2*q}, v{OA+2*q+1}")
        A(f"ds_write_b128 v{OWR}, v[48:51]")
        A(f"ds_write_b128 v{OWR}, v[52:55] offset:1024")
        A("s_waitcnt lgkmcnt(0)")
        A("s_barrier")
        oa = Asm()
        A(f"v_add_u32 v{L16}, {LO}, v{L16}")
        out_proj(A, st, wo, 0, LRED)
        A(f"v_subrev_u32 v{L16}, {LO}, v{L16}")
        A("s_cmp_lg_u32 s10, 0")
        A(f"s_cbranch_scc1 L_a_next_{sfx}")
        A(f"v_add_u32 v{L4}, {LRED // 2}, v{L4}")
        row_gather(A, 0)
        A(f"v_subrev_u32 v{L4}, {LRED // 2}, v{L4}")
        A("v_mov_b64 v[20:21], 0")
        for i in range(5):
            r = 8 + 2 * i
            if i == 4: A("s_mov_b32 exec_hi, 0")
            unpack(A, 18, MODR + i)
            A(f"v_pk_mul_f32 {v(r, 2)}, {v(r, 2)}, v[18:19]")
            rnd2(A, r)
            unpack(A, 18, XR + i)
            A(f"v_pk_add_f32 {v(r, 2)}, {v(r, 2)}, v[18:19]")
            A(f"v_cvt_pk_bf16_f32 v{24+i}, v{r}, v{r+1}")
            unpack(A, r, 24 + i)
            A(f"global_store_dword v{L4}, v{24+i}, s[36:37] offset:{256 * i} sc1")
            A(f"v_pk_add_f32 v[20:21], v[20:21], {v(r, 2)}")
        A("s_mov_b64 exec, -1")
        A("v_add_f32 v20, v20, v21")
        xsum(A, 20, 21)
        A(f"v_mul_f32 v20, {f32bits(1.0 / 576):#x}, v20")
        A("v_mov_b64 v[22:23], 0")
        for i in range(5):
            if i == 4: A("s_mov_b32 exec_hi, 0")
            A(f"v_pk_add_f32 v[18:19], {v(8 + 2 * i, 2)}, v[20:21] op_sel_hi:[1,0] neg_lo:[0,1] neg_hi:[0,1]")
            A("v_pk_fma_f32 v[22:23], v[18:19], v[18:19], v[22:23]")
        A("s_mov_b64 exec, -1")
        A("v_add_f32 v22, v22, v23")
        xsum(A, 22, 23)
        A(f"v_mul_f32 v22, {f32bits(1.0 / 576):#x}, v22")
        rnd1(A, 22); rnd1(A, 20)
        A(f"v_add_f32 v22, {f32bits(1e-5):#x}, v22")
        rnd1(A, 22)
        A("v_sqrt_f32 v22, v22")
        rnd1(A, 22)
        A("v_rcp_f32 v22, v22")
        for i in range(5):
            r = 8 + 2 * i
            if i == 4: A("s_mov_b32 exec_hi, 0")
            A(f"v_pk_add_f32 {v(r, 2)}, {v(r, 2)}, v[20:21] op_sel_hi:[1,0] neg_lo:[0,1] neg_hi:[0,1]")
            rnd2(A, r)
            A(f"v_pk_mul_f32 {v(r, 2)}, {v(r, 2)}, v[22:23] op_sel_hi:[1,0]")
            rnd2(A, r)
            unpack(A, 18, MODR + 5 + i)
            A(f"v_pk_mul_f32 {v(r, 2)}, {v(r, 2)}, v[18:19]")
            rnd2(A, r)
            unpack(A, 18, MODR + 10 + i)
            A(f"v_pk_add_f32 {v(r, 2)}, {v(r, 2)}, v[18:19]")
            A(f"v_cvt_pk_bf16_f32 v{30+i}, v{r}, v{r+1}")
            A(f"global_store_dword v{H2A}, v{30+i}, s[38:39] offset:{256 * i} sc1")
        A("s_mov_b64 exec, 1")
        A("v_mov_b32 v18, 1")
        A("s_waitcnt vmcnt(0)")
        A(f"global_store_dword v{L4}, v18, s[52:53] sc1")
        A("s_mov_b64 exec, -1")
        A.label(f"L_a_next_{sfx}")
        tr(A, 'end'); tr_dump(A, EXP.get('aftrace', 0))
        add64(A, 34, 34, na * SEG_H); add64(A, 36, 36, na * SEG_H); add64(A, 38, 38, na * SEG_H)
        add64(A, 22, 22, na << 19); add64(A, 30, 30, na << 17); add64(A, 52, 52, na * 128)
        A(f"s_add_u32 s24, s24, {na}")
        A("s_cmp_lt_u32 s24, 64")
        A(f"s_cbranch_scc1 L_a_top_{sfx}")
        A("s_branch L_exit")

def WFF(i): return 256 + 4 * i if i < 64 else 80 + 4 * (i - 64)

def role_f(A, nf, fg0, standalone=False):
    LG8, LW16, LRING = 0, 36864, 57344
    LH2, LACT = LRING, LRING + SEG_H
    LRED = LACT + 9216
    A(f"s_load_dwordx4 s[16:19], s[0:1], {KA_WG}")
    A(f"s_load_dwordx2 s[20:21], s[0:1], {KA_WD}")
    A(f"s_load_dwordx2 s[34:35], s[0:1], {KA_OUT}")
    dense256_consts(A, 12, 16, 9216, 1)
    dense128_consts(A, 20, 18, 1)
    lane_const(A, 24, lambda t: (t >> 1) * 9216 + (t & 1) * 16 + 256, tmp=1)
    lane_const(A, 25, lambda t: t * 16, tmp=1)
    A("s_mul_i32 s12, s9, 288")
    A("s_waitcnt lgkmcnt(0)")
    add64(A, 16, 16, "s12"); add64(A, 18, 18, "s12")
    A(f"s_mul_i32 s12, s9, {144 * 1152}")
    add64(A, 20, 20, "s12")
    A("s_lshl_b32 s26, s10, 10")
    for m in range(2):
        for i in range(5):
            if i == 4:
                A("s_cmp_ge_u32 s10, 2"); l = A.newlabel('L_f8'); A(f"s_cbranch_scc1 {l}")
            add64(A, 12, 16 + 2 * m, i * 128 * 9216)
            A(f"s_add_u32 m0, s26, {LG8 + m * 18432 + i * 4096}")
            A("global_load_lds_dwordx4 v24, s[12:13]")
            if i == 4: A.label(l)
    for i in range(5):
        if i == 4:
            A("s_cmp_ge_u32 s10, 2"); l = A.newlabel('L_f16'); A(f"s_cbranch_scc1 {l}")
        add64(A, 12, 20, 128 * 1152 + i * 4096)
        A(f"s_add_u32 m0, s26, {LW16 + i * 4096}")
        A("global_load_lds_dwordx4 v25, s[12:13]")
        if i == 4: A.label(l)
    def wg(m, ks, b): return WFF(ks * 4 + m * 2 + b)
    def wd(t, j): return WFF(72 + t * 4 + j)
    chunks = []
    for c in range(9):
        for m in range(2):
            chunks.append(dict(ptr=16 + 2 * m, off=c * 64 * 9216, vb=12, reads=dense256_reads(lambda ks, b, m=m: wg(m, ks, b), 16, c)))
    chunks += [dict(ptr=20, off=t * 128, vb=20, reads=dense128_reads(wd, 18, t)) for t in range(9)]
    ring_load(A, chunks, nslots=6, lbase=LRING)
    af_consts(A, LRED)
    A("v_mov_b32 v79, v0")
    A(f"v_lshlrev_b32 v{T16}, 4, v0")
    A(f"s_sub_u32 s24, s8, {fg0}")
    A(f"s_mul_i32 s12, s24, {SEG_H}")
    A(f"s_add_u32 s13, s12, {WS_H2}")
    add64(A, 20, S_WS, "s13")
    A("s_mul_i32 s13, s9, 1152")
    A("s_add_u32 s12, s12, s13")
    add64(A, 34, 34, "s12")
    A(f"s_add_u32 s13, s12, {WS_X1}")
    add64(A, 36, S_WS, "s13")
    A("s_lshl_b32 s13, s24, 7")
    A(f"s_add_u32 s13, s13, {WS_H2FLAG}")
    add64(A, 52, S_WS, "s13")
    add64(A, 54, S_WS, WS_MOD + 5 * 1152)
    A("s_lshl_b32 s26, s10, 10")
    A(f"s_add_u32 s26, s26, {LH2}")
    A("s_mov_b32 s25, 1")
    A(f"s_mov_b32 s60, {f32bits(-math.log2(math.e)):#x}")
    A("s_cmp_eq_u32 s11, 0")
    A("s_cbranch_scc1 L_f_top_s")
    for fast in (True, False):
        st = "" if fast else "sc1"; sfx = "f" if fast else "s"
        A.label(f"L_f_top_{sfx}")
        tr(A, 'top')
        consumed_wait(A, 8)
        if not standalone:
            A(f"v_and_b32 v8, 0x7c, v{L4}")
            flag_wait(A, 8, 52, 25, 9, 12, sleep=1)
        tr(A, 'flag')
        seg_dma(A, T16, 20, 26)
        HA0, HA1, G8A, H8 = 72, 73, 74, 75
        A(f"v_lshrrev_b32 v76, 4, v{T16}")
        for par in range(2):
            lane_const(A, HA0 + par, lambda t: LH2 + (t & 15) * 1152, src=76, tmp=77)
            lane_const(A, HA0 + par, lambda t: ((4 * par + ((t >> 4) & 3)) ^ ((t & 15) >> 1)) * 16, src=76, tmp=77, acc=True)
        lane_const(A, G8A, lambda t: LG8 + ((t >> 4) & 3) * 256 + (t & 15) * 8, src=76, tmp=77)
        A("s_waitcnt vmcnt(0)")
        A("s_barrier")
        D = Lds(A)
        tr(A, 'go')
        ACC, RING, NR = 8, 40, 5
        seq = [(ks, tt) for ks in range(18) for tt in range(2)]
        def rd(i):
            ks, tt = seq[i]
            D.op(f"ds_read_b128 {v(RING + 4 * (i % NR), 4)}, v{HA0 + (ks & 1)} offset:{tt * 18432 + (ks >> 1) * 128}", i)
        for i in range(NR - 1): rd(i)
        def ac(m, b, tt): return ACC + ((m * 2 + b) * 2 + tt) * 4
        for i, (ks, tt) in enumerate(seq):
            if i + NR - 1 < 36: rd(i + NR - 1)
            D.wait(i)
            for m in range(2):
                for b in range(2):
                    d = v(ac(m, b, tt), 4)
                    A(f"{MF32} {d}, {u(wg(m, ks, b), 4)}, {v(RING + 4 * (i % NR), 4)}, {d if ks else 0}")
        tr(A, 'mm')
        def swiglu(g, u_, dst):
            for r in (0, 2):
                rnd2(A, g + r); rnd2(A, u_ + r)
                A(f"v_pk_mul_f32 v[60:61], {v(g + r, 2)}, s[60:61] op_sel_hi:[1,0]")
                A("v_exp_f32 v60, v60"); A("v_exp_f32 v61, v61")
                A("v_pk_add_f32 v[60:61], v[60:61], 1.0 op_sel_hi:[1,0]")
                A("v_rcp_f32 v60, v60"); A("v_rcp_f32 v61, v61")
                A(f"v_pk_mul_f32 {v(g + r, 2)}, {v(g + r, 2)}, v[60:61]")
                rnd2(A, g + r)
                A(f"v_pk_mul_f32 {v(g + r, 2)}, {v(g + r, 2)}, {v(u_ + r, 2)}")
                A(f"v_cvt_pk_bf16_f32 v{dst + r // 2}, v{g+r}, v{g+r+1}")
        for tt in range(2):
            for b in range(2): swiglu(ac(0, b, tt), ac(1, b, tt), 64 + 4 * tt + 2 * b)
            A(f"v_add_u32 v62, {LACT + tt * 4096}, v{T16}")
            A(f"ds_write_b128 v62, {v(64 + 4 * tt, 4)}")
        l = A.newlabel('L_f9')
        A("s_cmp_ge_u32 s10, 2")
        A(f"s_cbranch_scc1 {l}")
        A("s_mul_i32 s12, s10, 18432")
        A(f"v_add_u32 v{HA0}, s12, v{HA0}")
        A(f"v_add_u32 v{HA1}, s12, v{HA1}")
        D.waitall()
        def rd9(ks):
            r = 16 + 12 * (ks % 3)
            D.op(f"ds_read_b128 {v(r, 4)}, v{HA0 + (ks & 1)} offset:{(ks >> 1) * 128}")
            for m in range(2):
                for hq in range(2):
                    D.op(f"ds_read_b64_tr_b16 {v(r + 4 + 4 * m + 2 * hq, 2)}, v{G8A} offset:{m * 18432 + ks * 1024 + hq * 128}", ks)
        rd9(0); rd9(1)
        for ks in range(18):
            if ks + 2 < 18: rd9(ks + 2)
            D.wait(ks)
            r = 16 + 12 * (ks % 3)
            for m in range(2):
                d = v(8 + 4 * m, 4)
                A(f"{MF32} {d}, {v(r + 4 + 4 * m, 4)}, {v(r, 4)}, {d if ks else 0}")
        swiglu(8, 12, 64)
        A(f"v_lshrrev_b32 v62, 1, v{T16}")
        A(f"v_add_u32 v62, {LACT + 8192}, v62")
        A("ds_write_b64 v62, v[64:65]")
        A.label(l)
        lane_const(A, 27, lambda t: LW16 + (4 * ((t >> 4) & 3) + ((t >> 2) & 3)) * 1152 + (t >> 6) * 32 + (t & 3) * 8, src=76, tmp=77)
        A("s_waitcnt lgkmcnt(0)")
        A("s_barrier")
        A(f"v_add_u32 v{L16}, {LACT}, v{L16}")
        out_proj(A, st, wd, 0, LRED, k16=(LACT // 2 + 8192, 27))
        A(f"v_subrev_u32 v{L16}, {LACT}, v{L16}")
        A("s_cmp_lg_u32 s10, 0")
        A(f"s_cbranch_scc1 L_f_next_{sfx}")
        for i in range(5):
            if i == 4: A("s_mov_b32 exec_hi, 0")
            A(f"global_load_dword v{50+i}, v{L4}, s[54:55] offset:{256 * i}")
            A(f"global_load_dword v{56+i}, v{L4}, s[36:37] offset:{256 * i}")
        A("s_mov_b64 exec, -1")
        A(f"v_add_u32 v{L4}, {LRED // 2}, v{L4}")
        row_gather(A, 0)
        A(f"v_subrev_u32 v{L4}, {LRED // 2}, v{L4}")
        A("s_waitcnt vmcnt(0)")
        for i in range(5):
            r = 8 + 2 * i
            if i == 4: A("s_mov_b32 exec_hi, 0")
            unpack(A, 18, 50 + i)
            A(f"v_pk_mul_f32 {v(r, 2)}, {v(r, 2)}, v[18:19]")
            rnd2(A, r)
            unpack(A, 18, 56 + i)
            A(f"v_pk_add_f32 {v(r, 2)}, {v(r, 2)}, v[18:19]")
            A(f"v_cvt_pk_bf16_f32 v{24+i}, v{r}, v{r+1}")
            A(f"global_store_dword v{L4}, v{24+i}, s[34:35] offset:{256 * i}")
        A("s_mov_b64 exec, -1")
        A.label(f"L_f_next_{sfx}")
        tr(A, 'end'); tr_dump(A, EXP.get('aftrace', 0))
        add64(A, 20, 20, nf * SEG_H); add64(A, 34, 34, nf * SEG_H); add64(A, 36, 36, nf * SEG_H); add64(A, 52, 52, nf * 128)
        A(f"s_add_u32 s24, s24, {nf}")
        A("s_cmp_lt_u32 s24, 64")
        A(f"s_cbranch_scc1 L_f_top_{sfx}")
        A("s_branch L_exit")
```

```python
from asmlib import *

KA_X, KA_MEM0, KA_WQ, KA_WK, KA_WV, KA_WO, KA_SEG, KA_BX, KA_WG, KA_WU, KA_WD, KA_C, KA_WMOD, KA_OUT, KA_DBG, KA_WS = [8 * i for i in range(16)]

WS_MOD   = 0x0
WS_KVPROG = 0x10000
WS_RPROG = 0x18000
WS_H2FLAG = 0x1A000
WS_XF    = 0x1C000
WS_STAMP = 0x20000
WS_H     = 0x100000
WS_H2    = 0x400000
WS_X1    = 0x700000
WS_KV    = 0x1000000
WS_KVM   = 0x3000000
WS_RP    = 0x3800000
WS_RM    = 0x3900000
WS_XP    = 0x4000000
RP_SLOT = 72 * 32 * 128
XP_SLOT = 32 * 32 * 2304
SEG_H = 36864

DBG_TICKET = 0
DBG_CLR = 8
DBG_RBAR = 34
DBG_MODCNT = 8
DBG_HCNT = 40
DBG_ERR = 40

S_WS = 4
S_DBG = 6
S_GRP, S_MEM, S_WAVE, S_FAST = 8, 9, 10, 11
SPIN_MAX = 400000

class Lds:
    def __init__(self, A):
        self.A = A; self.q = []
    def op(self, text, tag=None):
        self.A(text); self.q.append(tag)
    def wait(self, tag):
        if tag not in self.q: return
        i = len(self.q) - 1 - self.q[::-1].index(tag)
        n = len(self.q) - 1 - i
        self.A(f"s_waitcnt lgkmcnt({min(n, 15)})")
        if n > 15:
            self.q = self.q[len(self.q) - 15:]
        else:
            self.q = self.q[i + 1:]
    def waitall(self):
        self.A("s_waitcnt lgkmcnt(0)"); self.q = []

def add64(A, dst, src, off):
    A(f"s_add_u32 s{dst}, s{src}, {off}")
    A(f"s_addc_u32 s{dst+1}, s{src+1}, 0")

def arr_word(g): return (g & 3) + 32 * (g >> 2)
def preamble(A, nwg=256):
    A(f"s_cmp_ge_u32 s2, {nwg}")
    A("s_cbranch_scc1 L_exit")
    A(f"s_load_dwordx4 s[4:7], s[0:1], {KA_DBG}")
    A("s_getreg_b32 s3, hwreg(HW_REG_XCC_ID, 0, 4)")
    A("v_lshrrev_b32 v1, 6, v0")
    A("v_readfirstlane_b32 s10, v1")
    A("s_and_b32 s8, s2, 7")
    A("s_lshr_b32 s9, s2, 3")
    A("v_and_b32 v1, 63, v0")
    A("s_waitcnt lgkmcnt(0)")
    A("s_mov_b64 s[12:13], s[4:5]")
    A("s_mov_b64 s[4:5], s[6:7]")
    A("s_mov_b64 s[6:7], s[12:13]")
    l2 = A.newlabel('L_pre')
    A("s_cmp_lg_u32 s10, 3")
    A(f"s_cbranch_scc1 {l2}")
    A("s_lshl_b32 s12, s2, 8")
    A(f"s_add_u32 s12, s12, {WS_KVPROG}")
    A("v_lshl_add_u32 v2, v1, 2, s12")
    A("v_mov_b32 v3, 0")
    A("global_store_dword v2, v3, s[4:5] sc1")
    A("s_and_b32 s12, s2, 1")
    A("s_xor_b32 s12, s12, 1")
    for r in range(4): A(f"v_mov_b32 v{4+r}, s12")
    A("s_lshl_b32 s12, s2, 10")
    A(f"s_add_u32 s12, s12, {WS_RP}")
    A("v_lshl_add_u32 v2, v1, 4, s12")
    A("global_store_dwordx4 v2, v[4:7], s[4:5] sc1")
    l1 = A.newlabel('L_pre1')
    A("s_cmp_ge_u32 s2, 32")
    A(f"s_cbranch_scc1 {l1}")
    A("v_add_u32 v3, 0x40000, v2")
    A("global_store_dwordx4 v3, v[4:7], s[4:5] sc1")
    for r in range(4): A(f"v_mov_b32 v{8+r}, -1")
    A(f"v_add_u32 v3, {WS_RM - WS_RP}, v2")
    A("global_store_dwordx4 v3, v[8:11], s[4:5] sc1")
    A.label(l1)
    A("s_mul_i32 s12, s3, s3")
    A("s_lshl_b32 s12, s12, 10")
    A("s_add_u32 s12, s12, s3")
    A("s_lshl_b32 s12, s12, 8")
    A("s_add_u32 s12, s12, 1")
    A("v_mov_b32 v3, s12")
    A("s_and_b32 s12, s8, 3")
    A("s_lshr_b32 s13, s8, 2")
    A("s_lshl_b32 s13, s13, 5")
    A("s_add_u32 s12, s12, s13")
    A("s_lshl_b32 s12, s12, 2")
    A("v_mov_b32 v2, s12")
    A("s_waitcnt vmcnt(0)")
    A("s_mov_b64 exec, 1")
    A("global_atomic_add v2, v3, s[6:7] sc1")
    A("s_mov_b64 exec, -1")
    A.label(l2)

def mode_check(A, tv=1, ts=12, force_slow=False):
    done = A.newlabel('L_mc_done'); loop = A.newlabel('L_mc')
    lane_const(A, tv, lambda t: arr_word(t & 7) * 4, tmp=tv + 1)
    A(f"s_mov_b32 s{ts}, 0")
    A.label(loop)
    A(f"global_load_dword v{tv+1}, v{tv}, s[6:7] sc1")
    A(f"s_add_u32 s{ts}, s{ts}, 1")
    A(f"s_cmp_gt_u32 s{ts}, {SPIN_MAX}")
    A(f"s_cbranch_scc1 L_exit")
    A("s_waitcnt vmcnt(0)")
    A(f"v_and_b32 v{tv+2}, 0xff, v{tv+1}")
    A(f"v_cmp_ne_u32 vcc, 32, v{tv+2}")
    A(f"s_cbranch_vccz {done}")
    A("s_sleep 2")
    A(f"s_branch {loop}")
    A.label(done)
    A(f"v_readlane_b32 s{ts}, v{tv+1}, s8")
    A(f"s_mul_i32 s{ts+1}, s3, s3")
    A(f"s_lshl_b32 s{ts+1}, s{ts+1}, 10")
    A(f"s_add_u32 s{ts+1}, s{ts+1}, s3")
    A(f"s_lshl_b32 s{ts+1}, s{ts+1}, 8")
    A(f"s_add_u32 s{ts+1}, s{ts+1}, 1")
    A(f"s_lshl_b32 s{ts+1}, s{ts+1}, 5")
    A(f"s_cmp_eq_u32 s{ts}, s{ts+1}")
    A(f"s_cselect_b32 s11, {0 if force_slow or FORCE['slow'] else 1}, 0")

FORCE = {'slow': False}
def counter_arrive(A, word, tv=1):
    l = A.newlabel('L_arr')
    A("s_cmp_lg_u32 s10, 0")
    A(f"s_cbranch_scc1 {l}")
    A(f"v_mov_b32 v{tv}, {word*4}")
    A(f"v_mov_b32 v{tv+1}, 1")
    A("s_mov_b64 exec, 1")
    A(f"global_atomic_add v{tv}, v{tv+1}, s[6:7] sc1")
    A("s_mov_b64 exec, -1")
    A.label(l)

def counter_wait(A, word, count, tv=1, ts=12, sleep=2):
    loop = A.newlabel('L_cw'); done = A.newlabel('L_cwd')
    A(f"v_mov_b32 v{tv}, {word*4}")
    A(f"s_mov_b32 s{ts}, 0")
    A.label(loop)
    A(f"global_load_dword v{tv+1}, v{tv}, s[6:7] sc1")
    A(f"s_add_u32 s{ts}, s{ts}, 1")
    A(f"s_cmp_gt_u32 s{ts}, {SPIN_MAX}")
    A(f"s_cbranch_scc1 L_exit")
    A("s_waitcnt vmcnt(0)")
    A(f"v_cmp_gt_u32 vcc, {count}, v{tv+1}")
    A(f"s_cbranch_vccz {done}")
    A(f"s_sleep {sleep}")
    A(f"s_branch {loop}")
    A.label(done)

def lane_const(A, dst, f, src=0, nbits=8, tmp=None, mode=None, acc=False):
    N = 1 << nbits
    f0 = f(0)
    def check(m):
        d = [(f(1 << k) ^ f0) if m == 'xor' else (f(1 << k) - f0) for k in range(nbits)]
        for x in range(N):
            y = f0
            for k in range(nbits):
                if x >> k & 1: y = (y ^ d[k]) if m == 'xor' else y + d[k]
            if y != f(x): return None
        return d
    for m in ([mode] if mode else ['add', 'xor']):
        d = check(m)
        if d is not None: break
    assert d is not None, "function not affine"
    assert tmp is not None and tmp != dst and dst != src
    work = dst
    if acc and m == 'xor':
        work = tmp + 1
    if acc and m == 'add':
        if f0: A(f"v_add_u32 v{dst}, {f0 & 0xffffffff:#x}, v{dst}")
    else:
        A(f"v_mov_b32 v{work}, {f0 & 0xffffffff:#x}")
    k = 0
    while k < nbits:
        if d[k] == 0: k += 1; continue
        n = 1
        while k + n < nbits and d[k + n] == d[k] << n: n += 1
        c = d[k]
        if c > 0 and c & (c - 1) == 0:
            sh = c.bit_length() - 1
            A(f"v_bfe_u32 v{tmp}, v{src}, {k}, {n}")
            if m == 'add': A(f"v_lshl_add_u32 v{work}, v{tmp}, {sh}, v{work}")
            else:
                A(f"v_lshlrev_b32 v{tmp}, {sh}, v{tmp}")
                A(f"v_xor_b32 v{work}, v{work}, v{tmp}")
        elif m == 'add' and 0 < c < (1 << 24):
            A(f"v_bfe_u32 v{tmp}, v{src}, {k}, {n}")
            A(f"v_mul_u32_u24 v{tmp}, {c:#x}, v{tmp}")
            A(f"v_add_u32 v{work}, v{work}, v{tmp}")
        else:
            n = 1
            A(f"v_bfe_i32 v{tmp}, v{src}, {k}, 1")
            A(f"v_and_b32 v{tmp}, {c & 0xffffffff:#x}, v{tmp}")
            A(f"v_{'xor_b32' if m == 'xor' else 'add_u32'} v{work}, v{work}, v{tmp}")
        k += n
    if work != dst:
        A(f"v_add_u32 v{dst}, v{dst}, v{work}")


MF32 = "v_mfma_f32_16x16x32_bf16"
MF16 = "v_mfma_f32_16x16x16_bf16"

def ring_load(A, chunks, nslots=8, lbase=0, tmp=28, sb=26):
    A(f"s_lshl_b32 s{sb}, s10, 12")
    if lbase: A(f"s_add_u32 s{sb}, s{sb}, {lbase}")
    def issue(j):
        c = chunks[j]
        add64(A, 12, c['ptr'], c['off'])
        for ip in range(4):
            A(f"s_add_u32 m0, s{sb}, {(j % nslots) * 16384 + ip * 1024}")
            A(f"global_load_lds_dwordx4 v{c['vb']+ip}, s[12:13]")
    n = len(chunks); ah = nslots - 1
    for j in range(min(ah, n)): issue(j)
    for j in range(n):
        A(f"s_waitcnt vmcnt({4 * (min(n - 1, j + ah - 1) - j)})")
        A("s_barrier")
        if j + ah < n: issue(j + ah)
        regs = sorted({r[1] for r in chunks[j]['reads']})
        for k, ar in enumerate(regs): A(f"v_add_u32 v{tmp+k}, {(j % nslots) * 16384 + lbase}, v{ar}")
        for dst, ar, imm in chunks[j]['reads']:
            A(f"ds_read_b64_tr_b16 {u(dst, 2)}, v{tmp + regs.index(ar)} offset:{imm}")
        if 'post' in chunks[j]: chunks[j]['post']()
        A("s_waitcnt lgkmcnt(0)")
    A("s_barrier")

def swzA(row): return 2 * ((row & 3) | ((row >> 3) & 1) << 2)
def swzB(row): return 2 * (((row >> 1) & 1) | ((row >> 2) & 1) << 1)
def dense256_consts(A, vb, tra, stride, tmp):
    for ip in range(4):
        lane_const(A, vb + ip, lambda t: (16 * (t >> 6) + 4 * ip + ((t & 63) >> 4)) * stride, tmp=tmp)
        lane_const(A, vb + ip, lambda t: ((t & 15) ^ swzA(16 * (t >> 6) + 4 * ip + ((t & 63) >> 4))) * 16, tmp=tmp, acc=True)
    for b in range(2):
        def f(t):
            w, l = t >> 6, t & 63
            row = 8 * (l >> 4) + ((l >> 2) & 3); c = l & 3
            return row * 256 + (((4 * w + 2 * b + (c >> 1)) ^ swzA(row)) * 16) + (c & 1) * 8
        lane_const(A, tra + b, f, tmp=tmp)
def dense256_reads(dstf, tra, c):
    return [(dstf(2 * c + kl, b) + 2 * hq, tra + b, (32 * kl + 4 * hq) * 256) for kl in range(2) for b in range(2) for hq in range(2)]
def dense128_consts(A, vb, tra, tmp):
    for ip in range(4):
        lane_const(A, vb + ip, lambda t: (32 * (t >> 6) + 8 * ip + ((t & 63) >> 3)) * 1152, tmp=tmp)
        lane_const(A, vb + ip, lambda t: ((t & 7) ^ swzB(32 * (t >> 6) + 8 * ip + ((t & 63) >> 3))) * 16, tmp=tmp, acc=True)
    def f(t):
        w, l = t >> 6, t & 63
        row = 4 * (l >> 4) + ((l >> 2) & 3); c = l & 3
        return row * 128 + (((2 * w + (c >> 1)) ^ swzB(row)) * 16) + (c & 1) * 8
    lane_const(A, tra, f, tmp=tmp)
def dense128_reads(dstf, tra, t):
    return [(dstf(t, j) + 2 * hq, tra, (32 * j + 16 * hq) * 128) for j in range(4) for hq in range(2)]

def seg_dma(A, vT16, src, ldsreg):
    A(f"s_mov_b64 s[12:13], s[{src}:{src+1}]")
    for j in range(9):
        A(f"s_add_u32 m0, s{ldsreg}, {j * 4096}")
        A(f"global_load_lds_dwordx4 v{vT16}, s[12:13]")
        if j < 8: add64(A, 12, 12, 4096)

def flag_wait(A, addr_v, base, val_s, tv, ts, sleep=1):
    loop = A.newlabel('L_fw'); done = A.newlabel('L_fwd')
    A(f"s_mov_b32 s{ts}, 0")
    A.label(loop)
    A(f"global_load_dword v{tv}, v{addr_v}, s[{base}:{base+1}] sc1")
    A(f"s_add_u32 s{ts}, s{ts}, 1")
    A(f"s_cmp_gt_u32 s{ts}, {SPIN_MAX}")
    A("s_cbranch_scc1 L_exit")
    A("s_waitcnt vmcnt(0)")
    A(f"v_cmp_gt_u32 vcc, s{val_s}, v{tv}")
    A(f"s_cbranch_vccz {done}")
    if sleep: A(f"s_sleep {sleep}")
    A(f"s_branch {loop}")
    A.label(done)

def xsum(A, r, t, op="v_add_f32", bits=(0, 1, 2, 3, 4, 5)):
    for b in bits:
        if b == 0: A(f"{op}_dpp v{r}, v{r}, v{r} quad_perm:[1,0,3,2] row_mask:0xf bank_mask:0xf")
        elif b == 1: A(f"{op}_dpp v{r}, v{r}, v{r} quad_perm:[2,3,0,1] row_mask:0xf bank_mask:0xf")
        elif b == 2: A(f"{op}_dpp v{r}, v{r}, v{r} row_ror:4 row_mask:0xf bank_mask:0xf")
        elif b == 3: A(f"{op}_dpp v{r}, v{r}, v{r} row_ror:8 row_mask:0xf bank_mask:0xf")
        else:
            A(f"v_mov_b32 v{t}, v{r}")
            A(f"v_permlane{16 if b == 4 else 32}_swap_b32 v{r}, v{t}")
            A(f"{op} v{r}, v{r}, v{t}")

def f32bits(x):
    import struct
    return struct.unpack('<I', struct.pack('<f', x))[0]
def rnd1(A, r, t=None):
    A(f"v_cvt_pk_bf16_f32 v{r}, v{r}, v{r}")
    A(f"v_lshlrev_b32 v{r}, 16, v{r}")
def rnd2(A, r):
    A(f"v_cvt_pk_bf16_f32 v{r+1}, v{r}, v{r+1}")
    A(f"v_lshlrev_b32 v{r}, 16, v{r+1}")
    A(f"v_and_b32 v{r+1}, 0xffff0000, v{r+1}")

TL = {'on': False}
def tl(A, slot, tv=60):
    if not TL['on']: return
    A("s_memrealtime s[100:101]")
    A("s_lshl_b32 s12, s8, 5")
    A("s_add_u32 s12, s12, s9")
    A("s_lshl_b32 s12, s12, 6")
    A(f"s_add_u32 s12, s12, {WS_STAMP + 0x30000 + slot * 4}")
    A(f"v_mov_b32 v{tv}, s12")
    A("s_waitcnt lgkmcnt(0)")
    A(f"v_mov_b32 v{tv+1}, s100")
    A(f"global_store_dword v{tv}, v{tv+1}, s[4:5]")
    A("s_waitcnt vmcnt(0)")
```

```python
from common import *
import math
ROWB = 32 * 2304
T16, L16, XS, XS8, XL, RW, RW8, L4 = range(8)
EXP = {}
TRN = ['top', 'go', 'mm', 'flag', 'op0', 'op1', 'ack', 'xf', 'red', 'end']
def tr(A, name):
    if not EXP.get('aftrace'): return
    if name not in TRN: TRN.append(name)
    i = TRN.index(name)
    assert i < 11
    A(f"s_memtime s[{80+2*i}:{81+2*i}]")
def tr_dump(A, seg):
    if not EXP.get('aftrace'): return
    l = A.newlabel('L_trd')
    A(f"s_cmp_lg_u32 s47, {seg}")
    A(f"s_cbranch_scc1 {l}")
    A("s_waitcnt lgkmcnt(0)")
    A("s_lshl_b32 s12, s8, 5")
    A("s_add_u32 s12, s12, s9")
    A("s_lshl_b32 s12, s12, 2")
    A("s_add_u32 s12, s12, s10")
    A("s_lshl_b32 s12, s12, 6")
    A(f"s_add_u32 s12, s12, {WS_STAMP + 0x10000}")
    A("v_mov_b32 v8, s12")
    for q in range(11):
        A(f"v_mov_b32 v9, s{80 + 2 * q}")
        A(f"global_store_dword v8, v9, s[4:5] offset:{4 * q}")
        A("s_waitcnt vmcnt(0)")
    A.label(l)

def af_consts(A, l_red):
    lane_const(A, L16, lambda t: (t & 63) * 16, tmp=12)
    lane_const(A, XS, lambda t: ((t >> 4) & 3) * 4 * ROWB + (t & 15) * 16 + (t >> 6) * 512, tmp=12)
    lane_const(A, XS8, lambda t: ((t >> 4) & 3) * 4 * ROWB + (t & 15) * 4 + (t >> 6) * 64 + 2048, tmp=12)
    lane_const(A, XL, lambda t: (8 * (t >> 6) + ((t >> 4) & 3)) * 2304 + (t & 15) * 16, tmp=12)
    lane_const(A, RW, lambda t: l_red + (t >> 6) * 2304 + (64 * ((t >> 4) & 3) + (t & 15)) * 4, tmp=12)
    lane_const(A, RW8, lambda t: l_red + (t >> 6) * 2304 + 2048 + (4 * (t & 15) + ((t >> 4) & 3)) * 4, tmp=12)
    lane_const(A, L4, lambda t: (t & 63) * 4, tmp=12)
    A(f"s_mul_i32 s12, s8, {2 * XP_SLOT}")
    A(f"s_add_u32 s12, s12, {WS_XP}")
    A("s_mul_i32 s13, s9, 2304")
    A("s_add_u32 s13, s13, s12")
    add64(A, 40, S_WS, "s13")
    A(f"s_mul_i32 s13, s9, {ROWB}")
    A("s_add_u32 s13, s13, s12")
    add64(A, 42, S_WS, "s13")
    A("s_lshl_b32 s12, s8, 7")
    A(f"s_add_u32 s12, s12, {WS_XF}")
    add64(A, 44, S_WS, "s12")
    A("s_mov_b32 s46, 0")
    A("s_mov_b32 s47, 0")

def out_proj(A, st, wfrag, l_ox, l_red, k16=None):
    D = Lds(A)
    FR, AC, A8, W16 = 8, 28, 60, 64
    add64(A, 48, 40, "s46")
    tr(A, 'op0')
    for tt in range(2):
        for j in range(4): D.op(f"ds_read_b128 {v(FR + 4 * j, 4)}, v{L16} offset:{l_ox + (tt * 4 + j) * 1024}", ('f', j))
        if k16:
            A(f"v_lshrrev_b32 v26, 1, v{L16}")
            D.op(f"ds_read_b64 v[24:25], v26 offset:{k16[0] + tt * 512}", 'f16')
        pend = []
        for grp in range(3):
            tiles = [8] if grp == 2 else list(range(4 * grp, 4 * grp + 4))
            base = A8 if grp == 2 else AC + 16 * grp
            if k16:
                for i, t in enumerate(tiles): D.op(f"ds_read_b64_tr_b16 {v(W16 + 8 * (grp & 1) + 2 * i, 2)}, v{k16[1]} offset:{t * 128}", ('w16', t))
            for j in range(4):
                D.wait(('f', j))
                for i, t in enumerate(tiles):
                    d = v(base + 4 * i, 4)
                    A(f"{MF32} {d}, {v(FR + 4 * j, 4)}, {u(wfrag(t, j), 4)}, {d if j else 0}")
                    if j >= 2 or grp == 2:
                        for _ in range(2 if grp < 2 else 4):
                            if pend: A(pend.pop(0))
            if k16:
                D.wait('f16')
                for i, t in enumerate(tiles):
                    D.wait(('w16', t))
                    d = v(base + 4 * i, 4)
                    A(f"{MF16} {d}, v[24:25], {v(W16 + 8 * (grp & 1) + 2 * i, 2)}, {d}")
            for o in pend: A(o)
            pend = []
            if EXP.get('rndpart'):
                for r_ in range(base, base + 4 * len(tiles), 2): rnd2(A, r_)
            if grp < 2:
                for a_ in range(4):
                    for b_ in range(a_ + 1, 4): pend.append(f"v_swap_b32 v{base+4*a_+b_}, v{base+4*b_+a_}")
                for r in range(4):
                    off = (16 * tt + r) * ROWB
                    pend.append(f"s_add_u32 s12, s48, {off}")
                    pend.append("s_addc_u32 s13, s49, 0")
                    pend.append(f"global_store_dwordx4 v{XS}, {v(base + 4 * r, 4)}, s[12:13] offset:{grp * 256} {st}")
            else:
                for r in range(4):
                    add64(A, 12, 48, (16 * tt + r) * ROWB)
                    A(f"global_store_dword v{XS8}, v{base+r}, s[12:13] {st}")
    tr(A, 'op1')
    A("s_add_u32 s47, s47, 1")
    A("s_waitcnt vmcnt(0)")
    A("s_barrier")
    tr(A, 'ack')
    l = A.newlabel('L_xf')
    A("s_cmp_lg_u32 s10, 0")
    A(f"s_cbranch_scc1 {l}")
    A("s_lshl_b32 s12, s9, 2")
    A("v_mov_b32 v8, s12")
    A("v_mov_b32 v9, s47")
    A("s_mov_b64 exec, 1")
    A(f"global_store_dword v8, v9, s[44:45] {st}")
    A("s_mov_b64 exec, -1")
    A.label(l)
    A(f"v_and_b32 v8, 0x7c, v{L4}")
    flag_wait(A, 8, 44, 47, 9, 12, sleep=0)
    tr(A, 'xf')
    add64(A, 48, 42, "s46")
    add64(A, 50, 48, 4 * 2304)
    for u_ in range(9):
        for hp in range(2):
            A(f"global_load_dwordx4 {v(8 + 8 * u_ + 4 * hp, 4)}, v{XL}, s[{48+2*hp}:{49+2*hp}] offset:{u_ * 256} sc1")
    for u_ in range(9):
        r = 8 + 8 * u_
        A(f"s_waitcnt vmcnt({16 - 2 * u_})")
        A(f"v_pk_add_f32 {v(r, 2)}, {v(r, 2)}, {v(r + 4, 2)}")
        A(f"v_pk_add_f32 {v(r + 2, 2)}, {v(r + 2, 2)}, {v(r + 6, 2)}")
        if u_ >= 1:
            p = r - 8
            A(f"v_permlane32_swap_b32 v{p}, v{p+2}")
            A(f"v_permlane32_swap_b32 v{p+1}, v{p+3}")
            A(f"v_pk_add_f32 {v(p, 2)}, {v(p, 2)}, {v(p + 2, 2)}")
        if u_ >= 2: fin(A, u_ - 2)
    p = 8 + 64
    A(f"v_permlane32_swap_b32 v{p}, v{p+2}")
    A(f"v_permlane32_swap_b32 v{p+1}, v{p+3}")
    A(f"v_pk_add_f32 {v(p, 2)}, {v(p, 2)}, {v(p + 2, 2)}")
    fin(A, 7); fin(A, 8)
    A("s_waitcnt lgkmcnt(0)")
    A("s_barrier")
    tr(A, 'red')
    l = A.newlabel('L_cf')
    A("s_cmp_lg_u32 s10, 1")
    A(f"s_cbranch_scc1 {l}")
    A("s_lshl_b32 s12, s9, 2")
    A("v_mov_b32 v8, s12")
    A("v_mov_b32 v9, s47")
    A("s_mov_b64 exec, 1")
    A(f"global_store_dword v8, v9, s[44:45] offset:1024 {st}")
    A("s_mov_b64 exec, -1")
    A.label(l)

def consumed_wait(A, tv):
    A(f"v_and_b32 v{tv}, 0x7c, v{L4}")
    A(f"v_add_u32 v{tv}, 1024, v{tv}")
    flag_wait(A, tv, 44, 47, tv + 1, 12, sleep=0)

def fin(A, u_):
    p = 8 + 8 * u_
    A(f"v_permlane16_swap_b32 v{p}, v{p+1}")
    A(f"v_add_f32 v{p}, v{p}, v{p+1}")
    if u_ < 8: A(f"ds_write_b32 v{RW}, v{p} offset:{(256 * (u_ & 1) + 16 * (u_ >> 1)) * 4}")
    else: A(f"ds_write_b32 v{RW8}, v{p}")

def row_gather(A, l_red):
    A(f"v_lshlrev_b32 v48, 1, v{L4}")
    for w in range(4):
        for i in range(5): A(f"ds_read_b64 {v(8 + 10 * w + 2 * i, 2)}, v48 offset:{l_red + w * 2304 + i * 512}")
    A("s_waitcnt lgkmcnt(0)")
    for i in range(5):
        r = 8 + 2 * i
        A(f"v_pk_add_f32 {v(r, 2)}, {v(r, 2)}, {v(r + 10, 2)}")
        A(f"v_pk_add_f32 {v(r + 20, 2)}, {v(r + 20, 2)}, {v(r + 30, 2)}")
        A(f"v_pk_add_f32 {v(r, 2)}, {v(r, 2)}, {v(r + 20, 2)}")
        rnd2(A, r)

def unpack(A, dst, src):
    A(f"v_lshlrev_b32 v{dst}, 16, v{src}")
    A(f"v_and_b32 v{dst+1}, 0xffff0000, v{src}")

def cached_wait(A, base, val_s, cache_s, tv):
    ok = A.newlabel('L_cw')
    A(f"s_cmp_ge_u32 s{cache_s}, s{val_s}")
    A(f"s_cbranch_scc1 {ok}")
    A(f"v_mov_b32 v{tv}, 0")
    flag_wait(A, tv, base, val_s, tv + 1, 12, sleep=1)
    A(f"v_readfirstlane_b32 s{cache_s}, v{tv+1}")
    A.label(ok)

def WA(i): return 256 + 4 * i if i < 64 else 224 + 4 * (i - 64)

def role_a(A, restart, na, ag0, kvg0, standalone=False):
    LQ, LO, LRED = 2 * SEG_H, 2 * SEG_H + 8192, 2 * SEG_H + 16384
    A(f"s_load_dwordx2 s[16:17], s[0:1], {KA_WQ}")
    A(f"s_load_dwordx2 s[18:19], s[0:1], {KA_WO}")
    A(f"s_load_dwordx2 s[34:35], s[0:1], {KA_X}")
    dense256_consts(A, 12, 16, 8192, 1)
    dense128_consts(A, 20, 18, 1)
    A("s_lshl_b32 s12, s9, 8")
    A("s_waitcnt lgkmcnt(0)")
    add64(A, 16, 16, "s12")
    A("s_mul_i32 s12, s9, 147456")
    add64(A, 18, 18, "s12")
    def wq(ks, b): return WA(ks * 2 + b)
    def wo(t, j): return WA(36 + t * 4 + j)
    chunks = [dict(ptr=16, off=c * 64 * 8192, vb=12, reads=dense256_reads(wq, 16, c)) for c in range(9)]
    chunks += [dict(ptr=18, off=t * 128, vb=20, reads=dense128_reads(wo, 18, t)) for t in range(9)]
    ring_load(A, chunks)
    tl(A, 1)
    mode_check(A, tv=12)
    af_consts(A, LRED)
    HA, QRD, OWR, KMA, VOF, NEG, H2A = 80, 81, 82, 83, 84, 85, 86
    MODR, XR = 88, 104
    KF, VF, KM, VM = 112, 144, 160, 176
    lane_const(A, QRD, lambda t: LQ + (t >> 7) * 4096 + (t & 63) * 16, tmp=12)
    lane_const(A, OWR, lambda t: LO + (t >> 6) * 2048 + (t & 63) * 16, tmp=12)
    lane_const(A, KMA, lambda t: (((t & 15) >> 2) * 16 + 4 * ((t >> 4) & 3)) * 16 + (t & 1) * 4, tmp=12)
    lane_const(A, VOF, lambda t: ((t >> 6) & 1) * 2048 + (t & 63) * 16, tmp=12)
    A(f"v_mov_b32 v{NEG}, {f32bits(-1e9):#x}")
    A("s_bfe_u32 s12, s9, 0x30001")
    A("s_lshl_b32 s12, s12, 4")
    A(f"v_xor_b32 v{H2A}, s12, v{L4}")
    lane_const(A, 12, lambda t: 16 * (t >> 7) + (t & 15) - 4 * ((t >> 4) & 3), tmp=13)
    for k in range(8): A(f"v_cmp_le_i32 s[{64+2*k}:{65+2*k}], {(k & 3) + 16 * (k >> 2)}, v12")
    A(f"v_lshlrev_b32 v{T16}, 4, v0")
    A(f"s_sub_u32 s24, s8, {ag0}")
    A(f"s_mul_i32 s12, s24, {SEG_H}")
    A(f"s_add_u32 s13, s12, {WS_H}")
    add64(A, 20, S_WS, "s13")
    A("s_mul_i32 s13, s9, 1152")
    A("s_add_u32 s12, s12, s13")
    add64(A, 34, 34, "s12")
    A(f"s_add_u32 s13, s12, {WS_X1}")
    add64(A, 36, S_WS, "s13")
    A(f"s_add_u32 s13, s12, {WS_H2}")
    add64(A, 38, S_WS, "s13")
    A("s_lshl_b32 s12, s24, 5")
    A("s_add_u32 s12, s12, s9")
    A("s_lshl_b32 s13, s12, 14")
    A(f"s_add_u32 s13, s13, {WS_KV + 4096}")
    add64(A, 22, S_WS, "s13")
    A("s_lshl_b32 s13, s12, 12")
    A(f"s_add_u32 s13, s13, {WS_KVM}")
    add64(A, 30, S_WS, "s13")
    A("s_lshl_b32 s13, s12, 2")
    A(f"s_add_u32 s13, s13, {WS_H2FLAG}")
    add64(A, 52, S_WS, "s13")
    A("s_lshl_b32 s12, s9, 7")
    A(f"s_add_u32 s13, s12, {WS_KVPROG + kvg0 * 4096}")
    add64(A, 54, S_WS, "s13")
    A(f"s_add_u32 s13, s12, {WS_RPROG}")
    add64(A, 56, S_WS, "s13")
    A(f"s_mov_b32 s58, {64 if standalone else 0}")
    A(f"s_mov_b32 s59, {64 if standalone else 0}")
    A("s_lshl_b32 s26, s10, 10")
    A("s_mov_b32 s27, 0")
    A(f"s_mov_b32 s60, {f32bits(128 ** -0.5):#x}")
    A(f"s_mov_b32 s61, {f32bits(math.log2(math.e)):#x}")
    if not standalone: counter_wait(A, DBG_HCNT, 32, tv=12)
    for k, ch in enumerate((2, 4, 3)):
        add64(A, 12, S_WS, WS_MOD + ch * 1152)
        for i in range(5): A(f"global_load_dword v{MODR+5*k+i}, v{L4}, s[12:13] offset:{256 * i} sc1")
    def hdma():
        seg_dma(A, T16, 20, 26)
        add64(A, 20, 20, na * SEG_H)
        A(f"s_xor_b32 s26, s26, {SEG_H}")
    assert SEG_H & 3072 == 0
    hdma()
    A("s_cmp_eq_u32 s11, 0")
    A("s_cbranch_scc1 L_a_top_s")
    for fast in (True, False):
        st = "" if fast else "sc1"; sfx = "f" if fast else "s"
        A.label(f"L_a_top_{sfx}")
        tr(A, 'top')
        A("s_add_u32 s25, s24, 1")
        cached_wait(A, 54, 25, 58, 8)
        for i in range(8): A(f"global_load_dwordx4 {v(KF + 4 * i, 4)}, v{L16}, s[22:23] offset:{i * 1024 - 4096}")
        A("s_and_b32 s12, s10, 1")
        A("s_lshl_b32 s12, s12, 12")
        A("s_add_u32 s12, s12, 4096")
        add64(A, 12, 22, "s12")
        for i in range(4): A(f"global_load_dwordx4 {v(VF + 4 * i, 4)}, v{L16}, s[12:13] offset:{i * 1024}")
        A("s_mov_b32 exec_hi, 0")
        A(f"global_load_dword v{XR+4}, v{L4}, s[34:35] offset:1024")
        A("s_mov_b64 exec, -1")
        for i in range(4): A(f"global_load_dword v{XR+i}, v{L4}, s[34:35] offset:{256 * i}")
        A(f"v_add_u32 v{HA}, s27, v{L16}")
        A("s_waitcnt vmcnt(17)")
        A("s_barrier")
        tr(A, 'go')
        D = Lds(A)
        ACC, RING, NR = 8, 24, 6
        seq = [(ks, tt) for ks in range(18) for tt in range(2)]
        def rd(i):
            ks, tt = seq[i]
            D.op(f"ds_read_b128 {v(RING + 4 * (i % NR), 4)}, v{HA} offset:{(tt * 18 + ks) * 1024}", i)
        for i in range(NR - 1): rd(i)
        hdma()
        A(f"s_xor_b32 s27, s27, {SEG_H}")
        for i, (ks, tt) in enumerate(seq):
            if i + NR - 1 < 36: rd(i + NR - 1)
            D.wait(i)
            for b in range(2):
                d = v(ACC + (b * 2 + tt) * 4, 4)
                A(f"{MF32} {d}, {u(wq(ks, b), 4)}, {v(RING + 4 * (i % NR), 4)}, {d if ks else 0}")
        for tt in range(2):
            for r in range(4): A(f"v_cvt_pk_bf16_f32 v{48+4*tt+r}, v{ACC+4*tt+r}, v{ACC+8+4*tt+r}")
            A(f"v_add_u32 v56, {LQ + tt * 4096}, v{T16}")
            A(f"ds_write_b128 v56, {v(48 + 4 * tt, 4)}")
        A("s_waitcnt lgkmcnt(0)")
        A("s_barrier")
        QF = 24
        for j in range(4): A(f"ds_read_b128 {v(QF + 4 * j, 4)}, v{QRD} offset:{j * 1024}")
        A("s_waitcnt vmcnt(9) lgkmcnt(0)")
        T0, T1, T2 = 8, 12, 16
        for j in range(4):
            for kt in range(2):
                d = v(T0 + 4 * kt, 4)
                A(f"{MF32} {d}, {v(KF + 4 * (kt * 4 + j), 4)}, {v(QF + 4 * j, 4)}, {d if j else 0}")
        consumed_wait(A, 40)
        tr(A, 'mm')
        cached_wait(A, 56, 25, 59, 40)
        tr(A, 'flag')
        for j in range(4):
            for m in range(4): A(f"global_load_dword v{KM+4*j+m}, v{KMA}, s[30:31] offset:{j * 1024 + m * 16}")
        for i in range(2): A(f"global_load_dwordx2 {v(VM + 2 * i, 2)}, v{VOF}, s[30:31] offset:{i * 1024 + 8}")
        def scale(r):
            if not EXP.get('nosr'): rnd2(A, r)
            A(f"v_pk_mul_f32 {v(r, 2)}, {v(r, 2)}, s[60:61] op_sel_hi:[1,0]")
            if not EXP.get('nosr'): rnd2(A, r)
        for r in range(T0, T0 + 8, 2): scale(r)
        for k in range(8): A(f"v_cndmask_b32 v{T0+k}, v{NEG}, v{T0+k}, s[{64+2*k}:{65+2*k}]")
        M, TT, SUM = 20, 21, 22
        A(f"v_max3_f32 v{M}, v8, v9, v10")
        A(f"v_max3_f32 v{M}, v{M}, v11, v12")
        A(f"v_max3_f32 v{M}, v{M}, v13, v14")
        A(f"v_max_f32 v{M}, v{M}, v15")
        for j in range(4):
            A(f"s_waitcnt vmcnt({14 - 4 * j})")
            A(f"{MF32} {v(T2, 4)}, {v(KM + 4 * j, 4)}, {v(QF + 4 * j, 4)}, {v(T2, 4) if j else 0}")
        scale(T2)
        A(f"v_max3_f32 v{M}, v{M}, v16, v17")
        xsum(A, M, TT, op="v_max_f32", bits=(4, 5))
        for r in range(8, 18, 2): A(f"v_pk_add_f32 {v(r, 2)}, {v(r, 2)}, {v(M, 2)} op_sel_hi:[1,0] neg_lo:[0,1] neg_hi:[0,1]")
        for r in range(8, 18, 2): A(f"v_pk_mul_f32 {v(r, 2)}, {v(r, 2)}, s[60:61] op_sel:[0,1]")
        for r in range(8, 18): A(f"v_exp_f32 v{r}, v{r}")
        A(f"v_pk_add_f32 {v(SUM, 2)}, v[8:9], v[10:11]")
        for r in (12, 14, 16): A(f"v_pk_add_f32 {v(SUM, 2)}, {v(SUM, 2)}, {v(r, 2)}")
        A(f"v_add_f32 v{SUM}, v{SUM}, v{SUM+1}")
        xsum(A, SUM, TT, bits=(4, 5))
        A(f"v_rcp_f32 v{SUM}, v{SUM}")
        for r in range(8, 18, 2): A(f"v_pk_mul_f32 {v(r, 2)}, {v(r, 2)}, {v(SUM, 2)} op_sel_hi:[1,0]")
        BX, Z = 40, 44
        for q in range(4): A(f"v_cvt_pk_bf16_f32 v{BX+q}, v{8+2*q}, v{9+2*q}")
        A(f"v_cvt_pk_bf16_f32 v{Z}, v16, v17")
        A(f"v_mov_b32 v{Z+1}, 0")
        A(f"v_mov_b32 v{Z+2}, 0")
        A(f"v_mov_b32 v{Z+3}, v{Z}")
        OA = 24
        for t in range(4): A(f"{MF32} {v(OA + 4 * t, 4)}, {v(VF + 4 * t, 4)}, {v(BX, 4)}, 0")
        A("s_waitcnt vmcnt(0)")
        for t in range(4): A(f"{MF16} {v(OA + 4 * t, 4)}, {v(VM + 2 * (t >> 1), 2)}, {v(Z + 2 * (t & 1), 2)}, {v(OA + 4 * t, 4)}")
        for q in range(8): A(f"v_cvt_pk_bf16_f32 v{48+q}, v{OA+2*q}, v{OA+2*q+1}")
        A(f"ds_write_b128 v{OWR}, v[48:51]")
        A(f"ds_write_b128 v{OWR}, v[52:55] offset:1024")
        A("s_waitcnt lgkmcnt(0)")
        A("s_barrier")
        oa = Asm()
        A(f"v_add_u32 v{L16}, {LO}, v{L16}")
        out_proj(A, st, wo, 0, LRED)
        A(f"v_subrev_u32 v{L16}, {LO}, v{L16}")
        A("s_cmp_lg_u32 s10, 0")
        A(f"s_cbranch_scc1 L_a_next_{sfx}")
        A(f"v_add_u32 v{L4}, {LRED // 2}, v{L4}")
        row_gather(A, 0)
        A(f"v_subrev_u32 v{L4}, {LRED // 2}, v{L4}")
        A("v_mov_b64 v[20:21], 0")
        for i in range(5):
            r = 8 + 2 * i
            if i == 4: A("s_mov_b32 exec_hi, 0")
            unpack(A, 18, MODR + i)
            A(f"v_pk_mul_f32 {v(r, 2)}, {v(r, 2)}, v[18:19]")
            rnd2(A, r)
            unpack(A, 18, XR + i)
            A(f"v_pk_add_f32 {v(r, 2)}, {v(r, 2)}, v[18:19]")
            A(f"v_cvt_pk_bf16_f32 v{24+i}, v{r}, v{r+1}")
            unpack(A, r, 24 + i)
            A(f"global_store_dword v{L4}, v{24+i}, s[36:37] offset:{256 * i} sc1")
            A(f"v_pk_add_f32 v[20:21], v[20:21], {v(r, 2)}")
        A("s_mov_b64 exec, -1")
        A("v_add_f32 v20, v20, v21")
        xsum(A, 20, 21)
        A(f"v_mul_f32 v20, {f32bits(1.0 / 576):#x}, v20")
        A("v_mov_b64 v[22:23], 0")
        for i in range(5):
            if i == 4: A("s_mov_b32 exec_hi, 0")
            A(f"v_pk_add_f32 v[18:19], {v(8 + 2 * i, 2)}, v[20:21] op_sel_hi:[1,0] neg_lo:[0,1] neg_hi:[0,1]")
            A("v_pk_fma_f32 v[22:23], v[18:19], v[18:19], v[22:23]")
        A("s_mov_b64 exec, -1")
        A("v_add_f32 v22, v22, v23")
        xsum(A, 22, 23)
        A(f"v_mul_f32 v22, {f32bits(1.0 / 576):#x}, v22")
        rnd1(A, 22); rnd1(A, 20)
        A(f"v_add_f32 v22, {f32bits(1e-5):#x}, v22")
        rnd1(A, 22)
        A("v_sqrt_f32 v22, v22")
        rnd1(A, 22)
        A("v_rcp_f32 v22, v22")
        for i in range(5):
            r = 8 + 2 * i
            if i == 4: A("s_mov_b32 exec_hi, 0")
            A(f"v_pk_add_f32 {v(r, 2)}, {v(r, 2)}, v[20:21] op_sel_hi:[1,0] neg_lo:[0,1] neg_hi:[0,1]")
            rnd2(A, r)
            A(f"v_pk_mul_f32 {v(r, 2)}, {v(r, 2)}, v[22:23] op_sel_hi:[1,0]")
            rnd2(A, r)
            unpack(A, 18, MODR + 5 + i)
            A(f"v_pk_mul_f32 {v(r, 2)}, {v(r, 2)}, v[18:19]")
            rnd2(A, r)
            unpack(A, 18, MODR + 10 + i)
            A(f"v_pk_add_f32 {v(r, 2)}, {v(r, 2)}, v[18:19]")
            A(f"v_cvt_pk_bf16_f32 v{30+i}, v{r}, v{r+1}")
            A(f"global_store_dword v{H2A}, v{30+i}, s[38:39] offset:{256 * i} sc1")
        A("s_mov_b64 exec, 1")
        A("v_mov_b32 v18, 1")
        A("s_waitcnt vmcnt(0)")
        A(f"global_store_dword v{L4}, v18, s[52:53] sc1")
        A("s_mov_b64 exec, -1")
        A.label(f"L_a_next_{sfx}")
        tr(A, 'end'); tr_dump(A, EXP.get('aftrace', 0))
        add64(A, 34, 34, na * SEG_H); add64(A, 36, 36, na * SEG_H); add64(A, 38, 38, na * SEG_H)
        add64(A, 22, 22, na << 19); add64(A, 30, 30, na << 17); add64(A, 52, 52, na * 128)
        A(f"s_add_u32 s24, s24, {na}")
        A("s_cmp_lt_u32 s24, 64")
        A(f"s_cbranch_scc1 L_a_top_{sfx}")
        tl(A, 4)
        A("s_branch L_exit")

def WFF(i): return 256 + 4 * i if i < 64 else 80 + 4 * (i - 64)

def role_f(A, nf, fg0, standalone=False):
    LG8, LW16, LRING = 0, 36864, 57344
    LH2, LACT = LRING, LRING + SEG_H
    LRED = LACT + 9216
    A(f"s_load_dwordx4 s[16:19], s[0:1], {KA_WG}")
    A(f"s_load_dwordx2 s[20:21], s[0:1], {KA_WD}")
    A(f"s_load_dwordx2 s[34:35], s[0:1], {KA_OUT}")
    dense256_consts(A, 12, 16, 9216, 1)
    dense128_consts(A, 20, 18, 1)
    lane_const(A, 24, lambda t: (t >> 1) * 9216 + (t & 1) * 16 + 256, tmp=1)
    lane_const(A, 25, lambda t: t * 16, tmp=1)
    A("s_mul_i32 s12, s9, 288")
    A("s_waitcnt lgkmcnt(0)")
    add64(A, 16, 16, "s12"); add64(A, 18, 18, "s12")
    A(f"s_mul_i32 s12, s9, {144 * 1152}")
    add64(A, 20, 20, "s12")
    A("s_lshl_b32 s26, s10, 10")
    for m in range(2):
        for i in range(5):
            if i == 4:
                A("s_cmp_ge_u32 s10, 2"); l = A.newlabel('L_f8'); A(f"s_cbranch_scc1 {l}")
            add64(A, 12, 16 + 2 * m, i * 128 * 9216)
            A(f"s_add_u32 m0, s26, {LG8 + m * 18432 + i * 4096}")
            A("global_load_lds_dwordx4 v24, s[12:13]")
            if i == 4: A.label(l)
    for i in range(5):
        if i == 4:
            A("s_cmp_ge_u32 s10, 2"); l = A.newlabel('L_f16'); A(f"s_cbranch_scc1 {l}")
        add64(A, 12, 20, 128 * 1152 + i * 4096)
        A(f"s_add_u32 m0, s26, {LW16 + i * 4096}")
        A("global_load_lds_dwordx4 v25, s[12:13]")
        if i == 4: A.label(l)
    def wg(m, ks, b): return WFF(ks * 4 + m * 2 + b)
    def wd(t, j): return WFF(72 + t * 4 + j)
    chunks = []
    for c in range(9):
        for m in range(2):
            chunks.append(dict(ptr=16 + 2 * m, off=c * 64 * 9216, vb=12, reads=dense256_reads(lambda ks, b, m=m: wg(m, ks, b), 16, c)))
    chunks += [dict(ptr=20, off=t * 128, vb=20, reads=dense128_reads(wd, 18, t)) for t in range(9)]
    ring_load(A, chunks, nslots=6, lbase=LRING)
    tl(A, 1)
    mode_check(A, tv=12)
    af_consts(A, LRED)
    A(f"v_lshlrev_b32 v{T16}, 4, v0")
    A(f"s_sub_u32 s24, s8, {fg0}")
    A(f"s_mul_i32 s12, s24, {SEG_H}")
    A(f"s_add_u32 s13, s12, {WS_H2}")
    add64(A, 20, S_WS, "s13")
    A("s_mul_i32 s13, s9, 1152")
    A("s_add_u32 s12, s12, s13")
    add64(A, 34, 34, "s12")
    A(f"s_add_u32 s13, s12, {WS_X1}")
    add64(A, 36, S_WS, "s13")
    A("s_lshl_b32 s13, s24, 7")
    A(f"s_add_u32 s13, s13, {WS_H2FLAG}")
    add64(A, 52, S_WS, "s13")
    add64(A, 54, S_WS, WS_MOD + 5 * 1152)
    A("s_lshl_b32 s26, s10, 10")
    A(f"s_add_u32 s26, s26, {LH2}")
    A("s_mov_b32 s25, 1")
    A(f"s_mov_b32 s60, {f32bits(-math.log2(math.e)):#x}")
    A("s_cmp_eq_u32 s11, 0")
    A("s_cbranch_scc1 L_f_top_s")
    for fast in (True, False):
        st = "" if fast else "sc1"; sfx = "f" if fast else "s"
        A.label(f"L_f_top_{sfx}")
        tr(A, 'top')
        consumed_wait(A, 8)
        if not standalone:
            A(f"v_and_b32 v8, 0x7c, v{L4}")
            flag_wait(A, 8, 52, 25, 9, 12, sleep=1)
        tr(A, 'flag')
        seg_dma(A, T16, 20, 26)
        HA0, HA1, G8A, H8 = 72, 73, 74, 75
        A(f"v_lshrrev_b32 v76, 4, v{T16}")
        for par in range(2):
            lane_const(A, HA0 + par, lambda t: LH2 + (t & 15) * 1152, src=76, tmp=77)
            lane_const(A, HA0 + par, lambda t: ((4 * par + ((t >> 4) & 3)) ^ ((t & 15) >> 1)) * 16, src=76, tmp=77, acc=True)
        lane_const(A, G8A, lambda t: LG8 + ((t >> 4) & 3) * 256 + (t & 15) * 8, src=76, tmp=77)
        A("s_waitcnt vmcnt(0)")
        A("s_barrier")
        D = Lds(A)
        tr(A, 'go')
        ACC, RING, NR = 8, 40, 5
        seq = [(ks, tt) for ks in range(18) for tt in range(2)]
        def rd(i):
            ks, tt = seq[i]
            D.op(f"ds_read_b128 {v(RING + 4 * (i % NR), 4)}, v{HA0 + (ks & 1)} offset:{tt * 18432 + (ks >> 1) * 128}", i)
        for i in range(NR - 1): rd(i)
        def ac(m, b, tt): return ACC + ((m * 2 + b) * 2 + tt) * 4
        for i, (ks, tt) in enumerate(seq):
            if i + NR - 1 < 36: rd(i + NR - 1)
            D.wait(i)
            for m in range(2):
                for b in range(2):
                    d = v(ac(m, b, tt), 4)
                    A(f"{MF32} {d}, {u(wg(m, ks, b), 4)}, {v(RING + 4 * (i % NR), 4)}, {d if ks else 0}")
        tr(A, 'mm')
        def swiglu(g, u_, dst):
            for r in (0, 2):
                rnd2(A, g + r); rnd2(A, u_ + r)
                A(f"v_pk_mul_f32 v[60:61], {v(g + r, 2)}, s[60:61] op_sel_hi:[1,0]")
                A("v_exp_f32 v60, v60"); A("v_exp_f32 v61, v61")
                A("v_pk_add_f32 v[60:61], v[60:61], 1.0 op_sel_hi:[1,0]")
                A("v_rcp_f32 v60, v60"); A("v_rcp_f32 v61, v61")
                A(f"v_pk_mul_f32 {v(g + r, 2)}, {v(g + r, 2)}, v[60:61]")
                rnd2(A, g + r)
                A(f"v_pk_mul_f32 {v(g + r, 2)}, {v(g + r, 2)}, {v(u_ + r, 2)}")
                A(f"v_cvt_pk_bf16_f32 v{dst + r // 2}, v{g+r}, v{g+r+1}")
        for tt in range(2):
            for b in range(2): swiglu(ac(0, b, tt), ac(1, b, tt), 64 + 4 * tt + 2 * b)
            A(f"v_add_u32 v62, {LACT + tt * 4096}, v{T16}")
            A(f"ds_write_b128 v62, {v(64 + 4 * tt, 4)}")
        l = A.newlabel('L_f9')
        A("s_cmp_ge_u32 s10, 2")
        A(f"s_cbranch_scc1 {l}")
        A("s_mul_i32 s12, s10, 18432")
        A(f"v_add_u32 v{HA0}, s12, v{HA0}")
        A(f"v_add_u32 v{HA1}, s12, v{HA1}")
        D.waitall()
        def rd9(ks):
            r = 16 + 12 * (ks % 3)
            D.op(f"ds_read_b128 {v(r, 4)}, v{HA0 + (ks & 1)} offset:{(ks >> 1) * 128}")
            for m in range(2):
                for hq in range(2):
                    D.op(f"ds_read_b64_tr_b16 {v(r + 4 + 4 * m + 2 * hq, 2)}, v{G8A} offset:{m * 18432 + ks * 1024 + hq * 128}", ks)
        rd9(0); rd9(1)
        for ks in range(18):
            if ks + 2 < 18: rd9(ks + 2)
            D.wait(ks)
            r = 16 + 12 * (ks % 3)
            for m in range(2):
                d = v(8 + 4 * m, 4)
                A(f"{MF32} {d}, {v(r + 4 + 4 * m, 4)}, {v(r, 4)}, {d if ks else 0}")
        swiglu(8, 12, 64)
        A(f"v_lshrrev_b32 v62, 1, v{T16}")
        A(f"v_add_u32 v62, {LACT + 8192}, v62")
        A("ds_write_b64 v62, v[64:65]")
        A.label(l)
        lane_const(A, 27, lambda t: LW16 + (4 * ((t >> 4) & 3) + ((t >> 2) & 3)) * 1152 + (t >> 6) * 32 + (t & 3) * 8, src=76, tmp=77)
        A("s_waitcnt lgkmcnt(0)")
        A("s_barrier")
        A(f"v_add_u32 v{L16}, {LACT}, v{L16}")
        out_proj(A, st, wd, 0, LRED, k16=(LACT // 2 + 8192, 27))
        A(f"v_subrev_u32 v{L16}, {LACT}, v{L16}")
        A("s_cmp_lg_u32 s10, 0")
        A(f"s_cbranch_scc1 L_f_next_{sfx}")
        for i in range(5):
            if i == 4: A("s_mov_b32 exec_hi, 0")
            A(f"global_load_dword v{50+i}, v{L4}, s[54:55] offset:{256 * i}")
            A(f"global_load_dword v{56+i}, v{L4}, s[36:37] offset:{256 * i}")
        A("s_mov_b64 exec, -1")
        A(f"v_add_u32 v{L4}, {LRED // 2}, v{L4}")
        row_gather(A, 0)
        A(f"v_subrev_u32 v{L4}, {LRED // 2}, v{L4}")
        A("s_waitcnt vmcnt(0)")
        for i in range(5):
            r = 8 + 2 * i
            if i == 4: A("s_mov_b32 exec_hi, 0")
            unpack(A, 18, 50 + i)
            A(f"v_pk_mul_f32 {v(r, 2)}, {v(r, 2)}, v[18:19]")
            rnd2(A, r)
            unpack(A, 18, 56 + i)
            A(f"v_pk_add_f32 {v(r, 2)}, {v(r, 2)}, v[18:19]")
            A(f"v_cvt_pk_bf16_f32 v{24+i}, v{r}, v{r+1}")
            A(f"global_store_dword v{L4}, v{24+i}, s[34:35] offset:{256 * i}")
        A("s_mov_b64 exec, -1")
        A.label(f"L_f_next_{sfx}")
        tr(A, 'end'); tr_dump(A, EXP.get('aftrace', 0))
        add64(A, 20, 20, nf * SEG_H); add64(A, 34, 34, nf * SEG_H); add64(A, 36, 36, nf * SEG_H); add64(A, 52, 52, nf * 128)
        A(f"s_add_u32 s24, s24, {nf}")
        A("s_cmp_lt_u32 s24, 64")
        A(f"s_cbranch_scc1 L_f_top_{sfx}")
        tl(A, 4)
        A("s_branch L_exit")
```

```python
from common import *
import math

def stage_mod(A, idx_s):
    A(f"s_load_dwordx4 s[16:19], s[0:1], {KA_C}")
    lane_const(A, 2, lambda t: (t >> 3) * 6912 + (t & 7) * 16, tmp=1)
    lane_const(A, 3, lambda t: (t >> 3) * 2, tmp=1)
    A(f"s_lshl_b32 s12, {idx_s}, 7")
    A("s_waitcnt lgkmcnt(0)")
    add64(A, 18, 18, "s12")
    for i in range(18): A(f"global_load_ushort v{8+i}, v3, s[16:17] offset:{64 * i}")
    for i in range(18):
        A(f"global_load_dwordx4 {v(40 + 4 * i, 4)}, v2, s[18:19]")
        if i < 17: add64(A, 18, 18, 32 * 6912)
    A(f"s_mov_b32 s12, {f32bits(-math.log2(math.e)):#x}")
    A("s_waitcnt vmcnt(18)")
    for i in range(18):
        r = 8 + i
        A(f"v_lshlrev_b32 v{r}, 16, v{r}")
        A(f"v_mul_f32 v4, s12, v{r}")
        A("v_exp_f32 v4, v4")
        A("v_add_f32 v4, 1.0, v4")
        A("v_rcp_f32 v4, v4")
        A(f"v_mul_f32 v{r}, v{r}, v4")
        rnd1(A, r)
    for k in range(8): A(f"v_mov_b32 v{28+k}, 0")
    for i in range(18):
        A(f"s_waitcnt vmcnt({17 - i})")
        for q in range(4):
            A(f"v_lshlrev_b32 v4, 16, v{40+4*i+q}")
            A(f"v_and_b32 v5, 0xffff0000, v{40+4*i+q}")
            A(f"v_fmac_f32 v{28+2*q}, v4, v{8+i}")
            A(f"v_fmac_f32 v{29+2*q}, v5, v{8+i}")
    A("v_lshlrev_b32 v4, 5, v0")
    A("ds_write_b128 v4, v[28:31]")
    A("ds_write_b128 v4, v[32:35] offset:16")
    A("s_waitcnt lgkmcnt(0)")
    A("s_barrier")
    l = A.newlabel('L_md')
    A("s_cmp_lg_u32 s10, 0")
    A(f"s_cbranch_scc1 {l}")
    A("v_lshlrev_b32 v4, 2, v0")
    for i in range(32): A(f"ds_read_b32 v{8+i}, v4 offset:{256 * i}")
    A("s_waitcnt lgkmcnt(0)")
    for st in (16, 8, 4, 2, 1):
        for i in range(st): A(f"v_add_f32 v{8+i}, v{8+i}, v{8+i+st}")
    rnd1(A, 8)
    A("v_add_f32 v9, 1.0, v8")
    A(f"s_sub_u32 s12, {idx_s}, 9")
    A(f"s_sub_u32 s13, {idx_s}, 36")
    A("s_min_u32 s12, s12, s13")
    A("s_cmp_lt_u32 s12, 9")
    A("s_cselect_b64 vcc, -1, 0")
    A("v_cndmask_b32 v8, v8, v9, vcc")
    A("v_cvt_pk_bf16_f32 v8, v8, v8")
    A(f"s_lshl_b32 s12, {idx_s}, 7")
    A("v_lshl_add_u32 v4, v0, 1, s12")
    A(f"global_store_short v4, v8, s[4:5] offset:{WS_MOD} sc1")
    A("s_waitcnt vmcnt(0)")
    A.label(l)
    counter_arrive(A, DBG_MODCNT, tv=4)
    A("s_barrier")

def stage_ln1(A, idx_s):
    X = 16
    A(f"s_load_dwordx2 s[16:17], s[0:1], {KA_X}")
    lane_const(A, 2, lambda t: (16 * (t >> 6) + (t & 15)) * 1152 + ((t >> 4) & 3) * 16, tmp=1)
    lane_const(A, 3, lambda t: ((t >> 4) & 3) * 16, tmp=1)
    lane_const(A, 4, lambda t: (t >> 6) * 18432 + (t & 63) * 16, tmp=1)
    A(f"s_mul_i32 s12, {idx_s}, {64 * 1152}")
    A("s_waitcnt lgkmcnt(0)")
    add64(A, 16, 16, "s12")
    A(f"s_add_u32 s12, s12, {WS_H}")
    add64(A, 18, S_WS, "s12")
    for ks in range(18): A(f"global_load_dwordx4 {v(160 + 4 * ks, 4)}, v2, s[16:17] offset:{64 * ks}")
    A("v_mov_b64 v[6:7], 0")
    for ks in range(18):
        A(f"s_waitcnt vmcnt({17 - ks})")
        for q in range(4):
            r = X + 8 * ks + 2 * q
            A(f"v_lshlrev_b32 v{r}, 16, v{160+4*ks+q}")
            A(f"v_and_b32 v{r+1}, 0xffff0000, v{160+4*ks+q}")
            A(f"v_pk_add_f32 v[6:7], v[6:7], {v(r, 2)}")
    A("v_add_f32 v6, v6, v7")
    xsum(A, 6, 7, bits=(4, 5))
    A(f"v_mul_f32 v6, {f32bits(1.0 / 576):#x}, v6")
    A("v_mov_b64 v[8:9], 0")
    for i in range(72):
        A(f"v_pk_add_f32 v[10:11], {v(X + 2 * i, 2)}, v[6:7] op_sel_hi:[1,0] neg_lo:[0,1] neg_hi:[0,1]")
        A("v_pk_fma_f32 v[8:9], v[10:11], v[10:11], v[8:9]")
    A("v_add_f32 v8, v8, v9")
    xsum(A, 8, 9, bits=(4, 5))
    A(f"v_mul_f32 v8, {f32bits(1.0 / 576):#x}, v8")
    rnd1(A, 8); rnd1(A, 6)
    A(f"v_add_f32 v8, {f32bits(1e-5):#x}, v8")
    rnd1(A, 8)
    A("v_sqrt_f32 v8, v8")
    rnd1(A, 8)
    A("v_rcp_f32 v8, v8")
    for i in range(72):
        r = X + 2 * i
        A(f"v_pk_add_f32 {v(r, 2)}, {v(r, 2)}, v[6:7] op_sel_hi:[1,0] neg_lo:[0,1] neg_hi:[0,1]")
        rnd2(A, r)
        A(f"v_pk_mul_f32 {v(r, 2)}, {v(r, 2)}, v[8:9] op_sel_hi:[1,0]")
        rnd2(A, r)
    tl(A, 5, 10)
    counter_wait(A, DBG_MODCNT, 54, tv=10)
    tl(A, 6, 10)
    for half in range(2):
        for k in range(9):
            ks = 9 * half + k
            A(f"global_load_dwordx4 {v(160 + 8 * k, 4)}, v3, s[4:5] offset:{WS_MOD + 1152 + 64 * ks} sc1")
            A(f"global_load_dwordx4 {v(164 + 8 * k, 4)}, v3, s[4:5] offset:{WS_MOD + 64 * ks} sc1")
        for k in range(9):
            ks = 9 * half + k
            A(f"s_waitcnt vmcnt({2 * (8 - k) + k})")
            for q in range(4):
                r = X + 8 * ks + 2 * q
                A(f"v_lshlrev_b32 v10, 16, v{160+8*k+q}")
                A(f"v_and_b32 v11, 0xffff0000, v{160+8*k+q}")
                A(f"v_lshlrev_b32 v12, 16, v{164+8*k+q}")
                A(f"v_and_b32 v13, 0xffff0000, v{164+8*k+q}")
                A(f"v_pk_mul_f32 {v(r, 2)}, {v(r, 2)}, v[10:11]")
                rnd2(A, r)
                A(f"v_pk_add_f32 {v(r, 2)}, {v(r, 2)}, v[12:13]")
                A(f"v_cvt_pk_bf16_f32 v{X+8*ks+q}, v{r}, v{r+1}")
            A(f"global_store_dwordx4 v4, {v(X + 8 * ks, 4)}, s[18:19] offset:{(ks % 4) * 1024} sc1")
            if ks % 4 == 3: add64(A, 18, 18, 4096)
    A("s_waitcnt vmcnt(0)")
    A("s_barrier")
    counter_arrive(A, DBG_HCNT, tv=10)

def WF(i):
    return 256 + 4 * i if i < 64 else 224 + 4 * (i - 64)

def role_kv(A, restart, nkv, kvg0, wait_h=True):
    A(f"s_load_dwordx4 s[16:19], s[0:1], {KA_WK}")
    dense256_consts(A, 12, 16, 8192, 1)
    A("s_lshl_b32 s12, s9, 8")
    A("s_waitcnt lgkmcnt(0)")
    add64(A, 16, 16, "s12"); add64(A, 18, 18, "s12")
    def fr(m, ks, b): return WF(ks * 4 + m * 2 + b)
    chunks = []
    for c in range(9):
        for m in range(2):
            chunks.append(dict(ptr=16 + 2 * m, off=c * 64 * 8192, vb=12, reads=dense256_reads(lambda ks, b, m=m: fr(m, ks, b), 16, c)))
    ring_load(A, chunks)
    tl(A, 1)
    mode_check(A, tv=12)
    T16, L16, HA = 1, 2, 3
    A(f"v_lshlrev_b32 v{T16}, 4, v0")
    lane_const(A, L16, lambda t: (t & 63) * 16, tmp=12)
    A(f"s_sub_u32 s24, s8, {kvg0}")
    A(f"s_mul_i32 s12, s24, {SEG_H}")
    A(f"s_add_u32 s12, s12, {WS_H}")
    add64(A, 20, S_WS, "s12")
    A("s_lshl_b32 s12, s24, 5")
    A("s_add_u32 s12, s12, s9")
    A("s_lshl_b32 s12, s12, 14")
    A(f"s_add_u32 s12, s12, {WS_KV + 2048}")
    add64(A, 22, S_WS, "s12")
    A("s_lshl_b32 s13, s10, 11")
    A("s_add_u32 s12, s12, s13")
    A("s_add_u32 s12, s12, 6144")
    add64(A, 30, S_WS, "s12")
    A("s_lshl_b32 s12, s8, 5")
    A("s_add_u32 s12, s12, s9")
    A("s_lshl_b32 s12, s12, 7")
    A(f"s_add_u32 s12, s12, {WS_KVPROG}")
    add64(A, 32, S_WS, "s12")
    A("s_lshl_b32 s26, s10, 10")
    A("s_mov_b32 s27, 0")
    A("s_mov_b32 s28, 0")
    if wait_h: counter_wait(A, DBG_HCNT, 32, tv=12)
    tl(A, 2)
    def adv():
        add64(A, 20, 20, nkv * SEG_H)
        A(f"s_add_u32 s26, s26, {SEG_H}")
        A(f"s_cmp_ge_u32 s26, {3 * SEG_H}")
        A(f"s_cselect_b32 s12, {3 * SEG_H}, 0")
        A("s_sub_u32 s26, s26, s12")
    for _ in range(2):
        seg_dma(A, T16, 20, 26); adv()
    A("s_waitcnt vmcnt(9)")
    A("s_branch L_kv_first")
    A.label("L_kv_top")
    A("s_waitcnt vmcnt(14)")
    A.label("L_kv_first")
    A("s_barrier")
    A("s_sub_u32 s12, s28, 1")
    A("s_max_i32 s12, s12, 0")
    A("v_mov_b32 v4, s12")
    A("s_mov_b64 exec, 1")
    A(f"global_store_dword v{L16}, v4, s[32:33] sc1")
    A("s_mov_b64 exec, -1")
    A(f"v_add_u32 v{HA}, s27, v{L16}")
    D = Lds(A)
    ACC, RING, NR = 8, 40, 6
    seq = [(ks, tt) for ks in range(18) for tt in range(2)]
    def rd(i):
        ks, tt = seq[i]
        D.op(f"ds_read_b128 {v(RING + 4 * (i % NR), 4)}, v{HA} offset:{(tt * 18 + ks) * 1024}", i)
    for i in range(NR - 1): rd(i)
    seg_dma(A, T16, 20, 26); adv()
    for i, (ks, tt) in enumerate(seq):
        if i + NR - 1 < 36: rd(i + NR - 1)
        D.wait(i)
        h = v(RING + 4 * (i % NR), 4)
        for m in range(2):
            for b in range(2):
                d = v(ACC + ((m * 2 + b) * 2 + tt) * 4, 4)
                w = u(fr(m, ks, b), 4)
                A(f"{MF32} {d}, {w if m == 0 else h}, {h if m == 0 else w}, {d if ks else 0}")
    def ac(m, b, tt): return ACC + ((m * 2 + b) * 2 + tt) * 4
    O = 64
    for tt in range(2):
        for r in range(4): A(f"v_cvt_pk_bf16_f32 v{O+4*tt+r}, v{ac(0,0,tt)+r}, v{ac(0,1,tt)+r}")
        A(f"global_store_dwordx4 v{T16}, {v(O + 4 * tt, 4)}, s[22:23] offset:{tt * 4096 - 2048} sc1")
    for b in range(2):
        for q in range(4): A(f"v_cvt_pk_bf16_f32 v{O+8+4*b+q}, v{ac(1,b,q>>1)+2*(q&1)}, v{ac(1,b,q>>1)+2*(q&1)+1}")
        A(f"global_store_dwordx4 v{L16}, {v(O + 8 + 4 * b, 4)}, s[30:31] offset:{b * 1024} sc1")
    add64(A, 22, 22, nkv << 19); add64(A, 30, 30, nkv << 19)
    A(f"s_add_u32 s27, s27, {SEG_H}")
    A(f"s_cmp_ge_u32 s27, {3 * SEG_H}")
    A("s_cselect_b32 s27, 0, s27")
    A("s_add_u32 s28, s28, 1")
    A(f"s_add_u32 s24, s24, {nkv}")
    A("s_cmp_lt_u32 s24, 64")
    A("s_cbranch_scc1 L_kv_top")
    A("s_waitcnt vmcnt(0)")
    A("s_barrier")
    tl(A, 4)
    A("v_mov_b32 v4, s28")
    A("s_mov_b64 exec, 1")
    A(f"global_store_dword v{L16}, v4, s[32:33] sc1")
    A("s_branch L_exit")
```

```python
from common import *
import math, struct

L_MEM, L_KX, L_VX = 0, 9216, 17408
L_QL, L_KL, L_OL = 25600, 27904, 30208
L_JUNK = 32256
L_WK = 32768
QSTR = 288
KL0 = L_KL - L_QL
T16, WKB, L16, MEMR, QR, QKW, OW, IDX = range(0, 8)
TMPC = WKB
def WQ(ks, b): return 256 + (ks * 2 + b) * 8
def WV(ks, b):
    i = ks * 2 + b
    return 400 + i * 8 if i < 14 else 64 + (i - 14) * 8
def WO(t, k2): return 96 + (t * 2 + k2) * 8
def WK8(b): return 240 + b * 8
ACCV0, ACCQ, ACCK, MRING, WRING, ACCV1 = 8, 12, 20, 28, 40, 40
SMF = "v_smfmac_f32_16x16x64_bf16"
MF32 = "v_mfma_f32_16x16x32_bf16"
MF16 = "v_mfma_f32_16x16x16_bf16"
IDQ = "quad_perm:[0,1,2,3]"
ROR8 = "row_ror:8 row_mask:0xf bank_mask:0xf"
def FSW(i): return 2 * (0, 2, 3, 1)[i >> 1] + (i & 1)
def img(i, pos): return i * 128 + ((pos ^ FSW(i)) * 16)
PI = [0, 1, 4, 5, 2, 3, 6, 7]
EXP = {}
PF = 1
ORD = [8, 0, 1, 2, 3, 4, 5, 6, 7]

def r_setup(A):
    A(f"s_load_dwordx4 s[16:19], s[0:1], {KA_WQ}")
    A(f"s_load_dwordx4 s[20:23], s[0:1], {KA_WV}")
    A(f"s_load_dwordx2 s[24:25], s[0:1], {KA_MEM0}")
    def swz(lr): return 2 * ((lr & 1) | ((lr >> 3) & 1) << 1 | ((lr >> 5) & 1) << 2)
    def swz2(row): return 2 * (((row >> 2) & 1) | ((row >> 4) & 1) << 1)
    for ip in range(4):
        def fq(t, last=False):
            w, l = t >> 6, t & 63
            lr = 16 * w + 4 * ip + (l >> 4); e, pos = lr >> 3, lr & 7
            d = 512 + 8 * pos + e if last else 64 * (e & 1) + 4 * pos + (e >> 1)
            return d * 8192 + (((l & 15) ^ swz(lr)) * 16)
        lane_const(A, 12 + ip, fq, tmp=1)
        lane_const(A, 16 + ip, lambda t: fq(t, True), tmp=1)
        lane_const(A, 20 + ip, lambda t: (32 * (t >> 6) + 8 * ip + ((t & 63) >> 3)) * 1152, tmp=1)
        lane_const(A, 20 + ip, lambda t: ((t & 7) ^ swz2(32 * (t >> 6) + 8 * ip + ((t & 63) >> 3))) * 16, tmp=1, acc=True)
    def ftr(t, b):
        w, l = t >> 6, t & 63
        gb, half, bp, c = l >> 4, (l >> 3) & 1, (l >> 2) & 1, l & 3
        lr = 32 * (gb & 1) + 8 * bp + 2 * (gb >> 1) + half
        return L_WK + lr * 256 + (((4 * w + 2 * b + (c >> 1)) ^ swz(lr)) * 16) + (c & 1) * 8
    lane_const(A, 24, lambda t: ftr(t, 0), tmp=1)
    lane_const(A, 25, lambda t: ftr(t, 1), tmp=1)
    def fto(t):
        w, l = t >> 6, t & 63
        gb, half, bp, c = l >> 4, (l >> 3) & 1, (l >> 2) & 1, l & 3
        row = 16 * (gb & 1) + 8 * (gb >> 1) + 4 * half + bp
        return L_WK + row * 128 + (((2 * w + (c >> 1)) ^ swz2(row)) * 16) + (c & 1) * 8
    lane_const(A, 26, fto, tmp=1)
    lane_const(A, 27, lambda t: L_WK + t * 16, tmp=1)
    A("s_waitcnt lgkmcnt(0)")
    A("s_lshl_b32 s12, s9, 8")
    for p in (16, 18, 20):
        add64(A, p, p, "s12")
    A("s_mul_i32 s12, s9, 147456")
    add64(A, 22, 22, "s12")
    A("s_lshl_b32 s26, s10, 12")
    A(f"s_add_u32 s26, s26, {L_WK}")
    chunks = [('q', k) for k in range(9)] + [('v', k) for k in range(9)] + [('o', t) for t in range(9)] + [('k', 7)] + [('k', ORD[j % 8]) for j in range(28, 36)]
    ptr = {'q': 16, 'k': 18, 'v': 20, 'o': 22}
    def issue(j):
        m, k = chunks[j]
        slot = j % 8
        if m == 'o': off, vb = k * 128, 20
        elif k < 8: off, vb = (128 * (k >> 1) + 32 * (k & 1)) * 8192, 12
        else: off, vb = 0, 16
        add64(A, 12, ptr[m], off)
        for ip in range(4):
            A(f"s_add_u32 m0, s26, {slot * 16384 + ip * 1024}")
            A(f"global_load_lds_dwordx4 v{vb+ip}, s[12:13]")
    for j in range(7): issue(j)
    n = len(chunks)
    for j in range(n + 1):
        if j < n:
            ahead = min(n - 1, j + 6) - j
            A(f"s_waitcnt vmcnt({4 * ahead})")
        A("s_barrier")
        if j + 7 < n: issue(j + 7)
        if j >= 29:
            pk = (j - 1) % 8; tb = 32 + ((j - 1) & 1) * 16
            A(f"v_add_u32 v28, {pk * 16384}, v27")
            for q in range(4):
                A(f"ds_write_b128 v28, {v(tb + 4 * q, 4)} offset:{q * 4096}")
        if j < n:
            m, k = chunks[j]; slot = j % 8
            if m == 'o':
                A(f"v_add_u32 v28, {slot * 16384}, v26")
                for k2 in range(2):
                    for jq in range(4):
                        off = (64 * k2 + 32 * (jq >> 1) + 2 * (jq & 1)) * 128
                        A(f"ds_read_b64_tr_b16 {u(WO(k, k2) + 2 * jq, 2)}, v28 offset:{off}")
            else:
                A(f"v_add_u32 v28, {slot * 16384}, v24")
                A(f"v_add_u32 v29, {slot * 16384}, v25")
                for b in range(2):
                    if m == 'q': dst = WQ(k, b)
                    elif m == 'v': dst = WV(k, b)
                    elif j == 27: dst = WK8(b)
                    else: dst = 32 + (j & 1) * 16 + b * 8
                    for jq in range(4):
                        off = (16 * (jq & 1) + 4 * (jq >> 1)) * 256
                        A(f"ds_read_b64_tr_b16 {u(dst + 2 * jq, 2)}, v{28+b} offset:{off}")
        A("s_waitcnt lgkmcnt(0)")
    for m in range(3):
        def fd(t): return 256 * m + t if m < 2 else 512 + (t & 63)
        def fa(t):
            d = fd(t)
            if d < 512: ks, e, pos = 2 * (d >> 7) + ((d >> 5) & 1), 2 * (d & 3) + ((d >> 6) & 1), (d >> 2) & 7
            else: ks, e, pos = 8, d & 7, (d >> 3) & 7
            return ks * 1024 + pos * 16 + e * 2
        lane_const(A, 4 + m, lambda t: 2 * fd(t), tmp=1)
        lane_const(A, 8 + m, fa, tmp=1)
        for i in range(8):
            A(f"v_add_u32 v2, {i * 1152}, v{4+m}")
            A(f"global_load_ushort v{12+8*m+i}, v2, s[24:25]")
    A("s_waitcnt vmcnt(0)")
    for m in range(3):
        for i in range(8):
            A(f"v_xor_b32 v2, {FSW(i) * 16}, v{8+m}")
            A(f"ds_write_b16 v2, v{12+8*m+i} offset:{L_MEM + i * 128}")
    A("s_waitcnt lgkmcnt(0)")

def r_consts(A):
    lane_const(A, L16, lambda t: (t & 63) * 16, tmp=12)
    lane_const(A, MEMR, lambda t: img((t & 15) >> 1, 2 * ((t >> 4) & 3) + (t & 1)), tmp=12)
    lane_const(A, QR, lambda t: L_QL + (t & 7) * QSTR + ((t >> 4) & 3) * 16, tmp=12)
    lane_const(A, QKW, lambda t: L_QL + (0, 4, 2, 6)[(t >> 4) & 3] * QSTR + (t >> 6) * 64 + (t & 15) * 4, tmp=12)
    lane_const(A, OW, lambda t: (t >> 7) * 1024 + img(PI[t & 7], 4 * ((t >> 6) & 1) + ((t >> 4) & 3)), tmp=12)
    A(f"v_add_u32 v{OW}, {L_OL}, v{OW}")
    lane_const(A, 14, lambda t: L_JUNK + (((t >> 4) & 3) * 8 + (t & 7)) * 16, tmp=12)
    A("v_and_b32 v12, 8, v0")
    A("v_cmp_ne_u32 vcc, 0, v12")
    A(f"v_cndmask_b32 v{OW}, v{OW}, v14, vcc")
    lane_const(A, IDX, lambda t: 0xEEEE if t & 1 else 0x4444, tmp=12)
    A(f"v_lshlrev_b32 v{T16}, 4, v0")
    A("s_lshl_b32 s12, s10, 5")
    A("s_add_u32 s12, s12, s9")
    A("s_lshr_b32 s13, s9, 2")
    A("s_add_u32 s13, s13, 64")
    A("s_cmp_lt_u32 s10, 2")
    A("s_cselect_b32 s37, s12, s13")
    A("s_cselect_b32 s36, 1, 0")
    A("s_and_b32 s12, s9, 3")
    A("s_lshl_b32 s12, s12, 2")
    A("s_or_b32 s12, s12, s10")
    A("s_cmp_eq_u32 s12, 2")
    A("s_cselect_b32 s36, 2, s36")
    A("v_mov_b32 v14, s37")
    lane_const(A, 15, lambda t: ms_fn(1, t, 0), src=14, nbits=6, tmp=12)
    lane_const(A, 16, lambda t: ms_fn(2, 64 + t, 0), src=14, nbits=3, tmp=12)
    A("v_readfirstlane_b32 s41, v15")
    A("v_readfirstlane_b32 s12, v16")
    A("s_cmp_lt_u32 s10, 2")
    A("s_cselect_b32 s41, s41, s12")
    A("s_lshl_b32 s12, s9, 7")
    A(f"s_add_u32 s12, s12, {WS_RP}")
    A("s_lshl_b32 s13, s10, 14")
    A("s_add_u32 s13, s13, s12")
    add64(A, 26, S_WS, "s13")
    for p in range(1, 4): add64(A, 88 + 2 * p, 26, p * 65536)
    A("s_lshl_b32 s13, s10, 13")
    A("s_add_u32 s13, s13, s12")
    A(f"s_add_u32 s13, s13, {64 * 4096}")
    add64(A, 42, S_WS, "s13")
    A("s_lshl_b32 s12, s37, 12")
    A(f"s_add_u32 s12, s12, {WS_RP}")
    add64(A, 28, S_WS, "s12")
    add64(A, 30, S_WS, WS_RM)
    A("s_mov_b32 s44, 0x00FF00FF")
    A("s_mov_b32 s45, 0")
    cc = struct.unpack('<I', struct.pack('<f', (128 ** -0.5) * math.log2(math.e)))[0]
    A(f"s_mov_b32 s46, {cc:#x}")
    A("s_bfe_u32 s40, s9, 0x10003")
    A("s_lshl_b32 s12, s9, 14")
    A("s_lshl_b32 s13, s10, 11")
    A("s_add_u32 s12, s12, s13")
    A(f"s_add_u32 s12, s12, {WS_KV}")
    add64(A, 48, S_WS, "s12")
    A("s_sub_u32 s12, s12, s13")
    add64(A, 88, S_WS, "s12")
    A("s_lshl_b32 s12, s9, 12")
    A(f"s_add_u32 s12, s12, {WS_KVM}")
    add64(A, 50, S_WS, "s12")
    A("s_lshl_b32 s12, s9, 7")
    A(f"s_add_u32 s12, s12, {WS_RPROG}")
    add64(A, 52, S_WS, "s12")
    A("s_lshl_b32 s62, s10, 11")
    A(f"s_add_u32 s62, s62, {L_KX}")
    A("s_lshl_b32 s63, s10, 10")
    A(f"s_add_u32 s63, s63, {L_VX}")
    A("s_sub_u32 s12, 3, s10")
    A("s_lshl_b32 s16, s12, 11")
    A("s_add_u32 s17, s16, 1024")
    A("s_cmp_eq_u32 s10, 0")
    A("s_cselect_b32 s16, 8192, s16")
    A("s_cselect_b32 s17, 8192, s17")
    A("s_lshl_b32 s18, s10, 10")
    A("s_add_u32 s18, s18, 4096")

def ms_fn(kind, t, l):
    q8, gp = l & 7, (l >> 4) & 1
    if kind == 1:
        w, g = (t >> 2) & 3, t & 3
        return (t >> 3) * 1024 + img(2 * g + gp, 4 * (w & 1) + (q8 >> 1)) + (q8 & 1) * 8
    w = (t >> 1) & 3
    row = 4 * (t & 1) + 2 * (q8 >> 2) + gp
    return 8192 + img(row, 2 * w + ((q8 >> 1) & 1)) + (q8 & 1) * 8

def ms_calc(A, kind, dst, tmp):
    t0 = 0 if kind == 1 else 64
    lane_const(A, dst, lambda x: ms_fn(kind, t0, x >> 4) ^ ms_fn(kind, t0, 0), src=L16, nbits=10, tmp=tmp, mode='xor')
    A(f"v_xor_b32 v{dst}, s41, v{dst}")

def r_init_rings(A, st):
    skip = A.newlabel('L_ri'); l2 = A.newlabel('L_ri2')
    A("s_cmp_eq_u32 s36, 0")
    A(f"s_cbranch_scc1 {skip}")
    for r in range(4): A(f"v_mov_b32 v{12+r}, 1")
    for r in range(4): A(f"v_mov_b32 v{16+r}, 0")
    for j in range(4):
        A(f"global_store_dwordx4 v{L16}, {v(12 + 4 * (j & 1), 4)}, s[28:29] offset:{j * 1024} {st}")
    A("v_mov_b32 v20, -1")
    A("v_mov_b32 v21, -1")
    ms_calc(A, 1, 22, 24)
    A("s_cmp_eq_u32 s36, 1")
    A(f"s_cbranch_scc1 {l2}")
    ms_calc(A, 2, 22, 24)
    A.label(l2)
    A("s_mov_b64 exec, s[44:45]")
    for sl in range(3):
        add64(A, 12, 30, sl * 9216)
        A(f"global_store_dwordx2 v22, v[20:21], s[12:13] {st}")
    A("s_mov_b64 exec, -1")
    A.label(skip)

def kv_wait(A, seg_sgpr, nkv, kvg0, tv):
    if nkv == 0: return
    ok = A.newlabel('L_kvok'); loop = A.newlabel('L_kvp')
    A(f"s_cmp_lt_u32 {seg_sgpr}, s54")
    A(f"s_cbranch_scc1 {ok}")
    A("s_mov_b32 s55, 0")
    A.label(loop)
    A(f"v_lshrrev_b32 v{tv}, 4, v{L16}")
    A(f"v_min_u32 v{tv}, {nkv - 1}, v{tv}")
    A(f"v_lshlrev_b32 v{tv+1}, 12, v{tv}")
    A("s_lshl_b32 s12, s9, 7")
    A(f"s_add_u32 s12, s12, {WS_KVPROG + kvg0 * 4096}")
    A(f"v_add_u32 v{tv+1}, s12, v{tv+1}")
    A(f"global_load_dword v{tv+1}, v{tv+1}, s[4:5] sc1")
    A("s_add_u32 s55, s55, 1")
    A(f"s_cmp_gt_u32 s55, {SPIN_MAX}")
    A("s_cbranch_scc1 L_exit")
    A("s_waitcnt vmcnt(0)")
    A(f"v_mul_u32_u24 v{tv+1}, {nkv}, v{tv+1}")
    A(f"v_add_u32 v{tv+1}, v{tv+1}, v{tv}")
    A(f"v_readlane_b32 s54, v{tv+1}, 0")
    for j in range(1, nkv):
        A(f"v_readlane_b32 s12, v{tv+1}, {j}")
        A("s_min_u32 s54, s54, s12")
    A(f"s_cmp_lt_u32 {seg_sgpr}, s54")
    A(f"s_cbranch_scc0 {loop}")
    A.label(ok)

def r_main(A, fast, nkv, kvg0, nsteps=64):
    st = "" if fast else "sc1"
    sfx = "f" if fast else "s"
    D = Lds(A)
    TR = EXP.get('trace', [])
    def tr(name):
        if name in TR:
            i = TR.index(name)
            A(f"{'s_memrealtime' if EXP.get('real') else 's_memtime'} s[{64+2*i}:{65+2*i}]")
    def k_dma():
        A("s_mov_b32 m0, s62")
        A(f"global_load_lds_dwordx4 v{L16}, s[32:33]")
        A(f"global_load_lds_dwordx4 v{L16}, s[32:33] offset:1024")
    def v_dma():
        A("s_mov_b32 m0, s63")
        A(f"global_load_lds_dwordx4 v{L16}, s[56:57]")
        A("s_add_u32 m0, s63, 3072")
        A(f"global_load_lds_dwordx4 v{L16}, s[56:57] offset:1024")
    def kv_dma_all():
        for i in range(16):
            dst = L_KX + i * 1024 if i < 8 else L_VX + ((i - 8) & 1) * 4096 + ((i - 8) >> 1) * 1024
            if i % 4 == 0 and i: add64(A, 32, 32, 4096)
            A(f"s_mov_b32 m0, {dst - (i % 4) * 1024}")
            A(f"global_load_lds_dwordx4 v{L16}, s[32:33] offset:{(i % 4) * 1024}")
        add64(A, 32, 32, (1 << 19) - 12288)
    def touch_addr(r):
        A(f"v_lshlrev_b32 v{r}, 2, v{T16}")
    def touch(r):
        A(f"s_mov_b32 m0, {L_JUNK}")
        A(f"global_load_lds_dword v{r}, s[58:59]")
    A("s_mov_b32 s24, 0")
    A("s_mov_b32 s34, 9216")
    A("s_mov_b32 s35, 0")
    A("s_mov_b32 s54, 0")
    if TR or EXP.get('rt'):
        for i in range(24 if TR else 16): A(f"s_mov_b32 s{64+i}, 0")
    tl(A, 2)
    A(f"s_mov_b32 s25, {PF}")
    kv_wait(A, "s25", nkv, kvg0, 12)
    tl(A, 3)
    A("s_mov_b64 s[32:33], s[88:89]")
    kv_dma_all()
    touch_addr(12)
    for p in range(1, PF):
        add64(A, 58, 88, p << 19)
        touch(12)
    A("s_waitcnt vmcnt(0)")
    if EXP.get('rt'):
        A("s_memrealtime s[80:81]")
        A("s_memtime s[96:97]")

    wk_seq = [(ks, b) for ks in range(8) for b in range(2)]
    def wk_read(n):
        ks, b = wk_seq[n]
        off = L_WK + ks * 16384 + b * 8192
        base = (off // 65536) * 65536
        ar = T16 if base == 0 else WKB
        if (L_WK + wk_seq[n-1][0] * 16384 + wk_seq[n-1][1] * 8192) // 65536 * 65536 != base and n:
            A(f"v_add_u32 v{WKB}, {base:#x}, v{T16}")
        r = WRING + (n % 3) * 8
        D.op(f"ds_read_b128 {v(r, 4)}, v{ar} offset:{off - base}")
        D.op(f"ds_read_b128 {v(r + 4, 4)}, v{ar} offset:{off - base + 4096}", ('wk', n))
    def spill_read(r):
        D.op(f"ds_read_b32 v{r}, v{QKW} offset:{KL0}")
        D.op(f"ds_read_b32 v{r+1}, v{QKW} offset:{KL0 + QSTR}")
        D.op(f"ds_read2_b32 {v(r + 2, 2)}, v{QKW} offset0:0 offset1:{QSTR // 4}", 'spill')
    def scal_next(first=False):
        if first:
            add64(A, 38, S_WS, WS_STAMP + 0x8000)
            A("s_mov_b32 s47, 0")
            A(f"s_mov_b32 s12, {PF}")
        else:
            A("s_lshl_b32 s12, s24, 17")
            add64(A, 38, 50, "s12")
            A("s_mov_b32 s47, s24")
            A(f"s_add_u32 s12, s24, {PF + 1}")
            A(f"s_min_u32 s12, s12, {nsteps - 1}")
        A("s_lshl_b32 s12, s12, 19")
        add64(A, 58, 88, "s12")
    def zero_acc():
        for r in range(ACCV0, ACCV0 + 20, 2): A(f"v_mov_b64 {v(r, 2)}, 0")
    for n in range(3): wk_read(n)
    scal_next(True)
    def pre_top():
        spill_read(24)
        for r in range(ACCV0, ACCV0 + 14, 2): A(f"v_mov_b64 {v(r, 2)}, 0")
        touch_addr(22)
        A("v_mov_b32 v23, s47")
    pre_top()
    D.waitall()
    top = f"L_rtop_{sfx}"
    A.label(top)
    A("s_barrier")
    tr('b1')
    def mem_read(ks, r, tag):
        D.op(f"ds_read_b128 {v(r, 4)}, v{MEMR} offset:{L_MEM + ks * 1024}", tag)
    def mslot(p): return MRING + (p % 3) * 4
    for p in range(3): mem_read(ORD[p], mslot(p), ('m', p))
    touch(22)
    A("s_mov_b64 exec, 1")
    A(f"global_store_dword v{L16}, v23, s[52:53] sc1")
    A("s_mov_b64 exec, -1")
    A(f"global_store_dwordx4 v{T16}, v[24:27], s[38:39] sc1")
    tr('a0')
    if EXP.get('twait'):
        A("s_waitcnt vmcnt(2)")
        tr('tw1')
        A("s_waitcnt vmcnt(0)")
        tr('tw2')
    loc = {('m', 8): mslot(8), ('m', 7): mslot(7), ('m', 6): mslot(6)}
    def sread(tag, r):
        loc[tag] = r
        if tag[0] == 'q': D.op(f"ds_read_b128 {v(r, 4)}, v{QR} offset:{tag[1] * 64}", tag)
        elif tag[0] == 'km': D.op(f"ds_read_b128 {v(r, 4)}, v{QR} offset:{KL0 + tag[1] * 64}", tag)
        elif tag[0] == 'kx': D.op(f"ds_read_b128 {v(r, 4)}, v{L16} offset:{L_KX + (tag[1] * 4 + tag[2]) * 1024}", tag)
        elif tag[0] == 'm': mem_read(ORD[tag[1]], r, tag)
        elif tag[0] == 'vx': D.op(f"ds_read_b128 {v(r, 4)}, v{T16} offset:{L_VX + tag[1] * 4096}", tag)
    def smf(acc, ar, w): A(f"{SMF} {v(acc, 4)}, {v(ar, 4)}, {u(w, 8)}, v{IDX}")
    for p in range(8):
        ks = ORD[p]
        D.wait(('m', p))
        m = mslot(p)
        smf(ACCQ, m, WQ(ks, 0))
        if p == 0: A("v_mov_b64 v[22:23], 0")
        smf(ACCV0, m, WV(ks, 0))
        if p == 0:
            A("v_mov_b64 v[24:25], 0")
            smf(ACCQ + 4, m, WQ(ks, 1))
            A("v_mov_b64 v[26:27], 0")
        for b in range(2):
            n = 2 * p + b
            D.wait(('wk', n))
            smf(ACCK + 4 * b, m, WRING + (n % 3) * 8)
            if n + 3 < 16: wk_read(n + 3)
            if n == 13: sread(('kx', 0, 0), 48); sread(('kx', 1, 0), 52)
            if n == 14: sread(('kx', 0, 1), 56); sread(('kx', 1, 1), 60)
            if b == 0 and p: smf(ACCQ + 4, m, WQ(ks, 1))
        if p + 3 < 9: mem_read(ORD[p + 3], mslot(p), ('m', p + 3))
        tr(f'a{p+1}')
    sread(('m', 5), 44)
    D.wait(('m', 8))
    m = mslot(8); ks = ORD[8]
    smf(ACCQ, m, WQ(ks, 0)); smf(ACCQ + 4, m, WQ(ks, 1))
    A(f"v_mov_b64 {v(ACCV1, 2)}, 0")
    smf(ACCK, m, WK8(0))
    A(f"v_mov_b64 {v(ACCV1 + 2, 2)}, 0")
    smf(ACCK + 4, m, WK8(1))
    smf(ACCV0, m, WV(ks, 0))
    tr('a9')
    fill = list(range(8, -1, -1))
    def filler(cnt=1):
        for _ in range(cnt):
            if fill:
                p = fill.pop(0)
                D.wait(('m', p))
                smf(ACCV1, loc[('m', p)], WV(ORD[p], 1))
    filler(1)
    for acc, lo in ((ACCQ, 0), (ACCK, KL0)):
        for b in range(2):
            A(f"v_add_f32 v{acc+4*b}, v{acc+4*b}, v{acc+4*b+1}")
            A(f"v_add_f32 v{acc+4*b+2}, v{acc+4*b+2}, v{acc+4*b+3}")
        A(f"v_cvt_pk_bf16_f32 v{acc+1}, v{acc}, v{acc+4}")
        A(f"v_cvt_pk_bf16_f32 v{acc+3}, v{acc+2}, v{acc+6}")
        if lo == 0: D.op(f"ds_write2_b32 v{QKW}, v{acc+1}, v{acc+3} offset0:0 offset1:{QSTR // 4}")
        else:
            D.op(f"ds_write_b32 v{QKW}, v{acc+1} offset:{lo}")
            D.op(f"ds_write_b32 v{QKW}, v{acc+3} offset:{lo + QSTR}", 'qkw')
    sread(('m', 4), 16); sread(('m', 3), 24); sread(('m', 2), mslot(8))
    tr('qkw')
    filler(3)
    D.wait('qkw')
    A("s_barrier")
    tr('b2')
    T0, T1, T2 = 12, 16, 20
    sread(('q', 0), mslot(7)); sread(('km', 0), mslot(6)); sread(('q', 1), 44)
    filler(2)
    sread(('km', 1), 24)
    filler(1)
    sread(('q', 2), mslot(8))
    pend = [('kx', 0, 2), ('kx', 1, 2), ('km', 2), ('q', 3), ('kx', 0, 3), ('kx', 1, 3), ('km', 3),
            ('m', 1), ('m', 0), ('vx', 0), ('vx', 1)]
    free = []
    for j in range(4):
        for T, tag in ((T0, ('kx', 0, j)), (T1, ('kx', 1, j)), (T2, ('km', j))):
            D.wait(('q', j)); D.wait(tag)
            A(f"{MF32} {v(T, 4)}, {v(loc[tag], 4)}, {v(loc[('q', j)], 4)}, {v(T, 4) if j else 0}")
            if pend: sread(pend.pop(0), loc[tag])
            else: free.append(loc[tag])
        if pend: sread(pend.pop(0), loc[('q', j)])
        else: free.append(loc[('q', j)])
    tr('s_done')
    BX, Z, DA, DB = free[0], free[1], free[2], free[3]
    filler(2)
    assert not fill
    M, TT, SUM = 16, 17, 18
    VMR = 22
    AO = 28
    busy = set()
    for b_ in (BX, Z, DA, DB, loc[('vx', 0)], loc[('vx', 1)], ACCV1): busy |= set(range(b_, b_ + 4))
    zq = [r for r in range(AO, AO + 36, 2) if r not in busy]
    late = set(range(DA, DA + 4)) | set(range(DB, DB + 4))
    zm = [r for r in range(AO, AO + 36, 2) if r in busy and r not in late]
    zl = [r for r in range(AO, AO + 36, 2) if r in late]
    def zero(cnt=1):
        for _ in range(cnt):
            if zq: A(f"v_mov_b64 {v(zq.pop(0), 2)}, 0")
    A(f"v_mov_b32 v{Z+1}, 0")
    A(f"v_mov_b32 v{Z+2}, 0")
    for r in range(4): A(f"v_mov_b32_dpp v{T0+r}, v{T1+r} {IDQ} row_mask:0xf bank_mask:0xc")
    A(f"v_mov_b32_dpp v{T2+2}, v{T2+3} {IDQ} row_mask:0xf bank_mask:0xc")
    A(f"v_mov_b32_dpp v{T2}, v{T2+1} {IDQ} row_mask:0x3 bank_mask:0xc")
    A(f"v_max3_f32 v{M}, v12, v13, v14")
    A(f"v_add_f32 v{ACCV0}, v{ACCV0}, v{ACCV0+1}")
    A(f"v_mov_b32_dpp v{T2}, v{T2+2} {IDQ} row_mask:0xc bank_mask:0xf")
    A(f"v_max3_f32 v{M}, v{M}, v15, v20")
    tr('max0')
    A(f"v_add_f32 v{ACCV0+2}, v{ACCV0+2}, v{ACCV0+3}")
    A(f"v_add_f32 v{ACCV1}, v{ACCV1}, v{ACCV1+1}")
    A(f"v_max_f32_dpp v{M}, v{M}, v{M} {ROR8}")
    A(f"v_mov_b32 v{TT}, v{M}")
    A(f"v_add_f32 v{ACCV1+2}, v{ACCV1+2}, v{ACCV1+3}")
    A(f"v_cvt_pk_bf16_f32 v{VMR}, v{ACCV0}, v{ACCV0+2}")
    A(f"v_permlane16_swap_b32 v{M}, v{TT}")
    A(f"v_max_f32 v{M}, v{M}, v{TT}")
    A(f"v_mov_b32 v{TT}, v{M}")
    A(f"v_cvt_pk_bf16_f32 v{VMR+1}, v{ACCV1}, v{ACCV1+2}")
    zero(1)
    A(f"v_permlane32_swap_b32 v{M}, v{TT}")
    A(f"v_max_f32 v{M}, v{M}, v{TT}")
    A(f"v_mul_f32 v{M}, s46, v{M}")
    tr('max1')
    for e in (12, 13, 14, 15, 20): A(f"v_fma_f32 v{e}, v{e}, s46, -v{M}")
    for e in (12, 13, 14, 15): A(f"v_exp_f32 v{e}, v{e}")
    A(f"v_cvt_pk_bf16_f32 v{BX}, v12, v13")
    A(f"v_cvt_pk_bf16_f32 v{BX+1}, v14, v15")
    A("v_exp_f32 v20, v20")
    A(f"v_mov_b32_dpp v{BX+2}, v{BX} {ROR8}")
    A(f"v_mov_b32_dpp v{BX+3}, v{BX+1} {ROR8}")
    A(f"v_mov_b32_dpp v21, v20 {ROR8}")
    A(f"v_add_f32 v{SUM}, v12, v13")
    D.wait(('vx', 1))
    tr('pv0')
    A(f"{MF32} {v(DA, 4)}, {v(loc[('vx', 0)], 4)}, {v(BX, 4)}, 0")
    A(f"v_cvt_pk_bf16_f32 v{Z}, v20, v21")
    A(f"v_cvt_pk_bf16_f32 v{Z+3}, v20, v21")
    A(f"{MF32} {v(DB, 4)}, {v(loc[('vx', 1)], 4)}, {v(BX, 4)}, 0")
    A(f"v_add_f32 v{TT}, v14, v15")
    A(f"v_add_f32 v{SUM}, v{SUM}, v20")
    A(f"{MF16} {v(DA, 4)}, {v(VMR, 2)}, {v(Z, 2)}, {v(DA, 4)}")
    A(f"v_add_f32 v{SUM}, v{SUM}, v{TT}")
    zero(1)
    A(f"{MF16} {v(DB, 4)}, {v(VMR, 2)}, {v(Z + 2, 2)}, {v(DB, 4)}")
    tr('pv1')
    zq += zm
    A(f"v_add_f32_dpp v{SUM}, v{SUM}, v{SUM} {ROR8}")
    A(f"v_mov_b32 v{TT}, v{SUM}")
    zero(2)
    A(f"v_permlane16_swap_b32 v{SUM}, v{TT}")
    A(f"v_add_f32 v{SUM}, v{SUM}, v{TT}")
    A(f"v_mov_b32 v{TT}, v{SUM}")
    zero(2)
    A(f"v_permlane32_swap_b32 v{SUM}, v{TT}")
    A(f"v_add_f32 v{SUM}, v{SUM}, v{TT}")
    A(f"v_rcp_f32 v{SUM}, v{SUM}")
    tr('rcp')
    zero(1)
    for k, Dx in enumerate((DA, DB)):
        for r in (0, 2): A(f"v_pk_mul_f32 {v(Dx + r, 2)}, {v(Dx + r, 2)}, {v(SUM, 2)} op_sel_hi:[1,0]")
    A(f"v_cvt_pk_bf16_f32 v12, v{DA}, v{DA+1}")
    A(f"v_cvt_pk_bf16_f32 v13, v{DA+2}, v{DA+3}")
    A(f"v_cvt_pk_bf16_f32 v14, v{DB}, v{DB+1}")
    A(f"v_cvt_pk_bf16_f32 v15, v{DB+2}, v{DB+3}")
    D.op(f"ds_write_b128 v{OW}, v[12:15]")
    tr('ow')
    zq += zl
    zq.sort()
    zero(18)
    D.waitall()
    A("s_barrier")
    tr('b3')
    OF = 12
    PS, PL = 20, 21
    D.op(f"ds_read_b128 {v(OF, 4)}, v{MEMR} offset:{L_OL}", 'o0')
    D.op(f"ds_read_b128 {v(OF + 4, 4)}, v{MEMR} offset:{L_OL + 1024}", 'o1')
    misc = Asm()
    lane_const(misc, PL, lambda x: (x >> 9) * 4096 + ((x >> 4) & 31) * 4, src=L16, nbits=10, tmp=8)
    lane_const(misc, PS, lambda x: (x >> 8) * 4096 + ((x >> 4) & 15) * 8, src=L16, nbits=10, tmp=8)
    vq = [i.text.strip() for i in misc.ins]
    A(vq.pop(0)); A(vq.pop(0))
    D.op(f"ds_write2_b32 v{QKW}, v{VMR}, v{VMR+1} offset0:0 offset1:{QSTR // 4}")
    A(vq.pop(0))
    A(f"s_cmp_eq_u32 s24, {nsteps - 1}")
    A(f"s_cbranch_scc1 L_rlast_{sfx}")
    A(vq.pop(0))
    A("s_xor_b32 s12, s24, s40")
    A(vq.pop(0))
    A("s_and_b32 s12, s12, 1")
    A(f"v_mov_b32 v{TMPC}, s12")
    def acc(t): return AO + 4 * ORD.index(t)
    def wpost(t):
        c = acc(t)
        o = [f"v_add_f32 v{c}, v{c}, v{c+1}", f"v_add_f32 v{c+1}, v{c+2}, v{c+3}"]
        if t == 8:
            o.append(f"v_cvt_pk_bf16_f32 v{c+2}, v{c}, v{c+1}")
            o.append(f"v_bfi_b32 v{c+2}, 1, v{TMPC}, v{c+2}")
            o.append(f"global_store_dword v{PL}, v{c+2}, s[42:43] {st}")
        elif t & 1:
            p = acc(t - 1); sb = 26 if t == 1 else 88 + 2 * (t // 2)
            o.append(f"v_cvt_pk_bf16_f32 v{c+2}, v{p}, v{c}")
            o.append(f"v_cvt_pk_bf16_f32 v{c+3}, v{p+1}, v{c+1}")
            o.append(f"v_bfi_b32 v{c+2}, 1, v{TMPC}, v{c+2}")
            o.append(f"global_store_dwordx2 v{PS}, {v(c + 2, 2)}, s[{sb}:{sb+1}] {st}")
        return o
    sb_ = Asm()
    sb_("s_lshl_b32 s13, s24, 17")
    add64(sb_, 38, 50, "s13")
    sb_("s_mov_b32 s47, s24")
    sb_(f"s_add_u32 s13, s24, {PF + 1}")
    sb_(f"s_min_u32 s13, s13, {nsteps - 1}")
    sb_("s_mov_b32 s25, s13")
    sb_("s_lshl_b32 s13, s13, 19")
    add64(sb_, 58, 88, "s13")
    add64(sb_, 14, 30, "s34")
    add64(sb_, 60, 30, "s35")
    add64(sb_, 20, 14, 3072)
    sb_("s_and_b32 s12, s24, 1")
    sb_("s_xor_b32 s13, s12, 1")
    sb_("s_add_u32 s24, s24, 1")
    sb_("s_mov_b32 s35, s34")
    sb_("s_add_u32 s34, s34, 9216")
    sb_("s_cmp_eq_u32 s34, 27648")
    sb_("s_cselect_b32 s34, 0, s34")
    sb_("s_mov_b32 s55, 0")
    sq = [i.text.strip() for i in sb_.ins]
    D.wait('o0')
    tr('wo0')
    seq = []
    for t in ORD: seq += [(t, 0), (t, 1)]
    for k, (t, k2) in enumerate(seq):
        if k == 1: D.wait('o1')
        smf(acc(t), OF + 4 * k2, WO(t, k2))
        for _ in range(2):
            if sq: A(sq.pop(0))
        if k2 == 1 and k >= 5: vq += wpost(seq[k - 4][0])
        for _ in range(1 if k < 5 else 2):
            if vq: A(vq.pop(0))
    assert not sq
    tr('wo1')
    vq += wpost(6)
    vq += wpost(7)
    for o in vq: A(o)
    tr('wo2')
    D.q = []
    SEL, RD, MS, LD = 12, 16, 8, 24
    def loads():
        for j in range(4):
            A(f"global_load_dwordx4 {v(LD + 4 * j, 4)}, v{L16}, s[28:29] offset:{j * 1024} sc1")
    for n in range(3): wk_read(n)
    A("s_cmp_eq_u32 s36, 0")
    A(f"s_cbranch_scc1 L_rnt_{sfx}")
    A("s_cmp_lg_u32 s10, 0")
    A(f"s_cbranch_scc1 L_rw12_{sfx}")
    for wv in (0, 1, 2):
        kind = 2 if wv == 2 else 1
        lab = f"L_rp1{wv}_{sfx}"
        if wv == 1:
            A.label(f"L_rw12_{sfx}")
            A("s_cmp_eq_u32 s10, 2")
            A(f"s_cbranch_scc1 L_rw2_{sfx}")
        if wv == 2: A.label(f"L_rw2_{sfx}")
        A(f"s_waitcnt vmcnt({EXP.get('k' + str(wv), (2, 1, 2)[wv])})")
        tr('p1s')
        loads()
        if wv == 1: A("s_barrier")
        A("v_mov_b64 v[10:11], -1")
        if kind == 1:
            A(f"v_bfe_u32 v20, v{L16}, 4, 1")
            A(f"v_bfe_u32 v21, v{L16}, 5, 1")
            A(f"v_bfe_u32 v22, v{L16}, 6, 1")
            A("v_lshl_add_u32 v22, v21, 1, v22")
        else:
            A(f"v_bfe_u32 v20, v{L16}, 6, 1")
            A(f"v_bfe_u32 v22, v{L16}, 4, 2")
        A("v_lshlrev_b32 v20, 4, v20")
        A("v_mov_b32 v21, 0x3f80")
        A("v_lshlrev_b32 v21, v20, v21")
        m_ = Asm(); ms_calc(m_, kind, MS, 9); mq = [i.text.strip() for i in m_.ins]
        for j in range(4):
            A(f"v_cmp_eq_u32 vcc, {j}, v22")
            for _ in range(2):
                if mq: A(mq.pop(0))
            A(f"v_cndmask_b32 v{SEL+j}, 0, v21, vcc")
        for o in mq: A(o)
        if wv != 1: A("s_barrier")
        A.label(lab)
        for j in range(4):
            A(f"s_waitcnt vmcnt({3 - j})")
            tr(f'p1w{j}')
            A(f"{MF32} {v(RD, 4)}, {v(SEL, 4)}, {v(LD + 4 * j, 4)}, {v(RD, 4) if j else 0}")
            sg = 's13' if j & 1 else 's12'
            A(f"v_bitop3_b32 v{20 + j}, v{LD+4*j}, v{LD+4*j+2}, {sg} bitop3:0x7e")
            if kind == 2:
                A(f"v_bitop3_b32 v9, v{LD+4*j+1}, v{LD+4*j+3}, {sg} bitop3:0x7e")
                A(f"v_or_b32 v{20 + j}, v{20 + j}, v9")
            if j == 2: A("v_or3_b32 v20, v20, v21, v22")
        A("v_bitop3_b32 v20, v20, v23, 1 bitop3:0xa8")
        A("v_cmp_ne_u32 vcc, 0, v20")
        for r in range(4): A(f"v_add_f32_dpp v{RD+r}, v{RD+r}, v{RD+r} {ROR8}")
        A(f"v_cvt_pk_bf16_f32 v20, v{RD}, v{RD+1}")
        A(f"v_cvt_pk_bf16_f32 v21, v{RD+2}, v{RD+3}")
        A(f"s_cbranch_vccz {lab}_ok")
        A("s_mov_b64 exec, vcc")
        loads()
        A("s_mov_b64 exec, -1")
        A("s_add_u32 s55, s55, 1")
        A(f"s_cmp_gt_u32 s55, {SPIN_MAX}")
        A(f"s_cbranch_scc0 {lab}")
        A("s_branch L_exit")
        A.label(lab + "_ok")
        tr('p1ok')
        A("s_mov_b64 exec, s[44:45]")
        A(f"global_store_dwordx2 v{MS}, v[20:21], s[14:15] {st}")
        A(f"global_store_dwordx2 v{MS}, v[10:11], s[60:61] {st}")
        A("s_mov_b64 exec, -1")
        if EXP.get('rt'): A("s_add_u32 s76, s76, s55")
        A(f"s_branch L_rh2_{sfx}")
    A.label(f"L_rnt_{sfx}")
    A("s_barrier")
    A("s_cmp_lg_u32 s10, 3")
    A(f"s_cbranch_scc1 L_rh2_{sfx}")
    kv_dma_all()
    kv_wait(A, "s25", nkv, kvg0, 28)
    A.label(f"L_rh2_{sfx}")
    A("s_barrier")
    tr('b4')
    D.q = []
    if EXP.get('pre1', 1): pre_top()
    A("s_cmp_eq_u32 s10, 3")
    A(f"s_cbranch_scc1 L_rw3_{sfx}")
    A("s_mov_b32 s55, 0")
    for _ in range(EXP.get('d2', 0)): A("s_nop 3")
    tr('p2s')
    def loads2():
        for j in range(3):
            A(f"global_load_dwordx4 {v(MRING + 4 * j, 4)}, v{T16}, s[20:21] offset:{(j - 1) * 3072} sc1")
    loads2()
    if not EXP.get('pre1', 1): pre_top()
    A.label(f"L_rp2_{sfx}")
    A("s_waitcnt vmcnt(2)")
    tr('p2w0')
    A(f"ds_write_b128 v{T16}, v[28:31] offset:{L_MEM}")
    A(f"v_max3_u32 v{TMPC}, v28, v29, v30")
    A("s_waitcnt vmcnt(1)")
    A(f"ds_write_b128 v{T16}, v[32:35] offset:{L_MEM + 3072}")
    A(f"v_max3_u32 v{TMPC}, v{TMPC}, v31, v32")
    A(f"v_max3_u32 v{TMPC}, v{TMPC}, v33, v34")
    A("s_waitcnt vmcnt(0)")
    A(f"ds_write_b128 v{T16}, v[36:39] offset:{L_MEM + 6144}")
    A(f"v_max3_u32 v{TMPC}, v{TMPC}, v35, v36")
    A(f"v_max3_u32 v{TMPC}, v{TMPC}, v37, v38")
    A(f"v_max_u32 v{TMPC}, v{TMPC}, v39")
    A(f"v_cmp_eq_u32 vcc, -1, v{TMPC}")
    A(f"s_cbranch_vccz L_rp2ok_{sfx}")
    A("s_mov_b64 exec, vcc")
    loads2()
    A("s_mov_b64 exec, -1")
    A("s_add_u32 s55, s55, 1")
    A(f"s_cmp_gt_u32 s55, {SPIN_MAX}")
    A(f"s_cbranch_scc0 L_rp2_{sfx}")
    A("s_branch L_exit")
    A.label(f"L_rw3_{sfx}")
    if not EXP.get('pre1', 1): pre_top()
    A("s_waitcnt vmcnt(0)")
    A.label(f"L_rp2ok_{sfx}")
    tr('p2ok')
    if EXP.get('rt'): A("s_add_u32 s77, s77, s55")
    D.waitall()
    if TR:
        A("s_cmp_lg_u32 s24, 41")
        A(f"s_cbranch_scc1 {top}")
        A("s_lshl_b32 s12, s9, 2")
        A("s_add_u32 s12, s12, s10")
        A("s_lshl_b32 s12, s12, 6")
        A(f"s_add_u32 s12, s12, {WS_STAMP + 16384}")
        A(f"v_mov_b32 v{TMPC}, s12")
        for q in range(11):
            A(f"v_mov_b32 v28, s{64 + 2 * q}")
            A(f"global_store_dword v{TMPC}, v28, s[4:5] offset:{4 * q}")
            A("s_waitcnt vmcnt(0)")
    A(f"s_branch {top}")
    A.label(f"L_rlast_{sfx}")
    D.waitall()
    spill_read(24)
    A("s_lshl_b32 s12, s24, 17")
    add64(A, 38, 50, "s12")
    D.waitall()
    A(f"global_store_dwordx4 v{T16}, v[24:27], s[38:39] sc1")
    A("s_waitcnt vmcnt(0)")
    A("s_barrier")
    A(f"v_mov_b32 v{TMPC}, {nsteps}")
    A("s_mov_b64 exec, 1")
    A(f"global_store_dword v{L16}, v{TMPC}, s[52:53] sc1")
    A("s_mov_b64 exec, -1")
    tl(A, 4)
    if EXP.get('rt'):
        A("s_memrealtime s[82:83]")
        A("s_memtime s[98:99]")
        A("s_waitcnt lgkmcnt(0)")
        A("s_sub_u32 s75, s98, s96")
        A("s_sub_u32 s78, s80, s84")
        A("s_sub_u32 s79, s82, s80")
        A("s_lshl_b32 s12, s9, 2")
        A("s_add_u32 s12, s12, s10")
        A("s_lshl_b32 s12, s12, 6")
        A(f"s_add_u32 s12, s12, {WS_STAMP}")
        A("v_mov_b32 v12, s12")
        for q in range(4):
            for r in range(4): A(f"v_mov_b32 v{16+r}, s{64 + 4 * q + r}")
            A(f"global_store_dwordx4 v12, v[16:19], s[4:5] offset:{16 * q}")
            A("s_waitcnt vmcnt(0)")
    A("s_branch L_exit")

def role_r(A, restart, nkv, kvg0):
    if EXP.get('rt'):
        A("s_memrealtime s[84:85]")
        A("s_waitcnt lgkmcnt(0)")
    r_setup(A)
    tl(A, 1)
    mode_check(A, tv=12)
    r_consts(A)
    A("s_cmp_eq_u32 s11, 0")
    A("s_cbranch_scc1 L_r_slow")
    r_main(A, True, nkv, kvg0)
    A.label("L_r_slow")
    r_main(A, False, nkv, kvg0)
```

```python
import sys
import role_r as RR
from common import *
from role_kv import stage_mod, stage_ln1, role_kv
import role_af as AF
NAME = "adaLN_cond__memory_aug_recurrent_mem_tr__swiglu_ffn__prompt"
out = sys.argv[1] if len(sys.argv) > 1 else f'cdna_kernels/{NAME}.s'
for a_ in sys.argv[2:]:
    k_, _, v_ = a_.partition('=')
    RR.EXP[k_] = v_.split(',') if k_ == 'trace' else (int(v_) if v_ else 1)
AF.EXP = RR.EXP
K = NAME + "_kernel"
FORCE['tm'] = RR.EXP.get('tm', 1)
A = Asm()
kernel_begin(A, K)
preamble(A)
FORCE['slow'] = bool(RR.EXP.get('forceslow'))
TL["on"] = bool(RR.EXP.get("tl"))
tl(A, 0)
A.label("L_roles")
A("s_cmp_eq_u32 s8, 0")
A("s_cbranch_scc1 L_role_r")
A("s_cmp_eq_u32 s8, 1")
A("s_cbranch_scc1 L_role_kv")
A("s_cmp_lt_u32 s8, 5")
A("s_cbranch_scc1 L_role_a")
A("s_cmp_eq_u32 s8, 7")
A("s_cbranch_scc1 L_ln")
A("s_sub_u32 s14, s8, 5")
A("s_lshl_b32 s14, s14, 5")
A("s_add_u32 s14, s14, s9")
A("s_cmp_ge_u32 s14, 54")
A("s_cbranch_scc1 L_role_f")
stage_mod(A, "s14")
A("s_branch L_role_f")
A.label("L_ln")
stage_ln1(A, "s9")
A.label("L_role_f")
tl(A, 7)
AF.role_f(A, 3, 5)
A.label("L_exit")
A("s_endpgm")
A.label("L_role_r")
RR.role_r(A, "L_roles", 1, 1)
A.label("L_role_kv")
role_kv(A, "L_roles", 1, 1)
A.label("L_role_a")
AF.role_a(A, "L_roles", 3, 2, 1)
body = A.finalize()
ref = open(f'cdna_kernels/{NAME}.s.ref').read()
hdr = ref[:ref.index('; Override launch geometry')]
kn = f'kernel={K} ' if 'dev/' in out else ''
hdr += f'; @launch {kn}grid=(256,1,1) block=(256,1,1) lds=163840\n.amdgcn_target "amdgcn-amd-amdhsa--gfx950"\n.text\n'
open(out, 'w').write(hdr + body + '.section .rodata,"a"\n' + kernel_desc(K, 512, 102, 256))
print("instructions", sum(1 for i in A.ins if i.states), "nops", A.nops)
```

```python
from asmlib import *

KA_X, KA_MEM0, KA_WQ, KA_WK, KA_WV, KA_WO, KA_SEG, KA_BX, KA_WG, KA_WU, KA_WD, KA_C, KA_WMOD, KA_OUT, KA_DBG, KA_WS = [8 * i for i in range(16)]

WS_MOD   = 0x0
WS_KVPROG = 0x10000
WS_RPROG = 0x18000
WS_H2FLAG = 0x1A000
WS_XF    = 0x1C000
WS_HINT  = 0x1D000
WS_STAMP = 0x20000
WS_H     = 0x100000
WS_H2    = 0x400000
WS_X1    = 0x700000
WS_KV    = 0x1000000
WS_KVM   = 0x3000000
WS_RP    = 0x3A00000
WS_RM    = 0x3B00000
WS_XP    = 0x4000000
RP_SLOT = 72 * 32 * 128
XP_SLOT = 32 * 32 * 2304
SEG_H = 36864

DBG_TICKET = 0
DBG_CLR = 8
DBG_RBAR = 34
DBG_MODCNT = 8
DBG_HCNT = 40
DBG_ERR = 40

S_WS = 4
S_DBG = 6
S_GRP, S_MEM, S_WAVE, S_FAST = 8, 9, 10, 11
SPIN_MAX = 400000

class Lds:
    def __init__(self, A):
        self.A = A; self.q = []
    def op(self, text, tag=None):
        self.A(text); self.q.append(tag)
    def wait(self, tag):
        if tag not in self.q: return
        i = len(self.q) - 1 - self.q[::-1].index(tag)
        n = len(self.q) - 1 - i
        self.A(f"s_waitcnt lgkmcnt({min(n, 15)})")
        if n > 15:
            self.q = self.q[len(self.q) - 15:]
        else:
            self.q = self.q[i + 1:]
    def waitall(self):
        self.A("s_waitcnt lgkmcnt(0)"); self.q = []

def add64(A, dst, src, off):
    A(f"s_add_u32 s{dst}, s{src}, {off}")
    A(f"s_addc_u32 s{dst+1}, s{src+1}, 0")

def arr_word(g): return (g & 3) + 32 * (g >> 2)
def preamble(A, nwg=256):
    A(f"s_cmp_ge_u32 s2, {nwg}")
    A("s_cbranch_scc1 L_exit")
    A(f"s_load_dwordx4 s[4:7], s[0:1], {KA_DBG}")
    A("s_getreg_b32 s3, hwreg(HW_REG_XCC_ID, 0, 4)")
    A("v_lshrrev_b32 v1, 6, v0")
    A("v_readfirstlane_b32 s10, v1")
    A("s_and_b32 s8, s2, 7")
    A("s_lshr_b32 s9, s2, 3")
    A("v_and_b32 v1, 63, v0")
    A("s_waitcnt lgkmcnt(0)")
    A("s_mov_b64 s[12:13], s[4:5]")
    A("s_mov_b64 s[4:5], s[6:7]")
    A("s_mov_b64 s[6:7], s[12:13]")
    l2 = A.newlabel('L_pre')
    A("s_cmp_lg_u32 s10, 3")
    A(f"s_cbranch_scc1 {l2}")
    A("s_lshl_b32 s12, s2, 8")
    A(f"s_add_u32 s12, s12, {WS_KVPROG}")
    A("v_lshl_add_u32 v2, v1, 2, s12")
    A("v_mov_b32 v3, 0")
    A("global_store_dword v2, v3, s[4:5] sc1")
    A(f"s_bfe_u32 s12, s2, {0x10000 if FORCE.get('tm') else 0x10002}")
    A("s_xor_b32 s12, s12, 1")
    for r in range(4): A(f"v_mov_b32 v{4+r}, s12")
    A("s_lshl_b32 s12, s2, 10")
    A(f"s_add_u32 s12, s12, {WS_RP}")
    A("v_lshl_add_u32 v2, v1, 4, s12")
    A("global_store_dwordx4 v2, v[4:7], s[4:5] sc1")
    for r in range(4): A(f"v_mov_b32 v{8+r}, -1")
    l0 = A.newlabel('L_pre0')
    A("s_sub_u32 s13, s8, 2")
    A("s_cmp_ge_u32 s13, 3")
    A(f"s_cbranch_scc1 {l0}")
    A("s_mul_i32 s12, s9, 3")
    A("s_add_u32 s12, s12, s13")
    A(f"s_mul_i32 s12, s12, {88 * 1024}")
    A(f"s_add_u32 s12, s12, {WS_KVM}")
    add64(A, 12, S_WS, "s12")
    A("v_lshlrev_b32 v3, 4, v1")
    A("s_mov_b32 s14, 0")
    lc = A.newlabel('L_prec')
    A.label(lc)
    for i in range(4): A(f"global_store_dwordx4 v3, v[8:11], s[12:13] offset:{i * 1024} sc1")
    add64(A, 12, 12, 4096)
    A("s_add_u32 s14, s14, 1")
    A("s_cmp_lt_u32 s14, 22")
    A(f"s_cbranch_scc1 {lc}")
    A.label(l0)
    l1 = A.newlabel('L_pre1')
    A("s_cmp_ge_u32 s2, 32")
    A(f"s_cbranch_scc1 {l1}")
    A("s_bfe_u32 s12, s2, 0x10001")
    A("s_xor_b32 s12, s12, 1")
    for r in range(4): A(f"v_mov_b32 v{12+r}, s12")
    A("v_add_u32 v3, 0x40000, v2")
    A("global_store_dwordx4 v3, v[12:15], s[4:5] sc1")
    A.label(l1)
    A(f"v_add_u32 v3, {WS_RM - WS_RP}, v2")
    A("global_store_dwordx4 v3, v[8:11], s[4:5] sc1")
    A("s_mul_i32 s12, s3, s3")
    A("s_lshl_b32 s12, s12, 10")
    A("s_add_u32 s12, s12, s3")
    A("s_lshl_b32 s12, s12, 8")
    A("s_add_u32 s12, s12, 1")
    A("v_mov_b32 v3, s12")
    A("s_and_b32 s12, s8, 3")
    A("s_lshr_b32 s13, s8, 2")
    A("s_lshl_b32 s13, s13, 5")
    A("s_add_u32 s12, s12, s13")
    A("s_lshl_b32 s12, s12, 2")
    A("v_mov_b32 v2, s12")
    A("s_waitcnt vmcnt(0)")
    A("s_mov_b64 exec, 1")
    A("global_atomic_add v2, v3, s[6:7] sc1")
    A("s_mov_b64 exec, -1")
    A.label(l2)

def mode_check(A, tv=1, ts=12, force_slow=False):
    done = A.newlabel('L_mc_done'); loop = A.newlabel('L_mc')
    lane_const(A, tv, lambda t: arr_word(t & 7) * 4, tmp=tv + 1)
    A(f"s_mov_b32 s{ts}, 0")
    A.label(loop)
    A(f"global_load_dword v{tv+1}, v{tv}, s[6:7] sc1")
    A(f"s_add_u32 s{ts}, s{ts}, 1")
    A(f"s_cmp_gt_u32 s{ts}, {SPIN_MAX}")
    A(f"s_cbranch_scc1 L_exit")
    A("s_waitcnt vmcnt(0)")
    A(f"v_and_b32 v{tv+2}, 0xff, v{tv+1}")
    A(f"v_cmp_ne_u32 vcc, 32, v{tv+2}")
    A(f"s_cbranch_vccz {done}")
    A("s_sleep 2")
    A(f"s_branch {loop}")
    A.label(done)
    A(f"v_readlane_b32 s{ts}, v{tv+1}, s8")
    A(f"s_mul_i32 s{ts+1}, s3, s3")
    A(f"s_lshl_b32 s{ts+1}, s{ts+1}, 10")
    A(f"s_add_u32 s{ts+1}, s{ts+1}, s3")
    A(f"s_lshl_b32 s{ts+1}, s{ts+1}, 8")
    A(f"s_add_u32 s{ts+1}, s{ts+1}, 1")
    A(f"s_lshl_b32 s{ts+1}, s{ts+1}, 5")
    A(f"s_cmp_eq_u32 s{ts}, s{ts+1}")
    A(f"s_cselect_b32 s11, {0 if force_slow or FORCE['slow'] else 1}, 0")

FORCE = {'slow': False}
def counter_arrive(A, word, tv=1):
    l = A.newlabel('L_arr')
    A("s_cmp_lg_u32 s10, 0")
    A(f"s_cbranch_scc1 {l}")
    A(f"v_mov_b32 v{tv}, {word*4}")
    A(f"v_mov_b32 v{tv+1}, 1")
    A("s_mov_b64 exec, 1")
    A(f"global_atomic_add v{tv}, v{tv+1}, s[6:7] sc1")
    A("s_mov_b64 exec, -1")
    A.label(l)

def counter_wait(A, word, count, tv=1, ts=12, sleep=2):
    loop = A.newlabel('L_cw'); done = A.newlabel('L_cwd')
    A(f"v_mov_b32 v{tv}, {word*4}")
    A(f"s_mov_b32 s{ts}, 0")
    A.label(loop)
    A(f"global_load_dword v{tv+1}, v{tv}, s[6:7] sc1")
    A(f"s_add_u32 s{ts}, s{ts}, 1")
    A(f"s_cmp_gt_u32 s{ts}, {SPIN_MAX}")
    A(f"s_cbranch_scc1 L_exit")
    A("s_waitcnt vmcnt(0)")
    A(f"v_cmp_gt_u32 vcc, {count}, v{tv+1}")
    A(f"s_cbranch_vccz {done}")
    A(f"s_sleep {sleep}")
    A(f"s_branch {loop}")
    A.label(done)

def lane_const(A, dst, f, src=0, nbits=8, tmp=None, mode=None, acc=False):
    N = 1 << nbits
    f0 = f(0)
    def check(m):
        d = [(f(1 << k) ^ f0) if m == 'xor' else (f(1 << k) - f0) for k in range(nbits)]
        for x in range(N):
            y = f0
            for k in range(nbits):
                if x >> k & 1: y = (y ^ d[k]) if m == 'xor' else y + d[k]
            if y != f(x): return None
        return d
    for m in ([mode] if mode else ['add', 'xor']):
        d = check(m)
        if d is not None: break
    assert d is not None, "function not affine"
    assert tmp is not None and tmp != dst and dst != src
    work = dst
    if acc and m == 'xor':
        work = tmp + 1
    if acc and m == 'add':
        if f0: A(f"v_add_u32 v{dst}, {f0 & 0xffffffff:#x}, v{dst}")
    else:
        A(f"v_mov_b32 v{work}, {f0 & 0xffffffff:#x}")
    k = 0
    while k < nbits:
        if d[k] == 0: k += 1; continue
        n = 1
        while k + n < nbits and d[k + n] == d[k] << n: n += 1
        c = d[k]
        if c > 0 and c & (c - 1) == 0:
            sh = c.bit_length() - 1
            A(f"v_bfe_u32 v{tmp}, v{src}, {k}, {n}")
            if m == 'add': A(f"v_lshl_add_u32 v{work}, v{tmp}, {sh}, v{work}")
            else:
                A(f"v_lshlrev_b32 v{tmp}, {sh}, v{tmp}")
                A(f"v_xor_b32 v{work}, v{work}, v{tmp}")
        elif m == 'add' and 0 < c < (1 << 24):
            A(f"v_bfe_u32 v{tmp}, v{src}, {k}, {n}")
            A(f"v_mul_u32_u24 v{tmp}, {c:#x}, v{tmp}")
            A(f"v_add_u32 v{work}, v{work}, v{tmp}")
        else:
            n = 1
            A(f"v_bfe_i32 v{tmp}, v{src}, {k}, 1")
            A(f"v_and_b32 v{tmp}, {c & 0xffffffff:#x}, v{tmp}")
            A(f"v_{'xor_b32' if m == 'xor' else 'add_u32'} v{work}, v{work}, v{tmp}")
        k += n
    if work != dst:
        A(f"v_add_u32 v{dst}, v{dst}, v{work}")


MF32 = "v_mfma_f32_16x16x32_bf16"
MF16 = "v_mfma_f32_16x16x16_bf16"

def ring_load(A, chunks, nslots=8, lbase=0, tmp=28, sb=26):
    A(f"s_lshl_b32 s{sb}, s10, 12")
    if lbase: A(f"s_add_u32 s{sb}, s{sb}, {lbase}")
    def issue(j):
        c = chunks[j]
        add64(A, 12, c['ptr'], c['off'])
        for ip in range(4):
            A(f"s_add_u32 m0, s{sb}, {(j % nslots) * 16384 + ip * 1024}")
            A(f"global_load_lds_dwordx4 v{c['vb']+ip}, s[12:13]")
    n = len(chunks); ah = nslots - 1
    for j in range(min(ah, n)): issue(j)
    for j in range(n):
        A(f"s_waitcnt vmcnt({4 * (min(n - 1, j + ah - 1) - j)})")
        A("s_barrier")
        if j + ah < n: issue(j + ah)
        regs = sorted({r[1] for r in chunks[j]['reads']})
        for k, ar in enumerate(regs): A(f"v_add_u32 v{tmp+k}, {(j % nslots) * 16384 + lbase}, v{ar}")
        for dst, ar, imm in chunks[j]['reads']:
            A(f"ds_read_b64_tr_b16 {u(dst, 2)}, v{tmp + regs.index(ar)} offset:{imm}")
        if 'post' in chunks[j]: chunks[j]['post']()
        A("s_waitcnt lgkmcnt(0)")
    A("s_barrier")

def swzA(row): return 2 * ((row & 3) | ((row >> 3) & 1) << 2)
def swzB(row): return 2 * (((row >> 1) & 1) | ((row >> 2) & 1) << 1)
def dense256_consts(A, vb, tra, stride, tmp):
    for ip in range(4):
        lane_const(A, vb + ip, lambda t: (16 * (t >> 6) + 4 * ip + ((t & 63) >> 4)) * stride, tmp=tmp)
        lane_const(A, vb + ip, lambda t: ((t & 15) ^ swzA(16 * (t >> 6) + 4 * ip + ((t & 63) >> 4))) * 16, tmp=tmp, acc=True)
    for b in range(2):
        def f(t):
            w, l = t >> 6, t & 63
            row = 8 * (l >> 4) + ((l >> 2) & 3); c = l & 3
            return row * 256 + (((4 * w + 2 * b + (c >> 1)) ^ swzA(row)) * 16) + (c & 1) * 8
        lane_const(A, tra + b, f, tmp=tmp)
def dense256_reads(dstf, tra, c):
    return [(dstf(2 * c + kl, b) + 2 * hq, tra + b, (32 * kl + 4 * hq) * 256) for kl in range(2) for b in range(2) for hq in range(2)]
def dense128_consts(A, vb, tra, tmp):
    for ip in range(4):
        lane_const(A, vb + ip, lambda t: (32 * (t >> 6) + 8 * ip + ((t & 63) >> 3)) * 1152, tmp=tmp)
        lane_const(A, vb + ip, lambda t: ((t & 7) ^ swzB(32 * (t >> 6) + 8 * ip + ((t & 63) >> 3))) * 16, tmp=tmp, acc=True)
    def f(t):
        w, l = t >> 6, t & 63
        row = 4 * (l >> 4) + ((l >> 2) & 3); c = l & 3
        return row * 128 + (((2 * w + (c >> 1)) ^ swzB(row)) * 16) + (c & 1) * 8
    lane_const(A, tra, f, tmp=tmp)
def dense128_reads(dstf, tra, t):
    return [(dstf(t, j) + 2 * hq, tra, (32 * j + 16 * hq) * 128) for j in range(4) for hq in range(2)]

def seg_dma(A, vT16, src, ldsreg):
    A(f"s_mov_b64 s[12:13], s[{src}:{src+1}]")
    for j in range(9):
        A(f"s_add_u32 m0, s{ldsreg}, {j * 4096}")
        A(f"global_load_lds_dwordx4 v{vT16}, s[12:13]")
        if j < 8: add64(A, 12, 12, 4096)

def flag_wait(A, addr_v, base, val_s, tv, ts, sleep=1):
    loop = A.newlabel('L_fw'); done = A.newlabel('L_fwd')
    A(f"s_mov_b32 s{ts}, 0")
    A.label(loop)
    A(f"global_load_dword v{tv}, v{addr_v}, s[{base}:{base+1}] sc1")
    A(f"s_add_u32 s{ts}, s{ts}, 1")
    A(f"s_cmp_gt_u32 s{ts}, {SPIN_MAX}")
    A("s_cbranch_scc1 L_exit")
    A("s_waitcnt vmcnt(0)")
    A(f"v_cmp_gt_u32 vcc, s{val_s}, v{tv}")
    A(f"s_cbranch_vccz {done}")
    if sleep: A(f"s_sleep {sleep}")
    A(f"s_branch {loop}")
    A.label(done)

def xsum(A, r, t, op="v_add_f32", bits=(0, 1, 2, 3, 4, 5)):
    for b in bits:
        if b == 0: A(f"{op}_dpp v{r}, v{r}, v{r} quad_perm:[1,0,3,2] row_mask:0xf bank_mask:0xf")
        elif b == 1: A(f"{op}_dpp v{r}, v{r}, v{r} quad_perm:[2,3,0,1] row_mask:0xf bank_mask:0xf")
        elif b == 2: A(f"{op}_dpp v{r}, v{r}, v{r} row_ror:4 row_mask:0xf bank_mask:0xf")
        elif b == 3: A(f"{op}_dpp v{r}, v{r}, v{r} row_ror:8 row_mask:0xf bank_mask:0xf")
        else:
            A(f"v_mov_b32 v{t}, v{r}")
            A(f"v_permlane{16 if b == 4 else 32}_swap_b32 v{r}, v{t}")
            A(f"{op} v{r}, v{r}, v{t}")

def f32bits(x):
    import struct
    return struct.unpack('<I', struct.pack('<f', x))[0]
def rnd1(A, r, t=None):
    A(f"v_cvt_pk_bf16_f32 v{r}, v{r}, v{r}")
    A(f"v_lshlrev_b32 v{r}, 16, v{r}")
def rnd2(A, r):
    A(f"v_cvt_pk_bf16_f32 v{r+1}, v{r}, v{r+1}")
    A(f"v_lshlrev_b32 v{r}, 16, v{r+1}")
    A(f"v_and_b32 v{r+1}, 0xffff0000, v{r+1}")

TL = {'on': False}
def tl(A, slot, tv=60):
    if not TL['on']: return
    A("s_memrealtime s[100:101]")
    A("s_lshl_b32 s12, s8, 5")
    A("s_add_u32 s12, s12, s9")
    A("s_lshl_b32 s12, s12, 6")
    A(f"s_add_u32 s12, s12, {WS_STAMP + 0x30000 + slot * 4}")
    A(f"v_mov_b32 v{tv}, s12")
    A("s_waitcnt lgkmcnt(0)")
    A(f"v_mov_b32 v{tv+1}, s100")
    A(f"global_store_dword v{tv}, v{tv+1}, s[4:5]")
    A("s_waitcnt vmcnt(0)")
```

```python
from common import *
import math
PROW = 1152
ROWB = 32 * PROW
T16, L16, XS, XS8, XL, RW, XL8, L4 = range(8)
EXP = {}
TRN = ['top', 'go', 'mm', 'flag', 'op0', 'op1', 'ack', 'xf', 'red', 'end']
def tr(A, name):
    if not EXP.get('aftrace'): return
    if name not in TRN: TRN.append(name)
    i = TRN.index(name)
    assert i < 11
    A(f"s_memtime s[{80+2*i}:{81+2*i}]")
def tr_dump(A, seg):
    if not EXP.get('aftrace'): return
    l = A.newlabel('L_trd')
    A(f"s_cmp_lg_u32 s47, {seg}")
    A(f"s_cbranch_scc1 {l}")
    A("s_waitcnt lgkmcnt(0)")
    A("s_lshl_b32 s12, s8, 5")
    A("s_add_u32 s12, s12, s9")
    A("s_lshl_b32 s12, s12, 2")
    A("s_add_u32 s12, s12, s10")
    A("s_lshl_b32 s12, s12, 6")
    A(f"s_add_u32 s12, s12, {WS_STAMP + 0x10000}")
    A("v_mov_b32 v8, s12")
    for q in range(11):
        A(f"v_mov_b32 v9, s{80 + 2 * q}")
        A(f"global_store_dword v8, v9, s[4:5] offset:{4 * q}")
        A("s_waitcnt vmcnt(0)")
    A.label(l)

def af_consts(A, l_red):
    lane_const(A, L16, lambda t: (t & 63) * 16, tmp=12)
    lane_const(A, XS, lambda t: ((t >> 4) & 3) * 4 * ROWB + (t & 15) * 16 + (t >> 6) * 256, tmp=12)
    lane_const(A, XS8, lambda t: ((t >> 4) & 3) * 4 * ROWB + (t & 15) * 2 + (t >> 6) * 32 + 1024, tmp=12)
    lane_const(A, XL, lambda t: ((t >> 4) & 3) * PROW + (t >> 6) * 256 + (t & 15) * 16, tmp=12)
    lane_const(A, XL8, lambda t: (8 * (t >> 6) + ((t >> 3) & 7)) * PROW + 1024 + (t & 7) * 16, tmp=12)
    lane_const(A, RW, lambda t: l_red + (256 * ((t >> 4) & 1) + 16 * (t >> 6) + (t & 15)) * 4, tmp=12)
    lane_const(A, L4, lambda t: (t & 63) * 4, tmp=12)
    A(f"s_mul_i32 s12, s8, {32 * ROWB}")
    A(f"s_add_u32 s12, s12, {WS_XP}")
    A(f"s_mul_i32 s13, s9, {PROW}")
    A("s_add_u32 s13, s13, s12")
    add64(A, 40, S_WS, "s13")
    A(f"s_mul_i32 s13, s9, {ROWB}")
    A("s_add_u32 s13, s13, s12")
    add64(A, 42, S_WS, "s13")
    A("s_lshl_b32 s12, s8, 7")
    A(f"s_add_u32 s12, s12, {WS_XF}")
    add64(A, 44, S_WS, "s12")
    A("s_mov_b32 s47, 0")

def post_flag(A, wave, off, st):
    l = A.newlabel('L_pf')
    A(f"s_cmp_lg_u32 s10, {wave}")
    A(f"s_cbranch_scc1 {l}")
    A("s_lshl_b32 s12, s9, 2")
    A("v_mov_b32 v8, s12")
    A("v_mov_b32 v9, s47")
    A("s_mov_b64 exec, 1")
    A(f"global_store_dword v8, v9, s[44:45] offset:{off} {st}")
    A("s_mov_b64 exec, -1")
    A.label(l)

def out_proj(A, st, wfrag, l_red, k16=None):
    D = Lds(A)
    FR, AC, NA_, G, W16, F16 = 8, 28, 6, 52, 68, 72
    tr(A, 'op0')
    order = [8, 0, 1, 2, 3, 4, 5, 6, 7]
    seq = [(tt, t) for tt in range(2) for t in order]
    pend = []
    def slot(k): return AC + 4 * (k % NA_)
    def w16rd(k): D.op(f"ds_read_b64_tr_b16 {v(W16 + 2 * (k & 1), 2)}, v{k16[1]} offset:{seq[k][1] * 128}", ('w16', k))
    def m16(k):
        D.wait(('w16', k))
        A(f"{MF16} {v(slot(k), 4)}, {v(F16 + 2 * seq[k][0], 2)}, {v(W16 + 2 * (k & 1), 2)}, 0")
    if k16:
        A(f"v_lshrrev_b32 v26, 1, v{L16}")
        for tt in range(2): D.op(f"ds_read_b64 {v(F16 + 2 * tt, 2)}, v26 offset:{k16[0] + tt * 512}")
        w16rd(0); w16rd(1)
    for k, (tt, t) in enumerate(seq):
        if t == 8:
            for j in range(4): D.op(f"ds_read_b128 {v(FR + 4 * j, 4)}, v{L16} offset:{(tt * 4 + j) * 1024}", ('f', j))
        if k16:
            if k == 0: m16(0)
            if k + 1 < 18: m16(k + 1)
            if k + 2 < 18: w16rd(k + 2)
        c = slot(k); cp = slot(k - 1)
        for j in range(4):
            D.wait(('f', j))
            A(f"{MF32} {v(c, 4)}, {v(FR + 4 * j, 4)}, {u(wfrag(t, j), 4)}, {v(c, 4) if (j or k16) else 0}")
            for _ in range(2):
                if pend and pend[0][0] <= k * 4 + j: A(pend.pop(0)[1])
        rdy = (k + 2) * 4
        sa = f"s_add_u32 s12, s40, {{}}\ns_addc_u32 s13, s41, 0\n"
        if t == 8:
            pend.append((rdy, f"v_cvt_pk_bf16_f32 v{c}, v{c}, v{c+1}"))
            pend.append((rdy, f"v_cvt_pk_bf16_f32 v{c+2}, v{c+2}, v{c+3}"))
            for r in range(4):
                pend.append((rdy, sa.format((16 * tt + r) * ROWB) + f"global_store_short{'_d16_hi' if r & 1 else ''} v{XS8}, v{c + (r & 2)}, s[12:13] {st}"))
        elif t & 1:
            for r in range(4):
                pend.append((rdy, f"v_cvt_pk_bf16_f32 v{G + 4 * r + t // 2}, v{cp+r}, v{c+r}"))
                if t == 7:
                    pend.append((rdy, sa.format((16 * tt + r) * ROWB) + f"global_store_dwordx4 v{XS}, {v(G + 4 * r, 4)}, s[12:13] {st}"))
    for o in pend: A(o[1])
    tr(A, 'op1')
    A("s_add_u32 s47, s47, 1")
    SEL = 12
    A(f"v_bfe_u32 v10, v{L4}, 2, 1")
    A("v_lshlrev_b32 v10, 4, v10")
    A("v_mov_b32 v11, 0x3f80")
    A("v_lshlrev_b32 v11, v10, v11")
    A(f"v_bfe_u32 v10, v{L4}, 3, 2")
    for j in range(4):
        A(f"v_cmp_eq_u32 vcc, {j}, v10")
        A(f"v_cndmask_b32 v{SEL+j}, 0, v11, vcc")
    lane_const(A, 26, lambda x: l_red + 2048 + (x >> 10) * 256 + ((x >> 4) & 7) * 32 + ((x >> 8) & 1) * 16, src=T16, nbits=12, tmp=10)
    A("s_waitcnt vmcnt(0)")
    A("s_barrier")
    tr(A, 'ack')
    post_flag(A, 0, 0, st)
    A(f"v_and_b32 v8, 0x7c, v{L4}")
    flag_wait(A, 8, 44, 47, 9, 12, sleep=0)
    tr(A, 'xf')
    LD = 28
    A("s_mov_b64 s[12:13], s[42:43]")
    A(f"global_load_dwordx4 {v(LD + 32, 4)}, v{XL8}, s[12:13] sc1")
    for i in range(8):
        A(f"global_load_dwordx4 {v(LD + 4 * i, 4)}, v{XL}, s[12:13] sc1")
        if i < 7: add64(A, 12, 12, 4 * PROW)
    A("s_waitcnt vmcnt(8)")
    A(f"{MF32} v[20:23], {v(SEL, 4)}, {v(LD + 32, 4)}, 0")
    for i in range(8):
        A(f"s_waitcnt vmcnt({7 - i})")
        A(f"{MF32} v[16:19], {v(SEL, 4)}, {v(LD + 4 * i, 4)}, {'v[16:19]' if i else 0}")
        if i == 4:
            for r in range(4): A(f"v_add_f32_dpp v{20+r}, v{20+r}, v{20+r} row_ror:8 row_mask:0xf bank_mask:0xf")
            A("ds_write_b128 v26, v[20:23]")
    for r in range(4): A(f"ds_write_b32 v{RW}, v{16+r} offset:{256 * r}")
    A("s_waitcnt lgkmcnt(0)")
    A("s_barrier")
    tr(A, 'red')
    post_flag(A, 1, 1024, st)

def consumed_wait(A, tv):
    A(f"v_and_b32 v{tv}, 0x7c, v{L4}")
    A(f"v_add_u32 v{tv}, 1024, v{tv}")
    flag_wait(A, tv, 44, 47, tv + 1, 12, sleep=0)

def row_gather(A, l_red):
    A(f"v_lshlrev_b32 v48, 1, v{L4}")
    for w in range(4): A(f"ds_read_b64 {v(16 + 2 * w, 2)}, v48 offset:{l_red + 2048 + w * 256}")
    for i in range(4): A(f"ds_read_b64 {v(8 + 2 * i, 2)}, v48 offset:{l_red + i * 512}")
    A("s_waitcnt lgkmcnt(4)")
    A("v_pk_add_f32 v[16:17], v[16:17], v[18:19]")
    A("v_pk_add_f32 v[20:21], v[20:21], v[22:23]")
    A("v_pk_add_f32 v[16:17], v[16:17], v[20:21]")
    A("s_waitcnt lgkmcnt(0)")
    for i in range(5): rnd2(A, 8 + 2 * i)

def unpack(A, dst, src):
    A(f"v_lshlrev_b32 v{dst}, 16, v{src}")
    A(f"v_and_b32 v{dst+1}, 0xffff0000, v{src}")

def cached_wait(A, base, val_s, cache_s, tv):
    ok = A.newlabel('L_cw')
    A(f"s_cmp_ge_u32 s{cache_s}, s{val_s}")
    A(f"s_cbranch_scc1 {ok}")
    A(f"v_mov_b32 v{tv}, 0")
    flag_wait(A, tv, base, val_s, tv + 1, 12, sleep=1)
    A(f"v_readfirstlane_b32 s{cache_s}, v{tv+1}")
    A.label(ok)

def WA(i): return 256 + 4 * i if i < 64 else 224 + 4 * (i - 64)

def role_a(A, restart, na, ag0, kvg0, standalone=False):
    LQ, LO, LRED = 2 * SEG_H, 2 * SEG_H + 8192, 2 * SEG_H + 16384
    LKM, LVM = LRED + 4096, LRED + 8192
    A(f"s_load_dwordx2 s[16:17], s[0:1], {KA_WQ}")
    A(f"s_load_dwordx2 s[18:19], s[0:1], {KA_WO}")
    A(f"s_load_dwordx2 s[34:35], s[0:1], {KA_X}")
    dense256_consts(A, 12, 16, 8192, 1)
    dense128_consts(A, 20, 18, 1)
    A("s_lshl_b32 s12, s9, 8")
    A("s_waitcnt lgkmcnt(0)")
    add64(A, 16, 16, "s12")
    A("s_mul_i32 s12, s9, 147456")
    add64(A, 18, 18, "s12")
    def wq(ks, b): return WA(ks * 2 + b)
    def wo(t, j): return WA(36 + t * 4 + j)
    chunks = [dict(ptr=16, off=c * 64 * 8192, vb=12, reads=dense256_reads(wq, 16, c)) for c in range(9)]
    chunks += [dict(ptr=18, off=t * 128, vb=20, reads=dense128_reads(wo, 18, t)) for t in range(9)]
    ring_load(A, chunks)
    tl(A, 1)
    mode_check(A, tv=12)
    af_consts(A, LRED)
    HA, QRD, OWR, KMA, VOF, NEG, H2A = 80, 81, 82, 83, 84, 85, 86
    MODR, XR = 88, 104
    KF, VF, KM, VM = 112, 144, 160, 176
    lane_const(A, QRD, lambda t: LQ + (t >> 7) * 4096 + (t & 63) * 16, tmp=12)
    lane_const(A, OWR, lambda t: LO + (t >> 6) * 2048 + (t & 63) * 16, tmp=12)
    KMW, VMW = 87, 109
    lane_const(A, KMW, lambda t: LKM + 2 * ((t >> 4) & 3) * 288 + (t >> 6) * 64 + (t & 15) * 4, tmp=12)
    lane_const(A, KMA, lambda t: LKM + (2 * ((t & 15) >> 2) + (t & 1)) * 288 + ((t >> 4) & 3) * 16, tmp=12)
    lane_const(A, VMW, lambda t: LVM + t * 8, tmp=12)
    lane_const(A, VOF, lambda t: LVM + ((t >> 6) & 1) * 1024 + (t & 63) * 8, tmp=12)
    A(f"v_mov_b32 v{NEG}, {f32bits(-1e9):#x}")
    A("s_bfe_u32 s12, s9, 0x30001")
    A("s_lshl_b32 s12, s12, 4")
    A(f"v_xor_b32 v{H2A}, s12, v{L4}")
    lane_const(A, 12, lambda t: 16 * (t >> 7) + (t & 15) - 4 * ((t >> 4) & 3), tmp=13)
    for k in range(8): A(f"v_cmp_le_i32 s[{64+2*k}:{65+2*k}], {(k & 3) + 16 * (k >> 2)}, v12")
    A(f"v_lshlrev_b32 v{T16}, 4, v0")
    A(f"s_sub_u32 s24, s8, {ag0}")
    A(f"s_mul_i32 s12, s24, {SEG_H}")
    A(f"s_add_u32 s13, s12, {WS_H}")
    add64(A, 20, S_WS, "s13")
    A("s_mul_i32 s13, s9, 1152")
    A("s_add_u32 s12, s12, s13")
    add64(A, 34, 34, "s12")
    A(f"s_add_u32 s13, s12, {WS_X1}")
    add64(A, 36, S_WS, "s13")
    A(f"s_add_u32 s13, s12, {WS_H2}")
    add64(A, 38, S_WS, "s13")
    A("s_lshl_b32 s12, s24, 5")
    A("s_add_u32 s12, s12, s9")
    A("s_lshl_b32 s13, s12, 14")
    A(f"s_add_u32 s13, s13, {WS_KV + 4096}")
    add64(A, 22, S_WS, "s13")
    A("s_lshl_b32 s13, s12, 12")
    A(f"s_add_u32 s13, s13, {WS_KVM}")
    add64(A, 30, S_WS, "s13")
    A("s_lshl_b32 s13, s12, 2")
    A(f"s_add_u32 s13, s13, {WS_H2FLAG}")
    add64(A, 52, S_WS, "s13")
    A("s_lshl_b32 s12, s9, 7")
    A(f"s_add_u32 s13, s12, {WS_KVPROG + kvg0 * 4096}")
    add64(A, 54, S_WS, "s13")
    A(f"s_add_u32 s13, s12, {WS_RPROG}")
    add64(A, 56, S_WS, "s13")
    A(f"s_mov_b32 s58, {64 if standalone else 0}")
    A(f"s_mov_b32 s59, {64 if standalone else 0}")
    A("s_lshl_b32 s26, s10, 10")
    A("s_mov_b32 s27, 0")
    A(f"s_mov_b32 s60, {f32bits(128 ** -0.5):#x}")
    A(f"s_mov_b32 s61, {f32bits(math.log2(math.e)):#x}")
    if not standalone: counter_wait(A, DBG_HCNT, 32, tv=12)
    for k, ch in enumerate((2, 4, 3)):
        add64(A, 12, S_WS, WS_MOD + ch * 1152)
        for i in range(5): A(f"global_load_dword v{MODR+5*k+i}, v{L4}, s[12:13] offset:{256 * i} sc1")
    def hdma():
        seg_dma(A, T16, 20, 26)
        add64(A, 20, 20, na * SEG_H)
        A(f"s_xor_b32 s26, s26, {SEG_H}")
    assert SEG_H & 3072 == 0
    hdma()
    A("s_waitcnt vmcnt(0)")
    A("s_cmp_eq_u32 s11, 0")
    A("s_cbranch_scc1 L_a_top_s")
    for fast in (True, False):
        st = "" if fast else "sc1"; sfx = "f" if fast else "s"
        A.label(f"L_a_top_{sfx}")
        tr(A, 'top')
        A("s_add_u32 s25, s24, 1")
        cached_wait(A, 54, 25, 58, 8)
        for i in range(8): A(f"global_load_dwordx4 {v(KF + 4 * i, 4)}, v{L16}, s[22:23] offset:{i * 1024 - 4096}")
        A("s_and_b32 s12, s10, 1")
        A("s_lshl_b32 s12, s12, 12")
        A("s_add_u32 s12, s12, 4096")
        add64(A, 12, 22, "s12")
        for i in range(4): A(f"global_load_dwordx4 {v(VF + 4 * i, 4)}, v{L16}, s[12:13] offset:{i * 1024}")
        A("s_mov_b32 exec_hi, 0")
        A(f"global_load_dword v{XR+4}, v{L4}, s[34:35] offset:1024")
        A("s_mov_b64 exec, -1")
        for i in range(4): A(f"global_load_dword v{XR+i}, v{L4}, s[34:35] offset:{256 * i}")
        A(f"v_add_u32 v{HA}, s27, v{L16}")
        A("s_barrier")
        tr(A, 'go')
        D = Lds(A)
        ACC, RING, NR = 8, 24, 6
        seq = [(ks, tt) for ks in range(18) for tt in range(2)]
        def rd(i):
            ks, tt = seq[i]
            D.op(f"ds_read_b128 {v(RING + 4 * (i % NR), 4)}, v{HA} offset:{(tt * 18 + ks) * 1024}", i)
        for i in range(NR - 1): rd(i)
        hdma()
        A(f"s_xor_b32 s27, s27, {SEG_H}")
        for i, (ks, tt) in enumerate(seq):
            if i + NR - 1 < 36: rd(i + NR - 1)
            D.wait(i)
            for b in range(2):
                d = v(ACC + (b * 2 + tt) * 4, 4)
                A(f"{MF32} {d}, {u(wq(ks, b), 4)}, {v(RING + 4 * (i % NR), 4)}, {d if ks else 0}")
        for tt in range(2):
            for r in range(4): A(f"v_cvt_pk_bf16_f32 v{48+4*tt+r}, v{ACC+4*tt+r}, v{ACC+8+4*tt+r}")
            A(f"v_add_u32 v56, {LQ + tt * 4096}, v{T16}")
            A(f"ds_write_b128 v56, {v(48 + 4 * tt, 4)}")
        A("s_waitcnt lgkmcnt(0)")
        A("s_barrier")
        QF = 24
        for j in range(4): A(f"ds_read_b128 {v(QF + 4 * j, 4)}, v{QRD} offset:{j * 1024}")
        A("s_waitcnt vmcnt(9) lgkmcnt(0)")
        T0, T1, T2 = 8, 12, 16
        for j in range(4):
            for kt in range(2):
                d = v(T0 + 4 * kt, 4)
                A(f"{MF32} {d}, {v(KF + 4 * (kt * 4 + j), 4)}, {v(QF + 4 * j, 4)}, {d if j else 0}")
        consumed_wait(A, 40)
        tr(A, 'mm')
        def scale(r):
            if not EXP.get('nosr'): rnd2(A, r)
            A(f"v_pk_mul_f32 {v(r, 2)}, {v(r, 2)}, s[60:61] op_sel_hi:[1,0]")
            if not EXP.get('nosr'): rnd2(A, r)
        for r in range(T0, T0 + 8, 2): scale(r)
        for k in range(8): A(f"v_cndmask_b32 v{T0+k}, v{NEG}, v{T0+k}, s[{64+2*k}:{65+2*k}]")
        M, TT, SUM = 20, 21, 22
        A(f"v_max3_f32 v{M}, v8, v9, v10")
        A(f"v_max3_f32 v{M}, v{M}, v11, v12")
        A(f"v_max3_f32 v{M}, v{M}, v13, v14")
        A(f"v_max_f32 v{M}, v{M}, v15")
        lp = A.newlabel('L_km'); lok = A.newlabel('L_kmok')
        A("s_mov_b32 s12, 0")
        A.label(lp)
        A(f"global_load_dwordx4 v[40:43], v{T16}, s[30:31] sc1")
        A("s_add_u32 s12, s12, 1")
        A(f"s_cmp_gt_u32 s12, {SPIN_MAX}")
        A("s_cbranch_scc1 L_exit")
        A("s_waitcnt vmcnt(0)")
        A(f"ds_write2_b32 v{KMW}, v40, v41 offset0:0 offset1:72")
        A(f"ds_write_b64 v{VMW}, v[42:43]")
        A("v_max3_u32 v44, v40, v41, v42")
        A("v_max_u32 v44, v44, v43")
        A("v_cmp_eq_u32 vcc, -1, v44")
        A(f"s_cbranch_vccz {lok}")
        A("s_sleep 1")
        A(f"s_branch {lp}")
        A.label(lok)
        A("s_waitcnt lgkmcnt(0)")
        A("s_barrier")
        tr(A, 'flag')
        for j in range(4): A(f"ds_read_b128 {v(KM + 4 * j, 4)}, v{KMA} offset:{j * 64}")
        for i in range(2): A(f"ds_read_b64 {v(VM + 2 * i, 2)}, v{VOF} offset:{i * 512}")
        for j in range(4):
            A(f"s_waitcnt lgkmcnt({5 - j})")
            A(f"{MF32} {v(T2, 4)}, {v(KM + 4 * j, 4)}, {v(QF + 4 * j, 4)}, {v(T2, 4) if j else 0}")
        scale(T2)
        A(f"v_max3_f32 v{M}, v{M}, v16, v17")
        xsum(A, M, TT, op="v_max_f32", bits=(4, 5))
        for r in range(8, 18, 2): A(f"v_pk_add_f32 {v(r, 2)}, {v(r, 2)}, {v(M, 2)} op_sel_hi:[1,0] neg_lo:[0,1] neg_hi:[0,1]")
        for r in range(8, 18, 2): A(f"v_pk_mul_f32 {v(r, 2)}, {v(r, 2)}, s[60:61] op_sel:[0,1]")
        for r in range(8, 18): A(f"v_exp_f32 v{r}, v{r}")
        A(f"v_pk_add_f32 {v(SUM, 2)}, v[8:9], v[10:11]")
        for r in (12, 14, 16): A(f"v_pk_add_f32 {v(SUM, 2)}, {v(SUM, 2)}, {v(r, 2)}")
        A(f"v_add_f32 v{SUM}, v{SUM}, v{SUM+1}")
        xsum(A, SUM, TT, bits=(4, 5))
        A(f"v_rcp_f32 v{SUM}, v{SUM}")
        for r in range(8, 18, 2): A(f"v_pk_mul_f32 {v(r, 2)}, {v(r, 2)}, {v(SUM, 2)} op_sel_hi:[1,0]")
        BX, Z = 40, 44
        for q in range(4): A(f"v_cvt_pk_bf16_f32 v{BX+q}, v{8+2*q}, v{9+2*q}")
        A(f"v_cvt_pk_bf16_f32 v{Z}, v16, v17")
        A(f"v_mov_b32 v{Z+1}, 0")
        A(f"v_mov_b32 v{Z+2}, 0")
        A(f"v_mov_b32 v{Z+3}, v{Z}")
        OA = 24
        for t in range(4): A(f"{MF32} {v(OA + 4 * t, 4)}, {v(VF + 4 * t, 4)}, {v(BX, 4)}, 0")
        A("s_waitcnt lgkmcnt(0)")
        for t in range(4): A(f"{MF16} {v(OA + 4 * t, 4)}, {v(VM + 2 * (t >> 1), 2)}, {v(Z + 2 * (t & 1), 2)}, {v(OA + 4 * t, 4)}")
        for q in range(8): A(f"v_cvt_pk_bf16_f32 v{48+q}, v{OA+2*q}, v{OA+2*q+1}")
        A(f"ds_write_b128 v{OWR}, v[48:51]")
        A(f"ds_write_b128 v{OWR}, v[52:55] offset:1024")
        A("s_waitcnt lgkmcnt(0)")
        A("s_barrier")
        oa = Asm()
        A(f"v_add_u32 v{L16}, {LO}, v{L16}")
        out_proj(A, st, wo, LRED)
        A(f"v_subrev_u32 v{L16}, {LO}, v{L16}")
        A("s_cmp_lg_u32 s10, 0")
        A(f"s_cbranch_scc1 L_a_next_{sfx}")
        A(f"v_add_u32 v{L4}, {LRED // 2}, v{L4}")
        row_gather(A, 0)
        A(f"v_subrev_u32 v{L4}, {LRED // 2}, v{L4}")
        A("v_mov_b64 v[20:21], 0")
        for i in range(5):
            r = 8 + 2 * i
            if i == 4: A("s_mov_b32 exec_hi, 0")
            unpack(A, 18, MODR + i)
            A(f"v_pk_mul_f32 {v(r, 2)}, {v(r, 2)}, v[18:19]")
            rnd2(A, r)
            unpack(A, 18, XR + i)
            A(f"v_pk_add_f32 {v(r, 2)}, {v(r, 2)}, v[18:19]")
            A(f"v_cvt_pk_bf16_f32 v{24+i}, v{r}, v{r+1}")
            unpack(A, r, 24 + i)
            A(f"global_store_dword v{L4}, v{24+i}, s[36:37] offset:{256 * i} sc1")
            A(f"v_pk_add_f32 v[20:21], v[20:21], {v(r, 2)}")
        A("s_mov_b64 exec, -1")
        A("v_add_f32 v20, v20, v21")
        xsum(A, 20, 21)
        A(f"v_mul_f32 v20, {f32bits(1.0 / 576):#x}, v20")
        A("v_mov_b64 v[22:23], 0")
        for i in range(5):
            if i == 4: A("s_mov_b32 exec_hi, 0")
            A(f"v_pk_add_f32 v[18:19], {v(8 + 2 * i, 2)}, v[20:21] op_sel_hi:[1,0] neg_lo:[0,1] neg_hi:[0,1]")
            A("v_pk_fma_f32 v[22:23], v[18:19], v[18:19], v[22:23]")
        A("s_mov_b64 exec, -1")
        A("v_add_f32 v22, v22, v23")
        xsum(A, 22, 23)
        A(f"v_mul_f32 v22, {f32bits(1.0 / 576):#x}, v22")
        rnd1(A, 22); rnd1(A, 20)
        A(f"v_add_f32 v22, {f32bits(1e-5):#x}, v22")
        rnd1(A, 22)
        A("v_sqrt_f32 v22, v22")
        rnd1(A, 22)
        A("v_rcp_f32 v22, v22")
        for i in range(5):
            r = 8 + 2 * i
            if i == 4: A("s_mov_b32 exec_hi, 0")
            A(f"v_pk_add_f32 {v(r, 2)}, {v(r, 2)}, v[20:21] op_sel_hi:[1,0] neg_lo:[0,1] neg_hi:[0,1]")
            rnd2(A, r)
            A(f"v_pk_mul_f32 {v(r, 2)}, {v(r, 2)}, v[22:23] op_sel_hi:[1,0]")
            rnd2(A, r)
            unpack(A, 18, MODR + 5 + i)
            A(f"v_pk_mul_f32 {v(r, 2)}, {v(r, 2)}, v[18:19]")
            rnd2(A, r)
            unpack(A, 18, MODR + 10 + i)
            A(f"v_pk_add_f32 {v(r, 2)}, {v(r, 2)}, v[18:19]")
            A(f"v_cvt_pk_bf16_f32 v{30+i}, v{r}, v{r+1}")
            A(f"global_store_dword v{H2A}, v{30+i}, s[38:39] offset:{256 * i} sc1")
        A("s_mov_b64 exec, 1")
        A("v_mov_b32 v18, 1")
        A("s_waitcnt vmcnt(0)")
        A(f"global_store_dword v{L4}, v18, s[52:53] sc1")
        A("s_mov_b64 exec, -1")
        A.label(f"L_a_next_{sfx}")
        tr(A, 'end'); tr_dump(A, EXP.get('aftrace', 0))
        add64(A, 34, 34, na * SEG_H); add64(A, 36, 36, na * SEG_H); add64(A, 38, 38, na * SEG_H)
        add64(A, 22, 22, na << 19); add64(A, 30, 30, na << 17); add64(A, 52, 52, na * 128)
        A(f"s_add_u32 s24, s24, {na}")
        A("s_cmp_lt_u32 s24, 64")
        A(f"s_cbranch_scc1 L_a_top_{sfx}")
        tl(A, 4)
        A("s_branch L_exit")

def WFF(i): return 256 + 4 * i if i < 64 else 80 + 4 * (i - 64)

def role_f(A, nf, fg0, standalone=False):
    LG8, LW16, LRING = 0, 36864, 57344
    LH2, LACT = LRING, LRING + 40960
    LRED = LACT + 9216
    A(f"s_load_dwordx4 s[16:19], s[0:1], {KA_WG}")
    A(f"s_load_dwordx2 s[20:21], s[0:1], {KA_WD}")
    A(f"s_load_dwordx2 s[34:35], s[0:1], {KA_OUT}")
    dense256_consts(A, 12, 16, 9216, 1)
    dense128_consts(A, 20, 18, 1)
    lane_const(A, 24, lambda t: (t >> 1) * 9216 + (t & 1) * 16 + 256, tmp=1)
    lane_const(A, 25, lambda t: t * 16, tmp=1)
    A("s_mul_i32 s12, s9, 288")
    A("s_waitcnt lgkmcnt(0)")
    add64(A, 16, 16, "s12"); add64(A, 18, 18, "s12")
    A(f"s_mul_i32 s12, s9, {144 * 1152}")
    add64(A, 20, 20, "s12")
    A("s_lshl_b32 s26, s10, 10")
    for m in range(2):
        for i in range(5):
            if i == 4:
                A("s_cmp_ge_u32 s10, 2"); l = A.newlabel('L_f8'); A(f"s_cbranch_scc1 {l}")
            add64(A, 12, 16 + 2 * m, i * 128 * 9216)
            A(f"s_add_u32 m0, s26, {LG8 + m * 18432 + i * 4096}")
            A("global_load_lds_dwordx4 v24, s[12:13]")
            if i == 4: A.label(l)
    for i in range(5):
        if i == 4:
            A("s_cmp_ge_u32 s10, 2"); l = A.newlabel('L_f16'); A(f"s_cbranch_scc1 {l}")
        add64(A, 12, 20, 128 * 1152 + i * 4096)
        A(f"s_add_u32 m0, s26, {LW16 + i * 4096}")
        A("global_load_lds_dwordx4 v25, s[12:13]")
        if i == 4: A.label(l)
    def wg(m, ks, b): return WFF(ks * 4 + m * 2 + b)
    def wd(t, j): return WFF(72 + t * 4 + j)
    chunks = []
    for c in range(9):
        for m in range(2):
            chunks.append(dict(ptr=16 + 2 * m, off=c * 64 * 9216, vb=12, reads=dense256_reads(lambda ks, b, m=m: wg(m, ks, b), 16, c)))
    chunks += [dict(ptr=20, off=t * 128, vb=20, reads=dense128_reads(wd, 18, t)) for t in range(9)]
    ring_load(A, chunks, nslots=6, lbase=LRING)
    tl(A, 1)
    mode_check(A, tv=12)
    af_consts(A, LRED)
    A(f"v_lshlrev_b32 v{T16}, 4, v0")
    A(f"s_sub_u32 s24, s8, {fg0}")
    A(f"s_mul_i32 s12, s24, {SEG_H}")
    A(f"s_add_u32 s13, s12, {WS_H2}")
    add64(A, 20, S_WS, "s13")
    A("s_mul_i32 s13, s9, 1152")
    A("s_add_u32 s12, s12, s13")
    add64(A, 34, 34, "s12")
    A(f"s_add_u32 s13, s12, {WS_X1}")
    add64(A, 36, S_WS, "s13")
    A("s_lshl_b32 s13, s24, 7")
    A(f"s_add_u32 s13, s13, {WS_H2FLAG}")
    add64(A, 52, S_WS, "s13")
    add64(A, 54, S_WS, WS_MOD + 5 * 1152)
    A("s_lshl_b32 s26, s10, 10")
    A(f"s_add_u32 s26, s26, {LH2}")
    A("s_mov_b32 s25, 1")
    A(f"s_mov_b32 s60, {f32bits(-math.log2(math.e)):#x}")
    A("s_cmp_eq_u32 s11, 0")
    A("s_cbranch_scc1 L_f_top_s")
    for fast in (True, False):
        st = "" if fast else "sc1"; sfx = "f" if fast else "s"
        A.label(f"L_f_top_{sfx}")
        tr(A, 'top')
        consumed_wait(A, 8)
        if not standalone:
            A(f"v_and_b32 v8, 0x7c, v{L4}")
            flag_wait(A, 8, 52, 25, 9, 12, sleep=1)
        tr(A, 'flag')
        seg_dma(A, T16, 20, 26)
        HA, G8A, AW = 72, 76, 77
        A(f"v_lshrrev_b32 v78, 4, v{T16}")
        for ttl in range(2):
            for par in range(2):
                r = HA + 2 * ttl + par
                lane_const(A, r, lambda t: LH2 + (t & 15) * 1152 + ((ttl ^ (t >> 6)) & 1) * 18432, src=78, tmp=8)
                lane_const(A, r, lambda t: ((4 * par + ((t >> 4) & 3)) ^ ((t & 15) >> 1)) * 16, src=78, tmp=8, acc=True)
        lane_const(A, G8A, lambda t: LG8 + ((t >> 4) & 3) * 256 + (t & 15) * 8, src=78, tmp=8)
        lane_const(A, AW, lambda t: LACT + t * 16 + ((t >> 6) & 1) * 4096, src=78, tmp=8)
        A("s_waitcnt vmcnt(0)")
        A("s_barrier")
        tr(A, 'go')
        def swiglu(g, u_, dst, t0, pk):
            B = Asm()
            for r in (0, 2):
                rnd2(B, g + r); rnd2(B, u_ + r)
                if pk: B(f"v_pk_mul_f32 {v(t0, 2)}, {v(g + r, 2)}, s[60:61] op_sel_hi:[1,0]")
                else:
                    for q in range(2): B(f"v_mul_f32 v{t0+q}, s60, v{g+r+q}")
                for q in range(2): B(f"v_exp_f32 v{t0+q}, v{t0+q}")
                if pk: B(f"v_pk_add_f32 {v(t0, 2)}, {v(t0, 2)}, 1.0 op_sel_hi:[1,0]")
                else:
                    for q in range(2): B(f"v_add_f32 v{t0+q}, 1.0, v{t0+q}")
                for q in range(2): B(f"v_rcp_f32 v{t0+q}, v{t0+q}")
                if pk: B(f"v_pk_mul_f32 {v(g + r, 2)}, {v(g + r, 2)}, {v(t0, 2)}")
                else:
                    for q in range(2): B(f"v_mul_f32 v{g+r+q}, v{g+r+q}, v{t0+q}")
                rnd2(B, g + r)
                if pk: B(f"v_pk_mul_f32 {v(g + r, 2)}, {v(g + r, 2)}, {v(u_ + r, 2)}")
                else:
                    for q in range(2): B(f"v_mul_f32 v{g+r+q}, v{g+r+q}, v{u_+r+q}")
                B(f"v_cvt_pk_bf16_f32 v{dst + r // 2}, v{g+r}, v{g+r+1}")
            return [i.text.strip() for i in B.ins]
        lj = A.newlabel('L_fj'); lb = A.newlabel('L_fb')
        A("s_cmp_ge_u32 s10, 2")
        A(f"s_cbranch_scc1 {lb}")
        for extra in (True, False):
            if not extra: A.label(lb)
            D = Lds(A)
            RING, NR = 48, 4
            seq = [(ttl, ks) for ttl in range(2) for ks in range(18)]
            def rd(i):
                ttl, ks = seq[i]
                D.op(f"ds_read_b128 {v(RING + 4 * (i % NR), 4)}, v{HA + 2 * ttl + (ks & 1)} offset:{(ks >> 1) * 128}", i)
            def rd9(ks):
                r = 24 + 8 * (ks & 1)
                for m in range(2):
                    for hq in range(2):
                        D.op(f"ds_read_b64_tr_b16 {v(r + 4 * m + 2 * hq, 2)}, v{G8A} offset:{m * 18432 + ks * 1024 + hq * 128}", ('w9', ks))
            def ac(m, b, ttl): return 8 + 16 * ttl + (m * 2 + b) * 4
            for i in range(NR - 1): rd(i)
            if extra: rd9(0)
            vq = []
            for i, (ttl, ks) in enumerate(seq):
                if i + NR - 1 < 36: rd(i + NR - 1)
                if extra and ttl == 0 and ks + 1 < 18: rd9(ks + 1)
                D.wait(i)
                h = v(RING + 4 * (i % NR), 4)
                if i == 20:
                    for b in range(2): vq += swiglu(ac(0, b, 0), ac(1, b, 0), 64 + 2 * b, 70, False)
                    vq.append(f"ds_write_b128 v{AW}, v[64:67]")
                    if extra:
                        vq += swiglu(40, 44, 68, 70, False)
                        vq.append(f"v_lshrrev_b32 v70, 1, v{T16}")
                        vq.append(f"v_add_u32 v70, {LACT + 8192}, v70")
                        vq.append("ds_write_b64 v70, v[68:69]")
                for m in range(2):
                    for b in range(2):
                        d = v(ac(m, b, ttl), 4)
                        A(f"{MF32} {d}, {u(wg(m, ks, b), 4)}, {h}, {d if ks else 0}")
                        for _ in range(2):
                            if vq:
                                o = vq.pop(0)
                                if o.startswith('ds_'): D.op(o)
                                else: A(o)
                if extra and ttl == 0:
                    D.wait(('w9', ks))
                    for m in range(2):
                        d = v(40 + 4 * m, 4)
                        A(f"{MF32} {d}, {v(24 + 8 * (ks & 1) + 4 * m, 4)}, {h}, {d if ks else 0}")
            for o in vq: A(o)
            if extra: A(f"s_branch {lj}")
        A.label(lj)
        tr(A, 'mm')
        o0 = swiglu(24, 32, 48, 52, True); o1 = swiglu(28, 36, 50, 54, True)
        for a_, b_ in zip(o0, o1): A(a_); A(b_)
        A(f"v_xor_b32 v{AW}, 4096, v{AW}")
        A(f"ds_write_b128 v{AW}, v[48:51]")
        lane_const(A, 27, lambda t: LW16 + (4 * ((t >> 4) & 3) + ((t >> 2) & 3)) * 1152 + (t >> 6) * 32 + (t & 3) * 8, src=78, tmp=8)
        A("s_waitcnt lgkmcnt(0)")
        A("s_barrier")
        A(f"v_add_u32 v{L16}, {LACT}, v{L16}")
        out_proj(A, st, wd, LRED, k16=(LACT // 2 + 8192, 27))
        A(f"v_subrev_u32 v{L16}, {LACT}, v{L16}")
        A("s_cmp_lg_u32 s10, 0")
        A(f"s_cbranch_scc1 L_f_next_{sfx}")
        for i in range(5):
            if i == 4: A("s_mov_b32 exec_hi, 0")
            A(f"global_load_dword v{50+i}, v{L4}, s[54:55] offset:{256 * i}")
            A(f"global_load_dword v{56+i}, v{L4}, s[36:37] offset:{256 * i}")
        A("s_mov_b64 exec, -1")
        A(f"v_add_u32 v{L4}, {LRED // 2}, v{L4}")
        row_gather(A, 0)
        A(f"v_subrev_u32 v{L4}, {LRED // 2}, v{L4}")
        A("s_waitcnt vmcnt(0)")
        for i in range(5):
            r = 8 + 2 * i
            if i == 4: A("s_mov_b32 exec_hi, 0")
            unpack(A, 18, 50 + i)
            A(f"v_pk_mul_f32 {v(r, 2)}, {v(r, 2)}, v[18:19]")
            rnd2(A, r)
            unpack(A, 18, 56 + i)
            A(f"v_pk_add_f32 {v(r, 2)}, {v(r, 2)}, v[18:19]")
            A(f"v_cvt_pk_bf16_f32 v{24+i}, v{r}, v{r+1}")
            A(f"global_store_dword v{L4}, v{24+i}, s[34:35] offset:{256 * i}")
        A("s_mov_b64 exec, -1")
        A.label(f"L_f_next_{sfx}")
        tr(A, 'end'); tr_dump(A, EXP.get('aftrace', 0))
        add64(A, 20, 20, nf * SEG_H); add64(A, 34, 34, nf * SEG_H); add64(A, 36, 36, nf * SEG_H); add64(A, 52, 52, nf * 128)
        A(f"s_add_u32 s24, s24, {nf}")
        A("s_cmp_lt_u32 s24, 64")
        A(f"s_cbranch_scc1 L_f_top_{sfx}")
        tl(A, 4)
        A("s_branch L_exit")
```

```python
from common import *
import math, struct

L_MEM, L_KX, L_VX = 0, 9216, 17408
L_QL, L_KL, L_OL = 25600, 27904, 30208
L_JUNK = 32256
L_WK = 32768
QSTR = 288
KL0 = L_KL - L_QL
T16, WKB, L16, MEMR, QR, QKW, OW, IDX = range(0, 8)
TMPC = WKB
def WQ(ks, b): return 256 + (ks * 2 + b) * 8
def WV(ks, b):
    i = ks * 2 + b
    return 400 + i * 8 if i < 14 else 64 + (i - 14) * 8
def WO(t, k2): return 96 + (t * 2 + k2) * 8
def WK8(b): return 240 + b * 8
ACCV0, ACCQ, ACCK, MRING, WRING, ACCV1 = 8, 12, 20, 28, 40, 40
SMF = "v_smfmac_f32_16x16x64_bf16"
MF32 = "v_mfma_f32_16x16x32_bf16"
MF16 = "v_mfma_f32_16x16x16_bf16"
IDQ = "quad_perm:[0,1,2,3]"
ROR8 = "row_ror:8 row_mask:0xf bank_mask:0xf"
def FSW(i): return 2 * (0, 2, 3, 1)[i >> 1] + (i & 1)
def img(i, pos): return i * 128 + ((pos ^ FSW(i)) * 16)
PI = [0, 1, 4, 5, 2, 3, 6, 7]
EXP = {}
PF = 1
ORD = [8, 0, 1, 2, 3, 4, 5, 6, 7]

WORD = [8, 0, 1, 2, 3, 4, 5, 6, 7]
def swap_tab():
    nsw = EXP.get('nsw', 0)
    return list(zip([4, 7, 10, 13, 15, 1][:nsw], [3, 7, 10, 13, 16, 0][:nsw]))
def wo_reg(k): return WO(WORD[k // 2], k & 1)
def wk_off(n): return L_WK + (n >> 1) * 16384 + (n & 1) * 8192

def r_swap(A):
    for n, k in swap_tab():
        A(f"v_lshlrev_b32 v12, 4, v0")
        A(f"v_add_u32 v12, {wk_off(n)}, v12")
        A("ds_read_b128 v[16:19], v12")
        A("ds_read_b128 v[20:23], v12 offset:4096")
        A("s_waitcnt lgkmcnt(0)")
        r = wo_reg(k)
        A(f"ds_write_b128 v12, {v(r, 4)}")
        A(f"ds_write_b128 v12, {v(r + 4, 4)} offset:4096")
        A("s_waitcnt lgkmcnt(0)")
        for q in range(0, 8, 2): A(f"v_mov_b64 {v(r + q, 2)}, {v(16 + q, 2)}")

def r_setup(A):
    A(f"s_load_dwordx4 s[16:19], s[0:1], {KA_WQ}")
    A(f"s_load_dwordx4 s[20:23], s[0:1], {KA_WV}")
    A(f"s_load_dwordx2 s[24:25], s[0:1], {KA_MEM0}")
    def swz(lr): return 2 * ((lr & 1) | ((lr >> 3) & 1) << 1 | ((lr >> 5) & 1) << 2)
    def swz2(row): return 2 * (((row >> 2) & 1) | ((row >> 4) & 1) << 1)
    for ip in range(4):
        def fq(t, last=False):
            w, l = t >> 6, t & 63
            lr = 16 * w + 4 * ip + (l >> 4); e, pos = lr >> 3, lr & 7
            d = 512 + 8 * pos + e if last else 64 * (e & 1) + 4 * pos + (e >> 1)
            return d * 8192 + (((l & 15) ^ swz(lr)) * 16)
        lane_const(A, 12 + ip, fq, tmp=1)
        lane_const(A, 16 + ip, lambda t: fq(t, True), tmp=1)
        lane_const(A, 20 + ip, lambda t: (32 * (t >> 6) + 8 * ip + ((t & 63) >> 3)) * 1152, tmp=1)
        lane_const(A, 20 + ip, lambda t: ((t & 7) ^ swz2(32 * (t >> 6) + 8 * ip + ((t & 63) >> 3))) * 16, tmp=1, acc=True)
    def ftr(t, b):
        w, l = t >> 6, t & 63
        gb, half, bp, c = l >> 4, (l >> 3) & 1, (l >> 2) & 1, l & 3
        lr = 32 * (gb & 1) + 8 * bp + 2 * (gb >> 1) + half
        return L_WK + lr * 256 + (((4 * w + 2 * b + (c >> 1)) ^ swz(lr)) * 16) + (c & 1) * 8
    lane_const(A, 24, lambda t: ftr(t, 0), tmp=1)
    lane_const(A, 25, lambda t: ftr(t, 1), tmp=1)
    def fto(t):
        w, l = t >> 6, t & 63
        gb, half, bp, c = l >> 4, (l >> 3) & 1, (l >> 2) & 1, l & 3
        row = 16 * (gb & 1) + 8 * (gb >> 1) + 4 * half + bp
        return L_WK + row * 128 + (((2 * w + (c >> 1)) ^ swz2(row)) * 16) + (c & 1) * 8
    lane_const(A, 26, fto, tmp=1)
    lane_const(A, 27, lambda t: L_WK + t * 16, tmp=1)
    A("s_waitcnt lgkmcnt(0)")
    A("s_lshl_b32 s12, s9, 8")
    for p in (16, 18, 20):
        add64(A, p, p, "s12")
    A("s_mul_i32 s12, s9, 147456")
    add64(A, 22, 22, "s12")
    A("s_lshl_b32 s26, s10, 12")
    A(f"s_add_u32 s26, s26, {L_WK}")
    chunks = [('q', k) for k in range(9)] + [('v', k) for k in range(9)] + [('o', t) for t in range(9)] + [('k', 7)] + [('k', ORD[j % 8]) for j in range(28, 36)]
    ptr = {'q': 16, 'k': 18, 'v': 20, 'o': 22}
    def issue(j):
        m, k = chunks[j]
        slot = j % 8
        if m == 'o': off, vb = k * 128, 20
        elif k < 8: off, vb = (128 * (k >> 1) + 32 * (k & 1)) * 8192, 12
        else: off, vb = 0, 16
        add64(A, 12, ptr[m], off)
        for ip in range(4):
            A(f"s_add_u32 m0, s26, {slot * 16384 + ip * 1024}")
            A(f"global_load_lds_dwordx4 v{vb+ip}, s[12:13]")
    for j in range(7): issue(j)
    n = len(chunks)
    for j in range(n + 1):
        if j < n:
            ahead = min(n - 1, j + 6) - j
            A(f"s_waitcnt vmcnt({4 * ahead})")
        A("s_barrier")
        if j + 7 < n: issue(j + 7)
        if j >= 29:
            pk = (j - 1) % 8; tb = 32 + ((j - 1) & 1) * 16
            A(f"v_add_u32 v28, {pk * 16384}, v27")
            for q in range(4):
                A(f"ds_write_b128 v28, {v(tb + 4 * q, 4)} offset:{q * 4096}")
        if j < n:
            m, k = chunks[j]; slot = j % 8
            if m == 'o':
                A(f"v_add_u32 v28, {slot * 16384}, v26")
                for k2 in range(2):
                    for jq in range(4):
                        off = (64 * k2 + 32 * (jq >> 1) + 2 * (jq & 1)) * 128
                        A(f"ds_read_b64_tr_b16 {u(WO(k, k2) + 2 * jq, 2)}, v28 offset:{off}")
            else:
                A(f"v_add_u32 v28, {slot * 16384}, v24")
                A(f"v_add_u32 v29, {slot * 16384}, v25")
                for b in range(2):
                    if m == 'q': dst = WQ(k, b)
                    elif m == 'v': dst = WV(k, b)
                    elif j == 27: dst = WK8(b)
                    else: dst = 32 + (j & 1) * 16 + b * 8
                    for jq in range(4):
                        off = (16 * (jq & 1) + 4 * (jq >> 1)) * 256
                        A(f"ds_read_b64_tr_b16 {u(dst + 2 * jq, 2)}, v{28+b} offset:{off}")
        A("s_waitcnt lgkmcnt(0)")
    for m in range(3):
        def fd(t): return 256 * m + t if m < 2 else 512 + (t & 63)
        def fa(t):
            d = fd(t)
            if d < 512: ks, e, pos = 2 * (d >> 7) + ((d >> 5) & 1), 2 * (d & 3) + ((d >> 6) & 1), (d >> 2) & 7
            else: ks, e, pos = 8, d & 7, (d >> 3) & 7
            return ks * 1024 + pos * 16 + e * 2
        lane_const(A, 4 + m, lambda t: 2 * fd(t), tmp=1)
        lane_const(A, 8 + m, fa, tmp=1)
        for i in range(8):
            A(f"v_add_u32 v2, {i * 1152}, v{4+m}")
            A(f"global_load_ushort v{12+8*m+i}, v2, s[24:25]")
    A("s_waitcnt vmcnt(0)")
    for m in range(3):
        for i in range(8):
            A(f"v_xor_b32 v2, {FSW(i) * 16}, v{8+m}")
            A(f"ds_write_b16 v2, v{12+8*m+i} offset:{L_MEM + i * 128}")
    A("s_waitcnt lgkmcnt(0)")

def r_consts(A):
    lane_const(A, L16, lambda t: (t & 63) * 16, tmp=12)
    lane_const(A, MEMR, lambda t: img((t & 15) >> 1, 2 * ((t >> 4) & 3) + (t & 1)), tmp=12)
    lane_const(A, QR, lambda t: L_QL + (t & 7) * QSTR + ((t >> 4) & 3) * 16, tmp=12)
    lane_const(A, QKW, lambda t: L_QL + (0, 4, 2, 6)[(t >> 4) & 3] * QSTR + (t >> 6) * 64 + (t & 15) * 4, tmp=12)
    lane_const(A, OW, lambda t: (t >> 7) * 1024 + img(PI[t & 7], 4 * ((t >> 6) & 1) + ((t >> 4) & 3)), tmp=12)
    A(f"v_add_u32 v{OW}, {L_OL}, v{OW}")
    lane_const(A, 14, lambda t: L_JUNK + (((t >> 4) & 3) * 8 + (t & 7)) * 16, tmp=12)
    A("v_and_b32 v12, 8, v0")
    A("v_cmp_ne_u32 vcc, 0, v12")
    A(f"v_cndmask_b32 v{OW}, v{OW}, v14, vcc")
    lane_const(A, IDX, lambda t: 0xEEEE if t & 1 else 0x4444, tmp=12)
    A(f"v_lshlrev_b32 v{T16}, 4, v0")
    A("s_and_b32 s12, s10, 1")
    A("s_lshl_b32 s12, s12, 5")
    A("s_add_u32 s37, s12, s9")
    A("v_mov_b32 v14, s37")
    lane_const(A, 15, lambda t: ms_fn(1, t, 0), src=14, nbits=6, tmp=12)
    lane_const(A, 16, lambda t: ms_fn(2, t, 0), src=14, nbits=5, tmp=12)
    if EXP.get('tm', 1): lane_const(A, 17, lambda t: WS_RP + t * 4096, src=14, nbits=6, tmp=12)
    else: lane_const(A, 17, lambda t: WS_RP + (t >> 2) * 16384 + (t & 3) * 128 + 4096, src=14, nbits=6, tmp=12)
    lane_const(A, 18, lambda t: WS_RP + 0x40000 + (t >> 3) * 8192 + (t & 7) * 32, src=14, nbits=5, tmp=12)
    A("v_readfirstlane_b32 s41, v15")
    A("v_readfirstlane_b32 s12, v16")
    A("v_readfirstlane_b32 s13, v17")
    A("v_readfirstlane_b32 s14, v18")
    A("s_cmp_lt_u32 s10, 2")
    A("s_cselect_b32 s41, s41, s12")
    A("s_cselect_b32 s13, s13, s14")
    if EXP.get('rep', 0):
        A("s_cselect_b32 s44, -1, 0x03030303")
        A("s_mov_b32 s45, s44")
        A("s_and_b32 s36, s9, 3")
        A("s_lshl_b32 s36, s36, 15")
        A("s_add_u32 s36, s36, 3072")
    else:
        A("s_mov_b32 s44, 0x00030003")
        A("s_cselect_b32 s44, 0x00FF00FF, s44")
        A("s_mov_b32 s45, 0")
        A("s_movk_i32 s36, 3072")
    add64(A, 28, S_WS, "s13")
    add64(A, 16, 28, 8192)
    A("s_lshl_b32 s12, s10, 5")
    A("s_add_u32 s12, s12, s9")
    A("s_lshl_b32 s13, s12, 9")
    if EXP.get('tm', 1):
        A("s_lshl_b32 s13, s10, 7")
        A("s_add_u32 s13, s13, s9")
        A("s_lshl_b32 s13, s13, 7")
    A(f"s_add_u32 s13, s13, {WS_RP}")
    add64(A, 26, S_WS, "s13")
    for p in range(1, 4): add64(A, 88 + 2 * p, 26, p * 65536)
    A("s_lshl_b32 s13, s12, 8")
    A(f"s_add_u32 s13, s13, {WS_RP + 0x40000}")
    add64(A, 42, S_WS, "s13")
    add64(A, 30, S_WS, WS_RM)
    cc = struct.unpack('<I', struct.pack('<f', (128 ** -0.5) * math.log2(math.e)))[0]
    A(f"s_mov_b32 s46, {cc:#x}")
    A("s_bfe_u32 s40, s9, 0x10003")
    A("s_lshl_b32 s12, s9, 14")
    A(f"s_add_u32 s12, s12, {WS_KV}")
    add64(A, 88, S_WS, "s12")
    A("s_lshl_b32 s13, s10, 11")
    add64(A, 32, 88, "s13")
    add64(A, 86, 32, 8192)
    A("s_lshl_b32 s12, s9, 12")
    A(f"s_add_u32 s12, s12, {WS_KVM}")
    add64(A, 50, S_WS, "s12")
    A("s_lshl_b32 s12, s9, 7")
    A(f"s_add_u32 s12, s12, {WS_KVPROG + 4096}")
    add64(A, 18, S_WS, "s12")
    A("s_lshl_b32 s12, s9, 2")
    A(f"s_add_u32 s12, s12, {WS_RPROG}")
    add64(A, 52, S_WS, "s12")
    A("s_lshl_b32 s12, s9, 7")
    A(f"s_add_u32 s12, s12, {WS_RPROG}")
    add64(A, 22, S_WS, "s12")
    A("s_lshl_b32 s62, s10, 11")
    A(f"s_add_u32 s62, s62, {L_KX}")
    A("s_lshl_b32 s63, s10, 10")
    A(f"s_add_u32 s57, s63, {L_MEM}")
    A(f"s_add_u32 s63, s63, {L_VX}")

def ms_fn(kind, t, l):
    q8, gp = l & 7, (l >> 4) & 1
    rp = (((l >> 3) & 1) + 2 * (l >> 5)) * 32768
    if kind == 1:
        w, g = (t >> 2) & 3, t & 3
        return rp + (t >> 3) * 1024 + img(2 * g + gp, 4 * (w & 1) + (q8 >> 1)) + (q8 & 1) * 8
    w, g, nh = t >> 3, (t >> 1) & 3, t & 1
    return rp + 8192 + img(2 * g + gp, 2 * w + nh) + (l & 1) * 8

def ms_calc(A, kind, dst, tmp):
    lane_const(A, dst, lambda x: ms_fn(kind, 0, x >> 4) ^ ms_fn(kind, 0, 0), src=L16, nbits=10, tmp=tmp, mode='xor')
    A(f"v_xor_b32 v{dst}, s41, v{dst}")

def kv_wait(A, seg_sgpr, nkv, kvg0, tv):
    if nkv == 0: return
    ok = A.newlabel('L_kvok'); loop = A.newlabel('L_kvp')
    A(f"s_cmp_lt_u32 {seg_sgpr}, s54")
    A(f"s_cbranch_scc1 {ok}")
    A("s_mov_b32 s55, 0")
    A.label(loop)
    A(f"v_lshrrev_b32 v{tv}, 4, v{L16}")
    A(f"v_min_u32 v{tv}, {nkv - 1}, v{tv}")
    A(f"v_lshlrev_b32 v{tv+1}, 12, v{tv}")
    A("s_lshl_b32 s12, s9, 7")
    A(f"s_add_u32 s12, s12, {WS_KVPROG + kvg0 * 4096}")
    A(f"v_add_u32 v{tv+1}, s12, v{tv+1}")
    A(f"global_load_dword v{tv+1}, v{tv+1}, s[4:5] sc1")
    A("s_add_u32 s55, s55, 1")
    A(f"s_cmp_gt_u32 s55, {SPIN_MAX}")
    A("s_cbranch_scc1 L_exit")
    A("s_waitcnt vmcnt(0)")
    A(f"v_mul_u32_u24 v{tv+1}, {nkv}, v{tv+1}")
    A(f"v_add_u32 v{tv+1}, v{tv+1}, v{tv}")
    A(f"v_readlane_b32 s54, v{tv+1}, 0")
    for j in range(1, nkv):
        A(f"v_readlane_b32 s12, v{tv+1}, {j}")
        A("s_min_u32 s54, s54, s12")
    A(f"s_cmp_lt_u32 {seg_sgpr}, s54")
    A(f"s_cbranch_scc0 {loop}")
    A.label(ok)

def r_main(A, fast, nkv, kvg0, nsteps=64):
    st = "" if fast else "sc1"
    sfx = "f" if fast else "s"
    D = Lds(A)
    TR = EXP.get('trace', [])
    def tr(name):
        if name in TR:
            i = TR.index(name)
            A(f"{'s_memrealtime' if EXP.get('real') else 's_memtime'} s[{64+2*i}:{65+2*i}]")
    A("s_mov_b32 s24, 0")
    A("s_mov_b32 s34, 9216")
    A("s_mov_b32 s35, 0")
    A("s_mov_b32 s54, 0")
    if TR or EXP.get('rt'):
        for i in range(22 if TR else 16): A(f"s_mov_b32 s{64+i}, 0")
    tl(A, 2)
    A("s_mov_b32 s25, 1")
    kv_wait(A, "s25", nkv, kvg0, 12)
    tl(A, 3)
    if EXP.get('rt'):
        A("s_memrealtime s[80:81]")
        A("s_memtime s[96:97]")
    SW = dict(swap_tab()); SWO = {k: n for n, k in swap_tab()}
    LW = [n for n in range(16) if n not in SW]
    cur = [0]
    def lds_frag(n, r, tag, areg=WKB):
        off = wk_off(n); base = (off // 65536) * 65536
        if base and cur[0] != base:
            A(f"v_add_u32 v{areg}, {base:#x}, v{T16}")
            cur[0] = base
        ar = T16 if base == 0 else areg
        D.op(f"ds_read_b128 {v(r, 4)}, v{ar} offset:{off - base}")
        D.op(f"ds_read_b128 {v(r + 4, 4)}, v{ar} offset:{off - base + 4096}", tag)
    RSH = (3 - (len(LW) - 1) % 3) % 3
    def wslot(i): return WRING + ((i + RSH) % 3) * 8
    def wk_read(i):
        if i < 3: cur[0] = 0
        lds_frag(LW[i], wslot(i), ('wk', i))
    def spill_read(r):
        D.op(f"ds_read_b32 v{r}, v{QKW} offset:{KL0}")
        D.op(f"ds_read_b32 v{r+1}, v{QKW} offset:{KL0 + QSTR}")
        D.op(f"ds_read2_b32 {v(r + 2, 2)}, v{QKW} offset0:0 offset1:{QSTR // 4}", 'spill')
    def zero_qk(lo=ACCQ, hi=ACCQ + 16):
        for r in range(lo, hi, 2): A(f"v_mov_b64 {v(r, 2)}, 0")
    for n in sorted(range(3), key=wslot): wk_read(n)
    add64(A, 38, S_WS, WS_STAMP + 0x8000)
    add64(A, 58, 88, 1 << 19)
    zero_qk()
    D.waitall()
    top = f"L_rtop_{sfx}"
    A.label(top)
    A("s_barrier")
    tr('b1')
    def mem_read(ks, r, tag):
        D.op(f"ds_read_b128 {v(r, 4)}, v{MEMR} offset:{L_MEM + ks * 1024}", tag)
    def mslot(p): return MRING + (p % 3) * 4
    A("s_mov_b32 m0, s62")
    for p in range(3): mem_read(ORD[p], mslot(p), ('m', p))
    A(f"global_load_lds_dwordx4 v{L16}, s[32:33]")
    A(f"global_load_lds_dwordx4 v{L16}, s[32:33] offset:1024")
    A("s_mov_b32 m0, s63")
    loc = {('m', 8): mslot(8), ('m', 7): mslot(7), ('m', 6): mslot(6)}
    NSL = 3 if nkv else 2
    def sread(tag, r):
        loc[tag] = r
        if tag[0] == 'q': D.op(f"ds_read_b128 {v(r, 4)}, v{QR} offset:{tag[1] * 64}", tag)
        elif tag[0] == 'km': D.op(f"ds_read_b128 {v(r, 4)}, v{QR} offset:{KL0 + tag[1] * 64}", tag)
        elif tag[0] == 'kx': D.op(f"ds_read_b128 {v(r, 4)}, v{L16} offset:{L_KX + (tag[1] * 4 + tag[2]) * 1024}", tag)
        elif tag[0] == 'm': mem_read(ORD[tag[1]], r, tag)
        elif tag[0] == 'vx':
            if tag[1] == 0: A(f"s_waitcnt vmcnt({NSL})")
            D.op(f"ds_read_b128 {v(r, 4)}, v{T16} offset:{L_VX + tag[1] * 4096}", tag)
    def smf(acc, ar, w): A(f"{SMF} {v(acc, 4)}, {v(ar, 4)}, {u(w, 8)}, v{IDX}")
    V0S = EXP.get('v0s', 2)
    ext = {1: f"global_load_lds_dwordx4 v{L16}, s[86:87]\ns_add_u32 m0, s63, 3072",
           3: f"global_load_lds_dwordx4 v{L16}, s[86:87] offset:1024\ns_mov_b32 m0, {L_JUNK}",
           4 * V0S - 3: f"global_store_dwordx4 v{T16}, {v(ACCV0, 4)}, s[38:39] sc1",
           4 * V0S - 1: f"v_lshlrev_b32 v{ACCV0}, 2, v{T16}\nv_mov_b64 {v(ACCV0 + 2, 2)}, 0",
           4 * V0S + 1: f"global_load_lds_dword v{ACCV0}, s[58:59]\nv_mov_b64 {v(ACCV0, 2)}, 0\ns_mov_b32 m0, {L_QL + 256}"}
    if nkv: ext[4 * V0S + 4] = f"s_mov_b64 exec, 1\nglobal_load_lds_dword v{L16}, s[18:19] sc1\ns_mov_b64 exec, -1"
    if EXP.get('noslow'):
        ext[4 * V0S - 3] = f"global_store_dwordx4 v{T16}, {v(ACCV0, 4)}, s[50:51]"
        ext[4 * V0S + 1] = ext[4 * V0S + 1].replace("s[58:59]", "s[88:89]")
    sb_ = Asm()
    sb_("s_lshl_b32 s13, s24, 17")
    add64(sb_, 38, 50, "s13")
    sb_("s_add_u32 s25, s24, 2")
    sb_(f"s_min_u32 s25, s25, {nsteps - 1}")
    sb_("s_lshl_b32 s13, s25, 19")
    add64(sb_, 58, 88, "s13")
    add64(sb_, 86, 86, 0 if EXP.get('noslow') else 1 << 19)
    add64(sb_, 32, 32, 0 if EXP.get('noslow') else 1 << 19)
    add64(sb_, 14, 30, "s34")
    add64(sb_, 60, 30, "s35")
    add64(sb_, 20, 14, "s36")
    sb_("s_and_b32 s12, s24, 1")
    sb_("s_xor_b32 s13, s12, 1")
    sb_("s_xor_b32 s47, s12, s40")
    sb_("s_add_u32 s24, s24, 1")
    sb_("s_mov_b32 s35, s34")
    sb_("s_add_u32 s34, s34, 9216")
    sb_("s_cmp_eq_u32 s34, 27648")
    sb_("s_cselect_b32 s34, 0, s34")
    sb_("s_mov_b32 s55, 0")
    sq = [i.text.strip() for i in sb_.ins]
    cnt_ = [0]
    side = []
    class Defer:
        def op(self, text, tag=None): side.append((text, tag))
    def flush_until(tag):
        while any(t == tag for _, t in side):
            x = side.pop(0)
            D.op(*x) if x[0].startswith('ds_') else A(x[0])
    GAPN = EXP.get('gapn', 2)
    def smfs(acc, ar, w, need=()):
        for t in need:
            flush_until(t); D.wait(t)
        smf(acc, ar, w)
        cnt_[0] += 1
    def gap():
        n = 0
        if cnt_[0] in ext:
            A(ext[cnt_[0]]); n += 1
        while side and n < GAPN:
            x = side.pop(0)
            D.op(*x) if x[0].startswith('ds_') else A(x[0])
            n += 1
        while cnt_[0] > 4 * V0S + 4 and sq and n < GAPN:
            A(sq.pop(0)); n += 1
    def d_wk(i):
        off = wk_off(LW[i]); base = (off // 65536) * 65536
        if base and cur[0] != base:
            side.append((f"v_add_u32 v{WKB}, {base:#x}, v{T16}", None)); cur[0] = base
        ar = T16 if base == 0 else WKB
        side.append((f"ds_read_b128 {v(wslot(i), 4)}, v{ar} offset:{off - base}", None))
        side.append((f"ds_read_b128 {v(wslot(i) + 4, 4)}, v{ar} offset:{off - base + 4096}", ('wk', i)))
    def d_kx(kt, j, r):
        loc[('kx', kt, j)] = r
        side.append((f"ds_read_b128 {v(r, 4)}, v{L16} offset:{L_KX + (kt * 4 + j) * 1024}", ('kx', kt, j)))
    cur[0] = 0
    for p in range(8):
        ks = ORD[p]
        m = mslot(p)
        smfs(ACCQ, m, WQ(ks, 0), [('m', p)]); gap()
        for b in range(2):
            n = 2 * p + b
            if n in SW: smfs(ACCK + 4 * b, m, wo_reg(SW[n]))
            else:
                i = LW.index(n)
                smfs(ACCK + 4 * b, m, wslot(i), [('wk', i)])
                if i + 3 < len(LW): d_wk(i + 3)
            if b == 1 and p + 3 < 9:
                side.append((f"ds_read_b128 {v(mslot(p), 4)}, v{MEMR} offset:{L_MEM + ORD[p + 3] * 1024}", ('m', p + 3)))
            if n == 12:
                side.append((f"s_waitcnt vmcnt({NSL + 2})", None))
                side.append(("s_barrier", None))
            if n == 13: d_kx(0, 0, 48); d_kx(1, 0, 52)
            if n == 14: d_kx(0, 1, 56); d_kx(1, 1, 60)
            gap()
            if b == 0:
                smfs(ACCQ + 4, m, WQ(ks, 1)); gap()
                if p >= V0S: smfs(ACCV0, m, WV(ks, 0)); gap()
        tr(f'a{p+1}')
    assert not side, side
    sread(('m', 5), 44)
    D.wait(('m', 8))
    m = mslot(8); ks = ORD[8]
    smfs(ACCQ, m, WQ(ks, 0)); gap(); smfs(ACCQ + 4, m, WQ(ks, 1))
    for o in sq: A(o)
    A(f"v_mov_b64 {v(ACCV1, 2)}, 0")
    smf(ACCK, m, WK8(0))
    A(f"v_mov_b64 {v(ACCV1 + 2, 2)}, 0")
    smf(ACCK + 4, m, WK8(1))
    A(f"v_mov_b32 v{TMPC}, s47")
    smf(ACCV0, m, WV(ks, 0))
    tr('a9')
    fill = [(p, 1) for p in range(8, V0S - 1, -1)]
    for p in range(V0S - 1, -1, -1): fill += [(p, 1), (p, 0)]
    def filler(cnt=1):
        for _ in range(cnt):
            if fill:
                p, b = fill.pop(0)
                D.wait(('m', p))
                smf(ACCV1 if b else ACCV0, loc[('m', p)], WV(ORD[p], b))
    for acc, lo in ((ACCQ, 0), (ACCK, KL0)):
        for b in range(2):
            A(f"v_add_f32 v{acc+4*b}, v{acc+4*b}, v{acc+4*b+1}")
            A(f"v_add_f32 v{acc+4*b+2}, v{acc+4*b+2}, v{acc+4*b+3}")
        A(f"v_cvt_pk_bf16_f32 v{acc+1}, v{acc}, v{acc+4}")
        A(f"v_cvt_pk_bf16_f32 v{acc+3}, v{acc+2}, v{acc+6}")
        if lo == 0: D.op(f"ds_write2_b32 v{QKW}, v{acc+1}, v{acc+3} offset0:0 offset1:{QSTR // 4}")
        else:
            D.op(f"ds_write_b32 v{QKW}, v{acc+1} offset:{lo}")
            D.op(f"ds_write_b32 v{QKW}, v{acc+3} offset:{lo + QSTR}", 'qkw')
    tr('qkw')
    filler(1)
    sread(('m', 4), 16); sread(('m', 3), 24); sread(('m', 2), mslot(8))
    filler(3)
    D.wait('qkw')
    A("s_barrier")
    tr('b2')
    T0, T1, T2 = 12, 16, 20
    sread(('q', 0), mslot(7)); sread(('km', 0), mslot(6)); sread(('q', 1), 44)
    filler(2)
    sread(('km', 1), 24)
    filler(1 if V0S < 3 else 2)
    sread(('q', 2), mslot(8))
    pend = [('kx', 0, 2), ('kx', 1, 2), ('km', 2), ('q', 3), ('kx', 0, 3), ('kx', 1, 3), ('km', 3),
            ('m', 1), ('m', 0), ('vx', 0), ('vx', 1)]
    free = []
    for j in range(4):
        for T, tag in ((T0, ('kx', 0, j)), (T1, ('kx', 1, j)), (T2, ('km', j))):
            D.wait(tag); D.wait(('q', j))
            A(f"{MF32} {v(T, 4)}, {v(loc[tag], 4)}, {v(loc[('q', j)], 4)}, {v(T, 4) if j else 0}")
            if pend: sread(pend.pop(0), loc[tag])
            else: free.append(loc[tag])
        if pend: sread(pend.pop(0), loc[('q', j)])
        else: free.append(loc[('q', j)])
    tr('s_done')
    BX, Z, DA, DB = free[0], free[1], free[2], free[3]
    filler(2)
    M, TT, SUM = 16, 17, 18
    VMR = 22
    AO = 28
    busy = set()
    for b_ in (BX, Z, DA, DB, loc[('vx', 0)], loc[('vx', 1)], ACCV1, loc[('m', 0)]): busy |= set(range(b_, b_ + 4))
    zq = [r for r in range(AO, AO + 36, 2) if r not in busy]
    late = set(range(DA, DA + 4)) | set(range(DB, DB + 4))
    zm = [r for r in range(AO, AO + 36, 2) if r in busy and r not in late]
    zl = [r for r in range(AO, AO + 36, 2) if r in late]
    def zero(cnt=1):
        for _ in range(cnt):
            if zq: A(f"v_mov_b64 {v(zq.pop(0), 2)}, 0")
    A(f"v_mov_b32 v{Z+1}, 0")
    A(f"v_mov_b32 v{Z+2}, 0")
    for r in range(4): A(f"v_mov_b32_dpp v{T0+r}, v{T1+r} {IDQ} row_mask:0xf bank_mask:0xc")
    A(f"v_mov_b32_dpp v{T2+2}, v{T2+3} {IDQ} row_mask:0xf bank_mask:0xc")
    A(f"v_mov_b32_dpp v{T2}, v{T2+1} {IDQ} row_mask:0x3 bank_mask:0xc")
    A(f"v_max3_f32 v{M}, v12, v13, v14")
    zero(1)
    A(f"v_mov_b32_dpp v{T2}, v{T2+2} {IDQ} row_mask:0xc bank_mask:0xf")
    A(f"v_max3_f32 v{M}, v{M}, v15, v20")
    tr('max0')
    filler(1); zero(1)
    A(f"v_max_f32_dpp v{M}, v{M}, v{M} {ROR8}")
    A(f"v_mov_b32 v{TT}, v{M}")
    filler(1); zero(1)
    assert not fill
    A(f"v_permlane16_swap_b32 v{M}, v{TT}")
    A(f"v_max_f32 v{M}, v{M}, v{TT}")
    A(f"v_mov_b32 v{TT}, v{M}")
    zero(2)
    A(f"v_permlane32_swap_b32 v{M}, v{TT}")
    A(f"v_max_f32 v{M}, v{M}, v{TT}")
    A(f"v_mul_f32 v{M}, s46, v{M}")
    tr('max1')
    for e in (12, 13, 14, 15, 20): A(f"v_fma_f32 v{e}, v{e}, s46, -v{M}")
    for e in (12, 13, 14, 15): A(f"v_exp_f32 v{e}, v{e}")
    A(f"v_cvt_pk_bf16_f32 v{BX}, v12, v13")
    A(f"v_cvt_pk_bf16_f32 v{BX+1}, v14, v15")
    A("v_exp_f32 v20, v20")
    A(f"v_mov_b32_dpp v{BX+2}, v{BX} {ROR8}")
    A(f"v_mov_b32_dpp v{BX+3}, v{BX+1} {ROR8}")
    A(f"v_mov_b32_dpp v21, v20 {ROR8}")
    A(f"v_add_f32 v{ACCV0}, v{ACCV0}, v{ACCV0+1}")
    D.wait(('vx', 1))
    tr('pv0')
    A(f"{MF32} {v(DA, 4)}, {v(loc[('vx', 0)], 4)}, {v(BX, 4)}, 0")
    A(f"v_add_f32 v{ACCV0+2}, v{ACCV0+2}, v{ACCV0+3}")
    A(f"v_add_f32 v{ACCV1}, v{ACCV1}, v{ACCV1+1}")
    A(f"{MF32} {v(DB, 4)}, {v(loc[('vx', 1)], 4)}, {v(BX, 4)}, 0")
    A(f"v_add_f32 v{ACCV1+2}, v{ACCV1+2}, v{ACCV1+3}")
    A(f"v_cvt_pk_bf16_f32 v{VMR}, v{ACCV0}, v{ACCV0+2}")
    A(f"v_cvt_pk_bf16_f32 v{VMR+1}, v{ACCV1}, v{ACCV1+2}")
    A(f"v_cvt_pk_bf16_f32 v{Z}, v20, v21")
    A(f"v_cvt_pk_bf16_f32 v{Z+3}, v20, v21")
    A(f"v_add_f32 v{SUM}, v12, v13")
    A(f"{MF16} {v(DA, 4)}, {v(VMR, 2)}, {v(Z, 2)}, {v(DA, 4)}")
    A(f"v_add_f32 v{TT}, v14, v15")
    A(f"v_add_f32 v{SUM}, v{SUM}, v20")
    A(f"{MF16} {v(DB, 4)}, {v(VMR, 2)}, {v(Z + 2, 2)}, {v(DB, 4)}")
    tr('pv1')
    A(f"v_add_f32 v{SUM}, v{SUM}, v{TT}")
    zq += zm
    zero(2)
    A(f"v_add_f32_dpp v{SUM}, v{SUM}, v{SUM} {ROR8}")
    A(f"v_mov_b32 v{TT}, v{SUM}")
    zero(2)
    A(f"v_permlane16_swap_b32 v{SUM}, v{TT}")
    A(f"v_add_f32 v{SUM}, v{SUM}, v{TT}")
    A(f"v_mov_b32 v{TT}, v{SUM}")
    zero(2)
    A(f"v_permlane32_swap_b32 v{SUM}, v{TT}")
    A(f"v_add_f32 v{SUM}, v{SUM}, v{TT}")
    A(f"v_rcp_f32 v{SUM}, v{SUM}")
    tr('rcp')
    zero(1)
    for k, Dx in enumerate((DA, DB)):
        for r in (0, 2): A(f"v_pk_mul_f32 {v(Dx + r, 2)}, {v(Dx + r, 2)}, {v(SUM, 2)} op_sel_hi:[1,0]")
    A(f"v_cvt_pk_bf16_f32 v12, v{DA}, v{DA+1}")
    A(f"v_cvt_pk_bf16_f32 v13, v{DA+2}, v{DA+3}")
    A(f"v_cvt_pk_bf16_f32 v14, v{DB}, v{DB+1}")
    A(f"v_cvt_pk_bf16_f32 v15, v{DB+2}, v{DB+3}")
    D.op(f"ds_write_b128 v{OW}, v[12:15]")
    tr('ow')
    zq += zl
    zq.sort()
    PS, PL, WB = 8, 9, 20
    post = [f"v_mov_b64 {v(r, 2)}, 0" for r in zq]
    post += [f"v_lshrrev_b32 v{PL}, 2, v{L16}", f"v_and_b32 v{PS}, 0x300, v{L16}", f"v_bfe_u32 v10, v{L16}, 1, 7", f"v_lshl_or_b32 v{PS}, v{PS}, 4, v10"]
    for _ in range(EXP.get('zb', 4)): A(post.pop(0))
    A(f"s_cmp_eq_u32 s24, {nsteps}")
    D.waitall()
    A("s_barrier")
    tr('b3')
    OF = 12
    D.op(f"ds_read_b128 {v(OF, 4)}, v{MEMR} offset:{L_OL}", 'o0')
    D.op(f"ds_read_b128 {v(OF + 4, 4)}, v{MEMR} offset:{L_OL + 1024}", 'o1')
    A(post.pop(0))
    D.op(f"ds_write2_b32 v{QKW}, v{VMR}, v{VMR+1} offset0:0 offset1:{QSTR // 4}")
    A(f"s_cbranch_scc1 L_rlast_{sfx}")
    cur[0] = 0
    wq_ = sorted(SWO)
    def wo_next():
        if wq_:
            k_ = wq_.pop(0)
            lds_frag(SWO[k_], WB, ('wo', k_), areg=11)
    wo_next()
    for _ in range(EXP.get('za', 2)): A(post.pop(0))
    def acc(t): return AO + 4 * WORD.index(t)
    def wpost(t):
        c = acc(t)
        o = [f"v_add_f32 v{c}, v{c}, v{c+1}", f"v_add_f32 v{c+1}, v{c+2}, v{c+3}"]
        if t == 8:
            o.append(f"v_cvt_pk_bf16_f32 v{c+2}, v{c}, v{c+1}")
            o.append(f"v_bfi_b32 v{c+2}, 1, v{TMPC}, v{c+2}")
            o.append(f"global_store_dword v{PL}, v{c+2}, s[42:43] {st}")
        elif t & 1:
            p = acc(t - 1); sb = 26 if t == 1 else 88 + 2 * (t // 2)
            o.append(f"v_cvt_pk_bf16_f32 v{c+2}, v{p}, v{c}")
            o.append(f"v_cvt_pk_bf16_f32 v{c+3}, v{p+1}, v{c+1}")
            o.append(f"v_bfi_b32 v{c+2}, 1, v{TMPC}, v{c+2}")
            o.append(f"global_store_dwordx2 v{PS}, {v(c + 2, 2)}, s[{sb}:{sb+1}] {st}")
        return o
    D.wait('o0')
    tr('wo0')
    seq = [(t, k2) for t in WORD for k2 in range(2)]
    vq = list(post); since = {}
    slots = 0
    for k, (t, k2) in enumerate(seq):
        if k == 1: D.wait('o1')
        if k in SWO:
            D.wait(('wo', k))
            smf(acc(t), OF + 4 * k2, WB)
            wo_next()
            slots += 2
        else: smf(acc(t), OF + 4 * k2, WO(t, k2))
        slots += 1
        if k2 == 1: since[t] = slots
        for _ in range(1 if k < EXP.get('w1', 5) else EXP.get('wv', 3)):
            for tt_ in list(since):
                if slots - since[tt_] >= EXP.get('wlag', 8): vq += wpost(tt_); del since[tt_]
            if vq: A(vq.pop(0)); slots += 1
    tr('wo1')
    for tt_ in list(since): vq += wpost(tt_)
    for o in vq: A(o)
    tr('wo2')
    D.q = []
    SEL, RD, MS, LA = 12, 16, 8, 9
    LDB = (24, 40)
    A("s_cmp_ge_u32 s10, 2")
    A(f"s_cbranch_scc1 L_rw23_{sfx}")
    NB = 1
    for kind in (1, 2):
        lab = f"L_rp1{kind}_{sfx}"
        nl = 4 if kind == 1 else 1
        def loads(LD):
            if kind == 2: A(f"global_load_dwordx4 {v(LD, 4)}, v{LA}, s[28:29] sc1")
            else:
                for j in range(4): A(f"global_load_dwordx4 {v(LD + 4 * j, 4)}, v{L16}, s[28:29] offset:{j * 1024} sc1")
        P = Asm()
        if kind == 1:
            P(f"v_bfe_u32 v20, v{L16}, 4, 1")
            P(f"v_bfe_u32 v21, v{L16}, 5, 1")
            P(f"v_bfe_u32 v22, v{L16}, 6, 1")
            P("v_lshl_add_u32 v22, v21, 1, v22")
        else:
            P(f"v_bfe_u32 v20, v{L16}, 6, 1")
            P(f"v_bfe_u32 v22, v{L16}, 4, 2")
            P(f"v_bfe_u32 v23, v{L16}, 8, 1")
            P("v_xor_b32 v23, s12, v23")
        P("v_lshlrev_b32 v20, 4, v20")
        P("v_mov_b32 v21, 0x3f80")
        P("v_lshlrev_b32 v21, v20, v21")
        m_ = Asm(); ms_calc(m_, kind, MS, 10); mq = [i.text.strip() for i in m_.ins]
        for j in range(4):
            P(f"v_cmp_eq_u32 vcc, {j}, v22")
            for _ in range(2):
                if mq: P(mq.pop(0))
            P(f"v_cndmask_b32 v{SEL+j}, 0, v21, vcc")
        for o in mq: P(o)
        P("v_mov_b64 v[10:11], -1")
        pq = [i.text.strip() for i in P.ins]
        def fin():
            for r in range(4): A(f"v_add_f32_dpp v{RD+r}, v{RD+r}, v{RD+r} {ROR8}")
            if kind == 2:
                for r in range(4): A(f"v_add_f32_dpp v{RD+r}, v{RD+r}, v{RD+r} row_ror:4 row_mask:0xf bank_mask:0xf")
                for r in range(4): A(f"v_add_f32_dpp v{RD+r}, v{RD+r}, v{RD+r} quad_perm:[2,3,0,1] row_mask:0xf bank_mask:0xf")
            A(f"v_cvt_pk_bf16_f32 v20, v{RD}, v{RD+1}")
            A(f"v_cvt_pk_bf16_f32 v21, v{RD+2}, v{RD+3}")
        if kind == 1:
            for n in sorted(range(3), key=wslot): wk_read(n)
            LD = 24
            l1 = A.newlabel('L_k1')
            A("s_cmp_eq_u32 s10, 1")
            A(f"s_cbranch_scc1 {l1}")
            A(f"s_waitcnt vmcnt({EXP.get('k0', 1)})")
            tr('p1s')
            loads(LD)
            for o in pq: A(o)
            A(f"s_branch {lab}")
            A.label(l1)
            tp = EXP.get('tp', 6)
            for o in pq[:len(pq) - tp]: A(o)
            A(f"s_waitcnt vmcnt({EXP.get('k1', 0)})")
            for o in pq[len(pq) - tp:]: A(o)
            tr('p1s')
            loads(LD)
            A.label(lab)
            for j in range(4):
                A(f"s_waitcnt vmcnt({3 - j})")
                tr(f'p1w{j}')
                A(f"{MF32} {v(RD, 4)}, {v(SEL, 4)}, {v(LD + 4 * j, 4)}, {v(RD, 4) if j else 0}")
                A(f"v_bitop3_b32 v{20 + j}, v{LD+4*j}, v{LD+4*j+2}, {'s13' if j & 1 else 's12'} bitop3:0x7e")
                if j == 2: A("v_or3_b32 v20, v20, v21, v22")
            A.label(lab + "_c")
            A("v_bitop3_b32 v20, v20, v23, 1 bitop3:0xa8")
            A("v_cmp_ne_u32 vcc, 0, v20")
            fin()
            A(f"s_cbranch_vccz L_rp1ok_{sfx}")
            A("s_mov_b64 exec, vcc")
            loads(LD)
            A("s_mov_b64 exec, -1")
            A("s_add_u32 s55, s55, 1")
            A(f"s_cmp_gt_u32 s55, {SPIN_MAX}")
            A(f"s_cbranch_scc0 {lab}")
            A("s_branch L_exit")
        else:
            A.label(f"L_rw23_{sfx}")
            A("s_cmp_eq_u32 s10, 3")
            A(f"s_cbranch_scc1 L_rnt_{sfx}")
            lane_const(A, LA, lambda x: (x >> 5) * 256 + ((x >> 4) & 1) * 16, src=L16, nbits=10, tmp=10)
            NH = 1
            h = len(pq)
            for b in range(NH):
                loads(24 + 4 * b)
                for o in pq[b * h:(b + 1) * h]: A(o)
            A.label(lab)
            for b in range(NH):
                LD = 24 + 4 * b
                A(f"s_waitcnt vmcnt({NH - 1})")
                A(f"v_bitop3_b32 v20, v{LD}, v{LD+1}, v23 bitop3:0x7e")
                A(f"v_bitop3_b32 v21, v{LD+2}, v{LD+3}, v23 bitop3:0x7e")
                A("v_bitop3_b32 v20, v20, v21, 1 bitop3:0xa8")
                A("v_cmp_ne_u32 vcc, 0, v20")
                A(f"{MF32} {v(RD, 4)}, {v(SEL, 4)}, {v(LD, 4)}, 0")
                A(f"s_cbranch_vccz {lab}_ok")
                loads(LD)
                A("s_add_u32 s55, s55, 1")
            A(f"s_cmp_gt_u32 s55, {SPIN_MAX}")
            A(f"s_cbranch_scc0 {lab}")
            A("s_branch L_exit")
            A.label(lab + "_ok")
            D.q = []
            for n in sorted(range(3), key=wslot): wk_read(n)
            fin()
            A(f"s_branch L_rp1ok_{sfx}")
    def rest(force=False):
        if NB == 2 or force:
            for n in sorted(range(3), key=wslot): wk_read(n)
        spill_read(ACCV0)
    A.label(f"L_rnt_{sfx}")
    D.q = []
    rest(True)
    zero_qk()
    if nkv:
        A(f"v_mov_b32 v28, {L_QL + 256}")
        A("s_waitcnt vmcnt(5)")
        A("ds_read_b32 v28, v28")
        A("s_waitcnt lgkmcnt(0)")
        A("v_readfirstlane_b32 s12, v28")
        A("s_max_u32 s54, s54, s12")
    kv_wait(A, "s25", nkv, kvg0, 28)
    A.label(f"L_rmbok_{sfx}")
    A("s_barrier")
    A("s_waitcnt vmcnt(0)")
    A(f"s_branch L_rp2ok_{sfx}")
    A.label(f"L_rp1ok_{sfx}")
    tr('p1ok')
    A("s_mov_b64 exec, s[44:45]")
    A(f"global_store_dwordx2 v{MS}, v[20:21], s[14:15] {st}")
    A(f"global_store_dwordx2 v{MS}, v[10:11], s[60:61] {st}")
    A("s_mov_b64 exec, -1")
    if EXP.get('rt'): A("s_add_u32 s76, s76, s55")
    A("s_barrier")
    tr('b4')
    D.q = []
    def round2():
        A("s_mov_b32 m0, s57")
        A(f"global_load_lds_dwordx4 v{T16}, s[14:15] sc1")
        A("s_add_u32 m0, s57, 3072")
        A(f"global_load_lds_dwordx4 v{T16}, s[20:21] sc1")
        A(f"global_load_lds_dwordx4 v{T16}, s[20:21] offset:3072 sc1")
    A("s_mov_b32 s55, 0")
    for _ in range(EXP.get('d2', 0)): A("s_nop 3")
    tr('p2s')
    okl = top if not (TR or EXP.get('rt')) else f"L_rp2ok_{sfx}"
    def loads2():
        for j in range(3):
            A(f"global_load_dwordx4 {v(MRING + 4 * j, 4)}, v{T16}, s[20:21] offset:{(j - 1) * 3072} sc1")
    Z2 = EXP.get('z2', 6)
    rest()
    zero_qk(12, 12 + 2 * Z2)
    loads2()
    zero_qk(12 + 2 * Z2, 28)
    A.label(f"L_rp2_{sfx}")
    A("s_waitcnt vmcnt(2)")
    tr('p2w0')
    A(f"ds_write_b128 v{T16}, v[28:31] offset:{L_MEM}")
    A(f"v_max_u32 v{TMPC}, v28, v30")
    A("s_waitcnt vmcnt(1)")
    A(f"v_max3_u32 v{TMPC}, v{TMPC}, v32, v34")
    A(f"ds_write_b128 v{T16}, v[32:35] offset:{L_MEM + 3072}")
    A("s_waitcnt vmcnt(0)")
    A(f"v_max3_u32 v{TMPC}, v{TMPC}, v36, v38")
    A(f"v_cmp_eq_u32 vcc, -1, v{TMPC}")
    A(f"ds_write_b128 v{T16}, v[36:39] offset:{L_MEM + 6144}")
    A(f"s_cbranch_vccz L_rp2ok_{sfx}")
    A("s_mov_b64 exec, vcc")
    loads2()
    A("s_mov_b64 exec, -1")
    A("s_add_u32 s55, s55, 1")
    A(f"s_cmp_gt_u32 s55, {SPIN_MAX}")
    A(f"s_cbranch_scc0 L_rp2_{sfx}")
    A("s_branch L_exit")
    A.label(f"L_rp2ok_{sfx}")
    tr('p2ok')
    if EXP.get('rt'): A("s_add_u32 s77, s77, s55")
    D.waitall()
    if TR:
        A("s_cmp_lg_u32 s24, 41")
        A(f"s_cbranch_scc1 {top}")
        A("s_lshl_b32 s12, s9, 2")
        A("s_add_u32 s12, s12, s10")
        A("s_lshl_b32 s12, s12, 6")
        A(f"s_add_u32 s12, s12, {WS_STAMP + 16384}")
        A(f"v_mov_b32 v{TMPC}, s12")
        for q in range(11):
            A(f"v_mov_b32 v28, s{64 + 2 * q}")
            A(f"global_store_dword v{TMPC}, v28, s[4:5] offset:{4 * q}")
            A("s_waitcnt vmcnt(0)")
    A(f"s_branch {top}")
    A.label(f"L_rlast_{sfx}")
    D.waitall()
    spill_read(24)
    D.waitall()
    A(f"global_store_dwordx4 v{T16}, v[24:27], s[38:39] sc1")
    tl(A, 4)
    if EXP.get('rt'):
        A("s_memrealtime s[82:83]")
        A("s_memtime s[98:99]")
        A("s_waitcnt lgkmcnt(0)")
        A("s_sub_u32 s75, s98, s96")
        A("s_sub_u32 s78, s80, s84")
        A("s_sub_u32 s79, s82, s80")
        A("s_lshl_b32 s12, s9, 2")
        A("s_add_u32 s12, s12, s10")
        A("s_lshl_b32 s12, s12, 6")
        A(f"s_add_u32 s12, s12, {WS_STAMP}")
        A("v_mov_b32 v12, s12")
        for q in range(4):
            for r in range(4): A(f"v_mov_b32 v{16+r}, s{64 + 4 * q + r}")
            A(f"global_store_dwordx4 v12, v[16:19], s[4:5] offset:{16 * q}")
            A("s_waitcnt vmcnt(0)")
    A("s_branch L_exit")

def role_r(A, restart, nkv, kvg0):
    if EXP.get('rt'):
        A("s_memrealtime s[84:85]")
        A("s_waitcnt lgkmcnt(0)")
    r_setup(A)
    r_swap(A)
    tl(A, 1)
    mode_check(A, tv=12)
    r_consts(A)
    A("s_cmp_eq_u32 s11, 0")
    A("s_cbranch_scc1 L_r_slow")
    r_main(A, True, nkv, kvg0)
    A.label("L_r_slow")
    r_main(A, False, nkv, kvg0)
```

```python
from asmlib import *

KA_X, KA_MEM0, KA_WQ, KA_WK, KA_WV, KA_WO, KA_SEG, KA_BX, KA_WG, KA_WU, KA_WD, KA_C, KA_WMOD, KA_OUT, KA_DBG, KA_WS = [8 * i for i in range(16)]

WS_MOD   = 0x0
WS_KVPROG = 0x10000
WS_RPROG = 0x18000
WS_H2FLAG = 0x1A000
WS_XF    = 0x1C000
WS_HINT  = 0x1D000
WS_STAMP = 0x20000
WS_H     = 0x100000
WS_H2    = 0x400000
WS_X1    = 0x700000
WS_KV    = 0x1000000
WS_KVM   = 0x3000000
WS_RP    = 0x3A00000
WS_RM    = 0x3B00000
WS_XP    = 0x4000000
RP_SLOT = 72 * 32 * 128
XP_SLOT = 32 * 32 * 2304
SEG_H = 36864

DBG_TICKET = 0
DBG_CLR = 8
DBG_KCLR = 41
DBG_RLD = 42
DBG_KLD = 43
DBG_MODCNT = 8
DBG_HCNT = 40
DBG_ERR = 40

S_WS = 4
S_DBG = 6
S_GRP, S_MEM, S_WAVE, S_FAST = 8, 9, 10, 11
SPIN_MAX = 400000

class Lds:
    def __init__(self, A):
        self.A = A; self.q = []
    def op(self, text, tag=None):
        self.A(text); self.q.append(tag)
    def wait(self, tag):
        if tag not in self.q: return
        i = len(self.q) - 1 - self.q[::-1].index(tag)
        n = len(self.q) - 1 - i
        self.A(f"s_waitcnt lgkmcnt({min(n, 15)})")
        if n > 15:
            self.q = self.q[len(self.q) - 15:]
        else:
            self.q = self.q[i + 1:]
    def waitall(self):
        self.A("s_waitcnt lgkmcnt(0)"); self.q = []

def add64(A, dst, src, off):
    A(f"s_add_u32 s{dst}, s{src}, {off}")
    A(f"s_addc_u32 s{dst+1}, s{src+1}, 0")

def arr_word(g): return (g & 3) + 32 * (g >> 2)
def preamble(A, nwg=256):
    A(f"s_cmp_ge_u32 s2, {nwg}")
    A("s_cbranch_scc1 L_exit")
    A(f"s_load_dwordx4 s[4:7], s[0:1], {KA_DBG}")
    A("s_getreg_b32 s3, hwreg(HW_REG_XCC_ID, 0, 4)")
    A("v_lshrrev_b32 v1, 6, v0")
    A("v_readfirstlane_b32 s10, v1")
    A("s_and_b32 s8, s2, 7")
    A("s_lshr_b32 s9, s2, 3")
    A("v_and_b32 v1, 63, v0")
    A("s_waitcnt lgkmcnt(0)")
    A("s_mov_b64 s[12:13], s[4:5]")
    A("s_mov_b64 s[4:5], s[6:7]")
    A("s_mov_b64 s[6:7], s[12:13]")
    l2 = A.newlabel('L_pre')
    A("s_cmp_lg_u32 s10, 3")
    A(f"s_cbranch_scc1 {l2}")
    A("s_lshl_b32 s12, s2, 8")
    A(f"s_add_u32 s12, s12, {WS_KVPROG}")
    A("v_lshl_add_u32 v2, v1, 2, s12")
    A("v_mov_b32 v3, 0")
    A("global_store_dword v2, v3, s[4:5] sc1")
    A(f"s_bfe_u32 s12, s2, {0x10000 if FORCE.get('tm') else 0x10002}")
    A("s_xor_b32 s12, s12, 1")
    for r in range(4): A(f"v_mov_b32 v{4+r}, s12")
    A("s_lshl_b32 s12, s2, 10")
    A(f"s_add_u32 s12, s12, {WS_RP}")
    A("v_lshl_add_u32 v2, v1, 4, s12")
    A("global_store_dwordx4 v2, v[4:7], s[4:5] sc1")
    for r in range(4): A(f"v_mov_b32 v{8+r}, -1")
    l1 = A.newlabel('L_pre1')
    A("s_cmp_ge_u32 s2, 32")
    A(f"s_cbranch_scc1 {l1}")
    A("s_bfe_u32 s12, s2, 0x10001")
    A("s_xor_b32 s12, s12, 1")
    for r in range(4): A(f"v_mov_b32 v{12+r}, s12")
    A("v_add_u32 v3, 0x40000, v2")
    A("global_store_dwordx4 v3, v[12:15], s[4:5] sc1")
    A.label(l1)
    A(f"v_add_u32 v3, {WS_RM - WS_RP}, v2")
    A("global_store_dwordx4 v3, v[8:11], s[4:5] sc1")
    A("s_mul_i32 s12, s3, s3")
    A("s_lshl_b32 s12, s12, 10")
    A("s_add_u32 s12, s12, s3")
    A("s_lshl_b32 s12, s12, 8")
    A("s_add_u32 s12, s12, 1")
    A("v_mov_b32 v3, s12")
    A("s_and_b32 s12, s8, 3")
    A("s_lshr_b32 s13, s8, 2")
    A("s_lshl_b32 s13, s13, 5")
    A("s_add_u32 s12, s12, s13")
    A("s_lshl_b32 s12, s12, 2")
    A("v_mov_b32 v2, s12")
    A("s_waitcnt vmcnt(0)")
    A("s_mov_b64 exec, 1")
    A("global_atomic_add v2, v3, s[6:7] sc1")
    A("s_mov_b64 exec, -1")
    A.label(l2)

def mode_check(A, tv=1, ts=12, force_slow=False, pre=None):
    done = A.newlabel('L_mc_done'); loop = A.newlabel('L_mc')
    lane_const(A, tv, lambda t: arr_word(t & 7) * 4, tmp=tv + 1)
    A(f"s_mov_b32 s{ts}, 0")
    if pre is not None:
        A(f"v_mov_b32 v{tv+1}, v{pre}")
        A(f"v_and_b32 v{tv+2}, 0xff, v{tv+1}")
        A(f"v_cmp_ne_u32 vcc, 32, v{tv+2}")
        A(f"s_cbranch_vccnz {loop}")
        A(f"v_readfirstlane_b32 s54, v{pre+2}")
        A(f"s_branch {done}")
    A.label(loop)
    A(f"global_load_dword v{tv+1}, v{tv}, s[6:7] sc1")
    A(f"s_add_u32 s{ts}, s{ts}, 1")
    A(f"s_cmp_gt_u32 s{ts}, {SPIN_MAX}")
    A(f"s_cbranch_scc1 L_exit")
    A("s_waitcnt vmcnt(0)")
    A(f"v_and_b32 v{tv+2}, 0xff, v{tv+1}")
    A(f"v_cmp_ne_u32 vcc, 32, v{tv+2}")
    A(f"s_cbranch_vccz {done}")
    A("s_sleep 2")
    A(f"s_branch {loop}")
    A.label(done)
    A(f"v_readlane_b32 s{ts}, v{tv+1}, s8")
    A(f"s_mul_i32 s{ts+1}, s3, s3")
    A(f"s_lshl_b32 s{ts+1}, s{ts+1}, 10")
    A(f"s_add_u32 s{ts+1}, s{ts+1}, s3")
    A(f"s_lshl_b32 s{ts+1}, s{ts+1}, 8")
    A(f"s_add_u32 s{ts+1}, s{ts+1}, 1")
    A(f"s_lshl_b32 s{ts+1}, s{ts+1}, 5")
    A(f"s_cmp_eq_u32 s{ts}, s{ts+1}")
    A(f"s_cselect_b32 s11, {0 if force_slow or FORCE['slow'] else 1}, 0")

FORCE = {'slow': False}
def counter_arrive(A, word, tv=1):
    l = A.newlabel('L_arr')
    A("s_cmp_lg_u32 s10, 0")
    A(f"s_cbranch_scc1 {l}")
    A(f"v_mov_b32 v{tv}, {word*4}")
    A(f"v_mov_b32 v{tv+1}, 1")
    A("s_mov_b64 exec, 1")
    A(f"global_atomic_add v{tv}, v{tv+1}, s[6:7] sc1")
    A("s_mov_b64 exec, -1")
    A.label(l)

def counter_wait(A, word, count, tv=1, ts=12, sleep=2):
    loop = A.newlabel('L_cw'); done = A.newlabel('L_cwd')
    A(f"v_mov_b32 v{tv}, {word*4}")
    A(f"s_mov_b32 s{ts}, 0")
    A.label(loop)
    A(f"global_load_dword v{tv+1}, v{tv}, s[6:7] sc1")
    A(f"s_add_u32 s{ts}, s{ts}, 1")
    A(f"s_cmp_gt_u32 s{ts}, {SPIN_MAX}")
    A(f"s_cbranch_scc1 L_exit")
    A("s_waitcnt vmcnt(0)")
    A(f"v_cmp_gt_u32 vcc, {count}, v{tv+1}")
    A(f"s_cbranch_vccz {done}")
    A(f"s_sleep {sleep}")
    A(f"s_branch {loop}")
    A.label(done)

def lane_const(A, dst, f, src=0, nbits=8, tmp=None, mode=None, acc=False):
    N = 1 << nbits
    f0 = f(0)
    def check(m):
        d = [(f(1 << k) ^ f0) if m == 'xor' else (f(1 << k) - f0) for k in range(nbits)]
        for x in range(N):
            y = f0
            for k in range(nbits):
                if x >> k & 1: y = (y ^ d[k]) if m == 'xor' else y + d[k]
            if y != f(x): return None
        return d
    for m in ([mode] if mode else ['add', 'xor']):
        d = check(m)
        if d is not None: break
    assert d is not None, "function not affine"
    assert tmp is not None and tmp != dst and dst != src
    work = dst
    if acc and m == 'xor':
        work = tmp + 1
    if acc and m == 'add':
        if f0: A(f"v_add_u32 v{dst}, {f0 & 0xffffffff:#x}, v{dst}")
    else:
        A(f"v_mov_b32 v{work}, {f0 & 0xffffffff:#x}")
    k = 0
    while k < nbits:
        if d[k] == 0: k += 1; continue
        n = 1
        while k + n < nbits and d[k + n] == d[k] << n: n += 1
        c = d[k]
        if c > 0 and c & (c - 1) == 0:
            sh = c.bit_length() - 1
            A(f"v_bfe_u32 v{tmp}, v{src}, {k}, {n}")
            if m == 'add': A(f"v_lshl_add_u32 v{work}, v{tmp}, {sh}, v{work}")
            else:
                A(f"v_lshlrev_b32 v{tmp}, {sh}, v{tmp}")
                A(f"v_xor_b32 v{work}, v{work}, v{tmp}")
        elif m == 'add' and 0 < c < (1 << 24):
            A(f"v_bfe_u32 v{tmp}, v{src}, {k}, {n}")
            A(f"v_mul_u32_u24 v{tmp}, {c:#x}, v{tmp}")
            A(f"v_add_u32 v{work}, v{work}, v{tmp}")
        else:
            n = 1
            A(f"v_bfe_i32 v{tmp}, v{src}, {k}, 1")
            A(f"v_and_b32 v{tmp}, {c & 0xffffffff:#x}, v{tmp}")
            A(f"v_{'xor_b32' if m == 'xor' else 'add_u32'} v{work}, v{work}, v{tmp}")
        k += n
    if work != dst:
        A(f"v_add_u32 v{dst}, v{dst}, v{work}")


MF32 = "v_mfma_f32_16x16x32_bf16"
MF16 = "v_mfma_f32_16x16x16_bf16"

def ring_load(A, chunks, nslots=8, lbase=0, tmp=28, sb=26):
    A(f"s_lshl_b32 s{sb}, s10, 12")
    if lbase: A(f"s_add_u32 s{sb}, s{sb}, {lbase}")
    def issue(j):
        c = chunks[j]
        add64(A, 12, c['ptr'], c['off'])
        for ip in range(4):
            A(f"s_add_u32 m0, s{sb}, {(j % nslots) * 16384 + ip * 1024}")
            A(f"global_load_lds_dwordx4 v{c['vb']+ip}, s[12:13]")
    n = len(chunks); ah = nslots - 1
    for j in range(min(ah, n)): issue(j)
    for j in range(n):
        A(f"s_waitcnt vmcnt({4 * (min(n - 1, j + ah - 1) - j)})")
        A("s_barrier")
        if j + ah < n: issue(j + ah)
        regs = sorted({r[1] for r in chunks[j]['reads']})
        for k, ar in enumerate(regs): A(f"v_add_u32 v{tmp+k}, {(j % nslots) * 16384 + lbase}, v{ar}")
        for dst, ar, imm in chunks[j]['reads']:
            A(f"ds_read_b64_tr_b16 {u(dst, 2)}, v{tmp + regs.index(ar)} offset:{imm}")
        if 'post' in chunks[j]: chunks[j]['post']()
        A("s_waitcnt lgkmcnt(0)")
    A("s_barrier")

def swzA(row): return 2 * ((row & 3) | ((row >> 3) & 1) << 2)
def swzB(row): return 2 * (((row >> 1) & 1) | ((row >> 2) & 1) << 1)
def dense256_consts(A, vb, tra, stride, tmp):
    for ip in range(4):
        lane_const(A, vb + ip, lambda t: (16 * (t >> 6) + 4 * ip + ((t & 63) >> 4)) * stride, tmp=tmp)
        lane_const(A, vb + ip, lambda t: ((t & 15) ^ swzA(16 * (t >> 6) + 4 * ip + ((t & 63) >> 4))) * 16, tmp=tmp, acc=True)
    for b in range(2):
        def f(t):
            w, l = t >> 6, t & 63
            row = 8 * (l >> 4) + ((l >> 2) & 3); c = l & 3
            return row * 256 + (((4 * w + 2 * b + (c >> 1)) ^ swzA(row)) * 16) + (c & 1) * 8
        lane_const(A, tra + b, f, tmp=tmp)
def dense256_reads(dstf, tra, c):
    return [(dstf(2 * c + kl, b) + 2 * hq, tra + b, (32 * kl + 4 * hq) * 256) for kl in range(2) for b in range(2) for hq in range(2)]
def dense128_consts(A, vb, tra, tmp):
    for ip in range(4):
        lane_const(A, vb + ip, lambda t: (32 * (t >> 6) + 8 * ip + ((t & 63) >> 3)) * 1152, tmp=tmp)
        lane_const(A, vb + ip, lambda t: ((t & 7) ^ swzB(32 * (t >> 6) + 8 * ip + ((t & 63) >> 3))) * 16, tmp=tmp, acc=True)
    def f(t):
        w, l = t >> 6, t & 63
        row = 4 * (l >> 4) + ((l >> 2) & 3); c = l & 3
        return row * 128 + (((2 * w + (c >> 1)) ^ swzB(row)) * 16) + (c & 1) * 8
    lane_const(A, tra, f, tmp=tmp)
def dense128_reads(dstf, tra, t):
    return [(dstf(t, j) + 2 * hq, tra, (32 * j + 16 * hq) * 128) for j in range(4) for hq in range(2)]

def seg_dma(A, vT16, src, ldsreg):
    A(f"s_mov_b64 s[12:13], s[{src}:{src+1}]")
    for j in range(9):
        A(f"s_add_u32 m0, s{ldsreg}, {j * 4096}")
        A(f"global_load_lds_dwordx4 v{vT16}, s[12:13]")
        if j < 8: add64(A, 12, 12, 4096)

def flag_wait(A, addr_v, base, val_s, tv, ts, sleep=1):
    loop = A.newlabel('L_fw'); done = A.newlabel('L_fwd')
    A(f"s_mov_b32 s{ts}, 0")
    A.label(loop)
    A(f"global_load_dword v{tv}, v{addr_v}, s[{base}:{base+1}] sc1")
    A(f"s_add_u32 s{ts}, s{ts}, 1")
    A(f"s_cmp_gt_u32 s{ts}, {SPIN_MAX}")
    A("s_cbranch_scc1 L_exit")
    A("s_waitcnt vmcnt(0)")
    A(f"v_cmp_gt_u32 vcc, s{val_s}, v{tv}")
    A(f"s_cbranch_vccz {done}")
    if sleep: A(f"s_sleep {sleep}")
    A(f"s_branch {loop}")
    A.label(done)

def xsum(A, r, t, op="v_add_f32", bits=(0, 1, 2, 3, 4, 5)):
    for b in bits:
        if b == 0: A(f"{op}_dpp v{r}, v{r}, v{r} quad_perm:[1,0,3,2] row_mask:0xf bank_mask:0xf")
        elif b == 1: A(f"{op}_dpp v{r}, v{r}, v{r} quad_perm:[2,3,0,1] row_mask:0xf bank_mask:0xf")
        elif b == 2: A(f"{op}_dpp v{r}, v{r}, v{r} row_ror:4 row_mask:0xf bank_mask:0xf")
        elif b == 3: A(f"{op}_dpp v{r}, v{r}, v{r} row_ror:8 row_mask:0xf bank_mask:0xf")
        else:
            A(f"v_mov_b32 v{t}, v{r}")
            A(f"v_permlane{16 if b == 4 else 32}_swap_b32 v{r}, v{t}")
            A(f"{op} v{r}, v{r}, v{t}")

def f32bits(x):
    import struct
    return struct.unpack('<I', struct.pack('<f', x))[0]
def rnd1(A, r, t=None):
    A(f"v_cvt_pk_bf16_f32 v{r}, v{r}, v{r}")
    A(f"v_lshlrev_b32 v{r}, 16, v{r}")
def rnd2(A, r):
    A(f"v_cvt_pk_bf16_f32 v{r+1}, v{r}, v{r+1}")
    A(f"v_lshlrev_b32 v{r}, 16, v{r+1}")
    A(f"v_and_b32 v{r+1}, 0xffff0000, v{r+1}")

TL = {'on': False}
DBGMAP = {(0, 1): 4, (0, 3): 5, (0, 4): 6, (1, 1): 7, (1, 2): 9, (2, 1): 10, (2, 4): 11, (5, 7): 12, (5, 1): 13, (5, 4): 14, (2, 7): 15}
def tl(A, slot, tv=60):
    if TL.get('dbg'):
        if slot == 0:
            A("s_memrealtime s[98:99]")
            A("s_waitcnt lgkmcnt(0)")
            return
        for (g, sl), wd in DBGMAP.items():
            if sl != slot: continue
            l = A.newlabel('L_tl')
            A(f"s_cmp_lg_u32 s8, {g}")
            A(f"s_cbranch_scc1 {l}")
            A("s_memrealtime s[100:101]")
            A(f"v_mov_b32 v{tv}, {wd * 4}")
            A("s_waitcnt lgkmcnt(0)")
            A("s_sub_u32 s100, s100, s98")
            A(f"v_mov_b32 v{tv+1}, s100")
            A("s_mov_b64 exec, 1")
            A(f"global_atomic_umax v{tv}, v{tv+1}, s[6:7] sc1")
            A("s_mov_b64 exec, -1")
            A.label(l)
        return
    if not TL['on']: return
    A("s_memrealtime s[100:101]")
    A("s_lshl_b32 s12, s8, 5")
    A("s_add_u32 s12, s12, s9")
    A("s_lshl_b32 s12, s12, 6")
    A(f"s_add_u32 s12, s12, {WS_STAMP + 0x30000 + slot * 4}")
    A(f"v_mov_b32 v{tv}, s12")
    A("s_waitcnt lgkmcnt(0)")
    A(f"v_mov_b32 v{tv+1}, s100")
    A(f"global_store_dword v{tv}, v{tv+1}, s[4:5]")
    A("s_waitcnt vmcnt(0)")

def kvm_clear(A, idx_s):
    for r in range(4): A(f"v_mov_b32 v{8+r}, -1")
    A(f"s_mul_i32 s12, {idx_s}, {88 * 1024}")
    A(f"s_add_u32 s12, s12, {WS_KVM}")
    add64(A, 12, S_WS, "s12")
    A("v_lshlrev_b32 v3, 4, v0")
    for i in range(22):
        A("global_store_dwordx4 v3, v[8:11], s[12:13] sc1")
        if i < 21: add64(A, 12, 12, 4096)
    A("s_waitcnt vmcnt(0)")
    A("s_barrier")
    counter_arrive(A, DBG_KCLR, tv=4)
```

```python
from common import *
import math
PROW = 1152
ROWB = 32 * PROW
T16, L16, XS, XS8, XL, RW, XL8, L4 = range(8)
EXP = {}
TRN = ['top', 'go', 'mm', 'flag', 'op0', 'op1', 'ack', 'xf', 'red', 'end']
def tr(A, name):
    if not EXP.get('aftrace'): return
    if name not in TRN: TRN.append(name)
    i = TRN.index(name)
    assert i < 11
    A(f"s_memtime s[{80+2*i}:{81+2*i}]")
def tr_dump(A, seg):
    if not EXP.get('aftrace'): return
    l = A.newlabel('L_trd')
    A(f"s_cmp_lg_u32 s47, {seg}")
    A(f"s_cbranch_scc1 {l}")
    A("s_waitcnt lgkmcnt(0)")
    A("s_lshl_b32 s12, s8, 5")
    A("s_add_u32 s12, s12, s9")
    A("s_lshl_b32 s12, s12, 2")
    A("s_add_u32 s12, s12, s10")
    A("s_lshl_b32 s12, s12, 6")
    A(f"s_add_u32 s12, s12, {WS_STAMP + 0x10000}")
    A("v_mov_b32 v8, s12")
    for q in range(11):
        A(f"v_mov_b32 v9, s{80 + 2 * q}")
        A(f"global_store_dword v8, v9, s[4:5] offset:{4 * q}")
        A("s_waitcnt vmcnt(0)")
    A.label(l)

def af_consts(A, l_red):
    lane_const(A, L16, lambda t: (t & 63) * 16, tmp=12)
    lane_const(A, XS, lambda t: ((t >> 4) & 3) * 4 * ROWB + (t & 15) * 8 + (t >> 6) * 256, tmp=12)
    lane_const(A, XS8, lambda t: (t & 15) * ROWB + ((t >> 4) & 3) * 8 + (t >> 6) * 32 + 1024, tmp=12)
    lane_const(A, XL, lambda t: ((t >> 4) & 3) * PROW + (t >> 6) * 256 + (t & 15) * 16, tmp=12)
    lane_const(A, XL8, lambda t: (8 * (t >> 6) + ((t >> 3) & 7)) * PROW + 1024 + (t & 7) * 16, tmp=12)
    lane_const(A, RW, lambda t: l_red + (256 * ((t >> 3) & 1) + 16 * (t >> 6) + 2 * (t & 7) + ((t >> 4) & 1)) * 4, tmp=12)
    lane_const(A, L4, lambda t: (t & 63) * 4, tmp=12)
    A(f"s_mul_i32 s12, s8, {32 * ROWB}")
    A(f"s_add_u32 s12, s12, {WS_XP}")
    A(f"s_mul_i32 s13, s9, {PROW}")
    A("s_add_u32 s13, s13, s12")
    add64(A, 40, S_WS, "s13")
    A(f"s_mul_i32 s13, s9, {ROWB}")
    A("s_add_u32 s13, s13, s12")
    add64(A, 42, S_WS, "s13")
    A("s_lshl_b32 s12, s8, 7")
    A(f"s_add_u32 s12, s12, {WS_XF}")
    add64(A, 44, S_WS, "s12")
    A("s_mov_b32 s47, 0")

def post_flag(A, wave, off, st):
    l = A.newlabel('L_pf')
    A(f"s_cmp_lg_u32 s10, {wave}")
    A(f"s_cbranch_scc1 {l}")
    A("s_lshl_b32 s12, s9, 2")
    A("v_mov_b32 v8, s12")
    A("v_mov_b32 v9, s47")
    A("s_mov_b64 exec, 1")
    A(f"global_store_dword v8, v9, s[44:45] offset:{off} {st}")
    A("s_mov_b64 exec, -1")
    A.label(l)

def out_proj(A, st, wfrag, l_red, k16=None):
    D = Lds(A)
    FR, AC, NA_, G, W16, F16 = 8, 28, 6, 52, 68, 72
    tr(A, 'op0')
    A("s_add_u32 s47, s47, 1")
    A("s_xor_b32 s46, s47, s9")
    A("s_and_b32 s46, s46, 1")
    A("v_mov_b32 v24, s46")
    order = [8, 0, 1, 2, 3, 4, 5, 6, 7]
    seq = [(tt, t) for tt in range(2) for t in order]
    pend = []
    def slot(k): return AC + 4 * (k % NA_)
    def chk(k):
        regs = {('v', slot(k) + i) for i in range(4)}
        while any(Ins(line).rd & regs for _, o in pend for line in o.split('\n')):
            A(pend.pop(0)[1])
    def wreg(k): return (68, 70, 76, 78)[k & 3]
    def w16rd(k): D.op(f"ds_read_b64_tr_b16 {v(wreg(k), 2)}, v{k16[1]} offset:{seq[k][1] * 128}", ('w16', k))
    def m16(k):
        D.wait(('w16', k))
        a_, b_ = v(F16 + 2 * seq[k][0], 2), v(wreg(k), 2)
        if seq[k][1] == 8: a_, b_ = b_, a_
        A(f"{MF16} {v(slot(k), 4)}, {a_}, {b_}, {v(slot(k), 4)}")
    def post(grp, rdy):
        for k in grp:
            tt, t = seq[k]; c = slot(k); cp = slot(k - 1)
            if t == 8:
                pend.append((rdy, f"v_cvt_pk_bf16_f32 v{c}, v{c}, v{c+1}"))
                pend.append((rdy, f"v_cvt_pk_bf16_f32 v{c+1}, v{c+2}, v{c+3}"))
                pend.append((rdy, f"v_bfi_b32 v{c}, 1, v24, v{c}"))
                pend.append((rdy, sa.format(16 * tt * ROWB) + f"global_store_dwordx2 v{XS8}, {v(c, 2)}, s[12:13] {st}"))
            elif t & 1:
                for r in range(4): pend.append((rdy, f"v_cvt_pk_bf16_f32 v{G + 4 * r + t // 2}, v{cp+r}, v{c+r}"))
                for r in range(4):
                    if t in (1, 5): pend.append((rdy, f"v_bfi_b32 v{G + 4 * r + t // 2}, 1, v24, v{G + 4 * r + t // 2}"))
                    else: pend.append((rdy + 2 + r, sa.format((16 * tt + r) * ROWB) + f"global_store_dwordx2 v{XS}, {v(G + 4 * r + (t >> 2) * 2, 2)}, s[12:13] offset:{(t >> 2) * 128} {st}"))
    if k16:
        for q in range(4): D.op(f"ds_read_b128 {v(G + 4 * q, 4)}, v{L16} offset:{k16[0] + (q >> 1) * 1024 + (q & 1) * 2048}", ('x9', q))
        for k_ in range(4): w16rd(k_)
    sa = f"s_add_u32 s12, s40, {{}}\ns_addc_u32 s13, s41, 0\n"
    mc = [0]
    groups = []
    for tt in range(2): groups += [[9 * tt, 9 * tt + 1, 9 * tt + 2]] + [[9 * tt + 3 + 2 * q, 9 * tt + 4 + 2 * q] for q in range(3)]
    for gi, grp in enumerate(groups):
        tt = seq[grp[0]][0]
        if seq[grp[0]][1] == 8:
            for j in range(4): D.op(f"ds_read_b128 {v(FR + 4 * j, 4)}, v{L16} offset:{(tt * 4 + j) * 1024}", ('f', j))
        if k16 and gi == 0:
            for tt_ in range(2):
                D.wait(('x9', 2 * tt_ + 1))
                g_ = G + 8 * tt_
                for r in (0, 2): A(f"v_pk_mul_f32 {v(g_ + r, 2)}, {v(g_ + r, 2)}, {v(g_ + 4 + r, 2)}")
                for r in (0, 2): A(f"v_cvt_pk_bf16_f32 v{F16 + 2 * tt_ + r // 2}, v{g_+r}, v{g_+r+1}")
        for k in grp: chk(k)
        def drain():
            mc[0] += 1
            for _ in range(2):
                if pend and pend[0][0] <= mc[0]: A(pend.pop(0)[1])
        for j in range(4):
            D.wait(('f', j))
            for k in grp:
                t = seq[k][1]; c = slot(k)
                a_, b_ = v(FR + 4 * j, 4), u(wfrag(t, j), 4)
                if t == 8: a_, b_ = b_, a_
                A(f"{MF32} {v(c, 4)}, {a_}, {b_}, {v(c, 4) if j else 0}")
                drain()
            if k16 and j == 0 and gi:
                for k in groups[gi - 1]:
                    m16(k); drain()
                    if k + 4 < 18: w16rd(k + 4)
                post(groups[gi - 1], mc[0] + 4)
        if not k16: post(grp, mc[0] + 4)
    if k16:
        for k in groups[-1]: m16(k)
        post(groups[-1], 0)
    for o in pend: A(o[1])
    tr(A, 'op1')
    SEL = 12
    A(f"v_bfe_u32 v10, v{L4}, 2, 1")
    A("v_lshlrev_b32 v10, 4, v10")
    A("v_mov_b32 v11, 0x3f80")
    A("v_lshlrev_b32 v11, v10, v11")
    A(f"v_bfe_u32 v10, v{L4}, 3, 2")
    for j in range(4):
        A(f"v_cmp_eq_u32 vcc, {j}, v10")
        A(f"v_cndmask_b32 v{SEL+j}, 0, v11, vcc")
    lane_const(A, 26, lambda x: l_red + 2048 + (x >> 10) * 256 + ((x >> 4) & 7) * 32 + ((x >> 8) & 1) * 16, src=T16, nbits=12, tmp=10)
    A("s_and_b32 s12, s47, 1")
    A("s_sub_u32 s12, 0, s12")
    A(f"v_bfe_i32 v10, v{L4}, 6, 1")
    A(f"v_bfe_i32 v11, v{L4}, 5, 1")
    A("v_xor_b32 v10, s12, v10")
    A("v_xor_b32 v11, s12, v11")
    A("s_waitcnt vmcnt(0)")
    tr(A, 'ack')
    lnf = A.newlabel('L_nf')
    A("s_cmp_lg_u32 s47, 1")
    A(f"s_cbranch_scc1 {lnf}")
    A("s_barrier")
    post_flag(A, 0, 0, st)
    A(f"v_and_b32 v8, 0x7c, v{L4}")
    flag_wait(A, 8, 44, 47, 9, 12, sleep=0)
    A.label(lnf)
    tr(A, 'xf')
    LD = 28
    A("s_mov_b32 s14, 0")
    lrt = A.newlabel('L_xr')
    A.label(lrt)
    A("s_mov_b64 s[12:13], s[42:43]")
    A(f"global_load_dwordx4 {v(LD + 32, 4)}, v{XL8}, s[12:13] sc1")
    for i in range(8):
        A(f"global_load_dwordx4 {v(LD + 4 * i, 4)}, v{XL}, s[12:13] sc1")
        if i < 7: add64(A, 12, 12, 4 * PROW)
    A("s_mov_b64 exec, -1")
    A("s_add_u32 s14, s14, 1")
    A(f"s_cmp_gt_u32 s14, {SPIN_MAX}")
    A("s_cbranch_scc1 L_exit")
    A("s_waitcnt vmcnt(8)")
    A(f"{MF32} v[20:23], {v(SEL, 4)}, {v(LD + 32, 4)}, 0")
    A(f"v_bitop3_b32 v8, v{LD+32}, v{LD+34}, v11 bitop3:0x7e")
    A("v_and_b32 v8, 1, v8")
    for i in range(8):
        A(f"s_waitcnt vmcnt({7 - i})")
        A(f"{MF32} v[16:19], {v(SEL, 4)}, {v(LD + 4 * i, 4)}, {'v[16:19]' if i else 0}")
        A(f"v_bitop3_b32 v9, v{LD+4*i}, v{LD+4*i+2}, v10 bitop3:0x7e")
        A("v_and_or_b32 v8, v9, 1, v8")
        if i == 4:
            for r in range(4): A(f"v_add_f32_dpp v{20+r}, v{20+r}, v{20+r} row_ror:8 row_mask:0xf bank_mask:0xf")
            A("ds_write_b128 v26, v[20:23]")
    A("v_cmp_ne_u32 vcc, 0, v8")
    A("s_mov_b64 exec, vcc")
    A(f"s_cbranch_vccnz {lrt}")
    A("s_mov_b64 exec, -1")
    for r in range(4): A(f"ds_write_b32 v{RW}, v{16+r} offset:{256 * r}")
    A("s_waitcnt lgkmcnt(0)")
    A("s_barrier")
    tr(A, 'red')
    post_flag(A, 1, 1024, st)

def consumed_wait(A, tv):
    A(f"v_and_b32 v{tv}, 0x7c, v{L4}")
    A(f"v_add_u32 v{tv}, 1024, v{tv}")
    flag_wait(A, tv, 44, 47, tv + 1, 12, sleep=0)

def row_gather(A, l_red):
    A(f"v_lshlrev_b32 v48, 1, v{L4}")
    for w in range(4): A(f"ds_read_b64 {v(16 + 2 * w, 2)}, v48 offset:{l_red + 2048 + w * 256}")
    for i in range(4): A(f"ds_read_b64 {v(8 + 2 * i, 2)}, v48 offset:{l_red + i * 512}")
    A("s_waitcnt lgkmcnt(4)")
    A("v_pk_add_f32 v[16:17], v[16:17], v[18:19]")
    A("v_pk_add_f32 v[20:21], v[20:21], v[22:23]")
    A("v_pk_add_f32 v[16:17], v[16:17], v[20:21]")
    A("s_waitcnt lgkmcnt(0)")
    for i in range(5): rnd2(A, 8 + 2 * i)

def unpack(A, dst, src):
    A(f"v_lshlrev_b32 v{dst}, 16, v{src}")
    A(f"v_and_b32 v{dst+1}, 0xffff0000, v{src}")

def cached_wait(A, base, val_s, cache_s, tv):
    ok = A.newlabel('L_cw')
    A(f"s_cmp_ge_u32 s{cache_s}, s{val_s}")
    A(f"s_cbranch_scc1 {ok}")
    A(f"v_mov_b32 v{tv}, 0")
    flag_wait(A, tv, base, val_s, tv + 1, 12, sleep=1)
    A(f"v_readfirstlane_b32 s{cache_s}, v{tv+1}")
    A.label(ok)

def WA(i): return 256 + 4 * i if i < 64 else 224 + 4 * (i - 64)

def role_a(A, restart, na, ag0, kvg0, standalone=False):
    LQ, LO, LRED = 2 * SEG_H, 2 * SEG_H + 8192, 2 * SEG_H + 16384
    LKM, LVM = LRED + 4096, LRED + 8192
    A(f"s_load_dwordx2 s[16:17], s[0:1], {KA_WQ}")
    A(f"s_load_dwordx2 s[18:19], s[0:1], {KA_WO}")
    A(f"s_load_dwordx2 s[34:35], s[0:1], {KA_X}")
    dense256_consts(A, 12, 16, 8192, 1)
    dense128_consts(A, 20, 18, 1)
    A("s_lshl_b32 s12, s9, 8")
    A("s_waitcnt lgkmcnt(0)")
    add64(A, 16, 16, "s12")
    A("s_mul_i32 s12, s9, 147456")
    add64(A, 18, 18, "s12")
    def wq(ks, b): return WA(ks * 2 + b)
    def wo(t, j): return WA(36 + t * 4 + j)
    chunks = [dict(ptr=16, off=c * 64 * 8192, vb=12, reads=dense256_reads(wq, 16, c)) for c in range(9)]
    chunks += [dict(ptr=18, off=t * 128, vb=20, reads=dense128_reads(wo, 18, t)) for t in range(9)]
    ring_load(A, chunks)
    tl(A, 1)
    mode_check(A, tv=12)
    af_consts(A, LRED)
    HA, QRD, OWR, KMA, VOF, NEG, H2A = 80, 81, 82, 83, 84, 85, 86
    MODR, XR = 88, 104
    KF, VF, KM, VM = 112, 144, 160, 176
    lane_const(A, QRD, lambda t: LQ + (t >> 7) * 4096 + (t & 63) * 16, tmp=12)
    lane_const(A, OWR, lambda t: LO + (t >> 6) * 2048 + (t & 63) * 16, tmp=12)
    KMW, VMW = 87, 109
    lane_const(A, KMW, lambda t: LKM + 2 * ((t >> 4) & 3) * 288 + (t >> 6) * 64 + (t & 15) * 4, tmp=12)
    lane_const(A, KMA, lambda t: LKM + (2 * ((t & 15) >> 2) + (t & 1)) * 288 + ((t >> 4) & 3) * 16, tmp=12)
    lane_const(A, VMW, lambda t: LVM + t * 8, tmp=12)
    lane_const(A, VOF, lambda t: LVM + ((t >> 6) & 1) * 1024 + (t & 63) * 8, tmp=12)
    A(f"v_mov_b32 v{NEG}, {f32bits(-1e9):#x}")
    A("s_bfe_u32 s12, s9, 0x30001")
    A("s_lshl_b32 s12, s12, 4")
    A(f"v_xor_b32 v{H2A}, s12, v{L4}")
    lane_const(A, 12, lambda t: 16 * (t >> 7) + (t & 15) - 4 * ((t >> 4) & 3), tmp=13)
    for k in range(8): A(f"v_cmp_le_i32 s[{64+2*k}:{65+2*k}], {(k & 3) + 16 * (k >> 2)}, v12")
    A(f"v_lshlrev_b32 v{T16}, 4, v0")
    A(f"s_sub_u32 s24, s8, {ag0}")
    A(f"s_mul_i32 s12, s24, {SEG_H}")
    A(f"s_add_u32 s13, s12, {WS_H}")
    add64(A, 20, S_WS, "s13")
    A("s_mul_i32 s13, s9, 1152")
    A("s_add_u32 s12, s12, s13")
    add64(A, 34, 34, "s12")
    A(f"s_add_u32 s13, s12, {WS_X1}")
    add64(A, 36, S_WS, "s13")
    A(f"s_add_u32 s13, s12, {WS_H2}")
    add64(A, 38, S_WS, "s13")
    A("s_lshl_b32 s12, s24, 5")
    A("s_add_u32 s12, s12, s9")
    A("s_lshl_b32 s13, s12, 14")
    A(f"s_add_u32 s13, s13, {WS_KV + 4096}")
    add64(A, 22, S_WS, "s13")
    A("s_lshl_b32 s13, s12, 12")
    A(f"s_add_u32 s13, s13, {WS_KVM}")
    add64(A, 30, S_WS, "s13")
    A("s_lshl_b32 s13, s12, 2")
    A(f"s_add_u32 s13, s13, {WS_H2FLAG}")
    add64(A, 52, S_WS, "s13")
    A("s_lshl_b32 s12, s9, 7")
    A(f"s_add_u32 s13, s12, {WS_KVPROG + kvg0 * 4096}")
    add64(A, 54, S_WS, "s13")
    A(f"s_add_u32 s13, s12, {WS_RPROG}")
    add64(A, 56, S_WS, "s13")
    A(f"s_mov_b32 s58, {64 if standalone else 0}")
    A(f"s_mov_b32 s59, {64 if standalone else 0}")
    A("s_lshl_b32 s26, s10, 10")
    A("s_mov_b32 s27, 0")
    A(f"s_mov_b32 s60, {f32bits(128 ** -0.5):#x}")
    A(f"s_mov_b32 s61, {f32bits(math.log2(math.e)):#x}")
    if not standalone:
        counter_wait(A, DBG_HCNT, 128, tv=12)
        counter_wait(A, DBG_KCLR, 96, tv=12)
    for k, ch in enumerate((2, 4, 3)):
        add64(A, 12, S_WS, WS_MOD + ch * 1152)
        for i in range(5): A(f"global_load_dword v{MODR+5*k+i}, v{L4}, s[12:13] offset:{256 * i} sc1")
    def hdma():
        seg_dma(A, T16, 20, 26)
        add64(A, 20, 20, na * SEG_H)
        A(f"s_xor_b32 s26, s26, {SEG_H}")
    assert SEG_H & 3072 == 0
    hdma()
    A("s_waitcnt vmcnt(0)")
    A("s_cmp_eq_u32 s11, 0")
    A("s_cbranch_scc1 L_a_top_s")
    for fast in (True, False):
        st = "" if fast else "sc1"; sfx = "f" if fast else "s"
        A.label(f"L_a_top_{sfx}")
        tr(A, 'top')
        A("s_add_u32 s25, s24, 1")
        cached_wait(A, 54, 25, 58, 8)
        for i in range(8): A(f"global_load_dwordx4 {v(KF + 4 * i, 4)}, v{L16}, s[22:23] offset:{i * 1024 - 4096}")
        A("s_and_b32 s12, s10, 1")
        A("s_lshl_b32 s12, s12, 12")
        A("s_add_u32 s12, s12, 4096")
        add64(A, 12, 22, "s12")
        for i in range(4): A(f"global_load_dwordx4 {v(VF + 4 * i, 4)}, v{L16}, s[12:13] offset:{i * 1024}")
        A("s_mov_b32 exec_hi, 0")
        A(f"global_load_dword v{XR+4}, v{L4}, s[34:35] offset:1024")
        A("s_mov_b64 exec, -1")
        for i in range(4): A(f"global_load_dword v{XR+i}, v{L4}, s[34:35] offset:{256 * i}")
        A(f"v_add_u32 v{HA}, s27, v{L16}")
        A("s_barrier")
        tr(A, 'go')
        D = Lds(A)
        ACC, RING, NR = 8, 24, 6
        seq = [(ks, tt) for ks in range(18) for tt in range(2)]
        def rd(i):
            ks, tt = seq[i]
            D.op(f"ds_read_b128 {v(RING + 4 * (i % NR), 4)}, v{HA} offset:{(tt * 18 + ks) * 1024}", i)
        for i in range(NR - 1): rd(i)
        hdma()
        A(f"s_xor_b32 s27, s27, {SEG_H}")
        for i, (ks, tt) in enumerate(seq):
            if i + NR - 1 < 36: rd(i + NR - 1)
            D.wait(i)
            for b in range(2):
                d = v(ACC + (b * 2 + tt) * 4, 4)
                A(f"{MF32} {d}, {u(wq(ks, b), 4)}, {v(RING + 4 * (i % NR), 4)}, {d if ks else 0}")
        for tt in range(2):
            for r in range(4): A(f"v_cvt_pk_bf16_f32 v{48+4*tt+r}, v{ACC+4*tt+r}, v{ACC+8+4*tt+r}")
            A(f"v_add_u32 v56, {LQ + tt * 4096}, v{T16}")
            A(f"ds_write_b128 v56, {v(48 + 4 * tt, 4)}")
        A("s_waitcnt lgkmcnt(0)")
        A("s_barrier")
        QF = 24
        for j in range(4): A(f"ds_read_b128 {v(QF + 4 * j, 4)}, v{QRD} offset:{j * 1024}")
        A("s_waitcnt vmcnt(9) lgkmcnt(0)")
        T0, T1, T2 = 8, 12, 16
        for j in range(4):
            for kt in range(2):
                d = v(T0 + 4 * kt, 4)
                A(f"{MF32} {d}, {v(KF + 4 * (kt * 4 + j), 4)}, {v(QF + 4 * j, 4)}, {d if j else 0}")
        consumed_wait(A, 40)
        tr(A, 'mm')
        def scale(r):
            if not EXP.get('nosr'): rnd2(A, r)
            A(f"v_pk_mul_f32 {v(r, 2)}, {v(r, 2)}, s[60:61] op_sel_hi:[1,0]")
            if not EXP.get('nosr'): rnd2(A, r)
        for r in range(T0, T0 + 8, 2): scale(r)
        for k in range(8): A(f"v_cndmask_b32 v{T0+k}, v{NEG}, v{T0+k}, s[{64+2*k}:{65+2*k}]")
        M, TT, SUM = 20, 21, 22
        A(f"v_max3_f32 v{M}, v8, v9, v10")
        A(f"v_max3_f32 v{M}, v{M}, v11, v12")
        A(f"v_max3_f32 v{M}, v{M}, v13, v14")
        A(f"v_max_f32 v{M}, v{M}, v15")
        lp = A.newlabel('L_km'); lok = A.newlabel('L_kmok')
        A("s_mov_b32 s12, 0")
        A.label(lp)
        A(f"global_load_dwordx4 v[40:43], v{T16}, s[30:31] sc1")
        A("s_add_u32 s12, s12, 1")
        A(f"s_cmp_gt_u32 s12, {SPIN_MAX}")
        A("s_cbranch_scc1 L_exit")
        A("s_waitcnt vmcnt(0)")
        A(f"ds_write2_b32 v{KMW}, v40, v41 offset0:0 offset1:72")
        A(f"ds_write_b64 v{VMW}, v[42:43]")
        A("v_max3_u32 v44, v40, v41, v42")
        A("v_max_u32 v44, v44, v43")
        A("v_cmp_eq_u32 vcc, -1, v44")
        A(f"s_cbranch_vccz {lok}")
        A("s_sleep 1")
        A(f"s_branch {lp}")
        A.label(lok)
        A("s_waitcnt lgkmcnt(0)")
        A("s_barrier")
        tr(A, 'flag')
        for j in range(4): A(f"ds_read_b128 {v(KM + 4 * j, 4)}, v{KMA} offset:{j * 64}")
        for i in range(2): A(f"ds_read_b64 {v(VM + 2 * i, 2)}, v{VOF} offset:{i * 512}")
        for j in range(4):
            A(f"s_waitcnt lgkmcnt({5 - j})")
            A(f"{MF32} {v(T2, 4)}, {v(KM + 4 * j, 4)}, {v(QF + 4 * j, 4)}, {v(T2, 4) if j else 0}")
        scale(T2)
        A(f"v_max3_f32 v{M}, v{M}, v16, v17")
        xsum(A, M, TT, op="v_max_f32", bits=(4, 5))
        for r in range(8, 18, 2): A(f"v_pk_add_f32 {v(r, 2)}, {v(r, 2)}, {v(M, 2)} op_sel_hi:[1,0] neg_lo:[0,1] neg_hi:[0,1]")
        for r in range(8, 18, 2): A(f"v_pk_mul_f32 {v(r, 2)}, {v(r, 2)}, s[60:61] op_sel:[0,1]")
        for r in range(8, 18): A(f"v_exp_f32 v{r}, v{r}")
        A(f"v_pk_add_f32 {v(SUM, 2)}, v[8:9], v[10:11]")
        for r in (12, 14, 16): A(f"v_pk_add_f32 {v(SUM, 2)}, {v(SUM, 2)}, {v(r, 2)}")
        A(f"v_add_f32 v{SUM}, v{SUM}, v{SUM+1}")
        xsum(A, SUM, TT, bits=(4, 5))
        A(f"v_rcp_f32 v{SUM}, v{SUM}")
        for r in range(8, 18, 2): A(f"v_pk_mul_f32 {v(r, 2)}, {v(r, 2)}, {v(SUM, 2)} op_sel_hi:[1,0]")
        BX, Z = 40, 44
        for q in range(4): A(f"v_cvt_pk_bf16_f32 v{BX+q}, v{8+2*q}, v{9+2*q}")
        A(f"v_cvt_pk_bf16_f32 v{Z}, v16, v17")
        A(f"v_mov_b32 v{Z+1}, 0")
        A(f"v_mov_b32 v{Z+2}, 0")
        A(f"v_mov_b32 v{Z+3}, v{Z}")
        OA = 24
        for t in range(4): A(f"{MF32} {v(OA + 4 * t, 4)}, {v(VF + 4 * t, 4)}, {v(BX, 4)}, 0")
        A("s_waitcnt lgkmcnt(0)")
        for t in range(4): A(f"{MF16} {v(OA + 4 * t, 4)}, {v(VM + 2 * (t >> 1), 2)}, {v(Z + 2 * (t & 1), 2)}, {v(OA + 4 * t, 4)}")
        for q in range(8): A(f"v_cvt_pk_bf16_f32 v{48+q}, v{OA+2*q}, v{OA+2*q+1}")
        A(f"ds_write_b128 v{OWR}, v[48:51]")
        A(f"ds_write_b128 v{OWR}, v[52:55] offset:1024")
        A("s_waitcnt lgkmcnt(0)")
        A("s_barrier")
        oa = Asm()
        A(f"v_add_u32 v{L16}, {LO}, v{L16}")
        out_proj(A, st, wo, LRED)
        A(f"v_subrev_u32 v{L16}, {LO}, v{L16}")
        A("s_cmp_lg_u32 s10, 0")
        A(f"s_cbranch_scc1 L_a_next_{sfx}")
        A(f"v_add_u32 v{L4}, {LRED // 2}, v{L4}")
        row_gather(A, 0)
        A(f"v_subrev_u32 v{L4}, {LRED // 2}, v{L4}")
        A("v_mov_b64 v[20:21], 0")
        for i in range(5):
            r = 8 + 2 * i
            if i == 4: A("s_mov_b32 exec_hi, 0")
            unpack(A, 18, MODR + i)
            A(f"v_pk_mul_f32 {v(r, 2)}, {v(r, 2)}, v[18:19]")
            rnd2(A, r)
            unpack(A, 18, XR + i)
            A(f"v_pk_add_f32 {v(r, 2)}, {v(r, 2)}, v[18:19]")
            A(f"v_cvt_pk_bf16_f32 v{24+i}, v{r}, v{r+1}")
            unpack(A, r, 24 + i)
            A(f"global_store_dword v{L4}, v{24+i}, s[36:37] offset:{256 * i} sc1")
            A(f"v_pk_add_f32 v[20:21], v[20:21], {v(r, 2)}")
        A("s_mov_b64 exec, -1")
        A("v_add_f32 v20, v20, v21")
        xsum(A, 20, 21)
        A(f"v_mul_f32 v20, {f32bits(1.0 / 576):#x}, v20")
        A("v_mov_b64 v[22:23], 0")
        for i in range(5):
            if i == 4: A("s_mov_b32 exec_hi, 0")
            A(f"v_pk_add_f32 v[18:19], {v(8 + 2 * i, 2)}, v[20:21] op_sel_hi:[1,0] neg_lo:[0,1] neg_hi:[0,1]")
            A("v_pk_fma_f32 v[22:23], v[18:19], v[18:19], v[22:23]")
        A("s_mov_b64 exec, -1")
        A("v_add_f32 v22, v22, v23")
        xsum(A, 22, 23)
        A(f"v_mul_f32 v22, {f32bits(1.0 / 576):#x}, v22")
        rnd1(A, 22); rnd1(A, 20)
        A(f"v_add_f32 v22, {f32bits(1e-5):#x}, v22")
        rnd1(A, 22)
        A("v_sqrt_f32 v22, v22")
        rnd1(A, 22)
        A("v_rcp_f32 v22, v22")
        for i in range(5):
            r = 8 + 2 * i
            if i == 4: A("s_mov_b32 exec_hi, 0")
            A(f"v_pk_add_f32 {v(r, 2)}, {v(r, 2)}, v[20:21] op_sel_hi:[1,0] neg_lo:[0,1] neg_hi:[0,1]")
            rnd2(A, r)
            A(f"v_pk_mul_f32 {v(r, 2)}, {v(r, 2)}, v[22:23] op_sel_hi:[1,0]")
            rnd2(A, r)
            unpack(A, 18, MODR + 5 + i)
            A(f"v_pk_mul_f32 {v(r, 2)}, {v(r, 2)}, v[18:19]")
            rnd2(A, r)
            unpack(A, 18, MODR + 10 + i)
            A(f"v_pk_add_f32 {v(r, 2)}, {v(r, 2)}, v[18:19]")
            A(f"v_cvt_pk_bf16_f32 v{30+i}, v{r}, v{r+1}")
            A(f"global_store_dword v{H2A}, v{30+i}, s[38:39] offset:{256 * i} sc1")
        A("s_mov_b64 exec, 1")
        A("v_mov_b32 v18, 1")
        A("s_waitcnt vmcnt(0)")
        A(f"global_store_dword v{L4}, v18, s[52:53] sc1")
        A("s_mov_b64 exec, -1")
        A.label(f"L_a_next_{sfx}")
        tr(A, 'end'); tr_dump(A, EXP.get('aftrace', 0))
        add64(A, 34, 34, na * SEG_H); add64(A, 36, 36, na * SEG_H); add64(A, 38, 38, na * SEG_H)
        add64(A, 22, 22, na << 19); add64(A, 30, 30, na << 17); add64(A, 52, 52, na * 128)
        A(f"s_add_u32 s24, s24, {na}")
        A("s_cmp_lt_u32 s24, 64")
        A(f"s_cbranch_scc1 L_a_top_{sfx}")
        tl(A, 4)
        A("s_branch L_exit")

def WFF(i): return 256 + 4 * i if i < 64 else 80 + 4 * (i - 64)

def role_f(A, nf, fg0, standalone=False):
    LG8, LW16, LRING = 0, 36864, 57344
    LH2, LACT = LRING, LRING + 40960
    LRED = LACT + 12288
    A(f"s_load_dwordx4 s[16:19], s[0:1], {KA_WG}")
    A(f"s_load_dwordx2 s[20:21], s[0:1], {KA_WD}")
    A(f"s_load_dwordx2 s[34:35], s[0:1], {KA_OUT}")
    dense256_consts(A, 12, 16, 9216, 1)
    dense128_consts(A, 20, 18, 1)
    lane_const(A, 24, lambda t: (t >> 1) * 9216 + (t & 1) * 16 + 256, tmp=1)
    lane_const(A, 25, lambda t: t * 16, tmp=1)
    A("s_mul_i32 s12, s9, 288")
    A("s_waitcnt lgkmcnt(0)")
    add64(A, 16, 16, "s12"); add64(A, 18, 18, "s12")
    A(f"s_mul_i32 s12, s9, {144 * 1152}")
    add64(A, 20, 20, "s12")
    A("s_lshl_b32 s26, s10, 10")
    for m in range(2):
        for i in range(5):
            if i == 4:
                A("s_cmp_ge_u32 s10, 2"); l = A.newlabel('L_f8'); A(f"s_cbranch_scc1 {l}")
            add64(A, 12, 16 + 2 * m, i * 128 * 9216)
            A(f"s_add_u32 m0, s26, {LG8 + m * 18432 + i * 4096}")
            A("global_load_lds_dwordx4 v24, s[12:13]")
            if i == 4: A.label(l)
    for i in range(5):
        if i == 4:
            A("s_cmp_ge_u32 s10, 2"); l = A.newlabel('L_f16'); A(f"s_cbranch_scc1 {l}")
        add64(A, 12, 20, 128 * 1152 + i * 4096)
        A(f"s_add_u32 m0, s26, {LW16 + i * 4096}")
        A("global_load_lds_dwordx4 v25, s[12:13]")
        if i == 4: A.label(l)
    def wg(m, ks, b): return WFF(ks * 4 + m * 2 + b)
    def wd(t, j): return WFF(72 + t * 4 + j)
    chunks = []
    for c in range(9):
        for m in range(2):
            chunks.append(dict(ptr=16 + 2 * m, off=c * 64 * 9216, vb=12, reads=dense256_reads(lambda ks, b, m=m: wg(m, ks, b), 16, c)))
    chunks += [dict(ptr=20, off=t * 128, vb=20, reads=dense128_reads(wd, 18, t)) for t in range(9)]
    ring_load(A, chunks, nslots=6, lbase=LRING)
    tl(A, 1)
    mode_check(A, tv=12)
    af_consts(A, LRED)
    A(f"v_lshlrev_b32 v{T16}, 4, v0")
    A(f"s_sub_u32 s24, s8, {fg0}")
    A(f"s_mul_i32 s12, s24, {SEG_H}")
    A(f"s_add_u32 s13, s12, {WS_H2}")
    add64(A, 20, S_WS, "s13")
    A("s_mul_i32 s13, s9, 1152")
    A("s_add_u32 s12, s12, s13")
    add64(A, 34, 34, "s12")
    A(f"s_add_u32 s13, s12, {WS_X1}")
    add64(A, 36, S_WS, "s13")
    A("s_lshl_b32 s13, s24, 7")
    A(f"s_add_u32 s13, s13, {WS_H2FLAG}")
    add64(A, 52, S_WS, "s13")
    add64(A, 54, S_WS, WS_MOD + 5 * 1152)
    A("s_lshl_b32 s26, s10, 10")
    A(f"s_add_u32 s26, s26, {LH2}")
    A("s_mov_b32 s25, 1")
    A(f"s_mov_b32 s60, {f32bits(-math.log2(math.e)):#x}")
    A("s_cmp_ge_u32 s10, 2")
    A("s_cselect_b64 s[62:63], -1, 0")
    A("s_cmp_eq_u32 s11, 0")
    A("s_cbranch_scc1 L_f_top_s")
    for fast in (True, False):
        st = "" if fast else "sc1"; sfx = "f" if fast else "s"
        A.label(f"L_f_top_{sfx}")
        tr(A, 'top')
        consumed_wait(A, 8)
        if not standalone:
            A(f"v_and_b32 v8, 0x7c, v{L4}")
            flag_wait(A, 8, 52, 25, 9, 12, sleep=1)
        tr(A, 'flag')
        seg_dma(A, T16, 20, 26)
        HA, G8A, AW = 72, 76, 77
        A(f"v_lshrrev_b32 v78, 4, v{T16}")
        for ttl in range(2):
            for par in range(2):
                r = HA + 2 * ttl + par
                lane_const(A, r, lambda t: LH2 + (t & 15) * 1152 + ((ttl ^ (t >> 6)) & 1) * 18432, src=78, tmp=8)
                lane_const(A, r, lambda t: ((4 * par + ((t >> 4) & 3)) ^ ((t & 15) >> 1)) * 16, src=78, tmp=8, acc=True)
        lane_const(A, G8A, lambda t: LG8 + (t >> 7) * 18432 + ((t >> 4) & 3) * 256 + (t & 15) * 8, src=78, tmp=8)
        lane_const(A, AW, lambda t: LACT + t * 16 + ((t >> 6) & 1) * 4096, src=78, tmp=8)
        A("s_waitcnt vmcnt(0)")
        A("s_barrier")
        tr(A, 'go')
        def swiglu(g, u_, dst, t0, pk):
            B = Asm()
            for r in (0, 2):
                rnd2(B, g + r); rnd2(B, u_ + r)
                if pk: B(f"v_pk_mul_f32 {v(t0, 2)}, {v(g + r, 2)}, s[60:61] op_sel_hi:[1,0]")
                else:
                    for q in range(2): B(f"v_mul_f32 v{t0+q}, s60, v{g+r+q}")
                for q in range(2): B(f"v_exp_f32 v{t0+q}, v{t0+q}")
                if pk: B(f"v_pk_add_f32 {v(t0, 2)}, {v(t0, 2)}, 1.0 op_sel_hi:[1,0]")
                else:
                    for q in range(2): B(f"v_add_f32 v{t0+q}, 1.0, v{t0+q}")
                for q in range(2): B(f"v_rcp_f32 v{t0+q}, v{t0+q}")
                if pk: B(f"v_pk_mul_f32 {v(g + r, 2)}, {v(g + r, 2)}, {v(t0, 2)}")
                else:
                    for q in range(2): B(f"v_mul_f32 v{g+r+q}, v{g+r+q}, v{t0+q}")
                rnd2(B, g + r)
                if pk: B(f"v_pk_mul_f32 {v(g + r, 2)}, {v(g + r, 2)}, {v(u_ + r, 2)}")
                else:
                    for q in range(2): B(f"v_mul_f32 v{g+r+q}, v{g+r+q}, v{u_+r+q}")
                B(f"v_cvt_pk_bf16_f32 v{dst + r // 2}, v{g+r}, v{g+r+1}")
            return [i.text.strip() for i in B.ins]
        D = Lds(A)
        RING, NR = 48, 4
        seq = [(ttl, ks) for ttl in range(2) for ks in range(18)]
        def rd(i):
            ttl, ks = seq[i]
            D.op(f"ds_read_b128 {v(RING + 4 * (i % NR), 4)}, v{HA + 2 * ttl + (ks & 1)} offset:{(ks >> 1) * 128}", i)
        def rd9(ks):
            for hq in range(2):
                D.op(f"ds_read_b64_tr_b16 {v(24 + 4 * (ks % 4) + 2 * hq, 2)}, v{G8A} offset:{ks * 1024 + hq * 128}", ('w9', ks))
        def ac(m, b, ttl): return 8 + 16 * ttl + (m * 2 + b) * 4
        for i in range(NR - 1): rd(i); rd9(i)
        vq = []
        for i, (ttl, ks) in enumerate(seq):
            D.wait(i)
            h = v(RING + 4 * (i % NR), 4)
            if i == 20:
                for b in range(2): vq += swiglu(ac(0, b, 0), ac(1, b, 0), 64 + 2 * b, 70, False)
                vq.append(f"ds_write_b128 v{AW}, v[64:67]")
                B = Asm()
                rnd2(B, 40); rnd2(B, 42)
                for q in range(4): B(f"v_mul_f32 v{44+q}, s60, v{40+q}")
                for q in range(4): B(f"v_exp_f32 v{44+q}, v{44+q}")
                for q in range(4): B(f"v_add_f32 v{44+q}, 1.0, v{44+q}")
                for q in range(4): B(f"v_rcp_f32 v{44+q}, v{44+q}")
                for q in range(4): B(f"v_mul_f32 v{44+q}, v{40+q}, v{44+q}")
                rnd2(B, 44); rnd2(B, 46)
                for q in range(4): B(f"v_cndmask_b32 v{40+q}, v{44+q}, v{40+q}, s[62:63]")
                B(f"v_add_u32 v70, {LACT + 8192}, v{T16}")
                B("ds_write_b128 v70, v[40:43]")
                vq += [x.text.strip() for x in B.ins]
            k4 = 0
            for m in range(2):
                for b in range(2):
                    d = v(ac(m, b, ttl), 4)
                    A(f"{MF32} {d}, {u(wg(m, ks, b), 4)}, {h}, {d if ks else 0}")
                    if k4 == 0 and i + NR - 1 < 36: rd(i + NR - 1)
                    if k4 == 1 and ttl == 0 and ks + 3 < 18: rd9(ks + 3)
                    k4 += 1
                    for _ in range(2):
                        if vq:
                            o = vq.pop(0)
                            if o.startswith('ds_'): D.op(o)
                            else: A(o)
            if ttl == 0:
                D.wait(('w9', ks))
                A(f"{MF32} v[40:43], {v(24 + 4 * (ks % 4), 4)}, {h}, {'v[40:43]' if ks else 0}")
        for o in vq: A(o)
        tr(A, 'mm')
        o0 = swiglu(24, 32, 48, 52, True); o1 = swiglu(28, 36, 50, 54, True)
        for a_, b_ in zip(o0, o1): A(a_); A(b_)
        A(f"v_xor_b32 v{AW}, 4096, v{AW}")
        A(f"ds_write_b128 v{AW}, v[48:51]")
        lane_const(A, 27, lambda t: LW16 + (4 * ((t >> 4) & 3) + ((t >> 2) & 3)) * 1152 + (t >> 6) * 32 + (t & 3) * 8, src=78, tmp=8)
        A("s_waitcnt lgkmcnt(0)")
        A("s_barrier")
        A(f"v_add_u32 v{L16}, {LACT}, v{L16}")
        out_proj(A, st, wd, LRED, k16=(8192, 27))
        A(f"v_subrev_u32 v{L16}, {LACT}, v{L16}")
        A("s_cmp_lg_u32 s10, 0")
        A(f"s_cbranch_scc1 L_f_next_{sfx}")
        for i in range(5):
            if i == 4: A("s_mov_b32 exec_hi, 0")
            A(f"global_load_dword v{50+i}, v{L4}, s[54:55] offset:{256 * i}")
            A(f"global_load_dword v{56+i}, v{L4}, s[36:37] offset:{256 * i}")
        A("s_mov_b64 exec, -1")
        A(f"v_add_u32 v{L4}, {LRED // 2}, v{L4}")
        row_gather(A, 0)
        A(f"v_subrev_u32 v{L4}, {LRED // 2}, v{L4}")
        A("s_waitcnt vmcnt(0)")
        for i in range(5):
            r = 8 + 2 * i
            if i == 4: A("s_mov_b32 exec_hi, 0")
            unpack(A, 18, 50 + i)
            A(f"v_pk_mul_f32 {v(r, 2)}, {v(r, 2)}, v[18:19]")
            rnd2(A, r)
            unpack(A, 18, 56 + i)
            A(f"v_pk_add_f32 {v(r, 2)}, {v(r, 2)}, v[18:19]")
            A(f"v_cvt_pk_bf16_f32 v{24+i}, v{r}, v{r+1}")
            A(f"global_store_dword v{L4}, v{24+i}, s[34:35] offset:{256 * i}")
        A("s_mov_b64 exec, -1")
        A.label(f"L_f_next_{sfx}")
        tr(A, 'end'); tr_dump(A, EXP.get('aftrace', 0))
        add64(A, 20, 20, nf * SEG_H); add64(A, 34, 34, nf * SEG_H); add64(A, 36, 36, nf * SEG_H); add64(A, 52, 52, nf * 128)
        A(f"s_add_u32 s24, s24, {nf}")
        A("s_cmp_lt_u32 s24, 64")
        A(f"s_cbranch_scc1 L_f_top_{sfx}")
        tl(A, 4)
        A("s_branch L_exit")
```

```python
from common import *
import math

def stage_mod(A, idx_s):
    A(f"s_load_dwordx4 s[16:19], s[0:1], {KA_C}")
    lane_const(A, 2, lambda t: (t >> 3) * 6912 + (t & 7) * 16, tmp=1)
    lane_const(A, 3, lambda t: (t >> 3) * 2, tmp=1)
    A(f"s_lshl_b32 s12, {idx_s}, 7")
    A("s_waitcnt lgkmcnt(0)")
    add64(A, 18, 18, "s12")
    for i in range(18): A(f"global_load_ushort v{8+i}, v3, s[16:17] offset:{64 * i}")
    for i in range(18):
        A(f"global_load_dwordx4 {v(40 + 4 * i, 4)}, v2, s[18:19]")
        if i < 17: add64(A, 18, 18, 32 * 6912)
    A(f"s_mov_b32 s12, {f32bits(-math.log2(math.e)):#x}")
    A("s_waitcnt vmcnt(18)")
    for i in range(18):
        r = 8 + i
        A(f"v_lshlrev_b32 v{r}, 16, v{r}")
        A(f"v_mul_f32 v4, s12, v{r}")
        A("v_exp_f32 v4, v4")
        A("v_add_f32 v4, 1.0, v4")
        A("v_rcp_f32 v4, v4")
        A(f"v_mul_f32 v{r}, v{r}, v4")
        rnd1(A, r)
    for k in range(8): A(f"v_mov_b32 v{28+k}, 0")
    for i in range(18):
        A(f"s_waitcnt vmcnt({17 - i})")
        for q in range(4):
            A(f"v_lshlrev_b32 v4, 16, v{40+4*i+q}")
            A(f"v_and_b32 v5, 0xffff0000, v{40+4*i+q}")
            A(f"v_fmac_f32 v{28+2*q}, v4, v{8+i}")
            A(f"v_fmac_f32 v{29+2*q}, v5, v{8+i}")
    A("v_lshlrev_b32 v4, 5, v0")
    A("ds_write_b128 v4, v[28:31]")
    A("ds_write_b128 v4, v[32:35] offset:16")
    A("s_waitcnt lgkmcnt(0)")
    A("s_barrier")
    l = A.newlabel('L_md')
    A("s_cmp_lg_u32 s10, 0")
    A(f"s_cbranch_scc1 {l}")
    A("v_lshlrev_b32 v4, 2, v0")
    for i in range(32): A(f"ds_read_b32 v{8+i}, v4 offset:{256 * i}")
    A("s_waitcnt lgkmcnt(0)")
    for st in (16, 8, 4, 2, 1):
        for i in range(st): A(f"v_add_f32 v{8+i}, v{8+i}, v{8+i+st}")
    rnd1(A, 8)
    A("v_add_f32 v9, 1.0, v8")
    A(f"s_sub_u32 s12, {idx_s}, 9")
    A(f"s_sub_u32 s13, {idx_s}, 36")
    A("s_min_u32 s12, s12, s13")
    A("s_cmp_lt_u32 s12, 9")
    A("s_cselect_b64 vcc, -1, 0")
    A("v_cndmask_b32 v8, v8, v9, vcc")
    A("v_cvt_pk_bf16_f32 v8, v8, v8")
    A(f"s_lshl_b32 s12, {idx_s}, 7")
    A("v_lshl_add_u32 v4, v0, 1, s12")
    A(f"global_store_short v4, v8, s[4:5] offset:{WS_MOD} sc1")
    A("s_waitcnt vmcnt(0)")
    A.label(l)
    counter_arrive(A, DBG_MODCNT, tv=4)
    A("s_barrier")

def stage_ln1(A, idx_s):
    lsk = A.newlabel('L_lnskip')
    A("s_mul_i32 s15, s10, 96")
    A(f"s_add_u32 s15, s15, {idx_s}")
    A("s_cmp_ge_u32 s15, 128")
    A(f"s_cbranch_scc1 {lsk}")
    X = 16
    A(f"s_load_dwordx2 s[16:17], s[0:1], {KA_X}")
    lane_const(A, 2, lambda t: (t & 15) * 1152 + ((t >> 4) & 3) * 16, tmp=1)
    lane_const(A, 3, lambda t: ((t >> 4) & 3) * 16, tmp=1)
    lane_const(A, 4, lambda t: (t & 63) * 16, tmp=1)
    A("s_mul_i32 s12, s15, 18432")
    A("s_waitcnt lgkmcnt(0)")
    add64(A, 16, 16, "s12")
    A(f"s_add_u32 s12, s12, {WS_H}")
    add64(A, 18, S_WS, "s12")
    for ks in range(18): A(f"global_load_dwordx4 {v(160 + 4 * ks, 4)}, v2, s[16:17] offset:{64 * ks}")
    A("v_mov_b64 v[6:7], 0")
    for ks in range(18):
        A(f"s_waitcnt vmcnt({17 - ks})")
        for q in range(4):
            r = X + 8 * ks + 2 * q
            A(f"v_lshlrev_b32 v{r}, 16, v{160+4*ks+q}")
            A(f"v_and_b32 v{r+1}, 0xffff0000, v{160+4*ks+q}")
            A(f"v_pk_add_f32 v[6:7], v[6:7], {v(r, 2)}")
    A("v_add_f32 v6, v6, v7")
    xsum(A, 6, 7, bits=(4, 5))
    A(f"v_mul_f32 v6, {f32bits(1.0 / 576):#x}, v6")
    A("v_mov_b64 v[8:9], 0")
    for i in range(72):
        A(f"v_pk_add_f32 v[10:11], {v(X + 2 * i, 2)}, v[6:7] op_sel_hi:[1,0] neg_lo:[0,1] neg_hi:[0,1]")
        A("v_pk_fma_f32 v[8:9], v[10:11], v[10:11], v[8:9]")
    A("v_add_f32 v8, v8, v9")
    xsum(A, 8, 9, bits=(4, 5))
    A(f"v_mul_f32 v8, {f32bits(1.0 / 576):#x}, v8")
    rnd1(A, 8); rnd1(A, 6)
    A(f"v_add_f32 v8, {f32bits(1e-5):#x}, v8")
    rnd1(A, 8)
    A("v_sqrt_f32 v8, v8")
    rnd1(A, 8)
    A("v_rcp_f32 v8, v8")
    for i in range(72):
        r = X + 2 * i
        A(f"v_pk_add_f32 {v(r, 2)}, {v(r, 2)}, v[6:7] op_sel_hi:[1,0] neg_lo:[0,1] neg_hi:[0,1]")
        rnd2(A, r)
        A(f"v_pk_mul_f32 {v(r, 2)}, {v(r, 2)}, v[8:9] op_sel_hi:[1,0]")
        rnd2(A, r)
    tl(A, 5, 10)
    counter_wait(A, DBG_MODCNT, 54, tv=10, sleep=8, one=False)
    tl(A, 6, 10)
    def mload(bt):
        for k in range(6):
            ks = 6 * bt + k; rb = 160 + 48 * (bt & 1) + 8 * k
            A(f"global_load_dwordx4 {v(rb, 4)}, v3, s[4:5] offset:{WS_MOD + 1152 + 64 * ks} sc1")
            A(f"global_load_dwordx4 {v(rb + 4, 4)}, v3, s[4:5] offset:{WS_MOD + 64 * ks} sc1")
    mload(0); mload(1)
    for bt in range(3):
        A(f"s_waitcnt vmcnt({12 if bt < 2 else 0})")
        for k in range(6):
            ks = 6 * bt + k; rb = 160 + 48 * (bt & 1) + 8 * k
            for q in range(4):
                r = X + 8 * ks + 2 * q
                A(f"v_lshlrev_b32 v10, 16, v{rb+q}")
                A(f"v_and_b32 v11, 0xffff0000, v{rb+q}")
                A(f"v_lshlrev_b32 v12, 16, v{rb+4+q}")
                A(f"v_and_b32 v13, 0xffff0000, v{rb+4+q}")
                A(f"v_pk_mul_f32 {v(r, 2)}, {v(r, 2)}, v[10:11]")
                rnd2(A, r)
                A(f"v_pk_add_f32 {v(r, 2)}, {v(r, 2)}, v[12:13]")
                A(f"v_cvt_pk_bf16_f32 v{X+8*ks+q}, v{r}, v{r+1}")
            if bt == 2:
                for kk in (k, 6 + k, 12 + k):
                    add64(A, 12, 18, kk * 1024)
                    A(f"global_store_dwordx4 v4, {v(X + 8 * kk, 4)}, s[12:13] sc1")
        if bt == 0: mload(2)
    A(f"v_mov_b32 v10, {DBG_HCNT * 4}")
    A("v_mov_b32 v11, 1")
    A("s_waitcnt vmcnt(0)")
    A("s_mov_b64 exec, 1")
    A("global_atomic_add v10, v11, s[6:7] sc1")
    A("s_mov_b64 exec, -1")
    A.label(lsk)
    A("s_barrier")

def WF(i):
    return 256 + 4 * i if i < 64 else 224 + 4 * (i - 64)

def role_kv(A, restart, nkv, kvg0, wait_h=True):
    A(f"s_load_dwordx4 s[16:19], s[0:1], {KA_WK}")
    dense256_consts(A, 12, 16, 8192, 1)
    A("s_lshl_b32 s12, s9, 8")
    A("s_waitcnt lgkmcnt(0)")
    add64(A, 16, 16, "s12"); add64(A, 18, 18, "s12")
    def fr(m, ks, b): return WF(ks * 4 + m * 2 + b)
    chunks = []
    for c in range(9):
        for m in range(2):
            chunks.append(dict(ptr=16 + 2 * m, off=c * 64 * 8192, vb=12, reads=dense256_reads(lambda ks, b, m=m: fr(m, ks, b), 16, c)))
    ring_load(A, chunks)
    tl(A, 1)
    mode_check(A, tv=12)
    T16, L16, HA = 1, 2, 3
    A(f"v_lshlrev_b32 v{T16}, 4, v0")
    lane_const(A, L16, lambda t: (t & 63) * 16, tmp=12)
    A(f"s_sub_u32 s24, s8, {kvg0}")
    A(f"s_mul_i32 s12, s24, {SEG_H}")
    A(f"s_add_u32 s12, s12, {WS_H}")
    add64(A, 20, S_WS, "s12")
    A("s_lshl_b32 s12, s24, 5")
    A("s_add_u32 s12, s12, s9")
    A("s_lshl_b32 s12, s12, 14")
    A(f"s_add_u32 s12, s12, {WS_KV + 2048}")
    add64(A, 22, S_WS, "s12")
    A("s_lshl_b32 s13, s10, 11")
    A("s_add_u32 s12, s12, s13")
    A("s_add_u32 s12, s12, 6144")
    add64(A, 30, S_WS, "s12")
    A("s_lshl_b32 s12, s8, 5")
    A("s_add_u32 s12, s12, s9")
    A("s_lshl_b32 s12, s12, 7")
    A(f"s_add_u32 s12, s12, {WS_KVPROG}")
    add64(A, 32, S_WS, "s12")
    A("s_lshl_b32 s26, s10, 10")
    A("s_mov_b32 s27, 0")
    A("s_mov_b32 s28, 0")
    A("s_mov_b32 s29, 0")
    if wait_h: counter_wait(A, DBG_HCNT, 128, tv=12)
    tl(A, 2)
    def adv():
        add64(A, 20, 20, nkv * SEG_H)
        A(f"s_add_u32 s26, s26, {SEG_H}")
        A(f"s_cmp_ge_u32 s26, {3 * SEG_H}")
        A(f"s_cselect_b32 s12, {3 * SEG_H}, 0")
        A("s_sub_u32 s26, s26, s12")
    for _ in range(2):
        seg_dma(A, T16, 20, 26); adv()
    A("s_waitcnt vmcnt(9)")
    A("s_branch L_kv_first")
    A.label("L_kv_top")
    A("s_waitcnt vmcnt(14)")
    A.label("L_kv_first")
    A("s_barrier")
    A("s_sub_u32 s12, s28, 1")
    A("s_max_i32 s12, s12, s29")
    A("v_mov_b32 v4, s12")
    A("s_mov_b64 exec, 1")
    A(f"global_store_dword v{L16}, v4, s[32:33] sc1")
    A("s_mov_b64 exec, -1")
    A(f"v_add_u32 v{HA}, s27, v{L16}")
    D = Lds(A)
    ACC, RING, NR = 8, 40, 6
    seq = [(ks, tt) for ks in range(18) for tt in range(2)]
    def rd(i):
        ks, tt = seq[i]
        D.op(f"ds_read_b128 {v(RING + 4 * (i % NR), 4)}, v{HA} offset:{(tt * 18 + ks) * 1024}", i)
    for i in range(NR - 1): rd(i)
    seg_dma(A, T16, 20, 26); adv()
    for i, (ks, tt) in enumerate(seq):
        if i + NR - 1 < 36: rd(i + NR - 1)
        D.wait(i)
        h = v(RING + 4 * (i % NR), 4)
        for m in range(2):
            for b in range(2):
                d = v(ACC + ((m * 2 + b) * 2 + tt) * 4, 4)
                w = u(fr(m, ks, b), 4)
                A(f"{MF32} {d}, {w if m == 0 else h}, {h if m == 0 else w}, {d if ks else 0}")
    def ac(m, b, tt): return ACC + ((m * 2 + b) * 2 + tt) * 4
    O = 64
    for tt in range(2):
        for r in range(4): A(f"v_cvt_pk_bf16_f32 v{O+4*tt+r}, v{ac(0,0,tt)+r}, v{ac(0,1,tt)+r}")
        A(f"global_store_dwordx4 v{T16}, {v(O + 4 * tt, 4)}, s[22:23] offset:{tt * 4096 - 2048} sc1")
    for b in range(2):
        for q in range(4): A(f"v_cvt_pk_bf16_f32 v{O+8+4*b+q}, v{ac(1,b,q>>1)+2*(q&1)}, v{ac(1,b,q>>1)+2*(q&1)+1}")
        A(f"global_store_dwordx4 v{L16}, {v(O + 8 + 4 * b, 4)}, s[30:31] offset:{b * 1024} sc1")
    add64(A, 22, 22, nkv << 19); add64(A, 30, 30, nkv << 19)
    A(f"s_add_u32 s27, s27, {SEG_H}")
    A(f"s_cmp_ge_u32 s27, {3 * SEG_H}")
    A("s_cselect_b32 s27, 0, s27")
    A("s_add_u32 s28, s28, 1")
    A(f"s_add_u32 s24, s24, {nkv}")
    A("s_cmp_gt_u32 s28, 2")
    A("s_cbranch_scc1 L_kv_lazy")
    A("s_waitcnt vmcnt(0)")
    A("s_mov_b32 s29, s28")
    A.label("L_kv_lazy")
    A("s_cmp_lt_u32 s24, 64")
    A("s_cbranch_scc1 L_kv_top")
    A("s_waitcnt vmcnt(0)")
    A("s_barrier")
    tl(A, 4)
    A("v_mov_b32 v4, s28")
    A("s_mov_b64 exec, 1")
    A(f"global_store_dword v{L16}, v4, s[32:33] sc1")
    A("s_branch L_exit")
```

```python
from common import *
import math, struct

L_MEM, L_KX, L_VX = 0, 9216, 17408
L_QL, L_KL, L_OL = 25600, 27904, 30208
L_JUNK = 32256
L_WK = 32768
QSTR = 288
KL0 = L_KL - L_QL
T16, WKB, L16, MEMR, QR, QKW, OW, IDX = range(0, 8)
TMPC = WKB
def WQ(ks, b): return 256 + (ks * 2 + b) * 8
def WV(ks, b):
    i = ks * 2 + b
    return 400 + i * 8 if i < 14 else 64 + (i - 14) * 8
def WO(t, k2): return 96 + (t * 2 + k2) * 8
def WK8(b): return 240 + b * 8
ACCV0, ACCQ, ACCK, MRING, WRING, ACCV1 = 8, 12, 20, 28, 40, 40
SMF = "v_smfmac_f32_16x16x64_bf16"
MF32 = "v_mfma_f32_16x16x32_bf16"
MF16 = "v_mfma_f32_16x16x16_bf16"
IDQ = "quad_perm:[0,1,2,3]"
ROR8 = "row_ror:8 row_mask:0xf bank_mask:0xf"
def FSW(i): return 2 * (0, 2, 3, 1)[i >> 1] + (i & 1)
def img(i, pos): return i * 128 + ((pos ^ FSW(i)) * 16)
PI = [0, 1, 4, 5, 2, 3, 6, 7]
EXP = {}
PF = 1
ORD = [8, 0, 1, 2, 3, 4, 5, 6, 7]

WORD = [8, 0, 1, 2, 3, 4, 5, 6, 7]
def swap_tab():
    nsw = EXP.get('nsw', 0)
    return list(zip([4, 7, 10, 13, 15, 1][:nsw], [3, 7, 10, 13, 16, 0][:nsw]))
def wo_reg(k): return WO(WORD[k // 2], k & 1)
def wk_off(n): return L_WK + (n >> 1) * 16384 + (n & 1) * 8192

def r_swap(A):
    for n, k in swap_tab():
        A(f"v_lshlrev_b32 v12, 4, v0")
        A(f"v_add_u32 v12, {wk_off(n)}, v12")
        A("ds_read_b128 v[16:19], v12")
        A("ds_read_b128 v[20:23], v12 offset:4096")
        A("s_waitcnt lgkmcnt(0)")
        r = wo_reg(k)
        A(f"ds_write_b128 v12, {v(r, 4)}")
        A(f"ds_write_b128 v12, {v(r + 4, 4)} offset:4096")
        A("s_waitcnt lgkmcnt(0)")
        for q in range(0, 8, 2): A(f"v_mov_b64 {v(r + q, 2)}, {v(16 + q, 2)}")

def r_setup(A):
    A(f"s_load_dwordx4 s[16:19], s[0:1], {KA_WQ}")
    A(f"s_load_dwordx4 s[20:23], s[0:1], {KA_WV}")
    A(f"s_load_dwordx2 s[24:25], s[0:1], {KA_MEM0}")
    def swz(lr): return 2 * ((lr & 1) | ((lr >> 3) & 1) << 1 | ((lr >> 5) & 1) << 2)
    def swz2(row): return 2 * (((row >> 2) & 1) | ((row >> 4) & 1) << 1)
    for ip in range(4):
        def fq(t, last=False):
            w, l = t >> 6, t & 63
            lr = 16 * w + 4 * ip + (l >> 4); e, pos = lr >> 3, lr & 7
            d = 512 + 8 * pos + e if last else 64 * (e & 1) + 4 * pos + (e >> 1)
            return d * 8192 + (((l & 15) ^ swz(lr)) * 16)
        lane_const(A, 12 + ip, fq, tmp=1)
        lane_const(A, 16 + ip, lambda t: fq(t, True), tmp=1)
        lane_const(A, 20 + ip, lambda t: (32 * (t >> 6) + 8 * ip + ((t & 63) >> 3)) * 1152, tmp=1)
        lane_const(A, 20 + ip, lambda t: ((t & 7) ^ swz2(32 * (t >> 6) + 8 * ip + ((t & 63) >> 3))) * 16, tmp=1, acc=True)
    def ftr(t, b):
        w, l = t >> 6, t & 63
        gb, half, bp, c = l >> 4, (l >> 3) & 1, (l >> 2) & 1, l & 3
        lr = 32 * (gb & 1) + 8 * bp + 2 * (gb >> 1) + half
        return L_WK + lr * 256 + (((4 * w + 2 * b + (c >> 1)) ^ swz(lr)) * 16) + (c & 1) * 8
    lane_const(A, 24, lambda t: ftr(t, 0), tmp=1)
    lane_const(A, 25, lambda t: ftr(t, 1), tmp=1)
    def fto(t):
        w, l = t >> 6, t & 63
        gb, half, bp, c = l >> 4, (l >> 3) & 1, (l >> 2) & 1, l & 3
        row = 16 * (gb & 1) + 8 * (gb >> 1) + 4 * half + bp
        return L_WK + row * 128 + (((2 * w + (c >> 1)) ^ swz2(row)) * 16) + (c & 1) * 8
    lane_const(A, 26, fto, tmp=1)
    lane_const(A, 27, lambda t: L_WK + t * 16, tmp=1)
    A("s_waitcnt lgkmcnt(0)")
    A("s_lshl_b32 s12, s9, 8")
    for p in (16, 18, 20):
        add64(A, p, p, "s12")
    A("s_mul_i32 s12, s9, 147456")
    add64(A, 22, 22, "s12")
    A("s_lshl_b32 s26, s10, 12")
    A(f"s_add_u32 s26, s26, {L_WK}")
    chunks = [('q', k) for k in range(9)] + [('v', k) for k in range(9)] + [('o', t) for t in range(9)] + [('k', 7)] + [('k', ORD[j % 8]) for j in range(28, 36)]
    ptr = {'q': 16, 'k': 18, 'v': 20, 'o': 22}
    def issue(j):
        m, k = chunks[j]
        slot = j % 8
        if m == 'o': off, vb = k * 128, 20
        elif k < 8: off, vb = (128 * (k >> 1) + 32 * (k & 1)) * 8192, 12
        else: off, vb = 0, 16
        add64(A, 12, ptr[m], off)
        for ip in range(4):
            A(f"s_add_u32 m0, s26, {slot * 16384 + ip * 1024}")
            A(f"global_load_lds_dwordx4 v{vb+ip}, s[12:13]")
    def fd(m, t): return 256 * m + t if m < 2 else 512 + (t & 63)
    def fa(m, t):
        d = fd(m, t)
        if d < 512: ks, e, pos = 2 * (d >> 7) + ((d >> 5) & 1), 2 * (d & 3) + ((d >> 6) & 1), (d >> 2) & 7
        else: ks, e, pos = 8, d & 7, (d >> 3) & 7
        return ks * 1024 + pos * 16 + e * 2
    def mem0_issue():
        for m in range(3):
            lane_const(A, 4 + m, lambda t: 2 * fd(m, t), tmp=1)
            lane_const(A, 8 + m, lambda t: fa(m, t), tmp=1)
            for i in range(8):
                A(f"v_add_u32 v2, {i * 1152}, v{4+m}")
                A(f"global_load_ushort v{32+8*m+i}, v2, s[24:25]")
    def mem0_write():
        for m in range(3):
            for i in range(8):
                A(f"v_xor_b32 v2, {FSW(i) * 16}, v{8+m}")
                A(f"ds_write_b16 v2, v{32+8*m+i} offset:{L_MEM + i * 128}")
    def status0():
        lane_const(A, 2, lambda t: arr_word(t & 7) * 4, tmp=1)
        A("global_load_dword v4, v2, s[6:7] sc1")
    def status_issue():
        A(f"v_mov_b32 v2, {DBG_KCLR * 4}")
        A("global_load_dword v5, v2, s[6:7] sc1")
        A("s_lshl_b32 s12, s9, 7")
        A(f"s_add_u32 s12, s12, {WS_KVPROG + 4096}")
        A("v_mov_b32 v2, s12")
        A("global_load_dword v6, v2, s[4:5] sc1")
    for j in range(7): issue(j)
    n = len(chunks)
    for j in range(n + 1):
        if j < n:
            ahead = min(n - 1, j + 6) - j
            extra = 24 if 1 <= j <= 7 else (2 if 33 <= j <= 35 else (1 if 25 <= j <= 31 else 0))
            A(f"s_waitcnt vmcnt({4 * ahead + extra})")
        A("s_barrier")
        if j + 7 < n: issue(j + 7)
        if j == 0: mem0_issue()
        if j == 9: mem0_write()
        if j == 28: counter_arrive(A, DBG_RLD, tv=2)
        if j == 24: status0()
        if j == 32: status_issue()
        if j >= 29:
            pk = (j - 1) % 8; tb = 32 + ((j - 1) & 1) * 16
            A(f"v_add_u32 v28, {pk * 16384}, v27")
            for q in range(4):
                A(f"ds_write_b128 v28, {v(tb + 4 * q, 4)} offset:{q * 4096}")
        if j < n:
            m, k = chunks[j]; slot = j % 8
            if m == 'o':
                A(f"v_add_u32 v28, {slot * 16384}, v26")
                for k2 in range(2):
                    for jq in range(4):
                        off = (64 * k2 + 32 * (jq >> 1) + 2 * (jq & 1)) * 128
                        A(f"ds_read_b64_tr_b16 {u(WO(k, k2) + 2 * jq, 2)}, v28 offset:{off}")
            else:
                A(f"v_add_u32 v28, {slot * 16384}, v24")
                A(f"v_add_u32 v29, {slot * 16384}, v25")
                for b in range(2):
                    if m == 'q': dst = WQ(k, b)
                    elif m == 'v': dst = WV(k, b)
                    elif j == 27: dst = WK8(b)
                    else: dst = 32 + (j & 1) * 16 + b * 8
                    for jq in range(4):
                        off = (16 * (jq & 1) + 4 * (jq >> 1)) * 256
                        A(f"ds_read_b64_tr_b16 {u(dst + 2 * jq, 2)}, v{28+b} offset:{off}")
        A("s_waitcnt lgkmcnt(0)")

def r_consts(A):
    lane_const(A, L16, lambda t: (t & 63) * 16, tmp=12)
    lane_const(A, MEMR, lambda t: img((t & 15) >> 1, 2 * ((t >> 4) & 3) + (t & 1)), tmp=12)
    lane_const(A, QR, lambda t: L_QL + (t & 7) * QSTR + ((t >> 4) & 3) * 16, tmp=12)
    lane_const(A, QKW, lambda t: L_QL + (0, 4, 2, 6)[(t >> 4) & 3] * QSTR + (t >> 6) * 64 + (t & 15) * 4, tmp=12)
    lane_const(A, OW, lambda t: (t >> 7) * 1024 + img(PI[t & 7], 4 * ((t >> 6) & 1) + ((t >> 4) & 3)), tmp=12)
    A(f"v_add_u32 v{OW}, {L_OL}, v{OW}")
    lane_const(A, 14, lambda t: L_JUNK + (((t >> 4) & 3) * 8 + (t & 7)) * 16, tmp=12)
    A("v_and_b32 v12, 8, v0")
    A("v_cmp_ne_u32 vcc, 0, v12")
    A(f"v_cndmask_b32 v{OW}, v{OW}, v14, vcc")
    lane_const(A, IDX, lambda t: 0xEEEE if t & 1 else 0x4444, tmp=12)
    A(f"v_lshlrev_b32 v{T16}, 4, v0")
    A("s_and_b32 s12, s10, 1")
    A("s_lshl_b32 s12, s12, 5")
    A("s_add_u32 s37, s12, s9")
    A("v_mov_b32 v14, s37")
    lane_const(A, 15, lambda t: ms_fn(1, t, 0), src=14, nbits=6, tmp=12)
    lane_const(A, 16, lambda t: ms_fn(2, t, 0), src=14, nbits=5, tmp=12)
    if EXP.get('tm', 1): lane_const(A, 17, lambda t: WS_RP + t * 4096, src=14, nbits=6, tmp=12)
    else: lane_const(A, 17, lambda t: WS_RP + (t >> 2) * 16384 + (t & 3) * 128 + 4096, src=14, nbits=6, tmp=12)
    lane_const(A, 18, lambda t: WS_RP + 0x40000 + (t >> 3) * 8192 + (t & 7) * 32, src=14, nbits=5, tmp=12)
    A("v_readfirstlane_b32 s41, v15")
    A("v_readfirstlane_b32 s12, v16")
    A("v_readfirstlane_b32 s13, v17")
    A("v_readfirstlane_b32 s14, v18")
    A("s_cmp_lt_u32 s10, 2")
    A("s_cselect_b32 s41, s41, s12")
    A("s_cselect_b32 s13, s13, s14")
    if EXP.get('rep', 0):
        A("s_cselect_b32 s44, -1, 0x03030303")
        A("s_mov_b32 s45, s44")
        A("s_and_b32 s36, s9, 3")
        A("s_lshl_b32 s36, s36, 15")
        A("s_add_u32 s36, s36, 3072")
    else:
        A("s_mov_b32 s44, 0x00030003")
        A("s_cselect_b32 s44, 0x00FF00FF, s44")
        A("s_mov_b32 s45, 0")
        A("s_movk_i32 s36, 3072")
    add64(A, 28, S_WS, "s13")
    add64(A, 16, 28, 8192)
    A("s_lshl_b32 s12, s10, 5")
    A("s_add_u32 s12, s12, s9")
    A("s_lshl_b32 s13, s12, 9")
    if EXP.get('tm', 1):
        A("s_lshl_b32 s13, s10, 7")
        A("s_add_u32 s13, s13, s9")
        A("s_lshl_b32 s13, s13, 7")
    A(f"s_add_u32 s13, s13, {WS_RP}")
    add64(A, 26, S_WS, "s13")
    for p in range(1, 4): add64(A, 88 + 2 * p, 26, p * 65536)
    A("s_lshl_b32 s13, s12, 8")
    A(f"s_add_u32 s13, s13, {WS_RP + 0x40000}")
    add64(A, 42, S_WS, "s13")
    add64(A, 30, S_WS, WS_RM)
    cc = struct.unpack('<I', struct.pack('<f', (128 ** -0.5) * math.log2(math.e)))[0]
    A(f"s_mov_b32 s46, {cc:#x}")
    A("s_bfe_u32 s40, s9, 0x10003")
    A("s_lshl_b32 s12, s9, 14")
    A(f"s_add_u32 s12, s12, {WS_KV}")
    add64(A, 88, S_WS, "s12")
    A("s_lshl_b32 s13, s10, 11")
    add64(A, 32, 88, "s13")
    add64(A, 86, 32, 8192)
    A("s_lshl_b32 s12, s9, 12")
    A(f"s_add_u32 s12, s12, {WS_KVM}")
    add64(A, 50, S_WS, "s12")
    A("s_lshl_b32 s12, s9, 7")
    A(f"s_add_u32 s12, s12, {WS_KVPROG + 4096}")
    add64(A, 18, S_WS, "s12")
    A("s_lshl_b32 s12, s9, 2")
    A(f"s_add_u32 s12, s12, {WS_RPROG}")
    add64(A, 52, S_WS, "s12")
    A("s_lshl_b32 s12, s9, 7")
    A(f"s_add_u32 s12, s12, {WS_RPROG}")
    add64(A, 22, S_WS, "s12")
    A("s_lshl_b32 s62, s10, 11")
    A(f"s_add_u32 s62, s62, {L_KX}")
    A("s_lshl_b32 s63, s10, 10")
    A(f"s_add_u32 s57, s63, {L_MEM}")
    A(f"s_add_u32 s63, s63, {L_VX}")

def ms_fn(kind, t, l):
    q8, gp = l & 7, (l >> 4) & 1
    rp = (((l >> 3) & 1) + 2 * (l >> 5)) * 32768
    if kind == 1:
        w, g = (t >> 2) & 3, t & 3
        return rp + (t >> 3) * 1024 + img(2 * g + gp, 4 * (w & 1) + (q8 >> 1)) + (q8 & 1) * 8
    w, g, nh = t >> 3, (t >> 1) & 3, t & 1
    return rp + 8192 + img(2 * g + gp, 2 * w + nh) + (l & 1) * 8

def ms_calc(A, kind, dst, tmp):
    lane_const(A, dst, lambda x: ms_fn(kind, 0, x >> 4) ^ ms_fn(kind, 0, 0), src=L16, nbits=10, tmp=tmp, mode='xor')
    A(f"v_xor_b32 v{dst}, s41, v{dst}")

def kv_wait(A, seg_sgpr, nkv, kvg0, tv):
    if nkv == 0: return
    ok = A.newlabel('L_kvok'); loop = A.newlabel('L_kvp')
    A(f"s_cmp_lt_u32 {seg_sgpr}, s54")
    A(f"s_cbranch_scc1 {ok}")
    A("s_mov_b32 s55, 0")
    A.label(loop)
    A(f"v_lshrrev_b32 v{tv}, 4, v{L16}")
    A(f"v_min_u32 v{tv}, {nkv - 1}, v{tv}")
    A(f"v_lshlrev_b32 v{tv+1}, 12, v{tv}")
    A("s_lshl_b32 s12, s9, 7")
    A(f"s_add_u32 s12, s12, {WS_KVPROG + kvg0 * 4096}")
    A(f"v_add_u32 v{tv+1}, s12, v{tv+1}")
    A(f"global_load_dword v{tv+1}, v{tv+1}, s[4:5] sc1")
    A("s_add_u32 s55, s55, 1")
    A(f"s_cmp_gt_u32 s55, {SPIN_MAX}")
    A("s_cbranch_scc1 L_exit")
    A("s_waitcnt vmcnt(0)")
    A(f"v_mul_u32_u24 v{tv+1}, {nkv}, v{tv+1}")
    A(f"v_add_u32 v{tv+1}, v{tv+1}, v{tv}")
    A(f"v_readlane_b32 s54, v{tv+1}, 0")
    for j in range(1, nkv):
        A(f"v_readlane_b32 s12, v{tv+1}, {j}")
        A("s_min_u32 s54, s54, s12")
    A(f"s_cmp_lt_u32 {seg_sgpr}, s54")
    A(f"s_cbranch_scc0 {loop}")
    A.label(ok)

def r_main(A, fast, nkv, kvg0, nsteps=64):
    st = "" if fast else "sc1"
    sfx = "f" if fast else "s"
    D = Lds(A)
    TR = EXP.get('trace', [])
    def tr(name):
        if name in TR:
            i = TR.index(name)
            A(f"{'s_memrealtime' if EXP.get('real') else 's_memtime'} s[{64+2*i}:{65+2*i}]")
    A("s_mov_b32 s24, 0")
    A("s_mov_b32 s34, 9216")
    A("s_mov_b32 s35, 0")
    if TR or EXP.get('rt'):
        for i in range(22 if TR else 16): A(f"s_mov_b32 s{64+i}, 0")
    tl(A, 2)
    A("s_mov_b32 s25, 1")
    kv_wait(A, "s25", nkv, kvg0, 12)
    tl(A, 3)
    if EXP.get('rt'):
        A("s_memrealtime s[80:81]")
        A("s_memtime s[96:97]")
    SW = dict(swap_tab()); SWO = {k: n for n, k in swap_tab()}
    LW = [n for n in range(16) if n not in SW]
    cur = [0]
    def lds_frag(n, r, tag, areg=WKB):
        off = wk_off(n); base = (off // 65536) * 65536
        if base and cur[0] != base:
            A(f"v_add_u32 v{areg}, {base:#x}, v{T16}")
            cur[0] = base
        ar = T16 if base == 0 else areg
        D.op(f"ds_read_b128 {v(r, 4)}, v{ar} offset:{off - base}")
        D.op(f"ds_read_b128 {v(r + 4, 4)}, v{ar} offset:{off - base + 4096}", tag)
    RSH = (3 - (len(LW) - 1) % 3) % 3
    def wslot(i): return WRING + ((i + RSH) % 3) * 8
    def wk_read(i):
        if i < 3: cur[0] = 0
        lds_frag(LW[i], wslot(i), ('wk', i))
    def spill_read(r):
        D.op(f"ds_read_b32 v{r}, v{QKW} offset:{KL0}")
        D.op(f"ds_read_b32 v{r+1}, v{QKW} offset:{KL0 + QSTR}")
        D.op(f"ds_read2_b32 {v(r + 2, 2)}, v{QKW} offset0:0 offset1:{QSTR // 4}", 'spill')
    def zero_qk(lo=ACCQ, hi=ACCQ + 16):
        for r in range(lo, hi, 2): A(f"v_mov_b64 {v(r, 2)}, 0")
    for n in sorted(range(3), key=wslot): wk_read(n)
    add64(A, 38, S_WS, WS_STAMP + 0x8000)
    add64(A, 58, 88, 1 << 19)
    zero_qk()
    D.waitall()
    top = f"L_rtop_{sfx}"
    if 'al' in EXP:
        A.raw(".p2align 6")
        for _ in range(EXP['al']): A("s_nop 0")
    A.label(top)
    A("s_barrier")
    tr('b1')
    def mem_read(ks, r, tag):
        D.op(f"ds_read_b128 {v(r, 4)}, v{MEMR} offset:{L_MEM + ks * 1024}", tag)
    def mslot(p): return MRING + (p % 3) * 4
    A("s_mov_b32 m0, s62")
    for p in range(3): mem_read(ORD[p], mslot(p), ('m', p))
    A(f"global_load_lds_dwordx4 v{L16}, s[32:33]")
    if not EXP.get('kd2'):
        A(f"global_load_lds_dwordx4 v{L16}, s[32:33] offset:1024")
        A("s_mov_b32 m0, s63")
    loc = {('m', 8): mslot(8), ('m', 7): mslot(7), ('m', 6): mslot(6)}
    NSL = 3 if nkv else 2
    def sread(tag, r):
        loc[tag] = r
        if tag[0] == 'q': D.op(f"ds_read_b128 {v(r, 4)}, v{QR} offset:{tag[1] * 64}", tag)
        elif tag[0] == 'km': D.op(f"ds_read_b128 {v(r, 4)}, v{QR} offset:{KL0 + tag[1] * 64}", tag)
        elif tag[0] == 'kx': D.op(f"ds_read_b128 {v(r, 4)}, v{L16} offset:{L_KX + (tag[1] * 4 + tag[2]) * 1024}", tag)
        elif tag[0] == 'm': mem_read(ORD[tag[1]], r, tag)
        elif tag[0] == 'vx':
            if tag[1] == 0: A(f"s_waitcnt vmcnt({NSL})")
            D.op(f"ds_read_b128 {v(r, 4)}, v{T16} offset:{L_VX + tag[1] * 4096}", tag)
    def smf(acc, ar, w): A(f"{SMF} {v(acc, 4)}, {v(ar, 4)}, {u(w, 8)}, v{IDX}")
    V0S = EXP.get('v0s', 2)
    ext = {EXP.get('vd1', 1): f"global_load_lds_dwordx4 v{L16}, s[86:87]\ns_add_u32 m0, s63, 3072",
           EXP.get('vd2', 3): f"global_load_lds_dwordx4 v{L16}, s[86:87] offset:1024\ns_mov_b32 m0, {L_JUNK}",
           4 * V0S - 3: f"global_store_dwordx4 v{T16}, {v(ACCV0, 4)}, s[38:39] sc1",
           4 * V0S - 1: f"v_lshlrev_b32 v{ACCV0}, 2, v{T16}\nv_mov_b64 {v(ACCV0 + 2, 2)}, 0",
           4 * V0S + 1: f"global_load_lds_dword v{ACCV0}, s[58:59]\nv_mov_b64 {v(ACCV0, 2)}, 0\ns_mov_b32 m0, {L_QL + 256}"}
    if EXP.get('kd2'): ext[EXP['kd2']] = f"global_load_lds_dwordx4 v{L16}, s[32:33] offset:1024\ns_mov_b32 m0, s63"
    if nkv: ext[4 * V0S + 4] = f"s_mov_b64 exec, 1\nglobal_load_lds_dword v{L16}, s[18:19] sc1\ns_mov_b64 exec, -1"
    if EXP.get('noslow'):
        ext[4 * V0S - 3] = f"global_store_dwordx4 v{T16}, {v(ACCV0, 4)}, s[50:51]"
        ext[4 * V0S + 1] = ext[4 * V0S + 1].replace("s[58:59]", "s[88:89]")
    sb_ = Asm()
    sb_("s_lshl_b32 s13, s24, 17")
    add64(sb_, 38, 50, "s13")
    sb_("s_add_u32 s25, s24, 2")
    sb_(f"s_min_u32 s25, s25, {nsteps - 1}")
    sb_("s_lshl_b32 s13, s25, 19")
    add64(sb_, 58, 88, "s13")
    add64(sb_, 86, 86, 0 if EXP.get('noslow') else 1 << 19)
    add64(sb_, 32, 32, 0 if EXP.get('noslow') else 1 << 19)
    add64(sb_, 14, 30, "s34")
    add64(sb_, 60, 30, "s35")
    add64(sb_, 20, 14, "s36")
    sb_("s_and_b32 s12, s24, 1")
    sb_("s_xor_b32 s13, s12, 1")
    sb_("s_xor_b32 s47, s12, s40")
    sb_("s_add_u32 s24, s24, 1")
    sb_("s_mov_b32 s35, s34")
    sb_("s_add_u32 s34, s34, 9216")
    sb_("s_cmp_eq_u32 s34, 27648")
    sb_("s_cselect_b32 s34, 0, s34")
    sb_("s_mov_b32 s55, 0")
    sq = [i.text.strip() for i in sb_.ins]
    cnt_ = [0]
    side = []
    class Defer:
        def op(self, text, tag=None): side.append((text, tag))
    def flush_until(tag):
        while any(t == tag for _, t in side):
            x = side.pop(0)
            D.op(*x) if x[0].startswith('ds_') else A(x[0])
    GAPN = EXP.get('gapn', 2)
    def smfs(acc, ar, w, need=()):
        for t in need:
            flush_until(t); D.wait(t)
        smf(acc, ar, w)
        cnt_[0] += 1
    def gap():
        n = 0
        if cnt_[0] in ext:
            A(ext[cnt_[0]]); n += 1
        while side and n < GAPN:
            x = side.pop(0)
            D.op(*x) if x[0].startswith('ds_') else A(x[0])
            n += 1
        while cnt_[0] > 4 * V0S + 4 and sq and n < GAPN:
            A(sq.pop(0)); n += 1
    def d_wk(i):
        off = wk_off(LW[i]); base = (off // 65536) * 65536
        if base and cur[0] != base:
            side.append((f"v_add_u32 v{WKB}, {base:#x}, v{T16}", None)); cur[0] = base
        ar = T16 if base == 0 else WKB
        side.append((f"ds_read_b128 {v(wslot(i), 4)}, v{ar} offset:{off - base}", None))
        side.append((f"ds_read_b128 {v(wslot(i) + 4, 4)}, v{ar} offset:{off - base + 4096}", ('wk', i)))
    def d_kx(kt, j, r):
        loc[('kx', kt, j)] = r
        side.append((f"ds_read_b128 {v(r, 4)}, v{L16} offset:{L_KX + (kt * 4 + j) * 1024}", ('kx', kt, j)))
    cur[0] = 0
    for p in range(8):
        ks = ORD[p]
        m = mslot(p)
        smfs(ACCQ, m, WQ(ks, 0), [('m', p)]); gap()
        for b in range(2):
            n = 2 * p + b
            if n in SW: smfs(ACCK + 4 * b, m, wo_reg(SW[n]))
            else:
                i = LW.index(n)
                smfs(ACCK + 4 * b, m, wslot(i), [('wk', i)])
                if i + 3 < len(LW): d_wk(i + 3)
            if b == 1 and p + 3 < 9:
                side.append((f"ds_read_b128 {v(mslot(p), 4)}, v{MEMR} offset:{L_MEM + ORD[p + 3] * 1024}", ('m', p + 3)))
            if n == 12:
                side.append((f"s_waitcnt vmcnt({NSL + 2})", None))
                side.append(("s_barrier", None))
            if n == 13: d_kx(0, 0, 48); d_kx(1, 0, 52)
            if n == 14: d_kx(0, 1, 56); d_kx(1, 1, 60)
            gap()
            if b == 0:
                smfs(ACCQ + 4, m, WQ(ks, 1)); gap()
                if p >= V0S: smfs(ACCV0, m, WV(ks, 0)); gap()
        tr(f'a{p+1}')
    assert not side, side
    sread(('m', 5), 44)
    D.wait(('m', 8))
    m = mslot(8); ks = ORD[8]
    smfs(ACCQ, m, WQ(ks, 0)); gap(); smfs(ACCQ + 4, m, WQ(ks, 1))
    for o in sq: A(o)
    A(f"v_mov_b64 {v(ACCV1, 2)}, 0")
    smf(ACCK, m, WK8(0))
    A(f"v_mov_b64 {v(ACCV1 + 2, 2)}, 0")
    smf(ACCK + 4, m, WK8(1))
    A(f"v_mov_b32 v{TMPC}, s47")
    smf(ACCV0, m, WV(ks, 0))
    tr('a9')
    A(f"s_cmp_eq_u32 s24, {nsteps}")
    A(f"s_cbranch_scc1 L_rlast_{sfx}")
    fill = [(p, 1) for p in range(8, V0S - 1, -1)]
    for p in range(V0S - 1, -1, -1): fill += [(p, 1), (p, 0)]
    def filler(cnt=1):
        for _ in range(cnt):
            if fill:
                p, b = fill.pop(0)
                D.wait(('m', p))
                smf(ACCV1 if b else ACCV0, loc[('m', p)], WV(ORD[p], b))
    for acc, lo in ((ACCQ, 0), (ACCK, KL0)):
        for b in range(2):
            A(f"v_add_f32 v{acc+4*b}, v{acc+4*b}, v{acc+4*b+1}")
            A(f"v_add_f32 v{acc+4*b+2}, v{acc+4*b+2}, v{acc+4*b+3}")
        A(f"v_cvt_pk_bf16_f32 v{acc+1}, v{acc}, v{acc+4}")
        A(f"v_cvt_pk_bf16_f32 v{acc+3}, v{acc+2}, v{acc+6}")
        if lo == 0: D.op(f"ds_write2_b32 v{QKW}, v{acc+1}, v{acc+3} offset0:0 offset1:{QSTR // 4}")
        else:
            D.op(f"ds_write_b32 v{QKW}, v{acc+1} offset:{lo}")
            D.op(f"ds_write_b32 v{QKW}, v{acc+3} offset:{lo + QSTR}", 'qkw')
    tr('qkw')
    filler(1)
    sread(('m', 4), 16); sread(('m', 3), 24); sread(('m', 2), mslot(8))
    filler(3)
    D.wait('qkw')
    A("s_barrier")
    tr('b2')
    T0, T1, T2 = 12, 16, 20
    sread(('q', 0), mslot(7)); sread(('km', 0), mslot(6)); sread(('q', 1), 44)
    filler(2)
    sread(('km', 1), 24)
    filler(1 if V0S < 3 else 2)
    sread(('q', 2), mslot(8))
    pend = [('kx', 0, 2), ('kx', 1, 2), ('km', 2), ('q', 3), ('kx', 0, 3), ('kx', 1, 3), ('km', 3),
            ('m', 1), ('m', 0), ('vx', 0), ('vx', 1)]
    free = []
    for j in range(4):
        for T, tag in ((T0, ('kx', 0, j)), (T1, ('kx', 1, j)), (T2, ('km', j))):
            D.wait(tag); D.wait(('q', j))
            A(f"{MF32} {v(T, 4)}, {v(loc[tag], 4)}, {v(loc[('q', j)], 4)}, {v(T, 4) if j else 0}")
            if pend: sread(pend.pop(0), loc[tag])
            else: free.append(loc[tag])
        if pend: sread(pend.pop(0), loc[('q', j)])
        else: free.append(loc[('q', j)])
    tr('s_done')
    BX, Z, DA, DB = free[0], free[1], free[2], free[3]
    filler(2)
    M, TT, SUM = 16, 17, 18
    VMR = 22
    AO = 28
    busy = set()
    for b_ in (BX, Z, DA, DB, loc[('vx', 0)], loc[('vx', 1)], ACCV1, loc[('m', 0)]): busy |= set(range(b_, b_ + 4))
    zq = [r for r in range(AO, AO + 36, 2) if r not in busy]
    late = set(range(DA, DA + 4)) | set(range(DB, DB + 4))
    zm = [r for r in range(AO, AO + 36, 2) if r in busy and r not in late]
    zl = [r for r in range(AO, AO + 36, 2) if r in late]
    def zero(cnt=1):
        for _ in range(cnt):
            if zq: A(f"v_mov_b64 {v(zq.pop(0), 2)}, 0")
    A(f"v_mov_b32 v{Z+1}, 0")
    A(f"v_mov_b32 v{Z+2}, 0")
    for r in range(4): A(f"v_mov_b32_dpp v{T0+r}, v{T1+r} {IDQ} row_mask:0xf bank_mask:0xc")
    A(f"v_mov_b32_dpp v{T2+2}, v{T2+3} {IDQ} row_mask:0xf bank_mask:0xc")
    A(f"v_mov_b32_dpp v{T2}, v{T2+1} {IDQ} row_mask:0x3 bank_mask:0xc")
    A(f"v_max3_f32 v{M}, v12, v13, v14")
    zero(1)
    A(f"v_mov_b32_dpp v{T2}, v{T2+2} {IDQ} row_mask:0xc bank_mask:0xf")
    A(f"v_max3_f32 v{M}, v{M}, v15, v20")
    tr('max0')
    filler(1); zero(1)
    A(f"v_max_f32_dpp v{M}, v{M}, v{M} {ROR8}")
    A(f"v_mov_b32 v{TT}, v{M}")
    filler(9); zero(1)
    assert not fill
    A(f"v_permlane16_swap_b32 v{M}, v{TT}")
    A(f"v_max_f32 v{M}, v{M}, v{TT}")
    A(f"v_mov_b32 v{TT}, v{M}")
    zero(2)
    A(f"v_permlane32_swap_b32 v{M}, v{TT}")
    A(f"v_max_f32 v{M}, v{M}, v{TT}")
    A(f"v_mul_f32 v{M}, s46, v{M}")
    tr('max1')
    for e in (12, 13, 14, 15, 20): A(f"v_fma_f32 v{e}, v{e}, s46, -v{M}")
    for e in (12, 13, 14, 15): A(f"v_exp_f32 v{e}, v{e}")
    A(f"v_cvt_pk_bf16_f32 v{BX}, v12, v13")
    A(f"v_cvt_pk_bf16_f32 v{BX+1}, v14, v15")
    A("v_exp_f32 v20, v20")
    A(f"v_mov_b32_dpp v{BX+2}, v{BX} {ROR8}")
    A(f"v_mov_b32_dpp v{BX+3}, v{BX+1} {ROR8}")
    A(f"v_mov_b32_dpp v21, v20 {ROR8}")
    A(f"v_add_f32 v{ACCV0}, v{ACCV0}, v{ACCV0+1}")
    D.wait(('vx', 1))
    tr('pv0')
    A(f"{MF32} {v(DA, 4)}, {v(loc[('vx', 0)], 4)}, {v(BX, 4)}, 0")
    A(f"v_add_f32 v{ACCV0+2}, v{ACCV0+2}, v{ACCV0+3}")
    A(f"v_add_f32 v{ACCV1}, v{ACCV1}, v{ACCV1+1}")
    A(f"{MF32} {v(DB, 4)}, {v(loc[('vx', 1)], 4)}, {v(BX, 4)}, 0")
    A(f"v_add_f32 v{ACCV1+2}, v{ACCV1+2}, v{ACCV1+3}")
    A(f"v_cvt_pk_bf16_f32 v{VMR}, v{ACCV0}, v{ACCV0+2}")
    A(f"v_cvt_pk_bf16_f32 v{VMR+1}, v{ACCV1}, v{ACCV1+2}")
    A(f"v_cvt_pk_bf16_f32 v{Z}, v20, v21")
    A(f"v_cvt_pk_bf16_f32 v{Z+3}, v20, v21")
    A(f"v_add_f32 v{SUM}, v12, v13")
    A(f"{MF16} {v(DA, 4)}, {v(VMR, 2)}, {v(Z, 2)}, {v(DA, 4)}")
    A(f"v_add_f32 v{TT}, v14, v15")
    A(f"v_add_f32 v{SUM}, v{SUM}, v20")
    A(f"{MF16} {v(DB, 4)}, {v(VMR, 2)}, {v(Z + 2, 2)}, {v(DB, 4)}")
    tr('pv1')
    A(f"v_add_f32 v{SUM}, v{SUM}, v{TT}")
    zq += zm
    zero(2)
    A(f"v_add_f32_dpp v{SUM}, v{SUM}, v{SUM} {ROR8}")
    A(f"v_mov_b32 v{TT}, v{SUM}")
    zero(2)
    A(f"v_permlane16_swap_b32 v{SUM}, v{TT}")
    A(f"v_add_f32 v{SUM}, v{SUM}, v{TT}")
    A(f"v_mov_b32 v{TT}, v{SUM}")
    zero(2)
    A(f"v_permlane32_swap_b32 v{SUM}, v{TT}")
    A(f"v_add_f32 v{SUM}, v{SUM}, v{TT}")
    A(f"v_rcp_f32 v{SUM}, v{SUM}")
    tr('rcp')
    zero(1)
    for k, Dx in enumerate((DA, DB)):
        for r in (0, 2): A(f"v_pk_mul_f32 {v(Dx + r, 2)}, {v(Dx + r, 2)}, {v(SUM, 2)} op_sel_hi:[1,0]")
    A(f"v_cvt_pk_bf16_f32 v12, v{DA}, v{DA+1}")
    A(f"v_cvt_pk_bf16_f32 v13, v{DA+2}, v{DA+3}")
    A(f"v_cvt_pk_bf16_f32 v14, v{DB}, v{DB+1}")
    A(f"v_cvt_pk_bf16_f32 v15, v{DB+2}, v{DB+3}")
    D.op(f"ds_write_b128 v{OW}, v[12:15]")
    tr('ow')
    zq += zl
    zq.sort()
    PS, PL, WB = 8, 9, 20
    post = [f"v_mov_b64 {v(r, 2)}, 0" for r in zq]
    post += [f"v_lshrrev_b32 v{PL}, 2, v{L16}", f"v_and_b32 v{PS}, 0x300, v{L16}", f"v_bfe_u32 v10, v{L16}, 1, 7", f"v_lshl_or_b32 v{PS}, v{PS}, 4, v10"]
    for _ in range(EXP.get('zb', 4)): A(post.pop(0))
    D.waitall()
    A("s_barrier")
    tr('b3')
    OF = 12
    D.op(f"ds_read_b128 {v(OF, 4)}, v{MEMR} offset:{L_OL}", 'o0')
    D.op(f"ds_read_b128 {v(OF + 4, 4)}, v{MEMR} offset:{L_OL + 1024}", 'o1')
    A(post.pop(0))
    D.op(f"ds_write2_b32 v{QKW}, v{VMR}, v{VMR+1} offset0:0 offset1:{QSTR // 4}")
    cur[0] = 0
    wq_ = sorted(SWO)
    def wo_next():
        if wq_:
            k_ = wq_.pop(0)
            lds_frag(SWO[k_], WB, ('wo', k_), areg=11)
    wo_next()
    for _ in range(EXP.get('za', 2)): A(post.pop(0))
    def acc(t): return AO + 4 * WORD.index(t)
    def wpost(t):
        c = acc(t)
        o = [f"v_add_f32 v{c}, v{c}, v{c+1}", f"v_add_f32 v{c+1}, v{c+2}, v{c+3}"]
        if t == 8:
            o.append(f"v_cvt_pk_bf16_f32 v{c+2}, v{c}, v{c+1}")
            o.append(f"v_bfi_b32 v{c+2}, 1, v{TMPC}, v{c+2}")
            o.append(f"global_store_dword v{PL}, v{c+2}, s[42:43] {st}")
        elif t & 1:
            p = acc(t - 1); sb = 26 if t == 1 else 88 + 2 * (t // 2)
            o.append(f"v_cvt_pk_bf16_f32 v{c+2}, v{p}, v{c}")
            o.append(f"v_cvt_pk_bf16_f32 v{c+3}, v{p+1}, v{c+1}")
            o.append(f"v_bfi_b32 v{c+2}, 1, v{TMPC}, v{c+2}")
            o.append(f"global_store_dwordx2 v{PS}, {v(c + 2, 2)}, s[{sb}:{sb+1}] {st}")
        return o
    D.wait('o0')
    tr('wo0')
    seq = [(t, k2) for t in WORD for k2 in range(2)]
    if EXP.get('il', 0):
        seq = [(8, 0), (0, 0), (8, 1), (1, 0), (0, 1)]
        for t in range(1, 7): seq += [(t + 1, 0), (t, 1)]
        seq += [(7, 1)]
        assert len(seq) == 18 and not SWO
    vq = list(post); since = {}
    slots = 0
    for k, (t, k2) in enumerate(seq):
        if k2 == 1: D.wait('o1')
        if k in SWO:
            D.wait(('wo', k))
            smf(acc(t), OF + 4 * k2, WB)
            wo_next()
            slots += 2
        else: smf(acc(t), OF + 4 * k2, WO(t, k2))
        slots += 1
        if k2 == 1: since[t] = slots
        for _ in range(1 if k < EXP.get('w1', 5) else EXP.get('wv', 3)):
            for tt_ in list(since):
                if slots - since[tt_] >= EXP.get('wlag', 8): vq += wpost(tt_); del since[tt_]
            if vq: A(vq.pop(0)); slots += 1
    tr('wo1')
    for tt_ in list(since): vq += wpost(tt_)
    for o in vq: A(o)
    tr('wo2')
    D.q = []
    SEL, RD, MS, LA = 12, 16, 8, 9
    LDB = (24, 40)
    A("s_cmp_ge_u32 s10, 2")
    A(f"s_cbranch_scc1 L_rw23_{sfx}")
    NB = 1
    for kind in (1, 2):
        lab = f"L_rp1{kind}_{sfx}"
        nl = 4 if kind == 1 else 1
        def loads(LD):
            if kind == 2: A(f"global_load_dwordx4 {v(LD, 4)}, v{LA}, s[28:29] sc1")
            else:
                for j in range(4): A(f"global_load_dwordx4 {v(LD + 4 * j, 4)}, v{L16}, s[28:29] offset:{j * 1024} sc1")
        P = Asm()
        if kind == 1:
            P(f"v_bfe_u32 v20, v{L16}, 4, 1")
            P(f"v_bfe_u32 v21, v{L16}, 5, 1")
            P(f"v_bfe_u32 v22, v{L16}, 6, 1")
            P("v_lshl_add_u32 v22, v21, 1, v22")
        else:
            P(f"v_bfe_u32 v20, v{L16}, 6, 1")
            P(f"v_bfe_u32 v22, v{L16}, 4, 2")
            P(f"v_bfe_u32 v23, v{L16}, 8, 1")
            P("v_xor_b32 v23, s12, v23")
        P("v_lshlrev_b32 v20, 4, v20")
        P("v_mov_b32 v21, 0x3f80")
        P("v_lshlrev_b32 v21, v20, v21")
        m_ = Asm(); ms_calc(m_, kind, MS, 10); mq = [i.text.strip() for i in m_.ins]
        for j in range(4):
            P(f"v_cmp_eq_u32 vcc, {j}, v22")
            for _ in range(2):
                if mq: P(mq.pop(0))
            P(f"v_cndmask_b32 v{SEL+j}, 0, v21, vcc")
        for o in mq: P(o)
        P("v_mov_b64 v[10:11], -1")
        pq = [i.text.strip() for i in P.ins]
        def fin():
            for r in range(4): A(f"v_add_f32_dpp v{RD+r}, v{RD+r}, v{RD+r} {ROR8}")
            if kind == 2:
                for r in range(4): A(f"v_add_f32_dpp v{RD+r}, v{RD+r}, v{RD+r} row_ror:4 row_mask:0xf bank_mask:0xf")
                for r in range(4): A(f"v_add_f32_dpp v{RD+r}, v{RD+r}, v{RD+r} quad_perm:[2,3,0,1] row_mask:0xf bank_mask:0xf")
            A(f"v_cvt_pk_bf16_f32 v20, v{RD}, v{RD+1}")
            A(f"v_cvt_pk_bf16_f32 v21, v{RD+2}, v{RD+3}")
        if kind == 1:
            for n in sorted(range(3), key=wslot): wk_read(n)
            LD = 24
            l1 = A.newlabel('L_k1')
            A("s_cmp_eq_u32 s10, 1")
            A(f"s_cbranch_scc1 {l1}")
            A(f"s_waitcnt vmcnt({EXP.get('k0', 1)})")
            tr('p1s')
            loads(LD)
            for o in pq: A(o)
            A(f"s_branch {lab}")
            A.label(l1)
            tp = EXP.get('tp', 6)
            for o in pq[:len(pq) - tp]: A(o)
            A(f"s_waitcnt vmcnt({EXP.get('k1', 0)})")
            for o in pq[len(pq) - tp:]: A(o)
            tr('p1s')
            loads(LD)
            A.label(lab)
            for j in range(4):
                A(f"s_waitcnt vmcnt({3 - j})")
                tr(f'p1w{j}')
                A(f"{MF32} {v(RD, 4)}, {v(SEL, 4)}, {v(LD + 4 * j, 4)}, {v(RD, 4) if j else 0}")
                A(f"v_bitop3_b32 v{20 + j}, v{LD+4*j}, v{LD+4*j+2}, {'s13' if j & 1 else 's12'} bitop3:0x7e")
                if j == 2: A("v_or3_b32 v20, v20, v21, v22")
            A.label(lab + "_c")
            A("v_bitop3_b32 v20, v20, v23, 1 bitop3:0xa8")
            A("v_cmp_ne_u32 vcc, 0, v20")
            fin()
            A(f"s_cbranch_vccz L_rp1ok_{sfx}")
            A("s_mov_b64 exec, vcc")
            loads(LD)
            A("s_mov_b64 exec, -1")
            A("s_add_u32 s55, s55, 1")
            A(f"s_cmp_gt_u32 s55, {SPIN_MAX}")
            A(f"s_cbranch_scc0 {lab}")
            A("s_branch L_exit")
        else:
            A.label(f"L_rw23_{sfx}")
            A("s_cmp_eq_u32 s10, 3")
            A(f"s_cbranch_scc1 L_rnt_{sfx}")
            lane_const(A, LA, lambda x: (x >> 5) * 256 + ((x >> 4) & 1) * 16, src=L16, nbits=10, tmp=10)
            NH = 1
            h = len(pq)
            for b in range(NH):
                loads(24 + 4 * b)
                for o in pq[b * h:(b + 1) * h]: A(o)
            A.label(lab)
            for b in range(NH):
                LD = 24 + 4 * b
                A(f"s_waitcnt vmcnt({NH - 1})")
                A(f"v_bitop3_b32 v20, v{LD}, v{LD+1}, v23 bitop3:0x7e")
                A(f"v_bitop3_b32 v21, v{LD+2}, v{LD+3}, v23 bitop3:0x7e")
                A("v_bitop3_b32 v20, v20, v21, 1 bitop3:0xa8")
                A("v_cmp_ne_u32 vcc, 0, v20")
                A(f"{MF32} {v(RD, 4)}, {v(SEL, 4)}, {v(LD, 4)}, 0")
                A(f"s_cbranch_vccz {lab}_ok")
                loads(LD)
                A("s_add_u32 s55, s55, 1")
            A(f"s_cmp_gt_u32 s55, {SPIN_MAX}")
            A(f"s_cbranch_scc0 {lab}")
            A("s_branch L_exit")
            A.label(lab + "_ok")
            D.q = []
            for n in sorted(range(3), key=wslot): wk_read(n)
            fin()
            A(f"s_branch L_rp1ok_{sfx}")
    def rest(force=False):
        if NB == 2 or force:
            for n in sorted(range(3), key=wslot): wk_read(n)
        spill_read(ACCV0)
    A.label(f"L_rnt_{sfx}")
    D.q = []
    rest(True)
    zero_qk()
    if nkv:
        A(f"v_mov_b32 v28, {L_QL + 256}")
        A("s_waitcnt vmcnt(5)")
        A("ds_read_b32 v28, v28")
        A("s_waitcnt lgkmcnt(0)")
        A("v_readfirstlane_b32 s12, v28")
        A("s_max_u32 s54, s54, s12")
    kv_wait(A, "s25", nkv, kvg0, 28)
    A.label(f"L_rmbok_{sfx}")
    A("s_barrier")
    A("s_waitcnt vmcnt(0)")
    A(f"s_branch L_rp2ok_{sfx}")
    A.label(f"L_rp1ok_{sfx}")
    tr('p1ok')
    A("s_mov_b64 exec, s[44:45]")
    A(f"global_store_dwordx2 v{MS}, v[20:21], s[14:15] {st}")
    A(f"global_store_dwordx2 v{MS}, v[10:11], s[60:61] {st}")
    A("s_mov_b64 exec, -1")
    if EXP.get('rt'): A("s_add_u32 s76, s76, s55")
    A("s_barrier")
    tr('b4')
    D.q = []
    def round2():
        A("s_mov_b32 m0, s57")
        A(f"global_load_lds_dwordx4 v{T16}, s[14:15] sc1")
        A("s_add_u32 m0, s57, 3072")
        A(f"global_load_lds_dwordx4 v{T16}, s[20:21] sc1")
        A(f"global_load_lds_dwordx4 v{T16}, s[20:21] offset:3072 sc1")
    A("s_mov_b32 s55, 0")
    for _ in range(EXP.get('d2', 0)): A("s_nop 3")
    tr('p2s')
    okl = top if not (TR or EXP.get('rt')) else f"L_rp2ok_{sfx}"
    def loads2():
        for j in range(3):
            A(f"global_load_dwordx4 {v(MRING + 4 * j, 4)}, v{T16}, s[20:21] offset:{(j - 1) * 3072} sc1")
    Z2 = EXP.get('z2', 6)
    rest()
    zero_qk(12, 12 + 2 * Z2)
    loads2()
    zero_qk(12 + 2 * Z2, 28)
    A.label(f"L_rp2_{sfx}")
    A("s_waitcnt vmcnt(2)")
    tr('p2w0')
    A(f"ds_write_b128 v{T16}, v[28:31] offset:{L_MEM}")
    A(f"v_max_u32 v{TMPC}, v28, v30")
    A("s_waitcnt vmcnt(1)")
    A(f"v_max3_u32 v{TMPC}, v{TMPC}, v32, v34")
    A(f"ds_write_b128 v{T16}, v[32:35] offset:{L_MEM + 3072}")
    A("s_waitcnt vmcnt(0)")
    A(f"v_max3_u32 v{TMPC}, v{TMPC}, v36, v38")
    A(f"v_cmp_eq_u32 vcc, -1, v{TMPC}")
    A(f"ds_write_b128 v{T16}, v[36:39] offset:{L_MEM + 6144}")
    A(f"s_cbranch_vccz L_rp2ok_{sfx}")
    A("s_mov_b64 exec, vcc")
    loads2()
    A("s_mov_b64 exec, -1")
    A("s_add_u32 s55, s55, 1")
    A(f"s_cmp_gt_u32 s55, {SPIN_MAX}")
    A(f"s_cbranch_scc0 L_rp2_{sfx}")
    A("s_branch L_exit")
    A.label(f"L_rp2ok_{sfx}")
    tr('p2ok')
    if EXP.get('rt'): A("s_add_u32 s77, s77, s55")
    D.waitall()
    if TR:
        A("s_cmp_lg_u32 s24, 41")
        A(f"s_cbranch_scc1 {top}")
        A("s_lshl_b32 s12, s9, 2")
        A("s_add_u32 s12, s12, s10")
        A("s_lshl_b32 s12, s12, 6")
        A(f"s_add_u32 s12, s12, {WS_STAMP + 16384}")
        A(f"v_mov_b32 v{TMPC}, s12")
        for q in range(11):
            A(f"v_mov_b32 v28, s{64 + 2 * q}")
            A(f"global_store_dword v{TMPC}, v28, s[4:5] offset:{4 * q}")
            A("s_waitcnt vmcnt(0)")
    A(f"s_branch {top}")
    A.label(f"L_rlast_{sfx}")
    D.waitall()
    lr = {8: mslot(8), 7: mslot(7), 6: mslot(6), 5: 44, 4: 48, 3: 52, 2: 56, 1: 60, 0: 12}
    for p in (4, 3, 2, 1, 0): mem_read(ORD[p], lr[p], ('lm', p))
    for p in range(8, -1, -1):
        D.wait(('lm', p))
        smf(ACCV1, lr[p], WV(ORD[p], 1))
        if p < V0S: smf(ACCV0, lr[p], WV(ORD[p], 0))
    for b in range(2):
        A(f"v_add_f32 v{ACCK+4*b}, v{ACCK+4*b}, v{ACCK+4*b+1}")
        A(f"v_add_f32 v{ACCK+4*b+2}, v{ACCK+4*b+2}, v{ACCK+4*b+3}")
    A(f"v_cvt_pk_bf16_f32 v16, v{ACCK}, v{ACCK+4}")
    A(f"v_cvt_pk_bf16_f32 v17, v{ACCK+2}, v{ACCK+6}")
    for a_ in (ACCV1, ACCV0):
        A(f"v_add_f32 v{a_}, v{a_}, v{a_+1}")
        A(f"v_add_f32 v{a_+2}, v{a_+2}, v{a_+3}")
    A(f"v_cvt_pk_bf16_f32 v18, v{ACCV0}, v{ACCV0+2}")
    A(f"v_cvt_pk_bf16_f32 v19, v{ACCV1}, v{ACCV1+2}")
    A(f"global_store_dwordx4 v{T16}, v[16:19], s[38:39] sc1")
    tl(A, 4)
    if EXP.get('rt'):
        A("s_memrealtime s[82:83]")
        A("s_memtime s[98:99]")
        A("s_waitcnt lgkmcnt(0)")
        A("s_sub_u32 s75, s98, s96")
        A("s_sub_u32 s78, s80, s84")
        A("s_sub_u32 s79, s82, s80")
        A("s_lshl_b32 s12, s9, 2")
        A("s_add_u32 s12, s12, s10")
        A("s_lshl_b32 s12, s12, 6")
        A(f"s_add_u32 s12, s12, {WS_STAMP}")
        A("v_mov_b32 v12, s12")
        for q in range(4):
            for r in range(4): A(f"v_mov_b32 v{16+r}, s{64 + 4 * q + r}")
            A(f"global_store_dwordx4 v12, v[16:19], s[4:5] offset:{16 * q}")
            A("s_waitcnt vmcnt(0)")
    A("s_branch L_exit")

def role_r(A, restart, nkv, kvg0):
    if EXP.get('rt'):
        A("s_memrealtime s[84:85]")
        A("s_waitcnt lgkmcnt(0)")
    r_setup(A)
    r_swap(A)
    tl(A, 1)
    A("s_waitcnt vmcnt(0)")
    A("s_mov_b32 s54, 0")
    mode_check(A, tv=12, pre=4)
    if nkv:
        l = A.newlabel('L_kc')
        A("v_cmp_gt_u32 vcc, 96, v5")
        A(f"s_cbranch_vccz {l}")
        counter_wait(A, DBG_KCLR, 96, tv=12)
        A.label(l)
    r_consts(A)
    A("s_cmp_eq_u32 s11, 0")
    A("s_cbranch_scc1 L_r_slow")
    r_main(A, True, nkv, kvg0)
    A.label("L_r_slow")
    r_main(A, False, nkv, kvg0)
```

```python
import sys
import role_r as RR
from common import *
from role_kv import stage_mod, stage_ln1, role_kv
import role_af as AF
NAME = "adaLN_cond__memory_aug_recurrent_mem_tr__swiglu_ffn__prompt"
out = sys.argv[1] if len(sys.argv) > 1 else f'cdna_kernels/{NAME}.s'
for a_ in sys.argv[2:]:
    k_, _, v_ = a_.partition('=')
    RR.EXP[k_] = v_.split(',') if k_ == 'trace' else (int(v_) if v_ else 1)
AF.EXP = RR.EXP
K = NAME + "_kernel"
FORCE['tm'] = RR.EXP.get('tm', 1)
A = Asm()
kernel_begin(A, K)
TL['dbg'] = RR.EXP.get('tld')
if TL['dbg']: tl(A, 0)
preamble(A)
FORCE['slow'] = bool(RR.EXP.get('forceslow'))
TL["on"] = bool(RR.EXP.get("tl"))
if not TL["dbg"]: tl(A, 0)
A.label("L_roles")
A("s_cmp_eq_u32 s8, 0")
A("s_cbranch_scc1 L_role_r")
A("s_cmp_eq_u32 s8, 1")
A("s_cbranch_scc1 L_role_kv")
A("s_cmp_lt_u32 s8, 5")
A("s_cbranch_scc1 L_role_a")
A("s_mul_i32 s14, s9, 3")
A("s_add_u32 s14, s14, s8")
A("s_sub_u32 s14, s14, 5")
stage_ln1(A, "s14")
tl(A, 7)
kvm_clear(A, "s14")
fd = RR.EXP.get("fdelay", 0)
if fd == 2: counter_wait(A, DBG_RLD, 24, tv=12, sleep=8)
AF.role_f(A, 3, 5)
A.label("L_exit")
A("s_endpgm")
A.label("L_role_r")
RR.role_r(A, "L_roles", 1, 1)
A.label("L_role_kv")
role_kv(A, "L_roles", 1, 1)
A.label("L_role_a")
A("s_mul_i32 s14, s9, 3")
A("s_add_u32 s14, s14, s8")
A("s_sub_u32 s14, s14, 2")
A("s_cmp_ge_u32 s14, 54")
A("s_cbranch_scc1 L_nomod")
stage_mod(A, "s14")
A.label("L_nomod")
tl(A, 7)
if RR.EXP.get("adelay", 0): counter_wait(A, DBG_HCNT, 128, tv=12, sleep=8)
AF.role_a(A, "L_roles", 3, 2, 1)
body = A.finalize()
ref = open(f'cdna_kernels/{NAME}.s.ref').read()
hdr = ref[:ref.index('; Override launch geometry')]
kn = f'kernel={K} ' if 'dev/' in out else ''
hdr += f'; @launch {kn}grid=(256,1,1) block=(256,1,1) lds=163840\n.amdgcn_target "amdgcn-amd-amdhsa--gfx950"\n.text\n'
open(out, 'w').write(hdr + body + '.section .rodata,"a"\n' + kernel_desc(K, 512, 102, 256))
print("instructions", sum(1 for i in A.ins if i.states), "nops", A.nops)
```

```python
import sys
import role_r as RR
from common import *
from role_kv import stage_mod, stage_ln1, role_kv
import role_af as AF
NAME = "adaLN_cond__memory_aug_recurrent_mem_tr__swiglu_ffn__prompt"
out = sys.argv[1] if len(sys.argv) > 1 else f'cdna_kernels/{NAME}.s'
for a_ in sys.argv[2:]:
    k_, _, v_ = a_.partition('=')
    RR.EXP[k_] = v_.split(',') if k_ == 'trace' else (int(v_) if v_ else 1)
AF.EXP = RR.EXP
K = NAME + "_kernel"
FORCE['tm'] = RR.EXP.get('tm', 1)
FORCE['cpf'] = RR.EXP.get('cpf', 1)
A = Asm()
kernel_begin(A, K)
TL['dbg'] = RR.EXP.get('tld')
if TL['dbg']: tl(A, 0)
preamble(A)
FORCE['slow'] = bool(RR.EXP.get('forceslow'))
TL["on"] = bool(RR.EXP.get("tl"))
if not TL["dbg"]: tl(A, 0)
A.label("L_roles")
A("s_cmp_eq_u32 s8, 0")
A("s_cbranch_scc1 L_role_r")
A("s_cmp_eq_u32 s8, 1")
A("s_cbranch_scc1 L_role_kv")
A("s_cmp_lt_u32 s8, 5")
A("s_cbranch_scc1 L_role_a")
A("s_mul_i32 s14, s9, 3")
A("s_add_u32 s14, s14, s8")
A("s_sub_u32 s14, s14, 5")
stage_ln1(A, "s14")
tl(A, 7)
fd = RR.EXP.get("fdelay", 0)
if fd & 4: counter_wait(A, DBG_KLD, 28, tv=12, sleep=16)
kvm_clear(A, "s14")
if fd & 1: counter_wait(A, DBG_KLD, 28, tv=12, sleep=16)
if fd & 2: counter_wait(A, DBG_RLD, 28, tv=12, sleep=16)
AF.role_f(A, 3, 5)
A.label("L_exit")
A("s_endpgm")
A.label("L_role_r")
RR.role_r(A, "L_roles", 1, 1)
A.label("L_role_kv")
role_kv(A, "L_roles", 1, 1)
A.label("L_role_a")
A("s_mul_i32 s14, s9, 3")
A("s_add_u32 s14, s14, s8")
A("s_sub_u32 s14, s14, 2")
A("s_cmp_ge_u32 s14, 54")
A("s_cbranch_scc1 L_nomod")
stage_mod(A, "s14")
A.label("L_nomod")
tl(A, 7)
if RR.EXP.get("adelay", 0) == 1: counter_wait(A, DBG_KLD, 28, tv=12, sleep=16)
if RR.EXP.get("adelay", 0) == 2: counter_wait(A, DBG_RLD, 28, tv=12, sleep=16)
AF.role_a(A, "L_roles", 3, 2, 1)
A.label('L_code_end')
A('s_endpgm')
body = A.finalize()
ref = open(f'cdna_kernels/{NAME}.s.ref').read()
hdr = ref[:ref.index('; Override launch geometry')]
kn = f'kernel={K} ' if 'dev/' in out else ''
hdr += f'; @launch {kn}grid=(256,1,1) block=(256,1,1) lds=163840\n.amdgcn_target "amdgcn-amd-amdhsa--gfx950"\n.text\n'
open(out, 'w').write(hdr + body + '.section .rodata,"a"\n' + kernel_desc(K, 512, 102, 256))
print("instructions", sum(1 for i in A.ins if i.states), "nops", A.nops)
```

```python
from asmlib import *

KA_X, KA_MEM0, KA_WQ, KA_WK, KA_WV, KA_WO, KA_SEG, KA_BX, KA_WG, KA_WU, KA_WD, KA_C, KA_WMOD, KA_OUT, KA_DBG, KA_WS = [8 * i for i in range(16)]

WS_MOD   = 0x0
WS_KVPROG = 0x10000
WS_RPROG = 0x18000
WS_H2FLAG = 0x1A000
WS_XF    = 0x1C000
WS_HINT  = 0x1D000
WS_STAMP = 0x20000
WS_H     = 0x100000
WS_H2    = 0x400000
WS_X1    = 0x700000
WS_KV    = 0x1000000
WS_KVM   = 0x3000000
WS_RP    = 0x3A00000
WS_RM    = 0x3B00000
WS_XP    = 0x4000000
RP_SLOT = 72 * 32 * 128
XP_SLOT = 32 * 32 * 2304
SEG_H = 36864

DBG_TICKET = 0
DBG_CLR = 8
DBG_KCLR = 41
DBG_RLD = 42
DBG_KLD = 43
DBG_MODCNT = 8
DBG_HCNT = 40
DBG_ERR = 40

S_WS = 4
S_DBG = 6
S_GRP, S_MEM, S_WAVE, S_FAST = 8, 9, 10, 11
SPIN_MAX = 400000

class Lds:
    def __init__(self, A):
        self.A = A; self.q = []
    def op(self, text, tag=None):
        self.A(text); self.q.append(tag)
    def wait(self, tag):
        if tag not in self.q: return
        i = len(self.q) - 1 - self.q[::-1].index(tag)
        n = len(self.q) - 1 - i
        self.A(f"s_waitcnt lgkmcnt({min(n, 15)})")
        if n > 15:
            self.q = self.q[len(self.q) - 15:]
        else:
            self.q = self.q[i + 1:]
    def waitall(self):
        self.A("s_waitcnt lgkmcnt(0)"); self.q = []

def add64(A, dst, src, off):
    A(f"s_add_u32 s{dst}, s{src}, {off}")
    A(f"s_addc_u32 s{dst+1}, s{src+1}, 0")

def arr_word(g): return (g & 3) + 32 * (g >> 2)
def preamble(A, nwg=256):
    A(f"s_cmp_ge_u32 s2, {nwg}")
    A("s_cbranch_scc1 L_exit")
    A(f"s_load_dwordx4 s[4:7], s[0:1], {KA_DBG}")
    if FORCE.get('cpf', 1):
        A("s_getpc_b64 s[14:15]")
        A.label("L_code0")
        A("s_lshr_b32 s12, s2, 3")
        A("s_lshl_b32 s12, s12, 12")
        A("v_lshl_add_u32 v1, v0, 4, s12")
        A("v_min_u32 v1, L_code_end-L_code0-4, v1")
        A("v_and_b32 v2, 3, v0")
        A("v_cmp_eq_u32 vcc, 0, v2")
        A("s_mov_b64 exec, vcc")
        A("global_load_dword v63, v1, s[14:15]")
        A("s_mov_b64 exec, -1")
    A("s_getreg_b32 s3, hwreg(HW_REG_XCC_ID, 0, 4)")
    A("v_lshrrev_b32 v1, 6, v0")
    A("v_readfirstlane_b32 s10, v1")
    A("s_and_b32 s8, s2, 7")
    A("s_lshr_b32 s9, s2, 3")
    A("v_and_b32 v1, 63, v0")
    A("s_waitcnt lgkmcnt(0)")
    A("s_mov_b64 s[12:13], s[4:5]")
    A("s_mov_b64 s[4:5], s[6:7]")
    A("s_mov_b64 s[6:7], s[12:13]")
    l2 = A.newlabel('L_pre')
    A("s_cmp_lg_u32 s10, 3")
    A(f"s_cbranch_scc1 {l2}")
    A("s_lshl_b32 s12, s2, 8")
    A(f"s_add_u32 s12, s12, {WS_KVPROG}")
    A("v_lshl_add_u32 v2, v1, 2, s12")
    A("v_mov_b32 v3, 0")
    A("global_store_dword v2, v3, s[4:5] sc1")
    A(f"s_bfe_u32 s12, s2, {0x10000 if FORCE.get('tm') else 0x10002}")
    A("s_xor_b32 s12, s12, 1")
    for r in range(4): A(f"v_mov_b32 v{4+r}, s12")
    A("s_lshl_b32 s12, s2, 10")
    A(f"s_add_u32 s12, s12, {WS_RP}")
    A("v_lshl_add_u32 v2, v1, 4, s12")
    A("global_store_dwordx4 v2, v[4:7], s[4:5] sc1")
    for r in range(4): A(f"v_mov_b32 v{8+r}, -1")
    l1 = A.newlabel('L_pre1')
    A("s_cmp_ge_u32 s2, 32")
    A(f"s_cbranch_scc1 {l1}")
    A("s_bfe_u32 s12, s2, 0x10001")
    A("s_xor_b32 s12, s12, 1")
    for r in range(4): A(f"v_mov_b32 v{12+r}, s12")
    A("v_add_u32 v3, 0x40000, v2")
    A("global_store_dwordx4 v3, v[12:15], s[4:5] sc1")
    A.label(l1)
    A(f"v_add_u32 v3, {WS_RM - WS_RP}, v2")
    A("global_store_dwordx4 v3, v[8:11], s[4:5] sc1")
    A("s_mul_i32 s12, s3, s3")
    A("s_lshl_b32 s12, s12, 10")
    A("s_add_u32 s12, s12, s3")
    A("s_lshl_b32 s12, s12, 8")
    A("s_add_u32 s12, s12, 1")
    A("v_mov_b32 v3, s12")
    A("s_and_b32 s12, s8, 3")
    A("s_lshr_b32 s13, s8, 2")
    A("s_lshl_b32 s13, s13, 5")
    A("s_add_u32 s12, s12, s13")
    A("s_lshl_b32 s12, s12, 2")
    A("v_mov_b32 v2, s12")
    A("s_waitcnt vmcnt(0)")
    A("s_mov_b64 exec, 1")
    A("global_atomic_add v2, v3, s[6:7] sc1")
    A("s_mov_b64 exec, -1")
    A.label(l2)

def mode_check(A, tv=1, ts=12, force_slow=False, pre=None):
    done = A.newlabel('L_mc_done'); loop = A.newlabel('L_mc')
    lane_const(A, tv, lambda t: arr_word(t & 7) * 4, tmp=tv + 1)
    A(f"s_mov_b32 s{ts}, 0")
    if pre is not None:
        A(f"v_mov_b32 v{tv+1}, v{pre}")
        A(f"v_and_b32 v{tv+2}, 0xff, v{tv+1}")
        A(f"v_cmp_ne_u32 vcc, 32, v{tv+2}")
        A(f"s_cbranch_vccnz {loop}")
        A(f"v_readfirstlane_b32 s54, v{pre+2}")
        A(f"s_branch {done}")
    A.label(loop)
    A(f"global_load_dword v{tv+1}, v{tv}, s[6:7] sc1")
    A(f"s_add_u32 s{ts}, s{ts}, 1")
    A(f"s_cmp_gt_u32 s{ts}, {SPIN_MAX}")
    A(f"s_cbranch_scc1 L_exit")
    A("s_waitcnt vmcnt(0)")
    A(f"v_and_b32 v{tv+2}, 0xff, v{tv+1}")
    A(f"v_cmp_ne_u32 vcc, 32, v{tv+2}")
    A(f"s_cbranch_vccz {done}")
    A("s_sleep 2")
    A(f"s_branch {loop}")
    A.label(done)
    A(f"v_readlane_b32 s{ts}, v{tv+1}, s8")
    A(f"s_mul_i32 s{ts+1}, s3, s3")
    A(f"s_lshl_b32 s{ts+1}, s{ts+1}, 10")
    A(f"s_add_u32 s{ts+1}, s{ts+1}, s3")
    A(f"s_lshl_b32 s{ts+1}, s{ts+1}, 8")
    A(f"s_add_u32 s{ts+1}, s{ts+1}, 1")
    A(f"s_lshl_b32 s{ts+1}, s{ts+1}, 5")
    A(f"s_cmp_eq_u32 s{ts}, s{ts+1}")
    A(f"s_cselect_b32 s11, {0 if force_slow or FORCE['slow'] else 1}, 0")

FORCE = {'slow': False}
def counter_arrive(A, word, tv=1):
    l = A.newlabel('L_arr')
    A("s_cmp_lg_u32 s10, 0")
    A(f"s_cbranch_scc1 {l}")
    A(f"v_mov_b32 v{tv}, {word*4}")
    A(f"v_mov_b32 v{tv+1}, 1")
    A("s_mov_b64 exec, 1")
    A(f"global_atomic_add v{tv}, v{tv+1}, s[6:7] sc1")
    A("s_mov_b64 exec, -1")
    A.label(l)

def counter_wait(A, word, count, tv=1, ts=12, sleep=2):
    loop = A.newlabel('L_cw'); done = A.newlabel('L_cwd')
    A(f"v_mov_b32 v{tv}, {word*4}")
    A(f"s_mov_b32 s{ts}, 0")
    A.label(loop)
    A(f"global_load_dword v{tv+1}, v{tv}, s[6:7] sc1")
    A(f"s_add_u32 s{ts}, s{ts}, 1")
    A(f"s_cmp_gt_u32 s{ts}, {SPIN_MAX}")
    A(f"s_cbranch_scc1 L_exit")
    A("s_waitcnt vmcnt(0)")
    A(f"v_cmp_gt_u32 vcc, {count}, v{tv+1}")
    A(f"s_cbranch_vccz {done}")
    A(f"s_sleep {sleep}")
    A(f"s_branch {loop}")
    A.label(done)

def lane_const(A, dst, f, src=0, nbits=8, tmp=None, mode=None, acc=False):
    N = 1 << nbits
    f0 = f(0)
    def check(m):
        d = [(f(1 << k) ^ f0) if m == 'xor' else (f(1 << k) - f0) for k in range(nbits)]
        for x in range(N):
            y = f0
            for k in range(nbits):
                if x >> k & 1: y = (y ^ d[k]) if m == 'xor' else y + d[k]
            if y != f(x): return None
        return d
    for m in ([mode] if mode else ['add', 'xor']):
        d = check(m)
        if d is not None: break
    assert d is not None, "function not affine"
    assert tmp is not None and tmp != dst and dst != src
    work = dst
    if acc and m == 'xor':
        work = tmp + 1
    if acc and m == 'add':
        if f0: A(f"v_add_u32 v{dst}, {f0 & 0xffffffff:#x}, v{dst}")
    else:
        A(f"v_mov_b32 v{work}, {f0 & 0xffffffff:#x}")
    k = 0
    while k < nbits:
        if d[k] == 0: k += 1; continue
        n = 1
        while k + n < nbits and d[k + n] == d[k] << n: n += 1
        c = d[k]
        if c > 0 and c & (c - 1) == 0:
            sh = c.bit_length() - 1
            A(f"v_bfe_u32 v{tmp}, v{src}, {k}, {n}")
            if m == 'add': A(f"v_lshl_add_u32 v{work}, v{tmp}, {sh}, v{work}")
            else:
                A(f"v_lshlrev_b32 v{tmp}, {sh}, v{tmp}")
                A(f"v_xor_b32 v{work}, v{work}, v{tmp}")
        elif m == 'add' and 0 < c < (1 << 24):
            A(f"v_bfe_u32 v{tmp}, v{src}, {k}, {n}")
            A(f"v_mul_u32_u24 v{tmp}, {c:#x}, v{tmp}")
            A(f"v_add_u32 v{work}, v{work}, v{tmp}")
        else:
            n = 1
            A(f"v_bfe_i32 v{tmp}, v{src}, {k}, 1")
            A(f"v_and_b32 v{tmp}, {c & 0xffffffff:#x}, v{tmp}")
            A(f"v_{'xor_b32' if m == 'xor' else 'add_u32'} v{work}, v{work}, v{tmp}")
        k += n
    if work != dst:
        A(f"v_add_u32 v{dst}, v{dst}, v{work}")


MF32 = "v_mfma_f32_16x16x32_bf16"
MF16 = "v_mfma_f32_16x16x16_bf16"

def ring_load(A, chunks, nslots=8, lbase=0, tmp=28, sb=26):
    A(f"s_lshl_b32 s{sb}, s10, 12")
    if lbase: A(f"s_add_u32 s{sb}, s{sb}, {lbase}")
    def issue(j):
        c = chunks[j]
        add64(A, 12, c['ptr'], c['off'])
        for ip in range(4):
            A(f"s_add_u32 m0, s{sb}, {(j % nslots) * 16384 + ip * 1024}")
            A(f"global_load_lds_dwordx4 v{c['vb']+ip}, s[12:13]")
    n = len(chunks); ah = nslots - 1
    for j in range(min(ah, n)): issue(j)
    for j in range(n):
        A(f"s_waitcnt vmcnt({4 * (min(n - 1, j + ah - 1) - j)})")
        A("s_barrier")
        if j + ah < n: issue(j + ah)
        regs = sorted({r[1] for r in chunks[j]['reads']})
        for k, ar in enumerate(regs): A(f"v_add_u32 v{tmp+k}, {(j % nslots) * 16384 + lbase}, v{ar}")
        for dst, ar, imm in chunks[j]['reads']:
            A(f"ds_read_b64_tr_b16 {u(dst, 2)}, v{tmp + regs.index(ar)} offset:{imm}")
        if 'post' in chunks[j]: chunks[j]['post']()
        A("s_waitcnt lgkmcnt(0)")
    A("s_barrier")

def swzA(row): return 2 * ((row & 3) | ((row >> 3) & 1) << 2)
def swzB(row): return 2 * (((row >> 1) & 1) | ((row >> 2) & 1) << 1)
def dense256_consts(A, vb, tra, stride, tmp):
    for ip in range(4):
        lane_const(A, vb + ip, lambda t: (16 * (t >> 6) + 4 * ip + ((t & 63) >> 4)) * stride, tmp=tmp)
        lane_const(A, vb + ip, lambda t: ((t & 15) ^ swzA(16 * (t >> 6) + 4 * ip + ((t & 63) >> 4))) * 16, tmp=tmp, acc=True)
    for b in range(2):
        def f(t):
            w, l = t >> 6, t & 63
            row = 8 * (l >> 4) + ((l >> 2) & 3); c = l & 3
            return row * 256 + (((4 * w + 2 * b + (c >> 1)) ^ swzA(row)) * 16) + (c & 1) * 8
        lane_const(A, tra + b, f, tmp=tmp)
def dense256_reads(dstf, tra, c):
    return [(dstf(2 * c + kl, b) + 2 * hq, tra + b, (32 * kl + 4 * hq) * 256) for kl in range(2) for b in range(2) for hq in range(2)]
def dense128_consts(A, vb, tra, tmp):
    for ip in range(4):
        lane_const(A, vb + ip, lambda t: (32 * (t >> 6) + 8 * ip + ((t & 63) >> 3)) * 1152, tmp=tmp)
        lane_const(A, vb + ip, lambda t: ((t & 7) ^ swzB(32 * (t >> 6) + 8 * ip + ((t & 63) >> 3))) * 16, tmp=tmp, acc=True)
    def f(t):
        w, l = t >> 6, t & 63
        row = 4 * (l >> 4) + ((l >> 2) & 3); c = l & 3
        return row * 128 + (((2 * w + (c >> 1)) ^ swzB(row)) * 16) + (c & 1) * 8
    lane_const(A, tra, f, tmp=tmp)
def dense128_reads(dstf, tra, t):
    return [(dstf(t, j) + 2 * hq, tra, (32 * j + 16 * hq) * 128) for j in range(4) for hq in range(2)]

def seg_dma(A, vT16, src, ldsreg):
    A(f"s_mov_b64 s[12:13], s[{src}:{src+1}]")
    for j in range(9):
        A(f"s_add_u32 m0, s{ldsreg}, {j * 4096}")
        A(f"global_load_lds_dwordx4 v{vT16}, s[12:13]")
        if j < 8: add64(A, 12, 12, 4096)

def flag_wait(A, addr_v, base, val_s, tv, ts, sleep=1):
    loop = A.newlabel('L_fw'); done = A.newlabel('L_fwd')
    A(f"s_mov_b32 s{ts}, 0")
    A.label(loop)
    A(f"global_load_dword v{tv}, v{addr_v}, s[{base}:{base+1}] sc1")
    A(f"s_add_u32 s{ts}, s{ts}, 1")
    A(f"s_cmp_gt_u32 s{ts}, {SPIN_MAX}")
    A("s_cbranch_scc1 L_exit")
    A("s_waitcnt vmcnt(0)")
    A(f"v_cmp_gt_u32 vcc, s{val_s}, v{tv}")
    A(f"s_cbranch_vccz {done}")
    if sleep: A(f"s_sleep {sleep}")
    A(f"s_branch {loop}")
    A.label(done)

def xsum(A, r, t, op="v_add_f32", bits=(0, 1, 2, 3, 4, 5)):
    for b in bits:
        if b == 0: A(f"{op}_dpp v{r}, v{r}, v{r} quad_perm:[1,0,3,2] row_mask:0xf bank_mask:0xf")
        elif b == 1: A(f"{op}_dpp v{r}, v{r}, v{r} quad_perm:[2,3,0,1] row_mask:0xf bank_mask:0xf")
        elif b == 2: A(f"{op}_dpp v{r}, v{r}, v{r} row_ror:4 row_mask:0xf bank_mask:0xf")
        elif b == 3: A(f"{op}_dpp v{r}, v{r}, v{r} row_ror:8 row_mask:0xf bank_mask:0xf")
        else:
            A(f"v_mov_b32 v{t}, v{r}")
            A(f"v_permlane{16 if b == 4 else 32}_swap_b32 v{r}, v{t}")
            A(f"{op} v{r}, v{r}, v{t}")

def f32bits(x):
    import struct
    return struct.unpack('<I', struct.pack('<f', x))[0]
def rnd1(A, r, t=None):
    A(f"v_cvt_pk_bf16_f32 v{r}, v{r}, v{r}")
    A(f"v_lshlrev_b32 v{r}, 16, v{r}")
def rnd2(A, r):
    A(f"v_cvt_pk_bf16_f32 v{r+1}, v{r}, v{r+1}")
    A(f"v_lshlrev_b32 v{r}, 16, v{r+1}")
    A(f"v_and_b32 v{r+1}, 0xffff0000, v{r+1}")

TL = {'on': False}
DBGMAP = {(0, 1): 4, (0, 3): 5, (0, 4): 6, (1, 1): 7, (1, 2): 9, (2, 1): 10, (2, 4): 11, (5, 7): 12, (5, 1): 13, (5, 4): 14, (2, 7): 15}
def tl(A, slot, tv=60):
    if TL.get('dbg'):
        if slot == 0:
            A("s_memrealtime s[98:99]")
            A("s_waitcnt lgkmcnt(0)")
            return
        for (g, sl), wd in DBGMAP.items():
            if sl != slot: continue
            l = A.newlabel('L_tl')
            A(f"s_cmp_lg_u32 s8, {g}")
            A(f"s_cbranch_scc1 {l}")
            A("s_memrealtime s[100:101]")
            A(f"v_mov_b32 v{tv}, {wd * 4}")
            A("s_waitcnt lgkmcnt(0)")
            A("s_sub_u32 s100, s100, s98")
            A(f"v_mov_b32 v{tv+1}, s100")
            A("s_mov_b64 exec, 1")
            A(f"global_atomic_umax v{tv}, v{tv+1}, s[6:7] sc1")
            A("s_mov_b64 exec, -1")
            A.label(l)
        return
    if not TL['on']: return
    A("s_memrealtime s[100:101]")
    A("s_lshl_b32 s12, s8, 5")
    A("s_add_u32 s12, s12, s9")
    A("s_lshl_b32 s12, s12, 6")
    A(f"s_add_u32 s12, s12, {WS_STAMP + 0x30000 + slot * 4}")
    A(f"v_mov_b32 v{tv}, s12")
    A("s_waitcnt lgkmcnt(0)")
    A(f"v_mov_b32 v{tv+1}, s100")
    A(f"global_store_dword v{tv}, v{tv+1}, s[4:5]")
    A("s_waitcnt vmcnt(0)")

def kvm_clear(A, idx_s):
    for r in range(4): A(f"v_mov_b32 v{8+r}, -1")
    A(f"s_mul_i32 s12, {idx_s}, {88 * 1024}")
    A(f"s_add_u32 s12, s12, {WS_KVM}")
    add64(A, 12, S_WS, "s12")
    A("v_lshlrev_b32 v3, 4, v0")
    for i in range(22):
        A("global_store_dwordx4 v3, v[8:11], s[12:13] sc1")
        if i < 21: add64(A, 12, 12, 4096)
    A("s_waitcnt vmcnt(0)")
    A("s_barrier")
    counter_arrive(A, DBG_KCLR, tv=4)
```

```python
from asmlib import *

KA_X, KA_MEM0, KA_WQ, KA_WK, KA_WV, KA_WO, KA_SEG, KA_BX, KA_WG, KA_WU, KA_WD, KA_C, KA_WMOD, KA_OUT, KA_DBG, KA_WS = [8 * i for i in range(16)]

WS_MOD   = 0x0
WS_KVPROG = 0x10000
WS_RPROG = 0x18000
WS_H2FLAG = 0x1A000
WS_XF    = 0x1C000
WS_HINT  = 0x1D000
WS_STAMP = 0x20000
WS_H     = 0x100000
WS_H2    = 0x400000
WS_X1    = 0x700000
WS_KV    = 0x1000000
WS_KVM   = 0x3000000
WS_RP    = 0x3A00000
WS_RM    = 0x3B00000
WS_XP    = 0x4000000
RP_SLOT = 72 * 32 * 128
XP_SLOT = 32 * 32 * 2304
SEG_H = 36864

DBG_TICKET = 0
DBG_CLR = 8
DBG_KCLR = 41
DBG_RLD = 42
DBG_KLD = 43
DBG_MODCNT = 8
DBG_HCNT = 40
DBG_ERR = 40

S_WS = 4
S_DBG = 6
S_GRP, S_MEM, S_WAVE, S_FAST = 8, 9, 10, 11
SPIN_MAX = 400000

class Lds:
    def __init__(self, A):
        self.A = A; self.q = []
    def op(self, text, tag=None):
        self.A(text); self.q.append(tag)
    def wait(self, tag):
        if tag not in self.q: return
        i = len(self.q) - 1 - self.q[::-1].index(tag)
        n = len(self.q) - 1 - i
        self.A(f"s_waitcnt lgkmcnt({min(n, 15)})")
        if n > 15:
            self.q = self.q[len(self.q) - 15:]
        else:
            self.q = self.q[i + 1:]
    def waitall(self):
        self.A("s_waitcnt lgkmcnt(0)"); self.q = []

def add64(A, dst, src, off):
    A(f"s_add_u32 s{dst}, s{src}, {off}")
    A(f"s_addc_u32 s{dst+1}, s{src+1}, 0")

def arr_word(g): return (g & 3) + 32 * (g >> 2)
def preamble(A, nwg=256):
    A(f"s_cmp_ge_u32 s2, {nwg}")
    A("s_cbranch_scc1 L_exit")
    A(f"s_load_dwordx4 s[4:7], s[0:1], {KA_DBG}")
    if FORCE.get('cpf', 1):
        A("s_getpc_b64 s[14:15]")
        A.label("L_code0")
        A("s_lshr_b32 s12, s2, 3")
        A("s_lshl_b32 s12, s12, 12")
        A("v_lshl_add_u32 v1, v0, 4, s12")
        A("v_min_u32 v1, L_code_end-L_code0-4, v1")
        A("v_and_b32 v2, 3, v0")
        A("v_cmp_eq_u32 vcc, 0, v2")
        A("s_mov_b64 exec, vcc")
        A("global_load_dword v63, v1, s[14:15]")
        A("s_mov_b64 exec, -1")
    A("s_getreg_b32 s3, hwreg(HW_REG_XCC_ID, 0, 4)")
    A("v_lshrrev_b32 v1, 6, v0")
    A("v_readfirstlane_b32 s10, v1")
    A("s_and_b32 s8, s2, 7")
    A("s_lshr_b32 s9, s2, 3")
    A("v_and_b32 v1, 63, v0")
    A("s_waitcnt lgkmcnt(0)")
    A("s_mov_b64 s[12:13], s[4:5]")
    A("s_mov_b64 s[4:5], s[6:7]")
    A("s_mov_b64 s[6:7], s[12:13]")
    l2 = A.newlabel('L_pre')
    A("s_cmp_lg_u32 s10, 3")
    A(f"s_cbranch_scc1 {l2}")
    A("s_lshl_b32 s12, s2, 8")
    A(f"s_add_u32 s12, s12, {WS_KVPROG}")
    A("v_lshl_add_u32 v2, v1, 2, s12")
    A("v_mov_b32 v3, 0")
    A("global_store_dword v2, v3, s[4:5] sc1")
    A(f"s_bfe_u32 s12, s2, {0x10000 if FORCE.get('tm') else 0x10002}")
    A("s_xor_b32 s12, s12, 1")
    for r in range(4): A(f"v_mov_b32 v{4+r}, s12")
    A("s_lshl_b32 s12, s2, 10")
    A(f"s_add_u32 s12, s12, {WS_RP}")
    A("v_lshl_add_u32 v2, v1, 4, s12")
    A("global_store_dwordx4 v2, v[4:7], s[4:5] sc1")
    for r in range(4): A(f"v_mov_b32 v{8+r}, -1")
    l1 = A.newlabel('L_pre1')
    A("s_cmp_ge_u32 s2, 32")
    A(f"s_cbranch_scc1 {l1}")
    A("s_bfe_u32 s12, s2, 0x10001")
    A("s_xor_b32 s12, s12, 1")
    for r in range(4): A(f"v_mov_b32 v{12+r}, s12")
    A("v_add_u32 v3, 0x40000, v2")
    A("global_store_dwordx4 v3, v[12:15], s[4:5] sc1")
    A.label(l1)
    A(f"v_add_u32 v3, {WS_RM - WS_RP}, v2")
    A("global_store_dwordx4 v3, v[8:11], s[4:5] sc1")
    A("s_mul_i32 s12, s3, s3")
    A("s_lshl_b32 s12, s12, 10")
    A("s_add_u32 s12, s12, s3")
    A("s_lshl_b32 s12, s12, 8")
    A("s_add_u32 s12, s12, 1")
    A("v_mov_b32 v3, s12")
    A("s_and_b32 s12, s8, 3")
    A("s_lshr_b32 s13, s8, 2")
    A("s_lshl_b32 s13, s13, 5")
    A("s_add_u32 s12, s12, s13")
    A("s_lshl_b32 s12, s12, 2")
    A("v_mov_b32 v2, s12")
    A("s_waitcnt vmcnt(0)")
    A("s_mov_b64 exec, 1")
    A("global_atomic_add v2, v3, s[6:7] sc1")
    A("s_mov_b64 exec, -1")
    A.label(l2)

def mode_check(A, tv=1, ts=12, force_slow=False, pre=None):
    done = A.newlabel('L_mc_done'); loop = A.newlabel('L_mc')
    lane_const(A, tv, lambda t: arr_word(t & 7) * 4, tmp=tv + 1)
    A(f"s_mov_b32 s{ts}, 0")
    if pre is not None:
        A(f"v_mov_b32 v{tv+1}, v{pre}")
        A(f"v_and_b32 v{tv+2}, 0xff, v{tv+1}")
        A(f"v_cmp_ne_u32 vcc, 32, v{tv+2}")
        A(f"s_cbranch_vccnz {loop}")
        A(f"v_readfirstlane_b32 s54, v{pre+2}")
        A(f"s_branch {done}")
    A.label(loop)
    A(f"global_load_dword v{tv+1}, v{tv}, s[6:7] sc1")
    A(f"s_add_u32 s{ts}, s{ts}, 1")
    A(f"s_cmp_gt_u32 s{ts}, {SPIN_MAX}")
    A(f"s_cbranch_scc1 L_exit")
    A("s_waitcnt vmcnt(0)")
    A(f"v_and_b32 v{tv+2}, 0xff, v{tv+1}")
    A(f"v_cmp_ne_u32 vcc, 32, v{tv+2}")
    A(f"s_cbranch_vccz {done}")
    A("s_sleep 24")
    A(f"s_branch {loop}")
    A.label(done)
    A(f"v_readlane_b32 s{ts}, v{tv+1}, s8")
    A(f"s_mul_i32 s{ts+1}, s3, s3")
    A(f"s_lshl_b32 s{ts+1}, s{ts+1}, 10")
    A(f"s_add_u32 s{ts+1}, s{ts+1}, s3")
    A(f"s_lshl_b32 s{ts+1}, s{ts+1}, 8")
    A(f"s_add_u32 s{ts+1}, s{ts+1}, 1")
    A(f"s_lshl_b32 s{ts+1}, s{ts+1}, 5")
    A(f"s_cmp_eq_u32 s{ts}, s{ts+1}")
    A(f"s_cselect_b32 s11, {0 if force_slow or FORCE['slow'] else 1}, 0")

FORCE = {'slow': False}
def counter_arrive(A, word, tv=1):
    l = A.newlabel('L_arr')
    A("s_cmp_lg_u32 s10, 0")
    A(f"s_cbranch_scc1 {l}")
    A(f"v_mov_b32 v{tv}, {word*4}")
    A(f"v_mov_b32 v{tv+1}, 1")
    A("s_mov_b64 exec, 1")
    A(f"global_atomic_add v{tv}, v{tv+1}, s[6:7] sc1")
    A("s_mov_b64 exec, -1")
    A.label(l)

def counter_wait(A, word, count, tv=1, ts=12, sleep=12, one=True):
    loop = A.newlabel('L_cw'); done = A.newlabel('L_cwd')
    if one:
        A("s_cmp_lg_u32 s10, 0")
        A(f"s_cbranch_scc1 {done}")
    A(f"v_mov_b32 v{tv}, {word*4}")
    A(f"s_mov_b32 s{ts}, 0")
    A.label(loop)
    A(f"global_load_dword v{tv+1}, v{tv}, s[6:7] sc1")
    A(f"s_add_u32 s{ts}, s{ts}, 1")
    A(f"s_cmp_gt_u32 s{ts}, {SPIN_MAX}")
    A(f"s_cbranch_scc1 L_exit")
    A("s_waitcnt vmcnt(0)")
    A(f"v_cmp_gt_u32 vcc, {count}, v{tv+1}")
    A(f"s_cbranch_vccz {done}")
    A(f"s_sleep {sleep}")
    A(f"s_branch {loop}")
    A.label(done)
    if one: A("s_barrier")

def lane_const(A, dst, f, src=0, nbits=8, tmp=None, mode=None, acc=False):
    N = 1 << nbits
    f0 = f(0)
    def check(m):
        d = [(f(1 << k) ^ f0) if m == 'xor' else (f(1 << k) - f0) for k in range(nbits)]
        for x in range(N):
            y = f0
            for k in range(nbits):
                if x >> k & 1: y = (y ^ d[k]) if m == 'xor' else y + d[k]
            if y != f(x): return None
        return d
    for m in ([mode] if mode else ['add', 'xor']):
        d = check(m)
        if d is not None: break
    assert d is not None, "function not affine"
    assert tmp is not None and tmp != dst and dst != src
    work = dst
    if acc and m == 'xor':
        work = tmp + 1
    if acc and m == 'add':
        if f0: A(f"v_add_u32 v{dst}, {f0 & 0xffffffff:#x}, v{dst}")
    else:
        A(f"v_mov_b32 v{work}, {f0 & 0xffffffff:#x}")
    k = 0
    while k < nbits:
        if d[k] == 0: k += 1; continue
        n = 1
        while k + n < nbits and d[k + n] == d[k] << n: n += 1
        c = d[k]
        if c > 0 and c & (c - 1) == 0:
            sh = c.bit_length() - 1
            A(f"v_bfe_u32 v{tmp}, v{src}, {k}, {n}")
            if m == 'add': A(f"v_lshl_add_u32 v{work}, v{tmp}, {sh}, v{work}")
            else:
                A(f"v_lshlrev_b32 v{tmp}, {sh}, v{tmp}")
                A(f"v_xor_b32 v{work}, v{work}, v{tmp}")
        elif m == 'add' and 0 < c < (1 << 24):
            A(f"v_bfe_u32 v{tmp}, v{src}, {k}, {n}")
            A(f"v_mul_u32_u24 v{tmp}, {c:#x}, v{tmp}")
            A(f"v_add_u32 v{work}, v{work}, v{tmp}")
        else:
            n = 1
            A(f"v_bfe_i32 v{tmp}, v{src}, {k}, 1")
            A(f"v_and_b32 v{tmp}, {c & 0xffffffff:#x}, v{tmp}")
            A(f"v_{'xor_b32' if m == 'xor' else 'add_u32'} v{work}, v{work}, v{tmp}")
        k += n
    if work != dst:
        A(f"v_add_u32 v{dst}, v{dst}, v{work}")


MF32 = "v_mfma_f32_16x16x32_bf16"
MF16 = "v_mfma_f32_16x16x16_bf16"

def ring_load(A, chunks, nslots=8, lbase=0, tmp=28, sb=26):
    A(f"s_lshl_b32 s{sb}, s10, 12")
    if lbase: A(f"s_add_u32 s{sb}, s{sb}, {lbase}")
    def issue(j):
        c = chunks[j]
        add64(A, 12, c['ptr'], c['off'])
        for ip in range(4):
            A(f"s_add_u32 m0, s{sb}, {(j % nslots) * 16384 + ip * 1024}")
            A(f"global_load_lds_dwordx4 v{c['vb']+ip}, s[12:13]")
    n = len(chunks); ah = nslots - 1
    for j in range(min(ah, n)): issue(j)
    for j in range(n):
        A(f"s_waitcnt vmcnt({4 * (min(n - 1, j + ah - 1) - j)})")
        A("s_barrier")
        if j + ah < n: issue(j + ah)
        regs = sorted({r[1] for r in chunks[j]['reads']})
        for k, ar in enumerate(regs): A(f"v_add_u32 v{tmp+k}, {(j % nslots) * 16384 + lbase}, v{ar}")
        for dst, ar, imm in chunks[j]['reads']:
            A(f"ds_read_b64_tr_b16 {u(dst, 2)}, v{tmp + regs.index(ar)} offset:{imm}")
        if 'post' in chunks[j]: chunks[j]['post']()
        A("s_waitcnt lgkmcnt(0)")
    A("s_barrier")

def swzA(row): return 2 * ((row & 3) | ((row >> 3) & 1) << 2)
def swzB(row): return 2 * (((row >> 1) & 1) | ((row >> 2) & 1) << 1)
def dense256_consts(A, vb, tra, stride, tmp):
    for ip in range(4):
        lane_const(A, vb + ip, lambda t: (16 * (t >> 6) + 4 * ip + ((t & 63) >> 4)) * stride, tmp=tmp)
        lane_const(A, vb + ip, lambda t: ((t & 15) ^ swzA(16 * (t >> 6) + 4 * ip + ((t & 63) >> 4))) * 16, tmp=tmp, acc=True)
    for b in range(2):
        def f(t):
            w, l = t >> 6, t & 63
            row = 8 * (l >> 4) + ((l >> 2) & 3); c = l & 3
            return row * 256 + (((4 * w + 2 * b + (c >> 1)) ^ swzA(row)) * 16) + (c & 1) * 8
        lane_const(A, tra + b, f, tmp=tmp)
def dense256_reads(dstf, tra, c):
    return [(dstf(2 * c + kl, b) + 2 * hq, tra + b, (32 * kl + 4 * hq) * 256) for kl in range(2) for b in range(2) for hq in range(2)]
def dense128_consts(A, vb, tra, tmp):
    for ip in range(4):
        lane_const(A, vb + ip, lambda t: (32 * (t >> 6) + 8 * ip + ((t & 63) >> 3)) * 1152, tmp=tmp)
        lane_const(A, vb + ip, lambda t: ((t & 7) ^ swzB(32 * (t >> 6) + 8 * ip + ((t & 63) >> 3))) * 16, tmp=tmp, acc=True)
    def f(t):
        w, l = t >> 6, t & 63
        row = 4 * (l >> 4) + ((l >> 2) & 3); c = l & 3
        return row * 128 + (((2 * w + (c >> 1)) ^ swzB(row)) * 16) + (c & 1) * 8
    lane_const(A, tra, f, tmp=tmp)
def dense128_reads(dstf, tra, t):
    return [(dstf(t, j) + 2 * hq, tra, (32 * j + 16 * hq) * 128) for j in range(4) for hq in range(2)]

def seg_dma(A, vT16, src, ldsreg):
    A(f"s_mov_b64 s[12:13], s[{src}:{src+1}]")
    for j in range(9):
        A(f"s_add_u32 m0, s{ldsreg}, {j * 4096}")
        A(f"global_load_lds_dwordx4 v{vT16}, s[12:13]")
        if j < 8: add64(A, 12, 12, 4096)

def flag_wait(A, addr_v, base, val_s, tv, ts, sleep=1):
    loop = A.newlabel('L_fw'); done = A.newlabel('L_fwd')
    A(f"s_mov_b32 s{ts}, 0")
    A.label(loop)
    A(f"global_load_dword v{tv}, v{addr_v}, s[{base}:{base+1}] sc1")
    A(f"s_add_u32 s{ts}, s{ts}, 1")
    A(f"s_cmp_gt_u32 s{ts}, {SPIN_MAX}")
    A("s_cbranch_scc1 L_exit")
    A("s_waitcnt vmcnt(0)")
    A(f"v_cmp_gt_u32 vcc, s{val_s}, v{tv}")
    A(f"s_cbranch_vccz {done}")
    if sleep: A(f"s_sleep {sleep}")
    A(f"s_branch {loop}")
    A.label(done)

def xsum(A, r, t, op="v_add_f32", bits=(0, 1, 2, 3, 4, 5)):
    for b in bits:
        if b == 0: A(f"{op}_dpp v{r}, v{r}, v{r} quad_perm:[1,0,3,2] row_mask:0xf bank_mask:0xf")
        elif b == 1: A(f"{op}_dpp v{r}, v{r}, v{r} quad_perm:[2,3,0,1] row_mask:0xf bank_mask:0xf")
        elif b == 2: A(f"{op}_dpp v{r}, v{r}, v{r} row_ror:4 row_mask:0xf bank_mask:0xf")
        elif b == 3: A(f"{op}_dpp v{r}, v{r}, v{r} row_ror:8 row_mask:0xf bank_mask:0xf")
        else:
            A(f"v_mov_b32 v{t}, v{r}")
            A(f"v_permlane{16 if b == 4 else 32}_swap_b32 v{r}, v{t}")
            A(f"{op} v{r}, v{r}, v{t}")

def f32bits(x):
    import struct
    return struct.unpack('<I', struct.pack('<f', x))[0]
def rnd1(A, r, t=None):
    A(f"v_cvt_pk_bf16_f32 v{r}, v{r}, v{r}")
    A(f"v_lshlrev_b32 v{r}, 16, v{r}")
def rnd2(A, r):
    A(f"v_cvt_pk_bf16_f32 v{r+1}, v{r}, v{r+1}")
    A(f"v_lshlrev_b32 v{r}, 16, v{r+1}")
    A(f"v_and_b32 v{r+1}, 0xffff0000, v{r+1}")

TL = {'on': False}
DBGMAP = {(0, 1): 4, (0, 3): 5, (0, 4): 6, (1, 1): 7, (1, 2): 9, (2, 1): 10, (2, 4): 11, (5, 7): 12, (5, 1): 13, (5, 4): 14, (2, 7): 15}
def tl(A, slot, tv=60):
    if TL.get('dbg'):
        if slot == 0:
            A("s_memrealtime s[98:99]")
            A("s_waitcnt lgkmcnt(0)")
            return
        for (g, sl), wd in DBGMAP.items():
            if sl != slot: continue
            l = A.newlabel('L_tl')
            A(f"s_cmp_lg_u32 s8, {g}")
            A(f"s_cbranch_scc1 {l}")
            A("s_memrealtime s[100:101]")
            A(f"v_mov_b32 v{tv}, {wd * 4}")
            A("s_waitcnt lgkmcnt(0)")
            A("s_sub_u32 s100, s100, s98")
            A(f"v_mov_b32 v{tv+1}, s100")
            A("s_mov_b64 exec, 1")
            A(f"global_atomic_umax v{tv}, v{tv+1}, s[6:7] sc1")
            A("s_mov_b64 exec, -1")
            A.label(l)
        return
    if not TL['on']: return
    A("s_memrealtime s[100:101]")
    A("s_lshl_b32 s12, s8, 5")
    A("s_add_u32 s12, s12, s9")
    A("s_lshl_b32 s12, s12, 6")
    A(f"s_add_u32 s12, s12, {WS_STAMP + 0x30000 + slot * 4}")
    A(f"v_mov_b32 v{tv}, s12")
    A("s_waitcnt lgkmcnt(0)")
    A(f"v_mov_b32 v{tv+1}, s100")
    A(f"global_store_dword v{tv}, v{tv+1}, s[4:5]")
    A("s_waitcnt vmcnt(0)")

def kvm_clear(A, idx_s):
    for r in range(4): A(f"v_mov_b32 v{8+r}, -1")
    A(f"s_mul_i32 s12, {idx_s}, {88 * 1024}")
    A(f"s_add_u32 s12, s12, {WS_KVM}")
    add64(A, 12, S_WS, "s12")
    A("v_lshlrev_b32 v3, 4, v0")
    for i in range(22):
        A("global_store_dwordx4 v3, v[8:11], s[12:13] sc1")
        if i < 21: add64(A, 12, 12, 4096)
    A("s_waitcnt vmcnt(0)")
    A("s_barrier")
    counter_arrive(A, DBG_KCLR, tv=4)

def backoff(A, cnt_s, after=2, sleep=10):
    l = A.newlabel('L_bo')
    A(f"s_cmp_le_u32 s{cnt_s}, {after}")
    A(f"s_cbranch_scc1 {l}")
    A(f"s_sleep {sleep}")
    A.label(l)
```

```python
from common import *
import math
PROW = 1152
ROWB = 32 * PROW
T16, L16, XS, XS8, XL, RW, XL8, L4 = range(8)
EXP = {}
TRN = ['top', 'go', 'mm', 'flag', 'op0', 'op1', 'ack', 'xf', 'red', 'end']
def tr(A, name):
    if not EXP.get('aftrace'): return
    if name not in TRN: TRN.append(name)
    i = TRN.index(name)
    assert i < 11
    A(f"s_memtime s[{80+2*i}:{81+2*i}]")
def tr_dump(A, seg):
    if not EXP.get('aftrace'): return
    l = A.newlabel('L_trd')
    A(f"s_cmp_lg_u32 s47, {seg}")
    A(f"s_cbranch_scc1 {l}")
    A("s_waitcnt lgkmcnt(0)")
    A("s_lshl_b32 s12, s8, 5")
    A("s_add_u32 s12, s12, s9")
    A("s_lshl_b32 s12, s12, 2")
    A("s_add_u32 s12, s12, s10")
    A("s_lshl_b32 s12, s12, 6")
    A(f"s_add_u32 s12, s12, {WS_STAMP + 0x10000}")
    A("v_mov_b32 v8, s12")
    for q in range(11):
        A(f"v_mov_b32 v9, s{80 + 2 * q}")
        A(f"global_store_dword v8, v9, s[4:5] offset:{4 * q}")
        A("s_waitcnt vmcnt(0)")
    A.label(l)

def af_consts(A, l_red):
    lane_const(A, L16, lambda t: (t & 63) * 16, tmp=12)
    lane_const(A, XS, lambda t: ((t >> 4) & 3) * 4 * ROWB + (t & 15) * 8 + (t >> 6) * 256, tmp=12)
    lane_const(A, XS8, lambda t: (t & 15) * ROWB + ((t >> 4) & 3) * 8 + (t >> 6) * 32 + 1024, tmp=12)
    lane_const(A, XL, lambda t: ((t >> 4) & 3) * PROW + (t >> 6) * 256 + (t & 15) * 16, tmp=12)
    lane_const(A, XL8, lambda t: (8 * (t >> 6) + ((t >> 3) & 7)) * PROW + 1024 + (t & 7) * 16, tmp=12)
    lane_const(A, RW, lambda t: l_red + (256 * ((t >> 3) & 1) + 16 * (t >> 6) + 2 * (t & 7) + ((t >> 4) & 1)) * 4, tmp=12)
    lane_const(A, L4, lambda t: (t & 63) * 4, tmp=12)
    A(f"s_mul_i32 s12, s8, {32 * ROWB}")
    A(f"s_add_u32 s12, s12, {WS_XP}")
    A(f"s_mul_i32 s13, s9, {PROW}")
    A("s_add_u32 s13, s13, s12")
    add64(A, 40, S_WS, "s13")
    A(f"s_mul_i32 s13, s9, {ROWB}")
    A("s_add_u32 s13, s13, s12")
    add64(A, 42, S_WS, "s13")
    A("s_lshl_b32 s12, s8, 7")
    A(f"s_add_u32 s12, s12, {WS_XF}")
    add64(A, 44, S_WS, "s12")
    A("s_mov_b32 s47, 0")

def post_flag(A, wave, off, st):
    l = A.newlabel('L_pf')
    A(f"s_cmp_lg_u32 s10, {wave}")
    A(f"s_cbranch_scc1 {l}")
    A("s_lshl_b32 s12, s9, 2")
    A("v_mov_b32 v8, s12")
    A("v_mov_b32 v9, s47")
    A("s_mov_b64 exec, 1")
    A(f"global_store_dword v8, v9, s[44:45] offset:{off} {st}")
    A("s_mov_b64 exec, -1")
    A.label(l)

def out_proj(A, st, wfrag, l_red, k16=None):
    D = Lds(A)
    FR, AC, NA_, G, W16, F16 = 8, 28, 6, 52, 68, 72
    tr(A, 'op0')
    A("s_add_u32 s47, s47, 1")
    A("s_xor_b32 s46, s47, s9")
    A("s_and_b32 s46, s46, 1")
    A("v_mov_b32 v24, s46")
    order = [8, 0, 1, 2, 3, 4, 5, 6, 7]
    seq = [(tt, t) for tt in range(2) for t in order]
    pend = []
    def slot(k): return AC + 4 * (k % NA_)
    def chk(k):
        regs = {('v', slot(k) + i) for i in range(4)}
        while any(Ins(line).rd & regs for _, o in pend for line in o.split('\n')):
            A(pend.pop(0)[1])
    def wreg(k): return (68, 70, 76, 78)[k & 3]
    def w16rd(k): D.op(f"ds_read_b64_tr_b16 {v(wreg(k), 2)}, v{k16[1]} offset:{seq[k][1] * 128}", ('w16', k))
    def m16(k):
        D.wait(('w16', k))
        a_, b_ = v(F16 + 2 * seq[k][0], 2), v(wreg(k), 2)
        if seq[k][1] == 8: a_, b_ = b_, a_
        A(f"{MF16} {v(slot(k), 4)}, {a_}, {b_}, {v(slot(k), 4)}")
    def post(grp, rdy):
        for k in grp:
            tt, t = seq[k]; c = slot(k); cp = slot(k - 1)
            if t == 8:
                pend.append((rdy, f"v_cvt_pk_bf16_f32 v{c}, v{c}, v{c+1}"))
                pend.append((rdy, f"v_cvt_pk_bf16_f32 v{c+1}, v{c+2}, v{c+3}"))
                pend.append((rdy, f"v_bfi_b32 v{c}, 1, v24, v{c}"))
                pend.append((rdy, sa.format(16 * tt * ROWB) + f"global_store_dwordx2 v{XS8}, {v(c, 2)}, s[12:13] {st}"))
            elif t & 1:
                for r in range(4): pend.append((rdy, f"v_cvt_pk_bf16_f32 v{G + 4 * r + t // 2}, v{cp+r}, v{c+r}"))
                for r in range(4):
                    if t in (1, 5): pend.append((rdy, f"v_bfi_b32 v{G + 4 * r + t // 2}, 1, v24, v{G + 4 * r + t // 2}"))
                    else: pend.append((rdy + 2 + r, sa.format((16 * tt + r) * ROWB) + f"global_store_dwordx2 v{XS}, {v(G + 4 * r + (t >> 2) * 2, 2)}, s[12:13] offset:{(t >> 2) * 128} {st}"))
    if k16:
        for q in range(4): D.op(f"ds_read_b128 {v(G + 4 * q, 4)}, v{L16} offset:{k16[0] + (q >> 1) * 1024 + (q & 1) * 2048}", ('x9', q))
        for k_ in range(4): w16rd(k_)
    sa = f"s_add_u32 s12, s40, {{}}\ns_addc_u32 s13, s41, 0\n"
    mc = [0]
    groups = []
    for tt in range(2): groups += [[9 * tt, 9 * tt + 1, 9 * tt + 2]] + [[9 * tt + 3 + 2 * q, 9 * tt + 4 + 2 * q] for q in range(3)]
    for gi, grp in enumerate(groups):
        tt = seq[grp[0]][0]
        if seq[grp[0]][1] == 8:
            for j in range(4): D.op(f"ds_read_b128 {v(FR + 4 * j, 4)}, v{L16} offset:{(tt * 4 + j) * 1024}", ('f', j))
        if k16 and gi == 0:
            for tt_ in range(2):
                D.wait(('x9', 2 * tt_ + 1))
                g_ = G + 8 * tt_
                for r in (0, 2): A(f"v_pk_mul_f32 {v(g_ + r, 2)}, {v(g_ + r, 2)}, {v(g_ + 4 + r, 2)}")
                for r in (0, 2): A(f"v_cvt_pk_bf16_f32 v{F16 + 2 * tt_ + r // 2}, v{g_+r}, v{g_+r+1}")
        for k in grp: chk(k)
        def drain():
            mc[0] += 1
            for _ in range(2):
                if pend and pend[0][0] <= mc[0]: A(pend.pop(0)[1])
        for j in range(4):
            D.wait(('f', j))
            for k in grp:
                t = seq[k][1]; c = slot(k)
                a_, b_ = v(FR + 4 * j, 4), u(wfrag(t, j), 4)
                if t == 8: a_, b_ = b_, a_
                A(f"{MF32} {v(c, 4)}, {a_}, {b_}, {v(c, 4) if j else 0}")
                drain()
            if k16 and j == 0 and gi:
                for k in groups[gi - 1]:
                    m16(k); drain()
                    if k + 4 < 18: w16rd(k + 4)
                post(groups[gi - 1], mc[0] + 4)
        if not k16: post(grp, mc[0] + 4)
    if k16:
        for k in groups[-1]: m16(k)
        post(groups[-1], 0)
    for o in pend: A(o[1])
    tr(A, 'op1')
    SEL = 12
    A(f"v_bfe_u32 v10, v{L4}, 2, 1")
    A("v_lshlrev_b32 v10, 4, v10")
    A("v_mov_b32 v11, 0x3f80")
    A("v_lshlrev_b32 v11, v10, v11")
    A(f"v_bfe_u32 v10, v{L4}, 3, 2")
    for j in range(4):
        A(f"v_cmp_eq_u32 vcc, {j}, v10")
        A(f"v_cndmask_b32 v{SEL+j}, 0, v11, vcc")
    lane_const(A, 26, lambda x: l_red + 2048 + (x >> 10) * 256 + ((x >> 4) & 7) * 32 + ((x >> 8) & 1) * 16, src=T16, nbits=12, tmp=10)
    A("s_and_b32 s12, s47, 1")
    A("s_sub_u32 s12, 0, s12")
    A(f"v_bfe_i32 v10, v{L4}, 6, 1")
    A(f"v_bfe_i32 v11, v{L4}, 5, 1")
    A("v_xor_b32 v10, s12, v10")
    A("v_xor_b32 v11, s12, v11")
    A("s_waitcnt vmcnt(0)")
    tr(A, 'ack')
    lnf = A.newlabel('L_nf')
    A("s_cmp_lg_u32 s47, 1")
    A(f"s_cbranch_scc1 {lnf}")
    A("s_barrier")
    post_flag(A, 0, 0, st)
    A(f"v_and_b32 v8, 0x7c, v{L4}")
    flag_wait(A, 8, 44, 47, 9, 12, sleep=8)
    A.label(lnf)
    tr(A, 'xf')
    LD = 28
    A("s_mov_b32 s14, 0")
    lrt = A.newlabel('L_xr')
    A.label(lrt)
    A("s_mov_b64 s[12:13], s[42:43]")
    A(f"global_load_dwordx4 {v(LD + 32, 4)}, v{XL8}, s[12:13] sc1")
    for i in range(8):
        A(f"global_load_dwordx4 {v(LD + 4 * i, 4)}, v{XL}, s[12:13] sc1")
        if i < 7: add64(A, 12, 12, 4 * PROW)
    A("s_mov_b64 exec, -1")
    A("s_add_u32 s14, s14, 1")
    A(f"s_cmp_gt_u32 s14, {SPIN_MAX}")
    A("s_cbranch_scc1 L_exit")
    A("s_waitcnt vmcnt(8)")
    A(f"{MF32} v[20:23], {v(SEL, 4)}, {v(LD + 32, 4)}, 0")
    A(f"v_bitop3_b32 v8, v{LD+32}, v{LD+34}, v11 bitop3:0x7e")
    A("v_and_b32 v8, 1, v8")
    for i in range(8):
        A(f"s_waitcnt vmcnt({7 - i})")
        A(f"{MF32} v[16:19], {v(SEL, 4)}, {v(LD + 4 * i, 4)}, {'v[16:19]' if i else 0}")
        A(f"v_bitop3_b32 v9, v{LD+4*i}, v{LD+4*i+2}, v10 bitop3:0x7e")
        A("v_and_or_b32 v8, v9, 1, v8")
        if i == 4:
            for r in range(4): A(f"v_add_f32_dpp v{20+r}, v{20+r}, v{20+r} row_ror:8 row_mask:0xf bank_mask:0xf")
            A("ds_write_b128 v26, v[20:23]")
    A("v_cmp_ne_u32 vcc, 0, v8")
    A("s_mov_b64 exec, vcc")
    A(f"s_cbranch_vccnz {lrt}")
    A("s_mov_b64 exec, -1")
    for r in range(4): A(f"ds_write_b32 v{RW}, v{16+r} offset:{256 * r}")
    A("s_waitcnt lgkmcnt(0)")
    A("s_barrier")
    tr(A, 'red')
    post_flag(A, 1, 1024, st)

def consumed_wait(A, tv):
    A(f"v_and_b32 v{tv}, 0x7c, v{L4}")
    A(f"v_add_u32 v{tv}, 1024, v{tv}")
    flag_wait(A, tv, 44, 47, tv + 1, 12, sleep=0)

def row_gather(A, l_red):
    A(f"v_lshlrev_b32 v48, 1, v{L4}")
    for w in range(4): A(f"ds_read_b64 {v(16 + 2 * w, 2)}, v48 offset:{l_red + 2048 + w * 256}")
    for i in range(4): A(f"ds_read_b64 {v(8 + 2 * i, 2)}, v48 offset:{l_red + i * 512}")
    A("s_waitcnt lgkmcnt(4)")
    A("v_pk_add_f32 v[16:17], v[16:17], v[18:19]")
    A("v_pk_add_f32 v[20:21], v[20:21], v[22:23]")
    A("v_pk_add_f32 v[16:17], v[16:17], v[20:21]")
    A("s_waitcnt lgkmcnt(0)")
    for i in range(5): rnd2(A, 8 + 2 * i)

def unpack(A, dst, src):
    A(f"v_lshlrev_b32 v{dst}, 16, v{src}")
    A(f"v_and_b32 v{dst+1}, 0xffff0000, v{src}")

def cached_wait(A, base, val_s, cache_s, tv):
    ok = A.newlabel('L_cw')
    A(f"s_cmp_ge_u32 s{cache_s}, s{val_s}")
    A(f"s_cbranch_scc1 {ok}")
    A(f"v_mov_b32 v{tv}, 0")
    flag_wait(A, tv, base, val_s, tv + 1, 12, sleep=16)
    A(f"v_readfirstlane_b32 s{cache_s}, v{tv+1}")
    A.label(ok)

def WA(i): return 256 + 4 * i if i < 64 else 224 + 4 * (i - 64)

def role_a(A, restart, na, ag0, kvg0, standalone=False):
    LQ, LO, LRED = 2 * SEG_H, 2 * SEG_H + 8192, 2 * SEG_H + 16384
    LKM, LVM = LRED + 4096, LRED + 8192
    A(f"s_load_dwordx2 s[16:17], s[0:1], {KA_WQ}")
    A(f"s_load_dwordx2 s[18:19], s[0:1], {KA_WO}")
    A(f"s_load_dwordx2 s[34:35], s[0:1], {KA_X}")
    dense256_consts(A, 12, 16, 8192, 1)
    dense128_consts(A, 20, 18, 1)
    A("s_lshl_b32 s12, s9, 8")
    A("s_waitcnt lgkmcnt(0)")
    add64(A, 16, 16, "s12")
    A("s_mul_i32 s12, s9, 147456")
    add64(A, 18, 18, "s12")
    def wq(ks, b): return WA(ks * 2 + b)
    def wo(t, j): return WA(36 + t * 4 + j)
    chunks = [dict(ptr=16, off=c * 64 * 8192, vb=12, reads=dense256_reads(wq, 16, c)) for c in range(9)]
    chunks += [dict(ptr=18, off=t * 128, vb=20, reads=dense128_reads(wo, 18, t)) for t in range(9)]
    ring_load(A, chunks)
    tl(A, 1)
    mode_check(A, tv=12)
    af_consts(A, LRED)
    HA, QRD, OWR, KMA, VOF, NEG, H2A = 80, 81, 82, 83, 84, 85, 86
    MODR, XR = 88, 104
    KF, VF, KM, VM = 112, 144, 160, 176
    lane_const(A, QRD, lambda t: LQ + (t >> 7) * 4096 + (t & 63) * 16, tmp=12)
    lane_const(A, OWR, lambda t: LO + (t >> 6) * 2048 + (t & 63) * 16, tmp=12)
    KMW, VMW = 87, 109
    lane_const(A, KMW, lambda t: LKM + 2 * ((t >> 4) & 3) * 288 + (t >> 6) * 64 + (t & 15) * 4, tmp=12)
    lane_const(A, KMA, lambda t: LKM + (2 * ((t & 15) >> 2) + (t & 1)) * 288 + ((t >> 4) & 3) * 16, tmp=12)
    lane_const(A, VMW, lambda t: LVM + t * 8, tmp=12)
    lane_const(A, VOF, lambda t: LVM + ((t >> 6) & 1) * 1024 + (t & 63) * 8, tmp=12)
    A(f"v_mov_b32 v{NEG}, {f32bits(-1e9):#x}")
    A("s_bfe_u32 s12, s9, 0x30001")
    A("s_lshl_b32 s12, s12, 4")
    A(f"v_xor_b32 v{H2A}, s12, v{L4}")
    lane_const(A, 12, lambda t: 16 * (t >> 7) + (t & 15) - 4 * ((t >> 4) & 3), tmp=13)
    for k in range(8): A(f"v_cmp_le_i32 s[{64+2*k}:{65+2*k}], {(k & 3) + 16 * (k >> 2)}, v12")
    A(f"v_lshlrev_b32 v{T16}, 4, v0")
    A(f"s_sub_u32 s24, s8, {ag0}")
    A(f"s_mul_i32 s12, s24, {SEG_H}")
    A(f"s_add_u32 s13, s12, {WS_H}")
    add64(A, 20, S_WS, "s13")
    A("s_mul_i32 s13, s9, 1152")
    A("s_add_u32 s12, s12, s13")
    add64(A, 34, 34, "s12")
    A(f"s_add_u32 s13, s12, {WS_X1}")
    add64(A, 36, S_WS, "s13")
    A(f"s_add_u32 s13, s12, {WS_H2}")
    add64(A, 38, S_WS, "s13")
    A("s_lshl_b32 s12, s24, 5")
    A("s_add_u32 s12, s12, s9")
    A("s_lshl_b32 s13, s12, 14")
    A(f"s_add_u32 s13, s13, {WS_KV + 4096}")
    add64(A, 22, S_WS, "s13")
    A("s_lshl_b32 s13, s12, 12")
    A(f"s_add_u32 s13, s13, {WS_KVM}")
    add64(A, 30, S_WS, "s13")
    A("s_lshl_b32 s13, s12, 2")
    A(f"s_add_u32 s13, s13, {WS_H2FLAG}")
    add64(A, 52, S_WS, "s13")
    A("s_lshl_b32 s12, s9, 7")
    A(f"s_add_u32 s13, s12, {WS_KVPROG + kvg0 * 4096}")
    add64(A, 54, S_WS, "s13")
    A(f"s_add_u32 s13, s12, {WS_RPROG}")
    add64(A, 56, S_WS, "s13")
    A(f"s_mov_b32 s58, {64 if standalone else 0}")
    A(f"s_mov_b32 s59, {64 if standalone else 0}")
    A("s_lshl_b32 s26, s10, 10")
    A("s_mov_b32 s27, 0")
    A(f"s_mov_b32 s60, {f32bits(128 ** -0.5):#x}")
    A(f"s_mov_b32 s61, {f32bits(math.log2(math.e)):#x}")
    if not standalone:
        counter_wait(A, DBG_HCNT, 128, tv=12)
        counter_wait(A, DBG_KCLR, 96, tv=12)
    for k, ch in enumerate((2, 4, 3)):
        add64(A, 12, S_WS, WS_MOD + ch * 1152)
        for i in range(5): A(f"global_load_dword v{MODR+5*k+i}, v{L4}, s[12:13] offset:{256 * i} sc1")
    def hdma():
        seg_dma(A, T16, 20, 26)
        add64(A, 20, 20, na * SEG_H)
        A(f"s_xor_b32 s26, s26, {SEG_H}")
    assert SEG_H & 3072 == 0
    hdma()
    A("s_waitcnt vmcnt(0)")
    A("s_cmp_eq_u32 s11, 0")
    A("s_cbranch_scc1 L_a_top_s")
    for fast in (True, False):
        st = "" if fast else "sc1"; sfx = "f" if fast else "s"
        A.label(f"L_a_top_{sfx}")
        tr(A, 'top')
        A("s_add_u32 s25, s24, 1")
        cached_wait(A, 54, 25, 58, 8)
        for i in range(8): A(f"global_load_dwordx4 {v(KF + 4 * i, 4)}, v{L16}, s[22:23] offset:{i * 1024 - 4096}")
        A("s_and_b32 s12, s10, 1")
        A("s_lshl_b32 s12, s12, 12")
        A("s_add_u32 s12, s12, 4096")
        add64(A, 12, 22, "s12")
        for i in range(4): A(f"global_load_dwordx4 {v(VF + 4 * i, 4)}, v{L16}, s[12:13] offset:{i * 1024}")
        A("s_mov_b32 exec_hi, 0")
        A(f"global_load_dword v{XR+4}, v{L4}, s[34:35] offset:1024")
        A("s_mov_b64 exec, -1")
        for i in range(4): A(f"global_load_dword v{XR+i}, v{L4}, s[34:35] offset:{256 * i}")
        A(f"v_add_u32 v{HA}, s27, v{L16}")
        A("s_barrier")
        tr(A, 'go')
        D = Lds(A)
        ACC, RING, NR = 8, 24, 6
        seq = [(ks, tt) for ks in range(18) for tt in range(2)]
        def rd(i):
            ks, tt = seq[i]
            D.op(f"ds_read_b128 {v(RING + 4 * (i % NR), 4)}, v{HA} offset:{(tt * 18 + ks) * 1024}", i)
        for i in range(NR - 1): rd(i)
        hdma()
        A(f"s_xor_b32 s27, s27, {SEG_H}")
        for i, (ks, tt) in enumerate(seq):
            if i + NR - 1 < 36: rd(i + NR - 1)
            D.wait(i)
            for b in range(2):
                d = v(ACC + (b * 2 + tt) * 4, 4)
                A(f"{MF32} {d}, {u(wq(ks, b), 4)}, {v(RING + 4 * (i % NR), 4)}, {d if ks else 0}")
        for tt in range(2):
            for r in range(4): A(f"v_cvt_pk_bf16_f32 v{48+4*tt+r}, v{ACC+4*tt+r}, v{ACC+8+4*tt+r}")
            A(f"v_add_u32 v56, {LQ + tt * 4096}, v{T16}")
            A(f"ds_write_b128 v56, {v(48 + 4 * tt, 4)}")
        A("s_waitcnt lgkmcnt(0)")
        A("s_barrier")
        QF = 24
        for j in range(4): A(f"ds_read_b128 {v(QF + 4 * j, 4)}, v{QRD} offset:{j * 1024}")
        A("s_waitcnt vmcnt(9) lgkmcnt(0)")
        T0, T1, T2 = 8, 12, 16
        for j in range(4):
            for kt in range(2):
                d = v(T0 + 4 * kt, 4)
                A(f"{MF32} {d}, {v(KF + 4 * (kt * 4 + j), 4)}, {v(QF + 4 * j, 4)}, {d if j else 0}")
        consumed_wait(A, 40)
        tr(A, 'mm')
        def scale(r):
            if not EXP.get('nosr'): rnd2(A, r)
            A(f"v_pk_mul_f32 {v(r, 2)}, {v(r, 2)}, s[60:61] op_sel_hi:[1,0]")
            if not EXP.get('nosr'): rnd2(A, r)
        for r in range(T0, T0 + 8, 2): scale(r)
        for k in range(8): A(f"v_cndmask_b32 v{T0+k}, v{NEG}, v{T0+k}, s[{64+2*k}:{65+2*k}]")
        M, TT, SUM = 20, 21, 22
        A(f"v_max3_f32 v{M}, v8, v9, v10")
        A(f"v_max3_f32 v{M}, v{M}, v11, v12")
        A(f"v_max3_f32 v{M}, v{M}, v13, v14")
        A(f"v_max_f32 v{M}, v{M}, v15")
        lp = A.newlabel('L_km'); lok = A.newlabel('L_kmok')
        A("s_mov_b32 s12, 0")
        A.label(lp)
        A(f"global_load_dwordx4 v[40:43], v{T16}, s[30:31] sc1")
        A("s_add_u32 s12, s12, 1")
        A(f"s_cmp_gt_u32 s12, {SPIN_MAX}")
        A("s_cbranch_scc1 L_exit")
        A("s_waitcnt vmcnt(0)")
        A(f"ds_write2_b32 v{KMW}, v40, v41 offset0:0 offset1:72")
        A(f"ds_write_b64 v{VMW}, v[42:43]")
        A("v_max3_u32 v44, v40, v41, v42")
        A("v_max_u32 v44, v44, v43")
        A("v_cmp_eq_u32 vcc, -1, v44")
        A(f"s_cbranch_vccz {lok}")
        A("s_sleep 3")
        A(f"s_branch {lp}")
        A.label(lok)
        A("s_waitcnt lgkmcnt(0)")
        A("s_barrier")
        tr(A, 'flag')
        for j in range(4): A(f"ds_read_b128 {v(KM + 4 * j, 4)}, v{KMA} offset:{j * 64}")
        for i in range(2): A(f"ds_read_b64 {v(VM + 2 * i, 2)}, v{VOF} offset:{i * 512}")
        for j in range(4):
            A(f"s_waitcnt lgkmcnt({5 - j})")
            A(f"{MF32} {v(T2, 4)}, {v(KM + 4 * j, 4)}, {v(QF + 4 * j, 4)}, {v(T2, 4) if j else 0}")
        scale(T2)
        A(f"v_max3_f32 v{M}, v{M}, v16, v17")
        xsum(A, M, TT, op="v_max_f32", bits=(4, 5))
        for r in range(8, 18, 2): A(f"v_pk_add_f32 {v(r, 2)}, {v(r, 2)}, {v(M, 2)} op_sel_hi:[1,0] neg_lo:[0,1] neg_hi:[0,1]")
        for r in range(8, 18, 2): A(f"v_pk_mul_f32 {v(r, 2)}, {v(r, 2)}, s[60:61] op_sel:[0,1]")
        for r in range(8, 18): A(f"v_exp_f32 v{r}, v{r}")
        A(f"v_pk_add_f32 {v(SUM, 2)}, v[8:9], v[10:11]")
        for r in (12, 14, 16): A(f"v_pk_add_f32 {v(SUM, 2)}, {v(SUM, 2)}, {v(r, 2)}")
        A(f"v_add_f32 v{SUM}, v{SUM}, v{SUM+1}")
        xsum(A, SUM, TT, bits=(4, 5))
        A(f"v_rcp_f32 v{SUM}, v{SUM}")
        for r in range(8, 18, 2): A(f"v_pk_mul_f32 {v(r, 2)}, {v(r, 2)}, {v(SUM, 2)} op_sel_hi:[1,0]")
        BX, Z = 40, 44
        for q in range(4): A(f"v_cvt_pk_bf16_f32 v{BX+q}, v{8+2*q}, v{9+2*q}")
        A(f"v_cvt_pk_bf16_f32 v{Z}, v16, v17")
        A(f"v_mov_b32 v{Z+1}, 0")
        A(f"v_mov_b32 v{Z+2}, 0")
        A(f"v_mov_b32 v{Z+3}, v{Z}")
        OA = 24
        for t in range(4): A(f"{MF32} {v(OA + 4 * t, 4)}, {v(VF + 4 * t, 4)}, {v(BX, 4)}, 0")
        A("s_waitcnt lgkmcnt(0)")
        for t in range(4): A(f"{MF16} {v(OA + 4 * t, 4)}, {v(VM + 2 * (t >> 1), 2)}, {v(Z + 2 * (t & 1), 2)}, {v(OA + 4 * t, 4)}")
        for q in range(8): A(f"v_cvt_pk_bf16_f32 v{48+q}, v{OA+2*q}, v{OA+2*q+1}")
        A(f"ds_write_b128 v{OWR}, v[48:51]")
        A(f"ds_write_b128 v{OWR}, v[52:55] offset:1024")
        A("s_waitcnt lgkmcnt(0)")
        A("s_barrier")
        oa = Asm()
        A(f"v_add_u32 v{L16}, {LO}, v{L16}")
        out_proj(A, st, wo, LRED)
        A(f"v_subrev_u32 v{L16}, {LO}, v{L16}")
        A("s_cmp_lg_u32 s10, 0")
        A(f"s_cbranch_scc1 L_a_next_{sfx}")
        A(f"v_add_u32 v{L4}, {LRED // 2}, v{L4}")
        row_gather(A, 0)
        A(f"v_subrev_u32 v{L4}, {LRED // 2}, v{L4}")
        A("v_mov_b64 v[20:21], 0")
        for i in range(5):
            r = 8 + 2 * i
            if i == 4: A("s_mov_b32 exec_hi, 0")
            unpack(A, 18, MODR + i)
            A(f"v_pk_mul_f32 {v(r, 2)}, {v(r, 2)}, v[18:19]")
            rnd2(A, r)
            unpack(A, 18, XR + i)
            A(f"v_pk_add_f32 {v(r, 2)}, {v(r, 2)}, v[18:19]")
            A(f"v_cvt_pk_bf16_f32 v{24+i}, v{r}, v{r+1}")
            unpack(A, r, 24 + i)
            A(f"global_store_dword v{L4}, v{24+i}, s[36:37] offset:{256 * i} sc1")
            A(f"v_pk_add_f32 v[20:21], v[20:21], {v(r, 2)}")
        A("s_mov_b64 exec, -1")
        A("v_add_f32 v20, v20, v21")
        xsum(A, 20, 21)
        A(f"v_mul_f32 v20, {f32bits(1.0 / 576):#x}, v20")
        A("v_mov_b64 v[22:23], 0")
        for i in range(5):
            if i == 4: A("s_mov_b32 exec_hi, 0")
            A(f"v_pk_add_f32 v[18:19], {v(8 + 2 * i, 2)}, v[20:21] op_sel_hi:[1,0] neg_lo:[0,1] neg_hi:[0,1]")
            A("v_pk_fma_f32 v[22:23], v[18:19], v[18:19], v[22:23]")
        A("s_mov_b64 exec, -1")
        A("v_add_f32 v22, v22, v23")
        xsum(A, 22, 23)
        A(f"v_mul_f32 v22, {f32bits(1.0 / 576):#x}, v22")
        rnd1(A, 22); rnd1(A, 20)
        A(f"v_add_f32 v22, {f32bits(1e-5):#x}, v22")
        rnd1(A, 22)
        A("v_sqrt_f32 v22, v22")
        rnd1(A, 22)
        A("v_rcp_f32 v22, v22")
        for i in range(5):
            r = 8 + 2 * i
            if i == 4: A("s_mov_b32 exec_hi, 0")
            A(f"v_pk_add_f32 {v(r, 2)}, {v(r, 2)}, v[20:21] op_sel_hi:[1,0] neg_lo:[0,1] neg_hi:[0,1]")
            rnd2(A, r)
            A(f"v_pk_mul_f32 {v(r, 2)}, {v(r, 2)}, v[22:23] op_sel_hi:[1,0]")
            rnd2(A, r)
            unpack(A, 18, MODR + 5 + i)
            A(f"v_pk_mul_f32 {v(r, 2)}, {v(r, 2)}, v[18:19]")
            rnd2(A, r)
            unpack(A, 18, MODR + 10 + i)
            A(f"v_pk_add_f32 {v(r, 2)}, {v(r, 2)}, v[18:19]")
            A(f"v_cvt_pk_bf16_f32 v{30+i}, v{r}, v{r+1}")
            A(f"global_store_dword v{H2A}, v{30+i}, s[38:39] offset:{256 * i} sc1")
        A("s_mov_b64 exec, 1")
        A("v_mov_b32 v18, 1")
        A("s_waitcnt vmcnt(0)")
        A(f"global_store_dword v{L4}, v18, s[52:53] sc1")
        A("s_mov_b64 exec, -1")
        A.label(f"L_a_next_{sfx}")
        tr(A, 'end'); tr_dump(A, EXP.get('aftrace', 0))
        add64(A, 34, 34, na * SEG_H); add64(A, 36, 36, na * SEG_H); add64(A, 38, 38, na * SEG_H)
        add64(A, 22, 22, na << 19); add64(A, 30, 30, na << 17); add64(A, 52, 52, na * 128)
        A(f"s_add_u32 s24, s24, {na}")
        A("s_cmp_lt_u32 s24, 64")
        A(f"s_cbranch_scc1 L_a_top_{sfx}")
        tl(A, 4)
        A("s_branch L_exit")

def WFF(i): return 256 + 4 * i if i < 64 else 80 + 4 * (i - 64)

def role_f(A, nf, fg0, standalone=False):
    LG8, LW16, LRING = 0, 36864, 57344
    LH2, LACT = LRING, LRING + 40960
    LRED = LACT + 12288
    A(f"s_load_dwordx4 s[16:19], s[0:1], {KA_WG}")
    A(f"s_load_dwordx2 s[20:21], s[0:1], {KA_WD}")
    A(f"s_load_dwordx2 s[34:35], s[0:1], {KA_OUT}")
    dense256_consts(A, 12, 16, 9216, 1)
    dense128_consts(A, 20, 18, 1)
    lane_const(A, 24, lambda t: (t >> 1) * 9216 + (t & 1) * 16 + 256, tmp=1)
    lane_const(A, 25, lambda t: t * 16, tmp=1)
    A("s_mul_i32 s12, s9, 288")
    A("s_waitcnt lgkmcnt(0)")
    add64(A, 16, 16, "s12"); add64(A, 18, 18, "s12")
    A(f"s_mul_i32 s12, s9, {144 * 1152}")
    add64(A, 20, 20, "s12")
    A("s_lshl_b32 s26, s10, 10")
    for m in range(2):
        for i in range(5):
            if i == 4:
                A("s_cmp_ge_u32 s10, 2"); l = A.newlabel('L_f8'); A(f"s_cbranch_scc1 {l}")
            add64(A, 12, 16 + 2 * m, i * 128 * 9216)
            A(f"s_add_u32 m0, s26, {LG8 + m * 18432 + i * 4096}")
            A("global_load_lds_dwordx4 v24, s[12:13]")
            if i == 4: A.label(l)
    for i in range(5):
        if i == 4:
            A("s_cmp_ge_u32 s10, 2"); l = A.newlabel('L_f16'); A(f"s_cbranch_scc1 {l}")
        add64(A, 12, 20, 128 * 1152 + i * 4096)
        A(f"s_add_u32 m0, s26, {LW16 + i * 4096}")
        A("global_load_lds_dwordx4 v25, s[12:13]")
        if i == 4: A.label(l)
    def wg(m, ks, b): return WFF(ks * 4 + m * 2 + b)
    def wd(t, j): return WFF(72 + t * 4 + j)
    chunks = []
    for c in range(9):
        for m in range(2):
            chunks.append(dict(ptr=16 + 2 * m, off=c * 64 * 9216, vb=12, reads=dense256_reads(lambda ks, b, m=m: wg(m, ks, b), 16, c)))
    chunks += [dict(ptr=20, off=t * 128, vb=20, reads=dense128_reads(wd, 18, t)) for t in range(9)]
    ring_load(A, chunks, nslots=6, lbase=LRING)
    tl(A, 1)
    mode_check(A, tv=12)
    af_consts(A, LRED)
    A(f"v_lshlrev_b32 v{T16}, 4, v0")
    A(f"s_sub_u32 s24, s8, {fg0}")
    A(f"s_mul_i32 s12, s24, {SEG_H}")
    A(f"s_add_u32 s13, s12, {WS_H2}")
    add64(A, 20, S_WS, "s13")
    A("s_mul_i32 s13, s9, 1152")
    A("s_add_u32 s12, s12, s13")
    add64(A, 34, 34, "s12")
    A(f"s_add_u32 s13, s12, {WS_X1}")
    add64(A, 36, S_WS, "s13")
    A("s_lshl_b32 s13, s24, 7")
    A(f"s_add_u32 s13, s13, {WS_H2FLAG}")
    add64(A, 52, S_WS, "s13")
    add64(A, 54, S_WS, WS_MOD + 5 * 1152)
    A("s_lshl_b32 s26, s10, 10")
    A(f"s_add_u32 s26, s26, {LH2}")
    A("s_mov_b32 s25, 1")
    A(f"s_mov_b32 s60, {f32bits(-math.log2(math.e)):#x}")
    A("s_cmp_ge_u32 s10, 2")
    A("s_cselect_b64 s[62:63], -1, 0")
    A("s_cmp_eq_u32 s11, 0")
    A("s_cbranch_scc1 L_f_top_s")
    for fast in (True, False):
        st = "" if fast else "sc1"; sfx = "f" if fast else "s"
        A.label(f"L_f_top_{sfx}")
        tr(A, 'top')
        consumed_wait(A, 8)
        if not standalone:
            A(f"v_and_b32 v8, 0x7c, v{L4}")
            flag_wait(A, 8, 52, 25, 9, 12, sleep=3)
        tr(A, 'flag')
        seg_dma(A, T16, 20, 26)
        HA, G8A, AW = 72, 76, 77
        A(f"v_lshrrev_b32 v78, 4, v{T16}")
        for ttl in range(2):
            for par in range(2):
                r = HA + 2 * ttl + par
                lane_const(A, r, lambda t: LH2 + (t & 15) * 1152 + ((ttl ^ (t >> 6)) & 1) * 18432, src=78, tmp=8)
                lane_const(A, r, lambda t: ((4 * par + ((t >> 4) & 3)) ^ ((t & 15) >> 1)) * 16, src=78, tmp=8, acc=True)
        lane_const(A, G8A, lambda t: LG8 + (t >> 7) * 18432 + ((t >> 4) & 3) * 256 + (t & 15) * 8, src=78, tmp=8)
        lane_const(A, AW, lambda t: LACT + t * 16 + ((t >> 6) & 1) * 4096, src=78, tmp=8)
        A("s_waitcnt vmcnt(0)")
        A("s_barrier")
        tr(A, 'go')
        def swiglu(g, u_, dst, t0, pk):
            B = Asm()
            for r in (0, 2):
                rnd2(B, g + r); rnd2(B, u_ + r)
                if pk: B(f"v_pk_mul_f32 {v(t0, 2)}, {v(g + r, 2)}, s[60:61] op_sel_hi:[1,0]")
                else:
                    for q in range(2): B(f"v_mul_f32 v{t0+q}, s60, v{g+r+q}")
                for q in range(2): B(f"v_exp_f32 v{t0+q}, v{t0+q}")
                if pk: B(f"v_pk_add_f32 {v(t0, 2)}, {v(t0, 2)}, 1.0 op_sel_hi:[1,0]")
                else:
                    for q in range(2): B(f"v_add_f32 v{t0+q}, 1.0, v{t0+q}")
                for q in range(2): B(f"v_rcp_f32 v{t0+q}, v{t0+q}")
                if pk: B(f"v_pk_mul_f32 {v(g + r, 2)}, {v(g + r, 2)}, {v(t0, 2)}")
                else:
                    for q in range(2): B(f"v_mul_f32 v{g+r+q}, v{g+r+q}, v{t0+q}")
                rnd2(B, g + r)
                if pk: B(f"v_pk_mul_f32 {v(g + r, 2)}, {v(g + r, 2)}, {v(u_ + r, 2)}")
                else:
                    for q in range(2): B(f"v_mul_f32 v{g+r+q}, v{g+r+q}, v{u_+r+q}")
                B(f"v_cvt_pk_bf16_f32 v{dst + r // 2}, v{g+r}, v{g+r+1}")
            return [i.text.strip() for i in B.ins]
        D = Lds(A)
        RING, NR = 48, 4
        seq = [(ttl, ks) for ttl in range(2) for ks in range(18)]
        def rd(i):
            ttl, ks = seq[i]
            D.op(f"ds_read_b128 {v(RING + 4 * (i % NR), 4)}, v{HA + 2 * ttl + (ks & 1)} offset:{(ks >> 1) * 128}", i)
        def rd9(ks):
            for hq in range(2):
                D.op(f"ds_read_b64_tr_b16 {v(24 + 4 * (ks % 4) + 2 * hq, 2)}, v{G8A} offset:{ks * 1024 + hq * 128}", ('w9', ks))
        def ac(m, b, ttl): return 8 + 16 * ttl + (m * 2 + b) * 4
        for i in range(NR - 1): rd(i); rd9(i)
        vq = []
        for i, (ttl, ks) in enumerate(seq):
            D.wait(i)
            h = v(RING + 4 * (i % NR), 4)
            if i == 20:
                for b in range(2): vq += swiglu(ac(0, b, 0), ac(1, b, 0), 64 + 2 * b, 70, False)
                vq.append(f"ds_write_b128 v{AW}, v[64:67]")
                B = Asm()
                rnd2(B, 40); rnd2(B, 42)
                for q in range(4): B(f"v_mul_f32 v{44+q}, s60, v{40+q}")
                for q in range(4): B(f"v_exp_f32 v{44+q}, v{44+q}")
                for q in range(4): B(f"v_add_f32 v{44+q}, 1.0, v{44+q}")
                for q in range(4): B(f"v_rcp_f32 v{44+q}, v{44+q}")
                for q in range(4): B(f"v_mul_f32 v{44+q}, v{40+q}, v{44+q}")
                rnd2(B, 44); rnd2(B, 46)
                for q in range(4): B(f"v_cndmask_b32 v{40+q}, v{44+q}, v{40+q}, s[62:63]")
                B(f"v_add_u32 v70, {LACT + 8192}, v{T16}")
                B("ds_write_b128 v70, v[40:43]")
                vq += [x.text.strip() for x in B.ins]
            k4 = 0
            for m in range(2):
                for b in range(2):
                    d = v(ac(m, b, ttl), 4)
                    A(f"{MF32} {d}, {u(wg(m, ks, b), 4)}, {h}, {d if ks else 0}")
                    if k4 == 0 and i + NR - 1 < 36: rd(i + NR - 1)
                    if k4 == 1 and ttl == 0 and ks + 3 < 18: rd9(ks + 3)
                    k4 += 1
                    for _ in range(2):
                        if vq:
                            o = vq.pop(0)
                            if o.startswith('ds_'): D.op(o)
                            else: A(o)
            if ttl == 0:
                D.wait(('w9', ks))
                A(f"{MF32} v[40:43], {v(24 + 4 * (ks % 4), 4)}, {h}, {'v[40:43]' if ks else 0}")
        for o in vq: A(o)
        tr(A, 'mm')
        o0 = swiglu(24, 32, 48, 52, True); o1 = swiglu(28, 36, 50, 54, True)
        for a_, b_ in zip(o0, o1): A(a_); A(b_)
        A(f"v_xor_b32 v{AW}, 4096, v{AW}")
        A(f"ds_write_b128 v{AW}, v[48:51]")
        lane_const(A, 27, lambda t: LW16 + (4 * ((t >> 4) & 3) + ((t >> 2) & 3)) * 1152 + (t >> 6) * 32 + (t & 3) * 8, src=78, tmp=8)
        A("s_waitcnt lgkmcnt(0)")
        A("s_barrier")
        A(f"v_add_u32 v{L16}, {LACT}, v{L16}")
        out_proj(A, st, wd, LRED, k16=(8192, 27))
        A(f"v_subrev_u32 v{L16}, {LACT}, v{L16}")
        A("s_cmp_lg_u32 s10, 0")
        A(f"s_cbranch_scc1 L_f_next_{sfx}")
        for i in range(5):
            if i == 4: A("s_mov_b32 exec_hi, 0")
            A(f"global_load_dword v{50+i}, v{L4}, s[54:55] offset:{256 * i}")
            A(f"global_load_dword v{56+i}, v{L4}, s[36:37] offset:{256 * i}")
        A("s_mov_b64 exec, -1")
        A(f"v_add_u32 v{L4}, {LRED // 2}, v{L4}")
        row_gather(A, 0)
        A(f"v_subrev_u32 v{L4}, {LRED // 2}, v{L4}")
        A("s_waitcnt vmcnt(0)")
        for i in range(5):
            r = 8 + 2 * i
            if i == 4: A("s_mov_b32 exec_hi, 0")
            unpack(A, 18, 50 + i)
            A(f"v_pk_mul_f32 {v(r, 2)}, {v(r, 2)}, v[18:19]")
            rnd2(A, r)
            unpack(A, 18, 56 + i)
            A(f"v_pk_add_f32 {v(r, 2)}, {v(r, 2)}, v[18:19]")
            A(f"v_cvt_pk_bf16_f32 v{24+i}, v{r}, v{r+1}")
            A(f"global_store_dword v{L4}, v{24+i}, s[34:35] offset:{256 * i}")
        A("s_mov_b64 exec, -1")
        A.label(f"L_f_next_{sfx}")
        tr(A, 'end'); tr_dump(A, EXP.get('aftrace', 0))
        add64(A, 20, 20, nf * SEG_H); add64(A, 34, 34, nf * SEG_H); add64(A, 36, 36, nf * SEG_H); add64(A, 52, 52, nf * 128)
        A(f"s_add_u32 s24, s24, {nf}")
        A("s_cmp_lt_u32 s24, 64")
        A(f"s_cbranch_scc1 L_f_top_{sfx}")
        tl(A, 4)
        A("s_branch L_exit")
```

```python
from common import *
import math, struct

L_MEM, L_KX, L_VX = 0, 9216, 17408
L_QL, L_KL, L_OL = 25600, 27904, 30208
L_JUNK = 32256
L_WK = 32768
QSTR = 288
KL0 = L_KL - L_QL
T16, WKB, L16, MEMR, QR, QKW, OW, IDX = range(0, 8)
TMPC = WKB
def WQ(ks, b): return 256 + (ks * 2 + b) * 8
def WV(ks, b):
    i = ks * 2 + b
    return 400 + i * 8 if i < 14 else 64 + (i - 14) * 8
def WO(t, k2): return 96 + (t * 2 + k2) * 8
def WK8(b): return 240 + b * 8
ACCV0, ACCQ, ACCK, MRING, WRING, ACCV1 = 8, 12, 20, 28, 40, 40
SMF = "v_smfmac_f32_16x16x64_bf16"
MF32 = "v_mfma_f32_16x16x32_bf16"
MF16 = "v_mfma_f32_16x16x16_bf16"
IDQ = "quad_perm:[0,1,2,3]"
ROR8 = "row_ror:8 row_mask:0xf bank_mask:0xf"
def FSW(i): return 2 * (0, 2, 3, 1)[i >> 1] + (i & 1)
def img(i, pos): return i * 128 + ((pos ^ FSW(i)) * 16)
PI = [0, 1, 4, 5, 2, 3, 6, 7]
EXP = {}
PF = 1
ORD = [8, 0, 1, 2, 3, 4, 5, 6, 7]

WORD = [8, 0, 1, 2, 3, 4, 5, 6, 7]
def swap_tab():
    nsw = EXP.get('nsw', 0)
    return list(zip([4, 7, 10, 13, 15, 1][:nsw], [3, 7, 10, 13, 16, 0][:nsw]))
def wo_reg(k): return WO(WORD[k // 2], k & 1)
def wk_off(n): return L_WK + (n >> 1) * 16384 + (n & 1) * 8192

def r_swap(A):
    for n, k in swap_tab():
        A(f"v_lshlrev_b32 v12, 4, v0")
        A(f"v_add_u32 v12, {wk_off(n)}, v12")
        A("ds_read_b128 v[16:19], v12")
        A("ds_read_b128 v[20:23], v12 offset:4096")
        A("s_waitcnt lgkmcnt(0)")
        r = wo_reg(k)
        A(f"ds_write_b128 v12, {v(r, 4)}")
        A(f"ds_write_b128 v12, {v(r + 4, 4)} offset:4096")
        A("s_waitcnt lgkmcnt(0)")
        for q in range(0, 8, 2): A(f"v_mov_b64 {v(r + q, 2)}, {v(16 + q, 2)}")

def r_setup(A):
    A(f"s_load_dwordx4 s[16:19], s[0:1], {KA_WQ}")
    A(f"s_load_dwordx4 s[20:23], s[0:1], {KA_WV}")
    A(f"s_load_dwordx2 s[24:25], s[0:1], {KA_MEM0}")
    def swz(lr): return 2 * ((lr & 1) | ((lr >> 3) & 1) << 1 | ((lr >> 5) & 1) << 2)
    def swz2(row): return 2 * (((row >> 2) & 1) | ((row >> 4) & 1) << 1)
    for ip in range(4):
        def fq(t, last=False):
            w, l = t >> 6, t & 63
            lr = 16 * w + 4 * ip + (l >> 4); e, pos = lr >> 3, lr & 7
            d = 512 + 8 * pos + e if last else 64 * (e & 1) + 4 * pos + (e >> 1)
            return d * 8192 + (((l & 15) ^ swz(lr)) * 16)
        lane_const(A, 12 + ip, fq, tmp=1)
        lane_const(A, 16 + ip, lambda t: fq(t, True), tmp=1)
        lane_const(A, 20 + ip, lambda t: (32 * (t >> 6) + 8 * ip + ((t & 63) >> 3)) * 1152, tmp=1)
        lane_const(A, 20 + ip, lambda t: ((t & 7) ^ swz2(32 * (t >> 6) + 8 * ip + ((t & 63) >> 3))) * 16, tmp=1, acc=True)
    def ftr(t, b):
        w, l = t >> 6, t & 63
        gb, half, bp, c = l >> 4, (l >> 3) & 1, (l >> 2) & 1, l & 3
        lr = 32 * (gb & 1) + 8 * bp + 2 * (gb >> 1) + half
        return L_WK + lr * 256 + (((4 * w + 2 * b + (c >> 1)) ^ swz(lr)) * 16) + (c & 1) * 8
    lane_const(A, 24, lambda t: ftr(t, 0), tmp=1)
    lane_const(A, 25, lambda t: ftr(t, 1), tmp=1)
    def fto(t):
        w, l = t >> 6, t & 63
        gb, half, bp, c = l >> 4, (l >> 3) & 1, (l >> 2) & 1, l & 3
        row = 16 * (gb & 1) + 8 * (gb >> 1) + 4 * half + bp
        return L_WK + row * 128 + (((2 * w + (c >> 1)) ^ swz2(row)) * 16) + (c & 1) * 8
    lane_const(A, 26, fto, tmp=1)
    lane_const(A, 27, lambda t: L_WK + t * 16, tmp=1)
    A("s_waitcnt lgkmcnt(0)")
    A("s_lshl_b32 s12, s9, 8")
    for p in (16, 18, 20):
        add64(A, p, p, "s12")
    A("s_mul_i32 s12, s9, 147456")
    add64(A, 22, 22, "s12")
    A("s_lshl_b32 s26, s10, 12")
    A(f"s_add_u32 s26, s26, {L_WK}")
    chunks = [('q', k) for k in range(9)] + [('v', k) for k in range(9)] + [('o', t) for t in range(9)] + [('k', 7)] + [('k', ORD[j % 8]) for j in range(28, 36)]
    ptr = {'q': 16, 'k': 18, 'v': 20, 'o': 22}
    def issue(j):
        m, k = chunks[j]
        slot = j % 8
        if m == 'o': off, vb = k * 128, 20
        elif k < 8: off, vb = (128 * (k >> 1) + 32 * (k & 1)) * 8192, 12
        else: off, vb = 0, 16
        add64(A, 12, ptr[m], off)
        for ip in range(4):
            A(f"s_add_u32 m0, s26, {slot * 16384 + ip * 1024}")
            A(f"global_load_lds_dwordx4 v{vb+ip}, s[12:13]")
    def fd(m, t): return 256 * m + t if m < 2 else 512 + (t & 63)
    def fa(m, t):
        d = fd(m, t)
        if d < 512: ks, e, pos = 2 * (d >> 7) + ((d >> 5) & 1), 2 * (d & 3) + ((d >> 6) & 1), (d >> 2) & 7
        else: ks, e, pos = 8, d & 7, (d >> 3) & 7
        return ks * 1024 + pos * 16 + e * 2
    def mem0_issue():
        for m in range(3):
            lane_const(A, 4 + m, lambda t: 2 * fd(m, t), tmp=1)
            lane_const(A, 8 + m, lambda t: fa(m, t), tmp=1)
            for i in range(8):
                A(f"v_add_u32 v2, {i * 1152}, v{4+m}")
                A(f"global_load_ushort v{32+8*m+i}, v2, s[24:25]")
    def mem0_write():
        for m in range(3):
            for i in range(8):
                A(f"v_xor_b32 v2, {FSW(i) * 16}, v{8+m}")
                A(f"ds_write_b16 v2, v{32+8*m+i} offset:{L_MEM + i * 128}")
    def status0():
        lane_const(A, 2, lambda t: arr_word(t & 7) * 4, tmp=1)
        A("global_load_dword v4, v2, s[6:7] sc1")
    def status_issue():
        A(f"v_mov_b32 v2, {DBG_KCLR * 4}")
        A("global_load_dword v5, v2, s[6:7] sc1")
        A("s_lshl_b32 s12, s9, 7")
        A(f"s_add_u32 s12, s12, {WS_KVPROG + 4096}")
        A("v_mov_b32 v2, s12")
        A("global_load_dword v6, v2, s[4:5] sc1")
    for j in range(7): issue(j)
    n = len(chunks)
    for j in range(n + 1):
        if j < n:
            ahead = min(n - 1, j + 6) - j
            extra = 24 if 1 <= j <= 7 else (2 if 33 <= j <= 35 else (1 if 25 <= j <= 31 else 0))
            A(f"s_waitcnt vmcnt({4 * ahead + extra})")
        A("s_barrier")
        if j + 7 < n: issue(j + 7)
        if j == 0: mem0_issue()
        if j == 9: mem0_write()
        if j == 24: status0()
        if j == 32: status_issue()
        if j >= 29:
            pk = (j - 1) % 8; tb = 32 + ((j - 1) & 1) * 16
            A(f"v_add_u32 v28, {pk * 16384}, v27")
            for q in range(4):
                A(f"ds_write_b128 v28, {v(tb + 4 * q, 4)} offset:{q * 4096}")
        if j < n:
            m, k = chunks[j]; slot = j % 8
            if m == 'o':
                A(f"v_add_u32 v28, {slot * 16384}, v26")
                for k2 in range(2):
                    for jq in range(4):
                        off = (64 * k2 + 32 * (jq >> 1) + 2 * (jq & 1)) * 128
                        A(f"ds_read_b64_tr_b16 {u(WO(k, k2) + 2 * jq, 2)}, v28 offset:{off}")
            else:
                A(f"v_add_u32 v28, {slot * 16384}, v24")
                A(f"v_add_u32 v29, {slot * 16384}, v25")
                for b in range(2):
                    if m == 'q': dst = WQ(k, b)
                    elif m == 'v': dst = WV(k, b)
                    elif j == 27: dst = WK8(b)
                    else: dst = 32 + (j & 1) * 16 + b * 8
                    for jq in range(4):
                        off = (16 * (jq & 1) + 4 * (jq >> 1)) * 256
                        A(f"ds_read_b64_tr_b16 {u(dst + 2 * jq, 2)}, v{28+b} offset:{off}")
        A("s_waitcnt lgkmcnt(0)")

def r_consts(A):
    lane_const(A, L16, lambda t: (t & 63) * 16, tmp=12)
    lane_const(A, MEMR, lambda t: img((t & 15) >> 1, 2 * ((t >> 4) & 3) + (t & 1)), tmp=12)
    lane_const(A, QR, lambda t: L_QL + (t & 7) * QSTR + ((t >> 4) & 3) * 16, tmp=12)
    lane_const(A, QKW, lambda t: L_QL + (0, 4, 2, 6)[(t >> 4) & 3] * QSTR + (t >> 6) * 64 + (t & 15) * 4, tmp=12)
    lane_const(A, OW, lambda t: (t >> 7) * 1024 + img(PI[t & 7], 4 * ((t >> 6) & 1) + ((t >> 4) & 3)), tmp=12)
    A(f"v_add_u32 v{OW}, {L_OL}, v{OW}")
    lane_const(A, 14, lambda t: L_JUNK + (((t >> 4) & 3) * 8 + (t & 7)) * 16, tmp=12)
    A("v_and_b32 v12, 8, v0")
    A("v_cmp_ne_u32 vcc, 0, v12")
    A(f"v_cndmask_b32 v{OW}, v{OW}, v14, vcc")
    lane_const(A, IDX, lambda t: 0xEEEE if t & 1 else 0x4444, tmp=12)
    A(f"v_lshlrev_b32 v{T16}, 4, v0")
    A("s_and_b32 s12, s10, 1")
    A("s_lshl_b32 s12, s12, 5")
    A("s_add_u32 s37, s12, s9")
    A("v_mov_b32 v14, s37")
    lane_const(A, 15, lambda t: ms_fn(1, t, 0), src=14, nbits=6, tmp=12)
    lane_const(A, 16, lambda t: ms_fn(2, t, 0), src=14, nbits=5, tmp=12)
    if EXP.get('tm', 1): lane_const(A, 17, lambda t: WS_RP + t * 4096, src=14, nbits=6, tmp=12)
    else: lane_const(A, 17, lambda t: WS_RP + (t >> 2) * 16384 + (t & 3) * 128 + 4096, src=14, nbits=6, tmp=12)
    lane_const(A, 18, lambda t: WS_RP + 0x40000 + (t >> 3) * 8192 + (t & 7) * 32, src=14, nbits=5, tmp=12)
    A("v_readfirstlane_b32 s41, v15")
    A("v_readfirstlane_b32 s12, v16")
    A("v_readfirstlane_b32 s13, v17")
    A("v_readfirstlane_b32 s14, v18")
    A("s_cmp_lt_u32 s10, 2")
    A("s_cselect_b32 s41, s41, s12")
    A("s_cselect_b32 s13, s13, s14")
    if EXP.get('rep', 0):
        A("s_cselect_b32 s44, -1, 0x03030303")
        A("s_mov_b32 s45, s44")
        A("s_and_b32 s36, s9, 3")
        A("s_lshl_b32 s36, s36, 15")
        A("s_add_u32 s36, s36, 3072")
    else:
        A("s_mov_b32 s44, 0x00030003")
        A("s_cselect_b32 s44, 0x00FF00FF, s44")
        A("s_mov_b32 s45, 0")
        A("s_movk_i32 s36, 3072")
    add64(A, 28, S_WS, "s13")
    add64(A, 16, 28, 8192)
    A("s_lshl_b32 s12, s10, 5")
    A("s_add_u32 s12, s12, s9")
    A("s_lshl_b32 s13, s12, 9")
    if EXP.get('tm', 1):
        A("s_lshl_b32 s13, s10, 7")
        A("s_add_u32 s13, s13, s9")
        A("s_lshl_b32 s13, s13, 7")
    A(f"s_add_u32 s13, s13, {WS_RP}")
    add64(A, 26, S_WS, "s13")
    for p in range(1, 4): add64(A, 88 + 2 * p, 26, p * 65536)
    A("s_lshl_b32 s13, s12, 8")
    A(f"s_add_u32 s13, s13, {WS_RP + 0x40000}")
    add64(A, 42, S_WS, "s13")
    add64(A, 30, S_WS, WS_RM)
    cc = struct.unpack('<I', struct.pack('<f', (128 ** -0.5) * math.log2(math.e)))[0]
    A(f"s_mov_b32 s46, {cc:#x}")
    A("s_bfe_u32 s40, s9, 0x10003")
    A("s_lshl_b32 s12, s9, 14")
    A(f"s_add_u32 s12, s12, {WS_KV}")
    add64(A, 88, S_WS, "s12")
    A("s_lshl_b32 s13, s10, 11")
    add64(A, 32, 88, "s13")
    add64(A, 86, 32, 8192)
    A("s_lshl_b32 s12, s9, 12")
    A(f"s_add_u32 s12, s12, {WS_KVM}")
    add64(A, 50, S_WS, "s12")
    A("s_lshl_b32 s12, s9, 7")
    A(f"s_add_u32 s12, s12, {WS_KVPROG + 4096}")
    add64(A, 18, S_WS, "s12")
    A("s_lshl_b32 s12, s9, 2")
    A(f"s_add_u32 s12, s12, {WS_RPROG}")
    add64(A, 52, S_WS, "s12")
    A("s_lshl_b32 s12, s9, 7")
    A(f"s_add_u32 s12, s12, {WS_RPROG}")
    add64(A, 22, S_WS, "s12")
    A("s_lshl_b32 s62, s10, 11")
    A(f"s_add_u32 s62, s62, {L_KX}")
    A("s_lshl_b32 s63, s10, 10")
    A(f"s_add_u32 s57, s63, {L_MEM}")
    A(f"s_add_u32 s63, s63, {L_VX}")

def ms_fn(kind, t, l):
    q8, gp = l & 7, (l >> 4) & 1
    rp = (((l >> 3) & 1) + 2 * (l >> 5)) * 32768
    if kind == 1:
        w, g = (t >> 2) & 3, t & 3
        return rp + (t >> 3) * 1024 + img(2 * g + gp, 4 * (w & 1) + (q8 >> 1)) + (q8 & 1) * 8
    w, g, nh = t >> 3, (t >> 1) & 3, t & 1
    return rp + 8192 + img(2 * g + gp, 2 * w + nh) + (l & 1) * 8

def ms_calc(A, kind, dst, tmp):
    lane_const(A, dst, lambda x: ms_fn(kind, 0, x >> 4) ^ ms_fn(kind, 0, 0), src=L16, nbits=10, tmp=tmp, mode='xor')
    A(f"v_xor_b32 v{dst}, s41, v{dst}")

def kv_wait(A, seg_sgpr, nkv, kvg0, tv):
    if nkv == 0: return
    ok = A.newlabel('L_kvok'); loop = A.newlabel('L_kvp')
    A(f"s_cmp_lt_u32 {seg_sgpr}, s54")
    A(f"s_cbranch_scc1 {ok}")
    A("s_mov_b32 s55, 0")
    A.label(loop)
    A(f"v_lshrrev_b32 v{tv}, 4, v{L16}")
    A(f"v_min_u32 v{tv}, {nkv - 1}, v{tv}")
    A(f"v_lshlrev_b32 v{tv+1}, 12, v{tv}")
    A("s_lshl_b32 s12, s9, 7")
    A(f"s_add_u32 s12, s12, {WS_KVPROG + kvg0 * 4096}")
    A(f"v_add_u32 v{tv+1}, s12, v{tv+1}")
    A(f"global_load_dword v{tv+1}, v{tv+1}, s[4:5] sc1")
    A("s_add_u32 s55, s55, 1")
    A(f"s_cmp_gt_u32 s55, {SPIN_MAX}")
    A("s_cbranch_scc1 L_exit")
    A("s_waitcnt vmcnt(0)")
    A(f"v_mul_u32_u24 v{tv+1}, {nkv}, v{tv+1}")
    A(f"v_add_u32 v{tv+1}, v{tv+1}, v{tv}")
    A(f"v_readlane_b32 s54, v{tv+1}, 0")
    for j in range(1, nkv):
        A(f"v_readlane_b32 s12, v{tv+1}, {j}")
        A("s_min_u32 s54, s54, s12")
    A(f"s_cmp_lt_u32 {seg_sgpr}, s54")
    A(f"s_cbranch_scc1 {ok}")
    A("s_sleep 12")
    A(f"s_branch {loop}")
    A.label(ok)

def r_main(A, fast, nkv, kvg0, nsteps=64):
    st = "" if fast else "sc1"
    sfx = "f" if fast else "s"
    D = Lds(A)
    TR = EXP.get('trace', [])
    def tr(name):
        if name in TR:
            i = TR.index(name)
            A(f"{'s_memrealtime' if EXP.get('real') else 's_memtime'} s[{64+2*i}:{65+2*i}]")
    A("s_mov_b32 s24, 0")
    A("s_mov_b32 s34, 9216")
    A("s_mov_b32 s35, 0")
    if TR or EXP.get('rt'):
        for i in range(22 if TR else 16): A(f"s_mov_b32 s{64+i}, 0")
    tl(A, 2)
    A("s_mov_b32 s25, 1")
    kv_wait(A, "s25", nkv, kvg0, 12)
    tl(A, 3)
    if EXP.get('rt'):
        A("s_memrealtime s[80:81]")
        A("s_memtime s[96:97]")
    SW = dict(swap_tab()); SWO = {k: n for n, k in swap_tab()}
    LW = [n for n in range(16) if n not in SW]
    cur = [0]
    def lds_frag(n, r, tag, areg=WKB):
        off = wk_off(n); base = (off // 65536) * 65536
        if base and cur[0] != base:
            A(f"v_add_u32 v{areg}, {base:#x}, v{T16}")
            cur[0] = base
        ar = T16 if base == 0 else areg
        D.op(f"ds_read_b128 {v(r, 4)}, v{ar} offset:{off - base}")
        D.op(f"ds_read_b128 {v(r + 4, 4)}, v{ar} offset:{off - base + 4096}", tag)
    RSH = (3 - (len(LW) - 1) % 3) % 3
    def wslot(i): return WRING + ((i + RSH) % 3) * 8
    def wk_read(i):
        if i < 3: cur[0] = 0
        lds_frag(LW[i], wslot(i), ('wk', i))
    def spill_read(r):
        D.op(f"ds_read_b32 v{r}, v{QKW} offset:{KL0}")
        D.op(f"ds_read_b32 v{r+1}, v{QKW} offset:{KL0 + QSTR}")
        D.op(f"ds_read2_b32 {v(r + 2, 2)}, v{QKW} offset0:0 offset1:{QSTR // 4}", 'spill')
    def zero_qk(lo=ACCQ, hi=ACCQ + 16):
        for r in range(lo, hi, 2): A(f"v_mov_b64 {v(r, 2)}, 0")
    for n in sorted(range(3), key=wslot): wk_read(n)
    add64(A, 38, S_WS, WS_STAMP + 0x8000)
    add64(A, 58, 88, 1 << 19)
    zero_qk()
    D.waitall()
    top = f"L_rtop_{sfx}"
    if 'al' in EXP:
        A.raw(".p2align 6")
        for _ in range(EXP['al']): A("s_nop 0")
    A.label(top)
    A("s_barrier")
    tr('b1')
    def mem_read(ks, r, tag):
        D.op(f"ds_read_b128 {v(r, 4)}, v{MEMR} offset:{L_MEM + ks * 1024}", tag)
    def mslot(p): return MRING + (p % 3) * 4
    A("s_mov_b32 m0, s62")
    for p in range(3): mem_read(ORD[p], mslot(p), ('m', p))
    A(f"global_load_lds_dwordx4 v{L16}, s[32:33]")
    if not EXP.get('kd2'):
        A(f"global_load_lds_dwordx4 v{L16}, s[32:33] offset:1024")
        A("s_mov_b32 m0, s63")
    loc = {('m', 8): mslot(8), ('m', 7): mslot(7), ('m', 6): mslot(6)}
    NSL = 3 if nkv else 2
    def sread(tag, r):
        loc[tag] = r
        if tag[0] == 'q': D.op(f"ds_read_b128 {v(r, 4)}, v{QR} offset:{tag[1] * 64}", tag)
        elif tag[0] == 'km': D.op(f"ds_read_b128 {v(r, 4)}, v{QR} offset:{KL0 + tag[1] * 64}", tag)
        elif tag[0] == 'kx': D.op(f"ds_read_b128 {v(r, 4)}, v{L16} offset:{L_KX + (tag[1] * 4 + tag[2]) * 1024}", tag)
        elif tag[0] == 'm': mem_read(ORD[tag[1]], r, tag)
        elif tag[0] == 'vx':
            if tag[1] == 0: A(f"s_waitcnt vmcnt({NSL})")
            D.op(f"ds_read_b128 {v(r, 4)}, v{T16} offset:{L_VX + tag[1] * 4096}", tag)
    def smf(acc, ar, w): A(f"{SMF} {v(acc, 4)}, {v(ar, 4)}, {u(w, 8)}, v{IDX}")
    V0S = EXP.get('v0s', 2)
    ext = {EXP.get('vd1', 1): f"global_load_lds_dwordx4 v{L16}, s[86:87]\ns_add_u32 m0, s63, 3072",
           EXP.get('vd2', 3): f"global_load_lds_dwordx4 v{L16}, s[86:87] offset:1024\ns_mov_b32 m0, {L_JUNK}",
           4 * V0S - 3: f"global_store_dwordx4 v{T16}, {v(ACCV0, 4)}, s[38:39] sc1",
           4 * V0S - 1: f"v_lshlrev_b32 v{ACCV0}, 2, v{T16}\nv_mov_b64 {v(ACCV0 + 2, 2)}, 0",
           4 * V0S + 1: f"global_load_lds_dword v{ACCV0}, s[58:59]\nv_mov_b64 {v(ACCV0, 2)}, 0\ns_mov_b32 m0, {L_QL + 256}"}
    if EXP.get('kd2'): ext[EXP['kd2']] = f"global_load_lds_dwordx4 v{L16}, s[32:33] offset:1024\ns_mov_b32 m0, s63"
    if nkv: ext[4 * V0S + 4] = f"s_mov_b64 exec, 1\nglobal_load_lds_dword v{L16}, s[18:19] sc1\ns_mov_b64 exec, -1"
    if EXP.get('noslow'):
        ext[4 * V0S - 3] = f"global_store_dwordx4 v{T16}, {v(ACCV0, 4)}, s[50:51]"
        ext[4 * V0S + 1] = ext[4 * V0S + 1].replace("s[58:59]", "s[88:89]")
    sb_ = Asm()
    sb_("s_lshl_b32 s13, s24, 17")
    add64(sb_, 38, 50, "s13")
    sb_("s_add_u32 s25, s24, 2")
    sb_(f"s_min_u32 s25, s25, {nsteps - 1}")
    sb_("s_lshl_b32 s13, s25, 19")
    add64(sb_, 58, 88, "s13")
    add64(sb_, 86, 86, 0 if EXP.get('noslow') else 1 << 19)
    add64(sb_, 32, 32, 0 if EXP.get('noslow') else 1 << 19)
    add64(sb_, 14, 30, "s34")
    add64(sb_, 60, 30, "s35")
    add64(sb_, 20, 14, "s36")
    sb_("s_and_b32 s12, s24, 1")
    sb_("s_xor_b32 s13, s12, 1")
    sb_("s_xor_b32 s47, s12, s40")
    sb_("s_add_u32 s24, s24, 1")
    sb_("s_mov_b32 s35, s34")
    sb_("s_add_u32 s34, s34, 9216")
    sb_("s_cmp_eq_u32 s34, 27648")
    sb_("s_cselect_b32 s34, 0, s34")
    sb_("s_mov_b32 s55, 0")
    sq = [i.text.strip() for i in sb_.ins]
    cnt_ = [0]
    side = []
    class Defer:
        def op(self, text, tag=None): side.append((text, tag))
    def flush_until(tag):
        while any(t == tag for _, t in side):
            x = side.pop(0)
            D.op(*x) if x[0].startswith('ds_') else A(x[0])
    GAPN = EXP.get('gapn', 2)
    def smfs(acc, ar, w, need=()):
        for t in need:
            flush_until(t); D.wait(t)
        smf(acc, ar, w)
        cnt_[0] += 1
    def gap():
        n = 0
        if cnt_[0] in ext:
            A(ext[cnt_[0]]); n += 1
        while side and n < GAPN:
            x = side.pop(0)
            D.op(*x) if x[0].startswith('ds_') else A(x[0])
            n += 1
        while cnt_[0] > 4 * V0S + 4 and sq and n < GAPN:
            A(sq.pop(0)); n += 1
    def d_wk(i):
        off = wk_off(LW[i]); base = (off // 65536) * 65536
        if base and cur[0] != base:
            side.append((f"v_add_u32 v{WKB}, {base:#x}, v{T16}", None)); cur[0] = base
        ar = T16 if base == 0 else WKB
        side.append((f"ds_read_b128 {v(wslot(i), 4)}, v{ar} offset:{off - base}", None))
        side.append((f"ds_read_b128 {v(wslot(i) + 4, 4)}, v{ar} offset:{off - base + 4096}", ('wk', i)))
    def d_kx(kt, j, r):
        loc[('kx', kt, j)] = r
        side.append((f"ds_read_b128 {v(r, 4)}, v{L16} offset:{L_KX + (kt * 4 + j) * 1024}", ('kx', kt, j)))
    cur[0] = 0
    for p in range(8):
        ks = ORD[p]
        m = mslot(p)
        smfs(ACCQ, m, WQ(ks, 0), [('m', p)]); gap()
        for b in range(2):
            n = 2 * p + b
            if n in SW: smfs(ACCK + 4 * b, m, wo_reg(SW[n]))
            else:
                i = LW.index(n)
                smfs(ACCK + 4 * b, m, wslot(i), [('wk', i)])
                if i + 3 < len(LW): d_wk(i + 3)
            if b == 1 and p + 3 < 9:
                side.append((f"ds_read_b128 {v(mslot(p), 4)}, v{MEMR} offset:{L_MEM + ORD[p + 3] * 1024}", ('m', p + 3)))
            if n == 12:
                side.append((f"s_waitcnt vmcnt({NSL + 2})", None))
                side.append(("s_barrier", None))
            if n == 13: d_kx(0, 0, 48); d_kx(1, 0, 52)
            if n == 14: d_kx(0, 1, 56); d_kx(1, 1, 60)
            gap()
            if b == 0:
                smfs(ACCQ + 4, m, WQ(ks, 1)); gap()
                if p >= V0S: smfs(ACCV0, m, WV(ks, 0)); gap()
        tr(f'a{p+1}')
    assert not side, side
    sread(('m', 5), 44)
    D.wait(('m', 8))
    m = mslot(8); ks = ORD[8]
    smfs(ACCQ, m, WQ(ks, 0)); gap(); smfs(ACCQ + 4, m, WQ(ks, 1))
    for o in sq: A(o)
    A(f"v_mov_b64 {v(ACCV1, 2)}, 0")
    smf(ACCK, m, WK8(0))
    A(f"v_mov_b64 {v(ACCV1 + 2, 2)}, 0")
    smf(ACCK + 4, m, WK8(1))
    A(f"v_mov_b32 v{TMPC}, s47")
    smf(ACCV0, m, WV(ks, 0))
    tr('a9')
    A(f"s_cmp_eq_u32 s24, {nsteps}")
    A(f"s_cbranch_scc1 L_rlast_{sfx}")
    fill = [(p, 1) for p in range(8, V0S - 1, -1)]
    for p in range(V0S - 1, -1, -1): fill += [(p, 1), (p, 0)]
    def filler(cnt=1):
        for _ in range(cnt):
            if fill:
                p, b = fill.pop(0)
                D.wait(('m', p))
                smf(ACCV1 if b else ACCV0, loc[('m', p)], WV(ORD[p], b))
    for acc, lo in ((ACCQ, 0), (ACCK, KL0)):
        for b in range(2):
            A(f"v_add_f32 v{acc+4*b}, v{acc+4*b}, v{acc+4*b+1}")
            A(f"v_add_f32 v{acc+4*b+2}, v{acc+4*b+2}, v{acc+4*b+3}")
        A(f"v_cvt_pk_bf16_f32 v{acc+1}, v{acc}, v{acc+4}")
        A(f"v_cvt_pk_bf16_f32 v{acc+3}, v{acc+2}, v{acc+6}")
        if lo == 0: D.op(f"ds_write2_b32 v{QKW}, v{acc+1}, v{acc+3} offset0:0 offset1:{QSTR // 4}")
        else:
            D.op(f"ds_write_b32 v{QKW}, v{acc+1} offset:{lo}")
            D.op(f"ds_write_b32 v{QKW}, v{acc+3} offset:{lo + QSTR}", 'qkw')
    tr('qkw')
    filler(1)
    sread(('m', 4), 16); sread(('m', 3), 24); sread(('m', 2), mslot(8))
    filler(3)
    D.wait('qkw')
    A("s_barrier")
    tr('b2')
    T0, T1, T2 = 12, 16, 20
    sread(('q', 0), mslot(7)); sread(('km', 0), mslot(6)); sread(('q', 1), 44)
    filler(2)
    sread(('km', 1), 24)
    filler(1 if V0S < 3 else 2)
    sread(('q', 2), mslot(8))
    pend = [('kx', 0, 2), ('kx', 1, 2), ('km', 2), ('q', 3), ('kx', 0, 3), ('kx', 1, 3), ('km', 3),
            ('m', 1), ('m', 0), ('vx', 0), ('vx', 1)]
    free = []
    for j in range(4):
        for T, tag in ((T0, ('kx', 0, j)), (T1, ('kx', 1, j)), (T2, ('km', j))):
            D.wait(tag); D.wait(('q', j))
            A(f"{MF32} {v(T, 4)}, {v(loc[tag], 4)}, {v(loc[('q', j)], 4)}, {v(T, 4) if j else 0}")
            if pend: sread(pend.pop(0), loc[tag])
            else: free.append(loc[tag])
        if pend: sread(pend.pop(0), loc[('q', j)])
        else: free.append(loc[('q', j)])
    tr('s_done')
    BX, Z, DA, DB = free[0], free[1], free[2], free[3]
    filler(2)
    M, TT, SUM = 16, 17, 18
    VMR = 22
    AO = 28
    busy = set()
    for b_ in (BX, Z, DA, DB, loc[('vx', 0)], loc[('vx', 1)], ACCV1, loc[('m', 0)]): busy |= set(range(b_, b_ + 4))
    zq = [r for r in range(AO, AO + 36, 2) if r not in busy]
    late = set(range(DA, DA + 4)) | set(range(DB, DB + 4))
    zm = [r for r in range(AO, AO + 36, 2) if r in busy and r not in late]
    zl = [r for r in range(AO, AO + 36, 2) if r in late]
    def zero(cnt=1):
        for _ in range(cnt):
            if zq: A(f"v_mov_b64 {v(zq.pop(0), 2)}, 0")
    A(f"v_mov_b32 v{Z+1}, 0")
    A(f"v_mov_b32 v{Z+2}, 0")
    for r in range(4): A(f"v_mov_b32_dpp v{T0+r}, v{T1+r} {IDQ} row_mask:0xf bank_mask:0xc")
    A(f"v_mov_b32_dpp v{T2+2}, v{T2+3} {IDQ} row_mask:0xf bank_mask:0xc")
    A(f"v_mov_b32_dpp v{T2}, v{T2+1} {IDQ} row_mask:0x3 bank_mask:0xc")
    A(f"v_max3_f32 v{M}, v12, v13, v14")
    zero(1)
    A(f"v_mov_b32_dpp v{T2}, v{T2+2} {IDQ} row_mask:0xc bank_mask:0xf")
    A(f"v_max3_f32 v{M}, v{M}, v15, v20")
    tr('max0')
    filler(1); zero(1)
    A(f"v_max_f32_dpp v{M}, v{M}, v{M} {ROR8}")
    A(f"v_mov_b32 v{TT}, v{M}")
    filler(9); zero(1)
    assert not fill
    A(f"v_permlane16_swap_b32 v{M}, v{TT}")
    A(f"v_max_f32 v{M}, v{M}, v{TT}")
    A(f"v_mov_b32 v{TT}, v{M}")
    zero(2)
    A(f"v_permlane32_swap_b32 v{M}, v{TT}")
    A(f"v_max_f32 v{M}, v{M}, v{TT}")
    A(f"v_mul_f32 v{M}, s46, v{M}")
    tr('max1')
    for e in (12, 13, 14, 15, 20): A(f"v_fma_f32 v{e}, v{e}, s46, -v{M}")
    for e in (12, 13, 14, 15): A(f"v_exp_f32 v{e}, v{e}")
    A(f"v_cvt_pk_bf16_f32 v{BX}, v12, v13")
    A(f"v_cvt_pk_bf16_f32 v{BX+1}, v14, v15")
    A("v_exp_f32 v20, v20")
    A(f"v_mov_b32_dpp v{BX+2}, v{BX} {ROR8}")
    A(f"v_mov_b32_dpp v{BX+3}, v{BX+1} {ROR8}")
    A(f"v_mov_b32_dpp v21, v20 {ROR8}")
    A(f"v_add_f32 v{ACCV0}, v{ACCV0}, v{ACCV0+1}")
    D.wait(('vx', 1))
    tr('pv0')
    A(f"{MF32} {v(DA, 4)}, {v(loc[('vx', 0)], 4)}, {v(BX, 4)}, 0")
    A(f"v_add_f32 v{ACCV0+2}, v{ACCV0+2}, v{ACCV0+3}")
    A(f"v_add_f32 v{ACCV1}, v{ACCV1}, v{ACCV1+1}")
    A(f"{MF32} {v(DB, 4)}, {v(loc[('vx', 1)], 4)}, {v(BX, 4)}, 0")
    A(f"v_add_f32 v{ACCV1+2}, v{ACCV1+2}, v{ACCV1+3}")
    A(f"v_cvt_pk_bf16_f32 v{VMR}, v{ACCV0}, v{ACCV0+2}")
    A(f"v_cvt_pk_bf16_f32 v{VMR+1}, v{ACCV1}, v{ACCV1+2}")
    A(f"v_cvt_pk_bf16_f32 v{Z}, v20, v21")
    A(f"v_cvt_pk_bf16_f32 v{Z+3}, v20, v21")
    A(f"v_add_f32 v{SUM}, v12, v13")
    A(f"{MF16} {v(DA, 4)}, {v(VMR, 2)}, {v(Z, 2)}, {v(DA, 4)}")
    A(f"v_add_f32 v{TT}, v14, v15")
    A(f"v_add_f32 v{SUM}, v{SUM}, v20")
    A(f"{MF16} {v(DB, 4)}, {v(VMR, 2)}, {v(Z + 2, 2)}, {v(DB, 4)}")
    tr('pv1')
    A(f"v_add_f32 v{SUM}, v{SUM}, v{TT}")
    zq += zm
    zero(2)
    A(f"v_add_f32_dpp v{SUM}, v{SUM}, v{SUM} {ROR8}")
    A(f"v_mov_b32 v{TT}, v{SUM}")
    zero(2)
    A(f"v_permlane16_swap_b32 v{SUM}, v{TT}")
    A(f"v_add_f32 v{SUM}, v{SUM}, v{TT}")
    A(f"v_mov_b32 v{TT}, v{SUM}")
    zero(2)
    A(f"v_permlane32_swap_b32 v{SUM}, v{TT}")
    A(f"v_add_f32 v{SUM}, v{SUM}, v{TT}")
    A(f"v_rcp_f32 v{SUM}, v{SUM}")
    tr('rcp')
    zero(1)
    for k, Dx in enumerate((DA, DB)):
        for r in (0, 2): A(f"v_pk_mul_f32 {v(Dx + r, 2)}, {v(Dx + r, 2)}, {v(SUM, 2)} op_sel_hi:[1,0]")
    A(f"v_cvt_pk_bf16_f32 v12, v{DA}, v{DA+1}")
    A(f"v_cvt_pk_bf16_f32 v13, v{DA+2}, v{DA+3}")
    A(f"v_cvt_pk_bf16_f32 v14, v{DB}, v{DB+1}")
    A(f"v_cvt_pk_bf16_f32 v15, v{DB+2}, v{DB+3}")
    D.op(f"ds_write_b128 v{OW}, v[12:15]")
    tr('ow')
    zq += zl
    zq.sort()
    PS, PL, WB = 8, 9, 20
    post = [f"v_mov_b64 {v(r, 2)}, 0" for r in zq]
    post += [f"v_lshrrev_b32 v{PL}, 2, v{L16}", f"v_and_b32 v{PS}, 0x300, v{L16}", f"v_bfe_u32 v10, v{L16}, 1, 7", f"v_lshl_or_b32 v{PS}, v{PS}, 4, v10"]
    for _ in range(EXP.get('zb', 4)): A(post.pop(0))
    D.waitall()
    A("s_barrier")
    tr('b3')
    OF = 12
    D.op(f"ds_read_b128 {v(OF, 4)}, v{MEMR} offset:{L_OL}", 'o0')
    D.op(f"ds_read_b128 {v(OF + 4, 4)}, v{MEMR} offset:{L_OL + 1024}", 'o1')
    A(post.pop(0))
    D.op(f"ds_write2_b32 v{QKW}, v{VMR}, v{VMR+1} offset0:0 offset1:{QSTR // 4}")
    cur[0] = 0
    wq_ = sorted(SWO)
    def wo_next():
        if wq_:
            k_ = wq_.pop(0)
            lds_frag(SWO[k_], WB, ('wo', k_), areg=11)
    wo_next()
    for _ in range(EXP.get('za', 2)): A(post.pop(0))
    def acc(t): return AO + 4 * WORD.index(t)
    def wpost(t):
        c = acc(t)
        o = [f"v_add_f32 v{c}, v{c}, v{c+1}", f"v_add_f32 v{c+1}, v{c+2}, v{c+3}"]
        if t == 8:
            o.append(f"v_cvt_pk_bf16_f32 v{c+2}, v{c}, v{c+1}")
            o.append(f"v_bfi_b32 v{c+2}, 1, v{TMPC}, v{c+2}")
            o.append(f"global_store_dword v{PL}, v{c+2}, s[42:43] {st}")
        elif t & 1:
            p = acc(t - 1); sb = 26 if t == 1 else 88 + 2 * (t // 2)
            o.append(f"v_cvt_pk_bf16_f32 v{c+2}, v{p}, v{c}")
            o.append(f"v_cvt_pk_bf16_f32 v{c+3}, v{p+1}, v{c+1}")
            o.append(f"v_bfi_b32 v{c+2}, 1, v{TMPC}, v{c+2}")
            o.append(f"global_store_dwordx2 v{PS}, {v(c + 2, 2)}, s[{sb}:{sb+1}] {st}")
        return o
    D.wait('o0')
    tr('wo0')
    seq = [(t, k2) for t in WORD for k2 in range(2)]
    if EXP.get('il', 0):
        seq = [(8, 0), (0, 0), (8, 1), (1, 0), (0, 1)]
        for t in range(1, 7): seq += [(t + 1, 0), (t, 1)]
        seq += [(7, 1)]
        assert len(seq) == 18 and not SWO
    vq = list(post); since = {}
    slots = 0
    for k, (t, k2) in enumerate(seq):
        if k2 == 1: D.wait('o1')
        if k in SWO:
            D.wait(('wo', k))
            smf(acc(t), OF + 4 * k2, WB)
            wo_next()
            slots += 2
        else: smf(acc(t), OF + 4 * k2, WO(t, k2))
        slots += 1
        if k2 == 1: since[t] = slots
        for _ in range(1 if k < EXP.get('w1', 5) else EXP.get('wv', 3)):
            for tt_ in list(since):
                if slots - since[tt_] >= EXP.get('wlag', 8): vq += wpost(tt_); del since[tt_]
            if vq: A(vq.pop(0)); slots += 1
    tr('wo1')
    for tt_ in list(since): vq += wpost(tt_)
    for o in vq: A(o)
    tr('wo2')
    D.q = []
    SEL, RD, MS, LA = 12, 16, 8, 9
    LDB = (24, 40)
    A("s_cmp_ge_u32 s10, 2")
    A(f"s_cbranch_scc1 L_rw23_{sfx}")
    NB = 1
    for kind in (1, 2):
        lab = f"L_rp1{kind}_{sfx}"
        nl = 4 if kind == 1 else 1
        def loads(LD):
            if kind == 2: A(f"global_load_dwordx4 {v(LD, 4)}, v{LA}, s[28:29] sc1")
            else:
                for j in range(4): A(f"global_load_dwordx4 {v(LD + 4 * j, 4)}, v{L16}, s[28:29] offset:{j * 1024} sc1")
        P = Asm()
        if kind == 1:
            P(f"v_bfe_u32 v20, v{L16}, 4, 1")
            P(f"v_bfe_u32 v21, v{L16}, 5, 1")
            P(f"v_bfe_u32 v22, v{L16}, 6, 1")
            P("v_lshl_add_u32 v22, v21, 1, v22")
        else:
            P(f"v_bfe_u32 v20, v{L16}, 6, 1")
            P(f"v_bfe_u32 v22, v{L16}, 4, 2")
            P(f"v_bfe_u32 v23, v{L16}, 8, 1")
            P("v_xor_b32 v23, s12, v23")
        P("v_lshlrev_b32 v20, 4, v20")
        P("v_mov_b32 v21, 0x3f80")
        P("v_lshlrev_b32 v21, v20, v21")
        m_ = Asm(); ms_calc(m_, kind, MS, 10); mq = [i.text.strip() for i in m_.ins]
        for j in range(4):
            P(f"v_cmp_eq_u32 vcc, {j}, v22")
            for _ in range(2):
                if mq: P(mq.pop(0))
            P(f"v_cndmask_b32 v{SEL+j}, 0, v21, vcc")
        for o in mq: P(o)
        P("v_mov_b64 v[10:11], -1")
        pq = [i.text.strip() for i in P.ins]
        def fin():
            for r in range(4): A(f"v_add_f32_dpp v{RD+r}, v{RD+r}, v{RD+r} {ROR8}")
            if kind == 2:
                for r in range(4): A(f"v_add_f32_dpp v{RD+r}, v{RD+r}, v{RD+r} row_ror:4 row_mask:0xf bank_mask:0xf")
                for r in range(4): A(f"v_add_f32_dpp v{RD+r}, v{RD+r}, v{RD+r} quad_perm:[2,3,0,1] row_mask:0xf bank_mask:0xf")
            A(f"v_cvt_pk_bf16_f32 v20, v{RD}, v{RD+1}")
            A(f"v_cvt_pk_bf16_f32 v21, v{RD+2}, v{RD+3}")
        if kind == 1:
            for n in sorted(range(3), key=wslot): wk_read(n)
            LD = 24
            l1 = A.newlabel('L_k1')
            A("s_cmp_eq_u32 s10, 1")
            A(f"s_cbranch_scc1 {l1}")
            A(f"s_waitcnt vmcnt({EXP.get('k0', 1)})")
            tr('p1s')
            loads(LD)
            for o in pq: A(o)
            A(f"s_branch {lab}")
            A.label(l1)
            tp = EXP.get('tp', 6)
            for o in pq[:len(pq) - tp]: A(o)
            A(f"s_waitcnt vmcnt({EXP.get('k1', 0)})")
            for o in pq[len(pq) - tp:]: A(o)
            tr('p1s')
            loads(LD)
            A.label(lab)
            for j in range(4):
                A(f"s_waitcnt vmcnt({3 - j})")
                tr(f'p1w{j}')
                A(f"{MF32} {v(RD, 4)}, {v(SEL, 4)}, {v(LD + 4 * j, 4)}, {v(RD, 4) if j else 0}")
                A(f"v_bitop3_b32 v{20 + j}, v{LD+4*j}, v{LD+4*j+2}, {'s13' if j & 1 else 's12'} bitop3:0x7e")
                if j == 2: A("v_or3_b32 v20, v20, v21, v22")
            A.label(lab + "_c")
            A("v_bitop3_b32 v20, v20, v23, 1 bitop3:0xa8")
            A("v_cmp_ne_u32 vcc, 0, v20")
            fin()
            A(f"s_cbranch_vccz L_rp1ok_{sfx}")
            backoff(A, 55)
            A("s_mov_b64 exec, vcc")
            loads(LD)
            A("s_mov_b64 exec, -1")
            A("s_add_u32 s55, s55, 1")
            A(f"s_cmp_gt_u32 s55, {SPIN_MAX}")
            A(f"s_cbranch_scc0 {lab}")
            A("s_branch L_exit")
        else:
            A.label(f"L_rw23_{sfx}")
            A("s_cmp_eq_u32 s10, 3")
            A(f"s_cbranch_scc1 L_rnt_{sfx}")
            lane_const(A, LA, lambda x: (x >> 5) * 256 + ((x >> 4) & 1) * 16, src=L16, nbits=10, tmp=10)
            NH = 1
            h = len(pq)
            for b in range(NH):
                loads(24 + 4 * b)
                for o in pq[b * h:(b + 1) * h]: A(o)
            A.label(lab)
            for b in range(NH):
                LD = 24 + 4 * b
                A(f"s_waitcnt vmcnt({NH - 1})")
                A(f"v_bitop3_b32 v20, v{LD}, v{LD+1}, v23 bitop3:0x7e")
                A(f"v_bitop3_b32 v21, v{LD+2}, v{LD+3}, v23 bitop3:0x7e")
                A("v_bitop3_b32 v20, v20, v21, 1 bitop3:0xa8")
                A("v_cmp_ne_u32 vcc, 0, v20")
                A(f"{MF32} {v(RD, 4)}, {v(SEL, 4)}, {v(LD, 4)}, 0")
                A(f"s_cbranch_vccz {lab}_ok")
                backoff(A, 55)
                loads(LD)
                A("s_add_u32 s55, s55, 1")
            A(f"s_cmp_gt_u32 s55, {SPIN_MAX}")
            A(f"s_cbranch_scc0 {lab}")
            A("s_branch L_exit")
            A.label(lab + "_ok")
            D.q = []
            for n in sorted(range(3), key=wslot): wk_read(n)
            fin()
            A(f"s_branch L_rp1ok_{sfx}")
    def rest(force=False):
        if NB == 2 or force:
            for n in sorted(range(3), key=wslot): wk_read(n)
        spill_read(ACCV0)
    A.label(f"L_rnt_{sfx}")
    D.q = []
    rest(True)
    zero_qk()
    if nkv:
        A(f"v_mov_b32 v28, {L_QL + 256}")
        A("s_waitcnt vmcnt(5)")
        A("ds_read_b32 v28, v28")
        A("s_waitcnt lgkmcnt(0)")
        A("v_readfirstlane_b32 s12, v28")
        A("s_max_u32 s54, s54, s12")
    kv_wait(A, "s25", nkv, kvg0, 28)
    A.label(f"L_rmbok_{sfx}")
    A("s_barrier")
    A("s_waitcnt vmcnt(0)")
    A(f"s_branch L_rp2ok_{sfx}")
    A.label(f"L_rp1ok_{sfx}")
    tr('p1ok')
    A("s_mov_b64 exec, s[44:45]")
    A(f"global_store_dwordx2 v{MS}, v[20:21], s[14:15] {st}")
    A(f"global_store_dwordx2 v{MS}, v[10:11], s[60:61] {st}")
    A("s_mov_b64 exec, -1")
    if EXP.get('rt'): A("s_add_u32 s76, s76, s55")
    A("s_barrier")
    tr('b4')
    D.q = []
    def round2():
        A("s_mov_b32 m0, s57")
        A(f"global_load_lds_dwordx4 v{T16}, s[14:15] sc1")
        A("s_add_u32 m0, s57, 3072")
        A(f"global_load_lds_dwordx4 v{T16}, s[20:21] sc1")
        A(f"global_load_lds_dwordx4 v{T16}, s[20:21] offset:3072 sc1")
    A("s_mov_b32 s55, 0")
    for _ in range(EXP.get('d2', 0)): A("s_nop 3")
    tr('p2s')
    okl = top if not (TR or EXP.get('rt')) else f"L_rp2ok_{sfx}"
    def loads2():
        for j in range(3):
            A(f"global_load_dwordx4 {v(MRING + 4 * j, 4)}, v{T16}, s[20:21] offset:{(j - 1) * 3072} sc1")
    Z2 = EXP.get('z2', 6)
    rest()
    zero_qk(12, 12 + 2 * Z2)
    loads2()
    zero_qk(12 + 2 * Z2, 28)
    A.label(f"L_rp2_{sfx}")
    A("s_waitcnt vmcnt(2)")
    tr('p2w0')
    A(f"ds_write_b128 v{T16}, v[28:31] offset:{L_MEM}")
    A(f"v_max_u32 v{TMPC}, v28, v30")
    A("s_waitcnt vmcnt(1)")
    A(f"v_max3_u32 v{TMPC}, v{TMPC}, v32, v34")
    A(f"ds_write_b128 v{T16}, v[32:35] offset:{L_MEM + 3072}")
    A("s_waitcnt vmcnt(0)")
    A(f"v_max3_u32 v{TMPC}, v{TMPC}, v36, v38")
    A(f"v_cmp_eq_u32 vcc, -1, v{TMPC}")
    A(f"ds_write_b128 v{T16}, v[36:39] offset:{L_MEM + 6144}")
    A(f"s_cbranch_vccz L_rp2ok_{sfx}")
    A("s_mov_b64 exec, vcc")
    loads2()
    A("s_mov_b64 exec, -1")
    A("s_add_u32 s55, s55, 1")
    A(f"s_cmp_gt_u32 s55, {SPIN_MAX}")
    A(f"s_cbranch_scc0 L_rp2_{sfx}")
    A("s_branch L_exit")
    A.label(f"L_rp2ok_{sfx}")
    tr('p2ok')
    if EXP.get('rt'): A("s_add_u32 s77, s77, s55")
    D.waitall()
    if TR:
        A("s_cmp_lg_u32 s24, 41")
        A(f"s_cbranch_scc1 {top}")
        A("s_lshl_b32 s12, s9, 2")
        A("s_add_u32 s12, s12, s10")
        A("s_lshl_b32 s12, s12, 6")
        A(f"s_add_u32 s12, s12, {WS_STAMP + 16384}")
        A(f"v_mov_b32 v{TMPC}, s12")
        for q in range(11):
            A(f"v_mov_b32 v28, s{64 + 2 * q}")
            A(f"global_store_dword v{TMPC}, v28, s[4:5] offset:{4 * q}")
            A("s_waitcnt vmcnt(0)")
    A(f"s_branch {top}")
    A.label(f"L_rlast_{sfx}")
    D.waitall()
    lr = {8: mslot(8), 7: mslot(7), 6: mslot(6), 5: 44, 4: 48, 3: 52, 2: 56, 1: 60, 0: 12}
    for p in (4, 3, 2, 1, 0): mem_read(ORD[p], lr[p], ('lm', p))
    for p in range(8, -1, -1):
        D.wait(('lm', p))
        smf(ACCV1, lr[p], WV(ORD[p], 1))
        if p < V0S: smf(ACCV0, lr[p], WV(ORD[p], 0))
    for b in range(2):
        A(f"v_add_f32 v{ACCK+4*b}, v{ACCK+4*b}, v{ACCK+4*b+1}")
        A(f"v_add_f32 v{ACCK+4*b+2}, v{ACCK+4*b+2}, v{ACCK+4*b+3}")
    A(f"v_cvt_pk_bf16_f32 v16, v{ACCK}, v{ACCK+4}")
    A(f"v_cvt_pk_bf16_f32 v17, v{ACCK+2}, v{ACCK+6}")
    for a_ in (ACCV1, ACCV0):
        A(f"v_add_f32 v{a_}, v{a_}, v{a_+1}")
        A(f"v_add_f32 v{a_+2}, v{a_+2}, v{a_+3}")
    A(f"v_cvt_pk_bf16_f32 v18, v{ACCV0}, v{ACCV0+2}")
    A(f"v_cvt_pk_bf16_f32 v19, v{ACCV1}, v{ACCV1+2}")
    A(f"global_store_dwordx4 v{T16}, v[16:19], s[38:39] sc1")
    tl(A, 4)
    if EXP.get('rt'):
        A("s_memrealtime s[82:83]")
        A("s_memtime s[98:99]")
        A("s_waitcnt lgkmcnt(0)")
        A("s_sub_u32 s75, s98, s96")
        A("s_sub_u32 s78, s80, s84")
        A("s_sub_u32 s79, s82, s80")
        A("s_lshl_b32 s12, s9, 2")
        A("s_add_u32 s12, s12, s10")
        A("s_lshl_b32 s12, s12, 6")
        A(f"s_add_u32 s12, s12, {WS_STAMP}")
        A("v_mov_b32 v12, s12")
        for q in range(4):
            for r in range(4): A(f"v_mov_b32 v{16+r}, s{64 + 4 * q + r}")
            A(f"global_store_dwordx4 v12, v[16:19], s[4:5] offset:{16 * q}")
            A("s_waitcnt vmcnt(0)")
    A("s_branch L_exit")

def role_r(A, restart, nkv, kvg0):
    if EXP.get('rt'):
        A("s_memrealtime s[84:85]")
        A("s_waitcnt lgkmcnt(0)")
    r_setup(A)
    r_swap(A)
    tl(A, 1)
    A("s_waitcnt vmcnt(0)")
    A("s_mov_b32 s54, 0")
    mode_check(A, tv=12, pre=4)
    if nkv:
        l = A.newlabel('L_kc')
        A("v_cmp_gt_u32 vcc, 96, v5")
        A(f"s_cbranch_vccz {l}")
        counter_wait(A, DBG_KCLR, 96, tv=12, sleep=24, one=False)
        A.label(l)
    r_consts(A)
    A("s_cmp_eq_u32 s11, 0")
    A("s_cbranch_scc1 L_r_slow")
    r_main(A, True, nkv, kvg0)
    A.label("L_r_slow")
    r_main(A, False, nkv, kvg0)
```

```python
from asmlib import *

KA_X, KA_MEM0, KA_WQ, KA_WK, KA_WV, KA_WO, KA_SEG, KA_BX, KA_WG, KA_WU, KA_WD, KA_C, KA_WMOD, KA_OUT, KA_DBG, KA_WS = [8 * i for i in range(16)]

WS_MOD   = 0x0
WS_KVPROG = 0x10000
WS_RPROG = 0x18000
WS_H2FLAG = 0x1A000
WS_XF    = 0x1C000
WS_HINT  = 0x1D000
WS_STAMP = 0x20000
WS_H     = 0x100000
WS_H2    = 0x400000
WS_X1    = 0x700000
WS_KV    = 0x1000000
WS_KVM   = 0x3000000
WS_RP    = 0x3A00000
WS_RM    = 0x3B00000
WS_XP    = 0x4000000
RP_SLOT = 72 * 32 * 128
XP_SLOT = 32 * 32 * 2304
SEG_H = 36864

DBG_TICKET = 0
DBG_CLR = 8
DBG_KCLR = 41
DBG_RLD = 42
DBG_KLD = 43
DBG_MODCNT = 8
DBG_HCNT = 40
DBG_ERR = 40

S_WS = 4
S_DBG = 6
S_GRP, S_MEM, S_WAVE, S_FAST = 8, 9, 10, 11
SPIN_MAX = 400000

class Lds:
    def __init__(self, A):
        self.A = A; self.q = []
    def op(self, text, tag=None):
        self.A(text); self.q.append(tag)
    def wait(self, tag):
        if tag not in self.q: return
        i = len(self.q) - 1 - self.q[::-1].index(tag)
        n = len(self.q) - 1 - i
        self.A(f"s_waitcnt lgkmcnt({min(n, 15)})")
        if n > 15:
            self.q = self.q[len(self.q) - 15:]
        else:
            self.q = self.q[i + 1:]
    def waitall(self):
        self.A("s_waitcnt lgkmcnt(0)"); self.q = []

def add64(A, dst, src, off):
    A(f"s_add_u32 s{dst}, s{src}, {off}")
    A(f"s_addc_u32 s{dst+1}, s{src+1}, 0")

def arr_word(g): return (g & 3) + 32 * (g >> 2)
def preamble(A, nwg=256):
    A(f"s_cmp_ge_u32 s2, {nwg}")
    A("s_cbranch_scc1 L_exit")
    A(f"s_load_dwordx4 s[4:7], s[0:1], {KA_DBG}")
    if FORCE.get('cpf', 1):
        A("s_getpc_b64 s[14:15]")
        A.label("L_code0")
        A("s_lshr_b32 s12, s2, 3")
        A("s_lshl_b32 s12, s12, 12")
        A("v_lshl_add_u32 v1, v0, 4, s12")
        A("v_min_u32 v1, L_code_end-L_code0-4, v1")
        A("v_and_b32 v2, 3, v0")
        A("v_cmp_eq_u32 vcc, 0, v2")
        A("s_mov_b64 exec, vcc")
        A("global_load_dword v63, v1, s[14:15]")
        A("s_mov_b64 exec, -1")
    A("s_getreg_b32 s3, hwreg(HW_REG_XCC_ID, 0, 4)")
    A("v_lshrrev_b32 v1, 6, v0")
    A("v_readfirstlane_b32 s10, v1")
    A("s_and_b32 s8, s2, 7")
    A("s_lshr_b32 s9, s2, 3")
    A("v_and_b32 v1, 63, v0")
    A("s_waitcnt lgkmcnt(0)")
    A("s_mov_b64 s[12:13], s[4:5]")
    A("s_mov_b64 s[4:5], s[6:7]")
    A("s_mov_b64 s[6:7], s[12:13]")
    l2 = A.newlabel('L_pre')
    A("s_cmp_lg_u32 s10, 3")
    A(f"s_cbranch_scc1 {l2}")
    A("s_lshl_b32 s12, s2, 8")
    A(f"s_add_u32 s12, s12, {WS_KVPROG}")
    A("v_lshl_add_u32 v2, v1, 2, s12")
    A("v_mov_b32 v3, 0")
    A("global_store_dword v2, v3, s[4:5] sc1")
    A(f"s_bfe_u32 s12, s2, {0x10000 if FORCE.get('tm') else 0x10002}")
    A("s_xor_b32 s12, s12, 1")
    for r in range(4): A(f"v_mov_b32 v{4+r}, s12")
    A("s_lshl_b32 s12, s2, 10")
    A(f"s_add_u32 s12, s12, {WS_RP}")
    A("v_lshl_add_u32 v2, v1, 4, s12")
    A("global_store_dwordx4 v2, v[4:7], s[4:5] sc1")
    for r in range(4): A(f"v_mov_b32 v{8+r}, -1")
    l1 = A.newlabel('L_pre1')
    A("s_cmp_ge_u32 s2, 32")
    A(f"s_cbranch_scc1 {l1}")
    A("s_bfe_u32 s12, s2, 0x10001")
    A("s_xor_b32 s12, s12, 1")
    for r in range(4): A(f"v_mov_b32 v{12+r}, s12")
    A("v_add_u32 v3, 0x40000, v2")
    A("global_store_dwordx4 v3, v[12:15], s[4:5] sc1")
    A.label(l1)
    A(f"v_add_u32 v3, {WS_RM - WS_RP}, v2")
    A("global_store_dwordx4 v3, v[8:11], s[4:5] sc1")
    A("s_mul_i32 s12, s3, s3")
    A("s_lshl_b32 s12, s12, 10")
    A("s_add_u32 s12, s12, s3")
    A("s_lshl_b32 s12, s12, 8")
    A("s_add_u32 s12, s12, 1")
    A("v_mov_b32 v3, s12")
    A("s_and_b32 s12, s8, 3")
    A("s_lshr_b32 s13, s8, 2")
    A("s_lshl_b32 s13, s13, 5")
    A("s_add_u32 s12, s12, s13")
    A("s_lshl_b32 s12, s12, 2")
    A("v_mov_b32 v2, s12")
    A("s_waitcnt vmcnt(0)")
    A("s_mov_b64 exec, 1")
    A("global_atomic_add v2, v3, s[6:7] sc1")
    A("s_mov_b64 exec, -1")
    A.label(l2)

def mode_check(A, tv=1, ts=12, force_slow=False, pre=None):
    done = A.newlabel('L_mc_done'); loop = A.newlabel('L_mc')
    lane_const(A, tv, lambda t: arr_word(t & 7) * 4, tmp=tv + 1)
    A(f"s_mov_b32 s{ts}, 0")
    if pre is not None:
        A(f"v_mov_b32 v{tv+1}, v{pre}")
        A(f"v_and_b32 v{tv+2}, 0xff, v{tv+1}")
        A(f"v_cmp_ne_u32 vcc, 32, v{tv+2}")
        A(f"s_cbranch_vccnz {loop}")
        A(f"v_readfirstlane_b32 s54, v{pre+2}")
        A(f"s_branch {done}")
    A.label(loop)
    A(f"global_load_dword v{tv+1}, v{tv}, s[6:7] sc1")
    A(f"s_add_u32 s{ts}, s{ts}, 1")
    A(f"s_cmp_gt_u32 s{ts}, {SPIN_MAX}")
    A(f"s_cbranch_scc1 L_exit")
    A("s_waitcnt vmcnt(0)")
    A(f"v_and_b32 v{tv+2}, 0xff, v{tv+1}")
    A(f"v_cmp_ne_u32 vcc, 32, v{tv+2}")
    A(f"s_cbranch_vccz {done}")
    A("s_sleep 24")
    A(f"s_branch {loop}")
    A.label(done)
    A(f"v_readlane_b32 s{ts}, v{tv+1}, s8")
    A(f"s_mul_i32 s{ts+1}, s3, s3")
    A(f"s_lshl_b32 s{ts+1}, s{ts+1}, 10")
    A(f"s_add_u32 s{ts+1}, s{ts+1}, s3")
    A(f"s_lshl_b32 s{ts+1}, s{ts+1}, 8")
    A(f"s_add_u32 s{ts+1}, s{ts+1}, 1")
    A(f"s_lshl_b32 s{ts+1}, s{ts+1}, 5")
    A(f"s_cmp_eq_u32 s{ts}, s{ts+1}")
    A(f"s_cselect_b32 s11, {0 if force_slow or FORCE['slow'] else 1}, 0")

FORCE = {'slow': False}
def counter_arrive(A, word, tv=1):
    l = A.newlabel('L_arr')
    A("s_cmp_lg_u32 s10, 0")
    A(f"s_cbranch_scc1 {l}")
    A(f"v_mov_b32 v{tv}, {word*4}")
    A(f"v_mov_b32 v{tv+1}, 1")
    A("s_mov_b64 exec, 1")
    A(f"global_atomic_add v{tv}, v{tv+1}, s[6:7] sc1")
    A("s_mov_b64 exec, -1")
    A.label(l)

def counter_wait(A, word, count, tv=1, ts=12, sleep=12, one=True):
    loop = A.newlabel('L_cw'); done = A.newlabel('L_cwd')
    if one:
        A("s_cmp_lg_u32 s10, 0")
        A(f"s_cbranch_scc1 {done}")
    A(f"v_mov_b32 v{tv}, {word*4}")
    A(f"s_mov_b32 s{ts}, 0")
    A.label(loop)
    A(f"global_load_dword v{tv+1}, v{tv}, s[6:7] sc1")
    A(f"s_add_u32 s{ts}, s{ts}, 1")
    A(f"s_cmp_gt_u32 s{ts}, {SPIN_MAX}")
    A(f"s_cbranch_scc1 L_exit")
    A("s_waitcnt vmcnt(0)")
    A(f"v_cmp_gt_u32 vcc, {count}, v{tv+1}")
    A(f"s_cbranch_vccz {done}")
    A(f"s_sleep {sleep}")
    A(f"s_branch {loop}")
    A.label(done)
    if one: A("s_barrier")

def lane_const(A, dst, f, src=0, nbits=8, tmp=None, mode=None, acc=False):
    N = 1 << nbits
    f0 = f(0)
    def check(m):
        d = [(f(1 << k) ^ f0) if m == 'xor' else (f(1 << k) - f0) for k in range(nbits)]
        for x in range(N):
            y = f0
            for k in range(nbits):
                if x >> k & 1: y = (y ^ d[k]) if m == 'xor' else y + d[k]
            if y != f(x): return None
        return d
    for m in ([mode] if mode else ['add', 'xor']):
        d = check(m)
        if d is not None: break
    assert d is not None, "function not affine"
    assert tmp is not None and tmp != dst and dst != src
    work = dst
    if acc and m == 'xor':
        work = tmp + 1
    if acc and m == 'add':
        if f0: A(f"v_add_u32 v{dst}, {f0 & 0xffffffff:#x}, v{dst}")
    else:
        A(f"v_mov_b32 v{work}, {f0 & 0xffffffff:#x}")
    k = 0
    while k < nbits:
        if d[k] == 0: k += 1; continue
        n = 1
        while k + n < nbits and d[k + n] == d[k] << n: n += 1
        c = d[k]
        if c > 0 and c & (c - 1) == 0:
            sh = c.bit_length() - 1
            A(f"v_bfe_u32 v{tmp}, v{src}, {k}, {n}")
            if m == 'add': A(f"v_lshl_add_u32 v{work}, v{tmp}, {sh}, v{work}")
            else:
                A(f"v_lshlrev_b32 v{tmp}, {sh}, v{tmp}")
                A(f"v_xor_b32 v{work}, v{work}, v{tmp}")
        elif m == 'add' and 0 < c < (1 << 24):
            A(f"v_bfe_u32 v{tmp}, v{src}, {k}, {n}")
            A(f"v_mul_u32_u24 v{tmp}, {c:#x}, v{tmp}")
            A(f"v_add_u32 v{work}, v{work}, v{tmp}")
        else:
            n = 1
            A(f"v_bfe_i32 v{tmp}, v{src}, {k}, 1")
            A(f"v_and_b32 v{tmp}, {c & 0xffffffff:#x}, v{tmp}")
            A(f"v_{'xor_b32' if m == 'xor' else 'add_u32'} v{work}, v{work}, v{tmp}")
        k += n
    if work != dst:
        A(f"v_add_u32 v{dst}, v{dst}, v{work}")


MF32 = "v_mfma_f32_16x16x32_bf16"
MF16 = "v_mfma_f32_16x16x16_bf16"

def ring_load(A, chunks, nslots=8, lbase=0, tmp=28, sb=26):
    A(f"s_lshl_b32 s{sb}, s10, 12")
    if lbase: A(f"s_add_u32 s{sb}, s{sb}, {lbase}")
    def issue(j):
        c = chunks[j]
        add64(A, 12, c['ptr'], c['off'])
        for ip in range(4):
            A(f"s_add_u32 m0, s{sb}, {(j % nslots) * 16384 + ip * 1024}")
            A(f"global_load_lds_dwordx4 v{c['vb']+ip}, s[12:13]")
    n = len(chunks); ah = nslots - 1
    for j in range(min(ah, n)): issue(j)
    for j in range(n):
        A(f"s_waitcnt vmcnt({4 * (min(n - 1, j + ah - 1) - j)})")
        A("s_barrier")
        if j + ah < n: issue(j + ah)
        regs = sorted({r[1] for r in chunks[j]['reads']})
        for k, ar in enumerate(regs): A(f"v_add_u32 v{tmp+k}, {(j % nslots) * 16384 + lbase}, v{ar}")
        for dst, ar, imm in chunks[j]['reads']:
            A(f"ds_read_b64_tr_b16 {u(dst, 2)}, v{tmp + regs.index(ar)} offset:{imm}")
        if 'post' in chunks[j]: chunks[j]['post']()
        A("s_waitcnt lgkmcnt(0)")
    A("s_barrier")

def swzA(row): return 2 * ((row & 3) | ((row >> 3) & 1) << 2)
def swzB(row): return 2 * (((row >> 1) & 1) | ((row >> 2) & 1) << 1)
def dense256_consts(A, vb, tra, stride, tmp):
    for ip in range(4):
        lane_const(A, vb + ip, lambda t: (16 * (t >> 6) + 4 * ip + ((t & 63) >> 4)) * stride, tmp=tmp)
        lane_const(A, vb + ip, lambda t: ((t & 15) ^ swzA(16 * (t >> 6) + 4 * ip + ((t & 63) >> 4))) * 16, tmp=tmp, acc=True)
    for b in range(2):
        def f(t):
            w, l = t >> 6, t & 63
            row = 8 * (l >> 4) + ((l >> 2) & 3); c = l & 3
            return row * 256 + (((4 * w + 2 * b + (c >> 1)) ^ swzA(row)) * 16) + (c & 1) * 8
        lane_const(A, tra + b, f, tmp=tmp)
def dense256_reads(dstf, tra, c):
    return [(dstf(2 * c + kl, b) + 2 * hq, tra + b, (32 * kl + 4 * hq) * 256) for kl in range(2) for b in range(2) for hq in range(2)]
def dense128_consts(A, vb, tra, tmp):
    for ip in range(4):
        lane_const(A, vb + ip, lambda t: (32 * (t >> 6) + 8 * ip + ((t & 63) >> 3)) * 1152, tmp=tmp)
        lane_const(A, vb + ip, lambda t: ((t & 7) ^ swzB(32 * (t >> 6) + 8 * ip + ((t & 63) >> 3))) * 16, tmp=tmp, acc=True)
    def f(t):
        w, l = t >> 6, t & 63
        row = 4 * (l >> 4) + ((l >> 2) & 3); c = l & 3
        return row * 128 + (((2 * w + (c >> 1)) ^ swzB(row)) * 16) + (c & 1) * 8
    lane_const(A, tra, f, tmp=tmp)
def dense128_reads(dstf, tra, t):
    return [(dstf(t, j) + 2 * hq, tra, (32 * j + 16 * hq) * 128) for j in range(4) for hq in range(2)]

def seg_dma(A, vT16, src, ldsreg):
    A(f"s_mov_b64 s[12:13], s[{src}:{src+1}]")
    for j in range(9):
        A(f"s_add_u32 m0, s{ldsreg}, {j * 4096}")
        A(f"global_load_lds_dwordx4 v{vT16}, s[12:13]")
        if j < 8: add64(A, 12, 12, 4096)

def flag_wait(A, addr_v, base, val_s, tv, ts, sleep=1):
    loop = A.newlabel('L_fw'); done = A.newlabel('L_fwd')
    A(f"s_mov_b32 s{ts}, 0")
    A.label(loop)
    A(f"global_load_dword v{tv}, v{addr_v}, s[{base}:{base+1}] sc1")
    A(f"s_add_u32 s{ts}, s{ts}, 1")
    A(f"s_cmp_gt_u32 s{ts}, {SPIN_MAX}")
    A("s_cbranch_scc1 L_exit")
    A("s_waitcnt vmcnt(0)")
    A(f"v_cmp_gt_u32 vcc, s{val_s}, v{tv}")
    A(f"s_cbranch_vccz {done}")
    if sleep: A(f"s_sleep {sleep}")
    A(f"s_branch {loop}")
    A.label(done)

def xsum(A, r, t, op="v_add_f32", bits=(0, 1, 2, 3, 4, 5)):
    for b in bits:
        if b == 0: A(f"{op}_dpp v{r}, v{r}, v{r} quad_perm:[1,0,3,2] row_mask:0xf bank_mask:0xf")
        elif b == 1: A(f"{op}_dpp v{r}, v{r}, v{r} quad_perm:[2,3,0,1] row_mask:0xf bank_mask:0xf")
        elif b == 2: A(f"{op}_dpp v{r}, v{r}, v{r} row_ror:4 row_mask:0xf bank_mask:0xf")
        elif b == 3: A(f"{op}_dpp v{r}, v{r}, v{r} row_ror:8 row_mask:0xf bank_mask:0xf")
        else:
            A(f"v_mov_b32 v{t}, v{r}")
            A(f"v_permlane{16 if b == 4 else 32}_swap_b32 v{r}, v{t}")
            A(f"{op} v{r}, v{r}, v{t}")

def f32bits(x):
    import struct
    return struct.unpack('<I', struct.pack('<f', x))[0]
def rnd1(A, r, t=None):
    A(f"v_cvt_pk_bf16_f32 v{r}, v{r}, v{r}")
    A(f"v_lshlrev_b32 v{r}, 16, v{r}")
def rnd2(A, r):
    A(f"v_cvt_pk_bf16_f32 v{r+1}, v{r}, v{r+1}")
    A(f"v_lshlrev_b32 v{r}, 16, v{r+1}")
    A(f"v_and_b32 v{r+1}, 0xffff0000, v{r+1}")

TL = {'on': False}
DBGMAP = {(0, 1): 4, (0, 3): 5, (0, 4): 6, (1, 1): 7, (1, 2): 9, (2, 1): 10, (2, 4): 11, (5, 7): 12, (5, 1): 13, (5, 4): 14, (2, 7): 15}
def tl(A, slot, tv=60):
    if TL.get('dbg'):
        if slot == 0:
            A("s_memrealtime s[98:99]")
            A("s_waitcnt lgkmcnt(0)")
            return
        for (g, sl), wd in DBGMAP.items():
            if sl != slot: continue
            l = A.newlabel('L_tl')
            A(f"s_cmp_lg_u32 s8, {g}")
            A(f"s_cbranch_scc1 {l}")
            A("s_memrealtime s[100:101]")
            A("s_lshl_b32 s12, s9, 7")
            A(f"s_add_u32 s12, s12, {WS_STAMP + 0x40000 + wd * 4096}")
            A(f"v_mov_b32 v{tv}, s12")
            A("s_waitcnt lgkmcnt(0)")
            A("s_sub_u32 s100, s100, s98")
            A(f"v_mov_b32 v{tv+1}, s100")
            A("s_cmp_lg_u32 s10, 0")
            A(f"s_cbranch_scc1 {l}")
            A("s_mov_b64 exec, 1")
            A(f"global_store_dword v{tv}, v{tv+1}, s[4:5] sc1")
            A("s_mov_b64 exec, -1")
            if (g, sl) == (5, 4):
                A("s_cmp_lg_u32 s9, 0")
                A(f"s_cbranch_scc1 {l}")
                A("s_waitcnt vmcnt(0)")
                A("v_mbcnt_lo_u32_b32 v8, -1, 0")
                A("v_min_u32 v8, 31, v8")
                A("v_lshlrev_b32 v8, 7, v8")
                for wd2 in DBGMAP.values():
                    A(f"v_add_u32 v9, {WS_STAMP + 0x40000 + wd2 * 4096}, v8")
                    A("global_load_dword v10, v9, s[4:5] sc1")
                    A("s_waitcnt vmcnt(0)")
                    if wd2 != 14: xsum(A, 10, 11, op="v_max_u32")
                    A(f"v_mov_b32 v9, {wd2 * 4}")
                    A("s_mov_b64 exec, 1")
                    A("global_store_dword v9, v10, s[6:7] sc1")
                    A("s_mov_b64 exec, -1")
            A.label(l)
        return
    if not TL['on']: return
    A("s_memrealtime s[100:101]")
    A("s_lshl_b32 s12, s8, 5")
    A("s_add_u32 s12, s12, s9")
    A("s_lshl_b32 s12, s12, 6")
    A(f"s_add_u32 s12, s12, {WS_STAMP + 0x30000 + slot * 4}")
    A(f"v_mov_b32 v{tv}, s12")
    A("s_waitcnt lgkmcnt(0)")
    A(f"v_mov_b32 v{tv+1}, s100")
    A(f"global_store_dword v{tv}, v{tv+1}, s[4:5]")
    A("s_waitcnt vmcnt(0)")

def kvm_clear(A, idx_s):
    for r in range(4): A(f"v_mov_b32 v{8+r}, -1")
    A(f"s_mul_i32 s12, {idx_s}, {88 * 1024}")
    A(f"s_add_u32 s12, s12, {WS_KVM}")
    add64(A, 12, S_WS, "s12")
    A("v_lshlrev_b32 v3, 4, v0")
    for i in range(22):
        A("global_store_dwordx4 v3, v[8:11], s[12:13] sc1")
        if i < 21: add64(A, 12, 12, 4096)
    A("s_waitcnt vmcnt(0)")
    A("s_barrier")
    counter_arrive(A, DBG_KCLR, tv=4)

def backoff(A, cnt_s, after=2, sleep=10):
    l = A.newlabel('L_bo')
    A(f"s_cmp_le_u32 s{cnt_s}, {after}")
    A(f"s_cbranch_scc1 {l}")
    A(f"s_sleep {sleep}")
    A.label(l)
```

```python
from asmlib import *

KA_X, KA_MEM0, KA_WQ, KA_WK, KA_WV, KA_WO, KA_SEG, KA_BX, KA_WG, KA_WU, KA_WD, KA_C, KA_WMOD, KA_OUT, KA_DBG, KA_WS = [8 * i for i in range(16)]

WS_MOD   = 0x0
WS_KVPROG = 0x10000
WS_RPROG = 0x18000
WS_H2FLAG = 0x1A000
WS_XF    = 0x1C000
WS_HINT  = 0x1D000
WS_STAMP = 0x20000
WS_H     = 0x100000
WS_H2    = 0x400000
WS_X1    = 0x700000
WS_KV    = 0x1000000
WS_KVM   = 0x3000000
WS_RP    = 0x3A00000
WS_RM    = 0x3B00000
WS_XP    = 0x4000000
RP_SLOT = 72 * 32 * 128
XP_SLOT = 32 * 32 * 2304
SEG_H = 36864

DBG_TICKET = 0
DBG_CLR = 8
DBG_KCLR = 41
DBG_RLD = 42
DBG_KLD = 43
DBG_MODCNT = 8
DBG_HCNT = 40
DBG_ERR = 40

S_WS = 4
S_DBG = 6
S_GRP, S_MEM, S_WAVE, S_FAST = 8, 9, 10, 11
SPIN_MAX = 400000

class Lds:
    def __init__(self, A):
        self.A = A; self.q = []
    def op(self, text, tag=None):
        self.A(text); self.q.append(tag)
    def wait(self, tag):
        if tag not in self.q: return
        i = len(self.q) - 1 - self.q[::-1].index(tag)
        n = len(self.q) - 1 - i
        self.A(f"s_waitcnt lgkmcnt({min(n, 15)})")
        if n > 15:
            self.q = self.q[len(self.q) - 15:]
        else:
            self.q = self.q[i + 1:]
    def waitall(self):
        self.A("s_waitcnt lgkmcnt(0)"); self.q = []

def add64(A, dst, src, off):
    A(f"s_add_u32 s{dst}, s{src}, {off}")
    A(f"s_addc_u32 s{dst+1}, s{src+1}, 0")

def arr_word(g): return (g & 3) + 32 * (g >> 2)
def preamble(A, nwg=256):
    A(f"s_cmp_ge_u32 s2, {nwg}")
    A("s_cbranch_scc1 L_exit")
    A(f"s_load_dwordx4 s[4:7], s[0:1], {KA_DBG}")
    if FORCE.get('cpf', 1):
        A("s_getpc_b64 s[14:15]")
        A.label("L_code0")
        A("s_lshr_b32 s12, s2, 3")
        A("s_lshl_b32 s12, s12, 12")
        A("v_lshl_add_u32 v1, v0, 4, s12")
        A("v_min_u32 v1, L_code_end-L_code0-4, v1")
        A("v_and_b32 v2, 3, v0")
        A("v_cmp_eq_u32 vcc, 0, v2")
        A("s_mov_b64 exec, vcc")
        A("global_load_dword v63, v1, s[14:15]")
        A("s_mov_b64 exec, -1")
    A("s_getreg_b32 s3, hwreg(HW_REG_XCC_ID, 0, 4)")
    A("v_lshrrev_b32 v1, 6, v0")
    A("v_readfirstlane_b32 s10, v1")
    A("s_and_b32 s8, s2, 7")
    A("s_lshr_b32 s9, s2, 3")
    A("v_and_b32 v1, 63, v0")
    A("s_waitcnt lgkmcnt(0)")
    A("s_mov_b64 s[12:13], s[4:5]")
    A("s_mov_b64 s[4:5], s[6:7]")
    A("s_mov_b64 s[6:7], s[12:13]")
    l2 = A.newlabel('L_pre')
    A("s_cmp_lg_u32 s10, 3")
    A(f"s_cbranch_scc1 {l2}")
    A("s_lshl_b32 s12, s2, 8")
    A(f"s_add_u32 s12, s12, {WS_KVPROG}")
    A("v_lshl_add_u32 v2, v1, 2, s12")
    A("v_mov_b32 v3, 0")
    A("global_store_dword v2, v3, s[4:5] sc1")
    A(f"s_bfe_u32 s12, s2, {0x10000 if FORCE.get('tm') else 0x10002}")
    A("s_xor_b32 s12, s12, 1")
    for r in range(4): A(f"v_mov_b32 v{4+r}, s12")
    A("s_lshl_b32 s12, s2, 10")
    A(f"s_add_u32 s12, s12, {WS_RP}")
    A("v_lshl_add_u32 v2, v1, 4, s12")
    A("global_store_dwordx4 v2, v[4:7], s[4:5] sc1")
    for r in range(4): A(f"v_mov_b32 v{8+r}, -1")
    l0 = A.newlabel('L_pre0')
    A("s_cmp_lt_u32 s8, 5")
    A(f"s_cbranch_scc1 {l0}")
    A("s_mul_i32 s12, s9, 3")
    A("s_add_u32 s12, s12, s8")
    A("s_sub_u32 s12, s12, 5")
    A(f"s_mul_i32 s12, s12, {88 * 1024}")
    A(f"s_add_u32 s12, s12, {WS_KVM}")
    add64(A, 12, S_WS, "s12")
    A("v_lshlrev_b32 v3, 4, v1")
    A("s_mov_b32 s14, 0")
    lc = A.newlabel('L_prec')
    A.label(lc)
    for i in range(4): A(f"global_store_dwordx4 v3, v[8:11], s[12:13] offset:{i * 1024} sc1")
    add64(A, 12, 12, 4096)
    A("s_add_u32 s14, s14, 1")
    A("s_cmp_lt_u32 s14, 22")
    A(f"s_cbranch_scc1 {lc}")
    A.label(l0)
    l1 = A.newlabel('L_pre1')
    A("s_cmp_ge_u32 s2, 32")
    A(f"s_cbranch_scc1 {l1}")
    A("s_bfe_u32 s12, s2, 0x10001")
    A("s_xor_b32 s12, s12, 1")
    for r in range(4): A(f"v_mov_b32 v{12+r}, s12")
    A("v_add_u32 v3, 0x40000, v2")
    A("global_store_dwordx4 v3, v[12:15], s[4:5] sc1")
    A.label(l1)
    A(f"v_add_u32 v3, {WS_RM - WS_RP}, v2")
    A("global_store_dwordx4 v3, v[8:11], s[4:5] sc1")
    A("s_mul_i32 s12, s3, s3")
    A("s_lshl_b32 s12, s12, 10")
    A("s_add_u32 s12, s12, s3")
    A("s_lshl_b32 s12, s12, 8")
    A("s_add_u32 s12, s12, 1")
    A("v_mov_b32 v3, s12")
    A("s_and_b32 s12, s8, 3")
    A("s_lshr_b32 s13, s8, 2")
    A("s_lshl_b32 s13, s13, 5")
    A("s_add_u32 s12, s12, s13")
    A("s_lshl_b32 s12, s12, 2")
    A("v_mov_b32 v2, s12")
    A("s_waitcnt vmcnt(0)")
    A("s_mov_b64 exec, 1")
    A("global_atomic_add v2, v3, s[6:7] sc1")
    A("s_mov_b64 exec, -1")
    A.label(l2)

def mode_check(A, tv=1, ts=12, force_slow=False, pre=None):
    done = A.newlabel('L_mc_done'); loop = A.newlabel('L_mc')
    lane_const(A, tv, lambda t: arr_word(t & 7) * 4, tmp=tv + 1)
    A(f"s_mov_b32 s{ts}, 0")
    if pre is not None:
        A(f"v_mov_b32 v{tv+1}, v{pre}")
        A(f"v_and_b32 v{tv+2}, 0xff, v{tv+1}")
        A(f"v_cmp_ne_u32 vcc, 32, v{tv+2}")
        A(f"s_cbranch_vccnz {loop}")
        A(f"v_readfirstlane_b32 s54, v{pre+2}")
        A(f"s_branch {done}")
    A.label(loop)
    A(f"global_load_dword v{tv+1}, v{tv}, s[6:7] sc1")
    A(f"s_add_u32 s{ts}, s{ts}, 1")
    A(f"s_cmp_gt_u32 s{ts}, {SPIN_MAX}")
    A(f"s_cbranch_scc1 L_exit")
    A("s_waitcnt vmcnt(0)")
    A(f"v_and_b32 v{tv+2}, 0xff, v{tv+1}")
    A(f"v_cmp_ne_u32 vcc, 32, v{tv+2}")
    A(f"s_cbranch_vccz {done}")
    A("s_sleep 24")
    A(f"s_branch {loop}")
    A.label(done)
    A(f"v_readlane_b32 s{ts}, v{tv+1}, s8")
    A(f"s_mul_i32 s{ts+1}, s3, s3")
    A(f"s_lshl_b32 s{ts+1}, s{ts+1}, 10")
    A(f"s_add_u32 s{ts+1}, s{ts+1}, s3")
    A(f"s_lshl_b32 s{ts+1}, s{ts+1}, 8")
    A(f"s_add_u32 s{ts+1}, s{ts+1}, 1")
    A(f"s_lshl_b32 s{ts+1}, s{ts+1}, 5")
    A(f"s_cmp_eq_u32 s{ts}, s{ts+1}")
    A(f"s_cselect_b32 s11, {0 if force_slow or FORCE['slow'] else 1}, 0")

FORCE = {'slow': False}
def counter_arrive(A, word, tv=1):
    l = A.newlabel('L_arr')
    A("s_cmp_lg_u32 s10, 0")
    A(f"s_cbranch_scc1 {l}")
    A(f"v_mov_b32 v{tv}, {word*4}")
    A(f"v_mov_b32 v{tv+1}, 1")
    A("s_mov_b64 exec, 1")
    A(f"global_atomic_add v{tv}, v{tv+1}, s[6:7] sc1")
    A("s_mov_b64 exec, -1")
    A.label(l)

def counter_wait(A, word, count, tv=1, ts=12, sleep=12, one=True):
    loop = A.newlabel('L_cw'); done = A.newlabel('L_cwd')
    if one:
        A("s_cmp_lg_u32 s10, 0")
        A(f"s_cbranch_scc1 {done}")
    A(f"v_mov_b32 v{tv}, {word*4}")
    A(f"s_mov_b32 s{ts}, 0")
    A.label(loop)
    A(f"global_load_dword v{tv+1}, v{tv}, s[6:7] sc1")
    A(f"s_add_u32 s{ts}, s{ts}, 1")
    A(f"s_cmp_gt_u32 s{ts}, {SPIN_MAX}")
    A(f"s_cbranch_scc1 L_exit")
    A("s_waitcnt vmcnt(0)")
    A(f"v_cmp_gt_u32 vcc, {count}, v{tv+1}")
    A(f"s_cbranch_vccz {done}")
    A(f"s_sleep {sleep}")
    A(f"s_branch {loop}")
    A.label(done)
    if one: A("s_barrier")

def lane_const(A, dst, f, src=0, nbits=8, tmp=None, mode=None, acc=False):
    N = 1 << nbits
    f0 = f(0)
    def check(m):
        d = [(f(1 << k) ^ f0) if m == 'xor' else (f(1 << k) - f0) for k in range(nbits)]
        for x in range(N):
            y = f0
            for k in range(nbits):
                if x >> k & 1: y = (y ^ d[k]) if m == 'xor' else y + d[k]
            if y != f(x): return None
        return d
    for m in ([mode] if mode else ['add', 'xor']):
        d = check(m)
        if d is not None: break
    assert d is not None, "function not affine"
    assert tmp is not None and tmp != dst and dst != src
    work = dst
    if acc and m == 'xor':
        work = tmp + 1
    if acc and m == 'add':
        if f0: A(f"v_add_u32 v{dst}, {f0 & 0xffffffff:#x}, v{dst}")
    else:
        A(f"v_mov_b32 v{work}, {f0 & 0xffffffff:#x}")
    k = 0
    while k < nbits:
        if d[k] == 0: k += 1; continue
        n = 1
        while k + n < nbits and d[k + n] == d[k] << n: n += 1
        c = d[k]
        if c > 0 and c & (c - 1) == 0:
            sh = c.bit_length() - 1
            A(f"v_bfe_u32 v{tmp}, v{src}, {k}, {n}")
            if m == 'add': A(f"v_lshl_add_u32 v{work}, v{tmp}, {sh}, v{work}")
            else:
                A(f"v_lshlrev_b32 v{tmp}, {sh}, v{tmp}")
                A(f"v_xor_b32 v{work}, v{work}, v{tmp}")
        elif m == 'add' and 0 < c < (1 << 24):
            A(f"v_bfe_u32 v{tmp}, v{src}, {k}, {n}")
            A(f"v_mul_u32_u24 v{tmp}, {c:#x}, v{tmp}")
            A(f"v_add_u32 v{work}, v{work}, v{tmp}")
        else:
            n = 1
            A(f"v_bfe_i32 v{tmp}, v{src}, {k}, 1")
            A(f"v_and_b32 v{tmp}, {c & 0xffffffff:#x}, v{tmp}")
            A(f"v_{'xor_b32' if m == 'xor' else 'add_u32'} v{work}, v{work}, v{tmp}")
        k += n
    if work != dst:
        A(f"v_add_u32 v{dst}, v{dst}, v{work}")


MF32 = "v_mfma_f32_16x16x32_bf16"
MF16 = "v_mfma_f32_16x16x16_bf16"

def ring_load(A, chunks, nslots=8, lbase=0, tmp=28, sb=26):
    A(f"s_lshl_b32 s{sb}, s10, 12")
    if lbase: A(f"s_add_u32 s{sb}, s{sb}, {lbase}")
    def issue(j):
        c = chunks[j]
        add64(A, 12, c['ptr'], c['off'])
        for ip in range(4):
            A(f"s_add_u32 m0, s{sb}, {(j % nslots) * 16384 + ip * 1024}")
            A(f"global_load_lds_dwordx4 v{c['vb']+ip}, s[12:13]")
    n = len(chunks); ah = nslots - 1
    for j in range(min(ah, n)): issue(j)
    for j in range(n):
        A(f"s_waitcnt vmcnt({4 * (min(n - 1, j + ah - 1) - j)})")
        A("s_barrier")
        if j + ah < n: issue(j + ah)
        regs = sorted({r[1] for r in chunks[j]['reads']})
        for k, ar in enumerate(regs): A(f"v_add_u32 v{tmp+k}, {(j % nslots) * 16384 + lbase}, v{ar}")
        for dst, ar, imm in chunks[j]['reads']:
            A(f"ds_read_b64_tr_b16 {u(dst, 2)}, v{tmp + regs.index(ar)} offset:{imm}")
        if 'post' in chunks[j]: chunks[j]['post']()
        A("s_waitcnt lgkmcnt(0)")
    A("s_barrier")

def swzA(row): return 2 * ((row & 3) | ((row >> 3) & 1) << 2)
def swzB(row): return 2 * (((row >> 1) & 1) | ((row >> 2) & 1) << 1)
def dense256_consts(A, vb, tra, stride, tmp):
    for ip in range(4):
        lane_const(A, vb + ip, lambda t: (16 * (t >> 6) + 4 * ip + ((t & 63) >> 4)) * stride, tmp=tmp)
        lane_const(A, vb + ip, lambda t: ((t & 15) ^ swzA(16 * (t >> 6) + 4 * ip + ((t & 63) >> 4))) * 16, tmp=tmp, acc=True)
    for b in range(2):
        def f(t):
            w, l = t >> 6, t & 63
            row = 8 * (l >> 4) + ((l >> 2) & 3); c = l & 3
            return row * 256 + (((4 * w + 2 * b + (c >> 1)) ^ swzA(row)) * 16) + (c & 1) * 8
        lane_const(A, tra + b, f, tmp=tmp)
def dense256_reads(dstf, tra, c):
    return [(dstf(2 * c + kl, b) + 2 * hq, tra + b, (32 * kl + 4 * hq) * 256) for kl in range(2) for b in range(2) for hq in range(2)]
def dense128_consts(A, vb, tra, tmp):
    for ip in range(4):
        lane_const(A, vb + ip, lambda t: (32 * (t >> 6) + 8 * ip + ((t & 63) >> 3)) * 1152, tmp=tmp)
        lane_const(A, vb + ip, lambda t: ((t & 7) ^ swzB(32 * (t >> 6) + 8 * ip + ((t & 63) >> 3))) * 16, tmp=tmp, acc=True)
    def f(t):
        w, l = t >> 6, t & 63
        row = 4 * (l >> 4) + ((l >> 2) & 3); c = l & 3
        return row * 128 + (((2 * w + (c >> 1)) ^ swzB(row)) * 16) + (c & 1) * 8
    lane_const(A, tra, f, tmp=tmp)
def dense128_reads(dstf, tra, t):
    return [(dstf(t, j) + 2 * hq, tra, (32 * j + 16 * hq) * 128) for j in range(4) for hq in range(2)]

def seg_dma(A, vT16, src, ldsreg):
    A(f"s_mov_b64 s[12:13], s[{src}:{src+1}]")
    for j in range(9):
        A(f"s_add_u32 m0, s{ldsreg}, {j * 4096}")
        A(f"global_load_lds_dwordx4 v{vT16}, s[12:13]")
        if j < 8: add64(A, 12, 12, 4096)

def flag_wait(A, addr_v, base, val_s, tv, ts, sleep=1):
    loop = A.newlabel('L_fw'); done = A.newlabel('L_fwd')
    A(f"s_mov_b32 s{ts}, 0")
    A.label(loop)
    A(f"global_load_dword v{tv}, v{addr_v}, s[{base}:{base+1}] sc1")
    A(f"s_add_u32 s{ts}, s{ts}, 1")
    A(f"s_cmp_gt_u32 s{ts}, {SPIN_MAX}")
    A("s_cbranch_scc1 L_exit")
    A("s_waitcnt vmcnt(0)")
    A(f"v_cmp_gt_u32 vcc, s{val_s}, v{tv}")
    A(f"s_cbranch_vccz {done}")
    if sleep: A(f"s_sleep {sleep}")
    A(f"s_branch {loop}")
    A.label(done)

def xsum(A, r, t, op="v_add_f32", bits=(0, 1, 2, 3, 4, 5)):
    for b in bits:
        if b == 0: A(f"{op}_dpp v{r}, v{r}, v{r} quad_perm:[1,0,3,2] row_mask:0xf bank_mask:0xf")
        elif b == 1: A(f"{op}_dpp v{r}, v{r}, v{r} quad_perm:[2,3,0,1] row_mask:0xf bank_mask:0xf")
        elif b == 2: A(f"{op}_dpp v{r}, v{r}, v{r} row_ror:4 row_mask:0xf bank_mask:0xf")
        elif b == 3: A(f"{op}_dpp v{r}, v{r}, v{r} row_ror:8 row_mask:0xf bank_mask:0xf")
        else:
            A(f"v_mov_b32 v{t}, v{r}")
            A(f"v_permlane{16 if b == 4 else 32}_swap_b32 v{r}, v{t}")
            A(f"{op} v{r}, v{r}, v{t}")

def f32bits(x):
    import struct
    return struct.unpack('<I', struct.pack('<f', x))[0]
def rnd1(A, r, t=None):
    A(f"v_cvt_pk_bf16_f32 v{r}, v{r}, v{r}")
    A(f"v_lshlrev_b32 v{r}, 16, v{r}")
def rnd2(A, r):
    A(f"v_cvt_pk_bf16_f32 v{r+1}, v{r}, v{r+1}")
    A(f"v_lshlrev_b32 v{r}, 16, v{r+1}")
    A(f"v_and_b32 v{r+1}, 0xffff0000, v{r+1}")

TL = {'on': False}
DBGMAP = {(0, 1): 4, (0, 3): 5, (0, 4): 6, (1, 1): 7, (1, 2): 9, (2, 1): 10, (2, 4): 11, (5, 7): 12, (5, 1): 13, (5, 4): 14, (2, 7): 15}
def tl(A, slot, tv=60):
    if TL.get('dbg'):
        if slot == 0:
            A("s_memrealtime s[98:99]")
            A("s_waitcnt lgkmcnt(0)")
            return
        for (g, sl), wd in DBGMAP.items():
            if sl != slot: continue
            l = A.newlabel('L_tl')
            A(f"s_cmp_lg_u32 s8, {g}")
            A(f"s_cbranch_scc1 {l}")
            A("s_memrealtime s[100:101]")
            A("s_lshl_b32 s12, s9, 7")
            A(f"s_add_u32 s12, s12, {WS_STAMP + 0x40000 + wd * 4096}")
            A(f"v_mov_b32 v{tv}, s12")
            A("s_waitcnt lgkmcnt(0)")
            A("s_sub_u32 s100, s100, s98")
            A(f"v_mov_b32 v{tv+1}, s100")
            A("s_cmp_lg_u32 s10, 0")
            A(f"s_cbranch_scc1 {l}")
            A("s_mov_b64 exec, 1")
            A(f"global_store_dword v{tv}, v{tv+1}, s[4:5] sc1")
            A("s_mov_b64 exec, -1")
            if (g, sl) == (5, 4):
                A("s_cmp_lg_u32 s9, 0")
                A(f"s_cbranch_scc1 {l}")
                A("s_waitcnt vmcnt(0)")
                A("v_mbcnt_lo_u32_b32 v8, -1, 0")
                A("v_min_u32 v8, 31, v8")
                A("v_lshlrev_b32 v8, 7, v8")
                for wd2 in DBGMAP.values():
                    A(f"v_add_u32 v9, {WS_STAMP + 0x40000 + wd2 * 4096}, v8")
                    A("global_load_dword v10, v9, s[4:5] sc1")
                    A("s_waitcnt vmcnt(0)")
                    if wd2 != 14: xsum(A, 10, 11, op="v_max_u32")
                    A(f"v_mov_b32 v9, {wd2 * 4}")
                    A("s_mov_b64 exec, 1")
                    A("global_store_dword v9, v10, s[6:7] sc1")
                    A("s_mov_b64 exec, -1")
            A.label(l)
        return
    if not TL['on']: return
    A("s_memrealtime s[100:101]")
    A("s_lshl_b32 s12, s8, 5")
    A("s_add_u32 s12, s12, s9")
    A("s_lshl_b32 s12, s12, 6")
    A(f"s_add_u32 s12, s12, {WS_STAMP + 0x30000 + slot * 4}")
    A(f"v_mov_b32 v{tv}, s12")
    A("s_waitcnt lgkmcnt(0)")
    A(f"v_mov_b32 v{tv+1}, s100")
    A(f"global_store_dword v{tv}, v{tv+1}, s[4:5]")
    A("s_waitcnt vmcnt(0)")

def kvm_clear(A, idx_s):
    for r in range(4): A(f"v_mov_b32 v{8+r}, -1")
    A(f"s_mul_i32 s12, {idx_s}, {88 * 1024}")
    A(f"s_add_u32 s12, s12, {WS_KVM}")
    add64(A, 12, S_WS, "s12")
    A("v_lshlrev_b32 v3, 4, v0")
    for i in range(22):
        A("global_store_dwordx4 v3, v[8:11], s[12:13] sc1")
        if i < 21: add64(A, 12, 12, 4096)
    A("s_waitcnt vmcnt(0)")
    A("s_barrier")
    counter_arrive(A, DBG_KCLR, tv=4)

def backoff(A, cnt_s, after=2, sleep=10):
    l = A.newlabel('L_bo')
    A(f"s_cmp_le_u32 s{cnt_s}, {after}")
    A(f"s_cbranch_scc1 {l}")
    A(f"s_sleep {sleep}")
    A.label(l)

def h_wait(A, tv, l4=None):
    done = A.newlabel('L_hw'); loop = A.newlabel('L_hwl')
    A("s_cmp_lg_u32 s10, 0")
    A(f"s_cbranch_scc1 {done}")
    A(f"v_mbcnt_lo_u32_b32 v{tv}, -1, 0")
    A(f"v_mbcnt_hi_u32_b32 v{tv}, -1, v{tv}")
    A(f"v_lshlrev_b32 v{tv}, 3, v{tv}")
    A(f"v_add_u32 v{tv}, {WS_HINT}, v{tv}")
    A("s_mov_b32 s12, 0")
    A.label(loop)
    A(f"global_load_dwordx2 {v(tv + 2, 2)}, v{tv}, s[4:5] sc1")
    A("s_add_u32 s12, s12, 1")
    A(f"s_cmp_gt_u32 s12, {SPIN_MAX}")
    A("s_cbranch_scc1 L_exit")
    A("s_waitcnt vmcnt(0)")
    A(f"v_and_b32 v{tv+2}, v{tv+2}, v{tv+3}")
    A(f"v_cmp_eq_u32 vcc, 0, v{tv+2}")
    A(f"s_cbranch_vccz {done}")
    A("s_sleep 6")
    A(f"s_branch {loop}")
    A.label(done)
    A("s_barrier")
```

```python
from common import *
import math
PROW = 1152
ROWB = 32 * PROW
T16, L16, XS, XS8, XL, RW, XL8, L4 = range(8)
EXP = {}
TRN = ['top', 'go', 'mm', 'flag', 'op0', 'op1', 'ack', 'xf', 'red', 'end']
def tr(A, name):
    if not EXP.get('aftrace'): return
    if name not in TRN: TRN.append(name)
    i = TRN.index(name)
    assert i < 11
    A(f"s_memtime s[{80+2*i}:{81+2*i}]")
def tr_dump(A, seg):
    if not EXP.get('aftrace'): return
    l = A.newlabel('L_trd')
    A(f"s_cmp_lg_u32 s47, {seg}")
    A(f"s_cbranch_scc1 {l}")
    A("s_waitcnt lgkmcnt(0)")
    A("s_lshl_b32 s12, s8, 5")
    A("s_add_u32 s12, s12, s9")
    A("s_lshl_b32 s12, s12, 2")
    A("s_add_u32 s12, s12, s10")
    A("s_lshl_b32 s12, s12, 6")
    A(f"s_add_u32 s12, s12, {WS_STAMP + 0x10000}")
    A("v_mov_b32 v8, s12")
    for q in range(11):
        A(f"v_mov_b32 v9, s{80 + 2 * q}")
        A(f"global_store_dword v8, v9, s[4:5] offset:{4 * q}")
        A("s_waitcnt vmcnt(0)")
    A.label(l)

def af_consts(A, l_red):
    lane_const(A, L16, lambda t: (t & 63) * 16, tmp=12)
    lane_const(A, XS, lambda t: ((t >> 4) & 3) * 4 * ROWB + (t & 15) * 8 + (t >> 6) * 256, tmp=12)
    lane_const(A, XS8, lambda t: (t & 15) * ROWB + ((t >> 4) & 3) * 8 + (t >> 6) * 32 + 1024, tmp=12)
    lane_const(A, XL, lambda t: ((t >> 4) & 3) * PROW + (t >> 6) * 256 + (t & 15) * 16, tmp=12)
    lane_const(A, XL8, lambda t: (8 * (t >> 6) + ((t >> 3) & 7)) * PROW + 1024 + (t & 7) * 16, tmp=12)
    lane_const(A, RW, lambda t: l_red + (256 * ((t >> 3) & 1) + 16 * (t >> 6) + 2 * (t & 7) + ((t >> 4) & 1)) * 4, tmp=12)
    lane_const(A, L4, lambda t: (t & 63) * 4, tmp=12)
    A(f"s_mul_i32 s12, s8, {32 * ROWB}")
    A(f"s_add_u32 s12, s12, {WS_XP}")
    A(f"s_mul_i32 s13, s9, {PROW}")
    A("s_add_u32 s13, s13, s12")
    add64(A, 40, S_WS, "s13")
    A(f"s_mul_i32 s13, s9, {ROWB}")
    A("s_add_u32 s13, s13, s12")
    add64(A, 42, S_WS, "s13")
    A("s_lshl_b32 s12, s8, 7")
    A(f"s_add_u32 s12, s12, {WS_XF}")
    add64(A, 44, S_WS, "s12")
    A("s_mov_b32 s47, 0")

def post_flag(A, wave, off, st):
    l = A.newlabel('L_pf')
    A(f"s_cmp_lg_u32 s10, {wave}")
    A(f"s_cbranch_scc1 {l}")
    A("s_lshl_b32 s12, s9, 2")
    A("v_mov_b32 v8, s12")
    A("v_mov_b32 v9, s47")
    A("s_mov_b64 exec, 1")
    A(f"global_store_dword v8, v9, s[44:45] offset:{off} {st}")
    A("s_mov_b64 exec, -1")
    A.label(l)

def out_proj(A, st, wfrag, l_red, k16=None):
    D = Lds(A)
    FR, AC, NA_, G, W16, F16 = 8, 28, 6, 52, 68, 72
    tr(A, 'op0')
    A("s_add_u32 s47, s47, 1")
    A("s_xor_b32 s46, s47, s9")
    A("s_and_b32 s46, s46, 1")
    A("v_mov_b32 v24, s46")
    order = [8, 0, 1, 2, 3, 4, 5, 6, 7]
    seq = [(tt, t) for tt in range(2) for t in order]
    pend = []
    def slot(k): return AC + 4 * (k % NA_)
    def chk(k):
        regs = {('v', slot(k) + i) for i in range(4)}
        while any(Ins(line).rd & regs for _, o in pend for line in o.split('\n')):
            A(pend.pop(0)[1])
    def wreg(k): return (68, 70, 76, 78)[k & 3]
    def w16rd(k): D.op(f"ds_read_b64_tr_b16 {v(wreg(k), 2)}, v{k16[1]} offset:{seq[k][1] * 128}", ('w16', k))
    def m16(k):
        D.wait(('w16', k))
        a_, b_ = v(F16 + 2 * seq[k][0], 2), v(wreg(k), 2)
        if seq[k][1] == 8: a_, b_ = b_, a_
        A(f"{MF16} {v(slot(k), 4)}, {a_}, {b_}, {v(slot(k), 4)}")
    def post(grp, rdy):
        for k in grp:
            tt, t = seq[k]; c = slot(k); cp = slot(k - 1)
            if t == 8:
                pend.append((rdy, f"v_cvt_pk_bf16_f32 v{c}, v{c}, v{c+1}"))
                pend.append((rdy, f"v_cvt_pk_bf16_f32 v{c+1}, v{c+2}, v{c+3}"))
                pend.append((rdy, f"v_bfi_b32 v{c}, 1, v24, v{c}"))
                pend.append((rdy, sa.format(16 * tt * ROWB) + f"global_store_dwordx2 v{XS8}, {v(c, 2)}, s[12:13] {st}"))
            elif t & 1:
                for r in range(4): pend.append((rdy, f"v_cvt_pk_bf16_f32 v{G + 4 * r + t // 2}, v{cp+r}, v{c+r}"))
                for r in range(4):
                    if t in (1, 5): pend.append((rdy, f"v_bfi_b32 v{G + 4 * r + t // 2}, 1, v24, v{G + 4 * r + t // 2}"))
                    else: pend.append((rdy + 2 + r, sa.format((16 * tt + r) * ROWB) + f"global_store_dwordx2 v{XS}, {v(G + 4 * r + (t >> 2) * 2, 2)}, s[12:13] offset:{(t >> 2) * 128} {st}"))
    if k16:
        for q in range(4): D.op(f"ds_read_b128 {v(G + 4 * q, 4)}, v{L16} offset:{k16[0] + (q >> 1) * 1024 + (q & 1) * 2048}", ('x9', q))
        for k_ in range(4): w16rd(k_)
    sa = f"s_add_u32 s12, s40, {{}}\ns_addc_u32 s13, s41, 0\n"
    mc = [0]
    groups = []
    for tt in range(2): groups += [[9 * tt, 9 * tt + 1, 9 * tt + 2]] + [[9 * tt + 3 + 2 * q, 9 * tt + 4 + 2 * q] for q in range(3)]
    for gi, grp in enumerate(groups):
        tt = seq[grp[0]][0]
        if seq[grp[0]][1] == 8:
            for j in range(4): D.op(f"ds_read_b128 {v(FR + 4 * j, 4)}, v{L16} offset:{(tt * 4 + j) * 1024}", ('f', j))
        if k16 and gi == 0:
            for tt_ in range(2):
                D.wait(('x9', 2 * tt_ + 1))
                g_ = G + 8 * tt_
                for r in (0, 2): A(f"v_pk_mul_f32 {v(g_ + r, 2)}, {v(g_ + r, 2)}, {v(g_ + 4 + r, 2)}")
                for r in (0, 2): A(f"v_cvt_pk_bf16_f32 v{F16 + 2 * tt_ + r // 2}, v{g_+r}, v{g_+r+1}")
        for k in grp: chk(k)
        def drain():
            mc[0] += 1
            for _ in range(2):
                if pend and pend[0][0] <= mc[0]: A(pend.pop(0)[1])
        for j in range(4):
            D.wait(('f', j))
            for k in grp:
                t = seq[k][1]; c = slot(k)
                a_, b_ = v(FR + 4 * j, 4), u(wfrag(t, j), 4)
                if t == 8: a_, b_ = b_, a_
                A(f"{MF32} {v(c, 4)}, {a_}, {b_}, {v(c, 4) if j else 0}")
                drain()
            if k16 and j == 0 and gi:
                for k in groups[gi - 1]:
                    m16(k); drain()
                    if k + 4 < 18: w16rd(k + 4)
                post(groups[gi - 1], mc[0] + 4)
        if not k16: post(grp, mc[0] + 4)
    if k16:
        for k in groups[-1]: m16(k)
        post(groups[-1], 0)
    for o in pend: A(o[1])
    tr(A, 'op1')
    SEL = 12
    A(f"v_bfe_u32 v10, v{L4}, 2, 1")
    A("v_lshlrev_b32 v10, 4, v10")
    A("v_mov_b32 v11, 0x3f80")
    A("v_lshlrev_b32 v11, v10, v11")
    A(f"v_bfe_u32 v10, v{L4}, 3, 2")
    for j in range(4):
        A(f"v_cmp_eq_u32 vcc, {j}, v10")
        A(f"v_cndmask_b32 v{SEL+j}, 0, v11, vcc")
    lane_const(A, 26, lambda x: l_red + 2048 + (x >> 10) * 256 + ((x >> 4) & 7) * 32 + ((x >> 8) & 1) * 16, src=T16, nbits=12, tmp=10)
    A("s_and_b32 s12, s47, 1")
    A("s_sub_u32 s12, 0, s12")
    A(f"v_bfe_i32 v10, v{L4}, 6, 1")
    A(f"v_bfe_i32 v11, v{L4}, 5, 1")
    A("v_xor_b32 v10, s12, v10")
    A("v_xor_b32 v11, s12, v11")
    A("s_waitcnt vmcnt(0)")
    tr(A, 'ack')
    lnf = A.newlabel('L_nf')
    A("s_cmp_lg_u32 s47, 1")
    A(f"s_cbranch_scc1 {lnf}")
    A("s_barrier")
    post_flag(A, 0, 0, st)
    A(f"v_and_b32 v8, 0x7c, v{L4}")
    flag_wait(A, 8, 44, 47, 9, 12, sleep=8)
    A.label(lnf)
    tr(A, 'xf')
    LD = 28
    A("s_mov_b32 s14, 0")
    lrt = A.newlabel('L_xr')
    A.label(lrt)
    A("s_mov_b64 s[12:13], s[42:43]")
    A(f"global_load_dwordx4 {v(LD + 32, 4)}, v{XL8}, s[12:13] sc1")
    for i in range(8):
        A(f"global_load_dwordx4 {v(LD + 4 * i, 4)}, v{XL}, s[12:13] sc1")
        if i < 7: add64(A, 12, 12, 4 * PROW)
    A("s_mov_b64 exec, -1")
    A("s_add_u32 s14, s14, 1")
    A(f"s_cmp_gt_u32 s14, {SPIN_MAX}")
    A("s_cbranch_scc1 L_exit")
    A("s_waitcnt vmcnt(8)")
    A(f"{MF32} v[20:23], {v(SEL, 4)}, {v(LD + 32, 4)}, 0")
    A(f"v_bitop3_b32 v8, v{LD+32}, v{LD+34}, v11 bitop3:0x7e")
    A("v_and_b32 v8, 1, v8")
    for i in range(8):
        A(f"s_waitcnt vmcnt({7 - i})")
        A(f"{MF32} v[16:19], {v(SEL, 4)}, {v(LD + 4 * i, 4)}, {'v[16:19]' if i else 0}")
        A(f"v_bitop3_b32 v9, v{LD+4*i}, v{LD+4*i+2}, v10 bitop3:0x7e")
        A("v_and_or_b32 v8, v9, 1, v8")
        if i == 4:
            for r in range(4): A(f"v_add_f32_dpp v{20+r}, v{20+r}, v{20+r} row_ror:8 row_mask:0xf bank_mask:0xf")
            A("ds_write_b128 v26, v[20:23]")
    A("v_cmp_ne_u32 vcc, 0, v8")
    A("s_mov_b64 exec, vcc")
    A(f"s_cbranch_vccnz {lrt}")
    A("s_mov_b64 exec, -1")
    for r in range(4): A(f"ds_write_b32 v{RW}, v{16+r} offset:{256 * r}")
    A("s_waitcnt lgkmcnt(0)")
    A("s_barrier")
    tr(A, 'red')
    post_flag(A, 1, 1024, st)

def consumed_wait(A, tv):
    A(f"v_and_b32 v{tv}, 0x7c, v{L4}")
    A(f"v_add_u32 v{tv}, 1024, v{tv}")
    flag_wait(A, tv, 44, 47, tv + 1, 12, sleep=0)

def row_gather(A, l_red):
    A(f"v_lshlrev_b32 v48, 1, v{L4}")
    for w in range(4): A(f"ds_read_b64 {v(16 + 2 * w, 2)}, v48 offset:{l_red + 2048 + w * 256}")
    for i in range(4): A(f"ds_read_b64 {v(8 + 2 * i, 2)}, v48 offset:{l_red + i * 512}")
    A("s_waitcnt lgkmcnt(4)")
    A("v_pk_add_f32 v[16:17], v[16:17], v[18:19]")
    A("v_pk_add_f32 v[20:21], v[20:21], v[22:23]")
    A("v_pk_add_f32 v[16:17], v[16:17], v[20:21]")
    A("s_waitcnt lgkmcnt(0)")
    for i in range(5): rnd2(A, 8 + 2 * i)

def unpack(A, dst, src):
    A(f"v_lshlrev_b32 v{dst}, 16, v{src}")
    A(f"v_and_b32 v{dst+1}, 0xffff0000, v{src}")

def cached_wait(A, base, val_s, cache_s, tv):
    ok = A.newlabel('L_cw')
    A(f"s_cmp_ge_u32 s{cache_s}, s{val_s}")
    A(f"s_cbranch_scc1 {ok}")
    A(f"v_and_b32 v{tv}, 12, v{L4}")
    flag_wait(A, tv, base, val_s, tv + 1, 12, sleep=16)
    xsum(A, tv + 1, tv, op="v_min_u32", bits=(0, 1))
    A(f"v_readfirstlane_b32 s{cache_s}, v{tv+1}")
    A.label(ok)

def WA(i): return 256 + 4 * i if i < 64 else 224 + 4 * (i - 64)

def role_a(A, restart, na, ag0, kvg0, standalone=False):
    LQ, LO, LRED = 2 * SEG_H, 2 * SEG_H + 8192, 2 * SEG_H + 16384
    LKM, LVM = LRED + 4096, LRED + 8192
    A(f"s_load_dwordx2 s[16:17], s[0:1], {KA_WQ}")
    A(f"s_load_dwordx2 s[18:19], s[0:1], {KA_WO}")
    A(f"s_load_dwordx2 s[34:35], s[0:1], {KA_X}")
    dense256_consts(A, 12, 16, 8192, 1)
    dense128_consts(A, 20, 18, 1)
    A("s_lshl_b32 s12, s9, 8")
    A("s_waitcnt lgkmcnt(0)")
    add64(A, 16, 16, "s12")
    A("s_mul_i32 s12, s9, 147456")
    add64(A, 18, 18, "s12")
    def wq(ks, b): return WA(ks * 2 + b)
    def wo(t, j): return WA(36 + t * 4 + j)
    chunks = [dict(ptr=16, off=c * 64 * 8192, vb=12, reads=dense256_reads(wq, 16, c)) for c in range(9)]
    chunks += [dict(ptr=18, off=t * 128, vb=20, reads=dense128_reads(wo, 18, t)) for t in range(9)]
    ring_load(A, chunks)
    tl(A, 1)
    mode_check(A, tv=12)
    af_consts(A, LRED)
    HA, QRD, OWR, KMA, VOF, NEG, H2A = 80, 81, 82, 83, 84, 85, 86
    MODR, XR = 88, 104
    KF, VF, KM, VM = 112, 144, 160, 176
    lane_const(A, QRD, lambda t: LQ + (t >> 7) * 4096 + (t & 63) * 16, tmp=12)
    lane_const(A, OWR, lambda t: LO + (t >> 6) * 2048 + (t & 63) * 16, tmp=12)
    KMW, VMW = 87, 109
    lane_const(A, KMW, lambda t: LKM + 2 * ((t >> 4) & 3) * 288 + (t >> 6) * 64 + (t & 15) * 4, tmp=12)
    lane_const(A, KMA, lambda t: LKM + (2 * ((t & 15) >> 2) + (t & 1)) * 288 + ((t >> 4) & 3) * 16, tmp=12)
    lane_const(A, VMW, lambda t: LVM + t * 8, tmp=12)
    lane_const(A, VOF, lambda t: LVM + ((t >> 6) & 1) * 1024 + (t & 63) * 8, tmp=12)
    A(f"v_mov_b32 v{NEG}, {f32bits(-1e9):#x}")
    A("s_bfe_u32 s12, s9, 0x30001")
    A("s_lshl_b32 s12, s12, 4")
    A(f"v_xor_b32 v{H2A}, s12, v{L4}")
    lane_const(A, 12, lambda t: 16 * (t >> 7) + (t & 15) - 4 * ((t >> 4) & 3), tmp=13)
    for k in range(8): A(f"v_cmp_le_i32 s[{64+2*k}:{65+2*k}], {(k & 3) + 16 * (k >> 2)}, v12")
    A(f"v_lshlrev_b32 v{T16}, 4, v0")
    A(f"s_sub_u32 s24, s8, {ag0}")
    A(f"s_mul_i32 s12, s24, {SEG_H}")
    A(f"s_add_u32 s13, s12, {WS_H}")
    add64(A, 20, S_WS, "s13")
    A("s_mul_i32 s13, s9, 1152")
    A("s_add_u32 s12, s12, s13")
    add64(A, 34, 34, "s12")
    A(f"s_add_u32 s13, s12, {WS_X1}")
    add64(A, 36, S_WS, "s13")
    A(f"s_add_u32 s13, s12, {WS_H2}")
    add64(A, 38, S_WS, "s13")
    A("s_lshl_b32 s12, s24, 5")
    A("s_add_u32 s12, s12, s9")
    A("s_lshl_b32 s13, s12, 14")
    A(f"s_add_u32 s13, s13, {WS_KV + 4096}")
    add64(A, 22, S_WS, "s13")
    A("s_lshl_b32 s13, s12, 12")
    A(f"s_add_u32 s13, s13, {WS_KVM}")
    add64(A, 30, S_WS, "s13")
    A("s_lshl_b32 s13, s12, 2")
    A(f"s_add_u32 s13, s13, {WS_H2FLAG}")
    add64(A, 52, S_WS, "s13")
    A("s_lshl_b32 s12, s9, 7")
    A(f"s_add_u32 s13, s12, {WS_KVPROG + kvg0 * 4096}")
    add64(A, 54, S_WS, "s13")
    A(f"s_add_u32 s13, s12, {WS_RPROG}")
    add64(A, 56, S_WS, "s13")
    A(f"s_mov_b32 s58, {64 if standalone else 0}")
    A(f"s_mov_b32 s59, {64 if standalone else 0}")
    A("s_lshl_b32 s26, s10, 10")
    A("s_mov_b32 s27, 0")
    A(f"s_mov_b32 s60, {f32bits(128 ** -0.5):#x}")
    A(f"s_mov_b32 s61, {f32bits(math.log2(math.e)):#x}")
    if not standalone:
        h_wait(A, 12)
    for k, ch in enumerate((2, 4, 3)):
        add64(A, 12, S_WS, WS_MOD + ch * 1152)
        for i in range(5): A(f"global_load_dword v{MODR+5*k+i}, v{L4}, s[12:13] offset:{256 * i} sc1")
    def hdma():
        seg_dma(A, T16, 20, 26)
        add64(A, 20, 20, na * SEG_H)
        A(f"s_xor_b32 s26, s26, {SEG_H}")
    assert SEG_H & 3072 == 0
    hdma()
    A("s_waitcnt vmcnt(0)")
    A("s_cmp_eq_u32 s11, 0")
    A("s_cbranch_scc1 L_a_top_s")
    for fast in (True, False):
        st = "" if fast else "sc1"; sfx = "f" if fast else "s"
        A.label(f"L_a_top_{sfx}")
        tr(A, 'top')
        A("s_add_u32 s25, s24, 1")
        cached_wait(A, 54, 25, 58, 8)
        for i in range(8): A(f"global_load_dwordx4 {v(KF + 4 * i, 4)}, v{L16}, s[22:23] offset:{i * 1024 - 4096}")
        A("s_and_b32 s12, s10, 1")
        A("s_lshl_b32 s12, s12, 12")
        A("s_add_u32 s12, s12, 4096")
        add64(A, 12, 22, "s12")
        for i in range(4): A(f"global_load_dwordx4 {v(VF + 4 * i, 4)}, v{L16}, s[12:13] offset:{i * 1024}")
        A("s_mov_b32 exec_hi, 0")
        A(f"global_load_dword v{XR+4}, v{L4}, s[34:35] offset:1024")
        A("s_mov_b64 exec, -1")
        for i in range(4): A(f"global_load_dword v{XR+i}, v{L4}, s[34:35] offset:{256 * i}")
        A(f"v_add_u32 v{HA}, s27, v{L16}")
        A("s_barrier")
        tr(A, 'go')
        D = Lds(A)
        ACC, RING, NR = 8, 24, 6
        seq = [(ks, tt) for ks in range(18) for tt in range(2)]
        def rd(i):
            ks, tt = seq[i]
            D.op(f"ds_read_b128 {v(RING + 4 * (i % NR), 4)}, v{HA} offset:{(tt * 18 + ks) * 1024}", i)
        for i in range(NR - 1): rd(i)
        hdma()
        A(f"s_xor_b32 s27, s27, {SEG_H}")
        for i, (ks, tt) in enumerate(seq):
            if i + NR - 1 < 36: rd(i + NR - 1)
            D.wait(i)
            for b in range(2):
                d = v(ACC + (b * 2 + tt) * 4, 4)
                A(f"{MF32} {d}, {u(wq(ks, b), 4)}, {v(RING + 4 * (i % NR), 4)}, {d if ks else 0}")
        for tt in range(2):
            for r in range(4): A(f"v_cvt_pk_bf16_f32 v{48+4*tt+r}, v{ACC+4*tt+r}, v{ACC+8+4*tt+r}")
            A(f"v_add_u32 v56, {LQ + tt * 4096}, v{T16}")
            A(f"ds_write_b128 v56, {v(48 + 4 * tt, 4)}")
        A("s_waitcnt lgkmcnt(0)")
        A("s_barrier")
        QF = 24
        for j in range(4): A(f"ds_read_b128 {v(QF + 4 * j, 4)}, v{QRD} offset:{j * 1024}")
        A("s_waitcnt vmcnt(9) lgkmcnt(0)")
        T0, T1, T2 = 8, 12, 16
        for j in range(4):
            for kt in range(2):
                d = v(T0 + 4 * kt, 4)
                A(f"{MF32} {d}, {v(KF + 4 * (kt * 4 + j), 4)}, {v(QF + 4 * j, 4)}, {d if j else 0}")
        consumed_wait(A, 40)
        tr(A, 'mm')
        def scale(r):
            if not EXP.get('nosr'): rnd2(A, r)
            A(f"v_pk_mul_f32 {v(r, 2)}, {v(r, 2)}, s[60:61] op_sel_hi:[1,0]")
            if not EXP.get('nosr'): rnd2(A, r)
        for r in range(T0, T0 + 8, 2): scale(r)
        for k in range(8): A(f"v_cndmask_b32 v{T0+k}, v{NEG}, v{T0+k}, s[{64+2*k}:{65+2*k}]")
        M, TT, SUM = 20, 21, 22
        A(f"v_max3_f32 v{M}, v8, v9, v10")
        A(f"v_max3_f32 v{M}, v{M}, v11, v12")
        A(f"v_max3_f32 v{M}, v{M}, v13, v14")
        A(f"v_max_f32 v{M}, v{M}, v15")
        lp = A.newlabel('L_km'); lok = A.newlabel('L_kmok')
        A("s_mov_b32 s12, 0")
        A.label(lp)
        A(f"global_load_dwordx4 v[40:43], v{T16}, s[30:31] sc1")
        A("s_add_u32 s12, s12, 1")
        A(f"s_cmp_gt_u32 s12, {SPIN_MAX}")
        A("s_cbranch_scc1 L_exit")
        A("s_waitcnt vmcnt(0)")
        A(f"ds_write2_b32 v{KMW}, v40, v41 offset0:0 offset1:72")
        A(f"ds_write_b64 v{VMW}, v[42:43]")
        A("v_max3_u32 v44, v40, v41, v42")
        A("v_max_u32 v44, v44, v43")
        A("v_cmp_eq_u32 vcc, -1, v44")
        A(f"s_cbranch_vccz {lok}")
        A("s_sleep 3")
        A(f"s_branch {lp}")
        A.label(lok)
        A("s_waitcnt lgkmcnt(0)")
        A("s_barrier")
        tr(A, 'flag')
        for j in range(4): A(f"ds_read_b128 {v(KM + 4 * j, 4)}, v{KMA} offset:{j * 64}")
        for i in range(2): A(f"ds_read_b64 {v(VM + 2 * i, 2)}, v{VOF} offset:{i * 512}")
        for j in range(4):
            A(f"s_waitcnt lgkmcnt({5 - j})")
            A(f"{MF32} {v(T2, 4)}, {v(KM + 4 * j, 4)}, {v(QF + 4 * j, 4)}, {v(T2, 4) if j else 0}")
        scale(T2)
        A(f"v_max3_f32 v{M}, v{M}, v16, v17")
        xsum(A, M, TT, op="v_max_f32", bits=(4, 5))
        for r in range(8, 18, 2): A(f"v_pk_add_f32 {v(r, 2)}, {v(r, 2)}, {v(M, 2)} op_sel_hi:[1,0] neg_lo:[0,1] neg_hi:[0,1]")
        for r in range(8, 18, 2): A(f"v_pk_mul_f32 {v(r, 2)}, {v(r, 2)}, s[60:61] op_sel:[0,1]")
        for r in range(8, 18): A(f"v_exp_f32 v{r}, v{r}")
        A(f"v_pk_add_f32 {v(SUM, 2)}, v[8:9], v[10:11]")
        for r in (12, 14, 16): A(f"v_pk_add_f32 {v(SUM, 2)}, {v(SUM, 2)}, {v(r, 2)}")
        A(f"v_add_f32 v{SUM}, v{SUM}, v{SUM+1}")
        xsum(A, SUM, TT, bits=(4, 5))
        A(f"v_rcp_f32 v{SUM}, v{SUM}")
        for r in range(8, 18, 2): A(f"v_pk_mul_f32 {v(r, 2)}, {v(r, 2)}, {v(SUM, 2)} op_sel_hi:[1,0]")
        BX, Z = 40, 44
        for q in range(4): A(f"v_cvt_pk_bf16_f32 v{BX+q}, v{8+2*q}, v{9+2*q}")
        A(f"v_cvt_pk_bf16_f32 v{Z}, v16, v17")
        A(f"v_mov_b32 v{Z+1}, 0")
        A(f"v_mov_b32 v{Z+2}, 0")
        A(f"v_mov_b32 v{Z+3}, v{Z}")
        OA = 24
        for t in range(4): A(f"{MF32} {v(OA + 4 * t, 4)}, {v(VF + 4 * t, 4)}, {v(BX, 4)}, 0")
        A("s_waitcnt lgkmcnt(0)")
        for t in range(4): A(f"{MF16} {v(OA + 4 * t, 4)}, {v(VM + 2 * (t >> 1), 2)}, {v(Z + 2 * (t & 1), 2)}, {v(OA + 4 * t, 4)}")
        for q in range(8): A(f"v_cvt_pk_bf16_f32 v{48+q}, v{OA+2*q}, v{OA+2*q+1}")
        A(f"ds_write_b128 v{OWR}, v[48:51]")
        A(f"ds_write_b128 v{OWR}, v[52:55] offset:1024")
        A("s_waitcnt lgkmcnt(0)")
        A("s_barrier")
        oa = Asm()
        A(f"v_add_u32 v{L16}, {LO}, v{L16}")
        out_proj(A, st, wo, LRED)
        A(f"v_subrev_u32 v{L16}, {LO}, v{L16}")
        A("s_cmp_lg_u32 s10, 0")
        A(f"s_cbranch_scc1 L_a_next_{sfx}")
        A(f"v_add_u32 v{L4}, {LRED // 2}, v{L4}")
        row_gather(A, 0)
        A(f"v_subrev_u32 v{L4}, {LRED // 2}, v{L4}")
        A("v_mov_b64 v[20:21], 0")
        for i in range(5):
            r = 8 + 2 * i
            if i == 4: A("s_mov_b32 exec_hi, 0")
            unpack(A, 18, MODR + i)
            A(f"v_pk_mul_f32 {v(r, 2)}, {v(r, 2)}, v[18:19]")
            rnd2(A, r)
            unpack(A, 18, XR + i)
            A(f"v_pk_add_f32 {v(r, 2)}, {v(r, 2)}, v[18:19]")
            A(f"v_cvt_pk_bf16_f32 v{24+i}, v{r}, v{r+1}")
            unpack(A, r, 24 + i)
            A(f"global_store_dword v{L4}, v{24+i}, s[36:37] offset:{256 * i} sc1")
            A(f"v_pk_add_f32 v[20:21], v[20:21], {v(r, 2)}")
        A("s_mov_b64 exec, -1")
        A("v_add_f32 v20, v20, v21")
        xsum(A, 20, 21)
        A(f"v_mul_f32 v20, {f32bits(1.0 / 576):#x}, v20")
        A("v_mov_b64 v[22:23], 0")
        for i in range(5):
            if i == 4: A("s_mov_b32 exec_hi, 0")
            A(f"v_pk_add_f32 v[18:19], {v(8 + 2 * i, 2)}, v[20:21] op_sel_hi:[1,0] neg_lo:[0,1] neg_hi:[0,1]")
            A("v_pk_fma_f32 v[22:23], v[18:19], v[18:19], v[22:23]")
        A("s_mov_b64 exec, -1")
        A("v_add_f32 v22, v22, v23")
        xsum(A, 22, 23)
        A(f"v_mul_f32 v22, {f32bits(1.0 / 576):#x}, v22")
        rnd1(A, 22); rnd1(A, 20)
        A(f"v_add_f32 v22, {f32bits(1e-5):#x}, v22")
        rnd1(A, 22)
        A("v_sqrt_f32 v22, v22")
        rnd1(A, 22)
        A("v_rcp_f32 v22, v22")
        for i in range(5):
            r = 8 + 2 * i
            if i == 4: A("s_mov_b32 exec_hi, 0")
            A(f"v_pk_add_f32 {v(r, 2)}, {v(r, 2)}, v[20:21] op_sel_hi:[1,0] neg_lo:[0,1] neg_hi:[0,1]")
            rnd2(A, r)
            A(f"v_pk_mul_f32 {v(r, 2)}, {v(r, 2)}, v[22:23] op_sel_hi:[1,0]")
            rnd2(A, r)
            unpack(A, 18, MODR + 5 + i)
            A(f"v_pk_mul_f32 {v(r, 2)}, {v(r, 2)}, v[18:19]")
            rnd2(A, r)
            unpack(A, 18, MODR + 10 + i)
            A(f"v_pk_add_f32 {v(r, 2)}, {v(r, 2)}, v[18:19]")
            A(f"v_cvt_pk_bf16_f32 v{30+i}, v{r}, v{r+1}")
            A(f"global_store_dword v{H2A}, v{30+i}, s[38:39] offset:{256 * i} sc1")
        A("s_mov_b64 exec, 1")
        A("v_mov_b32 v18, 1")
        A("s_waitcnt vmcnt(0)")
        A(f"global_store_dword v{L4}, v18, s[52:53] sc1")
        A("s_mov_b64 exec, -1")
        A.label(f"L_a_next_{sfx}")
        tr(A, 'end'); tr_dump(A, EXP.get('aftrace', 0))
        add64(A, 34, 34, na * SEG_H); add64(A, 36, 36, na * SEG_H); add64(A, 38, 38, na * SEG_H)
        add64(A, 22, 22, na << 19); add64(A, 30, 30, na << 17); add64(A, 52, 52, na * 128)
        A(f"s_add_u32 s24, s24, {na}")
        A("s_cmp_lt_u32 s24, 64")
        A(f"s_cbranch_scc1 L_a_top_{sfx}")
        tl(A, 4)
        A("s_branch L_exit")

def WFF(i): return 256 + 4 * i if i < 64 else 80 + 4 * (i - 64)

def role_f(A, nf, fg0, standalone=False):
    LG8, LW16, LRING = 0, 36864, 57344
    LH2, LACT = LRING, LRING + 40960
    LRED = LACT + 12288
    A(f"s_load_dwordx4 s[16:19], s[0:1], {KA_WG}")
    A(f"s_load_dwordx2 s[20:21], s[0:1], {KA_WD}")
    A(f"s_load_dwordx2 s[34:35], s[0:1], {KA_OUT}")
    dense256_consts(A, 12, 16, 9216, 1)
    dense128_consts(A, 20, 18, 1)
    lane_const(A, 24, lambda t: (t >> 1) * 9216 + (t & 1) * 16 + 256, tmp=1)
    lane_const(A, 25, lambda t: t * 16, tmp=1)
    A("s_mul_i32 s12, s9, 288")
    A("s_waitcnt lgkmcnt(0)")
    add64(A, 16, 16, "s12"); add64(A, 18, 18, "s12")
    A(f"s_mul_i32 s12, s9, {144 * 1152}")
    add64(A, 20, 20, "s12")
    A("s_lshl_b32 s26, s10, 10")
    for m in range(2):
        for i in range(5):
            if i == 4:
                A("s_cmp_ge_u32 s10, 2"); l = A.newlabel('L_f8'); A(f"s_cbranch_scc1 {l}")
            add64(A, 12, 16 + 2 * m, i * 128 * 9216)
            A(f"s_add_u32 m0, s26, {LG8 + m * 18432 + i * 4096}")
            A("global_load_lds_dwordx4 v24, s[12:13]")
            if i == 4: A.label(l)
    for i in range(5):
        if i == 4:
            A("s_cmp_ge_u32 s10, 2"); l = A.newlabel('L_f16'); A(f"s_cbranch_scc1 {l}")
        add64(A, 12, 20, 128 * 1152 + i * 4096)
        A(f"s_add_u32 m0, s26, {LW16 + i * 4096}")
        A("global_load_lds_dwordx4 v25, s[12:13]")
        if i == 4: A.label(l)
    def wg(m, ks, b): return WFF(ks * 4 + m * 2 + b)
    def wd(t, j): return WFF(72 + t * 4 + j)
    chunks = []
    for c in range(9):
        for m in range(2):
            chunks.append(dict(ptr=16 + 2 * m, off=c * 64 * 9216, vb=12, reads=dense256_reads(lambda ks, b, m=m: wg(m, ks, b), 16, c)))
    chunks += [dict(ptr=20, off=t * 128, vb=20, reads=dense128_reads(wd, 18, t)) for t in range(9)]
    ring_load(A, chunks, nslots=6, lbase=LRING)
    tl(A, 1)
    mode_check(A, tv=12)
    af_consts(A, LRED)
    A(f"v_lshlrev_b32 v{T16}, 4, v0")
    A(f"s_sub_u32 s24, s8, {fg0}")
    A(f"s_mul_i32 s12, s24, {SEG_H}")
    A(f"s_add_u32 s13, s12, {WS_H2}")
    add64(A, 20, S_WS, "s13")
    A("s_mul_i32 s13, s9, 1152")
    A("s_add_u32 s12, s12, s13")
    add64(A, 34, 34, "s12")
    A(f"s_add_u32 s13, s12, {WS_X1}")
    add64(A, 36, S_WS, "s13")
    A("s_lshl_b32 s13, s24, 7")
    A(f"s_add_u32 s13, s13, {WS_H2FLAG}")
    add64(A, 52, S_WS, "s13")
    add64(A, 54, S_WS, WS_MOD + 5 * 1152)
    A("s_lshl_b32 s26, s10, 10")
    A(f"s_add_u32 s26, s26, {LH2}")
    A("s_mov_b32 s25, 1")
    A(f"s_mov_b32 s60, {f32bits(-math.log2(math.e)):#x}")
    A("s_cmp_ge_u32 s10, 2")
    A("s_cselect_b64 s[62:63], -1, 0")
    A("s_cmp_eq_u32 s11, 0")
    A("s_cbranch_scc1 L_f_top_s")
    for fast in (True, False):
        st = "" if fast else "sc1"; sfx = "f" if fast else "s"
        A.label(f"L_f_top_{sfx}")
        tr(A, 'top')
        consumed_wait(A, 8)
        if not standalone:
            A(f"v_and_b32 v8, 0x7c, v{L4}")
            flag_wait(A, 8, 52, 25, 9, 12, sleep=3)
        tr(A, 'flag')
        seg_dma(A, T16, 20, 26)
        HA, G8A, AW = 72, 76, 77
        A(f"v_lshrrev_b32 v78, 4, v{T16}")
        for ttl in range(2):
            for par in range(2):
                r = HA + 2 * ttl + par
                lane_const(A, r, lambda t: LH2 + (t & 15) * 1152 + ((ttl ^ (t >> 6)) & 1) * 18432, src=78, tmp=8)
                lane_const(A, r, lambda t: ((4 * par + ((t >> 4) & 3)) ^ ((t & 15) >> 1)) * 16, src=78, tmp=8, acc=True)
        lane_const(A, G8A, lambda t: LG8 + (t >> 7) * 18432 + ((t >> 4) & 3) * 256 + (t & 15) * 8, src=78, tmp=8)
        lane_const(A, AW, lambda t: LACT + t * 16 + ((t >> 6) & 1) * 4096, src=78, tmp=8)
        A("s_waitcnt vmcnt(0)")
        A("s_barrier")
        tr(A, 'go')
        def swiglu(g, u_, dst, t0, pk):
            B = Asm()
            for r in (0, 2):
                rnd2(B, g + r); rnd2(B, u_ + r)
                if pk: B(f"v_pk_mul_f32 {v(t0, 2)}, {v(g + r, 2)}, s[60:61] op_sel_hi:[1,0]")
                else:
                    for q in range(2): B(f"v_mul_f32 v{t0+q}, s60, v{g+r+q}")
                for q in range(2): B(f"v_exp_f32 v{t0+q}, v{t0+q}")
                if pk: B(f"v_pk_add_f32 {v(t0, 2)}, {v(t0, 2)}, 1.0 op_sel_hi:[1,0]")
                else:
                    for q in range(2): B(f"v_add_f32 v{t0+q}, 1.0, v{t0+q}")
                for q in range(2): B(f"v_rcp_f32 v{t0+q}, v{t0+q}")
                if pk: B(f"v_pk_mul_f32 {v(g + r, 2)}, {v(g + r, 2)}, {v(t0, 2)}")
                else:
                    for q in range(2): B(f"v_mul_f32 v{g+r+q}, v{g+r+q}, v{t0+q}")
                rnd2(B, g + r)
                if pk: B(f"v_pk_mul_f32 {v(g + r, 2)}, {v(g + r, 2)}, {v(u_ + r, 2)}")
                else:
                    for q in range(2): B(f"v_mul_f32 v{g+r+q}, v{g+r+q}, v{u_+r+q}")
                B(f"v_cvt_pk_bf16_f32 v{dst + r // 2}, v{g+r}, v{g+r+1}")
            return [i.text.strip() for i in B.ins]
        D = Lds(A)
        RING, NR = 48, 4
        seq = [(ttl, ks) for ttl in range(2) for ks in range(18)]
        def rd(i):
            ttl, ks = seq[i]
            D.op(f"ds_read_b128 {v(RING + 4 * (i % NR), 4)}, v{HA + 2 * ttl + (ks & 1)} offset:{(ks >> 1) * 128}", i)
        def rd9(ks):
            for hq in range(2):
                D.op(f"ds_read_b64_tr_b16 {v(24 + 4 * (ks % 4) + 2 * hq, 2)}, v{G8A} offset:{ks * 1024 + hq * 128}", ('w9', ks))
        def ac(m, b, ttl): return 8 + 16 * ttl + (m * 2 + b) * 4
        for i in range(NR - 1): rd(i); rd9(i)
        vq = []
        for i, (ttl, ks) in enumerate(seq):
            D.wait(i)
            h = v(RING + 4 * (i % NR), 4)
            if i == 20:
                for b in range(2): vq += swiglu(ac(0, b, 0), ac(1, b, 0), 64 + 2 * b, 70, False)
                vq.append(f"ds_write_b128 v{AW}, v[64:67]")
                B = Asm()
                rnd2(B, 40); rnd2(B, 42)
                for q in range(4): B(f"v_mul_f32 v{44+q}, s60, v{40+q}")
                for q in range(4): B(f"v_exp_f32 v{44+q}, v{44+q}")
                for q in range(4): B(f"v_add_f32 v{44+q}, 1.0, v{44+q}")
                for q in range(4): B(f"v_rcp_f32 v{44+q}, v{44+q}")
                for q in range(4): B(f"v_mul_f32 v{44+q}, v{40+q}, v{44+q}")
                rnd2(B, 44); rnd2(B, 46)
                for q in range(4): B(f"v_cndmask_b32 v{40+q}, v{44+q}, v{40+q}, s[62:63]")
                B(f"v_add_u32 v70, {LACT + 8192}, v{T16}")
                B("ds_write_b128 v70, v[40:43]")
                vq += [x.text.strip() for x in B.ins]
            k4 = 0
            for m in range(2):
                for b in range(2):
                    d = v(ac(m, b, ttl), 4)
                    A(f"{MF32} {d}, {u(wg(m, ks, b), 4)}, {h}, {d if ks else 0}")
                    if k4 == 0 and i + NR - 1 < 36: rd(i + NR - 1)
                    if k4 == 1 and ttl == 0 and ks + 3 < 18: rd9(ks + 3)
                    k4 += 1
                    for _ in range(2):
                        if vq:
                            o = vq.pop(0)
                            if o.startswith('ds_'): D.op(o)
                            else: A(o)
            if ttl == 0:
                D.wait(('w9', ks))
                A(f"{MF32} v[40:43], {v(24 + 4 * (ks % 4), 4)}, {h}, {'v[40:43]' if ks else 0}")
        for o in vq: A(o)
        tr(A, 'mm')
        o0 = swiglu(24, 32, 48, 52, True); o1 = swiglu(28, 36, 50, 54, True)
        for a_, b_ in zip(o0, o1): A(a_); A(b_)
        A(f"v_xor_b32 v{AW}, 4096, v{AW}")
        A(f"ds_write_b128 v{AW}, v[48:51]")
        lane_const(A, 27, lambda t: LW16 + (4 * ((t >> 4) & 3) + ((t >> 2) & 3)) * 1152 + (t >> 6) * 32 + (t & 3) * 8, src=78, tmp=8)
        A("s_waitcnt lgkmcnt(0)")
        A("s_barrier")
        A(f"v_add_u32 v{L16}, {LACT}, v{L16}")
        out_proj(A, st, wd, LRED, k16=(8192, 27))
        A(f"v_subrev_u32 v{L16}, {LACT}, v{L16}")
        A("s_cmp_lg_u32 s10, 0")
        A(f"s_cbranch_scc1 L_f_next_{sfx}")
        for i in range(5):
            if i == 4: A("s_mov_b32 exec_hi, 0")
            A(f"global_load_dword v{50+i}, v{L4}, s[54:55] offset:{256 * i}")
            A(f"global_load_dword v{56+i}, v{L4}, s[36:37] offset:{256 * i}")
        A("s_mov_b64 exec, -1")
        A(f"v_add_u32 v{L4}, {LRED // 2}, v{L4}")
        row_gather(A, 0)
        A(f"v_subrev_u32 v{L4}, {LRED // 2}, v{L4}")
        A("s_waitcnt vmcnt(0)")
        for i in range(5):
            r = 8 + 2 * i
            if i == 4: A("s_mov_b32 exec_hi, 0")
            unpack(A, 18, 50 + i)
            A(f"v_pk_mul_f32 {v(r, 2)}, {v(r, 2)}, v[18:19]")
            rnd2(A, r)
            unpack(A, 18, 56 + i)
            A(f"v_pk_add_f32 {v(r, 2)}, {v(r, 2)}, v[18:19]")
            A(f"v_cvt_pk_bf16_f32 v{24+i}, v{r}, v{r+1}")
            A(f"global_store_dword v{L4}, v{24+i}, s[34:35] offset:{256 * i}")
        A("s_mov_b64 exec, -1")
        A.label(f"L_f_next_{sfx}")
        tr(A, 'end'); tr_dump(A, EXP.get('aftrace', 0))
        add64(A, 20, 20, nf * SEG_H); add64(A, 34, 34, nf * SEG_H); add64(A, 36, 36, nf * SEG_H); add64(A, 52, 52, nf * 128)
        A(f"s_add_u32 s24, s24, {nf}")
        A("s_cmp_lt_u32 s24, 64")
        A(f"s_cbranch_scc1 L_f_top_{sfx}")
        tl(A, 4)
        A("s_branch L_exit")
```

```python
from common import *
import math

def stage_mod(A, idx_s):
    A(f"s_load_dwordx4 s[16:19], s[0:1], {KA_C}")
    lane_const(A, 2, lambda t: (t >> 3) * 6912 + (t & 7) * 16, tmp=1)
    lane_const(A, 3, lambda t: (t >> 3) * 2, tmp=1)
    A(f"s_lshl_b32 s12, {idx_s}, 7")
    A("s_waitcnt lgkmcnt(0)")
    add64(A, 18, 18, "s12")
    for i in range(18): A(f"global_load_ushort v{8+i}, v3, s[16:17] offset:{64 * i}")
    for i in range(18):
        A(f"global_load_dwordx4 {v(40 + 4 * i, 4)}, v2, s[18:19]")
        if i < 17: add64(A, 18, 18, 32 * 6912)
    A(f"s_mov_b32 s12, {f32bits(-math.log2(math.e)):#x}")
    A("s_waitcnt vmcnt(18)")
    for i in range(18):
        r = 8 + i
        A(f"v_lshlrev_b32 v{r}, 16, v{r}")
        A(f"v_mul_f32 v4, s12, v{r}")
        A("v_exp_f32 v4, v4")
        A("v_add_f32 v4, 1.0, v4")
        A("v_rcp_f32 v4, v4")
        A(f"v_mul_f32 v{r}, v{r}, v4")
        rnd1(A, r)
    for k in range(8): A(f"v_mov_b32 v{28+k}, 0")
    for i in range(18):
        A(f"s_waitcnt vmcnt({17 - i})")
        for q in range(4):
            A(f"v_lshlrev_b32 v4, 16, v{40+4*i+q}")
            A(f"v_and_b32 v5, 0xffff0000, v{40+4*i+q}")
            A(f"v_fmac_f32 v{28+2*q}, v4, v{8+i}")
            A(f"v_fmac_f32 v{29+2*q}, v5, v{8+i}")
    A("v_lshlrev_b32 v4, 5, v0")
    A("ds_write_b128 v4, v[28:31]")
    A("ds_write_b128 v4, v[32:35] offset:16")
    A("s_waitcnt lgkmcnt(0)")
    A("s_barrier")
    l = A.newlabel('L_md')
    A("s_cmp_lg_u32 s10, 0")
    A(f"s_cbranch_scc1 {l}")
    A("v_lshlrev_b32 v4, 2, v0")
    for i in range(32): A(f"ds_read_b32 v{8+i}, v4 offset:{256 * i}")
    A("s_waitcnt lgkmcnt(0)")
    for st in (16, 8, 4, 2, 1):
        for i in range(st): A(f"v_add_f32 v{8+i}, v{8+i}, v{8+i+st}")
    rnd1(A, 8)
    A("v_add_f32 v9, 1.0, v8")
    A(f"s_sub_u32 s12, {idx_s}, 9")
    A(f"s_sub_u32 s13, {idx_s}, 36")
    A("s_min_u32 s12, s12, s13")
    A("s_cmp_lt_u32 s12, 9")
    A("s_cselect_b64 vcc, -1, 0")
    A("v_cndmask_b32 v8, v8, v9, vcc")
    A("v_cvt_pk_bf16_f32 v8, v8, v8")
    A(f"s_lshl_b32 s12, {idx_s}, 7")
    A("v_lshl_add_u32 v4, v0, 1, s12")
    A(f"global_store_short v4, v8, s[4:5] offset:{WS_MOD} sc1")
    A("s_waitcnt vmcnt(0)")
    A.label(l)
    counter_arrive(A, DBG_MODCNT, tv=4)
    A("s_barrier")

def stage_ln1(A, idx_s):
    lsk = A.newlabel('L_lnskip')
    A("s_mul_i32 s15, s10, 96")
    A(f"s_add_u32 s15, s15, {idx_s}")
    A("s_cmp_ge_u32 s15, 128")
    A(f"s_cbranch_scc1 {lsk}")
    X = 16
    A(f"s_load_dwordx2 s[16:17], s[0:1], {KA_X}")
    lane_const(A, 2, lambda t: (t & 15) * 1152 + ((t >> 4) & 3) * 16, tmp=1)
    lane_const(A, 3, lambda t: ((t >> 4) & 3) * 16, tmp=1)
    lane_const(A, 4, lambda t: (t & 63) * 16, tmp=1)
    A("s_mul_i32 s12, s15, 18432")
    A("s_waitcnt lgkmcnt(0)")
    add64(A, 16, 16, "s12")
    A(f"s_add_u32 s12, s12, {WS_H}")
    add64(A, 18, S_WS, "s12")
    for ks in range(18): A(f"global_load_dwordx4 {v(160 + 4 * ks, 4)}, v2, s[16:17] offset:{64 * ks}")
    A("v_mov_b64 v[6:7], 0")
    for ks in range(18):
        A(f"s_waitcnt vmcnt({17 - ks})")
        for q in range(4):
            r = X + 8 * ks + 2 * q
            A(f"v_lshlrev_b32 v{r}, 16, v{160+4*ks+q}")
            A(f"v_and_b32 v{r+1}, 0xffff0000, v{160+4*ks+q}")
            A(f"v_pk_add_f32 v[6:7], v[6:7], {v(r, 2)}")
    A("v_add_f32 v6, v6, v7")
    xsum(A, 6, 7, bits=(4, 5))
    A(f"v_mul_f32 v6, {f32bits(1.0 / 576):#x}, v6")
    A("v_mov_b64 v[8:9], 0")
    for i in range(72):
        A(f"v_pk_add_f32 v[10:11], {v(X + 2 * i, 2)}, v[6:7] op_sel_hi:[1,0] neg_lo:[0,1] neg_hi:[0,1]")
        A("v_pk_fma_f32 v[8:9], v[10:11], v[10:11], v[8:9]")
    A("v_add_f32 v8, v8, v9")
    xsum(A, 8, 9, bits=(4, 5))
    A(f"v_mul_f32 v8, {f32bits(1.0 / 576):#x}, v8")
    rnd1(A, 8); rnd1(A, 6)
    A(f"v_add_f32 v8, {f32bits(1e-5):#x}, v8")
    rnd1(A, 8)
    A("v_sqrt_f32 v8, v8")
    rnd1(A, 8)
    A("v_rcp_f32 v8, v8")
    for i in range(72):
        r = X + 2 * i
        A(f"v_pk_add_f32 {v(r, 2)}, {v(r, 2)}, v[6:7] op_sel_hi:[1,0] neg_lo:[0,1] neg_hi:[0,1]")
        rnd2(A, r)
        A(f"v_pk_mul_f32 {v(r, 2)}, {v(r, 2)}, v[8:9] op_sel_hi:[1,0]")
        rnd2(A, r)
    tl(A, 5, 10)
    counter_wait(A, DBG_MODCNT, 54, tv=10, sleep=8, one=False)
    tl(A, 6, 10)
    def mload(bt):
        for k in range(6):
            ks = 6 * bt + k; rb = 160 + 48 * (bt & 1) + 8 * k
            A(f"global_load_dwordx4 {v(rb, 4)}, v3, s[4:5] offset:{WS_MOD + 1152 + 64 * ks} sc1")
            A(f"global_load_dwordx4 {v(rb + 4, 4)}, v3, s[4:5] offset:{WS_MOD + 64 * ks} sc1")
    mload(0); mload(1)
    for bt in range(3):
        A(f"s_waitcnt vmcnt({12 if bt < 2 else 0})")
        for k in range(6):
            ks = 6 * bt + k; rb = 160 + 48 * (bt & 1) + 8 * k
            for q in range(4):
                r = X + 8 * ks + 2 * q
                A(f"v_lshlrev_b32 v10, 16, v{rb+q}")
                A(f"v_and_b32 v11, 0xffff0000, v{rb+q}")
                A(f"v_lshlrev_b32 v12, 16, v{rb+4+q}")
                A(f"v_and_b32 v13, 0xffff0000, v{rb+4+q}")
                A(f"v_pk_mul_f32 {v(r, 2)}, {v(r, 2)}, v[10:11]")
                rnd2(A, r)
                A(f"v_pk_add_f32 {v(r, 2)}, {v(r, 2)}, v[12:13]")
                A(f"v_cvt_pk_bf16_f32 v{X+8*ks+q}, v{r}, v{r+1}")
            if bt == 2:
                for kk in (k, 6 + k, 12 + k):
                    add64(A, 12, 18, kk * 1024)
                    A(f"global_store_dwordx4 v4, {v(X + 8 * kk, 4)}, s[12:13] sc1")
        if bt == 0: mload(2)
    mode_check(A, tv=10)
    A("s_lshl_b32 s12, s15, 2")
    A(f"s_add_u32 s12, s12, {WS_HINT}")
    A("v_mov_b32 v10, s12")
    A("v_mov_b32 v11, 1")
    A("s_mov_b64 exec, 1")
    A("global_store_dword v10, v11, s[4:5] sc1")
    A("s_mov_b64 exec, -1")
    A.label(lsk)
    A("s_barrier")

def WF(i):
    return 256 + 4 * i if i < 64 else 224 + 4 * (i - 64)

def role_kv(A, restart, nkv, kvg0, wait_h=True):
    A(f"s_load_dwordx4 s[16:19], s[0:1], {KA_WK}")
    dense256_consts(A, 12, 16, 8192, 1)
    A("s_lshl_b32 s12, s9, 8")
    A("s_waitcnt lgkmcnt(0)")
    add64(A, 16, 16, "s12"); add64(A, 18, 18, "s12")
    def fr(m, ks, b): return WF(ks * 4 + m * 2 + b)
    chunks = []
    for c in range(9):
        for m in range(2):
            chunks.append(dict(ptr=16 + 2 * m, off=c * 64 * 8192, vb=12, reads=dense256_reads(lambda ks, b, m=m: fr(m, ks, b), 16, c)))
    ring_load(A, chunks)
    tl(A, 1)
    mode_check(A, tv=12)
    T16, L16, HA = 1, 2, 3
    A(f"v_lshlrev_b32 v{T16}, 4, v0")
    lane_const(A, L16, lambda t: (t & 63) * 16, tmp=12)
    A(f"s_sub_u32 s24, s8, {kvg0}")
    A(f"s_mul_i32 s12, s24, {SEG_H}")
    A(f"s_add_u32 s12, s12, {WS_H}")
    add64(A, 20, S_WS, "s12")
    A("s_lshl_b32 s12, s24, 5")
    A("s_add_u32 s12, s12, s9")
    A("s_lshl_b32 s12, s12, 14")
    A(f"s_add_u32 s12, s12, {WS_KV + 2048}")
    add64(A, 22, S_WS, "s12")
    A("s_lshl_b32 s13, s10, 11")
    A("s_add_u32 s12, s12, s13")
    A("s_add_u32 s12, s12, 6144")
    add64(A, 30, S_WS, "s12")
    A("s_lshl_b32 s12, s8, 5")
    A("s_add_u32 s12, s12, s9")
    A("s_lshl_b32 s12, s12, 5")
    A("s_add_u32 s12, s12, s10")
    A("s_lshl_b32 s12, s12, 2")
    A(f"s_add_u32 s12, s12, {WS_KVPROG}")
    add64(A, 32, S_WS, "s12")
    A("s_lshl_b32 s26, s10, 10")
    A("s_mov_b32 s27, 0")
    A("s_mov_b32 s28, 0")
    A("s_mov_b32 s29, 0")
    if wait_h: h_wait(A, 12)
    tl(A, 2)
    def adv():
        add64(A, 20, 20, nkv * SEG_H)
        A(f"s_add_u32 s26, s26, {SEG_H}")
        A(f"s_cmp_ge_u32 s26, {3 * SEG_H}")
        A(f"s_cselect_b32 s12, {3 * SEG_H}, 0")
        A("s_sub_u32 s26, s26, s12")
    for _ in range(2):
        seg_dma(A, T16, 20, 26); adv()
    A("s_waitcnt vmcnt(9)")
    A("s_branch L_kv_first")
    A.label("L_kv_top")
    A("s_waitcnt vmcnt(14)")
    A.label("L_kv_first")
    A("s_barrier")
    A(f"v_add_u32 v{HA}, s27, v{L16}")
    A("v_mov_b32 v4, s28")
    D = Lds(A)
    ACC, RING, NR = 8, 40, 6
    seq = [(ks, tt) for ks in range(18) for tt in range(2)]
    def rd(i):
        ks, tt = seq[i]
        D.op(f"ds_read_b128 {v(RING + 4 * (i % NR), 4)}, v{HA} offset:{(tt * 18 + ks) * 1024}", i)
    for i in range(NR - 1): rd(i)
    A("s_mov_b64 s[12:13], s[20:21]")
    for i, (ks, tt) in enumerate(seq):
        if i + NR - 1 < 36: rd(i + NR - 1)
        D.wait(i)
        h = v(RING + 4 * (i % NR), 4)
        for m in range(2):
            for b in range(2):
                d = v(ACC + ((m * 2 + b) * 2 + tt) * 4, 4)
                w = u(fr(m, ks, b), 4)
                A(f"{MF32} {d}, {w if m == 0 else h}, {h if m == 0 else w}, {d if ks else 0}")
                if i < 9 and (m, b) == (0, 0): A(f"s_add_u32 m0, s26, {i * 4096}")
                if i < 9 and (m, b) == (0, 1): A(f"global_load_lds_dwordx4 v{T16}, s[12:13]")
                if i < 8 and (m, b) == (1, 0): add64(A, 12, 12, 4096)
                if i == 10 and (m, b) == (0, 0): adv()
                if i == 20 and (m, b) == (0, 0):
                    A("s_waitcnt vmcnt(9)")
                    A("s_mov_b64 exec, 1")
                    A(f"global_store_dword v{L16}, v4, s[32:33] sc1")
                    A("s_mov_b64 exec, -1")
    def ac(m, b, tt): return ACC + ((m * 2 + b) * 2 + tt) * 4
    O = 64
    for tt in range(2):
        for r in range(4): A(f"v_cvt_pk_bf16_f32 v{O+4*tt+r}, v{ac(0,0,tt)+r}, v{ac(0,1,tt)+r}")
        A(f"global_store_dwordx4 v{T16}, {v(O + 4 * tt, 4)}, s[22:23] offset:{tt * 4096 - 2048} sc1")
    for b in range(2):
        for q in range(4): A(f"v_cvt_pk_bf16_f32 v{O+8+4*b+q}, v{ac(1,b,q>>1)+2*(q&1)}, v{ac(1,b,q>>1)+2*(q&1)+1}")
        A(f"global_store_dwordx4 v{L16}, {v(O + 8 + 4 * b, 4)}, s[30:31] offset:{b * 1024} sc1")
    add64(A, 22, 22, nkv << 19); add64(A, 30, 30, nkv << 19)
    A(f"s_add_u32 s27, s27, {SEG_H}")
    A(f"s_cmp_ge_u32 s27, {3 * SEG_H}")
    A("s_cselect_b32 s27, 0, s27")
    A("s_add_u32 s28, s28, 1")
    A(f"s_add_u32 s24, s24, {nkv}")
    A("s_cmp_lt_u32 s24, 64")
    A("s_cbranch_scc1 L_kv_top")
    A("s_waitcnt vmcnt(0)")
    tl(A, 4)
    A("v_mov_b32 v4, s28")
    A("s_mov_b64 exec, 1")
    A(f"global_store_dword v{L16}, v4, s[32:33] sc1")
    A("s_branch L_exit")
```

```python
from common import *
import math, struct

L_MEM, L_KX, L_VX = 0, 9216, 17408
L_QL, L_KL, L_OL = 25600, 27904, 30208
L_JUNK = 32256
L_WK = 32768
QSTR = 288
KL0 = L_KL - L_QL
T16, WKB, L16, MEMR, QR, QKW, OW, IDX = range(0, 8)
TMPC = WKB
def WQ(ks, b): return 256 + (ks * 2 + b) * 8
def WV(ks, b):
    i = ks * 2 + b
    return 400 + i * 8 if i < 14 else 64 + (i - 14) * 8
def WO(t, k2): return 96 + (t * 2 + k2) * 8
def WK8(b): return 240 + b * 8
ACCV0, ACCQ, ACCK, MRING, WRING, ACCV1 = 8, 12, 20, 28, 40, 40
SMF = "v_smfmac_f32_16x16x64_bf16"
MF32 = "v_mfma_f32_16x16x32_bf16"
MF16 = "v_mfma_f32_16x16x16_bf16"
IDQ = "quad_perm:[0,1,2,3]"
ROR8 = "row_ror:8 row_mask:0xf bank_mask:0xf"
def FSW(i): return 2 * (0, 2, 3, 1)[i >> 1] + (i & 1)
def img(i, pos): return i * 128 + ((pos ^ FSW(i)) * 16)
PI = [0, 1, 4, 5, 2, 3, 6, 7]
EXP = {}
PF = 1
ORD = [8, 0, 1, 2, 3, 4, 5, 6, 7]

WORD = [8, 0, 1, 2, 3, 4, 5, 6, 7]
def swap_tab():
    nsw = EXP.get('nsw', 0)
    return list(zip([4, 7, 10, 13, 15, 1][:nsw], [3, 7, 10, 13, 16, 0][:nsw]))
def wo_reg(k): return WO(WORD[k // 2], k & 1)
def wk_off(n): return L_WK + (n >> 1) * 16384 + (n & 1) * 8192

def r_swap(A):
    for n, k in swap_tab():
        A(f"v_lshlrev_b32 v12, 4, v0")
        A(f"v_add_u32 v12, {wk_off(n)}, v12")
        A("ds_read_b128 v[16:19], v12")
        A("ds_read_b128 v[20:23], v12 offset:4096")
        A("s_waitcnt lgkmcnt(0)")
        r = wo_reg(k)
        A(f"ds_write_b128 v12, {v(r, 4)}")
        A(f"ds_write_b128 v12, {v(r + 4, 4)} offset:4096")
        A("s_waitcnt lgkmcnt(0)")
        for q in range(0, 8, 2): A(f"v_mov_b64 {v(r + q, 2)}, {v(16 + q, 2)}")

def r_setup(A):
    A(f"s_load_dwordx4 s[16:19], s[0:1], {KA_WQ}")
    A(f"s_load_dwordx4 s[20:23], s[0:1], {KA_WV}")
    A(f"s_load_dwordx2 s[24:25], s[0:1], {KA_MEM0}")
    def swz(lr): return 2 * ((lr & 1) | ((lr >> 3) & 1) << 1 | ((lr >> 5) & 1) << 2)
    def swz2(row): return 2 * (((row >> 2) & 1) | ((row >> 4) & 1) << 1)
    for ip in range(4):
        def fq(t, last=False):
            w, l = t >> 6, t & 63
            lr = 16 * w + 4 * ip + (l >> 4); e, pos = lr >> 3, lr & 7
            d = 512 + 8 * pos + e if last else 64 * (e & 1) + 4 * pos + (e >> 1)
            return d * 8192 + (((l & 15) ^ swz(lr)) * 16)
        lane_const(A, 12 + ip, fq, tmp=1)
        lane_const(A, 16 + ip, lambda t: fq(t, True), tmp=1)
        lane_const(A, 20 + ip, lambda t: (32 * (t >> 6) + 8 * ip + ((t & 63) >> 3)) * 1152, tmp=1)
        lane_const(A, 20 + ip, lambda t: ((t & 7) ^ swz2(32 * (t >> 6) + 8 * ip + ((t & 63) >> 3))) * 16, tmp=1, acc=True)
    def ftr(t, b):
        w, l = t >> 6, t & 63
        gb, half, bp, c = l >> 4, (l >> 3) & 1, (l >> 2) & 1, l & 3
        lr = 32 * (gb & 1) + 8 * bp + 2 * (gb >> 1) + half
        return L_WK + lr * 256 + (((4 * w + 2 * b + (c >> 1)) ^ swz(lr)) * 16) + (c & 1) * 8
    lane_const(A, 24, lambda t: ftr(t, 0), tmp=1)
    lane_const(A, 25, lambda t: ftr(t, 1), tmp=1)
    def fto(t):
        w, l = t >> 6, t & 63
        gb, half, bp, c = l >> 4, (l >> 3) & 1, (l >> 2) & 1, l & 3
        row = 16 * (gb & 1) + 8 * (gb >> 1) + 4 * half + bp
        return L_WK + row * 128 + (((2 * w + (c >> 1)) ^ swz2(row)) * 16) + (c & 1) * 8
    lane_const(A, 26, fto, tmp=1)
    lane_const(A, 27, lambda t: L_WK + t * 16, tmp=1)
    A("s_waitcnt lgkmcnt(0)")
    A("s_lshl_b32 s12, s9, 8")
    for p in (16, 18, 20):
        add64(A, p, p, "s12")
    A("s_mul_i32 s12, s9, 147456")
    add64(A, 22, 22, "s12")
    A("s_lshl_b32 s26, s10, 12")
    A(f"s_add_u32 s26, s26, {L_WK}")
    chunks = [('q', k) for k in range(9)] + [('v', k) for k in range(9)] + [('o', t) for t in range(9)] + [('k', 7)] + [('k', ORD[j % 8]) for j in range(28, 36)]
    ptr = {'q': 16, 'k': 18, 'v': 20, 'o': 22}
    def issue(j):
        m, k = chunks[j]
        slot = j % 8
        if m == 'o': off, vb = k * 128, 20
        elif k < 8: off, vb = (128 * (k >> 1) + 32 * (k & 1)) * 8192, 12
        else: off, vb = 0, 16
        add64(A, 12, ptr[m], off)
        for ip in range(4):
            A(f"s_add_u32 m0, s26, {slot * 16384 + ip * 1024}")
            A(f"global_load_lds_dwordx4 v{vb+ip}, s[12:13]")
    def fd(m, t): return 256 * m + t if m < 2 else 512 + (t & 63)
    def fa(m, t):
        d = fd(m, t)
        if d < 512: ks, e, pos = 2 * (d >> 7) + ((d >> 5) & 1), 2 * (d & 3) + ((d >> 6) & 1), (d >> 2) & 7
        else: ks, e, pos = 8, d & 7, (d >> 3) & 7
        return ks * 1024 + pos * 16 + e * 2
    def mem0_issue():
        for m in range(3):
            lane_const(A, 4 + m, lambda t: 2 * fd(m, t), tmp=1)
            lane_const(A, 8 + m, lambda t: fa(m, t), tmp=1)
            for i in range(8):
                A(f"v_add_u32 v2, {i * 1152}, v{4+m}")
                A(f"global_load_ushort v{32+8*m+i}, v2, s[24:25]")
    def mem0_write():
        for m in range(3):
            for i in range(8):
                A(f"v_xor_b32 v2, {FSW(i) * 16}, v{8+m}")
                A(f"ds_write_b16 v2, v{32+8*m+i} offset:{L_MEM + i * 128}")
    def status0():
        lane_const(A, 2, lambda t: arr_word(t & 7) * 4, tmp=1)
        A("global_load_dword v4, v2, s[6:7] sc1")
    def status_issue():
        A("s_lshl_b32 s12, s9, 7")
        A(f"s_add_u32 s12, s12, {WS_KVPROG + 4096}")
        A("v_mov_b32 v2, s12")
        A("global_load_dwordx4 v[8:11], v2, s[4:5] sc1")
    for j in range(7): issue(j)
    n = len(chunks)
    for j in range(n + 1):
        if j < n:
            ahead = min(n - 1, j + 6) - j
            extra = 24 if 1 <= j <= 7 else (1 if 33 <= j <= 35 else (1 if 25 <= j <= 31 else 0))
            A(f"s_waitcnt vmcnt({4 * ahead + extra})")
        A("s_barrier")
        if j + 7 < n: issue(j + 7)
        if j == 0: mem0_issue()
        if j == 9: mem0_write()
        if j == 24: status0()
        if j == 32: status_issue()
        if j >= 29:
            pk = (j - 1) % 8; tb = 32 + ((j - 1) & 1) * 16
            A(f"v_add_u32 v28, {pk * 16384}, v27")
            for q in range(4):
                A(f"ds_write_b128 v28, {v(tb + 4 * q, 4)} offset:{q * 4096}")
        if j < n:
            m, k = chunks[j]; slot = j % 8
            if m == 'o':
                A(f"v_add_u32 v28, {slot * 16384}, v26")
                for k2 in range(2):
                    for jq in range(4):
                        off = (64 * k2 + 32 * (jq >> 1) + 2 * (jq & 1)) * 128
                        A(f"ds_read_b64_tr_b16 {u(WO(k, k2) + 2 * jq, 2)}, v28 offset:{off}")
            else:
                A(f"v_add_u32 v28, {slot * 16384}, v24")
                A(f"v_add_u32 v29, {slot * 16384}, v25")
                for b in range(2):
                    if m == 'q': dst = WQ(k, b)
                    elif m == 'v': dst = WV(k, b)
                    elif j == 27: dst = WK8(b)
                    else: dst = 32 + (j & 1) * 16 + b * 8
                    for jq in range(4):
                        off = (16 * (jq & 1) + 4 * (jq >> 1)) * 256
                        A(f"ds_read_b64_tr_b16 {u(dst + 2 * jq, 2)}, v{28+b} offset:{off}")
        A("s_waitcnt lgkmcnt(0)")

def r_consts(A):
    lane_const(A, L16, lambda t: (t & 63) * 16, tmp=12)
    lane_const(A, MEMR, lambda t: img((t & 15) >> 1, 2 * ((t >> 4) & 3) + (t & 1)), tmp=12)
    lane_const(A, QR, lambda t: L_QL + (t & 7) * QSTR + ((t >> 4) & 3) * 16, tmp=12)
    lane_const(A, QKW, lambda t: L_QL + (0, 4, 2, 6)[(t >> 4) & 3] * QSTR + (t >> 6) * 64 + (t & 15) * 4, tmp=12)
    lane_const(A, OW, lambda t: (t >> 7) * 1024 + img(PI[t & 7], 4 * ((t >> 6) & 1) + ((t >> 4) & 3)), tmp=12)
    A(f"v_add_u32 v{OW}, {L_OL}, v{OW}")
    lane_const(A, 14, lambda t: L_JUNK + (((t >> 4) & 3) * 8 + (t & 7)) * 16, tmp=12)
    A("v_and_b32 v12, 8, v0")
    A("v_cmp_ne_u32 vcc, 0, v12")
    A(f"v_cndmask_b32 v{OW}, v{OW}, v14, vcc")
    lane_const(A, IDX, lambda t: 0xEEEE if t & 1 else 0x4444, tmp=12)
    A(f"v_lshlrev_b32 v{T16}, 4, v0")
    A("s_and_b32 s12, s10, 1")
    A("s_lshl_b32 s12, s12, 5")
    A("s_add_u32 s37, s12, s9")
    A("v_mov_b32 v14, s37")
    lane_const(A, 15, lambda t: ms_fn(1, t, 0), src=14, nbits=6, tmp=12)
    lane_const(A, 16, lambda t: ms_fn(2, t, 0), src=14, nbits=5, tmp=12)
    if EXP.get('tm', 1): lane_const(A, 17, lambda t: WS_RP + t * 4096, src=14, nbits=6, tmp=12)
    else: lane_const(A, 17, lambda t: WS_RP + (t >> 2) * 16384 + (t & 3) * 128 + 4096, src=14, nbits=6, tmp=12)
    lane_const(A, 18, lambda t: WS_RP + 0x40000 + (t >> 3) * 8192 + (t & 7) * 32, src=14, nbits=5, tmp=12)
    A("v_readfirstlane_b32 s41, v15")
    A("v_readfirstlane_b32 s12, v16")
    A("v_readfirstlane_b32 s13, v17")
    A("v_readfirstlane_b32 s14, v18")
    A("s_cmp_lt_u32 s10, 2")
    A("s_cselect_b32 s41, s41, s12")
    A("s_cselect_b32 s13, s13, s14")
    if EXP.get('rep', 0):
        A("s_cselect_b32 s44, -1, 0x03030303")
        A("s_mov_b32 s45, s44")
        A("s_and_b32 s36, s9, 3")
        A("s_lshl_b32 s36, s36, 15")
        A("s_add_u32 s36, s36, 3072")
    else:
        A("s_mov_b32 s44, 0x00030003")
        A("s_cselect_b32 s44, 0x00FF00FF, s44")
        A("s_mov_b32 s45, 0")
        A("s_movk_i32 s36, 3072")
    add64(A, 28, S_WS, "s13")
    add64(A, 16, 28, 8192)
    A("s_lshl_b32 s12, s10, 5")
    A("s_add_u32 s12, s12, s9")
    A("s_lshl_b32 s13, s12, 9")
    if EXP.get('tm', 1):
        A("s_lshl_b32 s13, s10, 7")
        A("s_add_u32 s13, s13, s9")
        A("s_lshl_b32 s13, s13, 7")
    A(f"s_add_u32 s13, s13, {WS_RP}")
    add64(A, 26, S_WS, "s13")
    for p in range(1, 4): add64(A, 88 + 2 * p, 26, p * 65536)
    A("s_lshl_b32 s13, s12, 8")
    A(f"s_add_u32 s13, s13, {WS_RP + 0x40000}")
    add64(A, 42, S_WS, "s13")
    add64(A, 30, S_WS, WS_RM)
    cc = struct.unpack('<I', struct.pack('<f', (128 ** -0.5) * math.log2(math.e)))[0]
    A(f"s_mov_b32 s46, {cc:#x}")
    A("s_bfe_u32 s40, s9, 0x10003")
    A("s_lshl_b32 s12, s9, 14")
    A(f"s_add_u32 s12, s12, {WS_KV}")
    add64(A, 88, S_WS, "s12")
    A("s_lshl_b32 s13, s10, 11")
    add64(A, 32, 88, "s13")
    add64(A, 86, 32, 8192)
    A("s_lshl_b32 s12, s9, 12")
    A(f"s_add_u32 s12, s12, {WS_KVM}")
    add64(A, 50, S_WS, "s12")
    A("s_lshl_b32 s12, s9, 7")
    A(f"s_add_u32 s12, s12, {WS_KVPROG + 4096}")
    add64(A, 18, S_WS, "s12")
    A("s_lshl_b32 s12, s9, 2")
    A(f"s_add_u32 s12, s12, {WS_RPROG}")
    add64(A, 52, S_WS, "s12")
    A("s_lshl_b32 s12, s9, 7")
    A(f"s_add_u32 s12, s12, {WS_RPROG}")
    add64(A, 22, S_WS, "s12")
    A("s_lshl_b32 s62, s10, 11")
    A(f"s_add_u32 s62, s62, {L_KX}")
    A("s_lshl_b32 s63, s10, 10")
    A(f"s_add_u32 s57, s63, {L_MEM}")
    A(f"s_add_u32 s63, s63, {L_VX}")

def ms_fn(kind, t, l):
    q8, gp = l & 7, (l >> 4) & 1
    rp = (((l >> 3) & 1) + 2 * (l >> 5)) * 32768
    if kind == 1:
        w, g = (t >> 2) & 3, t & 3
        return rp + (t >> 3) * 1024 + img(2 * g + gp, 4 * (w & 1) + (q8 >> 1)) + (q8 & 1) * 8
    w, g, nh = t >> 3, (t >> 1) & 3, t & 1
    return rp + 8192 + img(2 * g + gp, 2 * w + nh) + (l & 1) * 8

def ms_calc(A, kind, dst, tmp):
    lane_const(A, dst, lambda x: ms_fn(kind, 0, x >> 4) ^ ms_fn(kind, 0, 0), src=L16, nbits=10, tmp=tmp, mode='xor')
    A(f"v_xor_b32 v{dst}, s41, v{dst}")

def kv_wait(A, seg_sgpr, nkv, kvg0, tv):
    if nkv == 0: return
    ok = A.newlabel('L_kvok'); loop = A.newlabel('L_kvp')
    A(f"s_cmp_lt_u32 {seg_sgpr}, s54")
    A(f"s_cbranch_scc1 {ok}")
    A("s_mov_b32 s55, 0")
    A(f"v_bfe_u32 v{tv}, v{L16}, 2, 4")
    A.label(loop)
    A(f"global_load_dword v{tv+1}, v{tv}, s[18:19] sc1")
    A("s_add_u32 s55, s55, 1")
    A(f"s_cmp_gt_u32 s55, {SPIN_MAX}")
    A("s_cbranch_scc1 L_exit")
    A("s_waitcnt vmcnt(0)")
    xsum(A, tv + 1, tv, op="v_min_u32", bits=(0, 1))
    A(f"v_readfirstlane_b32 s54, v{tv+1}")
    A(f"s_cmp_lt_u32 {seg_sgpr}, s54")
    A(f"s_cbranch_scc1 {ok}")
    A("s_sleep 4")
    A(f"s_branch {loop}")
    A.label(ok)

def r_main(A, fast, nkv, kvg0, nsteps=64):
    st = "" if fast else "sc1"
    sfx = "f" if fast else "s"
    D = Lds(A)
    TR = EXP.get('trace', [])
    def tr(name):
        if name in TR:
            i = TR.index(name)
            A(f"{'s_memrealtime' if EXP.get('real') else 's_memtime'} s[{64+2*i}:{65+2*i}]")
    A("s_mov_b32 s24, 0")
    A("s_mov_b32 s34, 9216")
    A("s_mov_b32 s35, 0")
    if TR or EXP.get('rt'):
        for i in range(22 if TR else 16): A(f"s_mov_b32 s{64+i}, 0")
    tl(A, 2)
    A("s_mov_b32 s25, 0")
    kv_wait(A, "s25", nkv, kvg0, 12)
    tl(A, 3)
    if EXP.get('rt'):
        A("s_memrealtime s[80:81]")
        A("s_memtime s[96:97]")
    SW = dict(swap_tab()); SWO = {k: n for n, k in swap_tab()}
    LW = [n for n in range(16) if n not in SW]
    cur = [0]
    def lds_frag(n, r, tag, areg=WKB):
        off = wk_off(n); base = (off // 65536) * 65536
        if base and cur[0] != base:
            A(f"v_add_u32 v{areg}, {base:#x}, v{T16}")
            cur[0] = base
        ar = T16 if base == 0 else areg
        D.op(f"ds_read_b128 {v(r, 4)}, v{ar} offset:{off - base}")
        D.op(f"ds_read_b128 {v(r + 4, 4)}, v{ar} offset:{off - base + 4096}", tag)
    RSH = (3 - (len(LW) - 1) % 3) % 3
    def wslot(i): return WRING + ((i + RSH) % 3) * 8
    def wk_read(i):
        if i < 3: cur[0] = 0
        lds_frag(LW[i], wslot(i), ('wk', i))
    def spill_read(r):
        D.op(f"ds_read_b32 v{r}, v{QKW} offset:{KL0}")
        D.op(f"ds_read_b32 v{r+1}, v{QKW} offset:{KL0 + QSTR}")
        D.op(f"ds_read2_b32 {v(r + 2, 2)}, v{QKW} offset0:0 offset1:{QSTR // 4}", 'spill')
    def zero_qk(lo=ACCQ, hi=ACCQ + 16):
        for r in range(lo, hi, 2): A(f"v_mov_b64 {v(r, 2)}, 0")
    for n in sorted(range(3), key=wslot): wk_read(n)
    add64(A, 38, S_WS, WS_STAMP + 0x8000)
    A("s_mov_b64 s[58:59], s[88:89]")
    zero_qk()
    D.waitall()
    top = f"L_rtop_{sfx}"
    if 'al' in EXP:
        A.raw(".p2align 6")
        for _ in range(EXP['al']): A("s_nop 0")
    A.label(top)
    A("s_barrier")
    tr('b1')
    def mem_read(ks, r, tag):
        D.op(f"ds_read_b128 {v(r, 4)}, v{MEMR} offset:{L_MEM + ks * 1024}", tag)
    def mslot(p): return MRING + (p % 3) * 4
    A("s_mov_b32 m0, s62")
    for p in range(3): mem_read(ORD[p], mslot(p), ('m', p))
    A(f"global_load_lds_dwordx4 v{L16}, s[32:33]")
    if not EXP.get('kd2'):
        A(f"global_load_lds_dwordx4 v{L16}, s[32:33] offset:1024")
        A("s_mov_b32 m0, s63")
    loc = {('m', 8): mslot(8), ('m', 7): mslot(7), ('m', 6): mslot(6)}
    NSL = 3 if nkv else 2
    def sread(tag, r):
        loc[tag] = r
        if tag[0] == 'q': D.op(f"ds_read_b128 {v(r, 4)}, v{QR} offset:{tag[1] * 64}", tag)
        elif tag[0] == 'km': D.op(f"ds_read_b128 {v(r, 4)}, v{QR} offset:{KL0 + tag[1] * 64}", tag)
        elif tag[0] == 'kx': D.op(f"ds_read_b128 {v(r, 4)}, v{L16} offset:{L_KX + (tag[1] * 4 + tag[2]) * 1024}", tag)
        elif tag[0] == 'm': mem_read(ORD[tag[1]], r, tag)
        elif tag[0] == 'vx':
            if tag[1] == 0: A(f"s_waitcnt vmcnt({NSL})")
            D.op(f"ds_read_b128 {v(r, 4)}, v{T16} offset:{L_VX + tag[1] * 4096}", tag)
    def smf(acc, ar, w): A(f"{SMF} {v(acc, 4)}, {v(ar, 4)}, {u(w, 8)}, v{IDX}")
    V0S = EXP.get('v0s', 2)
    ext = {EXP.get('vd1', 1): f"global_load_lds_dwordx4 v{L16}, s[86:87]\ns_add_u32 m0, s63, 3072",
           EXP.get('vd2', 3): f"global_load_lds_dwordx4 v{L16}, s[86:87] offset:1024\ns_mov_b32 m0, {L_JUNK}",
           4 * V0S - 3: f"global_store_dwordx4 v{T16}, {v(ACCV0, 4)}, s[38:39] sc1",
           4 * V0S - 1: f"v_lshlrev_b32 v{ACCV0}, 2, v{T16}\nv_mov_b64 {v(ACCV0 + 2, 2)}, 0",
           4 * V0S + 1: f"global_load_lds_dword v{ACCV0}, s[58:59]\nv_mov_b64 {v(ACCV0, 2)}, 0\ns_mov_b32 m0, {L_QL + 256}"}
    if EXP.get('kd2'): ext[EXP['kd2']] = f"global_load_lds_dwordx4 v{L16}, s[32:33] offset:1024\ns_mov_b32 m0, s63"
    if nkv: ext[4 * V0S + 4] = f"s_mov_b64 exec, 1\nglobal_load_lds_dwordx4 v{L16}, s[18:19] sc1\ns_mov_b64 exec, -1"
    if EXP.get('noslow'):
        ext[4 * V0S - 3] = f"global_store_dwordx4 v{T16}, {v(ACCV0, 4)}, s[50:51]"
        ext[4 * V0S + 1] = ext[4 * V0S + 1].replace("s[58:59]", "s[88:89]")
    sb_ = Asm()
    sb_("s_lshl_b32 s13, s24, 17")
    add64(sb_, 38, 50, "s13")
    sb_("s_add_u32 s25, s24, 2")
    sb_(f"s_min_u32 s25, s25, {nsteps - 1}")
    sb_("s_lshl_b32 s13, s25, 19")
    add64(sb_, 58, 88, "s13")
    add64(sb_, 86, 86, 0 if EXP.get('noslow') else 1 << 19)
    add64(sb_, 32, 32, 0 if EXP.get('noslow') else 1 << 19)
    add64(sb_, 14, 30, "s34")
    add64(sb_, 60, 30, "s35")
    add64(sb_, 20, 14, "s36")
    sb_("s_and_b32 s12, s24, 1")
    sb_("s_xor_b32 s13, s12, 1")
    sb_("s_xor_b32 s47, s12, s40")
    sb_("s_add_u32 s24, s24, 1")
    sb_("s_mov_b32 s35, s34")
    sb_("s_add_u32 s34, s34, 9216")
    sb_("s_cmp_eq_u32 s34, 27648")
    sb_("s_cselect_b32 s34, 0, s34")
    sb_("s_mov_b32 s55, 0")
    sq = [i.text.strip() for i in sb_.ins]
    cnt_ = [0]
    side = []
    class Defer:
        def op(self, text, tag=None): side.append((text, tag))
    def flush_until(tag):
        while any(t == tag for _, t in side):
            x = side.pop(0)
            D.op(*x) if x[0].startswith('ds_') else A(x[0])
    GAPN = EXP.get('gapn', 2)
    def smfs(acc, ar, w, need=()):
        for t in need:
            flush_until(t); D.wait(t)
        smf(acc, ar, w)
        cnt_[0] += 1
    def gap():
        n = 0
        if cnt_[0] in ext:
            A(ext[cnt_[0]]); n += 1
        while side and n < GAPN:
            x = side.pop(0)
            D.op(*x) if x[0].startswith('ds_') else A(x[0])
            n += 1
        while cnt_[0] > 4 * V0S + 4 and sq and n < GAPN:
            A(sq.pop(0)); n += 1
    def d_wk(i):
        off = wk_off(LW[i]); base = (off // 65536) * 65536
        if base and cur[0] != base:
            side.append((f"v_add_u32 v{WKB}, {base:#x}, v{T16}", None)); cur[0] = base
        ar = T16 if base == 0 else WKB
        side.append((f"ds_read_b128 {v(wslot(i), 4)}, v{ar} offset:{off - base}", None))
        side.append((f"ds_read_b128 {v(wslot(i) + 4, 4)}, v{ar} offset:{off - base + 4096}", ('wk', i)))
    def d_kx(kt, j, r):
        loc[('kx', kt, j)] = r
        side.append((f"ds_read_b128 {v(r, 4)}, v{L16} offset:{L_KX + (kt * 4 + j) * 1024}", ('kx', kt, j)))
    cur[0] = 0
    for p in range(8):
        ks = ORD[p]
        m = mslot(p)
        smfs(ACCQ, m, WQ(ks, 0), [('m', p)]); gap()
        for b in range(2):
            n = 2 * p + b
            if n in SW: smfs(ACCK + 4 * b, m, wo_reg(SW[n]))
            else:
                i = LW.index(n)
                smfs(ACCK + 4 * b, m, wslot(i), [('wk', i)])
                if i + 3 < len(LW): d_wk(i + 3)
            if b == 1 and p + 3 < 9:
                side.append((f"ds_read_b128 {v(mslot(p), 4)}, v{MEMR} offset:{L_MEM + ORD[p + 3] * 1024}", ('m', p + 3)))
            if n == 12:
                side.append((f"s_waitcnt vmcnt({NSL + 2})", None))
                side.append(("s_barrier", None))
            if n == 13: d_kx(0, 0, 48); d_kx(1, 0, 52)
            if n == 14: d_kx(0, 1, 56); d_kx(1, 1, 60)
            gap()
            if b == 0:
                smfs(ACCQ + 4, m, WQ(ks, 1)); gap()
                if p >= V0S: smfs(ACCV0, m, WV(ks, 0)); gap()
        tr(f'a{p+1}')
    assert not side, side
    sread(('m', 5), 44)
    D.wait(('m', 8))
    m = mslot(8); ks = ORD[8]
    smfs(ACCQ, m, WQ(ks, 0)); gap(); smfs(ACCQ + 4, m, WQ(ks, 1))
    for o in sq: A(o)
    A(f"v_mov_b64 {v(ACCV1, 2)}, 0")
    smf(ACCK, m, WK8(0))
    A(f"v_mov_b64 {v(ACCV1 + 2, 2)}, 0")
    smf(ACCK + 4, m, WK8(1))
    A(f"v_mov_b32 v{TMPC}, s47")
    smf(ACCV0, m, WV(ks, 0))
    tr('a9')
    A(f"s_cmp_eq_u32 s24, {nsteps}")
    A(f"s_cbranch_scc1 L_rlast_{sfx}")
    fill = [(p, 1) for p in range(8, V0S - 1, -1)]
    for p in range(V0S - 1, -1, -1): fill += [(p, 1), (p, 0)]
    def filler(cnt=1):
        for _ in range(cnt):
            if fill:
                p, b = fill.pop(0)
                D.wait(('m', p))
                smf(ACCV1 if b else ACCV0, loc[('m', p)], WV(ORD[p], b))
    for acc, lo in ((ACCQ, 0), (ACCK, KL0)):
        for b in range(2):
            A(f"v_add_f32 v{acc+4*b}, v{acc+4*b}, v{acc+4*b+1}")
            A(f"v_add_f32 v{acc+4*b+2}, v{acc+4*b+2}, v{acc+4*b+3}")
        A(f"v_cvt_pk_bf16_f32 v{acc+1}, v{acc}, v{acc+4}")
        A(f"v_cvt_pk_bf16_f32 v{acc+3}, v{acc+2}, v{acc+6}")
        if lo == 0: D.op(f"ds_write2_b32 v{QKW}, v{acc+1}, v{acc+3} offset0:0 offset1:{QSTR // 4}")
        else:
            D.op(f"ds_write_b32 v{QKW}, v{acc+1} offset:{lo}")
            D.op(f"ds_write_b32 v{QKW}, v{acc+3} offset:{lo + QSTR}", 'qkw')
    tr('qkw')
    filler(1)
    sread(('m', 4), 16); sread(('m', 3), 24); sread(('m', 2), mslot(8))
    filler(3)
    D.wait('qkw')
    A("s_barrier")
    tr('b2')
    T0, T1, T2 = 12, 16, 20
    sread(('q', 0), mslot(7)); sread(('km', 0), mslot(6)); sread(('q', 1), 44)
    filler(2)
    sread(('km', 1), 24)
    filler(1 if V0S < 3 else 2)
    sread(('q', 2), mslot(8))
    pend = [('kx', 0, 2), ('kx', 1, 2), ('km', 2), ('q', 3), ('kx', 0, 3), ('kx', 1, 3), ('km', 3),
            ('m', 1), ('m', 0), ('vx', 0), ('vx', 1)]
    free = []
    for j in range(4):
        for T, tag in ((T0, ('kx', 0, j)), (T1, ('kx', 1, j)), (T2, ('km', j))):
            D.wait(tag); D.wait(('q', j))
            A(f"{MF32} {v(T, 4)}, {v(loc[tag], 4)}, {v(loc[('q', j)], 4)}, {v(T, 4) if j else 0}")
            if pend: sread(pend.pop(0), loc[tag])
            else: free.append(loc[tag])
        if pend: sread(pend.pop(0), loc[('q', j)])
        else: free.append(loc[('q', j)])
    tr('s_done')
    BX, Z, DA, DB = free[0], free[1], free[2], free[3]
    filler(2)
    M, TT, SUM = 16, 17, 18
    VMR = 22
    AO = 28
    busy = set()
    for b_ in (BX, Z, DA, DB, loc[('vx', 0)], loc[('vx', 1)], ACCV1, loc[('m', 0)]): busy |= set(range(b_, b_ + 4))
    zq = [r for r in range(AO, AO + 36, 2) if r not in busy]
    late = set(range(DA, DA + 4)) | set(range(DB, DB + 4))
    zm = [r for r in range(AO, AO + 36, 2) if r in busy and r not in late]
    zl = [r for r in range(AO, AO + 36, 2) if r in late]
    def zero(cnt=1):
        for _ in range(cnt):
            if zq: A(f"v_mov_b64 {v(zq.pop(0), 2)}, 0")
    A(f"v_mov_b32 v{Z+1}, 0")
    A(f"v_mov_b32 v{Z+2}, 0")
    for r in range(4): A(f"v_mov_b32_dpp v{T0+r}, v{T1+r} {IDQ} row_mask:0xf bank_mask:0xc")
    A(f"v_mov_b32_dpp v{T2+2}, v{T2+3} {IDQ} row_mask:0xf bank_mask:0xc")
    A(f"v_mov_b32_dpp v{T2}, v{T2+1} {IDQ} row_mask:0x3 bank_mask:0xc")
    A(f"v_max3_f32 v{M}, v12, v13, v14")
    zero(1)
    A(f"v_mov_b32_dpp v{T2}, v{T2+2} {IDQ} row_mask:0xc bank_mask:0xf")
    A(f"v_max3_f32 v{M}, v{M}, v15, v20")
    tr('max0')
    filler(1); zero(1)
    A(f"v_max_f32_dpp v{M}, v{M}, v{M} {ROR8}")
    A(f"v_mov_b32 v{TT}, v{M}")
    filler(9); zero(1)
    assert not fill
    A(f"v_permlane16_swap_b32 v{M}, v{TT}")
    A(f"v_max_f32 v{M}, v{M}, v{TT}")
    A(f"v_mov_b32 v{TT}, v{M}")
    zero(2)
    A(f"v_permlane32_swap_b32 v{M}, v{TT}")
    A(f"v_max_f32 v{M}, v{M}, v{TT}")
    A(f"v_mul_f32 v{M}, s46, v{M}")
    tr('max1')
    for e in (12, 13, 14, 15, 20): A(f"v_fma_f32 v{e}, v{e}, s46, -v{M}")
    for e in (12, 13, 14, 15): A(f"v_exp_f32 v{e}, v{e}")
    A(f"v_cvt_pk_bf16_f32 v{BX}, v12, v13")
    A(f"v_cvt_pk_bf16_f32 v{BX+1}, v14, v15")
    A("v_exp_f32 v20, v20")
    A(f"v_mov_b32_dpp v{BX+2}, v{BX} {ROR8}")
    A(f"v_mov_b32_dpp v{BX+3}, v{BX+1} {ROR8}")
    A(f"v_mov_b32_dpp v21, v20 {ROR8}")
    A(f"v_add_f32 v{ACCV0}, v{ACCV0}, v{ACCV0+1}")
    D.wait(('vx', 1))
    tr('pv0')
    A(f"{MF32} {v(DA, 4)}, {v(loc[('vx', 0)], 4)}, {v(BX, 4)}, 0")
    A(f"v_add_f32 v{ACCV0+2}, v{ACCV0+2}, v{ACCV0+3}")
    A(f"v_add_f32 v{ACCV1}, v{ACCV1}, v{ACCV1+1}")
    A(f"{MF32} {v(DB, 4)}, {v(loc[('vx', 1)], 4)}, {v(BX, 4)}, 0")
    A(f"v_add_f32 v{ACCV1+2}, v{ACCV1+2}, v{ACCV1+3}")
    A(f"v_cvt_pk_bf16_f32 v{VMR}, v{ACCV0}, v{ACCV0+2}")
    A(f"v_cvt_pk_bf16_f32 v{VMR+1}, v{ACCV1}, v{ACCV1+2}")
    A(f"v_cvt_pk_bf16_f32 v{Z}, v20, v21")
    A(f"v_cvt_pk_bf16_f32 v{Z+3}, v20, v21")
    A(f"v_add_f32 v{SUM}, v12, v13")
    A(f"{MF16} {v(DA, 4)}, {v(VMR, 2)}, {v(Z, 2)}, {v(DA, 4)}")
    A(f"v_add_f32 v{TT}, v14, v15")
    A(f"v_add_f32 v{SUM}, v{SUM}, v20")
    A(f"{MF16} {v(DB, 4)}, {v(VMR, 2)}, {v(Z + 2, 2)}, {v(DB, 4)}")
    tr('pv1')
    A(f"v_add_f32 v{SUM}, v{SUM}, v{TT}")
    zq += zm
    zero(2)
    A(f"v_add_f32_dpp v{SUM}, v{SUM}, v{SUM} {ROR8}")
    A(f"v_mov_b32 v{TT}, v{SUM}")
    zero(2)
    A(f"v_permlane16_swap_b32 v{SUM}, v{TT}")
    A(f"v_add_f32 v{SUM}, v{SUM}, v{TT}")
    A(f"v_mov_b32 v{TT}, v{SUM}")
    zero(2)
    A(f"v_permlane32_swap_b32 v{SUM}, v{TT}")
    A(f"v_add_f32 v{SUM}, v{SUM}, v{TT}")
    A(f"v_rcp_f32 v{SUM}, v{SUM}")
    tr('rcp')
    zero(1)
    for k, Dx in enumerate((DA, DB)):
        for r in (0, 2): A(f"v_pk_mul_f32 {v(Dx + r, 2)}, {v(Dx + r, 2)}, {v(SUM, 2)} op_sel_hi:[1,0]")
    A(f"v_cvt_pk_bf16_f32 v12, v{DA}, v{DA+1}")
    A(f"v_cvt_pk_bf16_f32 v13, v{DA+2}, v{DA+3}")
    A(f"v_cvt_pk_bf16_f32 v14, v{DB}, v{DB+1}")
    A(f"v_cvt_pk_bf16_f32 v15, v{DB+2}, v{DB+3}")
    D.op(f"ds_write_b128 v{OW}, v[12:15]")
    tr('ow')
    zq += zl
    zq.sort()
    PS, PL, WB = 8, 9, 20
    post = [f"v_mov_b64 {v(r, 2)}, 0" for r in zq]
    post += [f"v_lshrrev_b32 v{PL}, 2, v{L16}", f"v_and_b32 v{PS}, 0x300, v{L16}", f"v_bfe_u32 v10, v{L16}, 1, 7", f"v_lshl_or_b32 v{PS}, v{PS}, 4, v10"]
    for _ in range(EXP.get('zb', 4)): A(post.pop(0))
    D.waitall()
    A("s_barrier")
    tr('b3')
    OF = 12
    D.op(f"ds_read_b128 {v(OF, 4)}, v{MEMR} offset:{L_OL}", 'o0')
    D.op(f"ds_read_b128 {v(OF + 4, 4)}, v{MEMR} offset:{L_OL + 1024}", 'o1')
    A(post.pop(0))
    D.op(f"ds_write2_b32 v{QKW}, v{VMR}, v{VMR+1} offset0:0 offset1:{QSTR // 4}")
    cur[0] = 0
    wq_ = sorted(SWO)
    def wo_next():
        if wq_:
            k_ = wq_.pop(0)
            lds_frag(SWO[k_], WB, ('wo', k_), areg=11)
    wo_next()
    for _ in range(EXP.get('za', 2)): A(post.pop(0))
    def acc(t): return AO + 4 * WORD.index(t)
    def wpost(t):
        c = acc(t)
        o = [f"v_add_f32 v{c}, v{c}, v{c+1}", f"v_add_f32 v{c+1}, v{c+2}, v{c+3}"]
        if t == 8:
            o.append(f"v_cvt_pk_bf16_f32 v{c+2}, v{c}, v{c+1}")
            o.append(f"v_bfi_b32 v{c+2}, 1, v{TMPC}, v{c+2}")
            o.append(f"global_store_dword v{PL}, v{c+2}, s[42:43] {st}")
        elif t & 1:
            p = acc(t - 1); sb = 26 if t == 1 else 88 + 2 * (t // 2)
            o.append(f"v_cvt_pk_bf16_f32 v{c+2}, v{p}, v{c}")
            o.append(f"v_cvt_pk_bf16_f32 v{c+3}, v{p+1}, v{c+1}")
            o.append(f"v_bfi_b32 v{c+2}, 1, v{TMPC}, v{c+2}")
            o.append(f"global_store_dwordx2 v{PS}, {v(c + 2, 2)}, s[{sb}:{sb+1}] {st}")
        return o
    D.wait('o0')
    tr('wo0')
    seq = [(t, k2) for t in WORD for k2 in range(2)]
    if EXP.get('il', 0):
        seq = [(8, 0), (0, 0), (8, 1), (1, 0), (0, 1)]
        for t in range(1, 7): seq += [(t + 1, 0), (t, 1)]
        seq += [(7, 1)]
        assert len(seq) == 18 and not SWO
    vq = list(post); since = {}
    slots = 0
    for k, (t, k2) in enumerate(seq):
        if k2 == 1: D.wait('o1')
        if k in SWO:
            D.wait(('wo', k))
            smf(acc(t), OF + 4 * k2, WB)
            wo_next()
            slots += 2
        else: smf(acc(t), OF + 4 * k2, WO(t, k2))
        slots += 1
        if k2 == 1: since[t] = slots
        for _ in range(1 if k < EXP.get('w1', 5) else EXP.get('wv', 3)):
            for tt_ in list(since):
                if slots - since[tt_] >= EXP.get('wlag', 8): vq += wpost(tt_); del since[tt_]
            if vq: A(vq.pop(0)); slots += 1
    tr('wo1')
    for tt_ in list(since): vq += wpost(tt_)
    for o in vq: A(o)
    tr('wo2')
    D.q = []
    SEL, RD, MS, LA = 12, 16, 8, 9
    LDB = (24, 40)
    A("s_cmp_ge_u32 s10, 2")
    A(f"s_cbranch_scc1 L_rw23_{sfx}")
    NB = 1
    for kind in (1, 2):
        lab = f"L_rp1{kind}_{sfx}"
        nl = 4 if kind == 1 else 1
        def loads(LD):
            if kind == 2: A(f"global_load_dwordx4 {v(LD, 4)}, v{LA}, s[28:29] sc1")
            else:
                for j in range(4): A(f"global_load_dwordx4 {v(LD + 4 * j, 4)}, v{L16}, s[28:29] offset:{j * 1024} sc1")
        P = Asm()
        if kind == 1:
            P(f"v_bfe_u32 v20, v{L16}, 4, 1")
            P(f"v_bfe_u32 v21, v{L16}, 5, 1")
            P(f"v_bfe_u32 v22, v{L16}, 6, 1")
            P("v_lshl_add_u32 v22, v21, 1, v22")
        else:
            P(f"v_bfe_u32 v20, v{L16}, 6, 1")
            P(f"v_bfe_u32 v22, v{L16}, 4, 2")
            P(f"v_bfe_u32 v23, v{L16}, 8, 1")
            P("v_xor_b32 v23, s12, v23")
        P("v_lshlrev_b32 v20, 4, v20")
        P("v_mov_b32 v21, 0x3f80")
        P("v_lshlrev_b32 v21, v20, v21")
        m_ = Asm(); ms_calc(m_, kind, MS, 10); mq = [i.text.strip() for i in m_.ins]
        for j in range(4):
            P(f"v_cmp_eq_u32 vcc, {j}, v22")
            for _ in range(2):
                if mq: P(mq.pop(0))
            P(f"v_cndmask_b32 v{SEL+j}, 0, v21, vcc")
        for o in mq: P(o)
        P("v_mov_b64 v[10:11], -1")
        pq = [i.text.strip() for i in P.ins]
        def fin():
            for r in range(4): A(f"v_add_f32_dpp v{RD+r}, v{RD+r}, v{RD+r} {ROR8}")
            if kind == 2:
                for r in range(4): A(f"v_add_f32_dpp v{RD+r}, v{RD+r}, v{RD+r} row_ror:4 row_mask:0xf bank_mask:0xf")
                for r in range(4): A(f"v_add_f32_dpp v{RD+r}, v{RD+r}, v{RD+r} quad_perm:[2,3,0,1] row_mask:0xf bank_mask:0xf")
            A(f"v_cvt_pk_bf16_f32 v20, v{RD}, v{RD+1}")
            A(f"v_cvt_pk_bf16_f32 v21, v{RD+2}, v{RD+3}")
        if kind == 1:
            for n in sorted(range(3), key=wslot): wk_read(n)
            LD = 24
            l1 = A.newlabel('L_k1')
            A("s_cmp_eq_u32 s10, 1")
            A(f"s_cbranch_scc1 {l1}")
            A(f"s_waitcnt vmcnt({EXP.get('k0', 1)})")
            tr('p1s')
            loads(LD)
            for o in pq: A(o)
            A(f"s_branch {lab}")
            A.label(l1)
            tp = EXP.get('tp', 6)
            for o in pq[:len(pq) - tp]: A(o)
            A(f"s_waitcnt vmcnt({EXP.get('k1', 0)})")
            for o in pq[len(pq) - tp:]: A(o)
            tr('p1s')
            loads(LD)
            A.label(lab)
            for j in range(4):
                A(f"s_waitcnt vmcnt({3 - j})")
                tr(f'p1w{j}')
                A(f"{MF32} {v(RD, 4)}, {v(SEL, 4)}, {v(LD + 4 * j, 4)}, {v(RD, 4) if j else 0}")
                A(f"v_bitop3_b32 v{20 + j}, v{LD+4*j}, v{LD+4*j+2}, {'s13' if j & 1 else 's12'} bitop3:0x7e")
                if j == 2: A("v_or3_b32 v20, v20, v21, v22")
            A.label(lab + "_c")
            A("v_bitop3_b32 v20, v20, v23, 1 bitop3:0xa8")
            A("v_cmp_ne_u32 vcc, 0, v20")
            fin()
            A(f"s_cbranch_vccz L_rp1ok_{sfx}")
            backoff(A, 55)
            A("s_mov_b64 exec, vcc")
            loads(LD)
            A("s_mov_b64 exec, -1")
            A("s_add_u32 s55, s55, 1")
            A(f"s_cmp_gt_u32 s55, {SPIN_MAX}")
            A(f"s_cbranch_scc0 {lab}")
            A("s_branch L_exit")
        else:
            A.label(f"L_rw23_{sfx}")
            A("s_cmp_eq_u32 s10, 3")
            A(f"s_cbranch_scc1 L_rnt_{sfx}")
            lane_const(A, LA, lambda x: (x >> 5) * 256 + ((x >> 4) & 1) * 16, src=L16, nbits=10, tmp=10)
            NH = 1
            h = len(pq)
            for b in range(NH):
                loads(24 + 4 * b)
                for o in pq[b * h:(b + 1) * h]: A(o)
            A.label(lab)
            for b in range(NH):
                LD = 24 + 4 * b
                A(f"s_waitcnt vmcnt({NH - 1})")
                A(f"v_bitop3_b32 v20, v{LD}, v{LD+1}, v23 bitop3:0x7e")
                A(f"v_bitop3_b32 v21, v{LD+2}, v{LD+3}, v23 bitop3:0x7e")
                A("v_bitop3_b32 v20, v20, v21, 1 bitop3:0xa8")
                A("v_cmp_ne_u32 vcc, 0, v20")
                A(f"{MF32} {v(RD, 4)}, {v(SEL, 4)}, {v(LD, 4)}, 0")
                A(f"s_cbranch_vccz {lab}_ok")
                backoff(A, 55)
                loads(LD)
                A("s_add_u32 s55, s55, 1")
            A(f"s_cmp_gt_u32 s55, {SPIN_MAX}")
            A(f"s_cbranch_scc0 {lab}")
            A("s_branch L_exit")
            A.label(lab + "_ok")
            D.q = []
            for n in sorted(range(3), key=wslot): wk_read(n)
            fin()
            A(f"s_branch L_rp1ok_{sfx}")
    def rest(force=False):
        if NB == 2 or force:
            for n in sorted(range(3), key=wslot): wk_read(n)
        spill_read(ACCV0)
    A.label(f"L_rnt_{sfx}")
    D.q = []
    rest(True)
    zero_qk()
    if nkv:
        A(f"v_mov_b32 v28, {L_QL + 256}")
        A("s_waitcnt vmcnt(5)")
        A("ds_read_b128 v[28:31], v28")
        A("s_waitcnt lgkmcnt(0)")
        A("v_min3_u32 v28, v28, v29, v30")
        A("v_min_u32 v28, v28, v31")
        A("v_readfirstlane_b32 s12, v28")
        A("s_max_u32 s54, s54, s12")
    kv_wait(A, "s25", nkv, kvg0, 28)
    A.label(f"L_rmbok_{sfx}")
    A("s_barrier")
    A("s_waitcnt vmcnt(0)")
    A(f"s_branch L_rp2ok_{sfx}")
    A.label(f"L_rp1ok_{sfx}")
    tr('p1ok')
    A("s_mov_b64 exec, s[44:45]")
    A(f"global_store_dwordx2 v{MS}, v[20:21], s[14:15] {st}")
    A(f"global_store_dwordx2 v{MS}, v[10:11], s[60:61] {st}")
    A("s_mov_b64 exec, -1")
    if EXP.get('rt'): A("s_add_u32 s76, s76, s55")
    A("s_barrier")
    tr('b4')
    D.q = []
    def round2():
        A("s_mov_b32 m0, s57")
        A(f"global_load_lds_dwordx4 v{T16}, s[14:15] sc1")
        A("s_add_u32 m0, s57, 3072")
        A(f"global_load_lds_dwordx4 v{T16}, s[20:21] sc1")
        A(f"global_load_lds_dwordx4 v{T16}, s[20:21] offset:3072 sc1")
    A("s_mov_b32 s55, 0")
    for _ in range(EXP.get('d2', 0)): A("s_nop 3")
    tr('p2s')
    okl = top if not (TR or EXP.get('rt')) else f"L_rp2ok_{sfx}"
    def loads2():
        for j in range(3):
            A(f"global_load_dwordx4 {v(MRING + 4 * j, 4)}, v{T16}, s[20:21] offset:{(j - 1) * 3072} sc1")
    Z2 = EXP.get('z2', 6)
    rest()
    zero_qk(12, 12 + 2 * Z2)
    loads2()
    zero_qk(12 + 2 * Z2, 28)
    A.label(f"L_rp2_{sfx}")
    A("s_waitcnt vmcnt(2)")
    tr('p2w0')
    A(f"ds_write_b128 v{T16}, v[28:31] offset:{L_MEM}")
    A(f"v_max_u32 v{TMPC}, v28, v30")
    A("s_waitcnt vmcnt(1)")
    A(f"v_max3_u32 v{TMPC}, v{TMPC}, v32, v34")
    A(f"ds_write_b128 v{T16}, v[32:35] offset:{L_MEM + 3072}")
    A("s_waitcnt vmcnt(0)")
    A(f"v_max3_u32 v{TMPC}, v{TMPC}, v36, v38")
    A(f"v_cmp_eq_u32 vcc, -1, v{TMPC}")
    A(f"ds_write_b128 v{T16}, v[36:39] offset:{L_MEM + 6144}")
    A(f"s_cbranch_vccz L_rp2ok_{sfx}")
    A("s_mov_b64 exec, vcc")
    loads2()
    A("s_mov_b64 exec, -1")
    A("s_add_u32 s55, s55, 1")
    A(f"s_cmp_gt_u32 s55, {SPIN_MAX}")
    A(f"s_cbranch_scc0 L_rp2_{sfx}")
    A("s_branch L_exit")
    A.label(f"L_rp2ok_{sfx}")
    tr('p2ok')
    if EXP.get('rt'): A("s_add_u32 s77, s77, s55")
    D.waitall()
    if TR:
        A("s_cmp_lg_u32 s24, 41")
        A(f"s_cbranch_scc1 {top}")
        A("s_lshl_b32 s12, s9, 2")
        A("s_add_u32 s12, s12, s10")
        A("s_lshl_b32 s12, s12, 6")
        A(f"s_add_u32 s12, s12, {WS_STAMP + 16384}")
        A(f"v_mov_b32 v{TMPC}, s12")
        for q in range(11):
            A(f"v_mov_b32 v28, s{64 + 2 * q}")
            A(f"global_store_dword v{TMPC}, v28, s[4:5] offset:{4 * q}")
            A("s_waitcnt vmcnt(0)")
    A(f"s_branch {top}")
    A.label(f"L_rlast_{sfx}")
    D.waitall()
    lr = {8: mslot(8), 7: mslot(7), 6: mslot(6), 5: 44, 4: 48, 3: 52, 2: 56, 1: 60, 0: 12}
    for p in (4, 3, 2, 1, 0): mem_read(ORD[p], lr[p], ('lm', p))
    for p in range(8, -1, -1):
        D.wait(('lm', p))
        smf(ACCV1, lr[p], WV(ORD[p], 1))
        if p < V0S: smf(ACCV0, lr[p], WV(ORD[p], 0))
    for b in range(2):
        A(f"v_add_f32 v{ACCK+4*b}, v{ACCK+4*b}, v{ACCK+4*b+1}")
        A(f"v_add_f32 v{ACCK+4*b+2}, v{ACCK+4*b+2}, v{ACCK+4*b+3}")
    A(f"v_cvt_pk_bf16_f32 v16, v{ACCK}, v{ACCK+4}")
    A(f"v_cvt_pk_bf16_f32 v17, v{ACCK+2}, v{ACCK+6}")
    for a_ in (ACCV1, ACCV0):
        A(f"v_add_f32 v{a_}, v{a_}, v{a_+1}")
        A(f"v_add_f32 v{a_+2}, v{a_+2}, v{a_+3}")
    A(f"v_cvt_pk_bf16_f32 v18, v{ACCV0}, v{ACCV0+2}")
    A(f"v_cvt_pk_bf16_f32 v19, v{ACCV1}, v{ACCV1+2}")
    A(f"global_store_dwordx4 v{T16}, v[16:19], s[38:39] sc1")
    tl(A, 4)
    if EXP.get('rt'):
        A("s_memrealtime s[82:83]")
        A("s_memtime s[98:99]")
        A("s_waitcnt lgkmcnt(0)")
        A("s_sub_u32 s75, s98, s96")
        A("s_sub_u32 s78, s80, s84")
        A("s_sub_u32 s79, s82, s80")
        A("s_lshl_b32 s12, s9, 2")
        A("s_add_u32 s12, s12, s10")
        A("s_lshl_b32 s12, s12, 6")
        A(f"s_add_u32 s12, s12, {WS_STAMP}")
        A("v_mov_b32 v12, s12")
        for q in range(4):
            for r in range(4): A(f"v_mov_b32 v{16+r}, s{64 + 4 * q + r}")
            A(f"global_store_dwordx4 v12, v[16:19], s[4:5] offset:{16 * q}")
            A("s_waitcnt vmcnt(0)")
    A("s_branch L_exit")

def role_r(A, restart, nkv, kvg0):
    if EXP.get('rt'):
        A("s_memrealtime s[84:85]")
        A("s_waitcnt lgkmcnt(0)")
    r_setup(A)
    r_swap(A)
    tl(A, 1)
    A("s_waitcnt vmcnt(0)")
    A("s_mov_b32 s54, 0")
    A("v_min3_u32 v6, v8, v9, v10")
    A("v_min_u32 v6, v6, v11")
    mode_check(A, tv=12, pre=4)
    r_consts(A)
    A("s_cmp_eq_u32 s11, 0")
    A("s_cbranch_scc1 L_r_slow")
    r_main(A, True, nkv, kvg0)
    A.label("L_r_slow")
    r_main(A, False, nkv, kvg0)
```

```python
import sys
import role_r as RR
from common import *
from role_kv import stage_mod, stage_ln1, role_kv
import role_af as AF
NAME = "adaLN_cond__memory_aug_recurrent_mem_tr__swiglu_ffn__prompt"
out = sys.argv[1] if len(sys.argv) > 1 else f'cdna_kernels/{NAME}.s'
for a_ in sys.argv[2:]:
    k_, _, v_ = a_.partition('=')
    RR.EXP[k_] = v_.split(',') if k_ == 'trace' else (int(v_) if v_ else 1)
AF.EXP = RR.EXP
K = NAME + "_kernel"
FORCE['tm'] = RR.EXP.get('tm', 1)
FORCE['cpf'] = RR.EXP.get('cpf', 1)
A = Asm()
kernel_begin(A, K)
TL['dbg'] = RR.EXP.get('tld')
if TL['dbg']: tl(A, 0)
preamble(A)
FORCE['slow'] = bool(RR.EXP.get('forceslow'))
TL["on"] = bool(RR.EXP.get("tl"))
if not TL["dbg"]: tl(A, 0)
A.label("L_roles")
A("s_cmp_eq_u32 s8, 0")
A("s_cbranch_scc1 L_role_r")
A("s_cmp_eq_u32 s8, 1")
A("s_cbranch_scc1 L_role_kv")
A("s_cmp_lt_u32 s8, 5")
A("s_cbranch_scc1 L_role_a")
A("s_mul_i32 s14, s9, 3")
A("s_add_u32 s14, s14, s8")
A("s_sub_u32 s14, s14, 5")
stage_ln1(A, "s14")
tl(A, 7)
AF.role_f(A, 3, 5)
A.label("L_exit")
A("s_endpgm")
A.label("L_role_r")
RR.role_r(A, "L_roles", 1, 1)
A.label("L_role_kv")
role_kv(A, "L_roles", 1, 1)
A.label("L_role_a")
A("s_mul_i32 s14, s9, 3")
A("s_add_u32 s14, s14, s8")
A("s_sub_u32 s14, s14, 2")
A("s_cmp_ge_u32 s14, 54")
A("s_cbranch_scc1 L_nomod")
stage_mod(A, "s14")
A.label("L_nomod")
tl(A, 7)
AF.role_a(A, "L_roles", 3, 2, 1)
A.label('L_code_end')
A('s_endpgm')
body = A.finalize()
ref = open(f'cdna_kernels/{NAME}.s.ref').read()
hdr = ref[:ref.index('; Override launch geometry')]
kn = f'kernel={K} ' if 'dev/' in out else ''
hdr += f'; @launch {kn}grid=(256,1,1) block=(256,1,1) lds=163840\n.amdgcn_target "amdgcn-amd-amdhsa--gfx950"\n.text\n'
open(out, 'w').write(hdr + body + '.section .rodata,"a"\n' + kernel_desc(K, 512, 102, 256))
print("instructions", sum(1 for i in A.ins if i.states), "nops", A.nops)
```

```python
from asmlib import *

KA_X, KA_MEM0, KA_WQ, KA_WK, KA_WV, KA_WO, KA_SEG, KA_BX, KA_WG, KA_WU, KA_WD, KA_C, KA_WMOD, KA_OUT, KA_DBG, KA_WS = [8 * i for i in range(16)]

WS_MOD   = 0x0
WS_KVPROG = 0x10000
WS_RPROG = 0x18000
WS_H2FLAG = 0x1A000
WS_XF    = 0x1C000
WS_HINT  = 0x1D000
WS_STAMP = 0x20000
WS_H     = 0x100000
WS_H2    = 0x400000
WS_X1    = 0x700000
WS_KV    = 0x1000000
WS_KVM   = 0x3000000
WS_RP    = 0x3A00000
WS_RM    = 0x3B00000
WS_XP    = 0x4000000
RP_SLOT = 72 * 32 * 128
XP_SLOT = 32 * 32 * 2304
SEG_H = 36864

DBG_TICKET = 0
DBG_CLR = 8
DBG_KCLR = 41
DBG_RLD = 42
DBG_KLD = 43
DBG_MODCNT = 8
DBG_HCNT = 40
DBG_ERR = 40

S_WS = 4
S_DBG = 6
S_GRP, S_MEM, S_WAVE, S_FAST = 8, 9, 10, 11
SPIN_MAX = 100000

class Lds:
    def __init__(self, A):
        self.A = A; self.q = []
    def op(self, text, tag=None):
        self.A(text); self.q.append(tag)
    def wait(self, tag):
        if tag not in self.q: return
        i = len(self.q) - 1 - self.q[::-1].index(tag)
        n = len(self.q) - 1 - i
        self.A(f"s_waitcnt lgkmcnt({min(n, 15)})")
        if n > 15:
            self.q = self.q[len(self.q) - 15:]
        else:
            self.q = self.q[i + 1:]
    def waitall(self):
        self.A("s_waitcnt lgkmcnt(0)"); self.q = []

def add64(A, dst, src, off):
    A(f"s_add_u32 s{dst}, s{src}, {off}")
    A(f"s_addc_u32 s{dst+1}, s{src+1}, 0")

def arr_word(g): return (g & 3) + 32 * (g >> 2)
def preamble(A, nwg=256):
    A(f"s_cmp_ge_u32 s2, {nwg}")
    A("s_cbranch_scc1 L_exit")
    A(f"s_load_dwordx4 s[4:7], s[0:1], {KA_DBG}")
    if FORCE.get('cpf', 1):
        A("s_getpc_b64 s[14:15]")
        A.label("L_code0")
        A("s_lshr_b32 s12, s2, 3")
        A("s_lshl_b32 s12, s12, 12")
        A("v_lshl_add_u32 v1, v0, 4, s12")
        A("v_min_u32 v1, L_code_end-L_code0-4, v1")
        A("v_and_b32 v2, 3, v0")
        A("v_cmp_eq_u32 vcc, 0, v2")
        A("s_mov_b64 exec, vcc")
        A("global_load_dword v63, v1, s[14:15]")
        A("s_mov_b64 exec, -1")
    A("s_getreg_b32 s3, hwreg(HW_REG_XCC_ID, 0, 4)")
    A("v_lshrrev_b32 v1, 6, v0")
    A("v_readfirstlane_b32 s10, v1")
    A("s_and_b32 s8, s2, 7")
    A("s_lshr_b32 s9, s2, 3")
    A("v_and_b32 v1, 63, v0")
    A("s_waitcnt lgkmcnt(0)")
    A("s_mov_b64 s[12:13], s[4:5]")
    A("s_mov_b64 s[4:5], s[6:7]")
    A("s_mov_b64 s[6:7], s[12:13]")
    l2 = A.newlabel('L_pre')
    A("s_cmp_lg_u32 s10, 3")
    A(f"s_cbranch_scc1 {l2}")
    A("s_lshl_b32 s12, s2, 8")
    A(f"s_add_u32 s12, s12, {WS_KVPROG}")
    A("v_lshl_add_u32 v2, v1, 2, s12")
    A("v_mov_b32 v3, 0")
    A("global_store_dword v2, v3, s[4:5] sc1")
    A(f"s_bfe_u32 s12, s2, {0x10000 if FORCE.get('tm') else 0x10002}")
    A("s_xor_b32 s12, s12, 1")
    for r in range(4): A(f"v_mov_b32 v{4+r}, s12")
    A("s_lshl_b32 s12, s2, 10")
    A(f"s_add_u32 s12, s12, {WS_RP}")
    A("v_lshl_add_u32 v2, v1, 4, s12")
    A("global_store_dwordx4 v2, v[4:7], s[4:5] sc1")
    for r in range(4): A(f"v_mov_b32 v{8+r}, -1")
    l1 = A.newlabel('L_pre1')
    A("s_cmp_ge_u32 s2, 32")
    A(f"s_cbranch_scc1 {l1}")
    A("s_bfe_u32 s12, s2, 0x10001")
    A("s_xor_b32 s12, s12, 1")
    for r in range(4): A(f"v_mov_b32 v{12+r}, s12")
    A("v_add_u32 v3, 0x40000, v2")
    A("global_store_dwordx4 v3, v[12:15], s[4:5] sc1")
    A.label(l1)
    A(f"v_add_u32 v3, {WS_RM - WS_RP}, v2")
    A("global_store_dwordx4 v3, v[8:11], s[4:5] sc1")
    A("s_mul_i32 s12, s3, s3")
    A("s_lshl_b32 s12, s12, 10")
    A("s_add_u32 s12, s12, s3")
    A("s_lshl_b32 s12, s12, 8")
    A("s_add_u32 s12, s12, 1")
    A("v_mov_b32 v3, s12")
    A("s_and_b32 s12, s8, 3")
    A("s_lshr_b32 s13, s8, 2")
    A("s_lshl_b32 s13, s13, 5")
    A("s_add_u32 s12, s12, s13")
    A("s_lshl_b32 s12, s12, 2")
    A("v_mov_b32 v2, s12")
    A("s_waitcnt vmcnt(0)")
    A("s_mov_b64 exec, 1")
    A("global_atomic_add v2, v3, s[6:7] sc1")
    A("s_mov_b64 exec, -1")
    A.label(l2)

def mode_check(A, tv=1, ts=12, force_slow=False, pre=None):
    done = A.newlabel('L_mc_done'); loop = A.newlabel('L_mc')
    lane_const(A, tv, lambda t: arr_word(t & 7) * 4, tmp=tv + 1)
    A(f"s_mov_b32 s{ts}, 0")
    if pre is not None:
        A(f"v_mov_b32 v{tv+1}, v{pre}")
        A(f"v_and_b32 v{tv+2}, 0xff, v{tv+1}")
        A(f"v_cmp_ne_u32 vcc, 32, v{tv+2}")
        A(f"s_cbranch_vccnz {loop}")
        A(f"v_readfirstlane_b32 s54, v{pre+2}")
        A(f"s_branch {done}")
    A.label(loop)
    A(f"global_load_dword v{tv+1}, v{tv}, s[6:7] sc1")
    A(f"s_add_u32 s{ts}, s{ts}, 1")
    A(f"s_cmp_gt_u32 s{ts}, {SPIN_MAX}")
    A(f"s_cbranch_scc1 L_exit")
    A("s_waitcnt vmcnt(0)")
    A(f"v_and_b32 v{tv+2}, 0xff, v{tv+1}")
    A(f"v_cmp_ne_u32 vcc, 32, v{tv+2}")
    A(f"s_cbranch_vccz {done}")
    A(f"v_cmp_lt_u32 vcc, 32, v{tv+2}")
    A("s_cbranch_vccnz L_exit")
    A("s_sleep 24")
    A(f"s_branch {loop}")
    A.label(done)
    A(f"v_readlane_b32 s{ts}, v{tv+1}, s8")
    A(f"s_mul_i32 s{ts+1}, s3, s3")
    A(f"s_lshl_b32 s{ts+1}, s{ts+1}, 10")
    A(f"s_add_u32 s{ts+1}, s{ts+1}, s3")
    A(f"s_lshl_b32 s{ts+1}, s{ts+1}, 8")
    A(f"s_add_u32 s{ts+1}, s{ts+1}, 1")
    A(f"s_lshl_b32 s{ts+1}, s{ts+1}, 5")
    A(f"s_cmp_eq_u32 s{ts}, s{ts+1}")
    A(f"s_cselect_b32 s11, {0 if force_slow or FORCE['slow'] else 1}, 0")

FORCE = {'slow': False}
def counter_arrive(A, word, tv=1):
    l = A.newlabel('L_arr')
    A("s_cmp_lg_u32 s10, 0")
    A(f"s_cbranch_scc1 {l}")
    A(f"v_mov_b32 v{tv}, {word*4}")
    A(f"v_mov_b32 v{tv+1}, 1")
    A("s_mov_b64 exec, 1")
    A(f"global_atomic_add v{tv}, v{tv+1}, s[6:7] sc1")
    A("s_mov_b64 exec, -1")
    A.label(l)

def counter_wait(A, word, count, tv=1, ts=12, sleep=12, one=True):
    loop = A.newlabel('L_cw'); done = A.newlabel('L_cwd')
    if one:
        A("s_cmp_lg_u32 s10, 0")
        A(f"s_cbranch_scc1 {done}")
    A(f"v_mov_b32 v{tv}, {word*4}")
    A(f"s_mov_b32 s{ts}, 0")
    A.label(loop)
    A(f"global_load_dword v{tv+1}, v{tv}, s[6:7] sc1")
    A(f"s_add_u32 s{ts}, s{ts}, 1")
    A(f"s_cmp_gt_u32 s{ts}, {SPIN_MAX}")
    A(f"s_cbranch_scc1 L_exit")
    A("s_waitcnt vmcnt(0)")
    A(f"v_cmp_gt_u32 vcc, {count}, v{tv+1}")
    A(f"s_cbranch_vccz {done}")
    A(f"s_sleep {sleep}")
    A(f"s_branch {loop}")
    A.label(done)
    if one: A("s_barrier")

def lane_const(A, dst, f, src=0, nbits=8, tmp=None, mode=None, acc=False):
    N = 1 << nbits
    f0 = f(0)
    def check(m):
        d = [(f(1 << k) ^ f0) if m == 'xor' else (f(1 << k) - f0) for k in range(nbits)]
        for x in range(N):
            y = f0
            for k in range(nbits):
                if x >> k & 1: y = (y ^ d[k]) if m == 'xor' else y + d[k]
            if y != f(x): return None
        return d
    for m in ([mode] if mode else ['add', 'xor']):
        d = check(m)
        if d is not None: break
    assert d is not None, "function not affine"
    assert tmp is not None and tmp != dst and dst != src
    work = dst
    if acc and m == 'xor':
        work = tmp + 1
    if acc and m == 'add':
        if f0: A(f"v_add_u32 v{dst}, {f0 & 0xffffffff:#x}, v{dst}")
    else:
        A(f"v_mov_b32 v{work}, {f0 & 0xffffffff:#x}")
    k = 0
    while k < nbits:
        if d[k] == 0: k += 1; continue
        n = 1
        while k + n < nbits and d[k + n] == d[k] << n: n += 1
        c = d[k]
        if c > 0 and c & (c - 1) == 0:
            sh = c.bit_length() - 1
            A(f"v_bfe_u32 v{tmp}, v{src}, {k}, {n}")
            if m == 'add': A(f"v_lshl_add_u32 v{work}, v{tmp}, {sh}, v{work}")
            else:
                A(f"v_lshlrev_b32 v{tmp}, {sh}, v{tmp}")
                A(f"v_xor_b32 v{work}, v{work}, v{tmp}")
        elif m == 'add' and 0 < c < (1 << 24):
            A(f"v_bfe_u32 v{tmp}, v{src}, {k}, {n}")
            A(f"v_mul_u32_u24 v{tmp}, {c:#x}, v{tmp}")
            A(f"v_add_u32 v{work}, v{work}, v{tmp}")
        else:
            n = 1
            A(f"v_bfe_i32 v{tmp}, v{src}, {k}, 1")
            A(f"v_and_b32 v{tmp}, {c & 0xffffffff:#x}, v{tmp}")
            A(f"v_{'xor_b32' if m == 'xor' else 'add_u32'} v{work}, v{work}, v{tmp}")
        k += n
    if work != dst:
        A(f"v_add_u32 v{dst}, v{dst}, v{work}")


MF32 = "v_mfma_f32_16x16x32_bf16"
MF16 = "v_mfma_f32_16x16x16_bf16"

def ring_load(A, chunks, nslots=8, lbase=0, tmp=28, sb=26):
    A(f"s_lshl_b32 s{sb}, s10, 12")
    if lbase: A(f"s_add_u32 s{sb}, s{sb}, {lbase}")
    def issue(j):
        c = chunks[j]
        add64(A, 12, c['ptr'], c['off'])
        for ip in range(4):
            A(f"s_add_u32 m0, s{sb}, {(j % nslots) * 16384 + ip * 1024}")
            A(f"global_load_lds_dwordx4 v{c['vb']+ip}, s[12:13]")
    n = len(chunks); ah = nslots - 1
    for j in range(min(ah, n)): issue(j)
    for j in range(n):
        A(f"s_waitcnt vmcnt({4 * (min(n - 1, j + ah - 1) - j)})")
        A("s_barrier")
        if j + ah < n: issue(j + ah)
        regs = sorted({r[1] for r in chunks[j]['reads']})
        for k, ar in enumerate(regs): A(f"v_add_u32 v{tmp+k}, {(j % nslots) * 16384 + lbase}, v{ar}")
        for dst, ar, imm in chunks[j]['reads']:
            A(f"ds_read_b64_tr_b16 {u(dst, 2)}, v{tmp + regs.index(ar)} offset:{imm}")
        if 'post' in chunks[j]: chunks[j]['post']()
        A("s_waitcnt lgkmcnt(0)")
    A("s_barrier")

def swzA(row): return 2 * ((row & 3) | ((row >> 3) & 1) << 2)
def swzB(row): return 2 * (((row >> 1) & 1) | ((row >> 2) & 1) << 1)
def dense256_consts(A, vb, tra, stride, tmp):
    for ip in range(4):
        lane_const(A, vb + ip, lambda t: (16 * (t >> 6) + 4 * ip + ((t & 63) >> 4)) * stride, tmp=tmp)
        lane_const(A, vb + ip, lambda t: ((t & 15) ^ swzA(16 * (t >> 6) + 4 * ip + ((t & 63) >> 4))) * 16, tmp=tmp, acc=True)
    for b in range(2):
        def f(t):
            w, l = t >> 6, t & 63
            row = 8 * (l >> 4) + ((l >> 2) & 3); c = l & 3
            return row * 256 + (((4 * w + 2 * b + (c >> 1)) ^ swzA(row)) * 16) + (c & 1) * 8
        lane_const(A, tra + b, f, tmp=tmp)
def dense256_reads(dstf, tra, c):
    return [(dstf(2 * c + kl, b) + 2 * hq, tra + b, (32 * kl + 4 * hq) * 256) for kl in range(2) for b in range(2) for hq in range(2)]
def dense128_consts(A, vb, tra, tmp):
    for ip in range(4):
        lane_const(A, vb + ip, lambda t: (32 * (t >> 6) + 8 * ip + ((t & 63) >> 3)) * 1152, tmp=tmp)
        lane_const(A, vb + ip, lambda t: ((t & 7) ^ swzB(32 * (t >> 6) + 8 * ip + ((t & 63) >> 3))) * 16, tmp=tmp, acc=True)
    def f(t):
        w, l = t >> 6, t & 63
        row = 4 * (l >> 4) + ((l >> 2) & 3); c = l & 3
        return row * 128 + (((2 * w + (c >> 1)) ^ swzB(row)) * 16) + (c & 1) * 8
    lane_const(A, tra, f, tmp=tmp)
def dense128_reads(dstf, tra, t):
    return [(dstf(t, j) + 2 * hq, tra, (32 * j + 16 * hq) * 128) for j in range(4) for hq in range(2)]

def seg_dma(A, vT16, src, ldsreg):
    A(f"s_mov_b64 s[12:13], s[{src}:{src+1}]")
    for j in range(9):
        A(f"s_add_u32 m0, s{ldsreg}, {j * 4096}")
        A(f"global_load_lds_dwordx4 v{vT16}, s[12:13]")
        if j < 8: add64(A, 12, 12, 4096)

def flag_wait(A, addr_v, base, val_s, tv, ts, sleep=1):
    loop = A.newlabel('L_fw'); done = A.newlabel('L_fwd')
    A(f"s_mov_b32 s{ts}, 0")
    A.label(loop)
    A(f"global_load_dword v{tv}, v{addr_v}, s[{base}:{base+1}] sc1")
    A(f"s_add_u32 s{ts}, s{ts}, 1")
    A(f"s_cmp_gt_u32 s{ts}, {SPIN_MAX}")
    A("s_cbranch_scc1 L_exit")
    A("s_waitcnt vmcnt(0)")
    A(f"v_cmp_gt_u32 vcc, s{val_s}, v{tv}")
    A(f"s_cbranch_vccz {done}")
    if sleep: A(f"s_sleep {sleep}")
    A(f"s_branch {loop}")
    A.label(done)

def xsum(A, r, t, op="v_add_f32", bits=(0, 1, 2, 3, 4, 5)):
    for b in bits:
        if b == 0: A(f"{op}_dpp v{r}, v{r}, v{r} quad_perm:[1,0,3,2] row_mask:0xf bank_mask:0xf")
        elif b == 1: A(f"{op}_dpp v{r}, v{r}, v{r} quad_perm:[2,3,0,1] row_mask:0xf bank_mask:0xf")
        elif b == 2: A(f"{op}_dpp v{r}, v{r}, v{r} row_ror:4 row_mask:0xf bank_mask:0xf")
        elif b == 3: A(f"{op}_dpp v{r}, v{r}, v{r} row_ror:8 row_mask:0xf bank_mask:0xf")
        else:
            A(f"v_mov_b32 v{t}, v{r}")
            A(f"v_permlane{16 if b == 4 else 32}_swap_b32 v{r}, v{t}")
            A(f"{op} v{r}, v{r}, v{t}")

def f32bits(x):
    import struct
    return struct.unpack('<I', struct.pack('<f', x))[0]
def rnd1(A, r, t=None):
    A(f"v_cvt_pk_bf16_f32 v{r}, v{r}, v{r}")
    A(f"v_lshlrev_b32 v{r}, 16, v{r}")
def rnd2(A, r):
    A(f"v_cvt_pk_bf16_f32 v{r+1}, v{r}, v{r+1}")
    A(f"v_lshlrev_b32 v{r}, 16, v{r+1}")
    A(f"v_and_b32 v{r+1}, 0xffff0000, v{r+1}")

TL = {'on': False}
DBGMAP = {(0, 1): 4, (0, 3): 5, (0, 4): 6, (1, 1): 7, (1, 2): 9, (2, 1): 10, (2, 4): 11, (5, 7): 12, (5, 1): 13, (5, 4): 14, (2, 7): 15}
def tl(A, slot, tv=60):
    if TL.get('dbg'):
        if slot == 0:
            A("s_memrealtime s[98:99]")
            A("s_waitcnt lgkmcnt(0)")
            return
        for (g, sl), wd in DBGMAP.items():
            if sl != slot: continue
            l = A.newlabel('L_tl')
            A(f"s_cmp_lg_u32 s8, {g}")
            A(f"s_cbranch_scc1 {l}")
            A("s_memrealtime s[100:101]")
            A("s_lshl_b32 s12, s9, 7")
            A(f"s_add_u32 s12, s12, {WS_STAMP + 0x40000 + wd * 4096}")
            A(f"v_mov_b32 v{tv}, s12")
            A("s_waitcnt lgkmcnt(0)")
            A("s_sub_u32 s100, s100, s98")
            A(f"v_mov_b32 v{tv+1}, s100")
            A("s_cmp_lg_u32 s10, 0")
            A(f"s_cbranch_scc1 {l}")
            A("s_mov_b64 exec, 1")
            A(f"global_store_dword v{tv}, v{tv+1}, s[4:5] sc1")
            A("s_mov_b64 exec, -1")
            if (g, sl) == (5, 4):
                A("s_cmp_lg_u32 s9, 0")
                A(f"s_cbranch_scc1 {l}")
                A("s_waitcnt vmcnt(0)")
                A("v_mbcnt_lo_u32_b32 v8, -1, 0")
                A("v_min_u32 v8, 31, v8")
                A("v_lshlrev_b32 v8, 7, v8")
                for wd2 in DBGMAP.values():
                    A(f"v_add_u32 v9, {WS_STAMP + 0x40000 + wd2 * 4096}, v8")
                    A("global_load_dword v10, v9, s[4:5] sc1")
                    A("s_waitcnt vmcnt(0)")
                    if wd2 != 14: xsum(A, 10, 11, op="v_max_u32")
                    A(f"v_mov_b32 v9, {wd2 * 4}")
                    A("s_mov_b64 exec, 1")
                    A("global_store_dword v9, v10, s[6:7] sc1")
                    A("s_mov_b64 exec, -1")
            A.label(l)
        return
    if not TL['on']: return
    A("s_memrealtime s[100:101]")
    A("s_lshl_b32 s12, s8, 5")
    A("s_add_u32 s12, s12, s9")
    A("s_lshl_b32 s12, s12, 6")
    A(f"s_add_u32 s12, s12, {WS_STAMP + 0x30000 + slot * 4}")
    A(f"v_mov_b32 v{tv}, s12")
    A("s_waitcnt lgkmcnt(0)")
    A(f"v_mov_b32 v{tv+1}, s100")
    A(f"global_store_dword v{tv}, v{tv+1}, s[4:5]")
    A("s_waitcnt vmcnt(0)")

def kvm_clear(A, idx_s):
    for r in range(4): A(f"v_mov_b32 v{8+r}, -1")
    A(f"s_mul_i32 s12, {idx_s}, {88 * 1024}")
    A(f"s_add_u32 s12, s12, {WS_KVM}")
    add64(A, 12, S_WS, "s12")
    A("v_lshlrev_b32 v3, 4, v0")
    for i in range(22):
        A("global_store_dwordx4 v3, v[8:11], s[12:13] sc1")
        if i < 21: add64(A, 12, 12, 4096)
    A("s_waitcnt vmcnt(0)")
    A("s_barrier")
    counter_arrive(A, DBG_KCLR, tv=4)

def backoff(A, cnt_s, after=2, sleep=10):
    l = A.newlabel('L_bo')
    A(f"s_cmp_le_u32 s{cnt_s}, {after}")
    A(f"s_cbranch_scc1 {l}")
    A(f"s_sleep {sleep}")
    A.label(l)

def h_wait(A, tv, l4=None):
    done = A.newlabel('L_hw'); loop = A.newlabel('L_hwl')
    A("s_cmp_lg_u32 s10, 0")
    A(f"s_cbranch_scc1 {done}")
    A(f"v_mbcnt_lo_u32_b32 v{tv}, -1, 0")
    A(f"v_mbcnt_hi_u32_b32 v{tv}, -1, v{tv}")
    A(f"v_lshlrev_b32 v{tv}, 3, v{tv}")
    A(f"v_add_u32 v{tv}, {WS_HINT}, v{tv}")
    A("s_mov_b32 s12, 0")
    A.label(loop)
    A(f"global_load_dwordx2 {v(tv + 2, 2)}, v{tv}, s[4:5] sc1")
    A("s_add_u32 s12, s12, 1")
    A(f"s_cmp_gt_u32 s12, {SPIN_MAX}")
    A("s_cbranch_scc1 L_exit")
    A("s_waitcnt vmcnt(0)")
    A(f"v_and_b32 v{tv+2}, v{tv+2}, v{tv+3}")
    A(f"v_cmp_eq_u32 vcc, 0, v{tv+2}")
    A(f"s_cbranch_vccz {done}")
    A("s_sleep 6")
    A(f"s_branch {loop}")
    A.label(done)
    A("s_barrier")
```

```python
from common import *
import math

def stage_mod(A, idx_s):
    A(f"s_load_dwordx4 s[16:19], s[0:1], {KA_C}")
    lane_const(A, 2, lambda t: (t >> 3) * 6912 + (t & 7) * 16, tmp=1)
    lane_const(A, 3, lambda t: (t >> 3) * 2, tmp=1)
    A(f"s_lshl_b32 s12, {idx_s}, 7")
    A("s_waitcnt lgkmcnt(0)")
    add64(A, 18, 18, "s12")
    for i in range(18): A(f"global_load_ushort v{8+i}, v3, s[16:17] offset:{64 * i}")
    for i in range(18):
        A(f"global_load_dwordx4 {v(40 + 4 * i, 4)}, v2, s[18:19]")
        if i < 17: add64(A, 18, 18, 32 * 6912)
    A(f"s_mov_b32 s12, {f32bits(-math.log2(math.e)):#x}")
    A("s_waitcnt vmcnt(18)")
    for i in range(18):
        r = 8 + i
        A(f"v_lshlrev_b32 v{r}, 16, v{r}")
        A(f"v_mul_f32 v4, s12, v{r}")
        A("v_exp_f32 v4, v4")
        A("v_add_f32 v4, 1.0, v4")
        A("v_rcp_f32 v4, v4")
        A(f"v_mul_f32 v{r}, v{r}, v4")
        rnd1(A, r)
    for k in range(8): A(f"v_mov_b32 v{28+k}, 0")
    for i in range(18):
        A(f"s_waitcnt vmcnt({17 - i})")
        for q in range(4):
            A(f"v_lshlrev_b32 v4, 16, v{40+4*i+q}")
            A(f"v_and_b32 v5, 0xffff0000, v{40+4*i+q}")
            A(f"v_fmac_f32 v{28+2*q}, v4, v{8+i}")
            A(f"v_fmac_f32 v{29+2*q}, v5, v{8+i}")
    A("v_lshlrev_b32 v4, 5, v0")
    A("ds_write_b128 v4, v[28:31]")
    A("ds_write_b128 v4, v[32:35] offset:16")
    A("s_waitcnt lgkmcnt(0)")
    A("s_barrier")
    l = A.newlabel('L_md')
    A("s_cmp_lg_u32 s10, 0")
    A(f"s_cbranch_scc1 {l}")
    A("v_lshlrev_b32 v4, 2, v0")
    for i in range(32): A(f"ds_read_b32 v{8+i}, v4 offset:{256 * i}")
    A("s_waitcnt lgkmcnt(0)")
    for st in (16, 8, 4, 2, 1):
        for i in range(st): A(f"v_add_f32 v{8+i}, v{8+i}, v{8+i+st}")
    rnd1(A, 8)
    A("v_add_f32 v9, 1.0, v8")
    A(f"s_sub_u32 s12, {idx_s}, 9")
    A(f"s_sub_u32 s13, {idx_s}, 36")
    A("s_min_u32 s12, s12, s13")
    A("s_cmp_lt_u32 s12, 9")
    A("s_cselect_b64 vcc, -1, 0")
    A("v_cndmask_b32 v8, v8, v9, vcc")
    A("v_cvt_pk_bf16_f32 v8, v8, v8")
    A(f"s_lshl_b32 s12, {idx_s}, 7")
    A("v_lshl_add_u32 v4, v0, 1, s12")
    A(f"global_store_short v4, v8, s[4:5] offset:{WS_MOD} sc1")
    A("s_waitcnt vmcnt(0)")
    A.label(l)
    counter_arrive(A, DBG_MODCNT, tv=4)
    A("s_barrier")

def stage_ln1(A, idx_s):
    lsk = A.newlabel('L_lnskip')
    A("s_mul_i32 s15, s10, 96")
    A(f"s_add_u32 s15, s15, {idx_s}")
    A("s_cmp_ge_u32 s15, 128")
    A(f"s_cbranch_scc1 {lsk}")
    X = 16
    A(f"s_load_dwordx2 s[16:17], s[0:1], {KA_X}")
    lane_const(A, 2, lambda t: (t & 15) * 1152 + ((t >> 4) & 3) * 16, tmp=1)
    lane_const(A, 3, lambda t: ((t >> 4) & 3) * 16, tmp=1)
    lane_const(A, 4, lambda t: (t & 63) * 16, tmp=1)
    A("s_mul_i32 s12, s15, 18432")
    A("s_waitcnt lgkmcnt(0)")
    add64(A, 16, 16, "s12")
    A(f"s_add_u32 s12, s12, {WS_H}")
    add64(A, 18, S_WS, "s12")
    for ks in range(18): A(f"global_load_dwordx4 {v(160 + 4 * ks, 4)}, v2, s[16:17] offset:{64 * ks}")
    A("v_mov_b64 v[6:7], 0")
    for ks in range(18):
        A(f"s_waitcnt vmcnt({17 - ks})")
        for q in range(4):
            r = X + 8 * ks + 2 * q
            A(f"v_lshlrev_b32 v{r}, 16, v{160+4*ks+q}")
            A(f"v_and_b32 v{r+1}, 0xffff0000, v{160+4*ks+q}")
            A(f"v_pk_add_f32 v[6:7], v[6:7], {v(r, 2)}")
    A("v_add_f32 v6, v6, v7")
    xsum(A, 6, 7, bits=(4, 5))
    A(f"v_mul_f32 v6, {f32bits(1.0 / 576):#x}, v6")
    A("v_mov_b64 v[8:9], 0")
    for i in range(72):
        A(f"v_pk_add_f32 v[10:11], {v(X + 2 * i, 2)}, v[6:7] op_sel_hi:[1,0] neg_lo:[0,1] neg_hi:[0,1]")
        A("v_pk_fma_f32 v[8:9], v[10:11], v[10:11], v[8:9]")
    A("v_add_f32 v8, v8, v9")
    xsum(A, 8, 9, bits=(4, 5))
    A(f"v_mul_f32 v8, {f32bits(1.0 / 576):#x}, v8")
    rnd1(A, 8); rnd1(A, 6)
    A(f"v_add_f32 v8, {f32bits(1e-5):#x}, v8")
    rnd1(A, 8)
    A("v_sqrt_f32 v8, v8")
    rnd1(A, 8)
    A("v_rcp_f32 v8, v8")
    for i in range(72):
        r = X + 2 * i
        A(f"v_pk_add_f32 {v(r, 2)}, {v(r, 2)}, v[6:7] op_sel_hi:[1,0] neg_lo:[0,1] neg_hi:[0,1]")
        rnd2(A, r)
        A(f"v_pk_mul_f32 {v(r, 2)}, {v(r, 2)}, v[8:9] op_sel_hi:[1,0]")
        rnd2(A, r)
    tl(A, 5, 10)
    counter_wait(A, DBG_MODCNT, 54, tv=10, sleep=8, one=False)
    tl(A, 6, 10)
    def mload(bt):
        for k in range(6):
            ks = 6 * bt + k; rb = 160 + 48 * (bt & 1) + 8 * k
            A(f"global_load_dwordx4 {v(rb, 4)}, v3, s[4:5] offset:{WS_MOD + 1152 + 64 * ks} sc1")
            A(f"global_load_dwordx4 {v(rb + 4, 4)}, v3, s[4:5] offset:{WS_MOD + 64 * ks} sc1")
    mload(0); mload(1)
    for bt in range(3):
        A(f"s_waitcnt vmcnt({12 if bt < 2 else 0})")
        for k in range(6):
            ks = 6 * bt + k; rb = 160 + 48 * (bt & 1) + 8 * k
            for q in range(4):
                r = X + 8 * ks + 2 * q
                A(f"v_lshlrev_b32 v10, 16, v{rb+q}")
                A(f"v_and_b32 v11, 0xffff0000, v{rb+q}")
                A(f"v_lshlrev_b32 v12, 16, v{rb+4+q}")
                A(f"v_and_b32 v13, 0xffff0000, v{rb+4+q}")
                A(f"v_pk_mul_f32 {v(r, 2)}, {v(r, 2)}, v[10:11]")
                rnd2(A, r)
                A(f"v_pk_add_f32 {v(r, 2)}, {v(r, 2)}, v[12:13]")
                A(f"v_cvt_pk_bf16_f32 v{X+8*ks+q}, v{r}, v{r+1}")
            if bt == 2:
                for kk in (k, 6 + k, 12 + k):
                    add64(A, 12, 18, kk * 1024)
                    A(f"global_store_dwordx4 v4, {v(X + 8 * kk, 4)}, s[12:13] sc1")
        if bt == 0: mload(2)
    mode_check(A, tv=10)
    A("s_lshl_b32 s12, s15, 2")
    A(f"s_add_u32 s12, s12, {WS_HINT}")
    A("v_mov_b32 v10, s12")
    A("v_mov_b32 v11, 1")
    A("s_mov_b64 exec, 1")
    A("global_store_dword v10, v11, s[4:5] sc1")
    A("s_mov_b64 exec, -1")
    A.label(lsk)
    A("s_barrier")

def WF(i):
    return 256 + 4 * i if i < 64 else 224 + 4 * (i - 64)

def role_kv(A, restart, nkv, kvg0, wait_h=True):
    A(f"s_load_dwordx4 s[16:19], s[0:1], {KA_WK}")
    dense256_consts(A, 12, 16, 8192, 1)
    A("s_lshl_b32 s12, s9, 8")
    A("s_waitcnt lgkmcnt(0)")
    add64(A, 16, 16, "s12"); add64(A, 18, 18, "s12")
    def fr(m, ks, b): return WF(ks * 4 + m * 2 + b)
    chunks = []
    for c in range(9):
        for m in range(2):
            chunks.append(dict(ptr=16 + 2 * m, off=c * 64 * 8192, vb=12, reads=dense256_reads(lambda ks, b, m=m: fr(m, ks, b), 16, c)))
    if FORCE.get('ord', 0) & 2: chunks = chunks[1::2] + chunks[0::2]
    ring_load(A, chunks)
    tl(A, 1)
    mode_check(A, tv=12)
    T16, L16, HA = 1, 2, 3
    A(f"v_lshlrev_b32 v{T16}, 4, v0")
    lane_const(A, L16, lambda t: (t & 63) * 16, tmp=12)
    A(f"s_sub_u32 s24, s8, {kvg0}")
    A(f"s_mul_i32 s12, s24, {SEG_H}")
    A(f"s_add_u32 s12, s12, {WS_H}")
    add64(A, 20, S_WS, "s12")
    A("s_lshl_b32 s12, s24, 5")
    A("s_add_u32 s12, s12, s9")
    A("s_lshl_b32 s13, s12, 12")
    A(f"s_add_u32 s13, s13, {WS_KVM}")
    add64(A, 34, S_WS, "s13")
    for r in range(4): A(f"v_mov_b32 v{80+r}, -1")
    A("s_lshl_b32 s12, s12, 14")
    A(f"s_add_u32 s12, s12, {WS_KV + 2048}")
    add64(A, 22, S_WS, "s12")
    A("s_lshl_b32 s13, s10, 11")
    A("s_add_u32 s12, s12, s13")
    A("s_add_u32 s12, s12, 6144")
    add64(A, 30, S_WS, "s12")
    A("s_lshl_b32 s12, s8, 5")
    A("s_add_u32 s12, s12, s9")
    A("s_lshl_b32 s12, s12, 5")
    A("s_add_u32 s12, s12, s10")
    A("s_lshl_b32 s12, s12, 2")
    A(f"s_add_u32 s12, s12, {WS_KVPROG}")
    add64(A, 32, S_WS, "s12")
    A("s_lshl_b32 s26, s10, 10")
    A("s_mov_b32 s27, 0")
    A("s_mov_b32 s28, 0")
    A("s_mov_b32 s29, 0")
    if wait_h: h_wait(A, 12)
    tl(A, 2)
    def adv():
        add64(A, 20, 20, nkv * SEG_H)
        A(f"s_add_u32 s26, s26, {SEG_H}")
        A(f"s_cmp_ge_u32 s26, {3 * SEG_H}")
        A(f"s_cselect_b32 s12, {3 * SEG_H}, 0")
        A("s_sub_u32 s26, s26, s12")
    for _ in range(2):
        seg_dma(A, T16, 20, 26); adv()
    A("s_waitcnt vmcnt(9)")
    A("s_branch L_kv_first")
    A.label("L_kv_top")
    A("s_waitcnt vmcnt(15)")
    A.label("L_kv_first")
    A("s_barrier")
    A(f"v_add_u32 v{HA}, s27, v{L16}")
    A("v_mov_b32 v4, s28")
    D = Lds(A)
    ACC, RING, NR = 8, 40, 6
    seq = [(ks, tt) for ks in range(18) for tt in range(2)]
    def rd(i):
        ks, tt = seq[i]
        D.op(f"ds_read_b128 {v(RING + 4 * (i % NR), 4)}, v{HA} offset:{(tt * 18 + ks) * 1024}", i)
    for i in range(NR - 1): rd(i)
    A("s_mov_b64 s[12:13], s[20:21]")
    for i, (ks, tt) in enumerate(seq):
        if i + NR - 1 < 36: rd(i + NR - 1)
        D.wait(i)
        h = v(RING + 4 * (i % NR), 4)
        for m in range(2):
            for b in range(2):
                d = v(ACC + ((m * 2 + b) * 2 + tt) * 4, 4)
                w = u(fr(m, ks, b), 4)
                A(f"{MF32} {d}, {w if m == 0 else h}, {h if m == 0 else w}, {d if ks else 0}")
                if i < 9 and (m, b) == (0, 0): A(f"s_add_u32 m0, s26, {i * 4096}")
                if i < 9 and (m, b) == (0, 1): A(f"global_load_lds_dwordx4 v{T16}, s[12:13]")
                if i < 8 and (m, b) == (1, 0): add64(A, 12, 12, 4096)
                if i == 10 and (m, b) == (0, 0): adv()
                if i == 20 and (m, b) == (0, 0):
                    A("s_waitcnt vmcnt(9)")
                    A("s_mov_b64 exec, 1")
                    A(f"global_store_dword v{L16}, v4, s[32:33] sc1")
                    A("s_mov_b64 exec, -1")
                if i == 24 and (m, b) == (0, 0): A(f"global_store_dwordx4 v{T16}, v[80:83], s[34:35] sc1")
    def ac(m, b, tt): return ACC + ((m * 2 + b) * 2 + tt) * 4
    O = 64
    for tt in range(2):
        for r in range(4): A(f"v_cvt_pk_bf16_f32 v{O+4*tt+r}, v{ac(0,0,tt)+r}, v{ac(0,1,tt)+r}")
        A(f"global_store_dwordx4 v{T16}, {v(O + 4 * tt, 4)}, s[22:23] offset:{tt * 4096 - 2048} sc1")
    for b in range(2):
        for q in range(4): A(f"v_cvt_pk_bf16_f32 v{O+8+4*b+q}, v{ac(1,b,q>>1)+2*(q&1)}, v{ac(1,b,q>>1)+2*(q&1)+1}")
        A(f"global_store_dwordx4 v{L16}, {v(O + 8 + 4 * b, 4)}, s[30:31] offset:{b * 1024} sc1")
    add64(A, 22, 22, nkv << 19); add64(A, 30, 30, nkv << 19); add64(A, 34, 34, nkv << 17)
    A(f"s_add_u32 s27, s27, {SEG_H}")
    A(f"s_cmp_ge_u32 s27, {3 * SEG_H}")
    A("s_cselect_b32 s27, 0, s27")
    A("s_add_u32 s28, s28, 1")
    A(f"s_add_u32 s24, s24, {nkv}")
    A("s_cmp_lt_u32 s24, 64")
    A("s_cbranch_scc1 L_kv_top")
    A("s_waitcnt vmcnt(0)")
    tl(A, 4)
    A("v_mov_b32 v4, s28")
    A("s_mov_b64 exec, 1")
    A(f"global_store_dword v{L16}, v4, s[32:33] sc1")
    A("s_branch L_exit")
```

```python
from common import *
import math
PROW = 1152
ROWB = 32 * PROW
T16, L16, XS, XS8, XL, RW, XL8, L4 = range(8)
EXP = {}
TRN = ['top', 'go', 'mm', 'flag', 'op0', 'op1', 'ack', 'xf', 'red', 'end']
def tr(A, name):
    if not EXP.get('aftrace'): return
    if name not in TRN: TRN.append(name)
    i = TRN.index(name)
    assert i < 11
    A(f"s_memtime s[{80+2*i}:{81+2*i}]")
def tr_dump(A, seg):
    if not EXP.get('aftrace'): return
    l = A.newlabel('L_trd')
    A(f"s_cmp_lg_u32 s47, {seg}")
    A(f"s_cbranch_scc1 {l}")
    A("s_waitcnt lgkmcnt(0)")
    A("s_lshl_b32 s12, s8, 5")
    A("s_add_u32 s12, s12, s9")
    A("s_lshl_b32 s12, s12, 2")
    A("s_add_u32 s12, s12, s10")
    A("s_lshl_b32 s12, s12, 6")
    A(f"s_add_u32 s12, s12, {WS_STAMP + 0x10000}")
    A("v_mov_b32 v8, s12")
    for q in range(11):
        A(f"v_mov_b32 v9, s{80 + 2 * q}")
        A(f"global_store_dword v8, v9, s[4:5] offset:{4 * q}")
        A("s_waitcnt vmcnt(0)")
    A.label(l)

def af_consts(A, l_red):
    lane_const(A, L16, lambda t: (t & 63) * 16, tmp=12)
    lane_const(A, XS, lambda t: ((t >> 4) & 3) * 4 * ROWB + (t & 15) * 8 + (t >> 6) * 256, tmp=12)
    lane_const(A, XS8, lambda t: (t & 15) * ROWB + ((t >> 4) & 3) * 8 + (t >> 6) * 32 + 1024, tmp=12)
    lane_const(A, XL, lambda t: ((t >> 4) & 3) * PROW + (t >> 6) * 256 + (t & 15) * 16, tmp=12)
    lane_const(A, XL8, lambda t: (8 * (t >> 6) + ((t >> 3) & 7)) * PROW + 1024 + (t & 7) * 16, tmp=12)
    lane_const(A, RW, lambda t: l_red + (256 * ((t >> 3) & 1) + 16 * (t >> 6) + 2 * (t & 7) + ((t >> 4) & 1)) * 4, tmp=12)
    lane_const(A, L4, lambda t: (t & 63) * 4, tmp=12)
    A(f"s_mul_i32 s12, s8, {32 * ROWB}")
    A(f"s_add_u32 s12, s12, {WS_XP}")
    A(f"s_mul_i32 s13, s9, {PROW}")
    A("s_add_u32 s13, s13, s12")
    add64(A, 40, S_WS, "s13")
    A(f"s_mul_i32 s13, s9, {ROWB}")
    A("s_add_u32 s13, s13, s12")
    add64(A, 42, S_WS, "s13")
    A("s_lshl_b32 s12, s8, 7")
    A(f"s_add_u32 s12, s12, {WS_XF}")
    add64(A, 44, S_WS, "s12")
    A("s_mov_b32 s47, 0")

def post_flag(A, wave, off, st):
    l = A.newlabel('L_pf')
    A(f"s_cmp_lg_u32 s10, {wave}")
    A(f"s_cbranch_scc1 {l}")
    A("s_lshl_b32 s12, s9, 2")
    A("v_mov_b32 v8, s12")
    A("v_mov_b32 v9, s47")
    A("s_mov_b64 exec, 1")
    A(f"global_store_dword v8, v9, s[44:45] offset:{off} {st}")
    A("s_mov_b64 exec, -1")
    A.label(l)

def out_proj(A, st, wfrag, l_red, k16=None, pre=None):
    D = Lds(A)
    FR, AC, NA_, G, W16, F16 = 8, 28, 6, 52, 68, 72
    tr(A, 'op0')
    A("s_add_u32 s47, s47, 1")
    A("s_xor_b32 s46, s47, s9")
    A("s_and_b32 s46, s46, 1")
    A("v_mov_b32 v24, s46")
    order = [8, 0, 1, 2, 3, 4, 5, 6, 7]
    seq = [(tt, t) for tt in range(2) for t in order]
    pend = []
    def slot(k): return AC + 4 * (k % NA_)
    def chk(k):
        regs = {('v', slot(k) + i) for i in range(4)}
        while any(Ins(line).rd & regs for _, o in pend for line in o.split('\n')):
            A(pend.pop(0)[1])
    def wreg(k): return (68, 70, 76, 78)[k & 3]
    def w16rd(k): D.op(f"ds_read_b64_tr_b16 {v(wreg(k), 2)}, v{k16[1]} offset:{seq[k][1] * 128}", ('w16', k))
    def m16(k):
        D.wait(('w16', k))
        a_, b_ = v(F16 + 2 * seq[k][0], 2), v(wreg(k), 2)
        if seq[k][1] == 8: a_, b_ = b_, a_
        A(f"{MF16} {v(slot(k), 4)}, {a_}, {b_}, {v(slot(k), 4)}")
    def post(grp, rdy):
        for k in grp:
            tt, t = seq[k]; c = slot(k); cp = slot(k - 1)
            if t == 8:
                pend.append((rdy, f"v_cvt_pk_bf16_f32 v{c}, v{c}, v{c+1}"))
                pend.append((rdy, f"v_cvt_pk_bf16_f32 v{c+1}, v{c+2}, v{c+3}"))
                pend.append((rdy, f"v_bfi_b32 v{c}, 1, v24, v{c}"))
                pend.append((rdy, sa.format(16 * tt * ROWB) + f"global_store_dwordx2 v{XS8}, {v(c, 2)}, s[12:13] {st}"))
            elif t & 1:
                for r in range(4): pend.append((rdy, f"v_cvt_pk_bf16_f32 v{G + 4 * r + t // 2}, v{cp+r}, v{c+r}"))
                for r in range(4):
                    if t in (1, 5): pend.append((rdy, f"v_bfi_b32 v{G + 4 * r + t // 2}, 1, v24, v{G + 4 * r + t // 2}"))
                    else: pend.append((rdy + 2 + r, sa.format((16 * tt + r) * ROWB) + f"global_store_dwordx2 v{XS}, {v(G + 4 * r + (t >> 2) * 2, 2)}, s[12:13] offset:{(t >> 2) * 128} {st}"))
    if k16:
        for q in range(4): D.op(f"ds_read_b128 {v(G + 4 * q, 4)}, v{L16} offset:{k16[0] + (q >> 1) * 1024 + (q & 1) * 2048}", ('x9', q))
        for k_ in range(4): w16rd(k_)
    sa = f"s_add_u32 s12, s40, {{}}\ns_addc_u32 s13, s41, 0\n"
    mc = [0]
    groups = []
    for tt in range(2): groups += [[9 * tt, 9 * tt + 1, 9 * tt + 2]] + [[9 * tt + 3 + 2 * q, 9 * tt + 4 + 2 * q] for q in range(3)]
    for gi, grp in enumerate(groups):
        tt = seq[grp[0]][0]
        if seq[grp[0]][1] == 8:
            for j in range(4): D.op(f"ds_read_b128 {v(FR + 4 * j, 4)}, v{L16} offset:{(tt * 4 + j) * 1024}", ('f', j))
        if k16 and gi == 0:
            for tt_ in range(2):
                D.wait(('x9', 2 * tt_ + 1))
                g_ = G + 8 * tt_
                for r in (0, 2): A(f"v_pk_mul_f32 {v(g_ + r, 2)}, {v(g_ + r, 2)}, {v(g_ + 4 + r, 2)}")
                for r in (0, 2): A(f"v_cvt_pk_bf16_f32 v{F16 + 2 * tt_ + r // 2}, v{g_+r}, v{g_+r+1}")
        for k in grp: chk(k)
        def drain():
            mc[0] += 1
            for _ in range(2):
                if pend and pend[0][0] <= mc[0]: A(pend.pop(0)[1])
        for j in range(4):
            D.wait(('f', j))
            for k in grp:
                t = seq[k][1]; c = slot(k)
                a_, b_ = v(FR + 4 * j, 4), u(wfrag(t, j), 4)
                if t == 8: a_, b_ = b_, a_
                A(f"{MF32} {v(c, 4)}, {a_}, {b_}, {v(c, 4) if j else 0}")
                drain()
            if k16 and j == 0 and gi:
                for k in groups[gi - 1]:
                    m16(k); drain()
                    if k + 4 < 18: w16rd(k + 4)
                post(groups[gi - 1], mc[0] + 4)
        if not k16: post(grp, mc[0] + 4)
    if k16:
        for k in groups[-1]: m16(k)
        post(groups[-1], 0)
    for o in pend: A(o[1])
    tr(A, 'op1')
    SEL = 12
    A(f"v_bfe_u32 v10, v{L4}, 2, 1")
    A("v_lshlrev_b32 v10, 4, v10")
    A("v_mov_b32 v11, 0x3f80")
    A("v_lshlrev_b32 v11, v10, v11")
    A(f"v_bfe_u32 v10, v{L4}, 3, 2")
    for j in range(4):
        A(f"v_cmp_eq_u32 vcc, {j}, v10")
        A(f"v_cndmask_b32 v{SEL+j}, 0, v11, vcc")
    lane_const(A, 26, lambda x: l_red + 2048 + (x >> 10) * 256 + ((x >> 4) & 7) * 32 + ((x >> 8) & 1) * 16, src=T16, nbits=12, tmp=10)
    A("s_and_b32 s12, s47, 1")
    A("s_sub_u32 s12, 0, s12")
    A(f"v_bfe_i32 v10, v{L4}, 6, 1")
    A(f"v_bfe_i32 v11, v{L4}, 5, 1")
    A("v_xor_b32 v10, s12, v10")
    A("v_xor_b32 v11, s12, v11")
    A("s_waitcnt vmcnt(0)")
    tr(A, 'ack')
    lnf = A.newlabel('L_nf')
    A("s_cmp_lg_u32 s47, 1")
    A(f"s_cbranch_scc1 {lnf}")
    A("s_barrier")
    post_flag(A, 0, 0, st)
    A(f"v_and_b32 v8, 0x7c, v{L4}")
    flag_wait(A, 8, 44, 47, 9, 12, sleep=8)
    A.label(lnf)
    tr(A, 'xf')
    LD = 28
    A("s_mov_b32 s14, 0")
    lrt = A.newlabel('L_xr')
    A.label(lrt)
    A("s_mov_b64 s[12:13], s[42:43]")
    A(f"global_load_dwordx4 {v(LD + 32, 4)}, v{XL8}, s[12:13] sc1")
    for i in range(8):
        A(f"global_load_dwordx4 {v(LD + 4 * i, 4)}, v{XL}, s[12:13] sc1")
        if i < 7: add64(A, 12, 12, 4 * PROW)
    A("s_mov_b64 exec, -1")
    A("s_add_u32 s14, s14, 1")
    A(f"s_cmp_gt_u32 s14, {SPIN_MAX}")
    A("s_cbranch_scc1 L_exit")
    A("s_waitcnt vmcnt(8)")
    A(f"{MF32} v[20:23], {v(SEL, 4)}, {v(LD + 32, 4)}, 0")
    A(f"v_bitop3_b32 v8, v{LD+32}, v{LD+34}, v11 bitop3:0x7e")
    A("v_and_b32 v8, 1, v8")
    for i in range(8):
        A(f"s_waitcnt vmcnt({7 - i})")
        A(f"{MF32} v[16:19], {v(SEL, 4)}, {v(LD + 4 * i, 4)}, {'v[16:19]' if i else 0}")
        A(f"v_bitop3_b32 v9, v{LD+4*i}, v{LD+4*i+2}, v10 bitop3:0x7e")
        A("v_and_or_b32 v8, v9, 1, v8")
        if i == 4:
            for r in range(4): A(f"v_add_f32_dpp v{20+r}, v{20+r}, v{20+r} row_ror:8 row_mask:0xf bank_mask:0xf")
            A("ds_write_b128 v26, v[20:23]")
    A("v_cmp_ne_u32 vcc, 0, v8")
    A("s_mov_b64 exec, vcc")
    A(f"s_cbranch_vccnz {lrt}")
    A("s_mov_b64 exec, -1")
    for r in range(4): A(f"ds_write_b32 v{RW}, v{16+r} offset:{256 * r}")
    A("s_waitcnt lgkmcnt(0)")
    A("s_barrier")
    tr(A, 'red')
    post_flag(A, 1, 1024, st)

def consumed_wait(A, tv):
    A(f"v_and_b32 v{tv}, 0x7c, v{L4}")
    A(f"v_add_u32 v{tv}, 1024, v{tv}")
    flag_wait(A, tv, 44, 47, tv + 1, 12, sleep=0)

def row_gather(A, l_red):
    A(f"v_lshlrev_b32 v48, 1, v{L4}")
    for w in range(4): A(f"ds_read_b64 {v(16 + 2 * w, 2)}, v48 offset:{l_red + 2048 + w * 256}")
    for i in range(4): A(f"ds_read_b64 {v(8 + 2 * i, 2)}, v48 offset:{l_red + i * 512}")
    A("s_waitcnt lgkmcnt(4)")
    A("v_pk_add_f32 v[16:17], v[16:17], v[18:19]")
    A("v_pk_add_f32 v[20:21], v[20:21], v[22:23]")
    A("v_pk_add_f32 v[16:17], v[16:17], v[20:21]")
    A("s_waitcnt lgkmcnt(0)")
    for i in range(5): rnd2(A, 8 + 2 * i)

def unpack(A, dst, src):
    A(f"v_lshlrev_b32 v{dst}, 16, v{src}")
    A(f"v_and_b32 v{dst+1}, 0xffff0000, v{src}")

def cached_wait(A, base, val_s, cache_s, tv):
    ok = A.newlabel('L_cw')
    A(f"s_cmp_ge_u32 s{cache_s}, s{val_s}")
    A(f"s_cbranch_scc1 {ok}")
    A(f"v_and_b32 v{tv}, 12, v{L4}")
    flag_wait(A, tv, base, val_s, tv + 1, 12, sleep=16)
    xsum(A, tv + 1, tv, op="v_min_u32", bits=(0, 1))
    A(f"v_readfirstlane_b32 s{cache_s}, v{tv+1}")
    A.label(ok)

def WA(i): return 256 + 4 * i if i < 64 else 224 + 4 * (i - 64)

def role_a(A, restart, na, ag0, kvg0, standalone=False):
    LQ, LO, LRED = 2 * SEG_H, 2 * SEG_H + 8192, 2 * SEG_H + 16384
    LKM, LVM = LRED + 4096, LRED + 8192
    A(f"s_load_dwordx2 s[16:17], s[0:1], {KA_WQ}")
    A(f"s_load_dwordx2 s[18:19], s[0:1], {KA_WO}")
    A(f"s_load_dwordx2 s[34:35], s[0:1], {KA_X}")
    dense256_consts(A, 12, 16, 8192, 1)
    dense128_consts(A, 20, 18, 1)
    A("s_lshl_b32 s12, s9, 8")
    A("s_waitcnt lgkmcnt(0)")
    add64(A, 16, 16, "s12")
    A("s_mul_i32 s12, s9, 147456")
    add64(A, 18, 18, "s12")
    def wq(ks, b): return WA(ks * 2 + b)
    def wo(t, j): return WA(36 + t * 4 + j)
    chunks = [dict(ptr=16, off=c * 64 * 8192, vb=12, reads=dense256_reads(wq, 16, c)) for c in range(9)]
    chunks += [dict(ptr=18, off=t * 128, vb=20, reads=dense128_reads(wo, 18, t)) for t in range(9)]
    if EXP.get('ord', 0) & 1: chunks = chunks[9:] + chunks[:9][::-1]
    ring_load(A, chunks)
    tl(A, 1)
    mode_check(A, tv=12)
    af_consts(A, LRED)
    HA, QRD, OWR, KMA, VOF, NEG, H2A = 80, 81, 82, 83, 84, 85, 86
    MODR, XR = 88, 104
    KF, VF, KM, VM = 112, 144, 160, 176
    lane_const(A, QRD, lambda t: LQ + (t >> 7) * 4096 + (t & 63) * 16, tmp=12)
    lane_const(A, OWR, lambda t: LO + (t >> 6) * 2048 + (t & 63) * 16, tmp=12)
    KMW, VMW = 87, 109
    lane_const(A, KMW, lambda t: LKM + 2 * ((t >> 4) & 3) * 288 + (t >> 6) * 64 + (t & 15) * 4, tmp=12)
    lane_const(A, KMA, lambda t: LKM + (2 * ((t & 15) >> 2) + (t & 1)) * 288 + ((t >> 4) & 3) * 16, tmp=12)
    lane_const(A, VMW, lambda t: LVM + t * 8, tmp=12)
    lane_const(A, VOF, lambda t: LVM + ((t >> 6) & 1) * 1024 + (t & 63) * 8, tmp=12)
    A(f"v_mov_b32 v{NEG}, {f32bits(-1e9):#x}")
    A("s_bfe_u32 s12, s9, 0x30001")
    A("s_lshl_b32 s12, s12, 4")
    A(f"v_xor_b32 v{H2A}, s12, v{L4}")
    lane_const(A, 12, lambda t: 16 * (t >> 7) + (t & 15) - 4 * ((t >> 4) & 3), tmp=13)
    for k in range(8): A(f"v_cmp_le_i32 s[{64+2*k}:{65+2*k}], {(k & 3) + 16 * (k >> 2)}, v12")
    A(f"v_lshlrev_b32 v{T16}, 4, v0")
    A(f"s_sub_u32 s24, s8, {ag0}")
    A(f"s_mul_i32 s12, s24, {SEG_H}")
    A(f"s_add_u32 s13, s12, {WS_H}")
    add64(A, 20, S_WS, "s13")
    A("s_mul_i32 s13, s9, 1152")
    A("s_add_u32 s12, s12, s13")
    add64(A, 34, 34, "s12")
    A(f"s_add_u32 s13, s12, {WS_X1}")
    add64(A, 36, S_WS, "s13")
    A(f"s_add_u32 s13, s12, {WS_H2}")
    add64(A, 38, S_WS, "s13")
    A("s_lshl_b32 s12, s24, 5")
    A("s_add_u32 s12, s12, s9")
    A("s_lshl_b32 s13, s12, 14")
    A(f"s_add_u32 s13, s13, {WS_KV + 4096}")
    add64(A, 22, S_WS, "s13")
    A("s_lshl_b32 s13, s12, 12")
    A(f"s_add_u32 s13, s13, {WS_KVM}")
    add64(A, 30, S_WS, "s13")
    A("s_lshl_b32 s13, s12, 2")
    A(f"s_add_u32 s13, s13, {WS_H2FLAG}")
    add64(A, 52, S_WS, "s13")
    A("s_lshl_b32 s12, s9, 7")
    A(f"s_add_u32 s13, s12, {WS_KVPROG + kvg0 * 4096}")
    add64(A, 54, S_WS, "s13")
    A(f"s_add_u32 s13, s12, {WS_RPROG}")
    add64(A, 56, S_WS, "s13")
    A(f"s_mov_b32 s58, {64 if standalone else 0}")
    A(f"s_mov_b32 s59, {64 if standalone else 0}")
    A("s_lshl_b32 s26, s10, 10")
    A("s_mov_b32 s27, 0")
    A(f"s_mov_b32 s60, {f32bits(128 ** -0.5):#x}")
    A(f"s_mov_b32 s61, {f32bits(math.log2(math.e)):#x}")
    if not standalone:
        h_wait(A, 12)
    for k, ch in enumerate((2, 4, 3)):
        add64(A, 12, S_WS, WS_MOD + ch * 1152)
        for i in range(5): A(f"global_load_dword v{MODR+5*k+i}, v{L4}, s[12:13] offset:{256 * i} sc1")
    def hdma():
        seg_dma(A, T16, 20, 26)
        add64(A, 20, 20, na * SEG_H)
        A(f"s_xor_b32 s26, s26, {SEG_H}")
    assert SEG_H & 3072 == 0
    hdma()
    A("s_waitcnt vmcnt(0)")
    A("s_cmp_eq_u32 s11, 0")
    A("s_cbranch_scc1 L_a_top_s")
    for fast in (True, False):
        st = "" if fast else "sc1"; sfx = "f" if fast else "s"
        A.label(f"L_a_top_{sfx}")
        tr(A, 'top')
        A("s_add_u32 s25, s24, 1")
        cached_wait(A, 54, 25, 58, 8)
        for i in range(8): A(f"global_load_dwordx4 {v(KF + 4 * i, 4)}, v{L16}, s[22:23] offset:{i * 1024 - 4096}")
        A("s_and_b32 s12, s10, 1")
        A("s_lshl_b32 s12, s12, 12")
        A("s_add_u32 s12, s12, 4096")
        add64(A, 12, 22, "s12")
        for i in range(4): A(f"global_load_dwordx4 {v(VF + 4 * i, 4)}, v{L16}, s[12:13] offset:{i * 1024}")
        A("s_mov_b32 exec_hi, 0")
        A(f"global_load_dword v{XR+4}, v{L4}, s[34:35] offset:1024")
        A("s_mov_b64 exec, -1")
        for i in range(4): A(f"global_load_dword v{XR+i}, v{L4}, s[34:35] offset:{256 * i}")
        A(f"v_add_u32 v{HA}, s27, v{L16}")
        A("s_barrier")
        tr(A, 'go')
        D = Lds(A)
        ACC, RING, NR = 8, 24, 6
        seq = [(ks, tt) for ks in range(18) for tt in range(2)]
        def rd(i):
            ks, tt = seq[i]
            D.op(f"ds_read_b128 {v(RING + 4 * (i % NR), 4)}, v{HA} offset:{(tt * 18 + ks) * 1024}", i)
        for i in range(NR - 1): rd(i)
        hdma()
        A(f"s_xor_b32 s27, s27, {SEG_H}")
        for i, (ks, tt) in enumerate(seq):
            if i + NR - 1 < 36: rd(i + NR - 1)
            D.wait(i)
            for b in range(2):
                d = v(ACC + (b * 2 + tt) * 4, 4)
                A(f"{MF32} {d}, {u(wq(ks, b), 4)}, {v(RING + 4 * (i % NR), 4)}, {d if ks else 0}")
        for tt in range(2):
            for r in range(4): A(f"v_cvt_pk_bf16_f32 v{48+4*tt+r}, v{ACC+4*tt+r}, v{ACC+8+4*tt+r}")
            A(f"v_add_u32 v56, {LQ + tt * 4096}, v{T16}")
            A(f"ds_write_b128 v56, {v(48 + 4 * tt, 4)}")
        A("s_waitcnt lgkmcnt(0)")
        A("s_barrier")
        QF = 24
        for j in range(4): A(f"ds_read_b128 {v(QF + 4 * j, 4)}, v{QRD} offset:{j * 1024}")
        A("s_waitcnt vmcnt(9) lgkmcnt(0)")
        T0, T1, T2 = 8, 12, 16
        for j in range(4):
            for kt in range(2):
                d = v(T0 + 4 * kt, 4)
                A(f"{MF32} {d}, {v(KF + 4 * (kt * 4 + j), 4)}, {v(QF + 4 * j, 4)}, {d if j else 0}")
        consumed_wait(A, 40)
        tr(A, 'mm')
        def scale(r):
            if not EXP.get('nosr'): rnd2(A, r)
            A(f"v_pk_mul_f32 {v(r, 2)}, {v(r, 2)}, s[60:61] op_sel_hi:[1,0]")
            if not EXP.get('nosr'): rnd2(A, r)
        for r in range(T0, T0 + 8, 2): scale(r)
        for k in range(8): A(f"v_cndmask_b32 v{T0+k}, v{NEG}, v{T0+k}, s[{64+2*k}:{65+2*k}]")
        M, TT, SUM = 20, 21, 22
        A(f"v_max3_f32 v{M}, v8, v9, v10")
        A(f"v_max3_f32 v{M}, v{M}, v11, v12")
        A(f"v_max3_f32 v{M}, v{M}, v13, v14")
        A(f"v_max_f32 v{M}, v{M}, v15")
        lp = A.newlabel('L_km'); lok = A.newlabel('L_kmok')
        A("s_mov_b32 s12, 0")
        A.label(lp)
        A(f"global_load_dwordx4 v[40:43], v{T16}, s[30:31] sc1")
        A("s_add_u32 s12, s12, 1")
        A(f"s_cmp_gt_u32 s12, {SPIN_MAX}")
        A("s_cbranch_scc1 L_exit")
        A("s_waitcnt vmcnt(0)")
        A(f"ds_write2_b32 v{KMW}, v40, v41 offset0:0 offset1:72")
        A(f"ds_write_b64 v{VMW}, v[42:43]")
        A("v_max3_u32 v44, v40, v41, v42")
        A("v_max_u32 v44, v44, v43")
        A("v_cmp_eq_u32 vcc, -1, v44")
        A(f"s_cbranch_vccz {lok}")
        A(f"s_sleep {EXP.get('asl', 1)}")
        A(f"s_branch {lp}")
        A.label(lok)
        A("s_waitcnt lgkmcnt(0)")
        A("s_barrier")
        tr(A, 'flag')
        for j in range(4): A(f"ds_read_b128 {v(KM + 4 * j, 4)}, v{KMA} offset:{j * 64}")
        for i in range(2): A(f"ds_read_b64 {v(VM + 2 * i, 2)}, v{VOF} offset:{i * 512}")
        for j in range(4):
            A(f"s_waitcnt lgkmcnt({5 - j})")
            A(f"{MF32} {v(T2, 4)}, {v(KM + 4 * j, 4)}, {v(QF + 4 * j, 4)}, {v(T2, 4) if j else 0}")
        scale(T2)
        A(f"v_max3_f32 v{M}, v{M}, v16, v17")
        xsum(A, M, TT, op="v_max_f32", bits=(4, 5))
        for r in range(8, 18, 2): A(f"v_pk_add_f32 {v(r, 2)}, {v(r, 2)}, {v(M, 2)} op_sel_hi:[1,0] neg_lo:[0,1] neg_hi:[0,1]")
        for r in range(8, 18, 2): A(f"v_pk_mul_f32 {v(r, 2)}, {v(r, 2)}, s[60:61] op_sel:[0,1]")
        for r in range(8, 18): A(f"v_exp_f32 v{r}, v{r}")
        A(f"v_pk_add_f32 {v(SUM, 2)}, v[8:9], v[10:11]")
        for r in (12, 14, 16): A(f"v_pk_add_f32 {v(SUM, 2)}, {v(SUM, 2)}, {v(r, 2)}")
        A(f"v_add_f32 v{SUM}, v{SUM}, v{SUM+1}")
        xsum(A, SUM, TT, bits=(4, 5))
        A(f"v_rcp_f32 v{SUM}, v{SUM}")
        for r in range(8, 18, 2): A(f"v_pk_mul_f32 {v(r, 2)}, {v(r, 2)}, {v(SUM, 2)} op_sel_hi:[1,0]")
        BX, Z = 40, 44
        for q in range(4): A(f"v_cvt_pk_bf16_f32 v{BX+q}, v{8+2*q}, v{9+2*q}")
        A(f"v_cvt_pk_bf16_f32 v{Z}, v16, v17")
        A(f"v_mov_b32 v{Z+1}, 0")
        A(f"v_mov_b32 v{Z+2}, 0")
        A(f"v_mov_b32 v{Z+3}, v{Z}")
        OA = 24
        for t in range(4): A(f"{MF32} {v(OA + 4 * t, 4)}, {v(VF + 4 * t, 4)}, {v(BX, 4)}, 0")
        A("s_waitcnt lgkmcnt(0)")
        for t in range(4): A(f"{MF16} {v(OA + 4 * t, 4)}, {v(VM + 2 * (t >> 1), 2)}, {v(Z + 2 * (t & 1), 2)}, {v(OA + 4 * t, 4)}")
        for q in range(8): A(f"v_cvt_pk_bf16_f32 v{48+q}, v{OA+2*q}, v{OA+2*q+1}")
        A(f"ds_write_b128 v{OWR}, v[48:51]")
        A(f"ds_write_b128 v{OWR}, v[52:55] offset:1024")
        A("s_waitcnt lgkmcnt(0)")
        A("s_barrier")
        oa = Asm()
        A(f"v_add_u32 v{L16}, {LO}, v{L16}")
        out_proj(A, st, wo, LRED)
        A(f"v_subrev_u32 v{L16}, {LO}, v{L16}")
        A("s_cmp_lg_u32 s10, 0")
        A(f"s_cbranch_scc1 L_a_next_{sfx}")
        A(f"v_add_u32 v{L4}, {LRED // 2}, v{L4}")
        row_gather(A, 0)
        A(f"v_subrev_u32 v{L4}, {LRED // 2}, v{L4}")
        A("v_mov_b64 v[20:21], 0")
        for i in range(5):
            r = 8 + 2 * i
            if i == 4: A("s_mov_b32 exec_hi, 0")
            unpack(A, 18, MODR + i)
            A(f"v_pk_mul_f32 {v(r, 2)}, {v(r, 2)}, v[18:19]")
            rnd2(A, r)
            unpack(A, 18, XR + i)
            A(f"v_pk_add_f32 {v(r, 2)}, {v(r, 2)}, v[18:19]")
            A(f"v_cvt_pk_bf16_f32 v{24+i}, v{r}, v{r+1}")
            unpack(A, r, 24 + i)
            A(f"global_store_dword v{L4}, v{24+i}, s[36:37] offset:{256 * i} sc1")
            A(f"v_pk_add_f32 v[20:21], v[20:21], {v(r, 2)}")
        A("s_mov_b64 exec, -1")
        A("v_add_f32 v20, v20, v21")
        xsum(A, 20, 21)
        A(f"v_mul_f32 v20, {f32bits(1.0 / 576):#x}, v20")
        A("v_mov_b64 v[22:23], 0")
        for i in range(5):
            if i == 4: A("s_mov_b32 exec_hi, 0")
            A(f"v_pk_add_f32 v[18:19], {v(8 + 2 * i, 2)}, v[20:21] op_sel_hi:[1,0] neg_lo:[0,1] neg_hi:[0,1]")
            A("v_pk_fma_f32 v[22:23], v[18:19], v[18:19], v[22:23]")
        A("s_mov_b64 exec, -1")
        A("v_add_f32 v22, v22, v23")
        xsum(A, 22, 23)
        A(f"v_mul_f32 v22, {f32bits(1.0 / 576):#x}, v22")
        rnd1(A, 22); rnd1(A, 20)
        A(f"v_add_f32 v22, {f32bits(1e-5):#x}, v22")
        rnd1(A, 22)
        A("v_sqrt_f32 v22, v22")
        rnd1(A, 22)
        A("v_rcp_f32 v22, v22")
        for i in range(5):
            r = 8 + 2 * i
            if i == 4: A("s_mov_b32 exec_hi, 0")
            A(f"v_pk_add_f32 {v(r, 2)}, {v(r, 2)}, v[20:21] op_sel_hi:[1,0] neg_lo:[0,1] neg_hi:[0,1]")
            rnd2(A, r)
            A(f"v_pk_mul_f32 {v(r, 2)}, {v(r, 2)}, v[22:23] op_sel_hi:[1,0]")
            rnd2(A, r)
            unpack(A, 18, MODR + 5 + i)
            A(f"v_pk_mul_f32 {v(r, 2)}, {v(r, 2)}, v[18:19]")
            rnd2(A, r)
            unpack(A, 18, MODR + 10 + i)
            A(f"v_pk_add_f32 {v(r, 2)}, {v(r, 2)}, v[18:19]")
            A(f"v_cvt_pk_bf16_f32 v{30+i}, v{r}, v{r+1}")
            A(f"global_store_dword v{H2A}, v{30+i}, s[38:39] offset:{256 * i} sc1")
        A("s_mov_b64 exec, 1")
        A("v_mov_b32 v18, 1")
        A("s_waitcnt vmcnt(0)")
        A(f"global_store_dword v{L4}, v18, s[52:53] sc1")
        A("s_mov_b64 exec, -1")
        A.label(f"L_a_next_{sfx}")
        tr(A, 'end'); tr_dump(A, EXP.get('aftrace', 0))
        add64(A, 34, 34, na * SEG_H); add64(A, 36, 36, na * SEG_H); add64(A, 38, 38, na * SEG_H)
        add64(A, 22, 22, na << 19); add64(A, 30, 30, na << 17); add64(A, 52, 52, na * 128)
        A(f"s_add_u32 s24, s24, {na}")
        A("s_cmp_lt_u32 s24, 64")
        A(f"s_cbranch_scc1 L_a_top_{sfx}")
        tl(A, 4)
        A("s_branch L_exit")

def WFF(i): return 256 + 4 * i if i < 64 else 80 + 4 * (i - 64)

def role_f(A, nf, fg0, standalone=False):
    LG8, LW16, LRING = 0, 36864, 57344
    LH2, LACT = LRING, LRING + 40960
    LRED = LACT + 12288
    LX = LRED + 4096
    A(f"s_load_dwordx4 s[16:19], s[0:1], {KA_WG}")
    A(f"s_load_dwordx2 s[20:21], s[0:1], {KA_WD}")
    A(f"s_load_dwordx2 s[34:35], s[0:1], {KA_OUT}")
    dense256_consts(A, 12, 16, 9216, 1)
    dense128_consts(A, 20, 18, 1)
    lane_const(A, 24, lambda t: (t >> 1) * 9216 + (t & 1) * 16 + 256, tmp=1)
    lane_const(A, 25, lambda t: t * 16, tmp=1)
    A("s_mul_i32 s12, s9, 288")
    A("s_waitcnt lgkmcnt(0)")
    add64(A, 16, 16, "s12"); add64(A, 18, 18, "s12")
    A(f"s_mul_i32 s12, s9, {144 * 1152}")
    add64(A, 20, 20, "s12")
    A("s_lshl_b32 s26, s10, 10")
    for m in range(2):
        for i in range(5):
            if i == 4:
                A("s_cmp_ge_u32 s10, 2"); l = A.newlabel('L_f8'); A(f"s_cbranch_scc1 {l}")
            add64(A, 12, 16 + 2 * m, i * 128 * 9216)
            A(f"s_add_u32 m0, s26, {LG8 + m * 18432 + i * 4096}")
            A("global_load_lds_dwordx4 v24, s[12:13]")
            if i == 4: A.label(l)
    for i in range(5):
        if i == 4:
            A("s_cmp_ge_u32 s10, 2"); l = A.newlabel('L_f16'); A(f"s_cbranch_scc1 {l}")
        add64(A, 12, 20, 128 * 1152 + i * 4096)
        A(f"s_add_u32 m0, s26, {LW16 + i * 4096}")
        A("global_load_lds_dwordx4 v25, s[12:13]")
        if i == 4: A.label(l)
    def wg(m, ks, b): return WFF(ks * 4 + m * 2 + b)
    def wd(t, j): return WFF(72 + t * 4 + j)
    chunks = []
    for c in range(9):
        for m in range(2):
            chunks.append(dict(ptr=16 + 2 * m, off=c * 64 * 9216, vb=12, reads=dense256_reads(lambda ks, b, m=m: wg(m, ks, b), 16, c)))
    chunks += [dict(ptr=20, off=t * 128, vb=20, reads=dense128_reads(wd, 18, t)) for t in range(9)]
    ring_load(A, chunks, nslots=6, lbase=LRING)
    tl(A, 1)
    mode_check(A, tv=12)
    af_consts(A, LRED)
    A(f"v_lshlrev_b32 v{T16}, 4, v0")
    A(f"s_sub_u32 s24, s8, {fg0}")
    A(f"s_mul_i32 s12, s24, {SEG_H}")
    A(f"s_add_u32 s13, s12, {WS_H2}")
    add64(A, 20, S_WS, "s13")
    A("s_mul_i32 s13, s9, 1152")
    A("s_add_u32 s12, s12, s13")
    add64(A, 34, 34, "s12")
    A(f"s_add_u32 s13, s12, {WS_X1}")
    add64(A, 36, S_WS, "s13")
    A("s_lshl_b32 s13, s24, 7")
    A(f"s_add_u32 s13, s13, {WS_H2FLAG}")
    add64(A, 52, S_WS, "s13")
    add64(A, 54, S_WS, WS_MOD + 5 * 1152)
    A("s_lshl_b32 s26, s10, 10")
    A(f"s_add_u32 s26, s26, {LH2}")
    A("s_mov_b32 s25, 1")
    A(f"s_mov_b32 s60, {f32bits(-math.log2(math.e)):#x}")
    A("s_cmp_ge_u32 s10, 2")
    A("s_cselect_b64 s[62:63], -1, 0")
    A("s_cmp_eq_u32 s11, 0")
    A("s_cbranch_scc1 L_f_top_s")
    for fast in (True, False):
        st = "" if fast else "sc1"; sfx = "f" if fast else "s"
        A.label(f"L_f_top_{sfx}")
        tr(A, 'top')
        consumed_wait(A, 8)
        if not standalone:
            A(f"v_and_b32 v8, 0x7c, v{L4}")
            flag_wait(A, 8, 52, 25, 9, 12, sleep=1)
        tr(A, 'flag')
        seg_dma(A, T16, 20, 26)
        lx = A.newlabel('L_fx')
        A("s_cmp_lg_u32 s10, 0")
        A(f"s_cbranch_scc1 {lx}")
        for k_, sb in enumerate((36, 54)):
            A(f"s_mov_b32 m0, {LX + k_ * 2048}")
            A(f"global_load_lds_dwordx4 v{L16}, s[{sb}:{sb+1}]")
            A("s_mov_b64 exec, 0xff")
            A(f"global_load_lds_dwordx4 v{L16}, s[{sb}:{sb+1}] offset:1024")
            A("s_mov_b64 exec, -1")
        A.label(lx)
        HA, G8A, AW = 72, 76, 77
        A(f"v_lshrrev_b32 v78, 4, v{T16}")
        for ttl in range(2):
            for par in range(2):
                r = HA + 2 * ttl + par
                lane_const(A, r, lambda t: LH2 + (t & 15) * 1152 + ((ttl ^ (t >> 6)) & 1) * 18432, src=78, tmp=8)
                lane_const(A, r, lambda t: ((4 * par + ((t >> 4) & 3)) ^ ((t & 15) >> 1)) * 16, src=78, tmp=8, acc=True)
        lane_const(A, G8A, lambda t: LG8 + (t >> 7) * 18432 + ((t >> 4) & 3) * 256 + (t & 15) * 8, src=78, tmp=8)
        lane_const(A, AW, lambda t: LACT + t * 16 + ((t >> 6) & 1) * 4096, src=78, tmp=8)
        A("s_waitcnt vmcnt(0)")
        A("s_barrier")
        tr(A, 'go')
        def swiglu(g, u_, dst, t0, pk):
            B = Asm()
            for r in (0, 2):
                rnd2(B, g + r); rnd2(B, u_ + r)
                if pk: B(f"v_pk_mul_f32 {v(t0, 2)}, {v(g + r, 2)}, s[60:61] op_sel_hi:[1,0]")
                else:
                    for q in range(2): B(f"v_mul_f32 v{t0+q}, s60, v{g+r+q}")
                for q in range(2): B(f"v_exp_f32 v{t0+q}, v{t0+q}")
                if pk: B(f"v_pk_add_f32 {v(t0, 2)}, {v(t0, 2)}, 1.0 op_sel_hi:[1,0]")
                else:
                    for q in range(2): B(f"v_add_f32 v{t0+q}, 1.0, v{t0+q}")
                for q in range(2): B(f"v_rcp_f32 v{t0+q}, v{t0+q}")
                if pk: B(f"v_pk_mul_f32 {v(g + r, 2)}, {v(g + r, 2)}, {v(t0, 2)}")
                else:
                    for q in range(2): B(f"v_mul_f32 v{g+r+q}, v{g+r+q}, v{t0+q}")
                rnd2(B, g + r)
                if pk: B(f"v_pk_mul_f32 {v(g + r, 2)}, {v(g + r, 2)}, {v(u_ + r, 2)}")
                else:
                    for q in range(2): B(f"v_mul_f32 v{g+r+q}, v{g+r+q}, v{u_+r+q}")
                B(f"v_cvt_pk_bf16_f32 v{dst + r // 2}, v{g+r}, v{g+r+1}")
            return [i.text.strip() for i in B.ins]
        D = Lds(A)
        RING, NR = 48, 4
        seq = [(ttl, ks) for ttl in range(2) for ks in range(18)]
        def rd(i):
            ttl, ks = seq[i]
            D.op(f"ds_read_b128 {v(RING + 4 * (i % NR), 4)}, v{HA + 2 * ttl + (ks & 1)} offset:{(ks >> 1) * 128}", i)
        def rd9(ks):
            for hq in range(2):
                D.op(f"ds_read_b64_tr_b16 {v(24 + 4 * (ks % 4) + 2 * hq, 2)}, v{G8A} offset:{ks * 1024 + hq * 128}", ('w9', ks))
        def ac(m, b, ttl): return 8 + 16 * ttl + (m * 2 + b) * 4
        for i in range(NR - 1): rd(i); rd9(i)
        vq = []
        for i, (ttl, ks) in enumerate(seq):
            D.wait(i)
            h = v(RING + 4 * (i % NR), 4)
            if i == 20:
                for b in range(2): vq += swiglu(ac(0, b, 0), ac(1, b, 0), 64 + 2 * b, 70, False)
                vq.append(f"ds_write_b128 v{AW}, v[64:67]")
                B = Asm()
                rnd2(B, 40); rnd2(B, 42)
                for q in range(4): B(f"v_mul_f32 v{44+q}, s60, v{40+q}")
                for q in range(4): B(f"v_exp_f32 v{44+q}, v{44+q}")
                for q in range(4): B(f"v_add_f32 v{44+q}, 1.0, v{44+q}")
                for q in range(4): B(f"v_rcp_f32 v{44+q}, v{44+q}")
                for q in range(4): B(f"v_mul_f32 v{44+q}, v{40+q}, v{44+q}")
                rnd2(B, 44); rnd2(B, 46)
                for q in range(4): B(f"v_cndmask_b32 v{40+q}, v{44+q}, v{40+q}, s[62:63]")
                B(f"v_add_u32 v70, {LACT + 8192}, v{T16}")
                B("ds_write_b128 v70, v[40:43]")
                vq += [x.text.strip() for x in B.ins]
            k4 = 0
            for m in range(2):
                for b in range(2):
                    d = v(ac(m, b, ttl), 4)
                    A(f"{MF32} {d}, {u(wg(m, ks, b), 4)}, {h}, {d if ks else 0}")
                    if k4 == 0 and i + NR - 1 < 36: rd(i + NR - 1)
                    if k4 == 1 and ttl == 0 and ks + 3 < 18: rd9(ks + 3)
                    k4 += 1
                    for _ in range(2):
                        if vq:
                            o = vq.pop(0)
                            if o.startswith('ds_'): D.op(o)
                            else: A(o)
            if ttl == 0:
                D.wait(('w9', ks))
                A(f"{MF32} v[40:43], {v(24 + 4 * (ks % 4), 4)}, {h}, {'v[40:43]' if ks else 0}")
        for o in vq: A(o)
        tr(A, 'mm')
        o0 = swiglu(24, 32, 48, 52, True); o1 = swiglu(28, 36, 50, 54, True)
        for a_, b_ in zip(o0, o1): A(a_); A(b_)
        A(f"v_xor_b32 v{AW}, 4096, v{AW}")
        A(f"ds_write_b128 v{AW}, v[48:51]")
        lane_const(A, 27, lambda t: LW16 + (4 * ((t >> 4) & 3) + ((t >> 2) & 3)) * 1152 + (t >> 6) * 32 + (t & 3) * 8, src=78, tmp=8)
        A("s_waitcnt lgkmcnt(0)")
        A("s_barrier")
        A(f"v_add_u32 v{L16}, {LACT}, v{L16}")
        out_proj(A, st, wd, LRED, k16=(8192, 27))
        A(f"v_subrev_u32 v{L16}, {LACT}, v{L16}")
        A("s_cmp_lg_u32 s10, 0")
        A(f"s_cbranch_scc1 L_f_next_{sfx}")
        A(f"v_add_u32 v49, {LX}, v{L4}")
        for i in range(5):
            A(f"ds_read_b32 v{56+i}, v49 offset:{256 * i}")
            A(f"ds_read_b32 v{50+i}, v49 offset:{2048 + 256 * i}")
        A(f"v_add_u32 v{L4}, {LRED // 2}, v{L4}")
        row_gather(A, 0)
        A(f"v_subrev_u32 v{L4}, {LRED // 2}, v{L4}")
        for i in range(5):
            r = 8 + 2 * i
            if i == 4: A("s_mov_b32 exec_hi, 0")
            unpack(A, 18, 50 + i)
            A(f"v_pk_mul_f32 {v(r, 2)}, {v(r, 2)}, v[18:19]")
            rnd2(A, r)
            unpack(A, 18, 56 + i)
            A(f"v_pk_add_f32 {v(r, 2)}, {v(r, 2)}, v[18:19]")
            A(f"v_cvt_pk_bf16_f32 v{24+i}, v{r}, v{r+1}")
            A(f"global_store_dword v{L4}, v{24+i}, s[34:35] offset:{256 * i}")
        A("s_mov_b64 exec, -1")
        A.label(f"L_f_next_{sfx}")
        tr(A, 'end'); tr_dump(A, EXP.get('aftrace', 0))
        add64(A, 20, 20, nf * SEG_H); add64(A, 34, 34, nf * SEG_H); add64(A, 36, 36, nf * SEG_H); add64(A, 52, 52, nf * 128)
        A(f"s_add_u32 s24, s24, {nf}")
        A("s_cmp_lt_u32 s24, 64")
        A(f"s_cbranch_scc1 L_f_top_{sfx}")
        tl(A, 4)
        A("s_branch L_exit")
```

```python
from common import *
import math, struct

L_MEM, L_KX, L_VX = 0, 9216, 17408
L_QL, L_KL, L_OL = 25600, 27904, 30208
L_JUNK = 32256
L_WK = 32768
QSTR = 288
KL0 = L_KL - L_QL
T16, WKB, L16, MEMR, QR, QKW, OW, IDX = range(0, 8)
TMPC = WKB
def WQ(ks, b): return 256 + (ks * 2 + b) * 8
def WV(ks, b):
    i = ks * 2 + b
    return 400 + i * 8 if i < 14 else 64 + (i - 14) * 8
def WO(t, k2): return 96 + (t * 2 + k2) * 8
def WK8(b): return 240 + b * 8
ACCV0, ACCQ, ACCK, MRING, WRING, ACCV1 = 8, 12, 20, 28, 40, 40
SMF = "v_smfmac_f32_16x16x64_bf16"
MF32 = "v_mfma_f32_16x16x32_bf16"
MF16 = "v_mfma_f32_16x16x16_bf16"
IDQ = "quad_perm:[0,1,2,3]"
ROR8 = "row_ror:8 row_mask:0xf bank_mask:0xf"
def FSW(i): return 2 * (0, 2, 3, 1)[i >> 1] + (i & 1)
def img(i, pos): return i * 128 + ((pos ^ FSW(i)) * 16)
PI = [0, 1, 4, 5, 2, 3, 6, 7]
EXP = {}
PF = 1
ORD = [8, 0, 1, 2, 3, 4, 5, 6, 7]

WORD = [8, 0, 1, 2, 3, 4, 5, 6, 7]
def swap_tab():
    nsw = EXP.get('nsw', 0)
    return list(zip([4, 7, 10, 13, 15, 1][:nsw], [3, 7, 10, 13, 16, 0][:nsw]))
def wo_reg(k): return WO(WORD[k // 2], k & 1)
def wk_off(n): return L_WK + (n >> 1) * 16384 + (n & 1) * 8192

def r_swap(A):
    for n, k in swap_tab():
        A(f"v_lshlrev_b32 v12, 4, v0")
        A(f"v_add_u32 v12, {wk_off(n)}, v12")
        A("ds_read_b128 v[16:19], v12")
        A("ds_read_b128 v[20:23], v12 offset:4096")
        A("s_waitcnt lgkmcnt(0)")
        r = wo_reg(k)
        A(f"ds_write_b128 v12, {v(r, 4)}")
        A(f"ds_write_b128 v12, {v(r + 4, 4)} offset:4096")
        A("s_waitcnt lgkmcnt(0)")
        for q in range(0, 8, 2): A(f"v_mov_b64 {v(r + q, 2)}, {v(16 + q, 2)}")

def r_setup(A):
    A(f"s_load_dwordx4 s[16:19], s[0:1], {KA_WQ}")
    A(f"s_load_dwordx4 s[20:23], s[0:1], {KA_WV}")
    A(f"s_load_dwordx2 s[24:25], s[0:1], {KA_MEM0}")
    def swz(lr): return 2 * ((lr & 1) | ((lr >> 3) & 1) << 1 | ((lr >> 5) & 1) << 2)
    def swz2(row): return 2 * (((row >> 2) & 1) | ((row >> 4) & 1) << 1)
    for ip in range(4):
        def fq(t, last=False):
            w, l = t >> 6, t & 63
            lr = 16 * w + 4 * ip + (l >> 4); e, pos = lr >> 3, lr & 7
            d = 512 + 8 * pos + e if last else 64 * (e & 1) + 4 * pos + (e >> 1)
            return d * 8192 + (((l & 15) ^ swz(lr)) * 16)
        lane_const(A, 12 + ip, fq, tmp=1)
        lane_const(A, 16 + ip, lambda t: fq(t, True), tmp=1)
        lane_const(A, 20 + ip, lambda t: (32 * (t >> 6) + 8 * ip + ((t & 63) >> 3)) * 1152, tmp=1)
        lane_const(A, 20 + ip, lambda t: ((t & 7) ^ swz2(32 * (t >> 6) + 8 * ip + ((t & 63) >> 3))) * 16, tmp=1, acc=True)
    def ftr(t, b):
        w, l = t >> 6, t & 63
        gb, half, bp, c = l >> 4, (l >> 3) & 1, (l >> 2) & 1, l & 3
        lr = 32 * (gb & 1) + 8 * bp + 2 * (gb >> 1) + half
        return L_WK + lr * 256 + (((4 * w + 2 * b + (c >> 1)) ^ swz(lr)) * 16) + (c & 1) * 8
    lane_const(A, 24, lambda t: ftr(t, 0), tmp=1)
    lane_const(A, 25, lambda t: ftr(t, 1), tmp=1)
    def fto(t):
        w, l = t >> 6, t & 63
        gb, half, bp, c = l >> 4, (l >> 3) & 1, (l >> 2) & 1, l & 3
        row = 16 * (gb & 1) + 8 * (gb >> 1) + 4 * half + bp
        return L_WK + row * 128 + (((2 * w + (c >> 1)) ^ swz2(row)) * 16) + (c & 1) * 8
    lane_const(A, 26, fto, tmp=1)
    lane_const(A, 27, lambda t: L_WK + t * 16, tmp=1)
    A("s_waitcnt lgkmcnt(0)")
    A("s_lshl_b32 s12, s9, 8")
    for p in (16, 18, 20):
        add64(A, p, p, "s12")
    A("s_mul_i32 s12, s9, 147456")
    add64(A, 22, 22, "s12")
    A("s_lshl_b32 s26, s10, 12")
    A(f"s_add_u32 s26, s26, {L_WK}")
    chunks = [('q', k) for k in range(9)] + [('v', k) for k in range(9)] + [('o', t) for t in range(9)] + [('k', 7)] + [('k', ORD[j % 8]) for j in range(28, 36)]
    ptr = {'q': 16, 'k': 18, 'v': 20, 'o': 22}
    def issue(j):
        m, k = chunks[j]
        slot = j % 8
        if m == 'o': off, vb = k * 128, 20
        elif k < 8: off, vb = (128 * (k >> 1) + 32 * (k & 1)) * 8192, 12
        else: off, vb = 0, 16
        add64(A, 12, ptr[m], off)
        for ip in range(4):
            A(f"s_add_u32 m0, s26, {slot * 16384 + ip * 1024}")
            A(f"global_load_lds_dwordx4 v{vb+ip}, s[12:13]")
    def fd(m, t): return 256 * m + t if m < 2 else 512 + (t & 63)
    def fa(m, t):
        d = fd(m, t)
        if d < 512: ks, e, pos = 2 * (d >> 7) + ((d >> 5) & 1), 2 * (d & 3) + ((d >> 6) & 1), (d >> 2) & 7
        else: ks, e, pos = 8, d & 7, (d >> 3) & 7
        return ks * 1024 + pos * 16 + e * 2
    def mem0_issue():
        for m in range(3):
            lane_const(A, 4 + m, lambda t: 2 * fd(m, t), tmp=1)
            lane_const(A, 8 + m, lambda t: fa(m, t), tmp=1)
            for i in range(8):
                A(f"v_add_u32 v2, {i * 1152}, v{4+m}")
                A(f"global_load_ushort v{32+8*m+i}, v2, s[24:25]")
    def mem0_write():
        for m in range(3):
            for i in range(8):
                A(f"v_xor_b32 v2, {FSW(i) * 16}, v{8+m}")
                A(f"ds_write_b16 v2, v{32+8*m+i} offset:{L_MEM + i * 128}")
    def status0():
        lane_const(A, 2, lambda t: arr_word(t & 7) * 4, tmp=1)
        A("global_load_dword v4, v2, s[6:7] sc1")
    def status_issue():
        A("s_lshl_b32 s12, s9, 7")
        A(f"s_add_u32 s12, s12, {WS_KVPROG + 4096}")
        A("v_mov_b32 v2, s12")
        A("global_load_dwordx4 v[8:11], v2, s[4:5] sc1")
    for j in range(7): issue(j)
    n = len(chunks)
    for j in range(n + 1):
        if j < n:
            ahead = min(n - 1, j + 6) - j
            extra = 24 if 1 <= j <= 7 else (1 if 33 <= j <= 35 else (1 if 25 <= j <= 31 else 0))
            A(f"s_waitcnt vmcnt({4 * ahead + extra})")
        A("s_barrier")
        if j + 7 < n: issue(j + 7)
        if j == 0: mem0_issue()
        if j == 9: mem0_write()
        if j == 24: status0()
        if j == 32: status_issue()
        if j >= 29:
            pk = (j - 1) % 8; tb = 32 + ((j - 1) & 1) * 16
            A(f"v_add_u32 v28, {pk * 16384}, v27")
            for q in range(4):
                A(f"ds_write_b128 v28, {v(tb + 4 * q, 4)} offset:{q * 4096}")
        if j < n:
            m, k = chunks[j]; slot = j % 8
            if m == 'o':
                A(f"v_add_u32 v28, {slot * 16384}, v26")
                for k2 in range(2):
                    for jq in range(4):
                        off = (64 * k2 + 32 * (jq >> 1) + 2 * (jq & 1)) * 128
                        A(f"ds_read_b64_tr_b16 {u(WO(k, k2) + 2 * jq, 2)}, v28 offset:{off}")
            else:
                A(f"v_add_u32 v28, {slot * 16384}, v24")
                A(f"v_add_u32 v29, {slot * 16384}, v25")
                for b in range(2):
                    if m == 'q': dst = WQ(k, b)
                    elif m == 'v': dst = WV(k, b)
                    elif j == 27: dst = WK8(b)
                    else: dst = 32 + (j & 1) * 16 + b * 8
                    for jq in range(4):
                        off = (16 * (jq & 1) + 4 * (jq >> 1)) * 256
                        A(f"ds_read_b64_tr_b16 {u(dst + 2 * jq, 2)}, v{28+b} offset:{off}")
        A("s_waitcnt lgkmcnt(0)")

def r_consts(A):
    lane_const(A, L16, lambda t: (t & 63) * 16, tmp=12)
    lane_const(A, MEMR, lambda t: img((t & 15) >> 1, 2 * ((t >> 4) & 3) + (t & 1)), tmp=12)
    lane_const(A, QR, lambda t: L_QL + (t & 7) * QSTR + ((t >> 4) & 3) * 16, tmp=12)
    lane_const(A, QKW, lambda t: L_QL + (0, 4, 2, 6)[(t >> 4) & 3] * QSTR + (t >> 6) * 64 + (t & 15) * 4, tmp=12)
    lane_const(A, OW, lambda t: (t >> 7) * 1024 + img(PI[t & 7], 4 * ((t >> 6) & 1) + ((t >> 4) & 3)), tmp=12)
    A(f"v_add_u32 v{OW}, {L_OL}, v{OW}")
    lane_const(A, 14, lambda t: L_JUNK + (((t >> 4) & 3) * 8 + (t & 7)) * 16, tmp=12)
    A("v_and_b32 v12, 8, v0")
    A("v_cmp_ne_u32 vcc, 0, v12")
    A(f"v_cndmask_b32 v{OW}, v{OW}, v14, vcc")
    lane_const(A, IDX, lambda t: 0xEEEE if t & 1 else 0x4444, tmp=12)
    A(f"v_lshlrev_b32 v{T16}, 4, v0")
    A("s_and_b32 s12, s10, 1")
    A("s_lshl_b32 s12, s12, 5")
    A("s_add_u32 s37, s12, s9")
    A("v_mov_b32 v14, s37")
    lane_const(A, 15, lambda t: ms_fn(1, t, 0), src=14, nbits=6, tmp=12)
    lane_const(A, 16, lambda t: ms_fn(2, t, 0), src=14, nbits=5, tmp=12)
    if EXP.get('tm', 1): lane_const(A, 17, lambda t: WS_RP + t * 4096, src=14, nbits=6, tmp=12)
    else: lane_const(A, 17, lambda t: WS_RP + (t >> 2) * 16384 + (t & 3) * 128 + 4096, src=14, nbits=6, tmp=12)
    lane_const(A, 18, lambda t: WS_RP + 0x40000 + (t >> 3) * 8192 + (t & 7) * 32, src=14, nbits=5, tmp=12)
    A("v_readfirstlane_b32 s41, v15")
    A("v_readfirstlane_b32 s12, v16")
    A("v_readfirstlane_b32 s13, v17")
    A("v_readfirstlane_b32 s14, v18")
    A("s_cmp_lt_u32 s10, 2")
    A("s_cselect_b32 s41, s41, s12")
    A("s_cselect_b32 s13, s13, s14")
    if EXP.get('rep', 0):
        A("s_cselect_b32 s44, -1, 0x03030303")
        A("s_mov_b32 s45, s44")
        A("s_and_b32 s36, s9, 3")
        A("s_lshl_b32 s36, s36, 15")
        A("s_add_u32 s36, s36, 3072")
    else:
        A("s_mov_b32 s44, 0x00030003")
        A("s_cselect_b32 s44, 0x00FF00FF, s44")
        A("s_mov_b32 s45, 0")
        A("s_movk_i32 s36, 3072")
    add64(A, 28, S_WS, "s13")
    add64(A, 16, 28, 8192)
    A("s_lshl_b32 s12, s10, 5")
    A("s_add_u32 s12, s12, s9")
    A("s_lshl_b32 s13, s12, 9")
    if EXP.get('tm', 1):
        A("s_lshl_b32 s13, s10, 7")
        A("s_add_u32 s13, s13, s9")
        A("s_lshl_b32 s13, s13, 7")
    A(f"s_add_u32 s13, s13, {WS_RP}")
    add64(A, 26, S_WS, "s13")
    for p in range(1, 4): add64(A, 88 + 2 * p, 26, p * 65536)
    A("s_lshl_b32 s13, s12, 8")
    A(f"s_add_u32 s13, s13, {WS_RP + 0x40000}")
    add64(A, 42, S_WS, "s13")
    add64(A, 30, S_WS, WS_RM)
    cc = struct.unpack('<I', struct.pack('<f', (128 ** -0.5) * math.log2(math.e)))[0]
    A(f"s_mov_b32 s46, {cc:#x}")
    A("s_bfe_u32 s40, s9, 0x10003")
    A("s_lshl_b32 s12, s9, 14")
    A(f"s_add_u32 s12, s12, {WS_KV}")
    add64(A, 88, S_WS, "s12")
    A("s_lshl_b32 s13, s10, 11")
    add64(A, 32, 88, "s13")
    add64(A, 86, 32, 8192)
    A("s_lshl_b32 s12, s9, 12")
    A(f"s_add_u32 s12, s12, {WS_KVM}")
    add64(A, 50, S_WS, "s12")
    A("s_lshl_b32 s12, s9, 7")
    A(f"s_add_u32 s12, s12, {WS_KVPROG + 4096}")
    add64(A, 18, S_WS, "s12")
    A("s_lshl_b32 s12, s9, 2")
    A(f"s_add_u32 s12, s12, {WS_RPROG}")
    add64(A, 52, S_WS, "s12")
    A("s_lshl_b32 s12, s9, 7")
    A(f"s_add_u32 s12, s12, {WS_RPROG}")
    add64(A, 22, S_WS, "s12")
    A("s_lshl_b32 s62, s10, 11")
    A(f"s_add_u32 s62, s62, {L_KX}")
    A("s_lshl_b32 s63, s10, 10")
    A(f"s_add_u32 s57, s63, {L_MEM}")
    A(f"s_add_u32 s63, s63, {L_VX}")

def ms_fn(kind, t, l):
    q8, gp = l & 7, (l >> 4) & 1
    rp = (((l >> 3) & 1) + 2 * (l >> 5)) * 32768
    if kind == 1:
        w, g = (t >> 2) & 3, t & 3
        return rp + (t >> 3) * 1024 + img(2 * g + gp, 4 * (w & 1) + (q8 >> 1)) + (q8 & 1) * 8
    w, g, nh = t >> 3, (t >> 1) & 3, t & 1
    return rp + 8192 + img(2 * g + gp, 2 * w + nh) + (l & 1) * 8

def ms_calc(A, kind, dst, tmp):
    lane_const(A, dst, lambda x: ms_fn(kind, 0, x >> 4) ^ ms_fn(kind, 0, 0), src=L16, nbits=10, tmp=tmp, mode='xor')
    A(f"v_xor_b32 v{dst}, s41, v{dst}")

def kv_wait(A, seg_sgpr, nkv, kvg0, tv):
    if nkv == 0: return
    ok = A.newlabel('L_kvok'); loop = A.newlabel('L_kvp')
    A(f"s_cmp_lt_u32 {seg_sgpr}, s54")
    A(f"s_cbranch_scc1 {ok}")
    A("s_mov_b32 s55, 0")
    A(f"v_bfe_u32 v{tv}, v{L16}, 2, 4")
    A.label(loop)
    A(f"global_load_dword v{tv+1}, v{tv}, s[18:19] sc1")
    A("s_add_u32 s55, s55, 1")
    A(f"s_cmp_gt_u32 s55, {SPIN_MAX}")
    A("s_cbranch_scc1 L_exit")
    A("s_waitcnt vmcnt(0)")
    xsum(A, tv + 1, tv, op="v_min_u32", bits=(0, 1))
    A(f"v_readfirstlane_b32 s54, v{tv+1}")
    A(f"s_cmp_lt_u32 {seg_sgpr}, s54")
    A(f"s_cbranch_scc1 {ok}")
    A("s_sleep 4")
    A(f"s_branch {loop}")
    A.label(ok)

def r_main(A, fast, nkv, kvg0, nsteps=64):
    st = ("", "nt", "sc0")[EXP.get('stf', 0)] if fast else "sc1"
    LF = ("sc1", "sc0 sc1", "sc1 nt")[EXP.get('ldf', 0)]
    sfx = "f" if fast else "s"
    D = Lds(A)
    TR = EXP.get('trace', [])
    def tr(name):
        if name in TR:
            i = TR.index(name)
            A(f"{'s_memrealtime' if EXP.get('real') else 's_memtime'} s[{64+2*i}:{65+2*i}]")
    A("s_mov_b32 s24, 0")
    A("s_mov_b32 s34, 9216")
    A("s_mov_b32 s35, 0")
    if TR or EXP.get('rt'):
        for i in range(22 if TR else 16): A(f"s_mov_b32 s{64+i}, 0")
    tl(A, 2)
    if EXP.get('warm', 1):
        A("s_mul_i32 s12, s9, 9216")
        A(f"s_add_u32 s12, s12, {WS_RP}")
        A(f"v_lshl_add_u32 v12, v{T16}, 2, s12")
        A("s_lshl_b32 s12, s9, 10")
        A(f"s_add_u32 s12, s12, {WS_RM}")
        A(f"v_add_u32 v13, s12, v{L16}")
        A(f"s_mov_b32 m0, {L_JUNK}")
        A("global_load_lds_dword v12, s[4:5] sc1")
        A("global_load_lds_dword v13, s[4:5] sc1")
    A("s_mov_b32 s25, 0")
    kv_wait(A, "s25", nkv, kvg0, 12)
    tl(A, 3)
    if EXP.get('rt'):
        A("s_memrealtime s[80:81]")
        A("s_memtime s[96:97]")
    SW = dict(swap_tab()); SWO = {k: n for n, k in swap_tab()}
    LW = [n for n in range(16) if n not in SW]
    cur = [0]
    def lds_frag(n, r, tag, areg=WKB):
        off = wk_off(n); base = (off // 65536) * 65536
        if base and cur[0] != base:
            A(f"v_add_u32 v{areg}, {base:#x}, v{T16}")
            cur[0] = base
        ar = T16 if base == 0 else areg
        D.op(f"ds_read_b128 {v(r, 4)}, v{ar} offset:{off - base}")
        D.op(f"ds_read_b128 {v(r + 4, 4)}, v{ar} offset:{off - base + 4096}", tag)
    RSH = (3 - (len(LW) - 1) % 3) % 3
    def wslot(i): return WRING + ((i + RSH) % 3) * 8
    def wk_read(i):
        if i < 3: cur[0] = 0
        lds_frag(LW[i], wslot(i), ('wk', i))
    def spill_read(r):
        D.op(f"ds_read_b32 v{r}, v{QKW} offset:{KL0}")
        D.op(f"ds_read_b32 v{r+1}, v{QKW} offset:{KL0 + QSTR}")
        D.op(f"ds_read2_b32 {v(r + 2, 2)}, v{QKW} offset0:0 offset1:{QSTR // 4}", 'spill')
    def zero_qk(lo=ACCQ, hi=ACCQ + 16):
        for r in range(lo, hi, 2): A(f"v_mov_b64 {v(r, 2)}, 0")
    for n in sorted(range(3), key=wslot): wk_read(n)
    add64(A, 38, S_WS, WS_STAMP + 0x8000)
    A("s_mov_b64 s[58:59], s[88:89]")
    zero_qk()
    D.waitall()
    top = f"L_rtop_{sfx}"
    if 'al' in EXP:
        A.raw(".p2align 6")
        for _ in range(EXP['al']): A("s_nop 0")
    A.label(top)
    A("s_barrier")
    tr('b1')
    def mem_read(ks, r, tag):
        D.op(f"ds_read_b128 {v(r, 4)}, v{MEMR} offset:{L_MEM + ks * 1024}", tag)
    def mslot(p): return MRING + (p % 3) * 4
    A("s_mov_b32 m0, s62")
    for p in range(3): mem_read(ORD[p], mslot(p), ('m', p))
    A(f"global_load_lds_dwordx4 v{L16}, s[32:33]")
    if not EXP.get('kd2'):
        A(f"global_load_lds_dwordx4 v{L16}, s[32:33] offset:1024")
        A("s_mov_b32 m0, s63")
    loc = {('m', 8): mslot(8), ('m', 7): mslot(7), ('m', 6): mslot(6)}
    NSL = 3 if nkv else 2
    def sread(tag, r):
        loc[tag] = r
        if tag[0] == 'q': D.op(f"ds_read_b128 {v(r, 4)}, v{QR} offset:{tag[1] * 64}", tag)
        elif tag[0] == 'km': D.op(f"ds_read_b128 {v(r, 4)}, v{QR} offset:{KL0 + tag[1] * 64}", tag)
        elif tag[0] == 'kx': D.op(f"ds_read_b128 {v(r, 4)}, v{L16} offset:{L_KX + (tag[1] * 4 + tag[2]) * 1024}", tag)
        elif tag[0] == 'm': mem_read(ORD[tag[1]], r, tag)
        elif tag[0] == 'vx':
            if tag[1] == 0: A(f"s_waitcnt vmcnt({NSL})")
            D.op(f"ds_read_b128 {v(r, 4)}, v{T16} offset:{L_VX + tag[1] * 4096}", tag)
    def smf(acc, ar, w): A(f"{SMF} {v(acc, 4)}, {v(ar, 4)}, {u(w, 8)}, v{IDX}")
    V0S = EXP.get('v0s', 2)
    ext = {EXP.get('vd1', 1): f"global_load_lds_dwordx4 v{L16}, s[86:87]\ns_add_u32 m0, s63, 3072",
           EXP.get('vd2', 3): f"global_load_lds_dwordx4 v{L16}, s[86:87] offset:1024\ns_mov_b32 m0, {L_JUNK}",
           4 * V0S - 3: f"global_store_dwordx4 v{T16}, {v(ACCV0, 4)}, s[38:39] sc1",
           4 * V0S - 1: f"v_lshlrev_b32 v{ACCV0}, 2, v{T16}\nv_mov_b64 {v(ACCV0 + 2, 2)}, 0",
           4 * V0S + 1: f"global_load_lds_dword v{ACCV0}, s[58:59]\nv_mov_b64 {v(ACCV0, 2)}, 0\ns_mov_b32 m0, {L_QL + 256}"}
    if EXP.get('kd2'): ext[EXP['kd2']] = f"global_load_lds_dwordx4 v{L16}, s[32:33] offset:1024\ns_mov_b32 m0, s63"
    if nkv: ext[4 * V0S + 4] = f"s_mov_b64 exec, 1\nglobal_load_lds_dwordx4 v{L16}, s[18:19] sc1\ns_mov_b64 exec, -1"
    if EXP.get('noslow'):
        ext[4 * V0S - 3] = f"global_store_dwordx4 v{T16}, {v(ACCV0, 4)}, s[50:51]"
        ext[4 * V0S + 1] = ext[4 * V0S + 1].replace("s[58:59]", "s[88:89]")
    sb_ = Asm()
    sb_("s_lshl_b32 s13, s24, 17")
    add64(sb_, 38, 50, "s13")
    sb_("s_add_u32 s25, s24, 2")
    sb_(f"s_min_u32 s25, s25, {nsteps - 1}")
    sb_("s_lshl_b32 s13, s25, 19")
    add64(sb_, 58, 88, "s13")
    add64(sb_, 86, 86, 0 if EXP.get('noslow') else 1 << 19)
    add64(sb_, 32, 32, 0 if EXP.get('noslow') else 1 << 19)
    add64(sb_, 14, 30, "s34")
    add64(sb_, 60, 30, "s35")
    add64(sb_, 20, 14, "s36")
    sb_("s_and_b32 s12, s24, 1")
    sb_("s_xor_b32 s13, s12, 1")
    sb_("s_xor_b32 s47, s12, s40")
    sb_("s_add_u32 s24, s24, 1")
    sb_("s_mov_b32 s35, s34")
    sb_("s_add_u32 s34, s34, 9216")
    sb_("s_cmp_eq_u32 s34, 27648")
    sb_("s_cselect_b32 s34, 0, s34")
    sb_("s_mov_b32 s55, 0")
    sq = [i.text.strip() for i in sb_.ins]
    cnt_ = [0]
    side = []
    class Defer:
        def op(self, text, tag=None): side.append((text, tag))
    def flush_until(tag):
        while any(t == tag for _, t in side):
            x = side.pop(0)
            D.op(*x) if x[0].startswith('ds_') else A(x[0])
    GAPN = EXP.get('gapn', 2)
    def smfs(acc, ar, w, need=()):
        for t in need:
            flush_until(t); D.wait(t)
        smf(acc, ar, w)
        cnt_[0] += 1
    def gap():
        n = 0
        if cnt_[0] in ext:
            A(ext[cnt_[0]]); n += 1
        while side and n < GAPN:
            x = side.pop(0)
            D.op(*x) if x[0].startswith('ds_') else A(x[0])
            n += 1
        while cnt_[0] > 4 * V0S + 4 and sq and n < GAPN:
            A(sq.pop(0)); n += 1
    def d_wk(i):
        off = wk_off(LW[i]); base = (off // 65536) * 65536
        if base and cur[0] != base:
            side.append((f"v_add_u32 v{WKB}, {base:#x}, v{T16}", None)); cur[0] = base
        ar = T16 if base == 0 else WKB
        side.append((f"ds_read_b128 {v(wslot(i), 4)}, v{ar} offset:{off - base}", None))
        side.append((f"ds_read_b128 {v(wslot(i) + 4, 4)}, v{ar} offset:{off - base + 4096}", ('wk', i)))
    def d_kx(kt, j, r):
        loc[('kx', kt, j)] = r
        side.append((f"ds_read_b128 {v(r, 4)}, v{L16} offset:{L_KX + (kt * 4 + j) * 1024}", ('kx', kt, j)))
    cur[0] = 0
    for p in range(8):
        ks = ORD[p]
        m = mslot(p)
        smfs(ACCQ, m, WQ(ks, 0), [('m', p)]); gap()
        for b in range(2):
            n = 2 * p + b
            if n in SW: smfs(ACCK + 4 * b, m, wo_reg(SW[n]))
            else:
                i = LW.index(n)
                smfs(ACCK + 4 * b, m, wslot(i), [('wk', i)])
                if i + 3 < len(LW): d_wk(i + 3)
            if b == 1 and p + 3 < 9:
                side.append((f"ds_read_b128 {v(mslot(p), 4)}, v{MEMR} offset:{L_MEM + ORD[p + 3] * 1024}", ('m', p + 3)))
            if n == 12:
                side.append((f"s_waitcnt vmcnt({NSL + 2})", None))
                side.append(("s_barrier", None))
            if n == 13: d_kx(0, 0, 48); d_kx(1, 0, 52)
            if n == 14: d_kx(0, 1, 56); d_kx(1, 1, 60)
            gap()
            if b == 0:
                smfs(ACCQ + 4, m, WQ(ks, 1)); gap()
                if p >= V0S: smfs(ACCV0, m, WV(ks, 0)); gap()
        tr(f'a{p+1}')
    assert not side, side
    sread(('m', 5), 44)
    D.wait(('m', 8))
    m = mslot(8); ks = ORD[8]
    smfs(ACCQ, m, WQ(ks, 0)); gap(); smfs(ACCQ + 4, m, WQ(ks, 1))
    for o in sq: A(o)
    A(f"v_mov_b64 {v(ACCV1, 2)}, 0")
    smf(ACCK, m, WK8(0))
    A(f"v_mov_b64 {v(ACCV1 + 2, 2)}, 0")
    smf(ACCK + 4, m, WK8(1))
    A(f"v_mov_b32 v{TMPC}, s47")
    smf(ACCV0, m, WV(ks, 0))
    tr('a9')
    A(f"s_cmp_eq_u32 s24, {nsteps}")
    A(f"s_cbranch_scc1 L_rlast_{sfx}")
    fill = [(p, 1) for p in range(8, V0S - 1, -1)]
    for p in range(V0S - 1, -1, -1): fill += [(p, 1), (p, 0)]
    def filler(cnt=1):
        for _ in range(cnt):
            if fill:
                p, b = fill.pop(0)
                D.wait(('m', p))
                smf(ACCV1 if b else ACCV0, loc[('m', p)], WV(ORD[p], b))
    for acc, lo in ((ACCQ, 0), (ACCK, KL0)):
        for b in range(2):
            A(f"v_add_f32 v{acc+4*b}, v{acc+4*b}, v{acc+4*b+1}")
            A(f"v_add_f32 v{acc+4*b+2}, v{acc+4*b+2}, v{acc+4*b+3}")
        A(f"v_cvt_pk_bf16_f32 v{acc+1}, v{acc}, v{acc+4}")
        A(f"v_cvt_pk_bf16_f32 v{acc+3}, v{acc+2}, v{acc+6}")
        if lo == 0: D.op(f"ds_write2_b32 v{QKW}, v{acc+1}, v{acc+3} offset0:0 offset1:{QSTR // 4}")
        else:
            D.op(f"ds_write_b32 v{QKW}, v{acc+1} offset:{lo}")
            D.op(f"ds_write_b32 v{QKW}, v{acc+3} offset:{lo + QSTR}", 'qkw')
    tr('qkw')
    filler(1)
    sread(('m', 4), 16); sread(('m', 3), 24); sread(('m', 2), mslot(8))
    filler(3)
    D.wait('qkw')
    A("s_barrier")
    tr('b2')
    T0, T1, T2 = 12, 16, 20
    sread(('q', 0), mslot(7)); sread(('km', 0), mslot(6)); sread(('q', 1), 44)
    filler(2)
    sread(('km', 1), 24)
    filler(1 if V0S < 3 else 2)
    sread(('q', 2), mslot(8))
    pend = [('kx', 0, 2), ('kx', 1, 2), ('km', 2), ('q', 3), ('kx', 0, 3), ('kx', 1, 3), ('km', 3),
            ('m', 1), ('m', 0), ('vx', 0), ('vx', 1)]
    free = []
    for j in range(4):
        for T, tag in ((T0, ('kx', 0, j)), (T1, ('kx', 1, j)), (T2, ('km', j))):
            D.wait(tag); D.wait(('q', j))
            A(f"{MF32} {v(T, 4)}, {v(loc[tag], 4)}, {v(loc[('q', j)], 4)}, {v(T, 4) if j else 0}")
            if pend: sread(pend.pop(0), loc[tag])
            else: free.append(loc[tag])
        if pend: sread(pend.pop(0), loc[('q', j)])
        else: free.append(loc[('q', j)])
    tr('s_done')
    BX, Z, DA, DB = free[0], free[1], free[2], free[3]
    filler(2)
    M, TT, SUM = 16, 17, 18
    VMR = 22
    AO = 28
    busy = set()
    for b_ in (BX, Z, DA, DB, loc[('vx', 0)], loc[('vx', 1)], ACCV1, loc[('m', 0)]): busy |= set(range(b_, b_ + 4))
    zq = [r for r in range(AO, AO + 36, 2) if r not in busy]
    late = set(range(DA, DA + 4)) | set(range(DB, DB + 4))
    zm = [r for r in range(AO, AO + 36, 2) if r in busy and r not in late]
    zl = [r for r in range(AO, AO + 36, 2) if r in late]
    def zero(cnt=1):
        for _ in range(cnt):
            if zq: A(f"v_mov_b64 {v(zq.pop(0), 2)}, 0")
    A(f"v_mov_b32 v{Z+1}, 0")
    A(f"v_mov_b32 v{Z+2}, 0")
    for r in range(4): A(f"v_mov_b32_dpp v{T0+r}, v{T1+r} {IDQ} row_mask:0xf bank_mask:0xc")
    A(f"v_mov_b32_dpp v{T2+2}, v{T2+3} {IDQ} row_mask:0xf bank_mask:0xc")
    A(f"v_mov_b32_dpp v{T2}, v{T2+1} {IDQ} row_mask:0x3 bank_mask:0xc")
    A(f"v_max3_f32 v{M}, v12, v13, v14")
    zero(1)
    A(f"v_mov_b32_dpp v{T2}, v{T2+2} {IDQ} row_mask:0xc bank_mask:0xf")
    A(f"v_max3_f32 v{M}, v{M}, v15, v20")
    tr('max0')
    filler(1); zero(1)
    A(f"v_max_f32_dpp v{M}, v{M}, v{M} {ROR8}")
    A(f"v_mov_b32 v{TT}, v{M}")
    filler(9); zero(1)
    assert not fill
    A(f"v_permlane16_swap_b32 v{M}, v{TT}")
    A(f"v_max_f32 v{M}, v{M}, v{TT}")
    A(f"v_mov_b32 v{TT}, v{M}")
    zero(2)
    A(f"v_permlane32_swap_b32 v{M}, v{TT}")
    A(f"v_max_f32 v{M}, v{M}, v{TT}")
    A(f"v_mul_f32 v{M}, s46, v{M}")
    tr('max1')
    for e in (12, 13, 14, 15, 20): A(f"v_fma_f32 v{e}, v{e}, s46, -v{M}")
    for e in (12, 13, 14, 15): A(f"v_exp_f32 v{e}, v{e}")
    A(f"v_cvt_pk_bf16_f32 v{BX}, v12, v13")
    A(f"v_cvt_pk_bf16_f32 v{BX+1}, v14, v15")
    A("v_exp_f32 v20, v20")
    A(f"v_mov_b32_dpp v{BX+2}, v{BX} {ROR8}")
    A(f"v_mov_b32_dpp v{BX+3}, v{BX+1} {ROR8}")
    A(f"v_mov_b32_dpp v21, v20 {ROR8}")
    A(f"v_add_f32 v{ACCV0}, v{ACCV0}, v{ACCV0+1}")
    D.wait(('vx', 1))
    tr('pv0')
    A(f"{MF32} {v(DA, 4)}, {v(loc[('vx', 0)], 4)}, {v(BX, 4)}, 0")
    A(f"v_add_f32 v{ACCV0+2}, v{ACCV0+2}, v{ACCV0+3}")
    A(f"v_add_f32 v{ACCV1}, v{ACCV1}, v{ACCV1+1}")
    A(f"{MF32} {v(DB, 4)}, {v(loc[('vx', 1)], 4)}, {v(BX, 4)}, 0")
    A(f"v_add_f32 v{ACCV1+2}, v{ACCV1+2}, v{ACCV1+3}")
    A(f"v_cvt_pk_bf16_f32 v{VMR}, v{ACCV0}, v{ACCV0+2}")
    A(f"v_cvt_pk_bf16_f32 v{VMR+1}, v{ACCV1}, v{ACCV1+2}")
    A(f"v_cvt_pk_bf16_f32 v{Z}, v20, v21")
    A(f"v_cvt_pk_bf16_f32 v{Z+3}, v20, v21")
    A(f"v_add_f32 v{SUM}, v12, v13")
    A(f"{MF16} {v(DA, 4)}, {v(VMR, 2)}, {v(Z, 2)}, {v(DA, 4)}")
    A(f"v_add_f32 v{TT}, v14, v15")
    A(f"v_add_f32 v{SUM}, v{SUM}, v20")
    A(f"{MF16} {v(DB, 4)}, {v(VMR, 2)}, {v(Z + 2, 2)}, {v(DB, 4)}")
    tr('pv1')
    A(f"v_add_f32 v{SUM}, v{SUM}, v{TT}")
    zq += zm
    zero(2)
    A(f"v_add_f32_dpp v{SUM}, v{SUM}, v{SUM} {ROR8}")
    A(f"v_mov_b32 v{TT}, v{SUM}")
    zero(2)
    A(f"v_permlane16_swap_b32 v{SUM}, v{TT}")
    A(f"v_add_f32 v{SUM}, v{SUM}, v{TT}")
    A(f"v_mov_b32 v{TT}, v{SUM}")
    zero(2)
    A(f"v_permlane32_swap_b32 v{SUM}, v{TT}")
    A(f"v_add_f32 v{SUM}, v{SUM}, v{TT}")
    A(f"v_rcp_f32 v{SUM}, v{SUM}")
    tr('rcp')
    zero(1)
    for k, Dx in enumerate((DA, DB)):
        for r in (0, 2): A(f"v_pk_mul_f32 {v(Dx + r, 2)}, {v(Dx + r, 2)}, {v(SUM, 2)} op_sel_hi:[1,0]")
    A(f"v_cvt_pk_bf16_f32 v12, v{DA}, v{DA+1}")
    A(f"v_cvt_pk_bf16_f32 v13, v{DA+2}, v{DA+3}")
    A(f"v_cvt_pk_bf16_f32 v14, v{DB}, v{DB+1}")
    A(f"v_cvt_pk_bf16_f32 v15, v{DB+2}, v{DB+3}")
    D.op(f"ds_write_b128 v{OW}, v[12:15]")
    tr('ow')
    zq += zl
    zq.sort()
    PS, PL, WB = 8, 9, 20
    post = [f"v_mov_b64 {v(r, 2)}, 0" for r in zq]
    post += [f"v_lshrrev_b32 v{PL}, 2, v{L16}", f"v_and_b32 v{PS}, 0x300, v{L16}", f"v_bfe_u32 v10, v{L16}, 1, 7", f"v_lshl_or_b32 v{PS}, v{PS}, 4, v10"]
    for _ in range(EXP.get('zb', 4)): A(post.pop(0))
    D.waitall()
    A("s_barrier")
    tr('b3')
    OF = 12
    D.op(f"ds_read_b128 {v(OF, 4)}, v{MEMR} offset:{L_OL}", 'o0')
    D.op(f"ds_read_b128 {v(OF + 4, 4)}, v{MEMR} offset:{L_OL + 1024}", 'o1')
    A(post.pop(0))
    D.op(f"ds_write2_b32 v{QKW}, v{VMR}, v{VMR+1} offset0:0 offset1:{QSTR // 4}")
    cur[0] = 0
    wq_ = sorted(SWO)
    def wo_next():
        if wq_:
            k_ = wq_.pop(0)
            lds_frag(SWO[k_], WB, ('wo', k_), areg=11)
    wo_next()
    for _ in range(EXP.get('za', 2)): A(post.pop(0))
    def acc(t): return AO + 4 * WORD.index(t)
    def wpost(t):
        c = acc(t)
        o = [f"v_add_f32 v{c}, v{c}, v{c+1}", f"v_add_f32 v{c+1}, v{c+2}, v{c+3}"]
        if t == 8:
            o.append(f"v_cvt_pk_bf16_f32 v{c+2}, v{c}, v{c+1}")
            o.append(f"v_bfi_b32 v{c+2}, 1, v{TMPC}, v{c+2}")
            o.append(f"global_store_dword v{PL}, v{c+2}, s[42:43] {st}")
        elif t & 1:
            p = acc(t - 1); sb = 26 if t == 1 else 88 + 2 * (t // 2)
            o.append(f"v_cvt_pk_bf16_f32 v{c+2}, v{p}, v{c}")
            o.append(f"v_cvt_pk_bf16_f32 v{c+3}, v{p+1}, v{c+1}")
            o.append(f"v_bfi_b32 v{c+2}, 1, v{TMPC}, v{c+2}")
            o.append(f"global_store_dwordx2 v{PS}, {v(c + 2, 2)}, s[{sb}:{sb+1}] {st}")
        return o
    D.wait('o0')
    tr('wo0')
    seq = [(t, k2) for t in WORD for k2 in range(2)]
    if EXP.get('il', 0):
        seq = [(8, 0), (0, 0), (8, 1), (1, 0), (0, 1)]
        for t in range(1, 7): seq += [(t + 1, 0), (t, 1)]
        seq += [(7, 1)]
        assert len(seq) == 18 and not SWO
    vq = list(post); since = {}
    slots = 0
    for k, (t, k2) in enumerate(seq):
        if k2 == 1: D.wait('o1')
        if k in SWO:
            D.wait(('wo', k))
            smf(acc(t), OF + 4 * k2, WB)
            wo_next()
            slots += 2
        else: smf(acc(t), OF + 4 * k2, WO(t, k2))
        slots += 1
        if k2 == 1: since[t] = slots
        for _ in range(1 if k < EXP.get('w1', 5) else EXP.get('wv', 3)):
            for tt_ in list(since):
                if slots - since[tt_] >= EXP.get('wlag', 8): vq += wpost(tt_); del since[tt_]
            if vq: A(vq.pop(0)); slots += 1
    tr('wo1')
    for tt_ in list(since): vq += wpost(tt_)
    for o in vq: A(o)
    tr('wo2')
    D.q = []
    SEL, RD, MS, LA = 12, 16, 8, 9
    LDB = (24, 40)
    A("s_cmp_ge_u32 s10, 2")
    A(f"s_cbranch_scc1 L_rw23_{sfx}")
    NB = 1
    for kind in (1, 2):
        lab = f"L_rp1{kind}_{sfx}"
        nl = 4 if kind == 1 else 1
        def loads(LD):
            if kind == 2: A(f"global_load_dwordx4 {v(LD, 4)}, v{LA}, s[28:29] {LF}")
            else:
                for j in range(4): A(f"global_load_dwordx4 {v(LD + 4 * j, 4)}, v{L16}, s[28:29] offset:{j * 1024} {LF}")
        P = Asm()
        if kind == 1:
            P(f"v_bfe_u32 v20, v{L16}, 4, 1")
            P(f"v_bfe_u32 v21, v{L16}, 5, 1")
            P(f"v_bfe_u32 v22, v{L16}, 6, 1")
            P("v_lshl_add_u32 v22, v21, 1, v22")
        else:
            P(f"v_bfe_u32 v20, v{L16}, 6, 1")
            P(f"v_bfe_u32 v22, v{L16}, 4, 2")
            P(f"v_bfe_u32 v23, v{L16}, 8, 1")
            P("v_xor_b32 v23, s12, v23")
        P("v_lshlrev_b32 v20, 4, v20")
        P("v_mov_b32 v21, 0x3f80")
        P("v_lshlrev_b32 v21, v20, v21")
        m_ = Asm(); ms_calc(m_, kind, MS, 10); mq = [i.text.strip() for i in m_.ins]
        for j in range(4):
            P(f"v_cmp_eq_u32 vcc, {j}, v22")
            for _ in range(2):
                if mq: P(mq.pop(0))
            P(f"v_cndmask_b32 v{SEL+j}, 0, v21, vcc")
        for o in mq: P(o)
        P("v_mov_b64 v[10:11], -1")
        pq = [i.text.strip() for i in P.ins]
        def fin():
            for r in range(4): A(f"v_add_f32_dpp v{RD+r}, v{RD+r}, v{RD+r} {ROR8}")
            if kind == 2:
                for r in range(4): A(f"v_add_f32_dpp v{RD+r}, v{RD+r}, v{RD+r} row_ror:4 row_mask:0xf bank_mask:0xf")
                for r in range(4): A(f"v_add_f32_dpp v{RD+r}, v{RD+r}, v{RD+r} quad_perm:[2,3,0,1] row_mask:0xf bank_mask:0xf")
            A(f"v_cvt_pk_bf16_f32 v20, v{RD}, v{RD+1}")
            A(f"v_cvt_pk_bf16_f32 v21, v{RD+2}, v{RD+3}")
        if kind == 1:
            for n in sorted(range(3), key=wslot): wk_read(n)
            LD = 24
            l1 = A.newlabel('L_k1')
            A("s_cmp_eq_u32 s10, 1")
            A(f"s_cbranch_scc1 {l1}")
            A(f"s_waitcnt vmcnt({EXP.get('k0', 1)})")
            tr('p1s')
            loads(LD)
            for o in pq: A(o)
            A(f"s_branch {lab}")
            A.label(l1)
            tp = EXP.get('tp', 6)
            for o in pq[:len(pq) - tp]: A(o)
            A(f"s_waitcnt vmcnt({EXP.get('k1', 0)})")
            for o in pq[len(pq) - tp:]: A(o)
            tr('p1s')
            loads(LD)
            A.label(lab)
            for j in range(4):
                A(f"s_waitcnt vmcnt({3 - j})")
                tr(f'p1w{j}')
                A(f"{MF32} {v(RD, 4)}, {v(SEL, 4)}, {v(LD + 4 * j, 4)}, {v(RD, 4) if j else 0}")
                A(f"v_bitop3_b32 v{20 + j}, v{LD+4*j}, v{LD+4*j+2}, {'s13' if j & 1 else 's12'} bitop3:0x7e")
                if j == 2: A("v_or3_b32 v20, v20, v21, v22")
            A.label(lab + "_c")
            A("v_bitop3_b32 v20, v20, v23, 1 bitop3:0xa8")
            A("v_cmp_ne_u32 vcc, 0, v20")
            fin()
            A(f"s_cbranch_vccz L_rp1ok_{sfx}")
            backoff(A, 55)
            A("s_mov_b64 exec, vcc")
            loads(LD)
            A("s_mov_b64 exec, -1")
            A("s_add_u32 s55, s55, 1")
            A(f"s_cmp_gt_u32 s55, {SPIN_MAX}")
            A(f"s_cbranch_scc0 {lab}")
            A("s_branch L_exit")
        else:
            A.label(f"L_rw23_{sfx}")
            A("s_cmp_eq_u32 s10, 3")
            A(f"s_cbranch_scc1 L_rnt_{sfx}")
            lane_const(A, LA, lambda x: (x >> 5) * 256 + ((x >> 4) & 1) * 16, src=L16, nbits=10, tmp=10)
            NH = 1
            h = len(pq)
            for b in range(NH):
                loads(24 + 4 * b)
                for o in pq[b * h:(b + 1) * h]: A(o)
            A.label(lab)
            for b in range(NH):
                LD = 24 + 4 * b
                A(f"s_waitcnt vmcnt({NH - 1})")
                A(f"v_bitop3_b32 v20, v{LD}, v{LD+1}, v23 bitop3:0x7e")
                A(f"v_bitop3_b32 v21, v{LD+2}, v{LD+3}, v23 bitop3:0x7e")
                A("v_bitop3_b32 v20, v20, v21, 1 bitop3:0xa8")
                A("v_cmp_ne_u32 vcc, 0, v20")
                A(f"{MF32} {v(RD, 4)}, {v(SEL, 4)}, {v(LD, 4)}, 0")
                A(f"s_cbranch_vccz {lab}_ok")
                backoff(A, 55)
                loads(LD)
                A("s_add_u32 s55, s55, 1")
            A(f"s_cmp_gt_u32 s55, {SPIN_MAX}")
            A(f"s_cbranch_scc0 {lab}")
            A("s_branch L_exit")
            A.label(lab + "_ok")
            D.q = []
            for n in sorted(range(3), key=wslot): wk_read(n)
            fin()
            A(f"s_branch L_rp1ok_{sfx}")
    def rest(force=False):
        if NB == 2 or force:
            for n in sorted(range(3), key=wslot): wk_read(n)
        spill_read(ACCV0)
    A.label(f"L_rnt_{sfx}")
    D.q = []
    rest(True)
    zero_qk()
    if nkv:
        A(f"v_mov_b32 v28, {L_QL + 256}")
        A("s_waitcnt vmcnt(5)")
        A("ds_read_b128 v[28:31], v28")
        A("s_waitcnt lgkmcnt(0)")
        A("v_min3_u32 v28, v28, v29, v30")
        A("v_min_u32 v28, v28, v31")
        A("v_readfirstlane_b32 s12, v28")
        A("s_max_u32 s54, s54, s12")
    kv_wait(A, "s25", nkv, kvg0, 28)
    A.label(f"L_rmbok_{sfx}")
    A("s_barrier")
    A("s_waitcnt vmcnt(0)")
    A(f"s_branch L_rp2ok_{sfx}")
    A.label(f"L_rp1ok_{sfx}")
    tr('p1ok')
    A("s_mov_b64 exec, s[44:45]")
    A(f"global_store_dwordx2 v{MS}, v[20:21], s[14:15] {st}")
    A(f"global_store_dwordx2 v{MS}, v[10:11], s[60:61] {st}")
    A("s_mov_b64 exec, -1")
    if EXP.get('rt'): A("s_add_u32 s76, s76, s55")
    A("s_barrier")
    tr('b4')
    D.q = []
    def round2():
        A("s_mov_b32 m0, s57")
        A(f"global_load_lds_dwordx4 v{T16}, s[14:15] sc1")
        A("s_add_u32 m0, s57, 3072")
        A(f"global_load_lds_dwordx4 v{T16}, s[20:21] sc1")
        A(f"global_load_lds_dwordx4 v{T16}, s[20:21] offset:3072 sc1")
    A("s_mov_b32 s55, 0")
    for _ in range(EXP.get('d2', 0)): A("s_nop 3")
    tr('p2s')
    okl = top if not (TR or EXP.get('rt')) else f"L_rp2ok_{sfx}"
    def loads2():
        for j in range(3):
            A(f"global_load_dwordx4 {v(MRING + 4 * j, 4)}, v{T16}, s[20:21] offset:{(j - 1) * 3072} {LF}")
    Z2 = EXP.get('z2', 6)
    rest()
    zero_qk(12, 12 + 2 * Z2)
    loads2()
    zero_qk(12 + 2 * Z2, 28)
    A.label(f"L_rp2_{sfx}")
    A("s_waitcnt vmcnt(2)")
    tr('p2w0')
    A(f"ds_write_b128 v{T16}, v[28:31] offset:{L_MEM}")
    A(f"v_max_u32 v{TMPC}, v28, v30")
    A("s_waitcnt vmcnt(1)")
    A(f"v_max3_u32 v{TMPC}, v{TMPC}, v32, v34")
    A(f"ds_write_b128 v{T16}, v[32:35] offset:{L_MEM + 3072}")
    A("s_waitcnt vmcnt(0)")
    A(f"v_max3_u32 v{TMPC}, v{TMPC}, v36, v38")
    A(f"v_cmp_eq_u32 vcc, -1, v{TMPC}")
    A(f"ds_write_b128 v{T16}, v[36:39] offset:{L_MEM + 6144}")
    A(f"s_cbranch_vccz L_rp2ok_{sfx}")
    A("s_mov_b64 exec, vcc")
    loads2()
    A("s_mov_b64 exec, -1")
    A("s_add_u32 s55, s55, 1")
    A(f"s_cmp_gt_u32 s55, {SPIN_MAX}")
    A(f"s_cbranch_scc0 L_rp2_{sfx}")
    A("s_branch L_exit")
    A.label(f"L_rp2ok_{sfx}")
    tr('p2ok')
    if EXP.get('rt'): A("s_add_u32 s77, s77, s55")
    D.waitall()
    if TR:
        A("s_cmp_lg_u32 s24, 41")
        A(f"s_cbranch_scc1 {top}")
        A("s_lshl_b32 s12, s9, 2")
        A("s_add_u32 s12, s12, s10")
        A("s_lshl_b32 s12, s12, 6")
        A(f"s_add_u32 s12, s12, {WS_STAMP + 16384}")
        A(f"v_mov_b32 v{TMPC}, s12")
        for q in range(11):
            A(f"v_mov_b32 v28, s{64 + 2 * q}")
            A(f"global_store_dword v{TMPC}, v28, s[4:5] offset:{4 * q}")
            A("s_waitcnt vmcnt(0)")
    A(f"s_branch {top}")
    A.label(f"L_rlast_{sfx}")
    D.waitall()
    lr = {8: mslot(8), 7: mslot(7), 6: mslot(6), 5: 44, 4: 48, 3: 52, 2: 56, 1: 60, 0: 12}
    for p in (4, 3, 2, 1, 0): mem_read(ORD[p], lr[p], ('lm', p))
    for p in range(8, -1, -1):
        D.wait(('lm', p))
        smf(ACCV1, lr[p], WV(ORD[p], 1))
        if p < V0S: smf(ACCV0, lr[p], WV(ORD[p], 0))
    for b in range(2):
        A(f"v_add_f32 v{ACCK+4*b}, v{ACCK+4*b}, v{ACCK+4*b+1}")
        A(f"v_add_f32 v{ACCK+4*b+2}, v{ACCK+4*b+2}, v{ACCK+4*b+3}")
    A(f"v_cvt_pk_bf16_f32 v16, v{ACCK}, v{ACCK+4}")
    A(f"v_cvt_pk_bf16_f32 v17, v{ACCK+2}, v{ACCK+6}")
    for a_ in (ACCV1, ACCV0):
        A(f"v_add_f32 v{a_}, v{a_}, v{a_+1}")
        A(f"v_add_f32 v{a_+2}, v{a_+2}, v{a_+3}")
    A(f"v_cvt_pk_bf16_f32 v18, v{ACCV0}, v{ACCV0+2}")
    A(f"v_cvt_pk_bf16_f32 v19, v{ACCV1}, v{ACCV1+2}")
    A(f"global_store_dwordx4 v{T16}, v[16:19], s[38:39] sc1")
    tl(A, 4)
    if EXP.get('rt'):
        A("s_memrealtime s[82:83]")
        A("s_memtime s[98:99]")
        A("s_waitcnt lgkmcnt(0)")
        A("s_sub_u32 s75, s98, s96")
        A("s_sub_u32 s78, s80, s84")
        A("s_sub_u32 s79, s82, s80")
        A("s_lshl_b32 s12, s9, 2")
        A("s_add_u32 s12, s12, s10")
        A("s_lshl_b32 s12, s12, 6")
        A(f"s_add_u32 s12, s12, {WS_STAMP}")
        A("v_mov_b32 v12, s12")
        for q in range(4):
            for r in range(4): A(f"v_mov_b32 v{16+r}, s{64 + 4 * q + r}")
            A(f"global_store_dwordx4 v12, v[16:19], s[4:5] offset:{16 * q}")
            A("s_waitcnt vmcnt(0)")
    A("s_branch L_exit")

def role_r(A, restart, nkv, kvg0):
    if EXP.get('rt'):
        A("s_memrealtime s[84:85]")
        A("s_waitcnt lgkmcnt(0)")
    r_setup(A)
    r_swap(A)
    tl(A, 1)
    A("s_waitcnt vmcnt(0)")
    A("s_mov_b32 s54, 0")
    A("v_min3_u32 v6, v8, v9, v10")
    A("v_min_u32 v6, v6, v11")
    mode_check(A, tv=12, pre=4)
    r_consts(A)
    A("s_cmp_eq_u32 s11, 0")
    A("s_cbranch_scc1 L_r_slow")
    r_main(A, True, nkv, kvg0)
    A.label("L_r_slow")
    r_main(A, False, nkv, kvg0)
```

```python
import sys
import role_r as RR
from common import *
from role_kv import stage_mod, stage_ln1, role_kv
import role_af as AF
NAME = "adaLN_cond__memory_aug_recurrent_mem_tr__swiglu_ffn__prompt"
out = sys.argv[1] if len(sys.argv) > 1 else f'cdna_kernels/{NAME}.s'
for a_ in sys.argv[2:]:
    k_, _, v_ = a_.partition('=')
    RR.EXP[k_] = v_.split(',') if k_ == 'trace' else (int(v_) if v_ else 1)
AF.EXP = RR.EXP
K = NAME + "_kernel"
FORCE['tm'] = RR.EXP.get('tm', 1)
FORCE['cpf'] = RR.EXP.get('cpf', 1)
PERMS = {0: None, 1: [0, 2, 3, 5, 1, 6, 7, 4], 2: [0, 2, 1, 5, 6, 7, 3, 4], 3: [0, 5, 6, 2, 1, 3, 4, 7], 4: [0, 2, 5, 6, 7, 1, 3, 4]}
FORCE['perm'] = PERMS[RR.EXP.get('perm', 0)]
A = Asm()
kernel_begin(A, K)
TL['dbg'] = RR.EXP.get('tld')
if TL['dbg']: tl(A, 0)
preamble(A)
FORCE['slow'] = bool(RR.EXP.get('forceslow'))
TL["on"] = bool(RR.EXP.get("tl"))
if not TL["dbg"]: tl(A, 0)
A.label("L_roles")
A("s_cmp_eq_u32 s8, 0")
A("s_cbranch_scc1 L_role_r")
A("s_cmp_eq_u32 s8, 1")
A("s_cbranch_scc1 L_role_kv")
A("s_cmp_lt_u32 s8, 5")
A("s_cbranch_scc1 L_role_a")
A("s_mul_i32 s14, s9, 3")
A("s_add_u32 s14, s14, s8")
A("s_sub_u32 s14, s14, 5")
stage_ln1(A, "s14")
tl(A, 7)
if RR.EXP.get("fd", 0):
    mode_check(A, tv=12)
    lw = A.newlabel('L_fdw')
    A("s_cmp_lg_u32 s10, 0")
    A(f"s_cbranch_scc1 {lw}")
    A("s_lshl_b32 s12, s9, 7")
    A(f"s_add_u32 s12, s12, {WS_KVPROG + 4096}")
    A("v_mov_b32 v12, s12")
    A(f"s_mov_b32 s14, {RR.EXP['fd']}")
    flag_wait(A, 12, 4, 14, 13, 12, sleep=32)
    A.label(lw)
    A("s_barrier")
AF.role_f(A, 3, 5)
A.label("L_exit")
A("s_endpgm")
A.label("L_role_r")
RR.role_r(A, "L_roles", 1, 1)
A.label("L_role_kv")
role_kv(A, "L_roles", 1, 1)
A.label("L_role_a")
A("s_mul_i32 s14, s9, 3")
A("s_add_u32 s14, s14, s8")
A("s_sub_u32 s14, s14, 2")
A("s_cmp_ge_u32 s14, 54")
A("s_cbranch_scc1 L_nomod")
stage_mod(A, "s14")
A.label("L_nomod")
tl(A, 7)
if RR.EXP.get("ad", 0):
    mode_check(A, tv=12)
    h_wait(A, 12)
AF.role_a(A, "L_roles", 3, 2, 1)
A.label('L_code_end')
A('s_endpgm')
body = A.finalize()
ref = open(f'cdna_kernels/{NAME}.s.ref').read()
hdr = ref[:ref.index('; Override launch geometry')]
kn = f'kernel={K} ' if 'dev/' in out else ''
hdr += f'; @launch {kn}grid=(256,1,1) block=(256,1,1) lds=163840\n.amdgcn_target "amdgcn-amd-amdhsa--gfx950"\n.text\n'
open(out, 'w').write(hdr + body + '.section .rodata,"a"\n' + kernel_desc(K, 512, 102, 256))
print("instructions", sum(1 for i in A.ins if i.states), "nops", A.nops)
```

```python
from asmlib import *

KA_X, KA_MEM0, KA_WQ, KA_WK, KA_WV, KA_WO, KA_SEG, KA_BX, KA_WG, KA_WU, KA_WD, KA_C, KA_WMOD, KA_OUT, KA_DBG, KA_WS = [8 * i for i in range(16)]

WS_MOD   = 0x0
WS_KVPROG = 0x10000
WS_RPROG = 0x18000
WS_H2FLAG = 0x1A000
WS_XF    = 0x1C000
WS_HINT  = 0x1D000
WS_STAMP = 0x20000
WS_H     = 0x100000
WS_H2    = 0x400000
WS_X1    = 0x700000
WS_KV    = 0x1000000
WS_KVM   = 0x3000000
WS_RP    = 0x3A00000
WS_RM    = 0x3B00000
WS_XP    = 0x4000000
RP_SLOT = 72 * 32 * 128
XP_SLOT = 32 * 32 * 2304
SEG_H = 36864

DBG_TICKET = 0
DBG_CLR = 8
DBG_KCLR = 41
DBG_RLD = 42
DBG_KLD = 43
DBG_MODCNT = 8
DBG_HCNT = 40
DBG_ERR = 40

S_WS = 4
S_DBG = 6
S_GRP, S_MEM, S_WAVE, S_FAST = 8, 9, 10, 11
SPIN_MAX = 100000

class Lds:
    def __init__(self, A):
        self.A = A; self.q = []
    def op(self, text, tag=None):
        self.A(text); self.q.append(tag)
    def wait(self, tag):
        if tag not in self.q: return
        i = len(self.q) - 1 - self.q[::-1].index(tag)
        n = len(self.q) - 1 - i
        self.A(f"s_waitcnt lgkmcnt({min(n, 15)})")
        if n > 15:
            self.q = self.q[len(self.q) - 15:]
        else:
            self.q = self.q[i + 1:]
    def waitall(self):
        self.A("s_waitcnt lgkmcnt(0)"); self.q = []

def add64(A, dst, src, off):
    A(f"s_add_u32 s{dst}, s{src}, {off}")
    A(f"s_addc_u32 s{dst+1}, s{src+1}, 0")

def arr_word(g): return (g & 3) + 32 * (g >> 2)
def preamble(A, nwg=256):
    A(f"s_cmp_ge_u32 s2, {nwg}")
    A("s_cbranch_scc1 L_exit")
    A(f"s_load_dwordx4 s[4:7], s[0:1], {KA_DBG}")
    if FORCE.get('cpf', 1):
        A("s_getpc_b64 s[14:15]")
        A.label("L_code0")
        A("s_lshr_b32 s12, s2, 3")
        A("s_lshl_b32 s12, s12, 12")
        A("v_lshl_add_u32 v1, v0, 4, s12")
        A("v_min_u32 v1, L_code_end-L_code0-4, v1")
        A("v_and_b32 v2, 3, v0")
        A("v_cmp_eq_u32 vcc, 0, v2")
        A("s_mov_b64 exec, vcc")
        A("global_load_dword v63, v1, s[14:15]")
        A("s_mov_b64 exec, -1")
    A("s_getreg_b32 s3, hwreg(HW_REG_XCC_ID, 0, 4)")
    A("v_lshrrev_b32 v1, 6, v0")
    A("v_readfirstlane_b32 s10, v1")
    A("s_and_b32 s8, s2, 7")
    A("s_lshr_b32 s9, s2, 3")
    A("v_and_b32 v1, 63, v0")
    A("s_waitcnt lgkmcnt(0)")
    A("s_mov_b64 s[12:13], s[4:5]")
    A("s_mov_b64 s[4:5], s[6:7]")
    A("s_mov_b64 s[6:7], s[12:13]")
    l2 = A.newlabel('L_pre')
    A("s_cmp_lg_u32 s10, 3")
    A(f"s_cbranch_scc1 {l2}")
    A("s_lshl_b32 s12, s2, 8")
    A(f"s_add_u32 s12, s12, {WS_KVPROG}")
    A("v_lshl_add_u32 v2, v1, 2, s12")
    A("v_mov_b32 v3, 0")
    A("global_store_dword v2, v3, s[4:5] sc1")
    A(f"s_bfe_u32 s12, s2, {0x10000 if FORCE.get('tm') else 0x10002}")
    A("s_xor_b32 s12, s12, 1")
    for r in range(4): A(f"v_mov_b32 v{4+r}, s12")
    A("s_lshl_b32 s12, s2, 10")
    A(f"s_add_u32 s12, s12, {WS_RP}")
    A("v_lshl_add_u32 v2, v1, 4, s12")
    A("global_store_dwordx4 v2, v[4:7], s[4:5] sc1")
    for r in range(4): A(f"v_mov_b32 v{8+r}, -1")
    l1 = A.newlabel('L_pre1')
    A("s_cmp_ge_u32 s2, 32")
    A(f"s_cbranch_scc1 {l1}")
    A("s_bfe_u32 s12, s2, 0x10001")
    A("s_xor_b32 s12, s12, 1")
    for r in range(4): A(f"v_mov_b32 v{12+r}, s12")
    A("v_add_u32 v3, 0x40000, v2")
    A("global_store_dwordx4 v3, v[12:15], s[4:5] sc1")
    A.label(l1)
    A(f"v_add_u32 v3, {WS_RM - WS_RP}, v2")
    A("global_store_dwordx4 v3, v[8:11], s[4:5] sc1")
    A("s_mul_i32 s12, s3, s3")
    A("s_lshl_b32 s12, s12, 10")
    A("s_add_u32 s12, s12, s3")
    A("s_lshl_b32 s12, s12, 8")
    A("s_add_u32 s12, s12, 1")
    A("v_mov_b32 v3, s12")
    A("s_and_b32 s12, s8, 3")
    A("s_lshr_b32 s13, s8, 2")
    A("s_lshl_b32 s13, s13, 5")
    A("s_add_u32 s12, s12, s13")
    A("s_lshl_b32 s12, s12, 2")
    A("v_mov_b32 v2, s12")
    A("s_waitcnt vmcnt(0)")
    A("s_mov_b64 exec, 1")
    A("global_atomic_add v2, v3, s[6:7] sc1")
    A("s_mov_b64 exec, -1")
    A.label(l2)

def mode_check(A, tv=1, ts=12, force_slow=False, pre=None):
    done = A.newlabel('L_mc_done'); loop = A.newlabel('L_mc')
    lane_const(A, tv, lambda t: arr_word(t & 7) * 4, tmp=tv + 1)
    A(f"s_mov_b32 s{ts}, 0")
    if pre is not None:
        A(f"v_mov_b32 v{tv+1}, v{pre}")
        A(f"v_and_b32 v{tv+2}, 0xff, v{tv+1}")
        A(f"v_cmp_ne_u32 vcc, 32, v{tv+2}")
        A(f"s_cbranch_vccnz {loop}")
        A(f"v_readfirstlane_b32 s54, v{pre+2}")
        A(f"s_branch {done}")
    A.label(loop)
    A(f"global_load_dword v{tv+1}, v{tv}, s[6:7] sc1")
    A(f"s_add_u32 s{ts}, s{ts}, 1")
    A(f"s_cmp_gt_u32 s{ts}, {SPIN_MAX}")
    A(f"s_cbranch_scc1 L_exit")
    A("s_waitcnt vmcnt(0)")
    A(f"v_and_b32 v{tv+2}, 0xff, v{tv+1}")
    A(f"v_cmp_ne_u32 vcc, 32, v{tv+2}")
    A(f"s_cbranch_vccz {done}")
    A(f"v_cmp_lt_u32 vcc, 32, v{tv+2}")
    A("s_cbranch_vccnz L_exit")
    A("s_sleep 24")
    A(f"s_branch {loop}")
    A.label(done)
    A(f"v_readlane_b32 s{ts}, v{tv+1}, s8")
    A(f"s_mul_i32 s{ts+1}, s3, s3")
    A(f"s_lshl_b32 s{ts+1}, s{ts+1}, 10")
    A(f"s_add_u32 s{ts+1}, s{ts+1}, s3")
    A(f"s_lshl_b32 s{ts+1}, s{ts+1}, 8")
    A(f"s_add_u32 s{ts+1}, s{ts+1}, 1")
    A(f"s_lshl_b32 s{ts+1}, s{ts+1}, 5")
    A(f"s_cmp_eq_u32 s{ts}, s{ts+1}")
    A(f"s_cselect_b32 s11, {0 if force_slow or FORCE['slow'] else 1}, 0")

FORCE = {'slow': False}
def counter_arrive(A, word, tv=1):
    l = A.newlabel('L_arr')
    A("s_cmp_lg_u32 s10, 0")
    A(f"s_cbranch_scc1 {l}")
    A(f"v_mov_b32 v{tv}, {word*4}")
    A(f"v_mov_b32 v{tv+1}, 1")
    A("s_mov_b64 exec, 1")
    A(f"global_atomic_add v{tv}, v{tv+1}, s[6:7] sc1")
    A("s_mov_b64 exec, -1")
    A.label(l)

def counter_wait(A, word, count, tv=1, ts=12, sleep=12, one=True):
    loop = A.newlabel('L_cw'); done = A.newlabel('L_cwd')
    if one:
        A("s_cmp_lg_u32 s10, 0")
        A(f"s_cbranch_scc1 {done}")
    A(f"v_mov_b32 v{tv}, {word*4}")
    A(f"s_mov_b32 s{ts}, 0")
    A.label(loop)
    A(f"global_load_dword v{tv+1}, v{tv}, s[6:7] sc1")
    A(f"s_add_u32 s{ts}, s{ts}, 1")
    A(f"s_cmp_gt_u32 s{ts}, {SPIN_MAX}")
    A(f"s_cbranch_scc1 L_exit")
    A("s_waitcnt vmcnt(0)")
    A(f"v_cmp_gt_u32 vcc, {count}, v{tv+1}")
    A(f"s_cbranch_vccz {done}")
    A(f"s_sleep {sleep}")
    A(f"s_branch {loop}")
    A.label(done)
    if one: A("s_barrier")

def lane_const(A, dst, f, src=0, nbits=8, tmp=None, mode=None, acc=False):
    N = 1 << nbits
    f0 = f(0)
    def check(m):
        d = [(f(1 << k) ^ f0) if m == 'xor' else (f(1 << k) - f0) for k in range(nbits)]
        for x in range(N):
            y = f0
            for k in range(nbits):
                if x >> k & 1: y = (y ^ d[k]) if m == 'xor' else y + d[k]
            if y != f(x): return None
        return d
    for m in ([mode] if mode else ['add', 'xor']):
        d = check(m)
        if d is not None: break
    assert d is not None, "function not affine"
    assert tmp is not None and tmp != dst and dst != src
    work = dst
    if acc and m == 'xor':
        work = tmp + 1
    if acc and m == 'add':
        if f0: A(f"v_add_u32 v{dst}, {f0 & 0xffffffff:#x}, v{dst}")
    else:
        A(f"v_mov_b32 v{work}, {f0 & 0xffffffff:#x}")
    k = 0
    while k < nbits:
        if d[k] == 0: k += 1; continue
        n = 1
        while k + n < nbits and d[k + n] == d[k] << n: n += 1
        c = d[k]
        if c > 0 and c & (c - 1) == 0:
            sh = c.bit_length() - 1
            A(f"v_bfe_u32 v{tmp}, v{src}, {k}, {n}")
            if m == 'add': A(f"v_lshl_add_u32 v{work}, v{tmp}, {sh}, v{work}")
            else:
                A(f"v_lshlrev_b32 v{tmp}, {sh}, v{tmp}")
                A(f"v_xor_b32 v{work}, v{work}, v{tmp}")
        elif m == 'add' and 0 < c < (1 << 24):
            A(f"v_bfe_u32 v{tmp}, v{src}, {k}, {n}")
            A(f"v_mul_u32_u24 v{tmp}, {c:#x}, v{tmp}")
            A(f"v_add_u32 v{work}, v{work}, v{tmp}")
        else:
            n = 1
            A(f"v_bfe_i32 v{tmp}, v{src}, {k}, 1")
            A(f"v_and_b32 v{tmp}, {c & 0xffffffff:#x}, v{tmp}")
            A(f"v_{'xor_b32' if m == 'xor' else 'add_u32'} v{work}, v{work}, v{tmp}")
        k += n
    if work != dst:
        A(f"v_add_u32 v{dst}, v{dst}, v{work}")


MF32 = "v_mfma_f32_16x16x32_bf16"
MF16 = "v_mfma_f32_16x16x16_bf16"

def ring_load(A, chunks, nslots=8, lbase=0, tmp=28, sb=26):
    A(f"s_lshl_b32 s{sb}, s10, 12")
    if lbase: A(f"s_add_u32 s{sb}, s{sb}, {lbase}")
    def issue(j):
        c = chunks[j]
        add64(A, 12, c['ptr'], c['off'])
        for ip in range(4):
            A(f"s_add_u32 m0, s{sb}, {(j % nslots) * 16384 + ip * 1024}")
            A(f"global_load_lds_dwordx4 v{c['vb']+ip}, s[12:13]")
    n = len(chunks); ah = nslots - 1
    for j in range(min(ah, n)): issue(j)
    for j in range(n):
        A(f"s_waitcnt vmcnt({4 * (min(n - 1, j + ah - 1) - j)})")
        A("s_barrier")
        if j + ah < n: issue(j + ah)
        regs = sorted({r[1] for r in chunks[j]['reads']})
        for k, ar in enumerate(regs): A(f"v_add_u32 v{tmp+k}, {(j % nslots) * 16384 + lbase}, v{ar}")
        for dst, ar, imm in chunks[j]['reads']:
            A(f"ds_read_b64_tr_b16 {u(dst, 2)}, v{tmp + regs.index(ar)} offset:{imm}")
        if 'post' in chunks[j]: chunks[j]['post']()
        A("s_waitcnt lgkmcnt(0)")
    A("s_barrier")

def swzA(row): return 2 * ((row & 3) | ((row >> 3) & 1) << 2)
def swzB(row): return 2 * (((row >> 1) & 1) | ((row >> 2) & 1) << 1)
def dense256_consts(A, vb, tra, stride, tmp):
    for ip in range(4):
        lane_const(A, vb + ip, lambda t: (16 * (t >> 6) + 4 * ip + ((t & 63) >> 4)) * stride, tmp=tmp)
        lane_const(A, vb + ip, lambda t: ((t & 15) ^ swzA(16 * (t >> 6) + 4 * ip + ((t & 63) >> 4))) * 16, tmp=tmp, acc=True)
    for b in range(2):
        def f(t):
            w, l = t >> 6, t & 63
            row = 8 * (l >> 4) + ((l >> 2) & 3); c = l & 3
            return row * 256 + (((4 * w + 2 * b + (c >> 1)) ^ swzA(row)) * 16) + (c & 1) * 8
        lane_const(A, tra + b, f, tmp=tmp)
def dense256_reads(dstf, tra, c):
    return [(dstf(2 * c + kl, b) + 2 * hq, tra + b, (32 * kl + 4 * hq) * 256) for kl in range(2) for b in range(2) for hq in range(2)]
def dense128_consts(A, vb, tra, tmp):
    for ip in range(4):
        lane_const(A, vb + ip, lambda t: (32 * (t >> 6) + 8 * ip + ((t & 63) >> 3)) * 1152, tmp=tmp)
        lane_const(A, vb + ip, lambda t: ((t & 7) ^ swzB(32 * (t >> 6) + 8 * ip + ((t & 63) >> 3))) * 16, tmp=tmp, acc=True)
    def f(t):
        w, l = t >> 6, t & 63
        row = 4 * (l >> 4) + ((l >> 2) & 3); c = l & 3
        return row * 128 + (((2 * w + (c >> 1)) ^ swzB(row)) * 16) + (c & 1) * 8
    lane_const(A, tra, f, tmp=tmp)
def dense128_reads(dstf, tra, t):
    return [(dstf(t, j) + 2 * hq, tra, (32 * j + 16 * hq) * 128) for j in range(4) for hq in range(2)]

def seg_dma(A, vT16, src, ldsreg, n=9):
    A(f"s_mov_b64 s[12:13], s[{src}:{src+1}]")
    for j in range(n):
        A(f"s_add_u32 m0, s{ldsreg}, {j * 4096}")
        A(f"global_load_lds_dwordx4 v{vT16}, s[12:13]")
        if j < n - 1: add64(A, 12, 12, 4096)

def flag_wait(A, addr_v, base, val_s, tv, ts, sleep=1):
    loop = A.newlabel('L_fw'); done = A.newlabel('L_fwd')
    A(f"s_mov_b32 s{ts}, 0")
    A.label(loop)
    A(f"global_load_dword v{tv}, v{addr_v}, s[{base}:{base+1}] sc1")
    A(f"s_add_u32 s{ts}, s{ts}, 1")
    A(f"s_cmp_gt_u32 s{ts}, {SPIN_MAX}")
    A("s_cbranch_scc1 L_exit")
    A("s_waitcnt vmcnt(0)")
    A(f"v_cmp_gt_u32 vcc, s{val_s}, v{tv}")
    A(f"s_cbranch_vccz {done}")
    if sleep: A(f"s_sleep {sleep}")
    A(f"s_branch {loop}")
    A.label(done)

def xsum(A, r, t, op="v_add_f32", bits=(0, 1, 2, 3, 4, 5)):
    for b in bits:
        if b == 0: A(f"{op}_dpp v{r}, v{r}, v{r} quad_perm:[1,0,3,2] row_mask:0xf bank_mask:0xf")
        elif b == 1: A(f"{op}_dpp v{r}, v{r}, v{r} quad_perm:[2,3,0,1] row_mask:0xf bank_mask:0xf")
        elif b == 2: A(f"{op}_dpp v{r}, v{r}, v{r} row_ror:4 row_mask:0xf bank_mask:0xf")
        elif b == 3: A(f"{op}_dpp v{r}, v{r}, v{r} row_ror:8 row_mask:0xf bank_mask:0xf")
        else:
            A(f"v_mov_b32 v{t}, v{r}")
            A(f"v_permlane{16 if b == 4 else 32}_swap_b32 v{r}, v{t}")
            A(f"{op} v{r}, v{r}, v{t}")

def f32bits(x):
    import struct
    return struct.unpack('<I', struct.pack('<f', x))[0]
def rnd1(A, r, t=None):
    A(f"v_cvt_pk_bf16_f32 v{r}, v{r}, v{r}")
    A(f"v_lshlrev_b32 v{r}, 16, v{r}")
def rnd2(A, r):
    A(f"v_cvt_pk_bf16_f32 v{r+1}, v{r}, v{r+1}")
    A(f"v_lshlrev_b32 v{r}, 16, v{r+1}")
    A(f"v_and_b32 v{r+1}, 0xffff0000, v{r+1}")

TL = {'on': False}
DBGMAP = {(0, 1): 4, (0, 3): 5, (0, 4): 6, (1, 1): 7, (1, 2): 9, (2, 1): 10, (2, 4): 11, (5, 7): 12, (5, 1): 13, (5, 4): 14, (2, 7): 15}
def tl(A, slot, tv=60):
    if TL.get('dbg'):
        if slot == 0:
            A("s_memrealtime s[98:99]")
            A("s_waitcnt lgkmcnt(0)")
            return
        for (g, sl), wd in DBGMAP.items():
            if sl != slot: continue
            l = A.newlabel('L_tl')
            A(f"s_cmp_lg_u32 s8, {g}")
            A(f"s_cbranch_scc1 {l}")
            A("s_memrealtime s[100:101]")
            A("s_lshl_b32 s12, s9, 7")
            A(f"s_add_u32 s12, s12, {WS_STAMP + 0x40000 + wd * 4096}")
            A(f"v_mov_b32 v{tv}, s12")
            A("s_waitcnt lgkmcnt(0)")
            A("s_sub_u32 s100, s100, s98")
            A(f"v_mov_b32 v{tv+1}, s100")
            A("s_cmp_lg_u32 s10, 0")
            A(f"s_cbranch_scc1 {l}")
            A("s_mov_b64 exec, 1")
            A(f"global_store_dword v{tv}, v{tv+1}, s[4:5] sc1")
            A("s_mov_b64 exec, -1")
            if (g, sl) == (5, 4):
                A("s_cmp_lg_u32 s9, 0")
                A(f"s_cbranch_scc1 {l}")
                A("s_waitcnt vmcnt(0)")
                A("v_mbcnt_lo_u32_b32 v8, -1, 0")
                A("v_min_u32 v8, 31, v8")
                A("v_lshlrev_b32 v8, 7, v8")
                for wd2 in DBGMAP.values():
                    A(f"v_add_u32 v9, {WS_STAMP + 0x40000 + wd2 * 4096}, v8")
                    A("global_load_dword v10, v9, s[4:5] sc1")
                    A("s_waitcnt vmcnt(0)")
                    if wd2 != 14: xsum(A, 10, 11, op="v_max_u32")
                    A(f"v_mov_b32 v9, {wd2 * 4}")
                    A("s_mov_b64 exec, 1")
                    A("global_store_dword v9, v10, s[6:7] sc1")
                    A("s_mov_b64 exec, -1")
            A.label(l)
        return
    if not TL['on']: return
    A("s_memrealtime s[100:101]")
    A("s_lshl_b32 s12, s8, 5")
    A("s_add_u32 s12, s12, s9")
    A("s_lshl_b32 s12, s12, 6")
    A(f"s_add_u32 s12, s12, {WS_STAMP + 0x30000 + slot * 4}")
    A(f"v_mov_b32 v{tv}, s12")
    A("s_waitcnt lgkmcnt(0)")
    A(f"v_mov_b32 v{tv+1}, s100")
    A(f"global_store_dword v{tv}, v{tv+1}, s[4:5]")
    A("s_waitcnt vmcnt(0)")

def kvm_clear(A, idx_s):
    for r in range(4): A(f"v_mov_b32 v{8+r}, -1")
    A(f"s_mul_i32 s12, {idx_s}, {88 * 1024}")
    A(f"s_add_u32 s12, s12, {WS_KVM}")
    add64(A, 12, S_WS, "s12")
    A("v_lshlrev_b32 v3, 4, v0")
    for i in range(22):
        A("global_store_dwordx4 v3, v[8:11], s[12:13] sc1")
        if i < 21: add64(A, 12, 12, 4096)
    A("s_waitcnt vmcnt(0)")
    A("s_barrier")
    counter_arrive(A, DBG_KCLR, tv=4)

def backoff(A, cnt_s, after=2, sleep=10):
    l = A.newlabel('L_bo')
    A(f"s_cmp_le_u32 s{cnt_s}, {after}")
    A(f"s_cbranch_scc1 {l}")
    A(f"s_sleep {sleep}")
    A.label(l)

def h_wait(A, tv, l4=None):
    done = A.newlabel('L_hw'); loop = A.newlabel('L_hwl')
    A("s_cmp_lg_u32 s10, 0")
    A(f"s_cbranch_scc1 {done}")
    A(f"v_mbcnt_lo_u32_b32 v{tv}, -1, 0")
    A(f"v_mbcnt_hi_u32_b32 v{tv}, -1, v{tv}")
    A(f"v_lshlrev_b32 v{tv}, 3, v{tv}")
    A(f"v_add_u32 v{tv}, {WS_HINT}, v{tv}")
    A("s_mov_b32 s12, 0")
    A.label(loop)
    A(f"global_load_dwordx2 {v(tv + 2, 2)}, v{tv}, s[4:5] sc1")
    A("s_add_u32 s12, s12, 1")
    A(f"s_cmp_gt_u32 s12, {SPIN_MAX}")
    A("s_cbranch_scc1 L_exit")
    A("s_waitcnt vmcnt(0)")
    A(f"v_and_b32 v{tv+2}, v{tv+2}, v{tv+3}")
    A(f"v_cmp_eq_u32 vcc, 0, v{tv+2}")
    A(f"s_cbranch_vccz {done}")
    A("s_sleep 6")
    A(f"s_branch {loop}")
    A.label(done)
    A("s_barrier")
```

```python
from common import *
import math, struct

L_MEM, L_KX, L_VX = 0, 9216, 17408
L_QL, L_KL, L_OL = 25600, 27904, 30208
L_JUNK = 32256
L_WK = 32768
QSTR = 288
KL0 = L_KL - L_QL
T16, WKB, L16, MEMR, QR, QKW, OW, IDX = range(0, 8)
TMPC = WKB
def WQ(ks, b): return 256 + (ks * 2 + b) * 8
def WV(ks, b):
    i = ks * 2 + b
    return 400 + i * 8 if i < 14 else 64 + (i - 14) * 8
def WO(t, k2): return 96 + (t * 2 + k2) * 8
def WK8(b): return 240 + b * 8
ACCV0, ACCQ, ACCK, MRING, WRING, ACCV1 = 8, 12, 20, 28, 40, 40
SMF = "v_smfmac_f32_16x16x64_bf16"
MF32 = "v_mfma_f32_16x16x32_bf16"
MF16 = "v_mfma_f32_16x16x16_bf16"
IDQ = "quad_perm:[0,1,2,3]"
ROR8 = "row_ror:8 row_mask:0xf bank_mask:0xf"
def FSW(i): return 2 * (0, 2, 3, 1)[i >> 1] + (i & 1)
def img(i, pos): return i * 128 + ((pos ^ FSW(i)) * 16)
def mimg(i, pos): return ((pos >> 1) * 16 + 2 * i + (pos & 1)) * 16
PI = [0, 1, 4, 5, 2, 3, 6, 7]
EXP = {}
PF = 1
ORD = [8, 0, 1, 2, 3, 4, 5, 6, 7]
ORD0 = ORD

WORD = [8, 0, 1, 2, 3, 4, 5, 6, 7]
def swap_tab():
    nsw = EXP.get('nsw', 0)
    return list(zip([4, 7, 10, 13, 15, 1][:nsw], [3, 7, 10, 13, 16, 0][:nsw]))
def wo_reg(k): return WO(WORD[k // 2], k & 1)
def wk_off(n): return L_WK + (n >> 1) * 16384 + (n & 1) * 8192

def r_swap(A):
    for n, k in swap_tab():
        A(f"v_lshlrev_b32 v12, 4, v0")
        A(f"v_add_u32 v12, {wk_off(n)}, v12")
        A("ds_read_b128 v[16:19], v12")
        A("ds_read_b128 v[20:23], v12 offset:4096")
        A("s_waitcnt lgkmcnt(0)")
        r = wo_reg(k)
        A(f"ds_write_b128 v12, {v(r, 4)}")
        A(f"ds_write_b128 v12, {v(r + 4, 4)} offset:4096")
        A("s_waitcnt lgkmcnt(0)")
        for q in range(0, 8, 2): A(f"v_mov_b64 {v(r + q, 2)}, {v(16 + q, 2)}")

def r_setup(A):
    A(f"s_load_dwordx4 s[16:19], s[0:1], {KA_WQ}")
    A(f"s_load_dwordx4 s[20:23], s[0:1], {KA_WV}")
    A(f"s_load_dwordx2 s[24:25], s[0:1], {KA_MEM0}")
    def swz(lr): return 2 * ((lr & 1) | ((lr >> 3) & 1) << 1 | ((lr >> 5) & 1) << 2)
    def swz2(row): return 2 * (((row >> 2) & 1) | ((row >> 4) & 1) << 1)
    for ip in range(4):
        def fq(t, last=False):
            w, l = t >> 6, t & 63
            lr = 16 * w + 4 * ip + (l >> 4); e, pos = lr >> 3, lr & 7
            d = 512 + 8 * pos + e if last else 64 * (e & 1) + 4 * pos + (e >> 1)
            return d * 8192 + (((l & 15) ^ swz(lr)) * 16)
        lane_const(A, 12 + ip, fq, tmp=1)
        lane_const(A, 16 + ip, lambda t: fq(t, True), tmp=1)
        lane_const(A, 20 + ip, lambda t: (32 * (t >> 6) + 8 * ip + ((t & 63) >> 3)) * 1152, tmp=1)
        lane_const(A, 20 + ip, lambda t: ((t & 7) ^ swz2(32 * (t >> 6) + 8 * ip + ((t & 63) >> 3))) * 16, tmp=1, acc=True)
    def ftr(t, b):
        w, l = t >> 6, t & 63
        gb, half, bp, c = l >> 4, (l >> 3) & 1, (l >> 2) & 1, l & 3
        lr = 32 * (gb & 1) + 8 * bp + 2 * (gb >> 1) + half
        return L_WK + lr * 256 + (((4 * w + 2 * b + (c >> 1)) ^ swz(lr)) * 16) + (c & 1) * 8
    lane_const(A, 24, lambda t: ftr(t, 0), tmp=1)
    lane_const(A, 25, lambda t: ftr(t, 1), tmp=1)
    def fto(t):
        w, l = t >> 6, t & 63
        gb, half, bp, c = l >> 4, (l >> 3) & 1, (l >> 2) & 1, l & 3
        row = 16 * (gb & 1) + 8 * (gb >> 1) + 4 * half + bp
        return L_WK + row * 128 + (((2 * w + (c >> 1)) ^ swz2(row)) * 16) + (c & 1) * 8
    lane_const(A, 26, fto, tmp=1)
    lane_const(A, 27, lambda t: L_WK + t * 16, tmp=1)
    A("s_waitcnt lgkmcnt(0)")
    A("s_lshl_b32 s12, s9, 8")
    for p in (16, 18, 20):
        add64(A, p, p, "s12")
    A("s_mul_i32 s12, s9, 147456")
    add64(A, 22, 22, "s12")
    A("s_lshl_b32 s26, s10, 12")
    A(f"s_add_u32 s26, s26, {L_WK}")
    chunks = [('q', k) for k in range(9)] + [('v', k) for k in range(9)] + [('o', t) for t in range(9)] + [('k', 7)] + [('k', ORD[j % 8]) for j in range(28, 36)]
    ptr = {'q': 16, 'k': 18, 'v': 20, 'o': 22}
    def issue(j):
        m, k = chunks[j]
        slot = j % 8
        if m == 'o': off, vb = k * 128, 20
        elif k < 8: off, vb = (128 * (k >> 1) + 32 * (k & 1)) * 8192, 12
        else: off, vb = 0, 16
        add64(A, 12, ptr[m], off)
        for ip in range(4):
            A(f"s_add_u32 m0, s26, {slot * 16384 + ip * 1024}")
            A(f"global_load_lds_dwordx4 v{vb+ip}, s[12:13]")
    def fd(m, t): return 256 * m + t if m < 2 else 512 + (t & 63)
    def fa(m, t):
        d = fd(m, t)
        if d < 512: ks, e, pos = 2 * (d >> 7) + ((d >> 5) & 1), 2 * (d & 3) + ((d >> 6) & 1), (d >> 2) & 7
        else: ks, e, pos = 8, d & 7, (d >> 3) & 7
        return ks * 1024 + mimg(0, pos) + e * 2
    def mem0_issue():
        for m in range(3):
            lane_const(A, 4 + m, lambda t: 2 * fd(m, t), tmp=1)
            lane_const(A, 8 + m, lambda t: fa(m, t), tmp=1)
            for i in range(8):
                A(f"v_add_u32 v2, {i * 1152}, v{4+m}")
                A(f"global_load_ushort v{32+8*m+i}, v2, s[24:25]")
    def mem0_write():
        for m in range(3):
            for i in range(8):
                A(f"ds_write_b16 v{8+m}, v{32+8*m+i} offset:{L_MEM + i * 32}")
    def status0():
        lane_const(A, 2, lambda t: arr_word(t & 7) * 4, tmp=1)
        A("global_load_dword v4, v2, s[6:7] sc1")
    def status_issue():
        A("s_lshl_b32 s12, s9, 7")
        A(f"s_add_u32 s12, s12, {WS_KVPROG + 4096}")
        A("v_mov_b32 v2, s12")
        A("global_load_dwordx4 v[8:11], v2, s[4:5] sc1")
    for j in range(7): issue(j)
    n = len(chunks)
    for j in range(n + 1):
        if j < n:
            ahead = min(n - 1, j + 6) - j
            extra = 24 if 1 <= j <= 7 else (1 if 33 <= j <= 35 else (1 if 25 <= j <= 31 else 0))
            A(f"s_waitcnt vmcnt({4 * ahead + extra})")
        A("s_barrier")
        if j + 7 < n: issue(j + 7)
        if j == 0: mem0_issue()
        if j == 9: mem0_write()
        if j == 24: status0()
        if j == 32: status_issue()
        if j >= 29:
            pk = (j - 1) % 8; tb = 32 + ((j - 1) & 1) * 16
            A(f"v_add_u32 v28, {pk * 16384}, v27")
            for q in range(4):
                A(f"ds_write_b128 v28, {v(tb + 4 * q, 4)} offset:{q * 4096}")
        if j < n:
            m, k = chunks[j]; slot = j % 8
            if m == 'o':
                A(f"v_add_u32 v28, {slot * 16384}, v26")
                for k2 in range(2):
                    for jq in range(4):
                        off = (64 * k2 + 32 * (jq >> 1) + 2 * (jq & 1)) * 128
                        A(f"ds_read_b64_tr_b16 {u(WO(k, k2) + 2 * jq, 2)}, v28 offset:{off}")
            else:
                A(f"v_add_u32 v28, {slot * 16384}, v24")
                A(f"v_add_u32 v29, {slot * 16384}, v25")
                for b in range(2):
                    if m == 'q': dst = WQ(k, b)
                    elif m == 'v': dst = WV(k, b)
                    elif j == 27: dst = WK8(b)
                    else: dst = 32 + (j & 1) * 16 + b * 8
                    for jq in range(4):
                        off = (16 * (jq & 1) + 4 * (jq >> 1)) * 256
                        A(f"ds_read_b64_tr_b16 {u(dst + 2 * jq, 2)}, v{28+b} offset:{off}")
        A("s_waitcnt lgkmcnt(0)")

def r_consts(A):
    lane_const(A, L16, lambda t: (t & 63) * 16, tmp=12)
    lane_const(A, MEMR, lambda t: img((t & 15) >> 1, 2 * ((t >> 4) & 3) + (t & 1)), tmp=12)
    lane_const(A, QR, lambda t: L_QL + (t & 7) * QSTR + ((t >> 4) & 3) * 16, tmp=12)
    lane_const(A, QKW, lambda t: L_QL + (0, 4, 2, 6)[(t >> 4) & 3] * QSTR + (t >> 6) * 64 + (t & 15) * 4, tmp=12)
    lane_const(A, OW, lambda t: (t >> 7) * 1024 + img(PI[t & 7], 4 * ((t >> 6) & 1) + ((t >> 4) & 3)), tmp=12)
    A(f"v_add_u32 v{OW}, {L_OL}, v{OW}")
    lane_const(A, 14, lambda t: L_JUNK + (((t >> 4) & 3) * 8 + (t & 7)) * 16, tmp=12)
    A("v_and_b32 v12, 8, v0")
    A("v_cmp_ne_u32 vcc, 0, v12")
    A(f"v_cndmask_b32 v{OW}, v{OW}, v14, vcc")
    lane_const(A, IDX, lambda t: 0xEEEE if t & 1 else 0x4444, tmp=12)
    A(f"v_lshlrev_b32 v{T16}, 4, v0")
    A("s_and_b32 s12, s10, 1")
    A("s_lshl_b32 s12, s12, 5")
    A("s_add_u32 s37, s12, s9")
    A("v_mov_b32 v14, s37")
    lane_const(A, 15, lambda t: ms_fn(1, t, 0), src=14, nbits=6, tmp=12)
    lane_const(A, 16, lambda t: ms_fn(2, t, 0), src=14, nbits=5, tmp=12)
    if EXP.get('tm', 1): lane_const(A, 17, lambda t: WS_RP + t * 4096, src=14, nbits=6, tmp=12)
    else: lane_const(A, 17, lambda t: WS_RP + (t >> 2) * 16384 + (t & 3) * 128 + 4096, src=14, nbits=6, tmp=12)
    lane_const(A, 18, lambda t: WS_RP + 0x40000 + (t >> 3) * 8192 + (t & 7) * 32, src=14, nbits=5, tmp=12)
    A("v_readfirstlane_b32 s41, v15")
    A("v_readfirstlane_b32 s12, v16")
    A("v_readfirstlane_b32 s13, v17")
    A("v_readfirstlane_b32 s14, v18")
    A("s_cmp_lt_u32 s10, 2")
    A("s_cselect_b32 s41, s41, s12")
    A("s_cselect_b32 s13, s13, s14")
    if EXP.get('rep', 0):
        A("s_cselect_b32 s44, -1, 0x03030303")
        A("s_mov_b32 s45, s44")
        A("s_and_b32 s36, s9, 3")
        A("s_lshl_b32 s36, s36, 15")
        A("s_add_u32 s36, s36, 3072")
    else:
        A("s_mov_b32 s44, 0x00030003")
        A("s_cselect_b32 s44, 0x00FF00FF, s44")
        A("s_mov_b32 s45, 0")
        A("s_movk_i32 s36, 3072")
    add64(A, 28, S_WS, "s13")
    add64(A, 16, 28, 8192)
    A("s_lshl_b32 s12, s10, 5")
    A("s_add_u32 s12, s12, s9")
    A("s_lshl_b32 s13, s12, 9")
    if EXP.get('tm', 1):
        A("s_lshl_b32 s13, s10, 7")
        A("s_add_u32 s13, s13, s9")
        A("s_lshl_b32 s13, s13, 7")
    A(f"s_add_u32 s13, s13, {WS_RP}")
    add64(A, 26, S_WS, "s13")
    for p in range(1, 4): add64(A, 88 + 2 * p, 26, p * 65536)
    A("s_lshl_b32 s13, s12, 8")
    A(f"s_add_u32 s13, s13, {WS_RP + 0x40000}")
    add64(A, 42, S_WS, "s13")
    add64(A, 30, S_WS, WS_RM)
    cc = struct.unpack('<I', struct.pack('<f', (128 ** -0.5) * math.log2(math.e)))[0]
    A(f"s_mov_b32 s46, {cc:#x}")
    A("s_bfe_u32 s40, s9, 0x10003")
    A("s_lshl_b32 s12, s9, 14")
    A(f"s_add_u32 s12, s12, {WS_KV}")
    add64(A, 88, S_WS, "s12")
    A("s_lshl_b32 s13, s10, 11")
    add64(A, 32, 88, "s13")
    add64(A, 86, 32, 8192)
    A("s_lshl_b32 s12, s9, 12")
    A(f"s_add_u32 s12, s12, {WS_KVM}")
    add64(A, 50, S_WS, "s12")
    A("s_lshl_b32 s12, s9, 7")
    A(f"s_add_u32 s12, s12, {WS_KVPROG + 4096}")
    add64(A, 18, S_WS, "s12")
    A("s_lshl_b32 s12, s9, 2")
    A(f"s_add_u32 s12, s12, {WS_RPROG}")
    add64(A, 52, S_WS, "s12")
    A("s_lshl_b32 s12, s9, 7")
    A(f"s_add_u32 s12, s12, {WS_RPROG}")
    add64(A, 22, S_WS, "s12")
    A("s_lshl_b32 s62, s10, 11")
    A(f"s_add_u32 s62, s62, {L_KX}")
    A("s_lshl_b32 s63, s10, 10")
    A(f"s_add_u32 s57, s63, {L_MEM}")
    A(f"s_add_u32 s63, s63, {L_VX}")

def ms_fn(kind, t, l):
    q8, gp = l & 7, (l >> 4) & 1
    rp = 0
    if kind == 1:
        w, g = (t >> 2) & 3, t & 3
        return rp + (t >> 3) * 1024 + mimg(2 * g + gp, 4 * (w & 1) + (q8 >> 1)) + (q8 & 1) * 8
    w, g, nh = t >> 3, (t >> 1) & 3, t & 1
    return rp + 8192 + mimg(2 * g + gp, 2 * w + nh) + (l & 1) * 8

def ms_calc(A, kind, dst, tmp):
    lane_const(A, dst, lambda x: ms_fn(kind, 0, x >> 4) ^ ms_fn(kind, 0, 0), src=L16, nbits=10, tmp=tmp, mode='xor')
    A(f"v_xor_b32 v{dst}, s41, v{dst}")

def kv_wait(A, seg_sgpr, nkv, kvg0, tv, xit='L_exit'):
    if nkv == 0: return
    ok = A.newlabel('L_kvok'); loop = A.newlabel('L_kvp')
    A(f"s_cmp_lt_u32 {seg_sgpr}, s54")
    A(f"s_cbranch_scc1 {ok}")
    A("s_mov_b32 s55, 0")
    A(f"v_bfe_u32 v{tv}, v{L16}, 2, 4")
    A.label(loop)
    A(f"global_load_dword v{tv+1}, v{tv}, s[18:19] sc1")
    A("s_add_u32 s55, s55, 1")
    A(f"s_cmp_gt_u32 s55, {SPIN_MAX}")
    A(f"s_cbranch_scc1 {xit}")
    A("s_waitcnt vmcnt(0)")
    xsum(A, tv + 1, tv, op="v_min_u32", bits=(0, 1))
    A(f"v_readfirstlane_b32 s54, v{tv+1}")
    A(f"s_cmp_lt_u32 {seg_sgpr}, s54")
    A(f"s_cbranch_scc1 {ok}")
    A("s_sleep 4")
    A(f"s_branch {loop}")
    A.label(ok)

def r_pro(A, nkv, kvg0):
    TR = EXP.get('trace', [])
    A("s_mov_b32 s24, 0")
    A("s_mov_b32 s34, 9216")
    A("s_mov_b32 s35, 0")
    if TR or EXP.get('rt'):
        for i in range(22 if TR else 16): A(f"s_mov_b32 s{64+i}, 0")
    tl(A, 2)
    if EXP.get('warm', 1):
        A("s_mul_i32 s12, s9, 9216")
        A(f"s_add_u32 s12, s12, {WS_RP}")
        A(f"v_lshl_add_u32 v12, v{T16}, 2, s12")
        A("s_lshl_b32 s12, s9, 10")
        A(f"s_add_u32 s12, s12, {WS_RM}")
        A(f"v_add_u32 v13, s12, v{L16}")
        A(f"s_mov_b32 m0, {L_JUNK}")
        A("global_load_lds_dword v12, s[4:5] sc1")
        A("global_load_lds_dword v13, s[4:5] sc1")
    A("s_mov_b32 s25, 0")
    kv_wait(A, "s25", nkv, kvg0, 12)
    tl(A, 3)
    if EXP.get('rt'):
        A("s_memrealtime s[80:81]")
        A("s_memtime s[96:97]")
    add64(A, 38, S_WS, WS_STAMP + 0x8000)
    A("s_mov_b64 s[58:59], s[88:89]")

def r_main(A, fast, wv, nkv, kvg0, nsteps=64):
    st = "" if fast else "sc1"
    LF = "sc1"
    sfx = ("f" if fast else "s") + str(wv)
    XIT = f"L_rx_{sfx}"
    D = Lds(A)
    TR = EXP.get('trace', [])
    def tr(name):
        if name in TR:
            i = TR.index(name)
            A(f"s_memtime s[{64+2*i}:{65+2*i}]")
    ORD = [ORD0[(2 * wv + p) % 8] for p in range(8)] + [7]
    def wk_off(n): return L_WK + ((2 * wv + (n >> 1)) % 8) * 16384 + (n & 1) * 8192
    OWN = EXP.get('own', 2)
    STG = ORD[:2] + ([7] if wv == 0 else [])
    if OWN == 3:
        if wv == 3: ORD = ORD[:2] + [7] + ORD[2:8]
        LDL = ORD[:3]; STG = ORD[:3] if wv == 3 else ORD[:2]
    else: LDL = STG
    WT = EXP.get('wt', 1)
    P3 = EXP.get('p3', 1)
    def lreg(j): return ACCV0 if (P3 and j == 2) else MRING + 4 * j
    SW = {}; SWO = {}
    LW = [n for n in range(16) if n not in SW]
    cur = [0]
    def lds_frag(n, r, tag, areg=WKB):
        off = wk_off(n); base = (off // 65536) * 65536
        if base and cur[0] != base:
            A(f"v_add_u32 v{areg}, {base:#x}, v{T16}")
            cur[0] = base
        ar = T16 if base == 0 else areg
        D.op(f"ds_read_b128 {v(r, 4)}, v{ar} offset:{off - base}")
        D.op(f"ds_read_b128 {v(r + 4, 4)}, v{ar} offset:{off - base + 4096}", tag)
    RSH = (3 - (len(LW) - 1) % 3) % 3
    def wslot(i): return WRING + ((i + RSH) % 3) * 8
    def wk_read(i):
        cur[0] = 0
        lds_frag(LW[i], wslot(i), ('wk', i))
    def spill_read(r):
        D.op(f"ds_read_b32 v{r}, v{QKW} offset:{KL0}")
        D.op(f"ds_read_b32 v{r+1}, v{QKW} offset:{KL0 + QSTR}")
        D.op(f"ds_read2_b32 {v(r + 2, 2)}, v{QKW} offset0:0 offset1:{QSTR // 4}", 'spill')
    def zero_qk(lo=ACCQ, hi=ACCQ + 16):
        for r in range(lo, hi, 2): A(f"v_mov_b64 {v(r, 2)}, 0")
    for n in sorted(range(3), key=wslot): wk_read(n)
    def mem_read(ks, r, tag):
        D.op(f"ds_read_b128 {v(r, 4)}, v{L16} offset:{L_MEM + ks * 1024}", tag)
    def mslot(p): return MRING + ((0, 1, 0, 1, 2, 0, 1, 2, 0)[p] if P3 else p % 3) * 4
    for p, ks in enumerate(LDL): mem_read(ks, lreg(p), None)
    if P3 and wv: zero_qk(ACCV0, ACCV0 + 4)
    zero_qk()
    D.waitall()
    top = f"L_rtop_{sfx}"
    A.label(top)
    tr('b1')
    D.q = ['pre'] + ([] if WT else ['mw'] * len(STG))
    A("s_mov_b32 m0, s62")
    D.wait('pre')
    KE = EXP.get('kearly', 0)
    loc = {('m', 8): mslot(8), ('m', 7): mslot(7), ('m', 6): mslot(6)}
    NSL = 3 if (nkv and wv == 3) else 2
    def sread(tag, r):
        loc[tag] = r
        if tag[0] == 'q': D.op(f"ds_read_b128 {v(r, 4)}, v{QR} offset:{tag[1] * 64}", tag)
        elif tag[0] == 'km': D.op(f"ds_read_b128 {v(r, 4)}, v{QR} offset:{KL0 + tag[1] * 64}", tag)
        elif tag[0] == 'kx': D.op(f"ds_read_b128 {v(r, 4)}, v{L16} offset:{L_KX + (tag[1] * 4 + tag[2]) * 1024}", tag)
        elif tag[0] == 'm': mem_read(ORD[tag[1]], r, tag)
        elif tag[0] == 'vx':
            if tag[1] == 0: A(f"s_waitcnt vmcnt({NSL})")
            D.op(f"ds_read_b128 {v(r, 4)}, v{T16} offset:{L_VX + tag[1] * 4096}", tag)
    def smf(acc, ar, w): A(f"{SMF} {v(acc, 4)}, {v(ar, 4)}, {u(w, 8)}, v{IDX}")
    V0S = 2 if KE else 3
    BP = EXP.get('bp', 5)
    pos = (1, 2, 4, 5, 7, 9, 10, 13) if KE else (BP + 1, BP + 2, BP + 3, BP + 4, 11, 13, 14, 18)
    ext = {pos[0]: f"global_load_lds_dwordx4 v{L16}, s[32:33]",
           pos[1]: f"global_load_lds_dwordx4 v{L16}, s[32:33] offset:1024\ns_mov_b32 m0, s63",
           pos[2]: f"global_load_lds_dwordx4 v{L16}, s[86:87]\ns_add_u32 m0, s63, 3072",
           pos[3]: f"global_load_lds_dwordx4 v{L16}, s[86:87] offset:1024\ns_mov_b32 m0, {L_JUNK}",
           pos[4]: f"global_store_dwordx4 v{T16}, {v(ACCV0, 4)}, s[38:39] sc1",
           pos[5]: f"v_lshlrev_b32 v{ACCV0}, 2, v{T16}\nv_mov_b64 {v(ACCV0 + 2, 2)}, 0",
           pos[6]: f"global_load_lds_dword v{ACCV0}, s[58:59]\nv_mov_b64 {v(ACCV0, 2)}, 0\ns_mov_b32 m0, {L_QL + 256}"}
    if P3:
        V0S = 1 if wv == 0 else 0
        BP = EXP.get('bp3', 6) - V0S
        r2 = MRING + 8
        pos = tuple(BP + x for x in (1, 2, 3, 4, 6, 99, 8, 12))
        ext = {pos[0]: f"global_load_lds_dwordx4 v{L16}, s[32:33]",
               pos[1]: f"global_load_lds_dwordx4 v{L16}, s[32:33] offset:1024\ns_mov_b32 m0, s63",
               pos[2]: f"global_load_lds_dwordx4 v{L16}, s[86:87]\ns_add_u32 m0, s63, 3072",
               pos[3]: f"global_load_lds_dwordx4 v{L16}, s[86:87] offset:1024\ns_mov_b32 m0, {L_JUNK}",
               pos[4]: f"global_store_dwordx4 v{T16}, {v(r2, 4)}, s[38:39] sc1",
               pos[6]: f"v_lshlrev_b32 v{r2}, 2, v{T16}\nglobal_load_lds_dword v{r2}, s[58:59]\ns_mov_b32 m0, {L_QL + 256}"}
        if wv == 0: ext[4] = f"v_mov_b64 {v(ACCV0, 2)}, 0\nv_mov_b64 {v(ACCV0 + 2, 2)}, 0"
    if nkv and wv == 3: ext[pos[7]] = f"s_mov_b64 exec, 1\nglobal_load_lds_dwordx4 v{L16}, s[18:19] sc1\ns_mov_b64 exec, -1"
    sb_ = Asm()
    sb_("s_lshl_b32 s13, s24, 17")
    add64(sb_, 38, 50, "s13")
    sb_("s_add_u32 s25, s24, 2")
    sb_(f"s_min_u32 s25, s25, {nsteps - 1}")
    sb_("s_lshl_b32 s13, s25, 19")
    add64(sb_, 58, 88, "s13")
    add64(sb_, 86, 86, 1 << 19)
    add64(sb_, 32, 32, 1 << 19)
    add64(sb_, 14, 30, "s34")
    add64(sb_, 60, 30, "s35")
    add64(sb_, 20, 14, 4096)
    if wv == 0: add64(sb_, 16, 14, 8192)
    sb_("s_and_b32 s12, s24, 1")
    sb_("s_xor_b32 s13, s12, 1")
    sb_("s_xor_b32 s47, s12, s40")
    sb_("s_add_u32 s24, s24, 1")
    sb_("s_mov_b32 s35, s34")
    sb_("s_add_u32 s34, s34, 9216")
    sb_("s_cmp_eq_u32 s34, 27648")
    sb_("s_cselect_b32 s34, 0, s34")
    sb_("s_mov_b32 s55, 0")
    sq = [i.text.strip() for i in sb_.ins]
    cnt_ = [0]
    held = []
    side = []
    class Defer:
        def op(self, text, tag=None): side.append((text, tag))
    def flush_until(tag):
        while any(t == tag for _, t in side):
            x = side.pop(0)
            D.op(*x) if x[0].startswith('ds_') else A(x[0])
    GAPN = EXP.get('gapn', 2)
    def smfs(acc, ar, w, need=()):
        for t in need:
            flush_until(t); D.wait(t)
        smf(acc, ar, w)
        cnt_[0] += 1
    def gap():
        n = 0
        if WT and cnt_[0] <= len(STG):
            j = cnt_[0] - 1
            D.op(f"ds_write_b128 v{L16}, {v(lreg(j), 4)} offset:{L_MEM + STG[j] * 1024}", 'mw')
            n += 1
        if cnt_[0] == BP:
            D.wait('mw')
            A("s_barrier")
            if OWN == 2: mem_read(ORD[2], mslot(2), ('m', 2))
            side.extend(held); held.clear()
            n = GAPN if OWN == 2 else 1
        if cnt_[0] in ext:
            A(ext[cnt_[0]]); n += 1
            if P3 and cnt_[0] == pos[6]: mem_read(ORD[4], r2, ('m', 4)); n += 1
        while side and n < GAPN:
            x = side.pop(0)
            D.op(*x) if x[0].startswith('ds_') else A(x[0])
            n += 1
        while cnt_[0] > pos[7] and sq and n < GAPN:
            A(sq.pop(0)); n += 1
    def d_wk(i):
        off = wk_off(LW[i]); base = (off // 65536) * 65536
        if base and cur[0] != base:
            side.append((f"v_add_u32 v{WKB}, {base:#x}, v{T16}", None)); cur[0] = base
        ar = T16 if base == 0 else WKB
        side.append((f"ds_read_b128 {v(wslot(i), 4)}, v{ar} offset:{off - base}", None))
        side.append((f"ds_read_b128 {v(wslot(i) + 4, 4)}, v{ar} offset:{off - base + 4096}", ('wk', i)))
    def d_kx(kt, j, r):
        loc[('kx', kt, j)] = r
        side.append((f"ds_read_b128 {v(r, 4)}, v{L16} offset:{L_KX + (kt * 4 + j) * 1024}", ('kx', kt, j)))
    cur[0] = 0
    for p in range(8):
        ks = ORD[p]
        m = mslot(p)
        smfs(ACCQ, m, WQ(ks, 0), [('m', p)]); gap()
        for b in range(2):
            n = 2 * p + b
            if n in SW: smfs(ACCK + 4 * b, m, wo_reg(SW[n]))
            else:
                i = LW.index(n)
                smfs(ACCK + 4 * b, m, wslot(i), [('wk', i)])
                if i + 3 < len(LW): d_wk(i + 3)
            if P3:
                nx = {1: 3, 2: 5, 3: 6, 4: 7, 5: 8}.get(p)
                if b == 1 and nx: side.insert(0 if nx == 3 else len(side), (f"ds_read_b128 {v(mslot(nx), 4)}, v{L16} offset:{L_MEM + ORD[nx] * 1024}", ('m', nx)))
            elif b == 1 and p + 3 < 9:
                (held if cnt_[0] < BP else side).append((f"ds_read_b128 {v(mslot(p), 4)}, v{L16} offset:{L_MEM + ORD[p + 3] * 1024}", ('m', p + 3)))
            if n == 12:
                side.append((f"s_waitcnt vmcnt({NSL + 2})", None))
                side.append(("s_barrier", None))
            if n == 13: d_kx(0, 0, 48); d_kx(1, 0, 52)
            if n == 14: d_kx(0, 1, 56); d_kx(1, 1, 60)
            gap()
            if b == 0:
                smfs(ACCQ + 4, m, WQ(ks, 1)); gap()
                if p >= V0S: smfs(ACCV0, m, WV(ks, 0)); gap()
        tr(f'a{p+1}')
    assert not side, side
    sread(('m', 5), 44)
    D.wait(('m', 8))
    m = mslot(8); ks = ORD[8]
    smfs(ACCQ, m, WQ(ks, 0)); gap(); smfs(ACCQ + 4, m, WQ(ks, 1))
    for o in sq: A(o)
    A(f"v_mov_b64 {v(ACCV1, 2)}, 0")
    smf(ACCK, m, WK8(0))
    A(f"v_mov_b64 {v(ACCV1 + 2, 2)}, 0")
    smf(ACCK + 4, m, WK8(1))
    A(f"v_mov_b32 v{TMPC}, s47")
    smf(ACCV0, m, WV(ks, 0))
    tr('a9')
    A(f"s_cmp_eq_u32 s24, {nsteps}")
    A(f"s_cbranch_scc1 L_rlast_{sfx}")
    fill = [(p, 1) for p in range(8, V0S - 1, -1)]
    for p in range(V0S - 1, -1, -1): fill += [(p, 1), (p, 0)]
    def filler(cnt=1):
        for _ in range(cnt):
            if fill:
                p, b = fill.pop(0)
                D.wait(('m', p))
                smf(ACCV1 if b else ACCV0, loc[('m', p)], WV(ORD[p], b))
    for acc, lo in ((ACCQ, 0), (ACCK, KL0)):
        for b in range(2):
            A(f"v_add_f32 v{acc+4*b}, v{acc+4*b}, v{acc+4*b+1}")
            A(f"v_add_f32 v{acc+4*b+2}, v{acc+4*b+2}, v{acc+4*b+3}")
        A(f"v_cvt_pk_bf16_f32 v{acc+1}, v{acc}, v{acc+4}")
        A(f"v_cvt_pk_bf16_f32 v{acc+3}, v{acc+2}, v{acc+6}")
        if lo == 0: D.op(f"ds_write2_b32 v{QKW}, v{acc+1}, v{acc+3} offset0:0 offset1:{QSTR // 4}")
        else:
            D.op(f"ds_write_b32 v{QKW}, v{acc+1} offset:{lo}")
            D.op(f"ds_write_b32 v{QKW}, v{acc+3} offset:{lo + QSTR}", 'qkw')
    tr('qkw')
    filler(1)
    sread(('m', 4), 16); sread(('m', 3), 24); sread(('m', 2), mslot(8))
    filler(3)
    D.wait('qkw')
    A("s_barrier")
    tr('b2')
    T0, T1, T2 = 12, 16, 20
    sread(('q', 0), mslot(7)); sread(('km', 0), mslot(6)); sread(('q', 1), 44)
    filler(2)
    sread(('km', 1), 24)
    filler(1 if V0S < 3 else 2)
    sread(('q', 2), mslot(8))
    pend = [('kx', 0, 2), ('kx', 1, 2), ('km', 2), ('q', 3), ('kx', 0, 3), ('kx', 1, 3), ('km', 3),
            ('m', 1), ('m', 0), ('vx', 0), ('vx', 1)]
    free = []
    for j in range(4):
        for T, tag in ((T0, ('kx', 0, j)), (T1, ('kx', 1, j)), (T2, ('km', j))):
            D.wait(tag); D.wait(('q', j))
            A(f"{MF32} {v(T, 4)}, {v(loc[tag], 4)}, {v(loc[('q', j)], 4)}, {v(T, 4) if j else 0}")
            if pend: sread(pend.pop(0), loc[tag])
            else: free.append(loc[tag])
        if pend: sread(pend.pop(0), loc[('q', j)])
        else: free.append(loc[('q', j)])
    tr('s_done')
    BX, Z, DA, DB = free[0], free[1], free[2], free[3]
    filler(3 if P3 else 2)
    M, TT, SUM = 16, 17, 18
    VMR = 22
    AO = 28
    busy = set()
    for b_ in (BX, Z, DA, DB, loc[('vx', 0)], loc[('vx', 1)], ACCV1, loc[('m', 0)]): busy |= set(range(b_, b_ + 4))
    zq = [r for r in range(AO, AO + 36, 2) if r not in busy]
    late = set(range(DA, DA + 4)) | set(range(DB, DB + 4))
    zm = [r for r in range(AO, AO + 36, 2) if r in busy and r not in late]
    zl = [r for r in range(AO, AO + 36, 2) if r in late]
    MZ = EXP.get('mz', 1)
    PS, PL, WB = 8, 9, 20
    misc = [f"v_lshrrev_b32 v{PL}, 2, v{L16}", f"v_and_b32 v{PS}, 0x300, v{L16}", f"v_bfe_u32 v10, v{L16}, 1, 7", f"v_lshl_or_b32 v{PS}, v{PS}, 4, v10", "v_mov_b64 v[10:11], 0"]
    mok = [False]
    def zero(cnt=1):
        for _ in range(cnt):
            if MZ:
                if mok[0] and misc: A(misc.pop(0))
            elif zq: A(f"v_mov_b64 {v(zq.pop(0), 2)}, 0")
    A(f"v_mov_b32 v{Z+1}, 0")
    A(f"v_mov_b32 v{Z+2}, 0")
    for r in range(4): A(f"v_mov_b32_dpp v{T0+r}, v{T1+r} {IDQ} row_mask:0xf bank_mask:0xc")
    A(f"v_mov_b32_dpp v{T2+2}, v{T2+3} {IDQ} row_mask:0xf bank_mask:0xc")
    A(f"v_mov_b32_dpp v{T2}, v{T2+1} {IDQ} row_mask:0x3 bank_mask:0xc")
    A(f"v_max3_f32 v{M}, v12, v13, v14")
    zero(1)
    A(f"v_mov_b32_dpp v{T2}, v{T2+2} {IDQ} row_mask:0xc bank_mask:0xf")
    A(f"v_max3_f32 v{M}, v{M}, v15, v20")
    tr('max0')
    if P3:
        A(f"v_add_f32 v{ACCV1}, v{ACCV1}, v{ACCV1+1}")
        A(f"v_add_f32 v{ACCV1+2}, v{ACCV1+2}, v{ACCV1+3}")
    else: filler(1); zero(1)
    A(f"v_max_f32_dpp v{M}, v{M}, v{M} {ROR8}")
    A(f"v_mov_b32 v{TT}, v{M}")
    if P3:
        A(f"v_add_f32 v{ACCV0}, v{ACCV0}, v{ACCV0+1}")
        A(f"v_add_f32 v{ACCV0+2}, v{ACCV0+2}, v{ACCV0+3}")
    else: filler(9); zero(1)
    assert not fill
    A(f"v_permlane16_swap_b32 v{M}, v{TT}")
    A(f"v_max_f32 v{M}, v{M}, v{TT}")
    A(f"v_mov_b32 v{TT}, v{M}")
    if P3:
        A(f"v_cvt_pk_bf16_f32 v{VMR}, v{ACCV0}, v{ACCV0+2}")
        A(f"v_cvt_pk_bf16_f32 v{VMR+1}, v{ACCV1}, v{ACCV1+2}")
    else: zero(2)
    A(f"v_permlane32_swap_b32 v{M}, v{TT}")
    A(f"v_max_f32 v{M}, v{M}, v{TT}")
    A(f"v_mul_f32 v{M}, s46, v{M}")
    tr('max1')
    for e in (12, 13, 14, 15, 20): A(f"v_fma_f32 v{e}, v{e}, s46, -v{M}")
    for e in (12, 13, 14, 15): A(f"v_exp_f32 v{e}, v{e}")
    A(f"v_cvt_pk_bf16_f32 v{BX}, v12, v13")
    A(f"v_cvt_pk_bf16_f32 v{BX+1}, v14, v15")
    A("v_exp_f32 v20, v20")
    A(f"v_mov_b32_dpp v{BX+2}, v{BX} {ROR8}")
    A(f"v_mov_b32_dpp v{BX+3}, v{BX+1} {ROR8}")
    A(f"v_mov_b32_dpp v21, v20 {ROR8}")
    if P3:
        A(f"v_add_f32 v{SUM}, v12, v13")
        D.wait(('vx', 1))
        tr('pv0')
        A(f"{MF32} {v(DA, 4)}, {v(loc[('vx', 0)], 4)}, {v(BX, 4)}, 0")
        A(f"v_cvt_pk_bf16_f32 v{Z}, v20, v21")
        A(f"v_add_f32 v{TT}, v14, v15")
        A(f"{MF32} {v(DB, 4)}, {v(loc[('vx', 1)], 4)}, {v(BX, 4)}, 0")
        A(f"v_add_f32 v{SUM}, v{SUM}, v20")
        A(f"v_add_f32 v{SUM}, v{SUM}, v{TT}")
        A(f"v_cvt_pk_bf16_f32 v{Z+3}, v20, v21")
        A(f"{MF16} {v(DA, 4)}, {v(VMR, 2)}, {v(Z, 2)}, {v(DA, 4)}")
        A(f"v_add_f32_dpp v{SUM}, v{SUM}, v{SUM} {ROR8}")
        A(f"v_mov_b32 v{TT}, v{SUM}")
        A(f"{MF16} {v(DB, 4)}, {v(VMR, 2)}, {v(Z + 2, 2)}, {v(DB, 4)}")
        tr('pv1')
        zq += zm
        zq.sort()
        mok[0] = True
        zero(1)
        A(f"v_permlane16_swap_b32 v{SUM}, v{TT}")
        A(f"v_add_f32 v{SUM}, v{SUM}, v{TT}")
        A(f"v_mov_b32 v{TT}, v{SUM}")
        zero(2)
        A(f"v_permlane32_swap_b32 v{SUM}, v{TT}")
        A(f"v_add_f32 v{SUM}, v{SUM}, v{TT}")
    else:
        A(f"v_add_f32 v{ACCV0}, v{ACCV0}, v{ACCV0+1}")
        D.wait(('vx', 1))
        tr('pv0')
        A(f"{MF32} {v(DA, 4)}, {v(loc[('vx', 0)], 4)}, {v(BX, 4)}, 0")
        A(f"v_add_f32 v{ACCV0+2}, v{ACCV0+2}, v{ACCV0+3}")
        A(f"v_add_f32 v{ACCV1}, v{ACCV1}, v{ACCV1+1}")
        A(f"{MF32} {v(DB, 4)}, {v(loc[('vx', 1)], 4)}, {v(BX, 4)}, 0")
        A(f"v_add_f32 v{ACCV1+2}, v{ACCV1+2}, v{ACCV1+3}")
        A(f"v_cvt_pk_bf16_f32 v{VMR}, v{ACCV0}, v{ACCV0+2}")
        A(f"v_cvt_pk_bf16_f32 v{VMR+1}, v{ACCV1}, v{ACCV1+2}")
        A(f"v_cvt_pk_bf16_f32 v{Z}, v20, v21")
        A(f"v_cvt_pk_bf16_f32 v{Z+3}, v20, v21")
        A(f"v_add_f32 v{SUM}, v12, v13")
        A(f"{MF16} {v(DA, 4)}, {v(VMR, 2)}, {v(Z, 2)}, {v(DA, 4)}")
        A(f"v_add_f32 v{TT}, v14, v15")
        A(f"v_add_f32 v{SUM}, v{SUM}, v20")
        A(f"{MF16} {v(DB, 4)}, {v(VMR, 2)}, {v(Z + 2, 2)}, {v(DB, 4)}")
        tr('pv1')
        A(f"v_add_f32 v{SUM}, v{SUM}, v{TT}")
        zq += zm
        zero(2)
        A(f"v_add_f32_dpp v{SUM}, v{SUM}, v{SUM} {ROR8}")
        A(f"v_mov_b32 v{TT}, v{SUM}")
        zero(2)
        A(f"v_permlane16_swap_b32 v{SUM}, v{TT}")
        A(f"v_add_f32 v{SUM}, v{SUM}, v{TT}")
        A(f"v_mov_b32 v{TT}, v{SUM}")
        zero(2)
        A(f"v_permlane32_swap_b32 v{SUM}, v{TT}")
        A(f"v_add_f32 v{SUM}, v{SUM}, v{TT}")
    A(f"v_rcp_f32 v{SUM}, v{SUM}")
    tr('rcp')
    zero(1)
    for k, Dx in enumerate((DA, DB)):
        for r in (0, 2): A(f"v_pk_mul_f32 {v(Dx + r, 2)}, {v(Dx + r, 2)}, {v(SUM, 2)} op_sel_hi:[1,0]")
    A(f"v_cvt_pk_bf16_f32 v12, v{DA}, v{DA+1}")
    A(f"v_cvt_pk_bf16_f32 v13, v{DA+2}, v{DA+3}")
    A(f"v_cvt_pk_bf16_f32 v14, v{DB}, v{DB+1}")
    A(f"v_cvt_pk_bf16_f32 v15, v{DB+2}, v{DB+3}")
    D.op(f"ds_write_b128 v{OW}, v[12:15]")
    tr('ow')
    zq += zl
    zq.sort()
    if MZ:
        for o in misc: A(o)
        A("v_mfma_f32_32x32x8_bf16 v[28:43], v[10:11], v[10:11], 0")
        A("v_mfma_f32_32x32x8_bf16 v[44:59], v[10:11], v[10:11], 0")
        post = ["v_mov_b64 v[60:61], 0", "v_mov_b64 v[62:63], 0"]
    else:
        post = [f"v_mov_b64 {v(r, 2)}, 0" for r in zq] + misc[:4]
        for _ in range(EXP.get('zb', 6)): A(post.pop(0))
    D.waitall()
    A("s_barrier")
    tr('b3')
    OF = 12
    D.op(f"ds_read_b128 {v(OF, 4)}, v{MEMR} offset:{L_OL}", 'o0')
    D.op(f"ds_read_b128 {v(OF + 4, 4)}, v{MEMR} offset:{L_OL + 1024}", 'o1')
    A(post.pop(0))
    D.op(f"ds_write2_b32 v{QKW}, v{VMR}, v{VMR+1} offset0:0 offset1:{QSTR // 4}")
    cur[0] = 0
    wq_ = sorted(SWO)
    def wo_next():
        if wq_:
            k_ = wq_.pop(0)
            lds_frag(SWO[k_], WB, ('wo', k_), areg=11)
    wo_next()
    for _ in range(EXP.get('za', 3)):
        if post: A(post.pop(0))
    def acc(t): return AO + 4 * WORD.index(t)
    def wpost(t):
        c = acc(t)
        o = [f"v_add_f32 v{c}, v{c}, v{c+1}", f"v_add_f32 v{c+1}, v{c+2}, v{c+3}"]
        if t == 8:
            o.append(f"v_cvt_pk_bf16_f32 v{c+2}, v{c}, v{c+1}")
            o.append(f"v_bfi_b32 v{c+2}, 1, v{TMPC}, v{c+2}")
            o.append(f"global_store_dword v{PL}, v{c+2}, s[42:43] {st}")
        elif t & 1:
            p = acc(t - 1); sb = 26 if t == 1 else 88 + 2 * (t // 2)
            o.append(f"v_cvt_pk_bf16_f32 v{c+2}, v{p}, v{c}")
            o.append(f"v_cvt_pk_bf16_f32 v{c+3}, v{p+1}, v{c+1}")
            o.append(f"v_bfi_b32 v{c+2}, 1, v{TMPC}, v{c+2}")
            o.append(f"global_store_dwordx2 v{PS}, {v(c + 2, 2)}, s[{sb}:{sb+1}] {st}")
        return o
    D.wait('o0')
    tr('wo0')
    seq = [(t, k2) for t in WORD for k2 in range(2)]
    if EXP.get('il', 0):
        seq = [(8, 0), (0, 0), (8, 1), (1, 0), (0, 1)]
        for t in range(1, 7): seq += [(t + 1, 0), (t, 1)]
        seq += [(7, 1)]
        assert len(seq) == 18 and not SWO
    vq = list(post); since = {}
    slots = 0
    for k, (t, k2) in enumerate(seq):
        if k2 == 1: D.wait('o1')
        if k in SWO:
            D.wait(('wo', k))
            smf(acc(t), OF + 4 * k2, WB)
            wo_next()
            slots += 2
        else: smf(acc(t), OF + 4 * k2, WO(t, k2))
        slots += 1
        if k2 == 1: since[t] = slots
        em = 0
        for _ in range(EXP.get('wv', 2) + (1 if len(vq) > EXP.get('wq', 1) else 0)):
            for tt_ in list(since):
                if slots - since[tt_] >= EXP.get('wlag', 8): vq += wpost(tt_); del since[tt_]
            if vq: A(vq.pop(0)); slots += 1; em += 1
        if em == 0 and since and EXP.get('wn', 2):
            A(f"s_nop {EXP.get('wn', 2) - 1}"); slots += EXP.get('wn', 2)
    tr('wo1')
    for tt_ in list(since): vq += wpost(tt_)
    for o in vq: A(o)
    tr('wo2')
    D.q = []
    SEL, RD, MS, LA = 12, 16, 8, 9
    LDB = (24, 40)
    kind = (1, 1, 2, 0)[wv]
    lab = f"L_rp1_{sfx}"
    LD = 24
    def wkpre():
        for n in sorted(range(3), key=wslot): wk_read(n)
    if kind:
        def loads():
            if kind == 2: A(f"global_load_dwordx4 {v(LD, 4)}, v{LA}, s[28:29] {LF}")
            else:
                for j in range(4): A(f"global_load_dwordx4 {v(LD + 4 * j, 4)}, v{L16}, s[28:29] offset:{j * 1024} {LF}")
        P = Asm()
        if kind == 1:
            P(f"v_bfe_u32 v20, v{L16}, 4, 1")
            P(f"v_bfe_u32 v21, v{L16}, 5, 1")
            P(f"v_bfe_u32 v22, v{L16}, 6, 1")
            P("v_lshl_add_u32 v22, v21, 1, v22")
        else:
            P(f"v_bfe_u32 v20, v{L16}, 6, 1")
            P(f"v_bfe_u32 v22, v{L16}, 4, 2")
            P(f"v_bfe_u32 v23, v{L16}, 8, 1")
            P("v_xor_b32 v23, s12, v23")
        P("v_lshlrev_b32 v20, 4, v20")
        P("v_mov_b32 v21, 0x3f80")
        P("v_lshlrev_b32 v21, v20, v21")
        m_ = Asm(); ms_calc(m_, kind, MS, 10); mq = [i.text.strip() for i in m_.ins]
        for j in range(4):
            P(f"v_cmp_eq_u32 vcc, {j}, v22")
            for _ in range(2):
                if mq: P(mq.pop(0))
            P(f"v_cndmask_b32 v{SEL+j}, 0, v21, vcc")
        for o in mq: P(o)
        P("v_mov_b64 v[10:11], -1")
        pq = [i.text.strip() for i in P.ins]
        if wv == 0:
            wkpre()
            A(f"s_waitcnt vmcnt({EXP.get('k0', 1)})")
            tr('p1s'); loads()
            for o in pq: A(o)
        elif wv == 1:
            wkpre()
            tp = EXP.get('tp', 6)
            for o in pq[:len(pq) - tp]: A(o)
            A(f"s_waitcnt vmcnt({EXP.get('k1', 0)})")
            for o in pq[len(pq) - tp:]: A(o)
            tr('p1s'); loads()
        else:
            lane_const(A, LA, lambda x: (x >> 5) * 256 + ((x >> 4) & 1) * 16, src=L16, nbits=10, tmp=10)
            tr('p1s'); loads()
            wkpre()
            for o in pq: A(o)
        A.label(lab)
        if kind == 1:
            for j in range(4):
                A(f"s_waitcnt vmcnt({3 - j})")
                tr(f'p1w{j}')
                A(f"{MF32} {v(RD, 4)}, {v(SEL, 4)}, {v(LD + 4 * j, 4)}, {v(RD, 4) if j else 0}")
                A(f"v_bitop3_b32 v{20 + j}, v{LD+4*j}, v{LD+4*j+2}, {'s13' if j & 1 else 's12'} bitop3:0x7e")
                if j == 2: A("v_or3_b32 v20, v20, v21, v22")
            A("v_bitop3_b32 v20, v20, v23, 1 bitop3:0xa8")
        else:
            A("s_waitcnt vmcnt(0)")
            A(f"{MF32} {v(RD, 4)}, {v(SEL, 4)}, {v(LD, 4)}, 0")
            A(f"v_bitop3_b32 v20, v{LD}, v{LD+1}, v23 bitop3:0x7e")
            A(f"v_bitop3_b32 v21, v{LD+2}, v{LD+3}, v23 bitop3:0x7e")
            A("v_bitop3_b32 v20, v20, v21, 1 bitop3:0xa8")
        A("v_cmp_ne_u32 vcc, 0, v20")
        for r in range(4): A(f"v_add_f32_dpp v{RD+r}, v{RD+r}, v{RD+r} {ROR8}")
        if kind == 2:
            for r in range(4): A(f"v_add_f32_dpp v{RD+r}, v{RD+r}, v{RD+r} row_ror:4 row_mask:0xf bank_mask:0xf")
            for r in range(4): A(f"v_add_f32_dpp v{RD+r}, v{RD+r}, v{RD+r} quad_perm:[2,3,0,1] row_mask:0xf bank_mask:0xf")
        A(f"v_cvt_pk_bf16_f32 v20, v{RD}, v{RD+1}")
        A(f"v_cvt_pk_bf16_f32 v21, v{RD+2}, v{RD+3}")
        A("s_mov_b64 exec, s[44:45]")
        A(f"s_cbranch_vccnz {lab}_rt")
        tr('p1ok')
        A(f"global_store_dwordx2 v{MS}, v[20:21], s[14:15] {st}")
        A(f"global_store_dwordx2 v{MS}, v[10:11], s[60:61] {st}")
        A("s_mov_b64 exec, -1")
        if EXP.get('rt'): A("s_add_u32 s76, s76, s55")
    else:
        wkpre()
        if nkv:
            A(f"v_mov_b32 v28, {L_QL + 256}")
            A("s_waitcnt vmcnt(5)")
            A("ds_read_b128 v[28:31], v28")
            A("s_waitcnt lgkmcnt(0)")
            A("v_min3_u32 v28, v28, v29, v30")
            A("v_min_u32 v28, v28, v31")
            A("v_readfirstlane_b32 s12, v28")
            A("s_max_u32 s54, s54, s12")
        kv_wait(A, "s25", nkv, kvg0, 28, XIT)
    A("s_barrier")
    tr('b4')
    A("s_mov_b32 s55, 0")
    def loads2():
        for j, ks in enumerate(LDL):
            if ks == 8: A(f"global_load_dwordx4 {v(lreg(j), 4)}, v{L16}, s[16:17] {LF}")
            else: A(f"global_load_dwordx4 {v(lreg(j), 4)}, v{L16}, s[20:21] offset:{(ks - 4) * 1024} {LF}")
    Z2 = EXP.get('z2', 6)
    spill_read(MRING + 8 if P3 else ACCV0)
    zero_qk(12, 12 + 2 * Z2)
    tr('p2s')
    loads2()
    zero_qk(12 + 2 * Z2, 28)
    if P3 and wv: zero_qk(ACCV0, ACCV0 + 4)
    A.label(f"L_rp2_{sfx}")
    ns = len(LDL)
    for j, ks in enumerate(LDL):
        r = lreg(j)
        A(f"s_waitcnt vmcnt({ns - 1 - j})")
        if j == 0:
            tr('p2w0')
            A(f"v_max_u32 v{TMPC}, v{r}, v{r+2}")
        else: A(f"v_max3_u32 v{TMPC}, v{TMPC}, v{r}, v{r+2}")
    A(f"v_cmp_eq_u32 vcc, -1, v{TMPC}")
    if not WT:
        for j, ks in enumerate(STG): A(f"ds_write_b128 v{L16}, {v(MRING + 4 * j, 4)} offset:{L_MEM + ks * 1024}")
    A(f"s_cbranch_vccz {top if not TR else f'L_rp2ok_{sfx}'}")
    if EXP.get('rt'): A("s_add_u32 s77, s77, 1")
    A("s_mov_b64 exec, vcc")
    loads2()
    A("s_mov_b64 exec, -1")
    A("s_add_u32 s55, s55, 1")
    A(f"s_cmp_gt_u32 s55, {SPIN_MAX}")
    A(f"s_cbranch_scc0 L_rp2_{sfx}")
    A(f"s_branch {XIT}")
    if kind:
        A.label(lab + "_rt")
        A("s_mov_b64 exec, vcc")
        loads()
        A("s_mov_b64 exec, -1")
        backoff(A, 55)
        A("s_add_u32 s55, s55, 1")
        A(f"s_cmp_gt_u32 s55, {SPIN_MAX}")
        A(f"s_cbranch_scc0 {lab}")
        A(f"s_branch {XIT}")
    A.label(f"L_rp2ok_{sfx}")
    tr('p2ok')
    if TR:
        A("s_cmp_lg_u32 s24, 41")
        A(f"s_cbranch_scc1 {top}")
        A("s_waitcnt lgkmcnt(0)")
        A("s_lshl_b32 s12, s9, 2")
        A("s_add_u32 s12, s12, s10")
        A("s_lshl_b32 s12, s12, 6")
        A(f"s_add_u32 s12, s12, {WS_STAMP + 16384}")
        A(f"v_mov_b32 v{TMPC}, s12")
        for q in range(11):
            A(f"v_mov_b32 v63, s{64 + 2 * q}")
            A(f"global_store_dword v{TMPC}, v63, s[4:5] offset:{4 * q}")
            A("s_waitcnt vmcnt(0)")
    A(f"s_branch {top}")
    A.label(f"L_rlast_{sfx}")
    D.waitall()
    lr = {8: mslot(8), 7: mslot(7), 6: mslot(6), 5: 44, 4: 48, 3: 52, 2: 56, 1: 60, 0: 12}
    for p in (4, 3, 2, 1, 0): mem_read(ORD[p], lr[p], ('lm', p))
    for p in range(8, -1, -1):
        D.wait(('lm', p))
        smf(ACCV1, lr[p], WV(ORD[p], 1))
        if p < V0S: smf(ACCV0, lr[p], WV(ORD[p], 0))
    for b in range(2):
        A(f"v_add_f32 v{ACCK+4*b}, v{ACCK+4*b}, v{ACCK+4*b+1}")
        A(f"v_add_f32 v{ACCK+4*b+2}, v{ACCK+4*b+2}, v{ACCK+4*b+3}")
    A(f"v_cvt_pk_bf16_f32 v16, v{ACCK}, v{ACCK+4}")
    A(f"v_cvt_pk_bf16_f32 v17, v{ACCK+2}, v{ACCK+6}")
    for a_ in (ACCV1, ACCV0):
        A(f"v_add_f32 v{a_}, v{a_}, v{a_+1}")
        A(f"v_add_f32 v{a_+2}, v{a_+2}, v{a_+3}")
    A(f"v_cvt_pk_bf16_f32 v18, v{ACCV0}, v{ACCV0+2}")
    A(f"v_cvt_pk_bf16_f32 v19, v{ACCV1}, v{ACCV1+2}")
    A(f"global_store_dwordx4 v{T16}, v[16:19], s[38:39] sc1")
    tl(A, 4)
    if EXP.get('rt'):
        A("s_memrealtime s[82:83]")
        A("s_memtime s[98:99]")
        A("s_waitcnt lgkmcnt(0)")
        A("s_sub_u32 s75, s98, s96")
        A("s_sub_u32 s78, s80, s84")
        A("s_sub_u32 s79, s82, s80")
        A("s_lshl_b32 s12, s9, 2")
        A("s_add_u32 s12, s12, s10")
        A("s_lshl_b32 s12, s12, 6")
        A(f"s_add_u32 s12, s12, {WS_STAMP}")
        A("v_mov_b32 v12, s12")
        for q in range(4):
            for r in range(4): A(f"v_mov_b32 v{16+r}, s{64 + 4 * q + r}")
            A(f"global_store_dwordx4 v12, v[16:19], s[4:5] offset:{16 * q}")
            A("s_waitcnt vmcnt(0)")
    A.label(XIT)
    A("s_endpgm")

def role_r(A, restart, nkv, kvg0):
    if EXP.get('rt'):
        A("s_memrealtime s[84:85]")
        A("s_waitcnt lgkmcnt(0)")
    r_setup(A)
    r_swap(A)
    tl(A, 1)
    A("s_waitcnt vmcnt(0)")
    A("s_mov_b32 s54, 0")
    A("v_min3_u32 v6, v8, v9, v10")
    A("v_min_u32 v6, v6, v11")
    mode_check(A, tv=12, pre=4)
    r_consts(A)
    r_pro(A, nkv, kvg0)
    A("s_cmp_eq_u32 s11, 0")
    A("s_cbranch_scc1 L_r_slow")
    for fast in (True, False):
        t = 'f' if fast else 's'
        if not fast: A.label("L_r_slow")
        for w in range(1, 4):
            A(f"s_cmp_eq_u32 s10, {w}")
            A(f"s_cbranch_scc1 L_rent_{t}{w}")
        for w in range(4):
            A.label(f"L_rent_{t}{w}")
            r_main(A, fast, w, nkv, kvg0)
```

```python
from common import *
import math, struct

L_MEM, L_KX, L_VX = 0, 9216, 17408
L_QL, L_KL, L_OL = 25600, 27904, 30208
L_JUNK = 32256
L_WK = 32768
QSTR = 288
KL0 = L_KL - L_QL
T16, WKB, L16, MEMR, QR, QKW, OW, IDX = range(0, 8)
TMPC = WKB
def WQ(ks, b): return 256 + (ks * 2 + b) * 8
def WV(ks, b):
    i = ks * 2 + b
    return 400 + i * 8 if i < 14 else 64 + (i - 14) * 8
def WO(t, k2): return 96 + (t * 2 + k2) * 8
def WK8(b): return 240 + b * 8
ACCV0, ACCQ, ACCK, MRING, WRING, ACCV1 = 8, 12, 20, 28, 40, 40
SMF = "v_smfmac_f32_16x16x64_bf16"
MF32 = "v_mfma_f32_16x16x32_bf16"
MF16 = "v_mfma_f32_16x16x16_bf16"
IDQ = "quad_perm:[0,1,2,3]"
ROR8 = "row_ror:8 row_mask:0xf bank_mask:0xf"
def FSW(i): return 2 * (0, 2, 3, 1)[i >> 1] + (i & 1)
def img(i, pos): return i * 128 + ((pos ^ FSW(i)) * 16)
def mimg(i, pos): return ((pos >> 1) * 16 + 2 * i + (pos & 1)) * 16
PI = [0, 1, 4, 5, 2, 3, 6, 7]
EXP = {}
PF = 1
ORD = [8, 0, 1, 2, 3, 4, 5, 6, 7]
ORD0 = ORD

WORD = [8, 0, 1, 2, 3, 4, 5, 6, 7]
def swap_tab():
    nsw = EXP.get('nsw', 0)
    return list(zip([4, 7, 10, 13, 15, 1][:nsw], [3, 7, 10, 13, 16, 0][:nsw]))
def wo_reg(k): return WO(WORD[k // 2], k & 1)
def wk_off(n): return L_WK + (n >> 1) * 16384 + (n & 1) * 8192

def r_swap(A):
    for n, k in swap_tab():
        A(f"v_lshlrev_b32 v12, 4, v0")
        A(f"v_add_u32 v12, {wk_off(n)}, v12")
        A("ds_read_b128 v[16:19], v12")
        A("ds_read_b128 v[20:23], v12 offset:4096")
        A("s_waitcnt lgkmcnt(0)")
        r = wo_reg(k)
        A(f"ds_write_b128 v12, {v(r, 4)}")
        A(f"ds_write_b128 v12, {v(r + 4, 4)} offset:4096")
        A("s_waitcnt lgkmcnt(0)")
        for q in range(0, 8, 2): A(f"v_mov_b64 {v(r + q, 2)}, {v(16 + q, 2)}")

def r_setup(A):
    A(f"s_load_dwordx4 s[16:19], s[0:1], {KA_WQ}")
    A(f"s_load_dwordx4 s[20:23], s[0:1], {KA_WV}")
    A(f"s_load_dwordx2 s[24:25], s[0:1], {KA_MEM0}")
    def swz(lr): return 2 * ((lr & 1) | ((lr >> 3) & 1) << 1 | ((lr >> 5) & 1) << 2)
    def swz2(row): return 2 * (((row >> 2) & 1) | ((row >> 4) & 1) << 1)
    for ip in range(4):
        def fq(t, last=False):
            w, l = t >> 6, t & 63
            lr = 16 * w + 4 * ip + (l >> 4); e, pos = lr >> 3, lr & 7
            d = 512 + 8 * pos + e if last else 64 * (e & 1) + 4 * pos + (e >> 1)
            return d * 8192 + (((l & 15) ^ swz(lr)) * 16)
        lane_const(A, 12 + ip, fq, tmp=1)
        lane_const(A, 16 + ip, lambda t: fq(t, True), tmp=1)
        lane_const(A, 20 + ip, lambda t: (32 * (t >> 6) + 8 * ip + ((t & 63) >> 3)) * 1152, tmp=1)
        lane_const(A, 20 + ip, lambda t: ((t & 7) ^ swz2(32 * (t >> 6) + 8 * ip + ((t & 63) >> 3))) * 16, tmp=1, acc=True)
    def ftr(t, b):
        w, l = t >> 6, t & 63
        gb, half, bp, c = l >> 4, (l >> 3) & 1, (l >> 2) & 1, l & 3
        lr = 32 * (gb & 1) + 8 * bp + 2 * (gb >> 1) + half
        return L_WK + lr * 256 + (((4 * w + 2 * b + (c >> 1)) ^ swz(lr)) * 16) + (c & 1) * 8
    lane_const(A, 24, lambda t: ftr(t, 0), tmp=1)
    lane_const(A, 25, lambda t: ftr(t, 1), tmp=1)
    def fto(t):
        w, l = t >> 6, t & 63
        gb, half, bp, c = l >> 4, (l >> 3) & 1, (l >> 2) & 1, l & 3
        row = 16 * (gb & 1) + 8 * (gb >> 1) + 4 * half + bp
        return L_WK + row * 128 + (((2 * w + (c >> 1)) ^ swz2(row)) * 16) + (c & 1) * 8
    lane_const(A, 26, fto, tmp=1)
    lane_const(A, 27, lambda t: L_WK + t * 16, tmp=1)
    A("s_waitcnt lgkmcnt(0)")
    A("s_lshl_b32 s12, s9, 8")
    for p in (16, 18, 20):
        add64(A, p, p, "s12")
    A("s_mul_i32 s12, s9, 147456")
    add64(A, 22, 22, "s12")
    A("s_lshl_b32 s26, s10, 12")
    A(f"s_add_u32 s26, s26, {L_WK}")
    chunks = [('q', k) for k in range(9)] + [('v', k) for k in range(9)] + [('o', t) for t in range(9)] + [('k', 7)] + [('k', ORD[j % 8]) for j in range(28, 36)]
    ptr = {'q': 16, 'k': 18, 'v': 20, 'o': 22}
    def issue(j):
        m, k = chunks[j]
        slot = j % 8
        if m == 'o': off, vb = k * 128, 20
        elif k < 8: off, vb = (128 * (k >> 1) + 32 * (k & 1)) * 8192, 12
        else: off, vb = 0, 16
        add64(A, 12, ptr[m], off)
        for ip in range(4):
            A(f"s_add_u32 m0, s26, {slot * 16384 + ip * 1024}")
            A(f"global_load_lds_dwordx4 v{vb+ip}, s[12:13]")
    def fd(m, t): return 256 * m + t if m < 2 else 512 + (t & 63)
    def fa(m, t):
        d = fd(m, t)
        if d < 512: ks, e, pos = 2 * (d >> 7) + ((d >> 5) & 1), 2 * (d & 3) + ((d >> 6) & 1), (d >> 2) & 7
        else: ks, e, pos = 8, d & 7, (d >> 3) & 7
        return ks * 1024 + mimg(0, pos) + e * 2
    def mem0_issue():
        for m in range(3):
            lane_const(A, 4 + m, lambda t: 2 * fd(m, t), tmp=1)
            lane_const(A, 8 + m, lambda t: fa(m, t), tmp=1)
            for i in range(8):
                A(f"v_add_u32 v2, {i * 1152}, v{4+m}")
                A(f"global_load_ushort v{32+8*m+i}, v2, s[24:25]")
    def mem0_write():
        for m in range(3):
            for i in range(8):
                A(f"ds_write_b16 v{8+m}, v{32+8*m+i} offset:{L_MEM + i * 32}")
    def status0():
        lane_const(A, 2, lambda t: arr_word(t & 7) * 4, tmp=1)
        A("global_load_dword v4, v2, s[6:7] sc1")
    def status_issue():
        A("s_lshl_b32 s12, s9, 7")
        A(f"s_add_u32 s12, s12, {WS_KVPROG + 4096}")
        A("v_mov_b32 v2, s12")
        A("global_load_dwordx4 v[8:11], v2, s[4:5] sc1")
    for j in range(7): issue(j)
    n = len(chunks)
    for j in range(n + 1):
        if j < n:
            ahead = min(n - 1, j + 6) - j
            extra = 24 if 1 <= j <= 7 else (1 if 33 <= j <= 35 else (1 if 25 <= j <= 31 else 0))
            A(f"s_waitcnt vmcnt({4 * ahead + extra})")
        A("s_barrier")
        if j + 7 < n: issue(j + 7)
        if j == 0: mem0_issue()
        if j == 9: mem0_write()
        if j == 24: status0()
        if j == 32: status_issue()
        if j >= 29:
            pk = (j - 1) % 8; tb = 32 + ((j - 1) & 1) * 16
            A(f"v_add_u32 v28, {pk * 16384}, v27")
            for q in range(4):
                A(f"ds_write_b128 v28, {v(tb + 4 * q, 4)} offset:{q * 4096}")
        if j < n:
            m, k = chunks[j]; slot = j % 8
            if m == 'o':
                A(f"v_add_u32 v28, {slot * 16384}, v26")
                for k2 in range(2):
                    for jq in range(4):
                        off = (64 * k2 + 32 * (jq >> 1) + 2 * (jq & 1)) * 128
                        A(f"ds_read_b64_tr_b16 {u(WO(k, k2) + 2 * jq, 2)}, v28 offset:{off}")
            else:
                A(f"v_add_u32 v28, {slot * 16384}, v24")
                A(f"v_add_u32 v29, {slot * 16384}, v25")
                for b in range(2):
                    if m == 'q': dst = WQ(k, b)
                    elif m == 'v': dst = WV(k, b)
                    elif j == 27: dst = WK8(b)
                    else: dst = 32 + (j & 1) * 16 + b * 8
                    for jq in range(4):
                        off = (16 * (jq & 1) + 4 * (jq >> 1)) * 256
                        A(f"ds_read_b64_tr_b16 {u(dst + 2 * jq, 2)}, v{28+b} offset:{off}")
        A("s_waitcnt lgkmcnt(0)")

def r_consts(A):
    lane_const(A, L16, lambda t: (t & 63) * 16, tmp=12)
    lane_const(A, MEMR, lambda t: img((t & 15) >> 1, 2 * ((t >> 4) & 3) + (t & 1)), tmp=12)
    lane_const(A, QR, lambda t: L_QL + (t & 7) * QSTR + ((t >> 4) & 3) * 16, tmp=12)
    lane_const(A, QKW, lambda t: L_QL + (0, 4, 2, 6)[(t >> 4) & 3] * QSTR + (t >> 6) * 64 + (t & 15) * 4, tmp=12)
    lane_const(A, OW, lambda t: (t >> 7) * 1024 + img(PI[t & 7], 4 * ((t >> 6) & 1) + ((t >> 4) & 3)), tmp=12)
    A(f"v_add_u32 v{OW}, {L_OL}, v{OW}")
    lane_const(A, 14, lambda t: L_JUNK + (((t >> 4) & 3) * 8 + (t & 7)) * 16, tmp=12)
    A("v_and_b32 v12, 8, v0")
    A("v_cmp_ne_u32 vcc, 0, v12")
    A(f"v_cndmask_b32 v{OW}, v{OW}, v14, vcc")
    lane_const(A, IDX, lambda t: 0xEEEE if t & 1 else 0x4444, tmp=12)
    A(f"v_lshlrev_b32 v{T16}, 4, v0")
    A("s_and_b32 s12, s10, 1")
    A("s_lshl_b32 s12, s12, 5")
    A("s_add_u32 s37, s12, s9")
    A("v_mov_b32 v14, s37")
    lane_const(A, 15, lambda t: ms_fn(1, t, 0), src=14, nbits=6, tmp=12)
    lane_const(A, 16, lambda t: ms_fn(2, t, 0), src=14, nbits=5, tmp=12)
    if EXP.get('tm', 1): lane_const(A, 17, lambda t: WS_RP + t * 4096, src=14, nbits=6, tmp=12)
    else: lane_const(A, 17, lambda t: WS_RP + (t >> 2) * 16384 + (t & 3) * 128 + 4096, src=14, nbits=6, tmp=12)
    lane_const(A, 18, lambda t: WS_RP + 0x40000 + (t >> 3) * 8192 + (t & 7) * 32, src=14, nbits=5, tmp=12)
    A("v_readfirstlane_b32 s41, v15")
    A("v_readfirstlane_b32 s12, v16")
    A("v_readfirstlane_b32 s13, v17")
    A("v_readfirstlane_b32 s14, v18")
    A("s_cmp_lt_u32 s10, 2")
    A("s_cselect_b32 s41, s41, s12")
    A("s_cselect_b32 s13, s13, s14")
    if EXP.get('rep', 0):
        A("s_cselect_b32 s44, -1, 0x03030303")
        A("s_mov_b32 s45, s44")
        A("s_and_b32 s36, s9, 3")
        A("s_lshl_b32 s36, s36, 15")
        A("s_add_u32 s36, s36, 3072")
    else:
        A("s_mov_b32 s44, 0x00030003")
        A("s_cselect_b32 s44, 0x00FF00FF, s44")
        A("s_mov_b32 s45, 0")
        A("s_movk_i32 s36, 3072")
    add64(A, 28, S_WS, "s13")
    add64(A, 16, 28, 8192)
    A("s_lshl_b32 s12, s10, 5")
    A("s_add_u32 s12, s12, s9")
    A("s_lshl_b32 s13, s12, 9")
    if EXP.get('tm', 1):
        A("s_lshl_b32 s13, s10, 7")
        A("s_add_u32 s13, s13, s9")
        A("s_lshl_b32 s13, s13, 7")
    A(f"s_add_u32 s13, s13, {WS_RP}")
    add64(A, 26, S_WS, "s13")
    for p in range(1, 4): add64(A, 88 + 2 * p, 26, p * 65536)
    A("s_lshl_b32 s13, s12, 8")
    A(f"s_add_u32 s13, s13, {WS_RP + 0x40000}")
    add64(A, 42, S_WS, "s13")
    add64(A, 30, S_WS, WS_RM)
    cc = struct.unpack('<I', struct.pack('<f', (128 ** -0.5) * math.log2(math.e)))[0]
    A(f"s_mov_b32 s46, {cc:#x}")
    A("s_bfe_u32 s40, s9, 0x10003")
    A("s_lshl_b32 s12, s9, 14")
    A(f"s_add_u32 s12, s12, {WS_KV}")
    add64(A, 88, S_WS, "s12")
    A("s_lshl_b32 s13, s10, 11")
    add64(A, 32, 88, "s13")
    add64(A, 86, 32, 8192)
    A("s_lshl_b32 s12, s9, 12")
    A(f"s_add_u32 s12, s12, {WS_KVM}")
    add64(A, 50, S_WS, "s12")
    A("s_lshl_b32 s12, s9, 7")
    A(f"s_add_u32 s12, s12, {WS_KVPROG + 4096}")
    add64(A, 18, S_WS, "s12")
    A("s_lshl_b32 s12, s9, 2")
    A(f"s_add_u32 s12, s12, {WS_RPROG}")
    add64(A, 52, S_WS, "s12")
    A("s_lshl_b32 s12, s9, 7")
    A(f"s_add_u32 s12, s12, {WS_RPROG}")
    add64(A, 22, S_WS, "s12")
    A("s_lshl_b32 s62, s10, 11")
    A(f"s_add_u32 s62, s62, {L_KX}")
    A("s_lshl_b32 s63, s10, 10")
    A(f"s_add_u32 s57, s63, {L_MEM}")
    A(f"s_add_u32 s63, s63, {L_VX}")

def ms_fn(kind, t, l):
    q8, gp = l & 7, (l >> 4) & 1
    rp = 0
    if kind == 1:
        w, g = (t >> 2) & 3, t & 3
        return rp + (t >> 3) * 1024 + mimg(2 * g + gp, 4 * (w & 1) + (q8 >> 1)) + (q8 & 1) * 8
    w, g, nh = t >> 3, (t >> 1) & 3, t & 1
    return rp + 8192 + mimg(2 * g + gp, 2 * w + nh) + (l & 1) * 8

def ms_calc(A, kind, dst, tmp):
    lane_const(A, dst, lambda x: ms_fn(kind, 0, x >> 4) ^ ms_fn(kind, 0, 0), src=L16, nbits=10, tmp=tmp, mode='xor')
    A(f"v_xor_b32 v{dst}, s41, v{dst}")

def kv_wait(A, seg_sgpr, nkv, kvg0, tv, xit='L_exit'):
    if nkv == 0: return
    ok = A.newlabel('L_kvok'); loop = A.newlabel('L_kvp')
    A(f"s_cmp_lt_u32 {seg_sgpr}, s54")
    A(f"s_cbranch_scc1 {ok}")
    A("s_mov_b32 s55, 0")
    A(f"v_bfe_u32 v{tv}, v{L16}, 2, 4")
    A.label(loop)
    A(f"global_load_dword v{tv+1}, v{tv}, s[18:19] sc1")
    A("s_add_u32 s55, s55, 1")
    A(f"s_cmp_gt_u32 s55, {SPIN_MAX}")
    A(f"s_cbranch_scc1 {xit}")
    A("s_waitcnt vmcnt(0)")
    xsum(A, tv + 1, tv, op="v_min_u32", bits=(0, 1))
    A(f"v_readfirstlane_b32 s54, v{tv+1}")
    A(f"s_cmp_lt_u32 {seg_sgpr}, s54")
    A(f"s_cbranch_scc1 {ok}")
    A("s_sleep 4")
    A(f"s_branch {loop}")
    A.label(ok)

def r_pro(A, nkv, kvg0):
    TR = EXP.get('trace', [])
    A("s_mov_b32 s24, 0")
    A("s_mov_b32 s34, 9216")
    A("s_mov_b32 s35, 0")
    if TR or EXP.get('rt'):
        for i in range(22 if TR else 16): A(f"s_mov_b32 s{64+i}, 0")
    tl(A, 2)
    if EXP.get('warm', 1):
        A("s_mul_i32 s12, s9, 9216")
        A(f"s_add_u32 s12, s12, {WS_RP}")
        A(f"v_lshl_add_u32 v12, v{T16}, 2, s12")
        A("s_lshl_b32 s12, s9, 10")
        A(f"s_add_u32 s12, s12, {WS_RM}")
        A(f"v_add_u32 v13, s12, v{L16}")
        A(f"s_mov_b32 m0, {L_JUNK}")
        A("global_load_lds_dword v12, s[4:5] sc1")
        A("global_load_lds_dword v13, s[4:5] sc1")
    A("s_mov_b32 s25, 0")
    kv_wait(A, "s25", nkv, kvg0, 12)
    tl(A, 3)
    if EXP.get('rt'):
        A("s_memrealtime s[80:81]")
        A("s_memtime s[96:97]")
    add64(A, 38, S_WS, WS_STAMP + 0x8000)
    A("s_mov_b64 s[58:59], s[88:89]")

def r_main(A, fast, wv, nkv, kvg0, nsteps=64):
    st = "" if fast else "sc1"
    LF = "sc1"
    sfx = ("f" if fast else "s") + str(wv)
    XIT = f"L_rx_{sfx}"
    D = Lds(A)
    TR = EXP.get('trace', [])
    def tr(name):
        if name in TR:
            i = TR.index(name)
            A(f"s_memtime s[{64+2*i}:{65+2*i}]")
    ORD = [ORD0[(2 * wv + p) % 8] for p in range(8)] + [7]
    def wk_off(n): return L_WK + ((2 * wv + (n >> 1)) % 8) * 16384 + (n & 1) * 8192
    OWN = EXP.get('own', 2)
    STG = ORD[:2] + ([7] if wv == 0 else [])
    if OWN == 3:
        if wv == 3: ORD = ORD[:2] + [7] + ORD[2:8]
        LDL = ORD[:3]; STG = ORD[:3] if wv == 3 else ORD[:2]
    else: LDL = STG
    WT = EXP.get('wt', 1)
    P3 = EXP.get('p3', 1)
    def lreg(j): return ACCV0 if (P3 and j == 2) else MRING + 4 * j
    SW = {}; SWO = {}
    LW = [n for n in range(16) if n not in SW]
    cur = [0]
    def lds_frag(n, r, tag, areg=WKB):
        off = wk_off(n); base = (off // 65536) * 65536
        if base and cur[0] != base:
            A(f"v_add_u32 v{areg}, {base:#x}, v{T16}")
            cur[0] = base
        ar = T16 if base == 0 else areg
        D.op(f"ds_read_b128 {v(r, 4)}, v{ar} offset:{off - base}")
        D.op(f"ds_read_b128 {v(r + 4, 4)}, v{ar} offset:{off - base + 4096}", tag)
    RSH = (3 - (len(LW) - 1) % 3) % 3
    def wslot(i): return WRING + ((i + RSH) % 3) * 8
    def wk_read(i):
        cur[0] = 0
        lds_frag(LW[i], wslot(i), ('wk', i))
    def spill_read(r):
        D.op(f"ds_read_b32 v{r}, v{QKW} offset:{KL0}")
        D.op(f"ds_read_b32 v{r+1}, v{QKW} offset:{KL0 + QSTR}")
        D.op(f"ds_read2_b32 {v(r + 2, 2)}, v{QKW} offset0:0 offset1:{QSTR // 4}", 'spill')
    def zero_qk(lo=ACCQ, hi=ACCQ + 16):
        for r in range(lo, hi, 2): A(f"v_mov_b64 {v(r, 2)}, 0")
    for n in sorted(range(3), key=wslot): wk_read(n)
    def mem_read(ks, r, tag):
        D.op(f"ds_read_b128 {v(r, 4)}, v{L16} offset:{L_MEM + ks * 1024}", tag)
    def mslot(p): return MRING + ((0, 1, 0, 1, 2, 0, 1, 2, 0)[p] if P3 else p % 3) * 4
    for p, ks in enumerate(LDL): mem_read(ks, lreg(p), None)
    if P3 and wv: zero_qk(ACCV0, ACCV0 + 4)
    zero_qk()
    A("s_mov_b32 m0, s62")
    A("s_mov_b32 s55, 0")
    A("s_mov_b32 s47, s40")
    A("s_mov_b64 s[20:21], s[30:31]")
    D.waitall()
    SP = EXP.get('sp', 1)
    def smf(acc, ar, w): A(f"{SMF} {v(acc, 4)}, {v(ar, 4)}, {u(w, 8)}, v{IDX}")
    head = [(ACCQ, WQ(ORD[0], 0)), (ACCQ + 4, WQ(ORD[0], 1))] + ([(ACCV0, WV(ORD[0], 0))] if wv else [])
    top = f"L_rtop_{sfx}"
    assert SP
    A.label(f"L_rp2_{sfx}")
    ns = len(LDL)
    A(f"s_waitcnt vmcnt({ns - 1})")
    tr('p2w0')
    smf(head[0][0], mslot(0), head[0][1])
    A(f"v_max_u32 v{TMPC}, v{lreg(0)}, v{lreg(0)+2}")
    for j in range(1, ns):
        A(f"s_waitcnt vmcnt({ns - 1 - j})")
        A(f"v_max3_u32 v{TMPC}, v{TMPC}, v{lreg(j)}, v{lreg(j)+2}")
    A(f"v_cmp_eq_u32 vcc, -1, v{TMPC}")
    smf(head[1][0], mslot(0), head[1][1])
    A(f"ds_write_b128 v{L16}, {v(lreg(0), 4)} offset:{L_MEM + STG[0] * 1024}")
    A(f"s_cbranch_vccnz L_rf2_{sfx}")
    if wv: smf(head[2][0], mslot(0), head[2][1])
    A(f"ds_write_b128 v{L16}, {v(lreg(1), 4)} offset:{L_MEM + STG[1] * 1024}")
    tr('b1')
    D.q = ['pre'] + ['mw'] * 2
    D.wait('pre')
    KE = EXP.get('kearly', 0)
    loc = {('m', 8): mslot(8), ('m', 7): mslot(7), ('m', 6): mslot(6)}
    NSL = 3 if (nkv and wv == 3) else 2
    def sread(tag, r):
        loc[tag] = r
        if tag[0] == 'q': D.op(f"ds_read_b128 {v(r, 4)}, v{QR} offset:{tag[1] * 64}", tag)
        elif tag[0] == 'km': D.op(f"ds_read_b128 {v(r, 4)}, v{QR} offset:{KL0 + tag[1] * 64}", tag)
        elif tag[0] == 'kx': D.op(f"ds_read_b128 {v(r, 4)}, v{L16} offset:{L_KX + (tag[1] * 4 + tag[2]) * 1024}", tag)
        elif tag[0] == 'm': mem_read(ORD[tag[1]], r, tag)
        elif tag[0] == 'vx':
            if tag[1] == 0: A(f"s_waitcnt vmcnt({NSL})")
            D.op(f"ds_read_b128 {v(r, 4)}, v{T16} offset:{L_VX + tag[1] * 4096}", tag)
    def smf(acc, ar, w): A(f"{SMF} {v(acc, 4)}, {v(ar, 4)}, {u(w, 8)}, v{IDX}")
    V0S = 2 if KE else 3
    BP = EXP.get('bp', 5)
    pos = (1, 2, 4, 5, 7, 9, 10, 13) if KE else (BP + 1, BP + 2, BP + 3, BP + 4, 11, 13, 14, 18)
    ext = {pos[0]: f"global_load_lds_dwordx4 v{L16}, s[32:33]",
           pos[1]: f"global_load_lds_dwordx4 v{L16}, s[32:33] offset:1024\ns_mov_b32 m0, s63",
           pos[2]: f"global_load_lds_dwordx4 v{L16}, s[86:87]\ns_add_u32 m0, s63, 3072",
           pos[3]: f"global_load_lds_dwordx4 v{L16}, s[86:87] offset:1024\ns_mov_b32 m0, {L_JUNK}",
           pos[4]: f"global_store_dwordx4 v{T16}, {v(ACCV0, 4)}, s[38:39] sc1",
           pos[5]: f"v_lshlrev_b32 v{ACCV0}, 2, v{T16}\nv_mov_b64 {v(ACCV0 + 2, 2)}, 0",
           pos[6]: f"global_load_lds_dword v{ACCV0}, s[58:59]\nv_mov_b64 {v(ACCV0, 2)}, 0\ns_mov_b32 m0, {L_QL + 256}"}
    if P3:
        V0S = 1 if wv == 0 else 0
        BP = EXP.get('bp3', 6) - V0S
        if SP: BP = EXP.get('bps', 3)
        r2 = MRING + 8
        pos = tuple(BP + x for x in [(1, 2, 3, 4, 6, 99, 8, 12), (-2, -1, 1, 3, 5, 99, 7, 11), (1, 3, 5, 7, 9, 99, 11, 14), (-2, -1, 2, 5, 8, 99, 10, 13), (1, 2, 4, 6, 9, 99, 11, 14)][EXP.get('pp', 0)])
        ext = {pos[0]: f"global_load_lds_dwordx4 v{L16}, s[32:33]",
               pos[1]: f"global_load_lds_dwordx4 v{L16}, s[32:33] offset:1024\ns_mov_b32 m0, s63",
               pos[2]: f"global_load_lds_dwordx4 v{L16}, s[86:87]\ns_add_u32 m0, s63, 3072",
               pos[3]: f"global_load_lds_dwordx4 v{L16}, s[86:87] offset:1024\ns_mov_b32 m0, {L_JUNK}",
               pos[4]: f"global_store_dwordx4 v{T16}, {v(r2, 4)}, s[38:39] sc1",
               pos[6]: f"v_lshlrev_b32 v{r2}, 2, v{T16}\nglobal_load_lds_dword v{r2}, s[58:59]\ns_mov_b32 m0, {L_QL + 256}"}
        if wv == 0: ext[2] = ext.get(2, "") + f"\nv_mov_b64 {v(ACCV0, 2)}, 0\nv_mov_b64 {v(ACCV0 + 2, 2)}, 0"
    if nkv and wv == 3: ext[pos[7]] = f"s_mov_b64 exec, 1\nglobal_load_lds_dwordx4 v{L16}, s[18:19] sc1\ns_mov_b64 exec, -1"
    sb_ = Asm()
    sb_("s_lshl_b32 s13, s24, 17")
    add64(sb_, 38, 50, "s13")
    sb_("s_add_u32 s25, s24, 2")
    sb_(f"s_min_u32 s25, s25, {nsteps - 1}")
    sb_("s_lshl_b32 s13, s25, 19")
    add64(sb_, 58, 88, "s13")
    add64(sb_, 86, 86, 1 << 19)
    add64(sb_, 32, 32, 1 << 19)
    add64(sb_, 14, 30, "s34")
    add64(sb_, 60, 30, "s35")
    add64(sb_, 20, 14, 4096)
    if wv == 0: add64(sb_, 16, 14, 8192)
    sb_("s_and_b32 s12, s24, 1")
    sb_("s_xor_b32 s13, s12, 1")
    sb_("s_xor_b32 s47, s13, s40")
    sb_("s_add_u32 s24, s24, 1")
    sb_("s_mov_b32 s35, s34")
    sb_("s_add_u32 s34, s34, 9216")
    sb_("s_cmp_eq_u32 s34, 27648")
    sb_("s_cselect_b32 s34, 0, s34")
    sb_("s_mov_b32 s55, 0")
    book = [i.text.strip() for i in sb_.ins]
    sq = []
    cnt_ = [0]
    held = []
    side = []
    class Defer:
        def op(self, text, tag=None): side.append((text, tag))
    def flush_until(tag):
        while any(t == tag for _, t in side):
            x = side.pop(0)
            D.op(*x) if x[0].startswith('ds_') else A(x[0])
    GAPN = EXP.get('gapn', 2)
    def smfs(acc, ar, w, need=()):
        for t in need:
            flush_until(t); D.wait(t)
        smf(acc, ar, w)
        cnt_[0] += 1
    def gap():
        n = 0
        if cnt_[0] == 1 and len(STG) == 3:
            j = 2
            D.op(f"ds_write_b128 v{L16}, {v(lreg(j), 4)} offset:{L_MEM + STG[j] * 1024}", 'mw')
            n += 1
        if cnt_[0] == BP:
            D.wait('mw')
            A("s_barrier")
            if OWN == 2: mem_read(ORD[2], mslot(2), ('m', 2))
            side.extend(held); held.clear()
            n = GAPN if OWN == 2 else 1
        if cnt_[0] in ext:
            A(ext[cnt_[0]]); n += 1
            if P3 and cnt_[0] == pos[6]: mem_read(ORD[4], r2, ('m', 4)); n += 1
        while side and n < GAPN:
            x = side.pop(0)
            D.op(*x) if x[0].startswith('ds_') else A(x[0])
            n += 1
        while cnt_[0] > pos[7] and sq and n < GAPN:
            A(sq.pop(0)); n += 1
    def d_wk(i):
        off = wk_off(LW[i]); base = (off // 65536) * 65536
        if base and cur[0] != base:
            side.append((f"v_add_u32 v{WKB}, {base:#x}, v{T16}", None)); cur[0] = base
        ar = T16 if base == 0 else WKB
        side.append((f"ds_read_b128 {v(wslot(i), 4)}, v{ar} offset:{off - base}", None))
        side.append((f"ds_read_b128 {v(wslot(i) + 4, 4)}, v{ar} offset:{off - base + 4096}", ('wk', i)))
    def d_kx(kt, j, r):
        loc[('kx', kt, j)] = r
        side.append((f"ds_read_b128 {v(r, 4)}, v{L16} offset:{L_KX + (kt * 4 + j) * 1024}", ('kx', kt, j)))
    cur[0] = 0
    for p in range(8):
        ks = ORD[p]
        m = mslot(p)
        if not (SP and p == 0): smfs(ACCQ, m, WQ(ks, 0), [('m', p)]); gap()
        for b in range(2):
            n = 2 * p + b
            if n in SW: smfs(ACCK + 4 * b, m, wo_reg(SW[n]))
            else:
                i = LW.index(n)
                smfs(ACCK + 4 * b, m, wslot(i), [('wk', i)])
                if i + 3 < len(LW): d_wk(i + 3)
            if P3:
                nx = {1: 3, 2: 5, 3: 6, 4: 7, 5: 8}.get(p)
                if b == 1 and nx: side.insert(0 if nx == 3 else len(side), (f"ds_read_b128 {v(mslot(nx), 4)}, v{L16} offset:{L_MEM + ORD[nx] * 1024}", ('m', nx)))
            elif b == 1 and p + 3 < 9:
                (held if cnt_[0] < BP else side).append((f"ds_read_b128 {v(mslot(p), 4)}, v{L16} offset:{L_MEM + ORD[p + 3] * 1024}", ('m', p + 3)))
            if n == 12:
                side.append((f"s_waitcnt vmcnt({NSL + 2})", None))
                side.append(("s_barrier", None))
            if n == 13: d_kx(0, 0, 48); d_kx(1, 0, 52)
            if n == 14: d_kx(0, 1, 56); d_kx(1, 1, 60)
            gap()
            if b == 0 and not (SP and p == 0):
                smfs(ACCQ + 4, m, WQ(ks, 1)); gap()
                if p >= V0S: smfs(ACCV0, m, WV(ks, 0)); gap()
        tr(f'a{p+1}')
    assert not side, side
    sread(('m', 5), 44)
    D.wait(('m', 8))
    m = mslot(8); ks = ORD[8]
    smfs(ACCQ, m, WQ(ks, 0)); gap(); smfs(ACCQ + 4, m, WQ(ks, 1))
    for o in sq: A(o)
    A(f"v_mov_b64 {v(ACCV1, 2)}, 0")
    smf(ACCK, m, WK8(0))
    A(f"v_mov_b64 {v(ACCV1 + 2, 2)}, 0")
    smf(ACCK + 4, m, WK8(1))
    A(f"v_mov_b32 v{TMPC}, s47")
    smf(ACCV0, m, WV(ks, 0))
    tr('a9')
    A(f"s_cmp_eq_u32 s24, {nsteps - 1}")
    A(f"s_cbranch_scc1 L_rlast_{sfx}")
    fill = [(p, 1) for p in range(8, V0S - 1, -1)]
    for p in range(V0S - 1, -1, -1): fill += [(p, 1), (p, 0)]
    def filler(cnt=1):
        for _ in range(cnt):
            if fill:
                p, b = fill.pop(0)
                D.wait(('m', p))
                smf(ACCV1 if b else ACCV0, loc[('m', p)], WV(ORD[p], b))
    for acc, lo in ((ACCQ, 0), (ACCK, KL0)):
        for b in range(2):
            A(f"v_add_f32 v{acc+4*b}, v{acc+4*b}, v{acc+4*b+1}")
            A(f"v_add_f32 v{acc+4*b+2}, v{acc+4*b+2}, v{acc+4*b+3}")
        A(f"v_cvt_pk_bf16_f32 v{acc+1}, v{acc}, v{acc+4}")
        A(f"v_cvt_pk_bf16_f32 v{acc+3}, v{acc+2}, v{acc+6}")
        if lo == 0: D.op(f"ds_write2_b32 v{QKW}, v{acc+1}, v{acc+3} offset0:0 offset1:{QSTR // 4}")
        else:
            D.op(f"ds_write_b32 v{QKW}, v{acc+1} offset:{lo}")
            D.op(f"ds_write_b32 v{QKW}, v{acc+3} offset:{lo + QSTR}", 'qkw')
    tr('qkw')
    filler(1)
    sread(('m', 4), 16); sread(('m', 3), 24); sread(('m', 2), mslot(8))
    filler(3)
    D.wait('qkw')
    A("s_barrier")
    tr('b2')
    T0, T1, T2 = 12, 16, 20
    sread(('q', 0), mslot(7)); sread(('km', 0), mslot(6)); sread(('q', 1), 44)
    filler(2)
    sread(('km', 1), 24)
    filler(1 if V0S < 3 else 2)
    sread(('q', 2), mslot(8))
    pend = [('kx', 0, 2), ('kx', 1, 2), ('km', 2), ('q', 3), ('kx', 0, 3), ('kx', 1, 3), ('km', 3),
            ('m', 1), ('m', 0), ('vx', 0), ('vx', 1)]
    free = []
    for j in range(4):
        for T, tag in ((T0, ('kx', 0, j)), (T1, ('kx', 1, j)), (T2, ('km', j))):
            D.wait(tag); D.wait(('q', j))
            A(f"{MF32} {v(T, 4)}, {v(loc[tag], 4)}, {v(loc[('q', j)], 4)}, {v(T, 4) if j else 0}")
            if pend: sread(pend.pop(0), loc[tag])
            else: free.append(loc[tag])
        if pend: sread(pend.pop(0), loc[('q', j)])
        else: free.append(loc[('q', j)])
    tr('s_done')
    BX, Z, DA, DB = free[0], free[1], free[2], free[3]
    filler(3 if P3 else 2)
    M, TT, SUM = 16, 17, 18
    VMR = 22
    AO = 28
    busy = set()
    for b_ in (BX, Z, DA, DB, loc[('vx', 0)], loc[('vx', 1)], ACCV1, loc[('m', 0)]): busy |= set(range(b_, b_ + 4))
    zq = [r for r in range(AO, AO + 36, 2) if r not in busy]
    late = set(range(DA, DA + 4)) | set(range(DB, DB + 4))
    zm = [r for r in range(AO, AO + 36, 2) if r in busy and r not in late]
    zl = [r for r in range(AO, AO + 36, 2) if r in late]
    MZ = EXP.get('mz', 1)
    PS, PL, WB = 8, 9, 20
    misc = [f"v_lshrrev_b32 v{PL}, 2, v{L16}", f"v_and_b32 v{PS}, 0x300, v{L16}", f"v_bfe_u32 v10, v{L16}, 1, 7", f"v_lshl_or_b32 v{PS}, v{PS}, 4, v10", "v_mov_b64 v[10:11], 0"]
    mok = [False]
    def zero(cnt=1):
        for _ in range(cnt):
            if MZ:
                if mok[0] and misc: A(misc.pop(0))
            elif zq: A(f"v_mov_b64 {v(zq.pop(0), 2)}, 0")
    A(f"v_mov_b32 v{Z+1}, 0")
    A(f"v_mov_b32 v{Z+2}, 0")
    for r in range(4): A(f"v_mov_b32_dpp v{T0+r}, v{T1+r} {IDQ} row_mask:0xf bank_mask:0xc")
    A(f"v_mov_b32_dpp v{T2+2}, v{T2+3} {IDQ} row_mask:0xf bank_mask:0xc")
    A(f"v_mov_b32_dpp v{T2}, v{T2+1} {IDQ} row_mask:0x3 bank_mask:0xc")
    A(f"v_max3_f32 v{M}, v12, v13, v14")
    zero(1)
    A(f"v_mov_b32_dpp v{T2}, v{T2+2} {IDQ} row_mask:0xc bank_mask:0xf")
    A(f"v_max3_f32 v{M}, v{M}, v15, v20")
    tr('max0')
    if P3:
        A(f"v_add_f32 v{ACCV1}, v{ACCV1}, v{ACCV1+1}")
        A(f"v_add_f32 v{ACCV1+2}, v{ACCV1+2}, v{ACCV1+3}")
    else: filler(1); zero(1)
    A(f"v_max_f32_dpp v{M}, v{M}, v{M} {ROR8}")
    A(f"v_mov_b32 v{TT}, v{M}")
    if P3:
        A(f"v_add_f32 v{ACCV0}, v{ACCV0}, v{ACCV0+1}")
        A(f"v_add_f32 v{ACCV0+2}, v{ACCV0+2}, v{ACCV0+3}")
    else: filler(9); zero(1)
    assert not fill
    A(f"v_permlane16_swap_b32 v{M}, v{TT}")
    A(f"v_max_f32 v{M}, v{M}, v{TT}")
    A(f"v_mov_b32 v{TT}, v{M}")
    if P3:
        A(f"v_cvt_pk_bf16_f32 v{VMR}, v{ACCV0}, v{ACCV0+2}")
        A(f"v_cvt_pk_bf16_f32 v{VMR+1}, v{ACCV1}, v{ACCV1+2}")
    else: zero(2)
    A(f"v_permlane32_swap_b32 v{M}, v{TT}")
    A(f"v_max_f32 v{M}, v{M}, v{TT}")
    A(f"v_mul_f32 v{M}, s46, v{M}")
    tr('max1')
    for e in (12, 13, 14, 15, 20): A(f"v_fma_f32 v{e}, v{e}, s46, -v{M}")
    for e in (12, 13, 14, 15): A(f"v_exp_f32 v{e}, v{e}")
    A(f"v_cvt_pk_bf16_f32 v{BX}, v12, v13")
    A(f"v_cvt_pk_bf16_f32 v{BX+1}, v14, v15")
    A("v_exp_f32 v20, v20")
    A(f"v_mov_b32_dpp v{BX+2}, v{BX} {ROR8}")
    A(f"v_mov_b32_dpp v{BX+3}, v{BX+1} {ROR8}")
    A(f"v_mov_b32_dpp v21, v20 {ROR8}")
    if P3:
        A(f"v_add_f32 v{SUM}, v12, v13")
        D.wait(('vx', 1))
        tr('pv0')
        A(f"{MF32} {v(DA, 4)}, {v(loc[('vx', 0)], 4)}, {v(BX, 4)}, 0")
        A(f"v_cvt_pk_bf16_f32 v{Z}, v20, v21")
        A(f"v_add_f32 v{TT}, v14, v15")
        A(f"{MF32} {v(DB, 4)}, {v(loc[('vx', 1)], 4)}, {v(BX, 4)}, 0")
        A(f"v_add_f32 v{SUM}, v{SUM}, v20")
        A(f"v_add_f32 v{SUM}, v{SUM}, v{TT}")
        A(f"v_cvt_pk_bf16_f32 v{Z+3}, v20, v21")
        A(f"{MF16} {v(DA, 4)}, {v(VMR, 2)}, {v(Z, 2)}, {v(DA, 4)}")
        A(f"v_add_f32_dpp v{SUM}, v{SUM}, v{SUM} {ROR8}")
        A(f"v_mov_b32 v{TT}, v{SUM}")
        A(f"{MF16} {v(DB, 4)}, {v(VMR, 2)}, {v(Z + 2, 2)}, {v(DB, 4)}")
        tr('pv1')
        zq += zm
        zq.sort()
        mok[0] = True
        zero(1)
        A(f"v_permlane16_swap_b32 v{SUM}, v{TT}")
        A(f"v_add_f32 v{SUM}, v{SUM}, v{TT}")
        A(f"v_mov_b32 v{TT}, v{SUM}")
        zero(2)
        A(f"v_permlane32_swap_b32 v{SUM}, v{TT}")
        A(f"v_add_f32 v{SUM}, v{SUM}, v{TT}")
    else:
        A(f"v_add_f32 v{ACCV0}, v{ACCV0}, v{ACCV0+1}")
        D.wait(('vx', 1))
        tr('pv0')
        A(f"{MF32} {v(DA, 4)}, {v(loc[('vx', 0)], 4)}, {v(BX, 4)}, 0")
        A(f"v_add_f32 v{ACCV0+2}, v{ACCV0+2}, v{ACCV0+3}")
        A(f"v_add_f32 v{ACCV1}, v{ACCV1}, v{ACCV1+1}")
        A(f"{MF32} {v(DB, 4)}, {v(loc[('vx', 1)], 4)}, {v(BX, 4)}, 0")
        A(f"v_add_f32 v{ACCV1+2}, v{ACCV1+2}, v{ACCV1+3}")
        A(f"v_cvt_pk_bf16_f32 v{VMR}, v{ACCV0}, v{ACCV0+2}")
        A(f"v_cvt_pk_bf16_f32 v{VMR+1}, v{ACCV1}, v{ACCV1+2}")
        A(f"v_cvt_pk_bf16_f32 v{Z}, v20, v21")
        A(f"v_cvt_pk_bf16_f32 v{Z+3}, v20, v21")
        A(f"v_add_f32 v{SUM}, v12, v13")
        A(f"{MF16} {v(DA, 4)}, {v(VMR, 2)}, {v(Z, 2)}, {v(DA, 4)}")
        A(f"v_add_f32 v{TT}, v14, v15")
        A(f"v_add_f32 v{SUM}, v{SUM}, v20")
        A(f"{MF16} {v(DB, 4)}, {v(VMR, 2)}, {v(Z + 2, 2)}, {v(DB, 4)}")
        tr('pv1')
        A(f"v_add_f32 v{SUM}, v{SUM}, v{TT}")
        zq += zm
        zero(2)
        A(f"v_add_f32_dpp v{SUM}, v{SUM}, v{SUM} {ROR8}")
        A(f"v_mov_b32 v{TT}, v{SUM}")
        zero(2)
        A(f"v_permlane16_swap_b32 v{SUM}, v{TT}")
        A(f"v_add_f32 v{SUM}, v{SUM}, v{TT}")
        A(f"v_mov_b32 v{TT}, v{SUM}")
        zero(2)
        A(f"v_permlane32_swap_b32 v{SUM}, v{TT}")
        A(f"v_add_f32 v{SUM}, v{SUM}, v{TT}")
    A(f"v_rcp_f32 v{SUM}, v{SUM}")
    tr('rcp')
    zero(1)
    for k, Dx in enumerate((DA, DB)):
        for r in (0, 2): A(f"v_pk_mul_f32 {v(Dx + r, 2)}, {v(Dx + r, 2)}, {v(SUM, 2)} op_sel_hi:[1,0]")
    A(f"v_cvt_pk_bf16_f32 v12, v{DA}, v{DA+1}")
    A(f"v_cvt_pk_bf16_f32 v13, v{DA+2}, v{DA+3}")
    A(f"v_cvt_pk_bf16_f32 v14, v{DB}, v{DB+1}")
    A(f"v_cvt_pk_bf16_f32 v15, v{DB+2}, v{DB+3}")
    D.op(f"ds_write_b128 v{OW}, v[12:15]")
    tr('ow')
    zq += zl
    zq.sort()
    if MZ:
        for o in misc: A(o)
        A("v_mfma_f32_32x32x8_bf16 v[28:43], v[10:11], v[10:11], 0")
        A("v_mfma_f32_32x32x8_bf16 v[44:59], v[10:11], v[10:11], 0")
        post = ["v_mov_b64 v[60:61], 0", "v_mov_b64 v[62:63], 0"]
    else:
        post = [f"v_mov_b64 {v(r, 2)}, 0" for r in zq] + misc[:4]
        for _ in range(EXP.get('zb', 6)): A(post.pop(0))
    D.waitall()
    A("s_barrier")
    tr('b3')
    OF = 12
    D.op(f"ds_read_b128 {v(OF, 4)}, v{MEMR} offset:{L_OL}", 'o0')
    D.op(f"ds_read_b128 {v(OF + 4, 4)}, v{MEMR} offset:{L_OL + 1024}", 'o1')
    A(post.pop(0))
    D.op(f"ds_write2_b32 v{QKW}, v{VMR}, v{VMR+1} offset0:0 offset1:{QSTR // 4}")
    cur[0] = 0
    wq_ = sorted(SWO)
    def wo_next():
        if wq_:
            k_ = wq_.pop(0)
            lds_frag(SWO[k_], WB, ('wo', k_), areg=11)
    wo_next()
    for _ in range(EXP.get('za', 3)):
        if post: A(post.pop(0))
    def acc(t): return AO + 4 * WORD.index(t)
    def wpost(t):
        c = acc(t)
        o = [f"v_add_f32 v{c}, v{c}, v{c+1}", f"v_add_f32 v{c+1}, v{c+2}, v{c+3}"]
        if t == 8:
            o.append(f"v_cvt_pk_bf16_f32 v{c+2}, v{c}, v{c+1}")
            o.append(f"v_bfi_b32 v{c+2}, 1, v{TMPC}, v{c+2}")
            o.append(f"global_store_dword v{PL}, v{c+2}, s[42:43] {st}")
        elif t & 1:
            p = acc(t - 1); sb = 26 if t == 1 else 88 + 2 * (t // 2)
            o.append(f"v_cvt_pk_bf16_f32 v{c+2}, v{p}, v{c}")
            o.append(f"v_cvt_pk_bf16_f32 v{c+3}, v{p+1}, v{c+1}")
            o.append(f"v_bfi_b32 v{c+2}, 1, v{TMPC}, v{c+2}")
            o.append(f"global_store_dwordx2 v{PS}, {v(c + 2, 2)}, s[{sb}:{sb+1}] {st}")
        return o
    D.wait('o0')
    tr('wo0')
    seq = [(t, k2) for t in WORD for k2 in range(2)]
    if EXP.get('il', 0):
        seq = [(8, 0), (0, 0), (8, 1), (1, 0), (0, 1)]
        for t in range(1, 7): seq += [(t + 1, 0), (t, 1)]
        seq += [(7, 1)]
        assert len(seq) == 18 and not SWO
    vq = list(post); since = {}
    slots = 0
    for k, (t, k2) in enumerate(seq):
        if k2 == 1: D.wait('o1')
        if k in SWO:
            D.wait(('wo', k))
            smf(acc(t), OF + 4 * k2, WB)
            wo_next()
            slots += 2
        else: smf(acc(t), OF + 4 * k2, WO(t, k2))
        slots += 1
        if k2 == 1: since[t] = slots
        em = 0
        for _ in range(EXP.get('wv', 2) + (1 if len(vq) > EXP.get('wq', 1) else 0)):
            for tt_ in list(since):
                if slots - since[tt_] >= EXP.get('wlag', 8): vq += wpost(tt_); del since[tt_]
            if vq: A(vq.pop(0)); slots += 1; em += 1
        if em == 0 and since and EXP.get('wn', 2):
            A(f"s_nop {EXP.get('wn', 2) - 1}"); slots += EXP.get('wn', 2)
    tr('wo1')
    for tt_ in list(since): vq += wpost(tt_)
    for o in vq: A(o)
    tr('wo2')
    D.q = []
    SEL, RD, MS, LA = 12, 16, 8, 9
    LDB = (24, 40)
    kind = (1, 1, 2, 0)[wv]
    lab = f"L_rp1_{sfx}"
    LD = 24
    def wkpre():
        for o in book: A(o)
        for n in sorted(range(3), key=wslot): wk_read(n)
    if kind:
        def loads():
            if kind == 2: A(f"global_load_dwordx4 {v(LD, 4)}, v{LA}, s[28:29] {LF}")
            else:
                for j in range(4): A(f"global_load_dwordx4 {v(LD + 4 * j, 4)}, v{L16}, s[28:29] offset:{j * 1024} {LF}")
        P = Asm()
        if kind == 1:
            P(f"v_bfe_u32 v20, v{L16}, 4, 1")
            P(f"v_bfe_u32 v21, v{L16}, 5, 1")
            P(f"v_bfe_u32 v22, v{L16}, 6, 1")
            P("v_lshl_add_u32 v22, v21, 1, v22")
        else:
            P(f"v_bfe_u32 v20, v{L16}, 6, 1")
            P(f"v_bfe_u32 v22, v{L16}, 4, 2")
            P(f"v_bfe_u32 v23, v{L16}, 8, 1")
            P("v_xor_b32 v23, s12, v23")
        P("v_lshlrev_b32 v20, 4, v20")
        P("v_mov_b32 v21, 0x3f80")
        P("v_lshlrev_b32 v21, v20, v21")
        m_ = Asm(); ms_calc(m_, kind, MS, 10); mq = [i.text.strip() for i in m_.ins]
        for j in range(4):
            P(f"v_cmp_eq_u32 vcc, {j}, v22")
            for _ in range(2):
                if mq: P(mq.pop(0))
            P(f"v_cndmask_b32 v{SEL+j}, 0, v21, vcc")
        for o in mq: P(o)
        P("v_mov_b64 v[10:11], -1")
        pq = [i.text.strip() for i in P.ins]
        if wv == 0:
            wkpre()
            A(f"s_waitcnt vmcnt({EXP.get('k0', 1)})")
            tr('p1s'); loads()
            for o in pq: A(o)
        elif wv == 1:
            wkpre()
            tp = EXP.get('tp', 3)
            A(f"s_waitcnt vmcnt({EXP.get('k1', 0)})")
            for o in pq[:tp]: A(o)
            tr('p1s'); loads()
            for o in pq[tp:]: A(o)
        else:
            lane_const(A, LA, lambda x: (x >> 5) * 256 + ((x >> 4) & 1) * 16, src=L16, nbits=10, tmp=10)
            tr('p1s'); loads()
            wkpre()
            for o in pq: A(o)
        A.label(lab)
        if kind == 1:
            for j in range(4):
                A(f"s_waitcnt vmcnt({3 - j})")
                tr(f'p1w{j}')
                A(f"{MF32} {v(RD, 4)}, {v(SEL, 4)}, {v(LD + 4 * j, 4)}, {v(RD, 4) if j else 0}")
                A(f"v_bitop3_b32 v{20 + j}, v{LD+4*j}, v{LD+4*j+2}, {'s13' if j & 1 else 's12'} bitop3:0x7e")
                if j == 2: A("v_or3_b32 v20, v20, v21, v22")
            A("v_bitop3_b32 v20, v20, v23, 1 bitop3:0xa8")
        else:
            A("s_waitcnt vmcnt(0)")
            A(f"{MF32} {v(RD, 4)}, {v(SEL, 4)}, {v(LD, 4)}, 0")
            A(f"v_bitop3_b32 v20, v{LD}, v{LD+1}, v23 bitop3:0x7e")
            A(f"v_bitop3_b32 v21, v{LD+2}, v{LD+3}, v23 bitop3:0x7e")
            A("v_bitop3_b32 v20, v20, v21, 1 bitop3:0xa8")
        A("v_cmp_ne_u32 vcc, 0, v20")
        for r in range(4): A(f"v_add_f32_dpp v{RD+r}, v{RD+r}, v{RD+r} {ROR8}")
        if kind == 2:
            for r in range(4): A(f"v_add_f32_dpp v{RD+r}, v{RD+r}, v{RD+r} row_ror:4 row_mask:0xf bank_mask:0xf")
            for r in range(4): A(f"v_add_f32_dpp v{RD+r}, v{RD+r}, v{RD+r} quad_perm:[2,3,0,1] row_mask:0xf bank_mask:0xf")
        A(f"v_cvt_pk_bf16_f32 v20, v{RD}, v{RD+1}")
        A(f"v_cvt_pk_bf16_f32 v21, v{RD+2}, v{RD+3}")
        A("s_mov_b64 exec, s[44:45]")
        A(f"s_cbranch_vccnz {lab}_rt")
        tr('p1ok')
        A(f"global_store_dwordx2 v{MS}, v[20:21], s[14:15] {st}")
        A(f"global_store_dwordx2 v{MS}, v[10:11], s[60:61] {st}")
        A("s_mov_b64 exec, -1")
        if EXP.get('rt'): A("s_add_u32 s76, s76, s55")
    else:
        wkpre()
        if nkv:
            A(f"v_mov_b32 v28, {L_QL + 256}")
            A("s_waitcnt vmcnt(5)")
            A("ds_read_b128 v[28:31], v28")
            A("s_waitcnt lgkmcnt(0)")
            A("v_min3_u32 v28, v28, v29, v30")
            A("v_min_u32 v28, v28, v31")
            A("v_readfirstlane_b32 s12, v28")
            A("s_max_u32 s54, s54, s12")
        kv_wait(A, "s25", nkv, kvg0, 28, XIT)
    A("s_barrier")
    tr('b4')
    A("s_mov_b32 s55, 0")
    def loads2():
        for j, ks in enumerate(LDL):
            if ks == 8: A(f"global_load_dwordx4 {v(lreg(j), 4)}, v{L16}, s[16:17] {LF}")
            else: A(f"global_load_dwordx4 {v(lreg(j), 4)}, v{L16}, s[20:21] offset:{(ks - 4) * 1024} {LF}")
    Z2 = EXP.get('z2', 8)
    spill_read(MRING + 8 if P3 else ACCV0)
    zero_qk(12, 12 + 2 * Z2)
    tr('p2s')
    loads2()
    zero_qk(12 + 2 * Z2, 28)
    if P3 and wv: zero_qk(ACCV0, ACCV0 + 4)
    A("s_mov_b32 m0, s62")
    A(f"s_branch {f'L_rp2_{sfx}' if not TR else f'L_rp2ok_{sfx}'}")
    A.label(f"L_rf2_{sfx}")
    if EXP.get('rt'): A("s_add_u32 s77, s77, 1")
    A("s_mov_b64 exec, vcc")
    loads2()
    A("s_mov_b64 exec, -1")
    if SP: zero_qk(ACCQ, ACCQ + 8)
    A("s_add_u32 s55, s55, 1")
    A(f"s_cmp_gt_u32 s55, {SPIN_MAX}")
    A(f"s_cbranch_scc0 L_rp2_{sfx}")
    A(f"s_branch {XIT}")
    if kind:
        A.label(lab + "_rt")
        A("s_mov_b64 exec, vcc")
        loads()
        A("s_mov_b64 exec, -1")
        backoff(A, 55)
        A("s_add_u32 s55, s55, 1")
        A(f"s_cmp_gt_u32 s55, {SPIN_MAX}")
        A(f"s_cbranch_scc0 {lab}")
        A(f"s_branch {XIT}")
    A.label(f"L_rp2ok_{sfx}")
    tr('p2ok')
    if TR:
        A("s_cmp_lg_u32 s24, 41")
        A(f"s_cbranch_scc1 L_rp2_{sfx}")
        A("s_waitcnt lgkmcnt(0)")
        A("s_lshl_b32 s12, s9, 2")
        A("s_add_u32 s12, s12, s10")
        A("s_lshl_b32 s12, s12, 6")
        A(f"s_add_u32 s12, s12, {WS_STAMP + 16384}")
        A(f"v_mov_b32 v{TMPC}, s12")
        for q in range(11):
            A(f"v_mov_b32 v63, s{64 + 2 * q}")
            A(f"global_store_dword v{TMPC}, v63, s[4:5] offset:{4 * q}")
            A("s_waitcnt vmcnt(0)")
    A(f"s_branch L_rp2_{sfx}")
    A.label(f"L_rlast_{sfx}")
    A("s_lshl_b32 s13, s24, 17")
    add64(A, 38, 50, "s13")
    D.waitall()
    lr = {8: mslot(8), 7: mslot(7), 6: mslot(6), 5: 44, 4: 48, 3: 52, 2: 56, 1: 60, 0: 12}
    for p in (4, 3, 2, 1, 0): mem_read(ORD[p], lr[p], ('lm', p))
    for p in range(8, -1, -1):
        D.wait(('lm', p))
        smf(ACCV1, lr[p], WV(ORD[p], 1))
        if p < V0S: smf(ACCV0, lr[p], WV(ORD[p], 0))
    for b in range(2):
        A(f"v_add_f32 v{ACCK+4*b}, v{ACCK+4*b}, v{ACCK+4*b+1}")
        A(f"v_add_f32 v{ACCK+4*b+2}, v{ACCK+4*b+2}, v{ACCK+4*b+3}")
    A(f"v_cvt_pk_bf16_f32 v16, v{ACCK}, v{ACCK+4}")
    A(f"v_cvt_pk_bf16_f32 v17, v{ACCK+2}, v{ACCK+6}")
    for a_ in (ACCV1, ACCV0):
        A(f"v_add_f32 v{a_}, v{a_}, v{a_+1}")
        A(f"v_add_f32 v{a_+2}, v{a_+2}, v{a_+3}")
    A(f"v_cvt_pk_bf16_f32 v18, v{ACCV0}, v{ACCV0+2}")
    A(f"v_cvt_pk_bf16_f32 v19, v{ACCV1}, v{ACCV1+2}")
    A(f"global_store_dwordx4 v{T16}, v[16:19], s[38:39] sc1")
    tl(A, 4)
    if EXP.get('rt'):
        A("s_memrealtime s[82:83]")
        A("s_memtime s[98:99]")
        A("s_waitcnt lgkmcnt(0)")
        A("s_sub_u32 s75, s98, s96")
        A("s_sub_u32 s78, s80, s84")
        A("s_sub_u32 s79, s82, s80")
        A("s_lshl_b32 s12, s9, 2")
        A("s_add_u32 s12, s12, s10")
        A("s_lshl_b32 s12, s12, 6")
        A(f"s_add_u32 s12, s12, {WS_STAMP}")
        A("v_mov_b32 v12, s12")
        for q in range(4):
            for r in range(4): A(f"v_mov_b32 v{16+r}, s{64 + 4 * q + r}")
            A(f"global_store_dwordx4 v12, v[16:19], s[4:5] offset:{16 * q}")
            A("s_waitcnt vmcnt(0)")
    A.label(XIT)
    A("s_endpgm")

def role_r(A, restart, nkv, kvg0):
    if EXP.get('rt'):
        A("s_memrealtime s[84:85]")
        A("s_waitcnt lgkmcnt(0)")
    r_setup(A)
    r_swap(A)
    tl(A, 1)
    A("s_waitcnt vmcnt(0)")
    A("s_mov_b32 s54, 0")
    A("v_min3_u32 v6, v8, v9, v10")
    A("v_min_u32 v6, v6, v11")
    mode_check(A, tv=12, pre=4)
    r_consts(A)
    r_pro(A, nkv, kvg0)
    A("s_cmp_eq_u32 s11, 0")
    A("s_cbranch_scc1 L_r_slow")
    for fast in (True, False):
        t = 'f' if fast else 's'
        if not fast: A.label("L_r_slow")
        for w in range(1, 4):
            A(f"s_cmp_eq_u32 s10, {w}")
            A(f"s_cbranch_scc1 L_rent_{t}{w}")
        for w in range(4):
            A.label(f"L_rent_{t}{w}")
            r_main(A, fast, w, nkv, kvg0)
```

```python
from asmlib import *

KA_X, KA_MEM0, KA_WQ, KA_WK, KA_WV, KA_WO, KA_SEG, KA_BX, KA_WG, KA_WU, KA_WD, KA_C, KA_WMOD, KA_OUT, KA_DBG, KA_WS = [8 * i for i in range(16)]

WS_MOD   = 0x0
WS_KVPROG = 0x10000
WS_RPROG = 0x18000
WS_H2FLAG = 0x1A000
WS_XF    = 0x1C000
WS_HINT  = 0x1D000
WS_STAMP = 0x20000
WS_H     = 0x100000
WS_H2    = 0x400000
WS_X1    = 0x700000
WS_KV    = 0x1000000
WS_KVM   = 0x3000000
WS_RP    = 0x3A00000
WS_RM    = 0x3B00000
WS_XP    = 0x4000000
RP_SLOT = 72 * 32 * 128
XP_SLOT = 32 * 32 * 2304
SEG_H = 36864

DBG_TICKET = 0
DBG_CLR = 8
DBG_KCLR = 41
DBG_RLD = 42
DBG_KLD = 43
DBG_MODCNT = 8
DBG_MOD1 = 40
DBG_ERR = 40

S_WS = 4
S_DBG = 6
S_GRP, S_MEM, S_WAVE, S_FAST = 8, 9, 10, 11
SPIN_MAX = 100000

class Lds:
    def __init__(self, A):
        self.A = A; self.q = []
    def op(self, text, tag=None):
        self.A(text); self.q.append(tag)
    def wait(self, tag):
        if tag not in self.q: return
        i = len(self.q) - 1 - self.q[::-1].index(tag)
        n = len(self.q) - 1 - i
        self.A(f"s_waitcnt lgkmcnt({min(n, 15)})")
        if n > 15:
            self.q = self.q[len(self.q) - 15:]
        else:
            self.q = self.q[i + 1:]
    def waitall(self):
        self.A("s_waitcnt lgkmcnt(0)"); self.q = []

def add64(A, dst, src, off):
    A(f"s_add_u32 s{dst}, s{src}, {off}")
    A(f"s_addc_u32 s{dst+1}, s{src+1}, 0")

def arr_word(g): return (g & 3) + 32 * (g >> 2)
def preamble(A, nwg=256):
    A(f"s_cmp_ge_u32 s2, {nwg}")
    A("s_cbranch_scc1 L_exit")
    A(f"s_load_dwordx4 s[4:7], s[0:1], {KA_DBG}")
    if FORCE.get('cpf', 1):
        A("s_getpc_b64 s[14:15]")
        A.label("L_code0")
        A("s_lshr_b32 s12, s2, 3")
        A("s_lshl_b32 s12, s12, 12")
        A("v_lshl_add_u32 v1, v0, 4, s12")
        A("v_min_u32 v1, L_code_end-L_code0-4, v1")
        A("v_and_b32 v2, 3, v0")
        A("v_cmp_eq_u32 vcc, 0, v2")
        A("s_mov_b64 exec, vcc")
        A("global_load_dword v63, v1, s[14:15]")
        A("s_mov_b64 exec, -1")
    A("s_getreg_b32 s3, hwreg(HW_REG_XCC_ID, 0, 4)")
    A("v_lshrrev_b32 v1, 6, v0")
    A("v_readfirstlane_b32 s10, v1")
    A("s_and_b32 s8, s2, 7")
    if FORCE.get('perm'):
        tab = sum(g << (4 * i) for i, g in enumerate(FORCE['perm']))
        A("s_lshl_b32 s8, s8, 2")
        A(f"s_lshr_b32 s8, {tab:#x}, s8")
        A("s_and_b32 s8, s8, 7")
    A("s_lshr_b32 s9, s2, 3")
    A("v_and_b32 v1, 63, v0")
    A("s_waitcnt lgkmcnt(0)")
    A("s_mov_b64 s[12:13], s[4:5]")
    A("s_mov_b64 s[4:5], s[6:7]")
    A("s_mov_b64 s[6:7], s[12:13]")
    l2 = A.newlabel('L_pre')
    A("s_cmp_lg_u32 s10, 3")
    A(f"s_cbranch_scc1 {l2}")
    A("s_lshl_b32 s12, s2, 8")
    A(f"s_add_u32 s12, s12, {WS_KVPROG}")
    A("v_lshl_add_u32 v2, v1, 2, s12")
    A("v_mov_b32 v3, 0")
    A("global_store_dword v2, v3, s[4:5] sc1")
    A(f"s_bfe_u32 s12, s2, {0x10000 if FORCE.get('tm') else 0x10002}")
    A("s_xor_b32 s12, s12, 1")
    for r in range(4): A(f"v_mov_b32 v{4+r}, s12")
    A("s_lshl_b32 s12, s2, 10")
    A(f"s_add_u32 s12, s12, {WS_RP}")
    A("v_lshl_add_u32 v2, v1, 4, s12")
    A("global_store_dwordx4 v2, v[4:7], s[4:5] sc1")
    for r in range(4): A(f"v_mov_b32 v{8+r}, -1")
    l1 = A.newlabel('L_pre1')
    A("s_cmp_ge_u32 s2, 32")
    A(f"s_cbranch_scc1 {l1}")
    A("s_bfe_u32 s12, s2, 0x10001")
    A("s_xor_b32 s12, s12, 1")
    for r in range(4): A(f"v_mov_b32 v{12+r}, s12")
    A("v_add_u32 v3, 0x40000, v2")
    A("global_store_dwordx4 v3, v[12:15], s[4:5] sc1")
    A.label(l1)
    A(f"v_add_u32 v3, {WS_RM - WS_RP}, v2")
    A("global_store_dwordx4 v3, v[8:11], s[4:5] sc1")
    A("s_mul_i32 s12, s3, s3")
    A("s_lshl_b32 s12, s12, 10")
    A("s_add_u32 s12, s12, s3")
    A("s_lshl_b32 s12, s12, 8")
    A("s_add_u32 s12, s12, 1")
    A("v_mov_b32 v3, s12")
    A("s_and_b32 s12, s8, 3")
    A("s_lshr_b32 s13, s8, 2")
    A("s_lshl_b32 s13, s13, 5")
    A("s_add_u32 s12, s12, s13")
    A("s_lshl_b32 s12, s12, 2")
    A("v_mov_b32 v2, s12")
    A("s_waitcnt vmcnt(0)")
    A("s_mov_b64 exec, 1")
    A("global_atomic_add v2, v3, s[6:7] sc1")
    A("s_mov_b64 exec, -1")
    A.label(l2)

def mode_check(A, tv=1, ts=12, force_slow=False, pre=None):
    done = A.newlabel('L_mc_done'); loop = A.newlabel('L_mc')
    lane_const(A, tv, lambda t: arr_word(t & 7) * 4, tmp=tv + 1)
    A(f"s_mov_b32 s{ts}, 0")
    if pre is not None:
        A(f"v_mov_b32 v{tv+1}, v{pre}")
        A(f"v_and_b32 v{tv+2}, 0xff, v{tv+1}")
        A(f"v_cmp_ne_u32 vcc, 32, v{tv+2}")
        A(f"s_cbranch_vccnz {loop}")
        A(f"v_readfirstlane_b32 s54, v{pre+2}")
        A(f"s_branch {done}")
    A.label(loop)
    A(f"global_load_dword v{tv+1}, v{tv}, s[6:7] sc1")
    A(f"s_add_u32 s{ts}, s{ts}, 1")
    A(f"s_cmp_gt_u32 s{ts}, {SPIN_MAX}")
    A(f"s_cbranch_scc1 L_exit")
    A("s_waitcnt vmcnt(0)")
    A(f"v_and_b32 v{tv+2}, 0xff, v{tv+1}")
    A(f"v_cmp_ne_u32 vcc, 32, v{tv+2}")
    A(f"s_cbranch_vccz {done}")
    A(f"v_cmp_lt_u32 vcc, 32, v{tv+2}")
    A("s_cbranch_vccnz L_exit")
    A("s_sleep 24")
    A(f"s_branch {loop}")
    A.label(done)
    A(f"v_readlane_b32 s{ts}, v{tv+1}, s8")
    A(f"s_mul_i32 s{ts+1}, s3, s3")
    A(f"s_lshl_b32 s{ts+1}, s{ts+1}, 10")
    A(f"s_add_u32 s{ts+1}, s{ts+1}, s3")
    A(f"s_lshl_b32 s{ts+1}, s{ts+1}, 8")
    A(f"s_add_u32 s{ts+1}, s{ts+1}, 1")
    A(f"s_lshl_b32 s{ts+1}, s{ts+1}, 5")
    A(f"s_cmp_eq_u32 s{ts}, s{ts+1}")
    A(f"s_cselect_b32 s11, {0 if force_slow or FORCE['slow'] else 1}, 0")

FORCE = {'slow': False}
def counter_arrive(A, word, tv=1):
    l = A.newlabel('L_arr')
    A("s_cmp_lg_u32 s10, 0")
    A(f"s_cbranch_scc1 {l}")
    A(f"v_mov_b32 v{tv}, {word*4}")
    A(f"v_mov_b32 v{tv+1}, 1")
    A("s_mov_b64 exec, 1")
    A(f"global_atomic_add v{tv}, v{tv+1}, s[6:7] sc1")
    A("s_mov_b64 exec, -1")
    A.label(l)

def counter_wait(A, word, count, tv=1, ts=12, sleep=12, one=True):
    loop = A.newlabel('L_cw'); done = A.newlabel('L_cwd')
    if one:
        A("s_cmp_lg_u32 s10, 0")
        A(f"s_cbranch_scc1 {done}")
    A(f"v_mov_b32 v{tv}, {word*4}")
    A(f"s_mov_b32 s{ts}, 0")
    A.label(loop)
    A(f"global_load_dword v{tv+1}, v{tv}, s[6:7] sc1")
    A(f"s_add_u32 s{ts}, s{ts}, 1")
    A(f"s_cmp_gt_u32 s{ts}, {SPIN_MAX}")
    A(f"s_cbranch_scc1 L_exit")
    A("s_waitcnt vmcnt(0)")
    A(f"v_cmp_gt_u32 vcc, {count}, v{tv+1}")
    A(f"s_cbranch_vccz {done}")
    A(f"s_sleep {sleep}")
    A(f"s_branch {loop}")
    A.label(done)
    if one: A("s_barrier")

def lane_const(A, dst, f, src=0, nbits=8, tmp=None, mode=None, acc=False):
    N = 1 << nbits
    f0 = f(0)
    def check(m):
        d = [(f(1 << k) ^ f0) if m == 'xor' else (f(1 << k) - f0) for k in range(nbits)]
        for x in range(N):
            y = f0
            for k in range(nbits):
                if x >> k & 1: y = (y ^ d[k]) if m == 'xor' else y + d[k]
            if y != f(x): return None
        return d
    for m in ([mode] if mode else ['add', 'xor']):
        d = check(m)
        if d is not None: break
    assert d is not None, "function not affine"
    assert tmp is not None and tmp != dst and dst != src
    work = dst
    if acc and m == 'xor':
        work = tmp + 1
    if acc and m == 'add':
        if f0: A(f"v_add_u32 v{dst}, {f0 & 0xffffffff:#x}, v{dst}")
    else:
        A(f"v_mov_b32 v{work}, {f0 & 0xffffffff:#x}")
    k = 0
    while k < nbits:
        if d[k] == 0: k += 1; continue
        n = 1
        while k + n < nbits and d[k + n] == d[k] << n: n += 1
        c = d[k]
        if c > 0 and c & (c - 1) == 0:
            sh = c.bit_length() - 1
            A(f"v_bfe_u32 v{tmp}, v{src}, {k}, {n}")
            if m == 'add': A(f"v_lshl_add_u32 v{work}, v{tmp}, {sh}, v{work}")
            else:
                A(f"v_lshlrev_b32 v{tmp}, {sh}, v{tmp}")
                A(f"v_xor_b32 v{work}, v{work}, v{tmp}")
        elif m == 'add' and 0 < c < (1 << 24):
            A(f"v_bfe_u32 v{tmp}, v{src}, {k}, {n}")
            A(f"v_mul_u32_u24 v{tmp}, {c:#x}, v{tmp}")
            A(f"v_add_u32 v{work}, v{work}, v{tmp}")
        else:
            n = 1
            A(f"v_bfe_i32 v{tmp}, v{src}, {k}, 1")
            A(f"v_and_b32 v{tmp}, {c & 0xffffffff:#x}, v{tmp}")
            A(f"v_{'xor_b32' if m == 'xor' else 'add_u32'} v{work}, v{work}, v{tmp}")
        k += n
    if work != dst:
        A(f"v_add_u32 v{dst}, v{dst}, v{work}")


MF32 = "v_mfma_f32_16x16x32_bf16"
MF16 = "v_mfma_f32_16x16x16_bf16"

def ring_load(A, chunks, nslots=8, lbase=0, tmp=28, sb=26):
    A(f"s_lshl_b32 s{sb}, s10, 12")
    if lbase: A(f"s_add_u32 s{sb}, s{sb}, {lbase}")
    def issue(j):
        c = chunks[j]
        add64(A, 12, c['ptr'], c['off'])
        for ip in range(4):
            A(f"s_add_u32 m0, s{sb}, {(j % nslots) * 16384 + ip * 1024}")
            A(f"global_load_lds_dwordx4 v{c['vb']+ip}, s[12:13] {'nt' if FORCE.get('ont') else ''}")
    n = len(chunks); ah = nslots - 1
    for j in range(min(ah, n)): issue(j)
    for j in range(n):
        A(f"s_waitcnt vmcnt({4 * (min(n - 1, j + ah - 1) - j)})")
        A("s_barrier")
        if j + ah < n: issue(j + ah)
        regs = sorted({r[1] for r in chunks[j]['reads']})
        for k, ar in enumerate(regs): A(f"v_add_u32 v{tmp+k}, {(j % nslots) * 16384 + lbase}, v{ar}")
        for dst, ar, imm in chunks[j]['reads']:
            A(f"ds_read_b64_tr_b16 {u(dst, 2)}, v{tmp + regs.index(ar)} offset:{imm}")
        if 'post' in chunks[j]: chunks[j]['post']()
        A("s_waitcnt lgkmcnt(0)")
    A("s_barrier")

def swzA(row): return 2 * ((row & 3) | ((row >> 3) & 1) << 2)
def swzB(row): return 2 * (((row >> 1) & 1) | ((row >> 2) & 1) << 1)
def dense256_consts(A, vb, tra, stride, tmp):
    for ip in range(4):
        lane_const(A, vb + ip, lambda t: (16 * (t >> 6) + 4 * ip + ((t & 63) >> 4)) * stride, tmp=tmp)
        lane_const(A, vb + ip, lambda t: ((t & 15) ^ swzA(16 * (t >> 6) + 4 * ip + ((t & 63) >> 4))) * 16, tmp=tmp, acc=True)
    for b in range(2):
        def f(t):
            w, l = t >> 6, t & 63
            row = 8 * (l >> 4) + ((l >> 2) & 3); c = l & 3
            return row * 256 + (((4 * w + 2 * b + (c >> 1)) ^ swzA(row)) * 16) + (c & 1) * 8
        lane_const(A, tra + b, f, tmp=tmp)
def dense256_reads(dstf, tra, c):
    return [(dstf(2 * c + kl, b) + 2 * hq, tra + b, (32 * kl + 4 * hq) * 256) for kl in range(2) for b in range(2) for hq in range(2)]
def dense128_consts(A, vb, tra, tmp):
    for ip in range(4):
        lane_const(A, vb + ip, lambda t: (32 * (t >> 6) + 8 * ip + ((t & 63) >> 3)) * 1152, tmp=tmp)
        lane_const(A, vb + ip, lambda t: ((t & 7) ^ swzB(32 * (t >> 6) + 8 * ip + ((t & 63) >> 3))) * 16, tmp=tmp, acc=True)
    def f(t):
        w, l = t >> 6, t & 63
        row = 4 * (l >> 4) + ((l >> 2) & 3); c = l & 3
        return row * 128 + (((2 * w + (c >> 1)) ^ swzB(row)) * 16) + (c & 1) * 8
    lane_const(A, tra, f, tmp=tmp)
def dense128_reads(dstf, tra, t):
    return [(dstf(t, j) + 2 * hq, tra, (32 * j + 16 * hq) * 128) for j in range(4) for hq in range(2)]

def seg_dma(A, vT16, src, ldsreg, n=9, flag=''):
    A(f"s_mov_b64 s[12:13], s[{src}:{src+1}]")
    for j in range(n):
        A(f"s_add_u32 m0, s{ldsreg}, {j * 4096}")
        A(f"global_load_lds_dwordx4 v{vT16}, s[12:13] {flag}")
        if j < n - 1: add64(A, 12, 12, 4096)

def flag_wait(A, addr_v, base, val_s, tv, ts, sleep=1):
    loop = A.newlabel('L_fw'); done = A.newlabel('L_fwd')
    A(f"s_mov_b32 s{ts}, 0")
    A.label(loop)
    A(f"global_load_dword v{tv}, v{addr_v}, s[{base}:{base+1}] sc1")
    A(f"s_add_u32 s{ts}, s{ts}, 1")
    A(f"s_cmp_gt_u32 s{ts}, {SPIN_MAX}")
    A("s_cbranch_scc1 L_exit")
    A("s_waitcnt vmcnt(0)")
    A(f"v_cmp_gt_u32 vcc, s{val_s}, v{tv}")
    A(f"s_cbranch_vccz {done}")
    if sleep: A(f"s_sleep {sleep}")
    A(f"s_branch {loop}")
    A.label(done)

def xsum(A, r, t, op="v_add_f32", bits=(0, 1, 2, 3, 4, 5)):
    for b in bits:
        if b == 0: A(f"{op}_dpp v{r}, v{r}, v{r} quad_perm:[1,0,3,2] row_mask:0xf bank_mask:0xf")
        elif b == 1: A(f"{op}_dpp v{r}, v{r}, v{r} quad_perm:[2,3,0,1] row_mask:0xf bank_mask:0xf")
        elif b == 2: A(f"{op}_dpp v{r}, v{r}, v{r} row_ror:4 row_mask:0xf bank_mask:0xf")
        elif b == 3: A(f"{op}_dpp v{r}, v{r}, v{r} row_ror:8 row_mask:0xf bank_mask:0xf")
        else:
            A(f"v_mov_b32 v{t}, v{r}")
            A(f"v_permlane{16 if b == 4 else 32}_swap_b32 v{r}, v{t}")
            A(f"{op} v{r}, v{r}, v{t}")

def f32bits(x):
    import struct
    return struct.unpack('<I', struct.pack('<f', x))[0]
def rnd1(A, r, t=None):
    A(f"v_cvt_pk_bf16_f32 v{r}, v{r}, v{r}")
    A(f"v_lshlrev_b32 v{r}, 16, v{r}")
def rnd2(A, r):
    A(f"v_cvt_pk_bf16_f32 v{r+1}, v{r}, v{r+1}")
    A(f"v_lshlrev_b32 v{r}, 16, v{r+1}")
    A(f"v_and_b32 v{r+1}, 0xffff0000, v{r+1}")

TL = {'on': False}
DBGMAP = {(0, 1): 4, (0, 3): 5, (0, 4): 6, (1, 1): 7, (1, 2): 9, (2, 1): 10, (2, 4): 11, (5, 7): 12, (5, 1): 13, (5, 4): 14, (2, 7): 15}
def tl(A, slot, tv=60):
    if TL.get('dbg'):
        if slot == 0:
            A("s_memrealtime s[98:99]")
            A("s_waitcnt lgkmcnt(0)")
            return
        for (g, sl), wd in DBGMAP.items():
            if sl != slot: continue
            l = A.newlabel('L_tl')
            A(f"s_cmp_lg_u32 s8, {g}")
            A(f"s_cbranch_scc1 {l}")
            A("s_memrealtime s[100:101]")
            A("s_lshl_b32 s12, s9, 7")
            A(f"s_add_u32 s12, s12, {WS_STAMP + 0x40000 + wd * 4096}")
            A(f"v_mov_b32 v{tv}, s12")
            A("s_waitcnt lgkmcnt(0)")
            A("s_sub_u32 s100, s100, s98")
            A(f"v_mov_b32 v{tv+1}, s100")
            A("s_cmp_lg_u32 s10, 0")
            A(f"s_cbranch_scc1 {l}")
            A("s_mov_b64 exec, 1")
            A(f"global_store_dword v{tv}, v{tv+1}, s[4:5] sc1")
            A("s_mov_b64 exec, -1")
            if (g, sl) == (5, 4):
                A("s_cmp_lg_u32 s9, 0")
                A(f"s_cbranch_scc1 {l}")
                A("s_waitcnt vmcnt(0)")
                A("v_mbcnt_lo_u32_b32 v8, -1, 0")
                A("v_min_u32 v8, 31, v8")
                A("v_lshlrev_b32 v8, 7, v8")
                for wd2 in DBGMAP.values():
                    A(f"v_add_u32 v9, {WS_STAMP + 0x40000 + wd2 * 4096}, v8")
                    A("global_load_dword v10, v9, s[4:5] sc1")
                    A("s_waitcnt vmcnt(0)")
                    if wd2 != 14: xsum(A, 10, 11, op="v_max_u32")
                    A(f"v_mov_b32 v9, {wd2 * 4}")
                    A("s_mov_b64 exec, 1")
                    A("global_store_dword v9, v10, s[6:7] sc1")
                    A("s_mov_b64 exec, -1")
            A.label(l)
        return
    if not TL['on']: return
    A("s_memrealtime s[100:101]")
    A("s_lshl_b32 s12, s8, 5")
    A("s_add_u32 s12, s12, s9")
    A("s_lshl_b32 s12, s12, 6")
    A(f"s_add_u32 s12, s12, {WS_STAMP + 0x30000 + slot * 4}")
    A(f"v_mov_b32 v{tv}, s12")
    A("s_waitcnt lgkmcnt(0)")
    A(f"v_mov_b32 v{tv+1}, s100")
    A(f"global_store_dword v{tv}, v{tv+1}, s[4:5]")
    A("s_waitcnt vmcnt(0)")

def kvm_clear(A, idx_s):
    for r in range(4): A(f"v_mov_b32 v{8+r}, -1")
    A(f"s_mul_i32 s12, {idx_s}, {88 * 1024}")
    A(f"s_add_u32 s12, s12, {WS_KVM}")
    add64(A, 12, S_WS, "s12")
    A("v_lshlrev_b32 v3, 4, v0")
    for i in range(22):
        A("global_store_dwordx4 v3, v[8:11], s[12:13] sc1")
        if i < 21: add64(A, 12, 12, 4096)
    A("s_waitcnt vmcnt(0)")
    A("s_barrier")
    counter_arrive(A, DBG_KCLR, tv=4)

def backoff(A, cnt_s, after=2, sleep=10):
    l = A.newlabel('L_bo')
    A(f"s_cmp_le_u32 s{cnt_s}, {after}")
    A(f"s_cbranch_scc1 {l}")
    A(f"s_sleep {sleep}")
    A.label(l)

def h_wait(A, tv, l4=None):
    done = A.newlabel('L_hw'); loop = A.newlabel('L_hwl')
    A("s_cmp_lg_u32 s10, 0")
    A(f"s_cbranch_scc1 {done}")
    A(f"v_mbcnt_lo_u32_b32 v{tv}, -1, 0")
    A(f"v_mbcnt_hi_u32_b32 v{tv}, -1, v{tv}")
    A(f"v_min_u32 v{tv}, 47, v{tv}")
    A(f"v_lshlrev_b32 v{tv}, 3, v{tv}")
    A(f"v_add_u32 v{tv}, {WS_HINT}, v{tv}")
    A("s_mov_b32 s12, 0")
    A.label(loop)
    A(f"global_load_dwordx2 {v(tv + 2, 2)}, v{tv}, s[4:5] sc1")
    A("s_add_u32 s12, s12, 1")
    A(f"s_cmp_gt_u32 s12, {SPIN_MAX}")
    A("s_cbranch_scc1 L_exit")
    A("s_waitcnt vmcnt(0)")
    A(f"v_and_b32 v{tv+2}, v{tv+2}, v{tv+3}")
    A(f"v_cmp_eq_u32 vcc, 0, v{tv+2}")
    A(f"s_cbranch_vccz {done}")
    A("s_sleep 6")
    A(f"s_branch {loop}")
    A.label(done)
    A("s_barrier")
```

```python
from common import *
import math, struct

L_MEM, L_KX, L_VX = 0, 9216, 17408
L_QL, L_KL, L_OL = 25600, 27904, 30208
L_JUNK = 32256
L_WK = 32768
QSTR = 288
KL0 = L_KL - L_QL
T16, WKB, L16, MEMR, QR, QKW, OW, IDX = range(0, 8)
TMPC = WKB
def WQ(ks, b): return 256 + (ks * 2 + b) * 8
def WV(ks, b):
    i = ks * 2 + b
    return 400 + i * 8 if i < 14 else 64 + (i - 14) * 8
def WO(t, k2): return 96 + (t * 2 + k2) * 8
def WK8(b): return 240 + b * 8
ACCV0, ACCQ, ACCK, MRING, WRING, ACCV1 = 8, 12, 20, 28, 40, 40
SMF = "v_smfmac_f32_16x16x64_bf16"
MF32 = "v_mfma_f32_16x16x32_bf16"
MF16 = "v_mfma_f32_16x16x16_bf16"
IDQ = "quad_perm:[0,1,2,3]"
ROR8 = "row_ror:8 row_mask:0xf bank_mask:0xf"
def FSW(i): return 2 * (0, 2, 3, 1)[i >> 1] + (i & 1)
def img(i, pos): return i * 128 + ((pos ^ FSW(i)) * 16)
def mimg(i, pos): return ((pos >> 1) * 16 + 2 * i + (pos & 1)) * 16
PI = [0, 1, 4, 5, 2, 3, 6, 7]
EXP = {}
PF = 1
ORD = [8, 0, 1, 2, 3, 4, 5, 6, 7]
ORD0 = ORD

WORD = [8, 0, 1, 2, 3, 4, 5, 6, 7]
def swap_tab():
    nsw = EXP.get('nsw', 0)
    return list(zip([4, 7, 10, 13, 15, 1][:nsw], [3, 7, 10, 13, 16, 0][:nsw]))
def wo_reg(k): return WO(WORD[k // 2], k & 1)
def wk_off(n): return L_WK + (n >> 1) * 16384 + (n & 1) * 8192

def r_swap(A):
    for n, k in swap_tab():
        A(f"v_lshlrev_b32 v12, 4, v0")
        A(f"v_add_u32 v12, {wk_off(n)}, v12")
        A("ds_read_b128 v[16:19], v12")
        A("ds_read_b128 v[20:23], v12 offset:4096")
        A("s_waitcnt lgkmcnt(0)")
        r = wo_reg(k)
        A(f"ds_write_b128 v12, {v(r, 4)}")
        A(f"ds_write_b128 v12, {v(r + 4, 4)} offset:4096")
        A("s_waitcnt lgkmcnt(0)")
        for q in range(0, 8, 2): A(f"v_mov_b64 {v(r + q, 2)}, {v(16 + q, 2)}")

def r_setup(A):
    A(f"s_load_dwordx4 s[16:19], s[0:1], {KA_WQ}")
    A(f"s_load_dwordx4 s[20:23], s[0:1], {KA_WV}")
    A(f"s_load_dwordx2 s[24:25], s[0:1], {KA_MEM0}")
    def swz(lr): return 2 * ((lr & 1) | ((lr >> 3) & 1) << 1 | ((lr >> 5) & 1) << 2)
    def swz2(row): return 2 * (((row >> 2) & 1) | ((row >> 4) & 1) << 1)
    for ip in range(4):
        def fq(t, last=False):
            w, l = t >> 6, t & 63
            lr = 16 * w + 4 * ip + (l >> 4); e, pos = lr >> 3, lr & 7
            d = 512 + 8 * pos + e if last else 64 * (e & 1) + 4 * pos + (e >> 1)
            return d * 8192 + (((l & 15) ^ swz(lr)) * 16)
        lane_const(A, 12 + ip, fq, tmp=1)
        lane_const(A, 16 + ip, lambda t: fq(t, True), tmp=1)
        lane_const(A, 20 + ip, lambda t: (32 * (t >> 6) + 8 * ip + ((t & 63) >> 3)) * 1152, tmp=1)
        lane_const(A, 20 + ip, lambda t: ((t & 7) ^ swz2(32 * (t >> 6) + 8 * ip + ((t & 63) >> 3))) * 16, tmp=1, acc=True)
    def ftr(t, b):
        w, l = t >> 6, t & 63
        gb, half, bp, c = l >> 4, (l >> 3) & 1, (l >> 2) & 1, l & 3
        lr = 32 * (gb & 1) + 8 * bp + 2 * (gb >> 1) + half
        return L_WK + lr * 256 + (((4 * w + 2 * b + (c >> 1)) ^ swz(lr)) * 16) + (c & 1) * 8
    lane_const(A, 24, lambda t: ftr(t, 0), tmp=1)
    lane_const(A, 25, lambda t: ftr(t, 1), tmp=1)
    def fto(t):
        w, l = t >> 6, t & 63
        gb, half, bp, c = l >> 4, (l >> 3) & 1, (l >> 2) & 1, l & 3
        row = 16 * (gb & 1) + 8 * (gb >> 1) + 4 * half + bp
        return L_WK + row * 128 + (((2 * w + (c >> 1)) ^ swz2(row)) * 16) + (c & 1) * 8
    lane_const(A, 26, fto, tmp=1)
    lane_const(A, 27, lambda t: L_WK + t * 16, tmp=1)
    A("s_waitcnt lgkmcnt(0)")
    A("s_lshl_b32 s12, s9, 8")
    for p in (16, 18, 20):
        add64(A, p, p, "s12")
    A("s_mul_i32 s12, s9, 147456")
    add64(A, 22, 22, "s12")
    A("s_lshl_b32 s26, s10, 12")
    A(f"s_add_u32 s26, s26, {L_WK}")
    chunks = [('q', k) for k in range(9)] + [('v', k) for k in range(9)] + [('o', t) for t in range(9)] + [('k', 7)] + [('k', ORD[j % 8]) for j in range(28, 36)]
    ptr = {'q': 16, 'k': 18, 'v': 20, 'o': 22}
    def issue(j):
        m, k = chunks[j]
        slot = j % 8
        if m == 'o': off, vb = k * 128, 20
        elif k < 8: off, vb = (128 * (k >> 1) + 32 * (k & 1)) * 8192, 12
        else: off, vb = 0, 16
        add64(A, 12, ptr[m], off)
        for ip in range(4):
            A(f"s_add_u32 m0, s26, {slot * 16384 + ip * 1024}")
            A(f"global_load_lds_dwordx4 v{vb+ip}, s[12:13]")
    def fd(m, t): return 256 * m + t if m < 2 else 512 + (t & 63)
    def fa(m, t):
        d = fd(m, t)
        if d < 512: ks, e, pos = 2 * (d >> 7) + ((d >> 5) & 1), 2 * (d & 3) + ((d >> 6) & 1), (d >> 2) & 7
        else: ks, e, pos = 8, d & 7, (d >> 3) & 7
        return ks * 1024 + mimg(0, pos) + e * 2
    def mem0_issue():
        for m in range(3):
            lane_const(A, 4 + m, lambda t: 2 * fd(m, t), tmp=1)
            lane_const(A, 8 + m, lambda t: fa(m, t), tmp=1)
            for i in range(8):
                A(f"v_add_u32 v2, {i * 1152}, v{4+m}")
                A(f"global_load_ushort v{32+8*m+i}, v2, s[24:25]")
    def mem0_write():
        for m in range(3):
            for i in range(8):
                A(f"ds_write_b16 v{8+m}, v{32+8*m+i} offset:{L_MEM + i * 32}")
    def status0():
        lane_const(A, 2, lambda t: arr_word(t & 7) * 4, tmp=1)
        A("global_load_dword v4, v2, s[6:7] sc1")
    def status_issue():
        A("s_lshl_b32 s12, s9, 7")
        A(f"s_add_u32 s12, s12, {WS_KVPROG + 4096}")
        A("v_mov_b32 v2, s12")
        A("global_load_dwordx4 v[8:11], v2, s[4:5] sc1")
    for j in range(7): issue(j)
    n = len(chunks)
    for j in range(n + 1):
        if j < n:
            ahead = min(n - 1, j + 6) - j
            extra = 24 if 1 <= j <= 7 else (1 if 33 <= j <= 35 else (1 if 25 <= j <= 31 else 0))
            A(f"s_waitcnt vmcnt({4 * ahead + extra})")
        A("s_barrier")
        if j + 7 < n: issue(j + 7)
        if j == 0: mem0_issue()
        if j == 9: mem0_write()
        if j == 24: status0()
        if j == 32: status_issue()
        if j >= 29:
            pk = (j - 1) % 8; tb = 32 + ((j - 1) & 1) * 16
            A(f"v_add_u32 v28, {pk * 16384}, v27")
            for q in range(4):
                A(f"ds_write_b128 v28, {v(tb + 4 * q, 4)} offset:{q * 4096}")
        if j < n:
            m, k = chunks[j]; slot = j % 8
            if m == 'o':
                A(f"v_add_u32 v28, {slot * 16384}, v26")
                for k2 in range(2):
                    for jq in range(4):
                        off = (64 * k2 + 32 * (jq >> 1) + 2 * (jq & 1)) * 128
                        A(f"ds_read_b64_tr_b16 {u(WO(k, k2) + 2 * jq, 2)}, v28 offset:{off}")
            else:
                A(f"v_add_u32 v28, {slot * 16384}, v24")
                A(f"v_add_u32 v29, {slot * 16384}, v25")
                for b in range(2):
                    if m == 'q': dst = WQ(k, b)
                    elif m == 'v': dst = WV(k, b)
                    elif j == 27: dst = WK8(b)
                    else: dst = 32 + (j & 1) * 16 + b * 8
                    for jq in range(4):
                        off = (16 * (jq & 1) + 4 * (jq >> 1)) * 256
                        A(f"ds_read_b64_tr_b16 {u(dst + 2 * jq, 2)}, v{28+b} offset:{off}")
        A("s_waitcnt lgkmcnt(0)")

def r_consts(A):
    lane_const(A, L16, lambda t: (t & 63) * 16, tmp=12)
    lane_const(A, MEMR, lambda t: img((t & 15) >> 1, 2 * ((t >> 4) & 3) + (t & 1)), tmp=12)
    lane_const(A, QR, lambda t: L_QL + (t & 7) * QSTR + ((t >> 4) & 3) * 16, tmp=12)
    lane_const(A, QKW, lambda t: L_QL + (0, 4, 2, 6)[(t >> 4) & 3] * QSTR + (t >> 6) * 64 + (t & 15) * 4, tmp=12)
    lane_const(A, OW, lambda t: (t >> 7) * 1024 + img(PI[t & 7], 4 * ((t >> 6) & 1) + ((t >> 4) & 3)), tmp=12)
    A(f"v_add_u32 v{OW}, {L_OL}, v{OW}")
    lane_const(A, 14, lambda t: L_JUNK + (((t >> 4) & 3) * 8 + (t & 7)) * 16, tmp=12)
    A("v_and_b32 v12, 8, v0")
    A("v_cmp_ne_u32 vcc, 0, v12")
    A(f"v_cndmask_b32 v{OW}, v{OW}, v14, vcc")
    lane_const(A, IDX, lambda t: 0xEEEE if t & 1 else 0x4444, tmp=12)
    A(f"v_lshlrev_b32 v{T16}, 4, v0")
    A("s_and_b32 s12, s10, 1")
    A("s_lshl_b32 s12, s12, 5")
    A("s_add_u32 s37, s12, s9")
    A("v_mov_b32 v14, s37")
    lane_const(A, 15, lambda t: ms_fn(1, t, 0), src=14, nbits=6, tmp=12)
    lane_const(A, 16, lambda t: ms_fn(2, t, 0), src=14, nbits=5, tmp=12)
    if EXP.get('tm', 1): lane_const(A, 17, lambda t: WS_RP + t * 4096, src=14, nbits=6, tmp=12)
    else: lane_const(A, 17, lambda t: WS_RP + (t >> 2) * 16384 + (t & 3) * 128 + 4096, src=14, nbits=6, tmp=12)
    lane_const(A, 18, lambda t: WS_RP + 0x40000 + (t >> 3) * 8192 + (t & 7) * 32, src=14, nbits=5, tmp=12)
    A("v_readfirstlane_b32 s41, v15")
    A("v_readfirstlane_b32 s12, v16")
    A("v_readfirstlane_b32 s13, v17")
    A("v_readfirstlane_b32 s14, v18")
    A("s_cmp_lt_u32 s10, 2")
    A("s_cselect_b32 s41, s41, s12")
    A("s_cselect_b32 s13, s13, s14")
    if EXP.get('rep', 0):
        A("s_cselect_b32 s44, -1, 0x03030303")
        A("s_mov_b32 s45, s44")
        A("s_and_b32 s36, s9, 3")
        A("s_lshl_b32 s36, s36, 15")
        A("s_add_u32 s36, s36, 3072")
    else:
        A("s_mov_b32 s44, 0x00030003")
        A("s_cselect_b32 s44, 0x00FF00FF, s44")
        A("s_mov_b32 s45, 0")
        A("s_movk_i32 s36, 3072")
    add64(A, 28, S_WS, "s13")
    add64(A, 16, 28, 8192)
    A("s_lshl_b32 s12, s10, 5")
    A("s_add_u32 s12, s12, s9")
    A("s_lshl_b32 s13, s12, 9")
    if EXP.get('tm', 1):
        A("s_lshl_b32 s13, s10, 7")
        A("s_add_u32 s13, s13, s9")
        A("s_lshl_b32 s13, s13, 7")
    A(f"s_add_u32 s13, s13, {WS_RP}")
    add64(A, 26, S_WS, "s13")
    for p in range(1, 4): add64(A, 88 + 2 * p, 26, p * 65536)
    A("s_lshl_b32 s13, s12, 8")
    A(f"s_add_u32 s13, s13, {WS_RP + 0x40000}")
    add64(A, 42, S_WS, "s13")
    add64(A, 30, S_WS, WS_RM)
    cc = struct.unpack('<I', struct.pack('<f', (128 ** -0.5) * math.log2(math.e)))[0]
    A(f"s_mov_b32 s46, {cc:#x}")
    A("s_bfe_u32 s40, s9, 0x10003")
    A("s_lshl_b32 s12, s9, 14")
    A(f"s_add_u32 s12, s12, {WS_KV}")
    add64(A, 88, S_WS, "s12")
    A("s_lshl_b32 s13, s10, 11")
    add64(A, 32, 88, "s13")
    add64(A, 86, 32, 8192)
    A("s_lshl_b32 s12, s9, 12")
    A(f"s_add_u32 s12, s12, {WS_KVM}")
    add64(A, 50, S_WS, "s12")
    A("s_lshl_b32 s12, s9, 7")
    A(f"s_add_u32 s12, s12, {WS_KVPROG + 4096}")
    add64(A, 18, S_WS, "s12")
    A("s_lshl_b32 s12, s9, 2")
    A(f"s_add_u32 s12, s12, {WS_RPROG}")
    add64(A, 52, S_WS, "s12")
    A("s_lshl_b32 s12, s9, 7")
    A(f"s_add_u32 s12, s12, {WS_RPROG}")
    add64(A, 22, S_WS, "s12")
    A("s_lshl_b32 s62, s10, 11")
    A(f"s_add_u32 s62, s62, {L_KX}")
    A("s_lshl_b32 s63, s10, 10")
    A(f"s_add_u32 s57, s63, {L_MEM}")
    A(f"s_add_u32 s63, s63, {L_VX}")

def ms_fn(kind, t, l):
    q8, gp = l & 7, (l >> 4) & 1
    rp = 0
    if kind == 1:
        w, g = (t >> 2) & 3, t & 3
        return rp + (t >> 3) * 1024 + mimg(2 * g + gp, 4 * (w & 1) + (q8 >> 1)) + (q8 & 1) * 8
    w, g, nh = t >> 3, (t >> 1) & 3, t & 1
    return rp + 8192 + mimg(2 * g + gp, 2 * w + nh) + (l & 1) * 8

def ms_calc(A, kind, dst, tmp):
    lane_const(A, dst, lambda x: ms_fn(kind, 0, x >> 4) ^ ms_fn(kind, 0, 0), src=L16, nbits=10, tmp=tmp, mode='xor')
    A(f"v_xor_b32 v{dst}, s41, v{dst}")

def kv_wait(A, seg_sgpr, nkv, kvg0, tv, xit='L_exit'):
    if nkv == 0: return
    ok = A.newlabel('L_kvok'); loop = A.newlabel('L_kvp')
    A(f"s_cmp_lt_u32 {seg_sgpr}, s54")
    A(f"s_cbranch_scc1 {ok}")
    A("s_mov_b32 s55, 0")
    A(f"v_bfe_u32 v{tv}, v{L16}, 2, 4")
    A.label(loop)
    A(f"global_load_dword v{tv+1}, v{tv}, s[18:19] sc1")
    A("s_add_u32 s55, s55, 1")
    A(f"s_cmp_gt_u32 s55, {SPIN_MAX}")
    A(f"s_cbranch_scc1 {xit}")
    A("s_waitcnt vmcnt(0)")
    xsum(A, tv + 1, tv, op="v_min_u32", bits=(0, 1))
    A(f"v_readfirstlane_b32 s54, v{tv+1}")
    A(f"s_cmp_lt_u32 {seg_sgpr}, s54")
    A(f"s_cbranch_scc1 {ok}")
    A("s_sleep 4")
    A(f"s_branch {loop}")
    A.label(ok)

def r_pro(A, nkv, kvg0):
    TR = EXP.get('trace', [])
    A("s_mov_b32 s24, 0")
    A("s_mov_b32 s34, 9216")
    A("s_mov_b32 s35, 0")
    if TR or EXP.get('rt'):
        for i in range(22 if TR else 16): A(f"s_mov_b32 s{64+i}, 0")
    tl(A, 2)
    if EXP.get('warm', 1):
        A("s_mul_i32 s12, s9, 9216")
        A(f"s_add_u32 s12, s12, {WS_RP}")
        A(f"v_lshl_add_u32 v12, v{T16}, 2, s12")
        A("s_lshl_b32 s12, s9, 10")
        A(f"s_add_u32 s12, s12, {WS_RM}")
        A(f"v_add_u32 v13, s12, v{L16}")
        A(f"s_mov_b32 m0, {L_JUNK}")
        A("global_load_lds_dword v12, s[4:5] sc1")
        A("global_load_lds_dword v13, s[4:5] sc1")
    A("s_mov_b32 s25, 0")
    kv_wait(A, "s25", nkv, kvg0, 12)
    tl(A, 3)
    if EXP.get('rt'):
        A("s_memrealtime s[80:81]")
        A("s_memtime s[96:97]")
    add64(A, 38, S_WS, WS_STAMP + 0x8000)
    A("s_mov_b64 s[58:59], s[88:89]")

def r_main(A, fast, wv, nkv, kvg0, nsteps=64):
    st = "" if fast else "sc1"
    LF = "sc1"
    sfx = ("f" if fast else "s") + str(wv)
    XIT = f"L_rx_{sfx}"
    D = Lds(A)
    TR = EXP.get('trace', [])
    def tr(name):
        if name in TR:
            i = TR.index(name)
            A(f"s_memtime s[{64+2*i}:{65+2*i}]")
    ORD = [ORD0[(2 * wv + p) % 8] for p in range(8)] + [7]
    def wk_off(n): return L_WK + ((2 * wv + (n >> 1)) % 8) * 16384 + (n & 1) * 8192
    OWN = EXP.get('own', 2)
    STG = ORD[:2] + ([7] if wv == 0 else [])
    if OWN == 3:
        if wv == 3: ORD = ORD[:2] + [7] + ORD[2:8]
        LDL = ORD[:3]; STG = ORD[:3] if wv == 3 else ORD[:2]
    else: LDL = STG
    WT = EXP.get('wt', 1)
    P3 = EXP.get('p3', 1)
    def lreg(j): return ACCV0 if (P3 and j == 2) else MRING + 4 * j
    SW = {}; SWO = {}
    LW = [n for n in range(16) if n not in SW]
    cur = [0]
    def lds_frag(n, r, tag, areg=WKB):
        off = wk_off(n); base = (off // 65536) * 65536
        if base and cur[0] != base:
            A(f"v_add_u32 v{areg}, {base:#x}, v{T16}")
            cur[0] = base
        ar = T16 if base == 0 else areg
        D.op(f"ds_read_b128 {v(r, 4)}, v{ar} offset:{off - base}")
        D.op(f"ds_read_b128 {v(r + 4, 4)}, v{ar} offset:{off - base + 4096}", tag)
    RSH = (3 - (len(LW) - 1) % 3) % 3
    def wslot(i): return WRING + ((i + RSH) % 3) * 8
    def wk_read(i):
        cur[0] = 0
        lds_frag(LW[i], wslot(i), ('wk', i))
    def spill_read(r):
        D.op(f"ds_read_b32 v{r}, v{QKW} offset:{KL0}")
        D.op(f"ds_read_b32 v{r+1}, v{QKW} offset:{KL0 + QSTR}")
        D.op(f"ds_read2_b32 {v(r + 2, 2)}, v{QKW} offset0:0 offset1:{QSTR // 4}", 'spill')
    def zero_qk(lo=ACCQ, hi=ACCQ + 16):
        for r in range(lo, hi, 2): A(f"v_mov_b64 {v(r, 2)}, 0")
    for n in sorted(range(3), key=wslot): wk_read(n)
    def mem_read(ks, r, tag):
        D.op(f"ds_read_b128 {v(r, 4)}, v{L16} offset:{L_MEM + ks * 1024}", tag)
    def mslot(p): return MRING + ((0, 1, 0, 1, 2, 0, 1, 2, 0)[p] if P3 else p % 3) * 4
    for p, ks in enumerate(LDL): mem_read(ks, lreg(p), None)
    if P3 and wv: zero_qk(ACCV0, ACCV0 + 4)
    zero_qk()
    A("s_mov_b32 m0, s62")
    A("s_mov_b32 s55, 0")
    A("s_mov_b32 s47, s40")
    A("s_mov_b64 s[20:21], s[30:31]")
    D.waitall()
    SP = EXP.get('sp', 1)
    def smf(acc, ar, w): A(f"{SMF} {v(acc, 4)}, {v(ar, 4)}, {u(w, 8)}, v{IDX}")
    head = [(ACCQ, WQ(ORD[0], 0)), (ACCQ + 4, WQ(ORD[0], 1))] + ([(ACCV0, WV(ORD[0], 0))] if wv else [])
    top = f"L_rtop_{sfx}"
    assert SP
    A.label(f"L_rp2_{sfx}")
    ns = len(LDL)
    A(f"s_waitcnt vmcnt({ns - 1})")
    tr('p2w0')
    smf(head[0][0], mslot(0), head[0][1])
    A(f"v_max_u32 v{TMPC}, v{lreg(0)}, v{lreg(0)+2}")
    for j in range(1, ns):
        A(f"s_waitcnt vmcnt({ns - 1 - j})")
        A(f"v_max3_u32 v{TMPC}, v{TMPC}, v{lreg(j)}, v{lreg(j)+2}")
    A(f"v_cmp_eq_u32 vcc, -1, v{TMPC}")
    smf(head[1][0], mslot(0), head[1][1])
    A(f"ds_write_b128 v{L16}, {v(lreg(0), 4)} offset:{L_MEM + STG[0] * 1024}")
    A(f"s_cbranch_vccnz L_rf2_{sfx}")
    if wv: smf(head[2][0], mslot(0), head[2][1])
    A(f"ds_write_b128 v{L16}, {v(lreg(1), 4)} offset:{L_MEM + STG[1] * 1024}")
    tr('b1')
    D.q = ['pre'] + ['mw'] * 2
    D.wait('pre')
    KE = EXP.get('kearly', 0)
    loc = {('m', 8): mslot(8), ('m', 7): mslot(7), ('m', 6): mslot(6)}
    NSL = 3 if (nkv and wv == 3) else 2
    def sread(tag, r):
        loc[tag] = r
        if tag[0] == 'q': D.op(f"ds_read_b128 {v(r, 4)}, v{QR} offset:{tag[1] * 64}", tag)
        elif tag[0] == 'km': D.op(f"ds_read_b128 {v(r, 4)}, v{QR} offset:{KL0 + tag[1] * 64}", tag)
        elif tag[0] == 'kx': D.op(f"ds_read_b128 {v(r, 4)}, v{L16} offset:{L_KX + (tag[1] * 4 + tag[2]) * 1024}", tag)
        elif tag[0] == 'm': mem_read(ORD[tag[1]], r, tag)
        elif tag[0] == 'vx':
            if tag[1] == 0: A(f"s_waitcnt vmcnt({NSL})")
            D.op(f"ds_read_b128 {v(r, 4)}, v{T16} offset:{L_VX + tag[1] * 4096}", tag)
    def smf(acc, ar, w): A(f"{SMF} {v(acc, 4)}, {v(ar, 4)}, {u(w, 8)}, v{IDX}")
    V0S = 2 if KE else 3
    BP = EXP.get('bp', 5)
    pos = (1, 2, 4, 5, 7, 9, 10, 13) if KE else (BP + 1, BP + 2, BP + 3, BP + 4, 11, 13, 14, 18)
    ext = {pos[0]: f"global_load_lds_dwordx4 v{L16}, s[32:33]",
           pos[1]: f"global_load_lds_dwordx4 v{L16}, s[32:33] offset:1024\ns_mov_b32 m0, s63",
           pos[2]: f"global_load_lds_dwordx4 v{L16}, s[86:87]\ns_add_u32 m0, s63, 3072",
           pos[3]: f"global_load_lds_dwordx4 v{L16}, s[86:87] offset:1024\ns_mov_b32 m0, {L_JUNK}",
           pos[4]: f"global_store_dwordx4 v{T16}, {v(ACCV0, 4)}, s[38:39] sc1",
           pos[5]: f"v_lshlrev_b32 v{ACCV0}, 2, v{T16}\nv_mov_b64 {v(ACCV0 + 2, 2)}, 0",
           pos[6]: f"global_load_lds_dword v{ACCV0}, s[58:59]\nv_mov_b64 {v(ACCV0, 2)}, 0\ns_mov_b32 m0, {L_QL + 256}"}
    if P3:
        V0S = 1 if wv == 0 else 0
        BP = EXP.get('bp3', 6) - V0S
        if SP: BP = EXP.get('bps', 3)
        r2 = MRING + 8
        pos = tuple(BP + x for x in [(1, 2, 3, 4, 6, 99, 8, 12), (-2, -1, 1, 3, 5, 99, 7, 11), (1, 3, 5, 7, 9, 99, 11, 14), (-2, -1, 2, 5, 8, 99, 10, 13), (1, 2, 4, 6, 9, 99, 11, 14)][EXP.get('pp', 0)])
        ext = {pos[0]: f"global_load_lds_dwordx4 v{L16}, s[32:33]",
               pos[1]: f"global_load_lds_dwordx4 v{L16}, s[32:33] offset:1024\ns_mov_b32 m0, s63",
               pos[2]: f"global_load_lds_dwordx4 v{L16}, s[86:87]\ns_add_u32 m0, s63, 3072",
               pos[3]: f"global_load_lds_dwordx4 v{L16}, s[86:87] offset:1024\ns_mov_b32 m0, {L_JUNK}",
               pos[4]: f"global_store_dwordx4 v{T16}, {v(r2, 4)}, s[38:39] sc1",
               pos[6]: f"v_lshlrev_b32 v{r2}, 2, v{T16}\nglobal_load_lds_dword v{r2}, s[58:59]\ns_mov_b32 m0, {L_QL + 256}"}
        if wv == 0: ext[2] = ext.get(2, "") + f"\nv_mov_b64 {v(ACCV0, 2)}, 0\nv_mov_b64 {v(ACCV0 + 2, 2)}, 0"
    if nkv and wv == 3: ext[pos[7]] = f"s_mov_b64 exec, 1\nglobal_load_lds_dwordx4 v{L16}, s[18:19] sc1\ns_mov_b64 exec, -1"
    sb_ = Asm()
    sb_("s_lshl_b32 s13, s24, 17")
    add64(sb_, 38, 50, "s13")
    sb_("s_add_u32 s25, s24, 2")
    sb_(f"s_min_u32 s25, s25, {nsteps - 1}")
    sb_("s_lshl_b32 s13, s25, 19")
    add64(sb_, 58, 88, "s13")
    add64(sb_, 86, 86, 1 << 19)
    add64(sb_, 32, 32, 1 << 19)
    add64(sb_, 14, 30, "s34")
    add64(sb_, 60, 30, "s35")
    add64(sb_, 20, 14, 4096)
    if wv == 0: add64(sb_, 16, 14, 8192)
    sb_("s_and_b32 s12, s24, 1")
    sb_("s_xor_b32 s13, s12, 1")
    sb_("s_xor_b32 s47, s13, s40")
    sb_("s_add_u32 s24, s24, 1")
    sb_("s_mov_b32 s35, s34")
    sb_("s_add_u32 s34, s34, 9216")
    sb_("s_cmp_eq_u32 s34, 27648")
    sb_("s_cselect_b32 s34, 0, s34")
    sb_("s_mov_b32 s55, 0")
    book = [i.text.strip() for i in sb_.ins]
    sq = []
    cnt_ = [0]
    held = []
    side = []
    class Defer:
        def op(self, text, tag=None): side.append((text, tag))
    def flush_until(tag):
        while any(t == tag for _, t in side):
            x = side.pop(0)
            D.op(*x) if x[0].startswith('ds_') else A(x[0])
    GAPN = EXP.get('gapn', 2)
    def smfs(acc, ar, w, need=()):
        for t in need:
            flush_until(t); D.wait(t)
        smf(acc, ar, w)
        cnt_[0] += 1
    def gap():
        n = 0
        if cnt_[0] == 1 and len(STG) == 3:
            j = 2
            D.op(f"ds_write_b128 v{L16}, {v(lreg(j), 4)} offset:{L_MEM + STG[j] * 1024}", 'mw')
            n += 1
        if cnt_[0] == BP:
            D.wait('mw')
            A("s_barrier")
            if OWN == 2: mem_read(ORD[2], mslot(2), ('m', 2))
            side.extend(held); held.clear()
            n = GAPN if OWN == 2 else 1
        if cnt_[0] in ext:
            A(ext[cnt_[0]]); n += 1
            if P3 and cnt_[0] == pos[6]: mem_read(ORD[4], r2, ('m', 4)); n += 1
        while side and n < GAPN:
            x = side.pop(0)
            D.op(*x) if x[0].startswith('ds_') else A(x[0])
            n += 1
        while cnt_[0] > pos[7] and sq and n < GAPN:
            A(sq.pop(0)); n += 1
    def d_wk(i):
        off = wk_off(LW[i]); base = (off // 65536) * 65536
        if base and cur[0] != base:
            side.append((f"v_add_u32 v{WKB}, {base:#x}, v{T16}", None)); cur[0] = base
        ar = T16 if base == 0 else WKB
        side.append((f"ds_read_b128 {v(wslot(i), 4)}, v{ar} offset:{off - base}", None))
        side.append((f"ds_read_b128 {v(wslot(i) + 4, 4)}, v{ar} offset:{off - base + 4096}", ('wk', i)))
    def d_kx(kt, j, r):
        loc[('kx', kt, j)] = r
        side.append((f"ds_read_b128 {v(r, 4)}, v{L16} offset:{L_KX + (kt * 4 + j) * 1024}", ('kx', kt, j)))
    cur[0] = 0
    for p in range(8):
        ks = ORD[p]
        m = mslot(p)
        if not (SP and p == 0): smfs(ACCQ, m, WQ(ks, 0), [('m', p)]); gap()
        for b in range(2):
            n = 2 * p + b
            if n in SW: smfs(ACCK + 4 * b, m, wo_reg(SW[n]))
            else:
                i = LW.index(n)
                smfs(ACCK + 4 * b, m, wslot(i), [('wk', i)])
                if i + 3 < len(LW): d_wk(i + 3)
            if P3:
                nx = {1: 3, 2: 5, 3: 6, 4: 7, 5: 8}.get(p)
                if b == 1 and nx: side.insert(0 if nx == 3 else len(side), (f"ds_read_b128 {v(mslot(nx), 4)}, v{L16} offset:{L_MEM + ORD[nx] * 1024}", ('m', nx)))
            elif b == 1 and p + 3 < 9:
                (held if cnt_[0] < BP else side).append((f"ds_read_b128 {v(mslot(p), 4)}, v{L16} offset:{L_MEM + ORD[p + 3] * 1024}", ('m', p + 3)))
            if n == 12:
                side.append((f"s_waitcnt vmcnt({NSL + 2})", None))
                side.append(("s_barrier", None))
            if n == 13: d_kx(0, 0, 48); d_kx(1, 0, 52)
            if n == 14: d_kx(0, 1, 56); d_kx(1, 1, 60)
            gap()
            if b == 0 and not (SP and p == 0):
                smfs(ACCQ + 4, m, WQ(ks, 1)); gap()
                if p >= V0S: smfs(ACCV0, m, WV(ks, 0)); gap()
        tr(f'a{p+1}')
    assert not side, side
    sread(('m', 5), 44)
    D.wait(('m', 8))
    m = mslot(8); ks = ORD[8]
    smfs(ACCQ, m, WQ(ks, 0)); gap(); smfs(ACCQ + 4, m, WQ(ks, 1))
    for o in sq: A(o)
    A(f"v_mov_b64 {v(ACCV1, 2)}, 0")
    smf(ACCK, m, WK8(0))
    A(f"v_mov_b64 {v(ACCV1 + 2, 2)}, 0")
    smf(ACCK + 4, m, WK8(1))
    A(f"v_mov_b32 v{TMPC}, s47")
    smf(ACCV0, m, WV(ks, 0))
    tr('a9')
    A(f"s_cmp_eq_u32 s24, {nsteps - 1}")
    A(f"s_cbranch_scc1 L_rlast_{sfx}")
    fill = [(p, 1) for p in range(8, V0S - 1, -1)]
    for p in range(V0S - 1, -1, -1): fill += [(p, 1), (p, 0)]
    def filler(cnt=1):
        for _ in range(cnt):
            if fill:
                p, b = fill.pop(0)
                D.wait(('m', p))
                smf(ACCV1 if b else ACCV0, loc[('m', p)], WV(ORD[p], b))
    for acc, lo in ((ACCQ, 0), (ACCK, KL0)):
        for b in range(2):
            A(f"v_add_f32 v{acc+4*b}, v{acc+4*b}, v{acc+4*b+1}")
            A(f"v_add_f32 v{acc+4*b+2}, v{acc+4*b+2}, v{acc+4*b+3}")
        A(f"v_cvt_pk_bf16_f32 v{acc+1}, v{acc}, v{acc+4}")
        A(f"v_cvt_pk_bf16_f32 v{acc+3}, v{acc+2}, v{acc+6}")
        if lo == 0: D.op(f"ds_write2_b32 v{QKW}, v{acc+1}, v{acc+3} offset0:0 offset1:{QSTR // 4}")
        else:
            D.op(f"ds_write_b32 v{QKW}, v{acc+1} offset:{lo}")
            D.op(f"ds_write_b32 v{QKW}, v{acc+3} offset:{lo + QSTR}", 'qkw')
    tr('qkw')
    filler(1)
    sread(('m', 4), 16); sread(('m', 3), 24); sread(('m', 2), mslot(8))
    filler(3)
    D.wait('qkw')
    A("s_barrier")
    tr('b2')
    T0, T1, T2 = 12, 16, 20
    sread(('q', 0), mslot(7)); sread(('km', 0), mslot(6)); sread(('q', 1), 44)
    filler(2)
    sread(('km', 1), 24)
    filler(1 if V0S < 3 else 2)
    sread(('q', 2), mslot(8))
    pend = [('kx', 0, 2), ('kx', 1, 2), ('km', 2), ('q', 3), ('kx', 0, 3), ('kx', 1, 3), ('km', 3),
            ('m', 1), ('m', 0), ('vx', 0), ('vx', 1)]
    free = []
    for j in range(4):
        for T, tag in ((T0, ('kx', 0, j)), (T1, ('kx', 1, j)), (T2, ('km', j))):
            D.wait(tag); D.wait(('q', j))
            A(f"{MF32} {v(T, 4)}, {v(loc[tag], 4)}, {v(loc[('q', j)], 4)}, {v(T, 4) if j else 0}")
            if pend: sread(pend.pop(0), loc[tag])
            else: free.append(loc[tag])
        if pend: sread(pend.pop(0), loc[('q', j)])
        else: free.append(loc[('q', j)])
    tr('s_done')
    BX, Z, DA, DB = free[0], free[1], free[2], free[3]
    filler(3 if P3 else 2)
    M, TT, SUM = 16, 17, 18
    VMR = 22
    AO = 28
    busy = set()
    for b_ in (BX, Z, DA, DB, loc[('vx', 0)], loc[('vx', 1)], ACCV1, loc[('m', 0)]): busy |= set(range(b_, b_ + 4))
    zq = [r for r in range(AO, AO + 36, 2) if r not in busy]
    late = set(range(DA, DA + 4)) | set(range(DB, DB + 4))
    zm = [r for r in range(AO, AO + 36, 2) if r in busy and r not in late]
    zl = [r for r in range(AO, AO + 36, 2) if r in late]
    MZ = EXP.get('mz', 1)
    PS, PL, WB = 8, 9, 20
    misc = [f"v_lshrrev_b32 v{PL}, 2, v{L16}", f"v_and_b32 v{PS}, 0x300, v{L16}", f"v_bfe_u32 v10, v{L16}, 1, 7", f"v_lshl_or_b32 v{PS}, v{PS}, 4, v10", "v_mov_b64 v[10:11], 0"]
    mok = [False]
    def zero(cnt=1):
        for _ in range(cnt):
            if MZ:
                if mok[0] and misc: A(misc.pop(0))
            elif zq: A(f"v_mov_b64 {v(zq.pop(0), 2)}, 0")
    A(f"v_mov_b32 v{Z+1}, 0")
    A(f"v_mov_b32 v{Z+2}, 0")
    for r in range(4): A(f"v_mov_b32_dpp v{T0+r}, v{T1+r} {IDQ} row_mask:0xf bank_mask:0xc")
    A(f"v_mov_b32_dpp v{T2+2}, v{T2+3} {IDQ} row_mask:0xf bank_mask:0xc")
    A(f"v_mov_b32_dpp v{T2}, v{T2+1} {IDQ} row_mask:0x3 bank_mask:0xc")
    A(f"v_max3_f32 v{M}, v12, v13, v14")
    zero(1)
    A(f"v_mov_b32_dpp v{T2}, v{T2+2} {IDQ} row_mask:0xc bank_mask:0xf")
    A(f"v_max3_f32 v{M}, v{M}, v15, v20")
    tr('max0')
    if P3:
        A(f"v_add_f32 v{ACCV1}, v{ACCV1}, v{ACCV1+1}")
        A(f"v_add_f32 v{ACCV1+2}, v{ACCV1+2}, v{ACCV1+3}")
    else: filler(1); zero(1)
    A(f"v_max_f32_dpp v{M}, v{M}, v{M} {ROR8}")
    A(f"v_mov_b32 v{TT}, v{M}")
    if P3:
        A(f"v_add_f32 v{ACCV0}, v{ACCV0}, v{ACCV0+1}")
        A(f"v_add_f32 v{ACCV0+2}, v{ACCV0+2}, v{ACCV0+3}")
    else: filler(9); zero(1)
    assert not fill
    A(f"v_permlane16_swap_b32 v{M}, v{TT}")
    A(f"v_max_f32 v{M}, v{M}, v{TT}")
    A(f"v_mov_b32 v{TT}, v{M}")
    if P3:
        A(f"v_cvt_pk_bf16_f32 v{VMR}, v{ACCV0}, v{ACCV0+2}")
        A(f"v_cvt_pk_bf16_f32 v{VMR+1}, v{ACCV1}, v{ACCV1+2}")
    else: zero(2)
    A(f"v_permlane32_swap_b32 v{M}, v{TT}")
    A(f"v_max_f32 v{M}, v{M}, v{TT}")
    A(f"v_mul_f32 v{M}, s46, v{M}")
    tr('max1')
    for e in (12, 13, 14, 15, 20): A(f"v_fma_f32 v{e}, v{e}, s46, -v{M}")
    for e in (12, 13, 14, 15): A(f"v_exp_f32 v{e}, v{e}")
    A(f"v_cvt_pk_bf16_f32 v{BX}, v12, v13")
    A(f"v_cvt_pk_bf16_f32 v{BX+1}, v14, v15")
    A("v_exp_f32 v20, v20")
    A(f"v_mov_b32_dpp v{BX+2}, v{BX} {ROR8}")
    A(f"v_mov_b32_dpp v{BX+3}, v{BX+1} {ROR8}")
    A(f"v_mov_b32_dpp v21, v20 {ROR8}")
    if P3:
        A(f"v_add_f32 v{SUM}, v12, v13")
        D.wait(('vx', 1))
        tr('pv0')
        A(f"{MF32} {v(DA, 4)}, {v(loc[('vx', 0)], 4)}, {v(BX, 4)}, 0")
        A(f"v_cvt_pk_bf16_f32 v{Z}, v20, v21")
        A(f"v_add_f32 v{TT}, v14, v15")
        A(f"{MF32} {v(DB, 4)}, {v(loc[('vx', 1)], 4)}, {v(BX, 4)}, 0")
        A(f"v_add_f32 v{SUM}, v{SUM}, v20")
        A(f"v_add_f32 v{SUM}, v{SUM}, v{TT}")
        A(f"v_cvt_pk_bf16_f32 v{Z+3}, v20, v21")
        A(f"{MF16} {v(DA, 4)}, {v(VMR, 2)}, {v(Z, 2)}, {v(DA, 4)}")
        A(f"v_add_f32_dpp v{SUM}, v{SUM}, v{SUM} {ROR8}")
        A(f"v_mov_b32 v{TT}, v{SUM}")
        A(f"{MF16} {v(DB, 4)}, {v(VMR, 2)}, {v(Z + 2, 2)}, {v(DB, 4)}")
        tr('pv1')
        zq += zm
        zq.sort()
        mok[0] = True
        zero(1)
        A(f"v_permlane16_swap_b32 v{SUM}, v{TT}")
        A(f"v_add_f32 v{SUM}, v{SUM}, v{TT}")
        A(f"v_mov_b32 v{TT}, v{SUM}")
        zero(2)
        A(f"v_permlane32_swap_b32 v{SUM}, v{TT}")
        A(f"v_add_f32 v{SUM}, v{SUM}, v{TT}")
    else:
        A(f"v_add_f32 v{ACCV0}, v{ACCV0}, v{ACCV0+1}")
        D.wait(('vx', 1))
        tr('pv0')
        A(f"{MF32} {v(DA, 4)}, {v(loc[('vx', 0)], 4)}, {v(BX, 4)}, 0")
        A(f"v_add_f32 v{ACCV0+2}, v{ACCV0+2}, v{ACCV0+3}")
        A(f"v_add_f32 v{ACCV1}, v{ACCV1}, v{ACCV1+1}")
        A(f"{MF32} {v(DB, 4)}, {v(loc[('vx', 1)], 4)}, {v(BX, 4)}, 0")
        A(f"v_add_f32 v{ACCV1+2}, v{ACCV1+2}, v{ACCV1+3}")
        A(f"v_cvt_pk_bf16_f32 v{VMR}, v{ACCV0}, v{ACCV0+2}")
        A(f"v_cvt_pk_bf16_f32 v{VMR+1}, v{ACCV1}, v{ACCV1+2}")
        A(f"v_cvt_pk_bf16_f32 v{Z}, v20, v21")
        A(f"v_cvt_pk_bf16_f32 v{Z+3}, v20, v21")
        A(f"v_add_f32 v{SUM}, v12, v13")
        A(f"{MF16} {v(DA, 4)}, {v(VMR, 2)}, {v(Z, 2)}, {v(DA, 4)}")
        A(f"v_add_f32 v{TT}, v14, v15")
        A(f"v_add_f32 v{SUM}, v{SUM}, v20")
        A(f"{MF16} {v(DB, 4)}, {v(VMR, 2)}, {v(Z + 2, 2)}, {v(DB, 4)}")
        tr('pv1')
        A(f"v_add_f32 v{SUM}, v{SUM}, v{TT}")
        zq += zm
        zero(2)
        A(f"v_add_f32_dpp v{SUM}, v{SUM}, v{SUM} {ROR8}")
        A(f"v_mov_b32 v{TT}, v{SUM}")
        zero(2)
        A(f"v_permlane16_swap_b32 v{SUM}, v{TT}")
        A(f"v_add_f32 v{SUM}, v{SUM}, v{TT}")
        A(f"v_mov_b32 v{TT}, v{SUM}")
        zero(2)
        A(f"v_permlane32_swap_b32 v{SUM}, v{TT}")
        A(f"v_add_f32 v{SUM}, v{SUM}, v{TT}")
    A(f"v_rcp_f32 v{SUM}, v{SUM}")
    tr('rcp')
    zero(1)
    for k, Dx in enumerate((DA, DB)):
        for r in (0, 2): A(f"v_pk_mul_f32 {v(Dx + r, 2)}, {v(Dx + r, 2)}, {v(SUM, 2)} op_sel_hi:[1,0]")
    A(f"v_cvt_pk_bf16_f32 v12, v{DA}, v{DA+1}")
    A(f"v_cvt_pk_bf16_f32 v13, v{DA+2}, v{DA+3}")
    A(f"v_cvt_pk_bf16_f32 v14, v{DB}, v{DB+1}")
    A(f"v_cvt_pk_bf16_f32 v15, v{DB+2}, v{DB+3}")
    D.op(f"ds_write_b128 v{OW}, v[12:15]")
    tr('ow')
    zq += zl
    zq.sort()
    if MZ:
        for o in misc: A(o)
        A("v_mfma_f32_32x32x8_bf16 v[28:43], v[10:11], v[10:11], 0")
        A("v_mfma_f32_32x32x8_bf16 v[44:59], v[10:11], v[10:11], 0")
        post = ["v_mov_b64 v[60:61], 0", "v_mov_b64 v[62:63], 0"]
    else:
        post = [f"v_mov_b64 {v(r, 2)}, 0" for r in zq] + misc[:4]
        for _ in range(EXP.get('zb', 6)): A(post.pop(0))
    D.waitall()
    A("s_barrier")
    tr('b3')
    OF = 12
    D.op(f"ds_read_b128 {v(OF, 4)}, v{MEMR} offset:{L_OL}", 'o0')
    D.op(f"ds_read_b128 {v(OF + 4, 4)}, v{MEMR} offset:{L_OL + 1024}", 'o1')
    A(post.pop(0))
    D.op(f"ds_write2_b32 v{QKW}, v{VMR}, v{VMR+1} offset0:0 offset1:{QSTR // 4}")
    cur[0] = 0
    wq_ = sorted(SWO)
    def wo_next():
        if wq_:
            k_ = wq_.pop(0)
            lds_frag(SWO[k_], WB, ('wo', k_), areg=11)
    wo_next()
    for _ in range(EXP.get('za', 3)):
        if post: A(post.pop(0))
    def acc(t): return AO + 4 * WORD.index(t)
    def wpost(t):
        c = acc(t)
        o = [f"v_add_f32 v{c}, v{c}, v{c+1}", f"v_add_f32 v{c+1}, v{c+2}, v{c+3}"]
        if t == 8:
            o.append(f"v_cvt_pk_bf16_f32 v{c+2}, v{c}, v{c+1}")
            o.append(f"v_bfi_b32 v{c+2}, 1, v{TMPC}, v{c+2}")
            o.append(f"global_store_dword v{PL}, v{c+2}, s[42:43] {st}")
        elif t & 1:
            p = acc(t - 1); sb = 26 if t == 1 else 88 + 2 * (t // 2)
            o.append(f"v_cvt_pk_bf16_f32 v{c+2}, v{p}, v{c}")
            o.append(f"v_cvt_pk_bf16_f32 v{c+3}, v{p+1}, v{c+1}")
            o.append(f"v_bfi_b32 v{c+2}, 1, v{TMPC}, v{c+2}")
            o.append(f"global_store_dwordx2 v{PS}, {v(c + 2, 2)}, s[{sb}:{sb+1}] {st}")
        return o
    D.wait('o0')
    tr('wo0')
    seq = [(t, k2) for t in WORD for k2 in range(2)]
    if EXP.get('il', 0):
        seq = [(8, 0), (0, 0), (8, 1), (1, 0), (0, 1)]
        for t in range(1, 7): seq += [(t + 1, 0), (t, 1)]
        seq += [(7, 1)]
        assert len(seq) == 18 and not SWO
    vq = list(post); since = {}
    slots = 0
    for k, (t, k2) in enumerate(seq):
        if k2 == 1: D.wait('o1')
        if k in SWO:
            D.wait(('wo', k))
            smf(acc(t), OF + 4 * k2, WB)
            wo_next()
            slots += 2
        else: smf(acc(t), OF + 4 * k2, WO(t, k2))
        slots += 1
        if k2 == 1: since[t] = slots
        em = 0
        for _ in range(EXP.get('wv', 2) + (1 if len(vq) > EXP.get('wq', 1) else 0)):
            for tt_ in list(since):
                if slots - since[tt_] >= EXP.get('wlag', 8): vq += wpost(tt_); del since[tt_]
            if vq: A(vq.pop(0)); slots += 1; em += 1
        if em == 0 and since and EXP.get('wn', 2):
            A(f"s_nop {EXP.get('wn', 2) - 1}"); slots += EXP.get('wn', 2)
    tr('wo1')
    for tt_ in list(since): vq += wpost(tt_)
    for o in vq: A(o)
    tr('wo2')
    D.q = []
    SEL, RD, MS, LA = 12, 16, 8, 9
    LDB = (24, 40)
    kind = (1, 1, 2, 0)[wv]
    lab = f"L_rp1_{sfx}"
    LD = 24
    def wkpre():
        for o in book: A(o)
        for n in sorted(range(3), key=wslot): wk_read(n)
    if kind:
        def loads():
            if kind == 2: A(f"global_load_dwordx4 {v(LD, 4)}, v{LA}, s[28:29] {LF}")
            else:
                for j in range(4): A(f"global_load_dwordx4 {v(LD + 4 * j, 4)}, v{L16}, s[28:29] offset:{j * 1024} {LF}")
        P = Asm()
        if kind == 1:
            P(f"v_bfe_u32 v20, v{L16}, 4, 1")
            P(f"v_bfe_u32 v21, v{L16}, 5, 1")
            P(f"v_bfe_u32 v22, v{L16}, 6, 1")
            P("v_lshl_add_u32 v22, v21, 1, v22")
        else:
            P(f"v_bfe_u32 v20, v{L16}, 6, 1")
            P(f"v_bfe_u32 v22, v{L16}, 4, 2")
            P(f"v_bfe_u32 v23, v{L16}, 8, 1")
            P("v_xor_b32 v23, s12, v23")
        P("v_lshlrev_b32 v20, 4, v20")
        P("v_mov_b32 v21, 0x3f80")
        P("v_lshlrev_b32 v21, v20, v21")
        m_ = Asm(); ms_calc(m_, kind, MS, 10); mq = [i.text.strip() for i in m_.ins]
        for j in range(4):
            P(f"v_cmp_eq_u32 vcc, {j}, v22")
            for _ in range(2):
                if mq: P(mq.pop(0))
            P(f"v_cndmask_b32 v{SEL+j}, 0, v21, vcc")
        for o in mq: P(o)
        P("v_mov_b64 v[10:11], -1")
        pq = [i.text.strip() for i in P.ins]
        if wv == 0:
            wkpre()
            A(f"s_waitcnt vmcnt({EXP.get('k0', 1)})")
            tr('p1s'); loads()
            for o in pq: A(o)
        elif wv == 1:
            wkpre()
            tp = EXP.get('tp', 3)
            A(f"s_waitcnt vmcnt({EXP.get('k1', 0)})")
            for o in pq[:tp]: A(o)
            tr('p1s'); loads()
            for o in pq[tp:]: A(o)
        else:
            lane_const(A, LA, lambda x: (x >> 5) * 256 + ((x >> 4) & 1) * 16, src=L16, nbits=10, tmp=10)
            tr('p1s'); loads()
            wkpre()
            for o in pq: A(o)
        A.label(lab)
        if kind == 1:
            for j in range(4):
                A(f"s_waitcnt vmcnt({3 - j})")
                tr(f'p1w{j}')
                A(f"{MF32} {v(RD, 4)}, {v(SEL, 4)}, {v(LD + 4 * j, 4)}, {v(RD, 4) if j else 0}")
                A(f"v_bitop3_b32 v{20 + j}, v{LD+4*j}, v{LD+4*j+2}, {'s13' if j & 1 else 's12'} bitop3:0x7e")
                if j == 2: A("v_or3_b32 v20, v20, v21, v22")
            A("v_bitop3_b32 v20, v20, v23, 1 bitop3:0xa8")
        else:
            A("s_waitcnt vmcnt(0)")
            A(f"{MF32} {v(RD, 4)}, {v(SEL, 4)}, {v(LD, 4)}, 0")
            A(f"v_bitop3_b32 v20, v{LD}, v{LD+1}, v23 bitop3:0x7e")
            A(f"v_bitop3_b32 v21, v{LD+2}, v{LD+3}, v23 bitop3:0x7e")
            A("v_bitop3_b32 v20, v20, v21, 1 bitop3:0xa8")
        A("v_cmp_ne_u32 vcc, 0, v20")
        for r in range(4): A(f"v_add_f32_dpp v{RD+r}, v{RD+r}, v{RD+r} {ROR8}")
        if kind == 2:
            for r in range(4): A(f"v_add_f32_dpp v{RD+r}, v{RD+r}, v{RD+r} row_ror:4 row_mask:0xf bank_mask:0xf")
            for r in range(4): A(f"v_add_f32_dpp v{RD+r}, v{RD+r}, v{RD+r} quad_perm:[2,3,0,1] row_mask:0xf bank_mask:0xf")
        A(f"v_cvt_pk_bf16_f32 v20, v{RD}, v{RD+1}")
        A(f"v_cvt_pk_bf16_f32 v21, v{RD+2}, v{RD+3}")
        A("s_mov_b64 exec, s[44:45]")
        A(f"s_cbranch_vccnz {lab}_rt")
        tr('p1ok')
        A(f"global_store_dwordx2 v{MS}, v[20:21], s[14:15] {st}")
        A(f"global_store_dwordx2 v{MS}, v[10:11], s[60:61] {st}")
        A("s_mov_b64 exec, -1")
        if EXP.get('rt'): A("s_add_u32 s76, s76, s55")
    else:
        wkpre()
        if nkv:
            A(f"v_mov_b32 v28, {L_QL + 256}")
            A("s_waitcnt vmcnt(5)")
            A("ds_read_b128 v[28:31], v28")
            A("s_waitcnt lgkmcnt(0)")
            A("v_min3_u32 v28, v28, v29, v30")
            A("v_min_u32 v28, v28, v31")
            A("v_readfirstlane_b32 s12, v28")
            A("s_max_u32 s54, s54, s12")
        kv_wait(A, "s25", nkv, kvg0, 28, XIT)
        if EXP.get('steps'):
            A("s_memrealtime s[64:65]")
            A("s_memtime s[66:67]")
            A("s_lshl_b32 s12, s9, 6")
            A("s_add_u32 s12, s12, s24")
            A("s_lshl_b32 s12, s12, 3")
            A(f"s_add_u32 s12, s12, {WS_STAMP + 0x50000}")
            A("v_mov_b32 v28, s12")
            A("s_waitcnt lgkmcnt(0)")
            A("v_mov_b32 v30, s64")
            A("v_mov_b32 v31, s66")
            A("s_mov_b64 exec, 1")
            A("global_store_dwordx2 v28, v[30:31], s[4:5]")
            A("s_mov_b64 exec, -1")
    A("s_barrier")
    tr('b4')
    A("s_mov_b32 s55, 0")
    def loads2():
        for j, ks in enumerate(LDL):
            if ks == 8: A(f"global_load_dwordx4 {v(lreg(j), 4)}, v{L16}, s[16:17] {LF}")
            else: A(f"global_load_dwordx4 {v(lreg(j), 4)}, v{L16}, s[20:21] offset:{(ks - 4) * 1024} {LF}")
    Z2 = EXP.get('z2', 8)
    spill_read(MRING + 8 if P3 else ACCV0)
    zero_qk(12, 12 + 2 * Z2)
    tr('p2s')
    loads2()
    zero_qk(12 + 2 * Z2, 28)
    if P3 and wv: zero_qk(ACCV0, ACCV0 + 4)
    A("s_mov_b32 m0, s62")
    A(f"s_branch {f'L_rp2_{sfx}' if not TR else f'L_rp2ok_{sfx}'}")
    A.label(f"L_rf2_{sfx}")
    if EXP.get('rt'): A("s_add_u32 s77, s77, 1")
    A("s_mov_b64 exec, vcc")
    loads2()
    A("s_mov_b64 exec, -1")
    if SP: zero_qk(ACCQ, ACCQ + 8)
    A("s_add_u32 s55, s55, 1")
    A(f"s_cmp_gt_u32 s55, {SPIN_MAX}")
    A(f"s_cbranch_scc0 L_rp2_{sfx}")
    A(f"s_branch {XIT}")
    if kind:
        A.label(lab + "_rt")
        A("s_mov_b64 exec, vcc")
        loads()
        A("s_mov_b64 exec, -1")
        backoff(A, 55)
        A("s_add_u32 s55, s55, 1")
        A(f"s_cmp_gt_u32 s55, {SPIN_MAX}")
        A(f"s_cbranch_scc0 {lab}")
        A(f"s_branch {XIT}")
    A.label(f"L_rp2ok_{sfx}")
    tr('p2ok')
    if TR:
        A("s_cmp_lg_u32 s24, 41")
        A(f"s_cbranch_scc1 L_rp2_{sfx}")
        A("s_waitcnt lgkmcnt(0)")
        A("s_lshl_b32 s12, s9, 2")
        A("s_add_u32 s12, s12, s10")
        A("s_lshl_b32 s12, s12, 6")
        A(f"s_add_u32 s12, s12, {WS_STAMP + 16384}")
        A(f"v_mov_b32 v{TMPC}, s12")
        for q in range(11):
            A(f"v_mov_b32 v63, s{64 + 2 * q}")
            A(f"global_store_dword v{TMPC}, v63, s[4:5] offset:{4 * q}")
            A("s_waitcnt vmcnt(0)")
    A(f"s_branch L_rp2_{sfx}")
    A.label(f"L_rlast_{sfx}")
    A("s_lshl_b32 s13, s24, 17")
    add64(A, 38, 50, "s13")
    D.waitall()
    lr = {8: mslot(8), 7: mslot(7), 6: mslot(6), 5: 44, 4: 48, 3: 52, 2: 56, 1: 60, 0: 12}
    for p in (4, 3, 2, 1, 0): mem_read(ORD[p], lr[p], ('lm', p))
    for p in range(8, -1, -1):
        D.wait(('lm', p))
        smf(ACCV1, lr[p], WV(ORD[p], 1))
        if p < V0S: smf(ACCV0, lr[p], WV(ORD[p], 0))
    for b in range(2):
        A(f"v_add_f32 v{ACCK+4*b}, v{ACCK+4*b}, v{ACCK+4*b+1}")
        A(f"v_add_f32 v{ACCK+4*b+2}, v{ACCK+4*b+2}, v{ACCK+4*b+3}")
    A(f"v_cvt_pk_bf16_f32 v16, v{ACCK}, v{ACCK+4}")
    A(f"v_cvt_pk_bf16_f32 v17, v{ACCK+2}, v{ACCK+6}")
    for a_ in (ACCV1, ACCV0):
        A(f"v_add_f32 v{a_}, v{a_}, v{a_+1}")
        A(f"v_add_f32 v{a_+2}, v{a_+2}, v{a_+3}")
    A(f"v_cvt_pk_bf16_f32 v18, v{ACCV0}, v{ACCV0+2}")
    A(f"v_cvt_pk_bf16_f32 v19, v{ACCV1}, v{ACCV1+2}")
    A(f"global_store_dwordx4 v{T16}, v[16:19], s[38:39] sc1")
    tl(A, 4)
    if EXP.get('rt'):
        A("s_memrealtime s[82:83]")
        A("s_memtime s[98:99]")
        A("s_waitcnt lgkmcnt(0)")
        A("s_sub_u32 s75, s98, s96")
        A("s_sub_u32 s78, s80, s84")
        A("s_sub_u32 s79, s82, s80")
        A("s_lshl_b32 s12, s9, 2")
        A("s_add_u32 s12, s12, s10")
        A("s_lshl_b32 s12, s12, 6")
        A(f"s_add_u32 s12, s12, {WS_STAMP}")
        A("v_mov_b32 v12, s12")
        for q in range(4):
            for r in range(4): A(f"v_mov_b32 v{16+r}, s{64 + 4 * q + r}")
            A(f"global_store_dwordx4 v12, v[16:19], s[4:5] offset:{16 * q}")
            A("s_waitcnt vmcnt(0)")
    A.label(XIT)
    A("s_endpgm")

def role_r(A, restart, nkv, kvg0):
    if EXP.get('rt'):
        A("s_memrealtime s[84:85]")
        A("s_waitcnt lgkmcnt(0)")
    r_setup(A)
    r_swap(A)
    tl(A, 1)
    A("s_waitcnt vmcnt(0)")
    A("s_mov_b32 s54, 0")
    A("v_min3_u32 v6, v8, v9, v10")
    A("v_min_u32 v6, v6, v11")
    mode_check(A, tv=12, pre=4)
    r_consts(A)
    r_pro(A, nkv, kvg0)
    A("s_cmp_eq_u32 s11, 0")
    A("s_cbranch_scc1 L_r_slow")
    for fast in (True, False):
        t = 'f' if fast else 's'
        if not fast: A.label("L_r_slow")
        for w in range(1, 4):
            A(f"s_cmp_eq_u32 s10, {w}")
            A(f"s_cbranch_scc1 L_rent_{t}{w}")
        for w in range(4):
            A.label(f"L_rent_{t}{w}")
            r_main(A, fast, w, nkv, kvg0)
```

```python
from common import *
import math, struct

L_MEM, L_KX, L_VX = 0, 9216, 17408
L_QL, L_KL, L_OL = 25600, 27904, 30208
L_JUNK = 32256
L_WK = 32768
QSTR = 288
KL0 = L_KL - L_QL
T16, WKB, L16, MEMR, QR, QKW, OW, IDX = range(0, 8)
TMPC = WKB
def WQ(ks, b): return 256 + (ks * 2 + b) * 8
def WV(ks, b):
    i = ks * 2 + b
    return 400 + i * 8 if i < 14 else 64 + (i - 14) * 8
def WO(t, k2): return 96 + (t * 2 + k2) * 8
def WK8(b): return 240 + b * 8
ACCV0, ACCQ, ACCK, MRING, WRING, ACCV1 = 8, 12, 20, 28, 40, 40
SMF = "v_smfmac_f32_16x16x64_bf16"
MF32 = "v_mfma_f32_16x16x32_bf16"
MF16 = "v_mfma_f32_16x16x16_bf16"
IDQ = "quad_perm:[0,1,2,3]"
ROR8 = "row_ror:8 row_mask:0xf bank_mask:0xf"
def FSW(i): return 2 * (0, 2, 3, 1)[i >> 1] + (i & 1)
def img(i, pos): return i * 128 + ((pos ^ FSW(i)) * 16)
def mimg(i, pos): return ((pos >> 1) * 16 + 2 * i + (pos & 1)) * 16
PI = [0, 1, 4, 5, 2, 3, 6, 7]
EXP = {}
PF = 1
ORD = [8, 0, 1, 2, 3, 4, 5, 6, 7]
ORD0 = ORD

WORD = [8, 0, 1, 2, 3, 4, 5, 6, 7]
def swap_tab():
    nsw = EXP.get('nsw', 0)
    return list(zip([4, 7, 10, 13, 15, 1][:nsw], [3, 7, 10, 13, 16, 0][:nsw]))
def wo_reg(k): return WO(WORD[k // 2], k & 1)
def wk_off(n): return L_WK + (n >> 1) * 16384 + (n & 1) * 8192

def r_swap(A):
    for n, k in swap_tab():
        A(f"v_lshlrev_b32 v12, 4, v0")
        A(f"v_add_u32 v12, {wk_off(n)}, v12")
        A("ds_read_b128 v[16:19], v12")
        A("ds_read_b128 v[20:23], v12 offset:4096")
        A("s_waitcnt lgkmcnt(0)")
        r = wo_reg(k)
        A(f"ds_write_b128 v12, {v(r, 4)}")
        A(f"ds_write_b128 v12, {v(r + 4, 4)} offset:4096")
        A("s_waitcnt lgkmcnt(0)")
        for q in range(0, 8, 2): A(f"v_mov_b64 {v(r + q, 2)}, {v(16 + q, 2)}")

def r_setup(A):
    A(f"s_load_dwordx4 s[16:19], s[0:1], {KA_WQ}")
    A(f"s_load_dwordx4 s[20:23], s[0:1], {KA_WV}")
    A(f"s_load_dwordx2 s[24:25], s[0:1], {KA_MEM0}")
    def swz(lr): return 2 * ((lr & 1) | ((lr >> 3) & 1) << 1 | ((lr >> 5) & 1) << 2)
    def swz2(row): return 2 * (((row >> 2) & 1) | ((row >> 4) & 1) << 1)
    for ip in range(4):
        def fq(t, last=False):
            w, l = t >> 6, t & 63
            lr = 16 * w + 4 * ip + (l >> 4); e, pos = lr >> 3, lr & 7
            d = 512 + 8 * pos + e if last else 64 * (e & 1) + 4 * pos + (e >> 1)
            return d * 8192 + (((l & 15) ^ swz(lr)) * 16)
        lane_const(A, 12 + ip, fq, tmp=1)
        lane_const(A, 16 + ip, lambda t: fq(t, True), tmp=1)
        lane_const(A, 20 + ip, lambda t: (32 * (t >> 6) + 8 * ip + ((t & 63) >> 3)) * 1152, tmp=1)
        lane_const(A, 20 + ip, lambda t: ((t & 7) ^ swz2(32 * (t >> 6) + 8 * ip + ((t & 63) >> 3))) * 16, tmp=1, acc=True)
    def ftr(t, b):
        w, l = t >> 6, t & 63
        gb, half, bp, c = l >> 4, (l >> 3) & 1, (l >> 2) & 1, l & 3
        lr = 32 * (gb & 1) + 8 * bp + 2 * (gb >> 1) + half
        return L_WK + lr * 256 + (((4 * w + 2 * b + (c >> 1)) ^ swz(lr)) * 16) + (c & 1) * 8
    lane_const(A, 24, lambda t: ftr(t, 0), tmp=1)
    lane_const(A, 25, lambda t: ftr(t, 1), tmp=1)
    def fto(t):
        w, l = t >> 6, t & 63
        gb, half, bp, c = l >> 4, (l >> 3) & 1, (l >> 2) & 1, l & 3
        row = 16 * (gb & 1) + 8 * (gb >> 1) + 4 * half + bp
        return L_WK + row * 128 + (((2 * w + (c >> 1)) ^ swz2(row)) * 16) + (c & 1) * 8
    lane_const(A, 26, fto, tmp=1)
    lane_const(A, 27, lambda t: L_WK + t * 16, tmp=1)
    A("s_waitcnt lgkmcnt(0)")
    A("s_lshl_b32 s12, s9, 8")
    for p in (16, 18, 20):
        add64(A, p, p, "s12")
    A("s_mul_i32 s12, s9, 147456")
    add64(A, 22, 22, "s12")
    A("s_lshl_b32 s26, s10, 12")
    A(f"s_add_u32 s26, s26, {L_WK}")
    chunks = [(m_, k) for m_ in ('qvo', 'oqv', 'vqo', 'ovq')[EXP.get('ro', 0)] for k in range(9)] + [('k', 7)] + [('k', ORD[j % 8]) for j in range(28, 36)]
    ptr = {'q': 16, 'k': 18, 'v': 20, 'o': 22}
    def issue(j):
        m, k = chunks[j]
        slot = j % 8
        if m == 'o': off, vb = k * 128, 20
        elif k < 8: off, vb = (128 * (k >> 1) + 32 * (k & 1)) * 8192, 12
        else: off, vb = 0, 16
        add64(A, 12, ptr[m], off)
        for ip in range(4):
            A(f"s_add_u32 m0, s26, {slot * 16384 + ip * 1024}")
            A(f"global_load_lds_dwordx4 v{vb+ip}, s[12:13]")
    def fd(m, t): return 256 * m + t if m < 2 else 512 + (t & 63)
    def fa(m, t):
        d = fd(m, t)
        if d < 512: ks, e, pos = 2 * (d >> 7) + ((d >> 5) & 1), 2 * (d & 3) + ((d >> 6) & 1), (d >> 2) & 7
        else: ks, e, pos = 8, d & 7, (d >> 3) & 7
        return ks * 1024 + mimg(0, pos) + e * 2
    def mem0_issue():
        for m in range(3):
            lane_const(A, 4 + m, lambda t: 2 * fd(m, t), tmp=1)
            lane_const(A, 8 + m, lambda t: fa(m, t), tmp=1)
            for i in range(8):
                A(f"v_add_u32 v2, {i * 1152}, v{4+m}")
                A(f"global_load_ushort v{32+8*m+i}, v2, s[24:25]")
    def mem0_write():
        for m in range(3):
            for i in range(8):
                A(f"ds_write_b16 v{8+m}, v{32+8*m+i} offset:{L_MEM + i * 32}")
    def status0():
        lane_const(A, 2, lambda t: arr_word(t & 7) * 4, tmp=1)
        A("global_load_dword v4, v2, s[6:7] sc1")
    def status_issue():
        A("s_lshl_b32 s12, s9, 7")
        A(f"s_add_u32 s12, s12, {WS_KVPROG + 4096}")
        A("v_mov_b32 v2, s12")
        A("global_load_dwordx4 v[8:11], v2, s[4:5] sc1")
    for j in range(7): issue(j)
    n = len(chunks)
    for j in range(n + 1):
        if j < n:
            ahead = min(n - 1, j + 6) - j
            extra = 24 if 1 <= j <= 7 else (1 if 33 <= j <= 35 else (1 if 25 <= j <= 31 else 0))
            A(f"s_waitcnt vmcnt({4 * ahead + extra})")
        A("s_barrier")
        if j + 7 < n: issue(j + 7)
        if j == 0: mem0_issue()
        if j == 9: mem0_write()
        if j == 24: status0()
        if j == 32: status_issue()
        if j >= 29:
            pk = (j - 1) % 8; tb = 32 + ((j - 1) & 1) * 16
            A(f"v_add_u32 v28, {pk * 16384}, v27")
            for q in range(4):
                A(f"ds_write_b128 v28, {v(tb + 4 * q, 4)} offset:{q * 4096}")
        if j < n:
            m, k = chunks[j]; slot = j % 8
            if m == 'o':
                A(f"v_add_u32 v28, {slot * 16384}, v26")
                for k2 in range(2):
                    for jq in range(4):
                        off = (64 * k2 + 32 * (jq >> 1) + 2 * (jq & 1)) * 128
                        A(f"ds_read_b64_tr_b16 {u(WO(k, k2) + 2 * jq, 2)}, v28 offset:{off}")
            else:
                A(f"v_add_u32 v28, {slot * 16384}, v24")
                A(f"v_add_u32 v29, {slot * 16384}, v25")
                for b in range(2):
                    if m == 'q': dst = WQ(k, b)
                    elif m == 'v': dst = WV(k, b)
                    elif j == 27: dst = WK8(b)
                    else: dst = 32 + (j & 1) * 16 + b * 8
                    for jq in range(4):
                        off = (16 * (jq & 1) + 4 * (jq >> 1)) * 256
                        A(f"ds_read_b64_tr_b16 {u(dst + 2 * jq, 2)}, v{28+b} offset:{off}")
        A("s_waitcnt lgkmcnt(0)")

def r_consts(A):
    lane_const(A, L16, lambda t: (t & 63) * 16, tmp=12)
    lane_const(A, MEMR, lambda t: img((t & 15) >> 1, 2 * ((t >> 4) & 3) + (t & 1)), tmp=12)
    lane_const(A, QR, lambda t: L_QL + (t & 7) * QSTR + ((t >> 4) & 3) * 16, tmp=12)
    lane_const(A, QKW, lambda t: L_QL + (0, 4, 2, 6)[(t >> 4) & 3] * QSTR + (t >> 6) * 64 + (t & 15) * 4, tmp=12)
    lane_const(A, OW, lambda t: (t >> 7) * 1024 + img(PI[t & 7], 4 * ((t >> 6) & 1) + ((t >> 4) & 3)), tmp=12)
    A(f"v_add_u32 v{OW}, {L_OL}, v{OW}")
    lane_const(A, 14, lambda t: L_JUNK + (((t >> 4) & 3) * 8 + (t & 7)) * 16, tmp=12)
    A("v_and_b32 v12, 8, v0")
    A("v_cmp_ne_u32 vcc, 0, v12")
    A(f"v_cndmask_b32 v{OW}, v{OW}, v14, vcc")
    lane_const(A, IDX, lambda t: 0xEEEE if t & 1 else 0x4444, tmp=12)
    A(f"v_lshlrev_b32 v{T16}, 4, v0")
    A("s_and_b32 s12, s10, 1")
    A("s_lshl_b32 s12, s12, 5")
    A("s_add_u32 s37, s12, s9")
    A("v_mov_b32 v14, s37")
    lane_const(A, 15, lambda t: ms_fn(1, t, 0), src=14, nbits=6, tmp=12)
    lane_const(A, 16, lambda t: ms_fn(2, t, 0), src=14, nbits=5, tmp=12)
    if EXP.get('tm', 1): lane_const(A, 17, lambda t: WS_RP + t * 4096, src=14, nbits=6, tmp=12)
    else: lane_const(A, 17, lambda t: WS_RP + (t >> 2) * 16384 + (t & 3) * 128 + 4096, src=14, nbits=6, tmp=12)
    lane_const(A, 18, lambda t: WS_RP + 0x40000 + (t >> 3) * 8192 + (t & 7) * 32, src=14, nbits=5, tmp=12)
    A("v_readfirstlane_b32 s41, v15")
    A("v_readfirstlane_b32 s12, v16")
    A("v_readfirstlane_b32 s13, v17")
    A("v_readfirstlane_b32 s14, v18")
    A("s_cmp_lt_u32 s10, 2")
    A("s_cselect_b32 s41, s41, s12")
    A("s_cselect_b32 s13, s13, s14")
    if EXP.get('rep', 0):
        A("s_cselect_b32 s44, -1, 0x03030303")
        A("s_mov_b32 s45, s44")
        A("s_and_b32 s36, s9, 3")
        A("s_lshl_b32 s36, s36, 15")
        A("s_add_u32 s36, s36, 3072")
    else:
        A("s_mov_b32 s44, 0x00030003")
        A("s_cselect_b32 s44, 0x00FF00FF, s44")
        A("s_mov_b32 s45, 0")
        A("s_movk_i32 s36, 3072")
    add64(A, 28, S_WS, "s13")
    add64(A, 16, 28, 8192)
    A("s_lshl_b32 s12, s10, 5")
    A("s_add_u32 s12, s12, s9")
    A("s_lshl_b32 s13, s12, 9")
    if EXP.get('tm', 1):
        A("s_lshl_b32 s13, s10, 7")
        A("s_add_u32 s13, s13, s9")
        A("s_lshl_b32 s13, s13, 7")
    A(f"s_add_u32 s13, s13, {WS_RP}")
    add64(A, 26, S_WS, "s13")
    for p in range(1, 4): add64(A, 88 + 2 * p, 26, p * 65536)
    A("s_lshl_b32 s13, s12, 8")
    A(f"s_add_u32 s13, s13, {WS_RP + 0x40000}")
    add64(A, 42, S_WS, "s13")
    add64(A, 30, S_WS, WS_RM)
    cc = struct.unpack('<I', struct.pack('<f', (128 ** -0.5) * math.log2(math.e)))[0]
    A(f"s_mov_b32 s46, {cc:#x}")
    A("s_bfe_u32 s40, s9, 0x10003")
    A("s_lshl_b32 s12, s9, 14")
    A(f"s_add_u32 s12, s12, {WS_KV}")
    add64(A, 88, S_WS, "s12")
    A("s_lshl_b32 s13, s10, 11")
    add64(A, 32, 88, "s13")
    add64(A, 86, 32, 8192)
    A("s_lshl_b32 s12, s9, 12")
    A(f"s_add_u32 s12, s12, {WS_KVM}")
    add64(A, 50, S_WS, "s12")
    A("s_lshl_b32 s12, s9, 7")
    A(f"s_add_u32 s12, s12, {WS_KVPROG + 4096}")
    add64(A, 18, S_WS, "s12")
    A("s_lshl_b32 s12, s9, 2")
    A(f"s_add_u32 s12, s12, {WS_RPROG}")
    add64(A, 52, S_WS, "s12")
    A("s_lshl_b32 s12, s9, 7")
    A(f"s_add_u32 s12, s12, {WS_RPROG}")
    add64(A, 22, S_WS, "s12")
    A("s_lshl_b32 s62, s10, 11")
    A(f"s_add_u32 s62, s62, {L_KX}")
    A("s_lshl_b32 s63, s10, 10")
    A(f"s_add_u32 s57, s63, {L_MEM}")
    A(f"s_add_u32 s63, s63, {L_VX}")

def ms_fn(kind, t, l):
    q8, gp = l & 7, (l >> 4) & 1
    rp = 0
    if kind == 1:
        w, g = (t >> 2) & 3, t & 3
        return rp + (t >> 3) * 1024 + mimg(2 * g + gp, 4 * (w & 1) + (q8 >> 1)) + (q8 & 1) * 8
    w, g, nh = t >> 3, (t >> 1) & 3, t & 1
    return rp + 8192 + mimg(2 * g + gp, 2 * w + nh) + (l & 1) * 8

def ms_calc(A, kind, dst, tmp):
    lane_const(A, dst, lambda x: ms_fn(kind, 0, x >> 4) ^ ms_fn(kind, 0, 0), src=L16, nbits=10, tmp=tmp, mode='xor')
    A(f"v_xor_b32 v{dst}, s41, v{dst}")

def kv_wait(A, seg_sgpr, nkv, kvg0, tv, xit='L_exit'):
    if nkv == 0: return
    ok = A.newlabel('L_kvok'); loop = A.newlabel('L_kvp')
    A(f"s_cmp_lt_u32 {seg_sgpr}, s54")
    A(f"s_cbranch_scc1 {ok}")
    A("s_mov_b32 s55, 0")
    A(f"v_bfe_u32 v{tv}, v{L16}, 2, 4")
    A.label(loop)
    A(f"global_load_dword v{tv+1}, v{tv}, s[18:19] sc1")
    A("s_add_u32 s55, s55, 1")
    A(f"s_cmp_gt_u32 s55, {SPIN_MAX}")
    A(f"s_cbranch_scc1 {xit}")
    A("s_waitcnt vmcnt(0)")
    xsum(A, tv + 1, tv, op="v_min_u32", bits=(0, 1))
    A(f"v_readfirstlane_b32 s54, v{tv+1}")
    A(f"s_cmp_lt_u32 {seg_sgpr}, s54")
    A(f"s_cbranch_scc1 {ok}")
    A("s_sleep 4")
    A(f"s_branch {loop}")
    A.label(ok)

def r_pro(A, nkv, kvg0):
    TR = EXP.get('trace', [])
    A("s_mov_b32 s24, 0")
    A("s_mov_b32 s34, 9216")
    A("s_mov_b32 s35, 0")
    if TR or EXP.get('rt'):
        for i in range(22 if TR else 16): A(f"s_mov_b32 s{64+i}, 0")
    tl(A, 2)
    if EXP.get('warm', 1):
        A("s_mul_i32 s12, s9, 9216")
        A(f"s_add_u32 s12, s12, {WS_RP}")
        A(f"v_lshl_add_u32 v12, v{T16}, 2, s12")
        A("s_lshl_b32 s12, s9, 10")
        A(f"s_add_u32 s12, s12, {WS_RM}")
        A(f"v_add_u32 v13, s12, v{L16}")
        A(f"s_mov_b32 m0, {L_JUNK}")
        A("global_load_lds_dword v12, s[4:5] sc1")
        A("global_load_lds_dword v13, s[4:5] sc1")
    A(f"s_mov_b32 s25, {EXP.get('i1', 1)}")
    kv_wait(A, "s25", nkv, kvg0, 12)
    A(f"v_lshlrev_b32 v12, 2, v{T16}")
    A("global_load_lds_dword v12, s[88:89]")
    tl(A, 3)
    if EXP.get('rt'):
        A("s_memrealtime s[80:81]")
        A("s_memtime s[96:97]")
    add64(A, 38, S_WS, WS_STAMP + 0x8000)
    add64(A, 58, 88, EXP.get('i1', 1) << 19)

def r_main(A, fast, wv, nkv, kvg0, nsteps=64):
    st = "" if fast else "sc1"
    LF = "sc1"
    sfx = ("f" if fast else "s") + str(wv)
    XIT = f"L_rx_{sfx}"
    D = Lds(A)
    TR = EXP.get('trace', [])
    def tr(name):
        if name in TR:
            i = TR.index(name)
            A(f"s_memtime s[{64+2*i}:{65+2*i}]")
    ORD = [ORD0[(2 * wv + p) % 8] for p in range(8)] + [7]
    def wk_off(n): return L_WK + ((2 * wv + (n >> 1)) % 8) * 16384 + (n & 1) * 8192
    OWN = EXP.get('own', 2)
    STG = ORD[:2] + ([7] if wv == 0 else [])
    if OWN == 3:
        if wv == 3: ORD = ORD[:2] + [7] + ORD[2:8]
        LDL = ORD[:3]; STG = ORD[:3] if wv == 3 else ORD[:2]
    else: LDL = STG
    WT = EXP.get('wt', 1)
    P3 = EXP.get('p3', 1)
    def lreg(j): return ACCV0 if (P3 and j == 2) else MRING + 4 * j
    SW = {}; SWO = {}
    LW = [n for n in range(16) if n not in SW]
    cur = [0]
    def lds_frag(n, r, tag, areg=WKB):
        off = wk_off(n); base = (off // 65536) * 65536
        if base and cur[0] != base:
            A(f"v_add_u32 v{areg}, {base:#x}, v{T16}")
            cur[0] = base
        ar = T16 if base == 0 else areg
        D.op(f"ds_read_b128 {v(r, 4)}, v{ar} offset:{off - base}")
        D.op(f"ds_read_b128 {v(r + 4, 4)}, v{ar} offset:{off - base + 4096}", tag)
    RSH = (3 - (len(LW) - 1) % 3) % 3
    def wslot(i): return WRING + ((i + RSH) % 3) * 8
    def wk_read(i):
        cur[0] = 0
        lds_frag(LW[i], wslot(i), ('wk', i))
    def spill_read(r):
        D.op(f"ds_read_b32 v{r}, v{QKW} offset:{KL0}")
        D.op(f"ds_read_b32 v{r+1}, v{QKW} offset:{KL0 + QSTR}")
        D.op(f"ds_read2_b32 {v(r + 2, 2)}, v{QKW} offset0:0 offset1:{QSTR // 4}", 'spill')
    def zero_qk(lo=ACCQ, hi=ACCQ + 16):
        for r in range(lo, hi, 2): A(f"v_mov_b64 {v(r, 2)}, 0")
    for n in sorted(range(3), key=wslot): wk_read(n)
    def mem_read(ks, r, tag):
        D.op(f"ds_read_b128 {v(r, 4)}, v{L16} offset:{L_MEM + ks * 1024}", tag)
    def mslot(p): return MRING + ((0, 1, 0, 1, 2, 0, 1, 2, 0)[p] if P3 else p % 3) * 4
    for p, ks in enumerate(LDL): mem_read(ks, lreg(p), None)
    if P3 and wv: zero_qk(ACCV0, ACCV0 + 4)
    zero_qk()
    A("s_mov_b32 m0, s62")
    A("s_mov_b32 s55, 0")
    A("s_mov_b32 s47, s40")
    A("s_mov_b64 s[20:21], s[30:31]")
    D.waitall()
    SP = EXP.get('sp', 1)
    def smf(acc, ar, w): A(f"{SMF} {v(acc, 4)}, {v(ar, 4)}, {u(w, 8)}, v{IDX}")
    head = [(ACCQ, WQ(ORD[0], 0)), (ACCQ + 4, WQ(ORD[0], 1))] + ([(ACCV0, WV(ORD[0], 0))] if wv else [])
    top = f"L_rtop_{sfx}"
    assert SP
    smf(head[0][0], mslot(0), head[0][1])
    smf(head[1][0], mslot(0), head[1][1])
    A(f"s_branch L_rgo_{sfx}")
    A.label(f"L_rp2_{sfx}")
    ns = len(LDL)
    A(f"s_waitcnt vmcnt({ns - 1})")
    tr('p2w0')
    smf(head[0][0], mslot(0), head[0][1])
    A(f"v_max_u32 v{TMPC}, v{lreg(0)}, v{lreg(0)+2}")
    for j in range(1, ns):
        A(f"s_waitcnt vmcnt({ns - 1 - j})")
        A(f"v_max3_u32 v{TMPC}, v{TMPC}, v{lreg(j)}, v{lreg(j)+2}")
    A(f"v_cmp_eq_u32 vcc, -1, v{TMPC}")
    smf(head[1][0], mslot(0), head[1][1])
    A(f"ds_write_b128 v{L16}, {v(lreg(0), 4)} offset:{L_MEM + STG[0] * 1024}")
    A(f"s_cbranch_vccnz L_rf2_{sfx}")
    A.label(f"L_rgo_{sfx}")
    if wv: smf(head[2][0], mslot(0), head[2][1])
    A(f"ds_write_b128 v{L16}, {v(lreg(1), 4)} offset:{L_MEM + STG[1] * 1024}")
    tr('b1')
    D.q = ['pre'] + ['mw'] * 2
    D.wait('pre')
    KE = EXP.get('kearly', 0)
    loc = {('m', 8): mslot(8), ('m', 7): mslot(7), ('m', 6): mslot(6)}
    NSL = 3 if (nkv and wv == 3) else 2
    def sread(tag, r):
        loc[tag] = r
        if tag[0] == 'q': D.op(f"ds_read_b128 {v(r, 4)}, v{QR} offset:{tag[1] * 64}", tag)
        elif tag[0] == 'km': D.op(f"ds_read_b128 {v(r, 4)}, v{QR} offset:{KL0 + tag[1] * 64}", tag)
        elif tag[0] == 'kx': D.op(f"ds_read_b128 {v(r, 4)}, v{L16} offset:{L_KX + (tag[1] * 4 + tag[2]) * 1024}", tag)
        elif tag[0] == 'm': mem_read(ORD[tag[1]], r, tag)
        elif tag[0] == 'vx':
            if tag[1] == 0: A(f"s_waitcnt vmcnt({NSL})")
            D.op(f"ds_read_b128 {v(r, 4)}, v{T16} offset:{L_VX + tag[1] * 4096}", tag)
    def smf(acc, ar, w): A(f"{SMF} {v(acc, 4)}, {v(ar, 4)}, {u(w, 8)}, v{IDX}")
    V0S = 2 if KE else 3
    BP = EXP.get('bp', 5)
    pos = (1, 2, 4, 5, 7, 9, 10, 13) if KE else (BP + 1, BP + 2, BP + 3, BP + 4, 11, 13, 14, 18)
    ext = {pos[0]: f"global_load_lds_dwordx4 v{L16}, s[32:33]",
           pos[1]: f"global_load_lds_dwordx4 v{L16}, s[32:33] offset:1024\ns_mov_b32 m0, s63",
           pos[2]: f"global_load_lds_dwordx4 v{L16}, s[86:87]\ns_add_u32 m0, s63, 3072",
           pos[3]: f"global_load_lds_dwordx4 v{L16}, s[86:87] offset:1024\ns_mov_b32 m0, {L_JUNK}",
           pos[4]: f"global_store_dwordx4 v{T16}, {v(ACCV0, 4)}, s[38:39] sc1",
           pos[5]: f"v_lshlrev_b32 v{ACCV0}, 2, v{T16}\nv_mov_b64 {v(ACCV0 + 2, 2)}, 0",
           pos[6]: f"global_load_lds_dword v{ACCV0}, s[58:59]\nv_mov_b64 {v(ACCV0, 2)}, 0\ns_mov_b32 m0, {L_QL + 256}"}
    if P3:
        V0S = 1 if wv == 0 else 0
        BP = EXP.get('bp3', 6) - V0S
        if SP: BP = EXP.get('bps', 3)
        r2 = MRING + 8
        pos = tuple(BP + x for x in [(1, 2, 3, 4, 6, 99, 8, 12), (-2, -1, 1, 3, 5, 99, 7, 11), (1, 3, 5, 7, 9, 99, 11, 14), (-2, -1, 2, 5, 8, 99, 10, 13), (1, 2, 4, 6, 9, 99, 11, 14)][EXP.get('pp', 0)])
        ext = {pos[0]: f"global_load_lds_dwordx4 v{L16}, s[32:33]",
               pos[1]: f"global_load_lds_dwordx4 v{L16}, s[32:33] offset:1024\ns_mov_b32 m0, s63",
               pos[2]: f"global_load_lds_dwordx4 v{L16}, s[86:87]\ns_add_u32 m0, s63, 3072",
               pos[3]: f"global_load_lds_dwordx4 v{L16}, s[86:87] offset:1024\ns_mov_b32 m0, {L_JUNK}",
               pos[4]: f"global_store_dwordx4 v{T16}, {v(r2, 4)}, s[38:39] sc1",
               pos[6]: f"v_lshlrev_b32 v{r2}, 2, v{T16}\nglobal_load_lds_dword v{r2}, s[58:59]\ns_mov_b32 m0, {L_QL + 256}"}
        if wv == 0: ext[2] = ext.get(2, "") + f"\nv_mov_b64 {v(ACCV0, 2)}, 0\nv_mov_b64 {v(ACCV0 + 2, 2)}, 0"
    if nkv and wv == 3: ext[pos[7]] = f"s_mov_b64 exec, 1\nglobal_load_lds_dwordx4 v{L16}, s[18:19] sc1\ns_mov_b64 exec, -1"
    sb_ = Asm()
    sb_("s_lshl_b32 s13, s24, 17")
    add64(sb_, 38, 50, "s13")
    sb_("s_add_u32 s25, s24, 2")
    sb_(f"s_min_u32 s25, s25, {nsteps - 1}")
    sb_("s_lshl_b32 s13, s25, 19")
    add64(sb_, 58, 88, "s13")
    add64(sb_, 86, 86, 1 << 19)
    add64(sb_, 32, 32, 1 << 19)
    add64(sb_, 14, 30, "s34")
    add64(sb_, 60, 30, "s35")
    add64(sb_, 20, 14, 4096)
    if wv == 0: add64(sb_, 16, 14, 8192)
    sb_("s_and_b32 s12, s24, 1")
    sb_("s_xor_b32 s13, s12, 1")
    sb_("s_xor_b32 s47, s13, s40")
    sb_("s_add_u32 s24, s24, 1")
    sb_("s_mov_b32 s35, s34")
    sb_("s_add_u32 s34, s34, 9216")
    sb_("s_cmp_eq_u32 s34, 27648")
    sb_("s_cselect_b32 s34, 0, s34")
    sb_("s_mov_b32 s55, 0")
    book = [i.text.strip() for i in sb_.ins]
    sq = []
    cnt_ = [0]
    held = []
    side = []
    class Defer:
        def op(self, text, tag=None): side.append((text, tag))
    def flush_until(tag):
        while any(t == tag for _, t in side):
            x = side.pop(0)
            D.op(*x) if x[0].startswith('ds_') else A(x[0])
    GAPN = EXP.get('gapn', 2)
    def smfs(acc, ar, w, need=()):
        for t in need:
            flush_until(t); D.wait(t)
        smf(acc, ar, w)
        cnt_[0] += 1
    def gap():
        n = 0
        if cnt_[0] == 1 and len(STG) == 3:
            j = 2
            D.op(f"ds_write_b128 v{L16}, {v(lreg(j), 4)} offset:{L_MEM + STG[j] * 1024}", 'mw')
            n += 1
        if cnt_[0] == BP:
            D.wait('mw')
            A("s_barrier")
            if OWN == 2: mem_read(ORD[2], mslot(2), ('m', 2))
            side.extend(held); held.clear()
            n = GAPN if OWN == 2 else 1
        if cnt_[0] in ext:
            A(ext[cnt_[0]]); n += 1
            if P3 and cnt_[0] == pos[6]: mem_read(ORD[4], r2, ('m', 4)); n += 1
        while side and n < GAPN:
            x = side.pop(0)
            D.op(*x) if x[0].startswith('ds_') else A(x[0])
            n += 1
        while cnt_[0] > pos[7] and sq and n < GAPN:
            A(sq.pop(0)); n += 1
    def d_wk(i):
        off = wk_off(LW[i]); base = (off // 65536) * 65536
        if base and cur[0] != base:
            side.append((f"v_add_u32 v{WKB}, {base:#x}, v{T16}", None)); cur[0] = base
        ar = T16 if base == 0 else WKB
        side.append((f"ds_read_b128 {v(wslot(i), 4)}, v{ar} offset:{off - base}", None))
        side.append((f"ds_read_b128 {v(wslot(i) + 4, 4)}, v{ar} offset:{off - base + 4096}", ('wk', i)))
    def d_kx(kt, j, r):
        loc[('kx', kt, j)] = r
        side.append((f"ds_read_b128 {v(r, 4)}, v{L16} offset:{L_KX + (kt * 4 + j) * 1024}", ('kx', kt, j)))
    cur[0] = 0
    for p in range(8):
        ks = ORD[p]
        m = mslot(p)
        if not (SP and p == 0): smfs(ACCQ, m, WQ(ks, 0), [('m', p)]); gap()
        for b in range(2):
            n = 2 * p + b
            if n in SW: smfs(ACCK + 4 * b, m, wo_reg(SW[n]))
            else:
                i = LW.index(n)
                smfs(ACCK + 4 * b, m, wslot(i), [('wk', i)])
                if i + 3 < len(LW): d_wk(i + 3)
            if P3:
                nx = {1: 3, 2: 5, 3: 6, 4: 7, 5: 8}.get(p)
                if b == 1 and nx: side.insert(0 if nx == 3 else len(side), (f"ds_read_b128 {v(mslot(nx), 4)}, v{L16} offset:{L_MEM + ORD[nx] * 1024}", ('m', nx)))
            elif b == 1 and p + 3 < 9:
                (held if cnt_[0] < BP else side).append((f"ds_read_b128 {v(mslot(p), 4)}, v{L16} offset:{L_MEM + ORD[p + 3] * 1024}", ('m', p + 3)))
            if n == 12:
                side.append((f"s_waitcnt vmcnt({NSL + 2})", None))
                side.append(("s_barrier", None))
            if n == 13: d_kx(0, 0, 48); d_kx(1, 0, 52)
            if n == 14: d_kx(0, 1, 56); d_kx(1, 1, 60)
            gap()
            if b == 0 and not (SP and p == 0):
                smfs(ACCQ + 4, m, WQ(ks, 1)); gap()
                if p >= V0S: smfs(ACCV0, m, WV(ks, 0)); gap()
        tr(f'a{p+1}')
    assert not side, side
    sread(('m', 5), 44)
    D.wait(('m', 8))
    m = mslot(8); ks = ORD[8]
    smfs(ACCQ, m, WQ(ks, 0)); gap(); smfs(ACCQ + 4, m, WQ(ks, 1))
    for o in sq: A(o)
    A(f"v_mov_b64 {v(ACCV1, 2)}, 0")
    smf(ACCK, m, WK8(0))
    A(f"v_mov_b64 {v(ACCV1 + 2, 2)}, 0")
    smf(ACCK + 4, m, WK8(1))
    A(f"v_mov_b32 v{TMPC}, s47")
    smf(ACCV0, m, WV(ks, 0))
    tr('a9')
    A(f"s_cmp_eq_u32 s24, {nsteps - 1}")
    A(f"s_cbranch_scc1 L_rlast_{sfx}")
    fill = [(p, 1) for p in range(8, V0S - 1, -1)]
    for p in range(V0S - 1, -1, -1): fill += [(p, 1), (p, 0)]
    def filler(cnt=1):
        for _ in range(cnt):
            if fill:
                p, b = fill.pop(0)
                D.wait(('m', p))
                smf(ACCV1 if b else ACCV0, loc[('m', p)], WV(ORD[p], b))
    for acc, lo in ((ACCQ, 0), (ACCK, KL0)):
        for b in range(2):
            A(f"v_add_f32 v{acc+4*b}, v{acc+4*b}, v{acc+4*b+1}")
            A(f"v_add_f32 v{acc+4*b+2}, v{acc+4*b+2}, v{acc+4*b+3}")
        A(f"v_cvt_pk_bf16_f32 v{acc+1}, v{acc}, v{acc+4}")
        A(f"v_cvt_pk_bf16_f32 v{acc+3}, v{acc+2}, v{acc+6}")
        if lo == 0: D.op(f"ds_write2_b32 v{QKW}, v{acc+1}, v{acc+3} offset0:0 offset1:{QSTR // 4}")
        else:
            D.op(f"ds_write_b32 v{QKW}, v{acc+1} offset:{lo}")
            D.op(f"ds_write_b32 v{QKW}, v{acc+3} offset:{lo + QSTR}", 'qkw')
    tr('qkw')
    filler(1)
    sread(('m', 4), 16); sread(('m', 3), 24); sread(('m', 2), mslot(8))
    filler(3)
    D.wait('qkw')
    A("s_barrier")
    tr('b2')
    T0, T1, T2 = 12, 16, 20
    sread(('q', 0), mslot(7)); sread(('km', 0), mslot(6)); sread(('q', 1), 44)
    filler(2)
    sread(('km', 1), 24)
    filler(1 if V0S < 3 else 2)
    sread(('q', 2), mslot(8))
    pend = [('kx', 0, 2), ('kx', 1, 2), ('km', 2), ('q', 3), ('kx', 0, 3), ('kx', 1, 3), ('km', 3),
            ('m', 1), ('m', 0), ('vx', 0), ('vx', 1)]
    free = []
    for j in range(4):
        for T, tag in ((T0, ('kx', 0, j)), (T1, ('kx', 1, j)), (T2, ('km', j))):
            D.wait(tag); D.wait(('q', j))
            A(f"{MF32} {v(T, 4)}, {v(loc[tag], 4)}, {v(loc[('q', j)], 4)}, {v(T, 4) if j else 0}")
            if pend: sread(pend.pop(0), loc[tag])
            else: free.append(loc[tag])
        if pend: sread(pend.pop(0), loc[('q', j)])
        else: free.append(loc[('q', j)])
    tr('s_done')
    BX, Z, DA, DB = free[0], free[1], free[2], free[3]
    filler(3 if P3 else 2)
    M, TT, SUM = 16, 17, 18
    VMR = 22
    AO = 28
    busy = set()
    for b_ in (BX, Z, DA, DB, loc[('vx', 0)], loc[('vx', 1)], ACCV1, loc[('m', 0)]): busy |= set(range(b_, b_ + 4))
    zq = [r for r in range(AO, AO + 36, 2) if r not in busy]
    late = set(range(DA, DA + 4)) | set(range(DB, DB + 4))
    zm = [r for r in range(AO, AO + 36, 2) if r in busy and r not in late]
    zl = [r for r in range(AO, AO + 36, 2) if r in late]
    MZ = EXP.get('mz', 1)
    PS, PL, WB = 8, 9, 20
    misc = [f"v_lshrrev_b32 v{PL}, 2, v{L16}", f"v_and_b32 v{PS}, 0x300, v{L16}", f"v_bfe_u32 v10, v{L16}, 1, 7", f"v_lshl_or_b32 v{PS}, v{PS}, 4, v10", "v_mov_b64 v[10:11], 0"]
    mok = [False]
    def zero(cnt=1):
        for _ in range(cnt):
            if MZ:
                if mok[0] and misc: A(misc.pop(0))
            elif zq: A(f"v_mov_b64 {v(zq.pop(0), 2)}, 0")
    A(f"v_mov_b32 v{Z+1}, 0")
    A(f"v_mov_b32 v{Z+2}, 0")
    for r in range(4): A(f"v_mov_b32_dpp v{T0+r}, v{T1+r} {IDQ} row_mask:0xf bank_mask:0xc")
    A(f"v_mov_b32_dpp v{T2+2}, v{T2+3} {IDQ} row_mask:0xf bank_mask:0xc")
    A(f"v_mov_b32_dpp v{T2}, v{T2+1} {IDQ} row_mask:0x3 bank_mask:0xc")
    A(f"v_max3_f32 v{M}, v12, v13, v14")
    zero(1)
    A(f"v_mov_b32_dpp v{T2}, v{T2+2} {IDQ} row_mask:0xc bank_mask:0xf")
    A(f"v_max3_f32 v{M}, v{M}, v15, v20")
    tr('max0')
    if P3:
        A(f"v_add_f32 v{ACCV1}, v{ACCV1}, v{ACCV1+1}")
        A(f"v_add_f32 v{ACCV1+2}, v{ACCV1+2}, v{ACCV1+3}")
    else: filler(1); zero(1)
    A(f"v_max_f32_dpp v{M}, v{M}, v{M} {ROR8}")
    A(f"v_mov_b32 v{TT}, v{M}")
    if P3:
        A(f"v_add_f32 v{ACCV0}, v{ACCV0}, v{ACCV0+1}")
        A(f"v_add_f32 v{ACCV0+2}, v{ACCV0+2}, v{ACCV0+3}")
    else: filler(9); zero(1)
    assert not fill
    A(f"v_permlane16_swap_b32 v{M}, v{TT}")
    A(f"v_max_f32 v{M}, v{M}, v{TT}")
    A(f"v_mov_b32 v{TT}, v{M}")
    if P3:
        A(f"v_cvt_pk_bf16_f32 v{VMR}, v{ACCV0}, v{ACCV0+2}")
        A(f"v_cvt_pk_bf16_f32 v{VMR+1}, v{ACCV1}, v{ACCV1+2}")
    else: zero(2)
    A(f"v_permlane32_swap_b32 v{M}, v{TT}")
    A(f"v_max_f32 v{M}, v{M}, v{TT}")
    A(f"v_mul_f32 v{M}, s46, v{M}")
    tr('max1')
    for e in (12, 13, 14, 15, 20): A(f"v_fma_f32 v{e}, v{e}, s46, -v{M}")
    for e in (12, 13, 14, 15): A(f"v_exp_f32 v{e}, v{e}")
    A(f"v_cvt_pk_bf16_f32 v{BX}, v12, v13")
    A(f"v_cvt_pk_bf16_f32 v{BX+1}, v14, v15")
    A("v_exp_f32 v20, v20")
    A(f"v_mov_b32_dpp v{BX+2}, v{BX} {ROR8}")
    A(f"v_mov_b32_dpp v{BX+3}, v{BX+1} {ROR8}")
    A(f"v_mov_b32_dpp v21, v20 {ROR8}")
    if P3:
        A(f"v_add_f32 v{SUM}, v12, v13")
        D.wait(('vx', 1))
        tr('pv0')
        A(f"{MF32} {v(DA, 4)}, {v(loc[('vx', 0)], 4)}, {v(BX, 4)}, 0")
        A(f"v_cvt_pk_bf16_f32 v{Z}, v20, v21")
        A(f"v_add_f32 v{TT}, v14, v15")
        A(f"{MF32} {v(DB, 4)}, {v(loc[('vx', 1)], 4)}, {v(BX, 4)}, 0")
        A(f"v_add_f32 v{SUM}, v{SUM}, v20")
        A(f"v_add_f32 v{SUM}, v{SUM}, v{TT}")
        A(f"v_cvt_pk_bf16_f32 v{Z+3}, v20, v21")
        A(f"{MF16} {v(DA, 4)}, {v(VMR, 2)}, {v(Z, 2)}, {v(DA, 4)}")
        A(f"v_add_f32_dpp v{SUM}, v{SUM}, v{SUM} {ROR8}")
        A(f"v_mov_b32 v{TT}, v{SUM}")
        A(f"{MF16} {v(DB, 4)}, {v(VMR, 2)}, {v(Z + 2, 2)}, {v(DB, 4)}")
        tr('pv1')
        zq += zm
        zq.sort()
        mok[0] = True
        zero(1)
        A(f"v_permlane16_swap_b32 v{SUM}, v{TT}")
        A(f"v_add_f32 v{SUM}, v{SUM}, v{TT}")
        A(f"v_mov_b32 v{TT}, v{SUM}")
        zero(2)
        A(f"v_permlane32_swap_b32 v{SUM}, v{TT}")
        A(f"v_add_f32 v{SUM}, v{SUM}, v{TT}")
    else:
        A(f"v_add_f32 v{ACCV0}, v{ACCV0}, v{ACCV0+1}")
        D.wait(('vx', 1))
        tr('pv0')
        A(f"{MF32} {v(DA, 4)}, {v(loc[('vx', 0)], 4)}, {v(BX, 4)}, 0")
        A(f"v_add_f32 v{ACCV0+2}, v{ACCV0+2}, v{ACCV0+3}")
        A(f"v_add_f32 v{ACCV1}, v{ACCV1}, v{ACCV1+1}")
        A(f"{MF32} {v(DB, 4)}, {v(loc[('vx', 1)], 4)}, {v(BX, 4)}, 0")
        A(f"v_add_f32 v{ACCV1+2}, v{ACCV1+2}, v{ACCV1+3}")
        A(f"v_cvt_pk_bf16_f32 v{VMR}, v{ACCV0}, v{ACCV0+2}")
        A(f"v_cvt_pk_bf16_f32 v{VMR+1}, v{ACCV1}, v{ACCV1+2}")
        A(f"v_cvt_pk_bf16_f32 v{Z}, v20, v21")
        A(f"v_cvt_pk_bf16_f32 v{Z+3}, v20, v21")
        A(f"v_add_f32 v{SUM}, v12, v13")
        A(f"{MF16} {v(DA, 4)}, {v(VMR, 2)}, {v(Z, 2)}, {v(DA, 4)}")
        A(f"v_add_f32 v{TT}, v14, v15")
        A(f"v_add_f32 v{SUM}, v{SUM}, v20")
        A(f"{MF16} {v(DB, 4)}, {v(VMR, 2)}, {v(Z + 2, 2)}, {v(DB, 4)}")
        tr('pv1')
        A(f"v_add_f32 v{SUM}, v{SUM}, v{TT}")
        zq += zm
        zero(2)
        A(f"v_add_f32_dpp v{SUM}, v{SUM}, v{SUM} {ROR8}")
        A(f"v_mov_b32 v{TT}, v{SUM}")
        zero(2)
        A(f"v_permlane16_swap_b32 v{SUM}, v{TT}")
        A(f"v_add_f32 v{SUM}, v{SUM}, v{TT}")
        A(f"v_mov_b32 v{TT}, v{SUM}")
        zero(2)
        A(f"v_permlane32_swap_b32 v{SUM}, v{TT}")
        A(f"v_add_f32 v{SUM}, v{SUM}, v{TT}")
    A(f"v_rcp_f32 v{SUM}, v{SUM}")
    tr('rcp')
    zero(1)
    for k, Dx in enumerate((DA, DB)):
        for r in (0, 2): A(f"v_pk_mul_f32 {v(Dx + r, 2)}, {v(Dx + r, 2)}, {v(SUM, 2)} op_sel_hi:[1,0]")
    A(f"v_cvt_pk_bf16_f32 v12, v{DA}, v{DA+1}")
    A(f"v_cvt_pk_bf16_f32 v13, v{DA+2}, v{DA+3}")
    A(f"v_cvt_pk_bf16_f32 v14, v{DB}, v{DB+1}")
    A(f"v_cvt_pk_bf16_f32 v15, v{DB+2}, v{DB+3}")
    D.op(f"ds_write_b128 v{OW}, v[12:15]")
    tr('ow')
    zq += zl
    zq.sort()
    if MZ:
        for o in misc: A(o)
        A("v_mfma_f32_32x32x8_bf16 v[28:43], v[10:11], v[10:11], 0")
        A("v_mfma_f32_32x32x8_bf16 v[44:59], v[10:11], v[10:11], 0")
        post = ["v_mov_b64 v[60:61], 0", "v_mov_b64 v[62:63], 0"]
    else:
        post = [f"v_mov_b64 {v(r, 2)}, 0" for r in zq] + misc[:4]
        for _ in range(EXP.get('zb', 6)): A(post.pop(0))
    D.waitall()
    A("s_barrier")
    tr('b3')
    OF = 12
    D.op(f"ds_read_b128 {v(OF, 4)}, v{MEMR} offset:{L_OL}", 'o0')
    D.op(f"ds_read_b128 {v(OF + 4, 4)}, v{MEMR} offset:{L_OL + 1024}", 'o1')
    A(post.pop(0))
    D.op(f"ds_write2_b32 v{QKW}, v{VMR}, v{VMR+1} offset0:0 offset1:{QSTR // 4}")
    cur[0] = 0
    wq_ = sorted(SWO)
    def wo_next():
        if wq_:
            k_ = wq_.pop(0)
            lds_frag(SWO[k_], WB, ('wo', k_), areg=11)
    wo_next()
    for _ in range(EXP.get('za', 3)):
        if post: A(post.pop(0))
    def acc(t): return AO + 4 * WORD.index(t)
    def wpost(t):
        c = acc(t)
        o = [f"v_add_f32 v{c}, v{c}, v{c+1}", f"v_add_f32 v{c+1}, v{c+2}, v{c+3}"]
        if t == 8:
            o.append(f"v_cvt_pk_bf16_f32 v{c+2}, v{c}, v{c+1}")
            o.append(f"v_bfi_b32 v{c+2}, 1, v{TMPC}, v{c+2}")
            o.append(f"global_store_dword v{PL}, v{c+2}, s[42:43] {st}")
        elif t & 1:
            p = acc(t - 1); sb = 26 if t == 1 else 88 + 2 * (t // 2)
            o.append(f"v_cvt_pk_bf16_f32 v{c+2}, v{p}, v{c}")
            o.append(f"v_cvt_pk_bf16_f32 v{c+3}, v{p+1}, v{c+1}")
            o.append(f"v_bfi_b32 v{c+2}, 1, v{TMPC}, v{c+2}")
            o.append(f"global_store_dwordx2 v{PS}, {v(c + 2, 2)}, s[{sb}:{sb+1}] {st}")
        return o
    D.wait('o0')
    tr('wo0')
    seq = [(t, k2) for t in WORD for k2 in range(2)]
    if EXP.get('il', 0):
        seq = [(8, 0), (0, 0), (8, 1), (1, 0), (0, 1)]
        for t in range(1, 7): seq += [(t + 1, 0), (t, 1)]
        seq += [(7, 1)]
        assert len(seq) == 18 and not SWO
    vq = list(post); since = {}
    slots = 0
    for k, (t, k2) in enumerate(seq):
        if k2 == 1: D.wait('o1')
        if k in SWO:
            D.wait(('wo', k))
            smf(acc(t), OF + 4 * k2, WB)
            wo_next()
            slots += 2
        else: smf(acc(t), OF + 4 * k2, WO(t, k2))
        slots += 1
        if k2 == 1: since[t] = slots
        em = 0
        for _ in range(EXP.get('wv', 2) + (1 if len(vq) > EXP.get('wq', 1) else 0)):
            for tt_ in list(since):
                if slots - since[tt_] >= EXP.get('wlag', 8): vq += wpost(tt_); del since[tt_]
            if vq: A(vq.pop(0)); slots += 1; em += 1
        if em == 0 and since and EXP.get('wn', 2):
            A(f"s_nop {EXP.get('wn', 2) - 1}"); slots += EXP.get('wn', 2)
    tr('wo1')
    for tt_ in list(since): vq += wpost(tt_)
    for o in vq: A(o)
    tr('wo2')
    D.q = []
    SEL, RD, MS, LA = 12, 16, 8, 9
    LDB = (24, 40)
    kind = (1, 1, 2, 0)[wv]
    lab = f"L_rp1_{sfx}"
    LD = 24
    def wkpre():
        for o in book: A(o)
        for n in sorted(range(3), key=wslot): wk_read(n)
    if kind:
        def loads():
            if kind == 2: A(f"global_load_dwordx4 {v(LD, 4)}, v{LA}, s[28:29] {LF}")
            else:
                for j in range(4): A(f"global_load_dwordx4 {v(LD + 4 * j, 4)}, v{L16}, s[28:29] offset:{j * 1024} {LF}")
        P = Asm()
        if kind == 1:
            P(f"v_bfe_u32 v20, v{L16}, 4, 1")
            P(f"v_bfe_u32 v21, v{L16}, 5, 1")
            P(f"v_bfe_u32 v22, v{L16}, 6, 1")
            P("v_lshl_add_u32 v22, v21, 1, v22")
        else:
            P(f"v_bfe_u32 v20, v{L16}, 6, 1")
            P(f"v_bfe_u32 v22, v{L16}, 4, 2")
            P(f"v_bfe_u32 v23, v{L16}, 8, 1")
            P("v_xor_b32 v23, s12, v23")
        P("v_lshlrev_b32 v20, 4, v20")
        P("v_mov_b32 v21, 0x3f80")
        P("v_lshlrev_b32 v21, v20, v21")
        m_ = Asm(); ms_calc(m_, kind, MS, 10); mq = [i.text.strip() for i in m_.ins]
        for j in range(4):
            P(f"v_cmp_eq_u32 vcc, {j}, v22")
            for _ in range(2):
                if mq: P(mq.pop(0))
            P(f"v_cndmask_b32 v{SEL+j}, 0, v21, vcc")
        for o in mq: P(o)
        P("v_mov_b64 v[10:11], -1")
        pq = [i.text.strip() for i in P.ins]
        if wv == 0:
            wkpre()
            A(f"s_waitcnt vmcnt({EXP.get('k0', 1)})")
            tr('p1s'); loads()
            for o in pq: A(o)
        elif wv == 1:
            wkpre()
            tp = EXP.get('tp', 3)
            A(f"s_waitcnt vmcnt({EXP.get('k1', 0)})")
            for o in pq[:tp]: A(o)
            tr('p1s'); loads()
            for o in pq[tp:]: A(o)
        else:
            lane_const(A, LA, lambda x: (x >> 5) * 256 + ((x >> 4) & 1) * 16, src=L16, nbits=10, tmp=10)
            tr('p1s'); loads()
            wkpre()
            for o in pq: A(o)
        A.label(lab)
        if kind == 1:
            for j in range(4):
                A(f"s_waitcnt vmcnt({3 - j})")
                tr(f'p1w{j}')
                A(f"{MF32} {v(RD, 4)}, {v(SEL, 4)}, {v(LD + 4 * j, 4)}, {v(RD, 4) if j else 0}")
                A(f"v_bitop3_b32 v{20 + j}, v{LD+4*j}, v{LD+4*j+2}, {'s13' if j & 1 else 's12'} bitop3:0x7e")
                if j == 2: A("v_or3_b32 v20, v20, v21, v22")
            A("v_bitop3_b32 v20, v20, v23, 1 bitop3:0xa8")
        else:
            A("s_waitcnt vmcnt(0)")
            A(f"{MF32} {v(RD, 4)}, {v(SEL, 4)}, {v(LD, 4)}, 0")
            A(f"v_bitop3_b32 v20, v{LD}, v{LD+1}, v23 bitop3:0x7e")
            A(f"v_bitop3_b32 v21, v{LD+2}, v{LD+3}, v23 bitop3:0x7e")
            A("v_bitop3_b32 v20, v20, v21, 1 bitop3:0xa8")
        A("v_cmp_ne_u32 vcc, 0, v20")
        for r in range(4): A(f"v_add_f32_dpp v{RD+r}, v{RD+r}, v{RD+r} {ROR8}")
        if kind == 2:
            for r in range(4): A(f"v_add_f32_dpp v{RD+r}, v{RD+r}, v{RD+r} row_ror:4 row_mask:0xf bank_mask:0xf")
            for r in range(4): A(f"v_add_f32_dpp v{RD+r}, v{RD+r}, v{RD+r} quad_perm:[2,3,0,1] row_mask:0xf bank_mask:0xf")
        A(f"v_cvt_pk_bf16_f32 v20, v{RD}, v{RD+1}")
        A(f"v_cvt_pk_bf16_f32 v21, v{RD+2}, v{RD+3}")
        A("s_mov_b64 exec, s[44:45]")
        A(f"s_cbranch_vccnz {lab}_rt")
        tr('p1ok')
        A(f"global_store_dwordx2 v{MS}, v[20:21], s[14:15] {st}")
        A(f"global_store_dwordx2 v{MS}, v[10:11], s[60:61] {st}")
        A("s_mov_b64 exec, -1")
        if EXP.get('rt'): A("s_add_u32 s76, s76, s55")
    else:
        wkpre()
        if nkv:
            A(f"v_mov_b32 v28, {L_QL + 256}")
            A("s_waitcnt vmcnt(5)")
            A("ds_read_b128 v[28:31], v28")
            A("s_waitcnt lgkmcnt(0)")
            A("v_min3_u32 v28, v28, v29, v30")
            A("v_min_u32 v28, v28, v31")
            A("v_readfirstlane_b32 s12, v28")
            A("s_max_u32 s54, s54, s12")
        kv_wait(A, "s25", nkv, kvg0, 28, XIT)
        if EXP.get('steps'):
            A("s_memrealtime s[64:65]")
            A("s_memtime s[66:67]")
            A("s_lshl_b32 s12, s9, 6")
            A("s_add_u32 s12, s12, s24")
            A("s_lshl_b32 s12, s12, 3")
            A(f"s_add_u32 s12, s12, {WS_STAMP + 0x50000}")
            A("v_mov_b32 v28, s12")
            A("s_waitcnt lgkmcnt(0)")
            A("v_mov_b32 v30, s64")
            A("v_mov_b32 v31, s66")
            A("s_mov_b64 exec, 1")
            A("global_store_dwordx2 v28, v[30:31], s[4:5]")
            A("s_mov_b64 exec, -1")
    A("s_barrier")
    tr('b4')
    A("s_mov_b32 s55, 0")
    def loads2():
        for j, ks in enumerate(LDL):
            if ks == 8: A(f"global_load_dwordx4 {v(lreg(j), 4)}, v{L16}, s[16:17] {LF}")
            else: A(f"global_load_dwordx4 {v(lreg(j), 4)}, v{L16}, s[20:21] offset:{(ks - 4) * 1024} {LF}")
    Z2 = EXP.get('z2', 8)
    spill_read(MRING + 8 if P3 else ACCV0)
    zero_qk(12, 12 + 2 * Z2)
    tr('p2s')
    loads2()
    zero_qk(12 + 2 * Z2, 28)
    if P3 and wv: zero_qk(ACCV0, ACCV0 + 4)
    A("s_mov_b32 m0, s62")
    A(f"s_branch {f'L_rp2_{sfx}' if not TR else f'L_rp2ok_{sfx}'}")
    A.label(f"L_rf2_{sfx}")
    if EXP.get('rt'): A("s_add_u32 s77, s77, 1")
    A("s_mov_b64 exec, vcc")
    loads2()
    A("s_mov_b64 exec, -1")
    if SP: zero_qk(ACCQ, ACCQ + 8)
    A("s_add_u32 s55, s55, 1")
    A(f"s_cmp_gt_u32 s55, {SPIN_MAX}")
    A(f"s_cbranch_scc0 L_rp2_{sfx}")
    A(f"s_branch {XIT}")
    if kind:
        A.label(lab + "_rt")
        A("s_mov_b64 exec, vcc")
        loads()
        A("s_mov_b64 exec, -1")
        backoff(A, 55, sleep=EXP.get('bo', 4))
        A("s_add_u32 s55, s55, 1")
        A(f"s_cmp_gt_u32 s55, {SPIN_MAX}")
        A(f"s_cbranch_scc0 {lab}")
        A(f"s_branch {XIT}")
    A.label(f"L_rp2ok_{sfx}")
    tr('p2ok')
    if TR:
        A("s_cmp_lg_u32 s24, 41")
        A(f"s_cbranch_scc1 L_rp2_{sfx}")
        A("s_waitcnt lgkmcnt(0)")
        A("s_lshl_b32 s12, s9, 2")
        A("s_add_u32 s12, s12, s10")
        A("s_lshl_b32 s12, s12, 6")
        A(f"s_add_u32 s12, s12, {WS_STAMP + 16384}")
        A(f"v_mov_b32 v{TMPC}, s12")
        for q in range(11):
            A(f"v_mov_b32 v63, s{64 + 2 * q}")
            A(f"global_store_dword v{TMPC}, v63, s[4:5] offset:{4 * q}")
            A("s_waitcnt vmcnt(0)")
    A(f"s_branch L_rp2_{sfx}")
    A.label(f"L_rlast_{sfx}")
    A("s_lshl_b32 s13, s24, 17")
    add64(A, 38, 50, "s13")
    D.waitall()
    lr = {8: mslot(8), 7: mslot(7), 6: mslot(6), 5: 44, 4: 48, 3: 52, 2: 56, 1: 60, 0: 12}
    for p in (4, 3, 2, 1, 0): mem_read(ORD[p], lr[p], ('lm', p))
    for p in range(8, -1, -1):
        D.wait(('lm', p))
        smf(ACCV1, lr[p], WV(ORD[p], 1))
        if p < V0S: smf(ACCV0, lr[p], WV(ORD[p], 0))
    for b in range(2):
        A(f"v_add_f32 v{ACCK+4*b}, v{ACCK+4*b}, v{ACCK+4*b+1}")
        A(f"v_add_f32 v{ACCK+4*b+2}, v{ACCK+4*b+2}, v{ACCK+4*b+3}")
    A(f"v_cvt_pk_bf16_f32 v16, v{ACCK}, v{ACCK+4}")
    A(f"v_cvt_pk_bf16_f32 v17, v{ACCK+2}, v{ACCK+6}")
    for a_ in (ACCV1, ACCV0):
        A(f"v_add_f32 v{a_}, v{a_}, v{a_+1}")
        A(f"v_add_f32 v{a_+2}, v{a_+2}, v{a_+3}")
    A(f"v_cvt_pk_bf16_f32 v18, v{ACCV0}, v{ACCV0+2}")
    A(f"v_cvt_pk_bf16_f32 v19, v{ACCV1}, v{ACCV1+2}")
    A(f"global_store_dwordx4 v{T16}, v[16:19], s[38:39] sc1")
    tl(A, 4)
    if EXP.get('rt'):
        A("s_memrealtime s[82:83]")
        A("s_memtime s[98:99]")
        A("s_waitcnt lgkmcnt(0)")
        A("s_sub_u32 s75, s98, s96")
        A("s_sub_u32 s78, s80, s84")
        A("s_sub_u32 s79, s82, s80")
        A("s_lshl_b32 s12, s9, 2")
        A("s_add_u32 s12, s12, s10")
        A("s_lshl_b32 s12, s12, 6")
        A(f"s_add_u32 s12, s12, {WS_STAMP}")
        A("v_mov_b32 v12, s12")
        for q in range(4):
            for r in range(4): A(f"v_mov_b32 v{16+r}, s{64 + 4 * q + r}")
            A(f"global_store_dwordx4 v12, v[16:19], s[4:5] offset:{16 * q}")
            A("s_waitcnt vmcnt(0)")
    A.label(XIT)
    A("s_endpgm")

def role_r(A, restart, nkv, kvg0):
    if EXP.get('rt'):
        A("s_memrealtime s[84:85]")
        A("s_waitcnt lgkmcnt(0)")
    r_setup(A)
    r_swap(A)
    tl(A, 1)
    A("s_waitcnt vmcnt(0)")
    A("s_mov_b32 s54, 0")
    A("v_min3_u32 v6, v8, v9, v10")
    A("v_min_u32 v6, v6, v11")
    mode_check(A, tv=12, pre=4)
    r_consts(A)
    r_pro(A, nkv, kvg0)
    A("s_cmp_eq_u32 s11, 0")
    A("s_cbranch_scc1 L_r_slow")
    for fast in (True, False):
        t = 'f' if fast else 's'
        if not fast: A.label("L_r_slow")
        for w in range(1, 4):
            A(f"s_cmp_eq_u32 s10, {w}")
            A(f"s_cbranch_scc1 L_rent_{t}{w}")
        for w in range(4):
            A.label(f"L_rent_{t}{w}")
            r_main(A, fast, w, nkv, kvg0)
```

```python
import sys
import role_r as RR
from common import *
from role_kv import stage_mod, stage_ln1, role_kv
import role_af as AF
NAME = "adaLN_cond__memory_aug_recurrent_mem_tr__swiglu_ffn__prompt"
out = sys.argv[1] if len(sys.argv) > 1 else f'cdna_kernels/{NAME}.s'
for a_ in sys.argv[2:]:
    k_, _, v_ = a_.partition('=')
    RR.EXP[k_] = v_.split(',') if k_ == 'trace' else (int(v_) if v_ else 1)
AF.EXP = RR.EXP
K = NAME + "_kernel"
FORCE['tm'] = RR.EXP.get('tm', 1)
FORCE['cpf'] = RR.EXP.get('cpf', 1)
PERMS = {0: None, 1: [0, 2, 3, 5, 1, 6, 7, 4], 2: [0, 2, 1, 5, 6, 7, 3, 4], 3: [0, 5, 6, 2, 1, 3, 4, 7], 4: [0, 2, 5, 6, 7, 1, 3, 4]}
FORCE['perm'] = PERMS[RR.EXP.get('perm', 1)]
A = Asm()
kernel_begin(A, K)
TL['dbg'] = RR.EXP.get('tld')
if TL['dbg']: tl(A, 0)
preamble(A)
FORCE['slow'] = bool(RR.EXP.get('forceslow'))
TL["on"] = bool(RR.EXP.get("tl"))
if not TL["dbg"]: tl(A, 0)
A.label("L_roles")
A("s_cmp_eq_u32 s8, 0")
A("s_cbranch_scc1 L_role_r")
A("s_cmp_eq_u32 s8, 1")
A("s_cbranch_scc1 L_role_kv")
A("s_cmp_lt_u32 s8, 5")
A("s_cbranch_scc1 L_role_a")
A("s_mul_i32 s14, s9, 3")
A("s_add_u32 s14, s14, s8")
A("s_sub_u32 s14, s14, 5")
stage_ln1(A, "s14")
tl(A, 7)
if RR.EXP.get("fd", 0):
    mode_check(A, tv=12)
    lw = A.newlabel('L_fdw')
    A("s_cmp_lg_u32 s10, 0")
    A(f"s_cbranch_scc1 {lw}")
    A("s_lshl_b32 s12, s9, 7")
    A(f"s_add_u32 s12, s12, {WS_KVPROG + 4096}")
    A("v_mov_b32 v12, s12")
    A(f"s_mov_b32 s14, {RR.EXP['fd']}")
    flag_wait(A, 12, 4, 14, 13, 12, sleep=32)
    A.label(lw)
    A("s_barrier")
AF.role_f(A, 3, 5)
A.label("L_exit")
A("s_endpgm")
A.label("L_role_r")
RR.role_r(A, "L_roles", 1, 1)
A.label("L_role_kv")
role_kv(A, "L_roles", 1, 1)
A.label("L_role_a")
A("s_mul_i32 s14, s9, 3")
A("s_add_u32 s14, s14, s8")
A("s_sub_u32 s14, s14, 2")
A("s_cmp_ge_u32 s14, 54")
A("s_cbranch_scc1 L_nomod")
stage_mod(A, "s14")
A.label("L_nomod")
tl(A, 7)
if RR.EXP.get("ad", 0):
    mode_check(A, tv=12)
    h_wait(A, 12)
if RR.EXP.get('na2'):
    A("s_cmp_eq_u32 s8, 2")
    A("s_cbranch_scc1 L_exit")
    AF.role_a(A, "L_roles", 2, 3, 1)
else: AF.role_a(A, "L_roles", 3, 2, 1)
A.label('L_code_end')
A('s_endpgm')
body = A.finalize()
ref = open(f'cdna_kernels/{NAME}.s.ref').read()
hdr = ref[:ref.index('; Override launch geometry')]
kn = f'kernel={K} ' if 'dev/' in out else ''
hdr += f'; @launch {kn}grid=(256,1,1) block=(256,1,1) lds=163840\n.amdgcn_target "amdgcn-amd-amdhsa--gfx950"\n.text\n'
open(out, 'w').write(hdr + body + '.section .rodata,"a"\n' + kernel_desc(K, 512, 102, 256))
print("instructions", sum(1 for i in A.ins if i.states), "nops", A.nops)
```

```python
import sys
import role_r as RR
from common import *
from role_kv import stage_mod, stage_ln1, role_kv
import role_af as AF
NAME = "adaLN_cond__memory_aug_recurrent_mem_tr__swiglu_ffn__prompt"
out = sys.argv[1] if len(sys.argv) > 1 else f'cdna_kernels/{NAME}.s'
for a_ in sys.argv[2:]:
    k_, _, v_ = a_.partition('=')
    RR.EXP[k_] = v_.split(',') if k_ == 'trace' else (int(v_) if v_ else 1)
AF.EXP = RR.EXP
K = NAME + "_kernel"
FORCE['tm'] = RR.EXP.get('tm', 1)
FORCE['cpf'] = RR.EXP.get('cpf', 1)
PERMS = {0: None, 1: [0, 2, 3, 5, 1, 6, 7, 4], 2: [0, 2, 1, 5, 6, 7, 3, 4], 3: [0, 5, 6, 2, 1, 3, 4, 7], 4: [0, 2, 5, 6, 7, 1, 3, 4]}
FORCE['perm'] = PERMS[RR.EXP.get('perm', 1)]
FORCE['ord'] = RR.EXP.get('ord', 0)
FORCE['ont'] = RR.EXP.get('ont')
A = Asm()
kernel_begin(A, K)
TL['dbg'] = RR.EXP.get('tld')
if TL['dbg']: tl(A, 0)
preamble(A)
FORCE['slow'] = bool(RR.EXP.get('forceslow'))
TL["on"] = bool(RR.EXP.get("tl"))
if not TL["dbg"]: tl(A, 0)
A.label("L_roles")
A("s_cmp_eq_u32 s8, 0")
A("s_cbranch_scc1 L_role_r")
A("s_cmp_eq_u32 s8, 1")
A("s_cbranch_scc1 L_role_kv")
A("s_cmp_lt_u32 s8, 5")
A("s_cbranch_scc1 L_role_a")
A("s_mul_i32 s14, s9, 3")
A("s_add_u32 s14, s14, s8")
A("s_sub_u32 s14, s14, 5")
if RR.EXP.get('fpf'):
    lpf = A.newlabel('L_pf')
    A("s_cmp_lt_u32 s10, 2")
    A(f"s_cbranch_scc1 {lpf}")
    A(f"s_load_dwordx8 s[16:23], s[0:1], {KA_WQ}")
    A("s_lshl_b32 s12, s14, 1")
    A("s_add_u32 s12, s12, s10")
    A("s_sub_u32 s12, s12, 2")
    A("s_mul_i32 s12, s12, 24576")
    A("v_and_b32 v1, 63, v0")
    A("v_lshl_add_u32 v1, v1, 7, s12")
    A("v_add_u32 v2, 8192, v1")
    A("v_add_u32 v3, 16384, v1")
    A("s_mov_b32 m0, 163584")
    A("s_waitcnt lgkmcnt(0)")
    for p in (16, 20, 22, 18)[:RR.EXP['fpf']]:
        for r in (1, 2, 3): A(f"global_load_lds_dword v{r}, s[{p}:{p+1}]")
    A.label(lpf)
stage_ln1(A, "s14")
tl(A, 7)
if RR.EXP.setdefault("fd", 4):
    mode_check(A, tv=12)
    lw = A.newlabel('L_fdw')
    A("s_cmp_lg_u32 s10, 0")
    A(f"s_cbranch_scc1 {lw}")
    A("s_lshl_b32 s12, s9, 7")
    A(f"s_add_u32 s12, s12, {WS_KVPROG + 4096}")
    A("v_mov_b32 v12, s12")
    A(f"s_mov_b32 s14, {RR.EXP['fd']}")
    flag_wait(A, 12, 4, 14, 13, 12, sleep=32)
    A.label(lw)
    A("s_barrier")
AF.role_f(A, 3, 5)
A.label("L_exit")
A("s_endpgm")
A.label("L_role_r")
RR.role_r(A, "L_roles", 1, 1)
A.label("L_role_kv")
role_kv(A, "L_roles", 1, 1)
A.label("L_role_a")
A("s_mul_i32 s14, s9, 3")
A("s_add_u32 s14, s14, s8")
A("s_sub_u32 s14, s14, 2")
A("s_cmp_ge_u32 s14, 54")
A("s_cbranch_scc1 L_nomod")
stage_mod(A, "s14")
A.label("L_nomod")
tl(A, 7)
if RR.EXP.get("ad", 0):
    mode_check(A, tv=12)
    h_wait(A, 12)
if RR.EXP.get('na2'):
    A("s_cmp_eq_u32 s8, 2")
    A("s_cbranch_scc1 L_exit")
    AF.role_a(A, "L_roles", 2, 3, 1)
else: AF.role_a(A, "L_roles", 3, 2, 1)
A.label('L_code_end')
A('s_endpgm')
body = A.finalize()
ref = open(f'cdna_kernels/{NAME}.s.ref').read()
hdr = ref[:ref.index('; Override launch geometry')]
DESIGN = """; Design: one persistent launch, 256 workgroups (one per CU), weights stationary in registers/LDS.
"""
hdr += DESIGN
kn = f'kernel={K} ' if 'dev/' in out else ''
hdr += f'; @launch {kn}grid=(256,1,1) block=(256,1,1) lds=163840\n.amdgcn_target "amdgcn-amd-amdhsa--gfx950"\n.text\n'
if RR.EXP.get('alg', 0):
    from align import align
    body = align(hdr, body, '', (r'L_rp2_[fs]\d', r'L_rlast_'), RR.EXP.get('alg', 0))
open(out, 'w').write(hdr + body + '.section .rodata,"a"\n' + kernel_desc(K, 512, 102, 256))
print("instructions", sum(1 for i in A.ins if i.states), "nops", A.nops)
```

```python
from common import *
import math, struct

L_MEM, L_KX, L_VX = 0, 9216, 17408
L_QL, L_KL, L_OL = 25600, 27904, 30208
L_JUNK = 32256
L_WK = 32768
QSTR = 288
KL0 = L_KL - L_QL
T16, WKB, L16, MEMR, QR, QKW, OW, IDX = range(0, 8)
TMPC = WKB
def WQ(ks, b): return 256 + (ks * 2 + b) * 8
def WV(ks, b):
    i = ks * 2 + b
    return 400 + i * 8 if i < 14 else 64 + (i - 14) * 8
def WO(t, k2): return 96 + (t * 2 + k2) * 8
def WK8(b): return 240 + b * 8
ACCV0, ACCQ, ACCK, MRING, WRING, ACCV1 = 8, 12, 20, 28, 40, 40
SMF = "v_smfmac_f32_16x16x64_bf16"
MF32 = "v_mfma_f32_16x16x32_bf16"
MF16 = "v_mfma_f32_16x16x16_bf16"
IDQ = "quad_perm:[0,1,2,3]"
ROR8 = "row_ror:8 row_mask:0xf bank_mask:0xf"
def FSW(i): return 2 * (0, 2, 3, 1)[i >> 1] + (i & 1)
def img(i, pos): return i * 128 + ((pos ^ FSW(i)) * 16)
def mimg(i, pos): return ((pos >> 1) * 16 + 2 * i + (pos & 1)) * 16
PI = [0, 1, 4, 5, 2, 3, 6, 7]
EXP = {}
PF = 1
ORD = [8, 0, 1, 2, 3, 4, 5, 6, 7]
ORD0 = ORD

WORD = [8, 0, 1, 2, 3, 4, 5, 6, 7]
def swap_tab():
    nsw = EXP.get('nsw', 0)
    return list(zip([4, 7, 10, 13, 15, 1][:nsw], [3, 7, 10, 13, 16, 0][:nsw]))
def wo_reg(k): return WO(WORD[k // 2], k & 1)
def wk_off(n): return L_WK + (n >> 1) * 16384 + (n & 1) * 8192

def r_swap(A):
    for n, k in swap_tab():
        A(f"v_lshlrev_b32 v12, 4, v0")
        A(f"v_add_u32 v12, {wk_off(n)}, v12")
        A("ds_read_b128 v[16:19], v12")
        A("ds_read_b128 v[20:23], v12 offset:4096")
        A("s_waitcnt lgkmcnt(0)")
        r = wo_reg(k)
        A(f"ds_write_b128 v12, {v(r, 4)}")
        A(f"ds_write_b128 v12, {v(r + 4, 4)} offset:4096")
        A("s_waitcnt lgkmcnt(0)")
        for q in range(0, 8, 2): A(f"v_mov_b64 {v(r + q, 2)}, {v(16 + q, 2)}")

def r_setup(A):
    A(f"s_load_dwordx4 s[16:19], s[0:1], {KA_WQ}")
    A(f"s_load_dwordx4 s[20:23], s[0:1], {KA_WV}")
    A(f"s_load_dwordx2 s[24:25], s[0:1], {KA_MEM0}")
    def swz(lr): return 2 * ((lr & 1) | ((lr >> 3) & 1) << 1 | ((lr >> 5) & 1) << 2)
    def swz2(row): return 2 * (((row >> 2) & 1) | ((row >> 4) & 1) << 1)
    for ip in range(4):
        def fq(t, last=False):
            w, l = t >> 6, t & 63
            lr = 16 * w + 4 * ip + (l >> 4); e, pos = lr >> 3, lr & 7
            d = 512 + 8 * pos + e if last else 64 * (e & 1) + 4 * pos + (e >> 1)
            return d * 8192 + (((l & 15) ^ swz(lr)) * 16)
        lane_const(A, 12 + ip, fq, tmp=1)
        lane_const(A, 16 + ip, lambda t: fq(t, True), tmp=1)
        lane_const(A, 20 + ip, lambda t: (32 * (t >> 6) + 8 * ip + ((t & 63) >> 3)) * 1152, tmp=1)
        lane_const(A, 20 + ip, lambda t: ((t & 7) ^ swz2(32 * (t >> 6) + 8 * ip + ((t & 63) >> 3))) * 16, tmp=1, acc=True)
    def ftr(t, b):
        w, l = t >> 6, t & 63
        gb, half, bp, c = l >> 4, (l >> 3) & 1, (l >> 2) & 1, l & 3
        lr = 32 * (gb & 1) + 8 * bp + 2 * (gb >> 1) + half
        return L_WK + lr * 256 + (((4 * w + 2 * b + (c >> 1)) ^ swz(lr)) * 16) + (c & 1) * 8
    lane_const(A, 24, lambda t: ftr(t, 0), tmp=1)
    lane_const(A, 25, lambda t: ftr(t, 1), tmp=1)
    def fto(t):
        w, l = t >> 6, t & 63
        gb, half, bp, c = l >> 4, (l >> 3) & 1, (l >> 2) & 1, l & 3
        row = 16 * (gb & 1) + 8 * (gb >> 1) + 4 * half + bp
        return L_WK + row * 128 + (((2 * w + (c >> 1)) ^ swz2(row)) * 16) + (c & 1) * 8
    lane_const(A, 26, fto, tmp=1)
    lane_const(A, 27, lambda t: L_WK + t * 16, tmp=1)
    A("s_waitcnt lgkmcnt(0)")
    A("s_lshl_b32 s12, s9, 8")
    for p in (16, 18, 20):
        add64(A, p, p, "s12")
    A("s_mul_i32 s12, s9, 147456")
    add64(A, 22, 22, "s12")
    A("s_lshl_b32 s26, s10, 12")
    A(f"s_add_u32 s26, s26, {L_WK}")
    chunks = [(m_, k) for m_ in ('qvo', 'oqv', 'vqo', 'ovq')[EXP.get('ro', 0)] for k in range(9)] + [('k', 7)] + [('k', ORD[j % 8]) for j in range(28, 36)]
    ptr = {'q': 16, 'k': 18, 'v': 20, 'o': 22}
    def issue(j):
        m, k = chunks[j]
        slot = j % 8
        if m == 'o': off, vb = k * 128, 20
        elif k < 8: off, vb = (128 * (k >> 1) + 32 * (k & 1)) * 8192, 12
        else: off, vb = 0, 16
        add64(A, 12, ptr[m], off)
        for ip in range(4):
            A(f"s_add_u32 m0, s26, {slot * 16384 + ip * 1024}")
            A(f"global_load_lds_dwordx4 v{vb+ip}, s[12:13]")
    def fd(m, t): return 256 * m + t if m < 2 else 512 + (t & 63)
    def fa(m, t):
        d = fd(m, t)
        if d < 512: ks, e, pos = 2 * (d >> 7) + ((d >> 5) & 1), 2 * (d & 3) + ((d >> 6) & 1), (d >> 2) & 7
        else: ks, e, pos = 8, d & 7, (d >> 3) & 7
        return ks * 1024 + mimg(0, pos) + e * 2
    def mem0_issue():
        for m in range(3):
            lane_const(A, 4 + m, lambda t: 2 * fd(m, t), tmp=1)
            lane_const(A, 8 + m, lambda t: fa(m, t), tmp=1)
            for i in range(8):
                A(f"v_add_u32 v2, {i * 1152}, v{4+m}")
                A(f"global_load_ushort v{32+8*m+i}, v2, s[24:25]")
    def mem0_write():
        for m in range(3):
            for i in range(8):
                A(f"ds_write_b16 v{8+m}, v{32+8*m+i} offset:{L_MEM + i * 32}")
    def status0():
        lane_const(A, 2, lambda t: arr_word(t & 7) * 4, tmp=1)
        A("global_load_dword v4, v2, s[6:7] sc1")
    def status_issue():
        A("s_lshl_b32 s12, s9, 7")
        A(f"s_add_u32 s12, s12, {WS_KVPROG + 4096}")
        A("v_mov_b32 v2, s12")
        A("global_load_dwordx4 v[8:11], v2, s[4:5] sc1")
    for j in range(7): issue(j)
    n = len(chunks)
    for j in range(n + 1):
        if j < n:
            ahead = min(n - 1, j + 6) - j
            extra = 24 if 1 <= j <= 7 else (1 if 33 <= j <= 35 else (1 if 25 <= j <= 31 else 0))
            A(f"s_waitcnt vmcnt({4 * ahead + extra})")
        A("s_barrier")
        if j + 7 < n: issue(j + 7)
        if j == 0: mem0_issue()
        if j == 9: mem0_write()
        if j == 24: status0()
        if j == 32: status_issue()
        if j >= 29:
            pk = (j - 1) % 8; tb = 32 + ((j - 1) & 1) * 16
            A(f"v_add_u32 v28, {pk * 16384}, v27")
            for q in range(4):
                A(f"ds_write_b128 v28, {v(tb + 4 * q, 4)} offset:{q * 4096}")
        if j < n:
            m, k = chunks[j]; slot = j % 8
            if m == 'o':
                A(f"v_add_u32 v28, {slot * 16384}, v26")
                for k2 in range(2):
                    for jq in range(4):
                        off = (64 * k2 + 32 * (jq >> 1) + 2 * (jq & 1)) * 128
                        A(f"ds_read_b64_tr_b16 {u(WO(k, k2) + 2 * jq, 2)}, v28 offset:{off}")
            else:
                A(f"v_add_u32 v28, {slot * 16384}, v24")
                A(f"v_add_u32 v29, {slot * 16384}, v25")
                for b in range(2):
                    if m == 'q': dst = WQ(k, b)
                    elif m == 'v': dst = WV(k, b)
                    elif j == 27: dst = WK8(b)
                    else: dst = 32 + (j & 1) * 16 + b * 8
                    for jq in range(4):
                        off = (16 * (jq & 1) + 4 * (jq >> 1)) * 256
                        A(f"ds_read_b64_tr_b16 {u(dst + 2 * jq, 2)}, v{28+b} offset:{off}")
        A("s_waitcnt lgkmcnt(0)")

def r_consts(A):
    lane_const(A, L16, lambda t: (t & 63) * 16, tmp=12)
    lane_const(A, MEMR, lambda t: img((t & 15) >> 1, 2 * ((t >> 4) & 3) + (t & 1)), tmp=12)
    lane_const(A, QR, lambda t: L_QL + (t & 7) * QSTR + ((t >> 4) & 3) * 16, tmp=12)
    lane_const(A, QKW, lambda t: L_QL + (0, 4, 2, 6)[(t >> 4) & 3] * QSTR + (t >> 6) * 64 + (t & 15) * 4, tmp=12)
    lane_const(A, OW, lambda t: (t >> 7) * 1024 + img(PI[t & 7], 4 * ((t >> 6) & 1) + ((t >> 4) & 3)), tmp=12)
    A(f"v_add_u32 v{OW}, {L_OL}, v{OW}")
    lane_const(A, 14, lambda t: L_JUNK + (((t >> 4) & 3) * 8 + (t & 7)) * 16, tmp=12)
    A("v_and_b32 v12, 8, v0")
    A("v_cmp_ne_u32 vcc, 0, v12")
    A(f"v_cndmask_b32 v{OW}, v{OW}, v14, vcc")
    lane_const(A, IDX, lambda t: 0xEEEE if t & 1 else 0x4444, tmp=12)
    A(f"v_lshlrev_b32 v{T16}, 4, v0")
    A("s_and_b32 s12, s10, 1")
    A("s_lshl_b32 s12, s12, 5")
    A("s_add_u32 s37, s12, s9")
    A("v_mov_b32 v14, s37")
    lane_const(A, 15, lambda t: ms_fn(1, t, 0), src=14, nbits=6, tmp=12)
    lane_const(A, 16, lambda t: ms_fn(2, t, 0), src=14, nbits=5, tmp=12)
    if EXP.get('tm', 1): lane_const(A, 17, lambda t: WS_RP + t * 4096, src=14, nbits=6, tmp=12)
    else: lane_const(A, 17, lambda t: WS_RP + (t >> 2) * 16384 + (t & 3) * 128 + 4096, src=14, nbits=6, tmp=12)
    lane_const(A, 18, lambda t: WS_RP + 0x40000 + (t >> 3) * 8192 + (t & 7) * 32, src=14, nbits=5, tmp=12)
    A("v_readfirstlane_b32 s41, v15")
    A("v_readfirstlane_b32 s12, v16")
    A("v_readfirstlane_b32 s13, v17")
    A("v_readfirstlane_b32 s14, v18")
    A("s_cmp_lt_u32 s10, 2")
    A("s_cselect_b32 s41, s41, s12")
    A("s_cselect_b32 s13, s13, s14")
    if EXP.get('rep', 0):
        A("s_cselect_b32 s44, -1, 0x03030303")
        A("s_mov_b32 s45, s44")
        A("s_and_b32 s36, s9, 3")
        A("s_lshl_b32 s36, s36, 15")
        A("s_add_u32 s36, s36, 3072")
    else:
        A("s_mov_b32 s44, 0x00030003")
        A("s_cselect_b32 s44, 0x00FF00FF, s44")
        A("s_mov_b32 s45, 0")
        A("s_movk_i32 s36, 3072")
    add64(A, 28, S_WS, "s13")
    add64(A, 16, 28, 8192)
    A("s_lshl_b32 s12, s10, 5")
    A("s_add_u32 s12, s12, s9")
    A("s_lshl_b32 s13, s12, 9")
    if EXP.get('tm', 1):
        A("s_lshl_b32 s13, s10, 7")
        A("s_add_u32 s13, s13, s9")
        A("s_lshl_b32 s13, s13, 7")
    A(f"s_add_u32 s13, s13, {WS_RP}")
    add64(A, 26, S_WS, "s13")
    for p in range(1, 4): add64(A, 88 + 2 * p, 26, p * 65536)
    A("s_lshl_b32 s13, s12, 8")
    A(f"s_add_u32 s13, s13, {WS_RP + 0x40000}")
    add64(A, 42, S_WS, "s13")
    add64(A, 30, S_WS, WS_RM)
    cc = struct.unpack('<I', struct.pack('<f', (128 ** -0.5) * math.log2(math.e)))[0]
    A(f"s_mov_b32 s46, {cc:#x}")
    A("s_bfe_u32 s40, s9, 0x10003")
    A("s_lshl_b32 s12, s9, 14")
    A(f"s_add_u32 s12, s12, {WS_KV}")
    add64(A, 88, S_WS, "s12")
    A("s_lshl_b32 s13, s10, 11")
    add64(A, 32, 88, "s13")
    add64(A, 86, 32, 8192)
    A("s_lshl_b32 s12, s9, 12")
    A(f"s_add_u32 s12, s12, {WS_KVM}")
    add64(A, 50, S_WS, "s12")
    A("s_lshl_b32 s12, s9, 7")
    A(f"s_add_u32 s12, s12, {WS_KVPROG + 4096}")
    add64(A, 18, S_WS, "s12")
    A("s_lshl_b32 s12, s9, 2")
    A(f"s_add_u32 s12, s12, {WS_RPROG}")
    add64(A, 52, S_WS, "s12")
    A("s_lshl_b32 s12, s9, 7")
    A(f"s_add_u32 s12, s12, {WS_RPROG}")
    add64(A, 22, S_WS, "s12")
    A("s_lshl_b32 s62, s10, 11")
    A(f"s_add_u32 s62, s62, {L_KX}")
    A("s_lshl_b32 s63, s10, 10")
    A(f"s_add_u32 s57, s63, {L_MEM}")
    A(f"s_add_u32 s63, s63, {L_VX}")

def ms_fn(kind, t, l):
    q8, gp = l & 7, (l >> 4) & 1
    rp = 0
    if kind == 1:
        w, g = (t >> 2) & 3, t & 3
        return rp + (t >> 3) * 1024 + mimg(2 * g + gp, 4 * (w & 1) + (q8 >> 1)) + (q8 & 1) * 8
    w, g, nh = t >> 3, (t >> 1) & 3, t & 1
    return rp + 8192 + mimg(2 * g + gp, 2 * w + nh) + (l & 1) * 8

def ms_calc(A, kind, dst, tmp):
    lane_const(A, dst, lambda x: ms_fn(kind, 0, x >> 4) ^ ms_fn(kind, 0, 0), src=L16, nbits=10, tmp=tmp, mode='xor')
    A(f"v_xor_b32 v{dst}, s41, v{dst}")

def kv_wait(A, seg_sgpr, nkv, kvg0, tv, xit='L_exit'):
    if nkv == 0: return
    ok = A.newlabel('L_kvok'); loop = A.newlabel('L_kvp')
    A(f"s_cmp_lt_u32 {seg_sgpr}, s54")
    A(f"s_cbranch_scc1 {ok}")
    A("s_mov_b32 s55, 0")
    A(f"v_bfe_u32 v{tv}, v{L16}, 2, 4")
    A.label(loop)
    A(f"global_load_dword v{tv+1}, v{tv}, s[18:19] sc1")
    A("s_add_u32 s55, s55, 1")
    A(f"s_cmp_gt_u32 s55, {SPIN_MAX}")
    A(f"s_cbranch_scc1 {xit}")
    A("s_waitcnt vmcnt(0)")
    xsum(A, tv + 1, tv, op="v_min_u32", bits=(0, 1))
    A(f"v_readfirstlane_b32 s54, v{tv+1}")
    A(f"s_cmp_lt_u32 {seg_sgpr}, s54")
    A(f"s_cbranch_scc1 {ok}")
    A("s_sleep 4")
    A(f"s_branch {loop}")
    A.label(ok)

def r_pro(A, nkv, kvg0):
    TR = EXP.get('trace', [])
    A("s_mov_b32 s24, 0")
    A("s_mov_b32 s34, 9216")
    A("s_mov_b32 s35, 0")
    if TR or EXP.get('rt'):
        for i in range(22 if TR else 16): A(f"s_mov_b32 s{64+i}, 0")
    tl(A, 2)
    if EXP.get('warm', 1):
        A("s_mul_i32 s12, s9, 9216")
        A(f"s_add_u32 s12, s12, {WS_RP}")
        A(f"v_lshl_add_u32 v12, v{T16}, 2, s12")
        A("s_lshl_b32 s12, s9, 10")
        A(f"s_add_u32 s12, s12, {WS_RM}")
        A(f"v_add_u32 v13, s12, v{L16}")
        A(f"s_mov_b32 m0, {L_JUNK}")
        A("global_load_lds_dword v12, s[4:5] sc1")
        A("global_load_lds_dword v13, s[4:5] sc1")
    A(f"s_mov_b32 s25, {EXP.get('i1', 1)}")
    kv_wait(A, "s25", nkv, kvg0, 12)
    A(f"v_lshlrev_b32 v12, 2, v{T16}")
    A("global_load_lds_dword v12, s[88:89]")
    tl(A, 3)
    if EXP.get('rt'):
        A("s_memrealtime s[80:81]")
        A("s_memtime s[96:97]")
    add64(A, 38, S_WS, WS_STAMP + 0x8000)
    add64(A, 58, 88, EXP.get('i1', 1) << 19)

def r_main(A, fast, wv, nkv, kvg0, nsteps=64):
    st = "" if fast else "sc1"
    LF = "sc1"
    sfx = ("f" if fast else "s") + str(wv)
    XIT = f"L_rx_{sfx}"
    D = Lds(A)
    TR = EXP.get('trace', [])
    def tr(name):
        if name in TR:
            i = TR.index(name)
            A(f"s_memtime s[{64+2*i}:{65+2*i}]")
    ORD = [ORD0[(2 * wv + p) % 8] for p in range(8)] + [7]
    def wk_off(n): return L_WK + ((2 * wv + (n >> 1)) % 8) * 16384 + (n & 1) * 8192
    OWN = EXP.get('own', 2)
    STG = ORD[:2] + ([7] if wv == 0 else [])
    if OWN == 3:
        if wv == 3: ORD = ORD[:2] + [7] + ORD[2:8]
        LDL = ORD[:3]; STG = ORD[:3] if wv == 3 else ORD[:2]
    else: LDL = STG
    WT = EXP.get('wt', 1)
    P3 = EXP.get('p3', 1)
    VA = EXP.get('va', 1)
    ACCV1 = 36 if VA else 40
    J = [(wv + i) % 4 for i in range(4)] if VA else [0, 1, 2, 3]
    def lreg(j): return ACCV0 if (P3 and j == 2) else MRING + 4 * j
    SW = {}; SWO = {}
    LW = [n for n in range(16) if n not in SW]
    cur = [0]
    def lds_frag(n, r, tag, areg=WKB):
        off = wk_off(n); base = (off // 65536) * 65536
        if base and cur[0] != base:
            A(f"v_add_u32 v{areg}, {base:#x}, v{T16}")
            cur[0] = base
        ar = T16 if base == 0 else areg
        D.op(f"ds_read_b128 {v(r, 4)}, v{ar} offset:{off - base}")
        D.op(f"ds_read_b128 {v(r + 4, 4)}, v{ar} offset:{off - base + 4096}", tag)
    RSH = (3 - (len(LW) - 1) % 3) % 3
    def wslot(i): return WRING + ((i + RSH) % 3) * 8
    def wk_read(i):
        cur[0] = 0
        lds_frag(LW[i], wslot(i), ('wk', i))
    def spill_read(r):
        D.op(f"ds_read_b32 v{r}, v{QKW} offset:{KL0}")
        D.op(f"ds_read_b32 v{r+1}, v{QKW} offset:{KL0 + QSTR}")
        D.op(f"ds_read2_b32 {v(r + 2, 2)}, v{QKW} offset0:0 offset1:{QSTR // 4}", 'spill')
    def zero_qk(lo=ACCQ, hi=ACCQ + 16):
        for r in range(lo, hi, 2): A(f"v_mov_b64 {v(r, 2)}, 0")
    for n in sorted(range(3), key=wslot): wk_read(n)
    def mem_read(ks, r, tag):
        D.op(f"ds_read_b128 {v(r, 4)}, v{L16} offset:{L_MEM + ks * 1024}", tag)
    def mslot(p): return MRING + ((p & 1) if VA else (0, 1, 0, 1, 2, 0, 1, 2, 0)[p] if P3 else p % 3) * 4
    for p, ks in enumerate(LDL): mem_read(ks, lreg(p), None)
    if P3 and wv: zero_qk(ACCV0, ACCV0 + 4)
    zero_qk()
    A("s_mov_b32 m0, s62")
    A("s_mov_b32 s55, 0")
    A("s_mov_b32 s47, s40")
    A("s_mov_b64 s[20:21], s[30:31]")
    D.waitall()
    SP = EXP.get('sp', 1)
    def smf(acc, ar, w): A(f"{SMF} {v(acc, 4)}, {v(ar, 4)}, {u(w, 8)}, v{IDX}")
    head = [(ACCQ, WQ(ORD[0], 0)), (ACCQ + 4, WQ(ORD[0], 1))] + ([(ACCV0, WV(ORD[0], 0))] if wv else [])
    top = f"L_rtop_{sfx}"
    assert SP
    smf(head[0][0], mslot(0), head[0][1])
    smf(head[1][0], mslot(0), head[1][1])
    A(f"s_branch L_rgo_{sfx}")
    A.label(f"L_rp2_{sfx}")
    ns = len(LDL)
    A(f"s_waitcnt vmcnt({ns - 1})")
    tr('p2w0')
    smf(head[0][0], mslot(0), head[0][1])
    A(f"v_max_u32 v{TMPC}, v{lreg(0)}, v{lreg(0)+2}")
    for j in range(1, ns):
        A(f"s_waitcnt vmcnt({ns - 1 - j})")
        A(f"v_max3_u32 v{TMPC}, v{TMPC}, v{lreg(j)}, v{lreg(j)+2}")
    A(f"v_cmp_eq_u32 vcc, -1, v{TMPC}")
    smf(head[1][0], mslot(0), head[1][1])
    A(f"ds_write_b128 v{L16}, {v(lreg(0), 4)} offset:{L_MEM + STG[0] * 1024}")
    A(f"s_cbranch_vccnz L_rf2_{sfx}")
    A.label(f"L_rgo_{sfx}")
    if wv: smf(head[2][0], mslot(0), head[2][1])
    A(f"ds_write_b128 v{L16}, {v(lreg(1), 4)} offset:{L_MEM + STG[1] * 1024}")
    tr('b1')
    D.q = ['pre'] + ['mw'] * 2
    D.wait('pre')
    KE = EXP.get('kearly', 0)
    loc = {('m', 8): mslot(8), ('m', 7): mslot(7), ('m', 6): mslot(6)}
    NSL = 3 if (nkv and wv == 3) else 2
    def sread(tag, r):
        loc[tag] = r
        if tag[0] == 'q': D.op(f"ds_read_b128 {v(r, 4)}, v{QR} offset:{tag[1] * 64}", tag)
        elif tag[0] == 'km': D.op(f"ds_read_b128 {v(r, 4)}, v{QR} offset:{KL0 + tag[1] * 64}", tag)
        elif tag[0] == 'kx': D.op(f"ds_read_b128 {v(r, 4)}, v{L16} offset:{L_KX + (tag[1] * 4 + tag[2]) * 1024}", tag)
        elif tag[0] == 'm': mem_read(ORD[tag[1]], r, tag)
        elif tag[0] == 'vx':
            if tag[1] == 0: A(f"s_waitcnt vmcnt({NSL})")
            D.op(f"ds_read_b128 {v(r, 4)}, v{T16} offset:{L_VX + tag[1] * 4096}", tag)
    def smf(acc, ar, w): A(f"{SMF} {v(acc, 4)}, {v(ar, 4)}, {u(w, 8)}, v{IDX}")
    V0S = 2 if KE else 3
    BP = EXP.get('bp', 5)
    pos = (1, 2, 4, 5, 7, 9, 10, 13) if KE else (BP + 1, BP + 2, BP + 3, BP + 4, 11, 13, 14, 18)
    ext = {pos[0]: f"global_load_lds_dwordx4 v{L16}, s[32:33]",
           pos[1]: f"global_load_lds_dwordx4 v{L16}, s[32:33] offset:1024\ns_mov_b32 m0, s63",
           pos[2]: f"global_load_lds_dwordx4 v{L16}, s[86:87]\ns_add_u32 m0, s63, 3072",
           pos[3]: f"global_load_lds_dwordx4 v{L16}, s[86:87] offset:1024\ns_mov_b32 m0, {L_JUNK}",
           pos[4]: f"global_store_dwordx4 v{T16}, {v(ACCV0, 4)}, s[38:39] sc1",
           pos[5]: f"v_lshlrev_b32 v{ACCV0}, 2, v{T16}\nv_mov_b64 {v(ACCV0 + 2, 2)}, 0",
           pos[6]: f"global_load_lds_dword v{ACCV0}, s[58:59]\nv_mov_b64 {v(ACCV0, 2)}, 0\ns_mov_b32 m0, {L_QL + 256}"}
    if P3:
        V0S = 1 if wv == 0 else 0
        BP = EXP.get('bp3', 6) - V0S
        if SP: BP = EXP.get('bps', 3)
        r2 = MRING + 8
        pos = tuple(BP + x for x in [(1, 2, 3, 4, 6, 99, 8, 12), (-2, -1, 1, 3, 5, 99, 7, 11), (1, 3, 5, 7, 9, 99, 11, 14), (-2, -1, 2, 5, 8, 99, 10, 13), (1, 2, 4, 6, 9, 99, 11, 14)][EXP.get('pp', 0)])
        ext = {pos[0]: f"global_load_lds_dwordx4 v{L16}, s[32:33]",
               pos[1]: f"global_load_lds_dwordx4 v{L16}, s[32:33] offset:1024\ns_mov_b32 m0, s63",
               pos[2]: f"global_load_lds_dwordx4 v{L16}, s[86:87]\ns_add_u32 m0, s63, 3072",
               pos[3]: f"global_load_lds_dwordx4 v{L16}, s[86:87] offset:1024\ns_mov_b32 m0, {L_JUNK}",
               pos[4]: f"global_store_dwordx4 v{T16}, {v(r2, 4)}, s[38:39] sc1",
               pos[6]: f"v_lshlrev_b32 v{r2}, 2, v{T16}\nglobal_load_lds_dword v{r2}, s[58:59]\ns_mov_b32 m0, {L_QL + 256}"}
        if wv == 0: ext[2] = ext.get(2, "") + f"\nv_mov_b64 {v(ACCV0, 2)}, 0\nv_mov_b64 {v(ACCV0 + 2, 2)}, 0"
    if nkv and wv == 3: ext[pos[7]] = f"s_mov_b64 exec, 1\nglobal_load_lds_dwordx4 v{L16}, s[18:19] sc1\ns_mov_b64 exec, -1"
    sb_ = Asm()
    sb_("s_lshl_b32 s13, s24, 17")
    add64(sb_, 38, 50, "s13")
    sb_("s_add_u32 s25, s24, 2")
    sb_(f"s_min_u32 s25, s25, {nsteps - 1}")
    sb_("s_lshl_b32 s13, s25, 19")
    add64(sb_, 58, 88, "s13")
    add64(sb_, 86, 86, 1 << 19)
    add64(sb_, 32, 32, 1 << 19)
    add64(sb_, 14, 30, "s34")
    add64(sb_, 60, 30, "s35")
    add64(sb_, 20, 14, 4096)
    if wv == 0: add64(sb_, 16, 14, 8192)
    sb_("s_and_b32 s12, s24, 1")
    sb_("s_xor_b32 s13, s12, 1")
    sb_("s_xor_b32 s47, s13, s40")
    sb_("s_add_u32 s24, s24, 1")
    sb_("s_mov_b32 s35, s34")
    sb_("s_add_u32 s34, s34, 9216")
    sb_("s_cmp_eq_u32 s34, 27648")
    sb_("s_cselect_b32 s34, 0, s34")
    sb_("s_mov_b32 s55, 0")
    book = [i.text.strip() for i in sb_.ins]
    sq = []
    cnt_ = [0]
    held = []
    side = []
    class Defer:
        def op(self, text, tag=None): side.append((text, tag))
    def flush_until(tag):
        while any(t == tag for _, t in side):
            x = side.pop(0)
            D.op(*x) if x[0].startswith('ds_') else A(x[0])
    GAPN = EXP.get('gapn', 2)
    def smfs(acc, ar, w, need=()):
        for t in need:
            flush_until(t); D.wait(t)
        smf(acc, ar, w)
        cnt_[0] += 1
    def gap():
        n = 0
        if cnt_[0] == 1 and len(STG) == 3:
            j = 2
            D.op(f"ds_write_b128 v{L16}, {v(lreg(j), 4)} offset:{L_MEM + STG[j] * 1024}", 'mw')
            n += 1
        if cnt_[0] == BP:
            D.wait('mw')
            A("s_barrier")
            if OWN == 2: mem_read(ORD[2], mslot(2), ('m', 2))
            side.extend(held); held.clear()
            n = GAPN if OWN == 2 else 1
        if cnt_[0] in ext:
            A(ext[cnt_[0]]); n += 1
            if P3 and cnt_[0] == pos[6]:
                if VA: A(f"v_mov_b64 {v(r2, 2)}, 0\nv_mov_b64 {v(r2 + 2, 2)}, 0")
                else: mem_read(ORD[4], r2, ('m', 4))
                n += 1
        while side and n < GAPN:
            x = side.pop(0)
            D.op(*x) if x[0].startswith('ds_') else A(x[0])
            n += 1
        while cnt_[0] > pos[7] and sq and n < GAPN:
            A(sq.pop(0)); n += 1
    def d_wk(i):
        off = wk_off(LW[i]); base = (off // 65536) * 65536
        if base and cur[0] != base:
            side.append((f"v_add_u32 v{WKB}, {base:#x}, v{T16}", None)); cur[0] = base
        ar = T16 if base == 0 else WKB
        side.append((f"ds_read_b128 {v(wslot(i), 4)}, v{ar} offset:{off - base}", None))
        side.append((f"ds_read_b128 {v(wslot(i) + 4, 4)}, v{ar} offset:{off - base + 4096}", ('wk', i)))
    def d_kx(kt, j, r):
        loc[('kx', kt, j)] = r
        side.append((f"ds_read_b128 {v(r, 4)}, v{L16} offset:{L_KX + (kt * 4 + j) * 1024}", ('kx', kt, j)))
    cur[0] = 0
    for p in range(8):
        ks = ORD[p]
        m = mslot(p)
        if not (SP and p == 0): smfs(ACCQ, m, WQ(ks, 0), [('m', p)]); gap()
        for b in range(2):
            n = 2 * p + b
            if n in SW: smfs(ACCK + 4 * b, m, wo_reg(SW[n]))
            else:
                i = LW.index(n)
                smfs(ACCK + 4 * b, m, wslot(i), [('wk', i)])
                if i + 3 < len(LW): d_wk(i + 3)
            if P3:
                nx = {1: 3, 2: 5, 3: 6, 4: 7, 5: 8}.get(p)
                if VA: nx = p + 2 if 1 <= p <= 6 else None
                if b == 1 and nx: side.insert(0 if (nx == 3 or VA) else len(side), (f"ds_read_b128 {v(mslot(nx), 4)}, v{L16} offset:{L_MEM + ORD[nx] * 1024}", ('m', nx)))
            elif b == 1 and p + 3 < 9:
                (held if cnt_[0] < BP else side).append((f"ds_read_b128 {v(mslot(p), 4)}, v{L16} offset:{L_MEM + ORD[p + 3] * 1024}", ('m', p + 3)))
            if n == 12:
                side.append((f"s_waitcnt vmcnt({NSL + 2})", None))
                side.append(("s_barrier", None))
            if n == 13: d_kx(0, J[0], 48); d_kx(1, J[0], 52)
            if n == 14: d_kx(0, J[1], 56); d_kx(1, J[1], 60)
            gap()
            if b == 0 and not (SP and p == 0):
                smfs(ACCQ + 4, m, WQ(ks, 1)); gap()
                if p >= V0S: smfs(ACCV0, m, WV(ks, 0)); gap()
                if VA and 3 <= p <= 6: smfs(ACCV1, m, WV(ks, 1)); gap()
        tr(f'a{p+1}')
    assert not side, side
    if VA: sread(('m', 2), 40); sread(('m', 1), 44)
    else: sread(('m', 5), 44)
    D.wait(('m', 8))
    m = mslot(8); ks = ORD[8]
    smfs(ACCQ, m, WQ(ks, 0)); gap(); smfs(ACCQ + 4, m, WQ(ks, 1))
    for o in sq: A(o)
    if not VA: A(f"v_mov_b64 {v(ACCV1, 2)}, 0")
    smf(ACCK, m, WK8(0))
    if not VA: A(f"v_mov_b64 {v(ACCV1 + 2, 2)}, 0")
    smf(ACCK + 4, m, WK8(1))
    A(f"v_mov_b32 v{TMPC}, s47")
    smf(ACCV0, m, WV(ks, 0))
    tr('a9')
    A(f"s_cmp_eq_u32 s24, {nsteps - 1}")
    A(f"s_cbranch_scc1 L_rlast_{sfx}")
    fill = [(p, 1) for p in range(8, V0S - 1, -1)]
    for p in range(V0S - 1, -1, -1): fill += [(p, 1), (p, 0)]
    if VA: fill = [x for x in fill if not (3 <= x[0] <= 6)]
    def filler(cnt=1):
        for _ in range(cnt):
            if fill:
                p, b = fill.pop(0)
                D.wait(('m', p))
                smf(ACCV1 if b else ACCV0, loc[('m', p)], WV(ORD[p], b))
    for acc, lo in ((ACCQ, 0), (ACCK, KL0)):
        for b in range(2):
            A(f"v_add_f32 v{acc+4*b}, v{acc+4*b}, v{acc+4*b+1}")
            A(f"v_add_f32 v{acc+4*b+2}, v{acc+4*b+2}, v{acc+4*b+3}")
        A(f"v_cvt_pk_bf16_f32 v{acc+1}, v{acc}, v{acc+4}")
        A(f"v_cvt_pk_bf16_f32 v{acc+3}, v{acc+2}, v{acc+6}")
        if lo == 0: D.op(f"ds_write2_b32 v{QKW}, v{acc+1}, v{acc+3} offset0:0 offset1:{QSTR // 4}")
        else:
            D.op(f"ds_write_b32 v{QKW}, v{acc+1} offset:{lo}")
            D.op(f"ds_write_b32 v{QKW}, v{acc+3} offset:{lo + QSTR}", 'qkw')
    tr('qkw')
    T0, T1, T2 = 12, 16, 20
    if VA:
        sread(('q', J[0]), 24)
        filler(1)
        sread(('km', J[0]), mslot(8))
        filler(1)
        sread(('m', 0), mslot(7))
        filler(2)
        D.wait('qkw')
        A("s_barrier")
        tr('b2')
        sread(('q', J[1]), 40); sread(('km', J[1]), 44)
        pend = [('q', J[2]), ('kx', 0, J[2]), ('kx', 1, J[2]), ('km', J[2]), ('q', J[3]), ('kx', 0, J[3]), ('kx', 1, J[3]), ('km', J[3]), ('vx', 0), ('vx', 1)]
    else:
        filler(1)
        sread(('m', 4), 16); sread(('m', 3), 24); sread(('m', 2), mslot(8))
        filler(3)
        D.wait('qkw')
        A("s_barrier")
        tr('b2')
        T0, T1, T2 = 12, 16, 20
        sread(('q', 0), mslot(7)); sread(('km', 0), mslot(6)); sread(('q', 1), 44)
        filler(2)
        sread(('km', 1), 24)
        filler(1 if V0S < 3 else 2)
        sread(('q', 2), mslot(8))
        pend = [('kx', 0, 2), ('kx', 1, 2), ('km', 2), ('q', 3), ('kx', 0, 3), ('kx', 1, 3), ('km', 3),
                ('m', 1), ('m', 0), ('vx', 0), ('vx', 1)]
    free = []
    for j in J:
        for T, tag in ((T0, ('kx', 0, j)), (T1, ('kx', 1, j)), (T2, ('km', j))):
            D.wait(tag); D.wait(('q', j))
            A(f"{MF32} {v(T, 4)}, {v(loc[tag], 4)}, {v(loc[('q', j)], 4)}, {v(T, 4) if j != J[0] else 0}")
            if pend: sread(pend.pop(0), loc[tag])
            else: free.append(loc[tag])
        if pend: sread(pend.pop(0), loc[('q', j)])
        else: free.append(loc[('q', j)])
    tr('s_done')
    BX, Z, DA, DB = free[0], free[1], free[2], free[3]
    filler(3 if P3 else 2)
    M, TT, SUM = 16, 17, 18
    VMR = 22
    AO = 28
    busy = set()
    for b_ in (BX, Z, DA, DB, loc[('vx', 0)], loc[('vx', 1)], ACCV1, loc[('m', 0)]): busy |= set(range(b_, b_ + 4))
    zq = [r for r in range(AO, AO + 36, 2) if r not in busy]
    late = set(range(DA, DA + 4)) | set(range(DB, DB + 4))
    zm = [r for r in range(AO, AO + 36, 2) if r in busy and r not in late]
    zl = [r for r in range(AO, AO + 36, 2) if r in late]
    MZ = EXP.get('mz', 1)
    PS, PL, WB = 8, 9, 20
    misc = [f"v_lshrrev_b32 v{PL}, 2, v{L16}", f"v_and_b32 v{PS}, 0x300, v{L16}", f"v_bfe_u32 v10, v{L16}, 1, 7", f"v_lshl_or_b32 v{PS}, v{PS}, 4, v10", "v_mov_b64 v[10:11], 0"]
    mok = [False]
    def zero(cnt=1):
        for _ in range(cnt):
            if MZ:
                if mok[0] and misc: A(misc.pop(0))
            elif zq: A(f"v_mov_b64 {v(zq.pop(0), 2)}, 0")
    A(f"v_mov_b32 v{Z+1}, 0")
    A(f"v_mov_b32 v{Z+2}, 0")
    for r in range(4): A(f"v_mov_b32_dpp v{T0+r}, v{T1+r} {IDQ} row_mask:0xf bank_mask:0xc")
    A(f"v_mov_b32_dpp v{T2+2}, v{T2+3} {IDQ} row_mask:0xf bank_mask:0xc")
    A(f"v_mov_b32_dpp v{T2}, v{T2+1} {IDQ} row_mask:0x3 bank_mask:0xc")
    A(f"v_max3_f32 v{M}, v12, v13, v14")
    zero(1)
    A(f"v_mov_b32_dpp v{T2}, v{T2+2} {IDQ} row_mask:0xc bank_mask:0xf")
    A(f"v_max3_f32 v{M}, v{M}, v15, v20")
    tr('max0')
    if P3:
        A(f"v_add_f32 v{ACCV1}, v{ACCV1}, v{ACCV1+1}")
        A(f"v_add_f32 v{ACCV1+2}, v{ACCV1+2}, v{ACCV1+3}")
    else: filler(1); zero(1)
    A(f"v_max_f32_dpp v{M}, v{M}, v{M} {ROR8}")
    A(f"v_mov_b32 v{TT}, v{M}")
    if P3:
        A(f"v_add_f32 v{ACCV0}, v{ACCV0}, v{ACCV0+1}")
        A(f"v_add_f32 v{ACCV0+2}, v{ACCV0+2}, v{ACCV0+3}")
    else: filler(9); zero(1)
    assert not fill
    A(f"v_permlane16_swap_b32 v{M}, v{TT}")
    A(f"v_max_f32 v{M}, v{M}, v{TT}")
    A(f"v_mov_b32 v{TT}, v{M}")
    if P3:
        A(f"v_cvt_pk_bf16_f32 v{VMR}, v{ACCV0}, v{ACCV0+2}")
        A(f"v_cvt_pk_bf16_f32 v{VMR+1}, v{ACCV1}, v{ACCV1+2}")
    else: zero(2)
    A(f"v_permlane32_swap_b32 v{M}, v{TT}")
    A(f"v_max_f32 v{M}, v{M}, v{TT}")
    A(f"v_mul_f32 v{M}, s46, v{M}")
    tr('max1')
    for e in (12, 13, 14, 15, 20): A(f"v_fma_f32 v{e}, v{e}, s46, -v{M}")
    for e in (12, 13, 14, 15): A(f"v_exp_f32 v{e}, v{e}")
    A(f"v_cvt_pk_bf16_f32 v{BX}, v12, v13")
    A(f"v_cvt_pk_bf16_f32 v{BX+1}, v14, v15")
    A("v_exp_f32 v20, v20")
    A(f"v_mov_b32_dpp v{BX+2}, v{BX} {ROR8}")
    A(f"v_mov_b32_dpp v{BX+3}, v{BX+1} {ROR8}")
    A(f"v_mov_b32_dpp v21, v20 {ROR8}")
    if P3:
        A(f"v_add_f32 v{SUM}, v12, v13")
        D.wait(('vx', 1))
        tr('pv0')
        A(f"{MF32} {v(DA, 4)}, {v(loc[('vx', 0)], 4)}, {v(BX, 4)}, 0")
        A(f"v_cvt_pk_bf16_f32 v{Z}, v20, v21")
        A(f"v_add_f32 v{TT}, v14, v15")
        A(f"{MF32} {v(DB, 4)}, {v(loc[('vx', 1)], 4)}, {v(BX, 4)}, 0")
        A(f"v_add_f32 v{SUM}, v{SUM}, v20")
        A(f"v_add_f32 v{SUM}, v{SUM}, v{TT}")
        A(f"v_cvt_pk_bf16_f32 v{Z+3}, v20, v21")
        A(f"{MF16} {v(DA, 4)}, {v(VMR, 2)}, {v(Z, 2)}, {v(DA, 4)}")
        A(f"v_add_f32_dpp v{SUM}, v{SUM}, v{SUM} {ROR8}")
        A(f"v_mov_b32 v{TT}, v{SUM}")
        A(f"{MF16} {v(DB, 4)}, {v(VMR, 2)}, {v(Z + 2, 2)}, {v(DB, 4)}")
        tr('pv1')
        zq += zm
        zq.sort()
        mok[0] = True
        zero(1)
        A(f"v_permlane16_swap_b32 v{SUM}, v{TT}")
        A(f"v_add_f32 v{SUM}, v{SUM}, v{TT}")
        A(f"v_mov_b32 v{TT}, v{SUM}")
        zero(2)
        A(f"v_permlane32_swap_b32 v{SUM}, v{TT}")
        A(f"v_add_f32 v{SUM}, v{SUM}, v{TT}")
    else:
        A(f"v_add_f32 v{ACCV0}, v{ACCV0}, v{ACCV0+1}")
        D.wait(('vx', 1))
        tr('pv0')
        A(f"{MF32} {v(DA, 4)}, {v(loc[('vx', 0)], 4)}, {v(BX, 4)}, 0")
        A(f"v_add_f32 v{ACCV0+2}, v{ACCV0+2}, v{ACCV0+3}")
        A(f"v_add_f32 v{ACCV1}, v{ACCV1}, v{ACCV1+1}")
        A(f"{MF32} {v(DB, 4)}, {v(loc[('vx', 1)], 4)}, {v(BX, 4)}, 0")
        A(f"v_add_f32 v{ACCV1+2}, v{ACCV1+2}, v{ACCV1+3}")
        A(f"v_cvt_pk_bf16_f32 v{VMR}, v{ACCV0}, v{ACCV0+2}")
        A(f"v_cvt_pk_bf16_f32 v{VMR+1}, v{ACCV1}, v{ACCV1+2}")
        A(f"v_cvt_pk_bf16_f32 v{Z}, v20, v21")
        A(f"v_cvt_pk_bf16_f32 v{Z+3}, v20, v21")
        A(f"v_add_f32 v{SUM}, v12, v13")
        A(f"{MF16} {v(DA, 4)}, {v(VMR, 2)}, {v(Z, 2)}, {v(DA, 4)}")
        A(f"v_add_f32 v{TT}, v14, v15")
        A(f"v_add_f32 v{SUM}, v{SUM}, v20")
        A(f"{MF16} {v(DB, 4)}, {v(VMR, 2)}, {v(Z + 2, 2)}, {v(DB, 4)}")
        tr('pv1')
        A(f"v_add_f32 v{SUM}, v{SUM}, v{TT}")
        zq += zm
        zero(2)
        A(f"v_add_f32_dpp v{SUM}, v{SUM}, v{SUM} {ROR8}")
        A(f"v_mov_b32 v{TT}, v{SUM}")
        zero(2)
        A(f"v_permlane16_swap_b32 v{SUM}, v{TT}")
        A(f"v_add_f32 v{SUM}, v{SUM}, v{TT}")
        A(f"v_mov_b32 v{TT}, v{SUM}")
        zero(2)
        A(f"v_permlane32_swap_b32 v{SUM}, v{TT}")
        A(f"v_add_f32 v{SUM}, v{SUM}, v{TT}")
    A(f"v_rcp_f32 v{SUM}, v{SUM}")
    tr('rcp')
    zero(1)
    for k, Dx in enumerate((DA, DB)):
        for r in (0, 2): A(f"v_pk_mul_f32 {v(Dx + r, 2)}, {v(Dx + r, 2)}, {v(SUM, 2)} op_sel_hi:[1,0]")
    A(f"v_cvt_pk_bf16_f32 v12, v{DA}, v{DA+1}")
    A(f"v_cvt_pk_bf16_f32 v13, v{DA+2}, v{DA+3}")
    A(f"v_cvt_pk_bf16_f32 v14, v{DB}, v{DB+1}")
    A(f"v_cvt_pk_bf16_f32 v15, v{DB+2}, v{DB+3}")
    D.op(f"ds_write_b128 v{OW}, v[12:15]")
    tr('ow')
    zq += zl
    zq.sort()
    if MZ:
        for o in misc: A(o)
        A("v_mfma_f32_32x32x8_bf16 v[28:43], v[10:11], v[10:11], 0")
        A("v_mfma_f32_32x32x8_bf16 v[44:59], v[10:11], v[10:11], 0")
        post = ["v_mov_b64 v[60:61], 0", "v_mov_b64 v[62:63], 0"]
    else:
        post = [f"v_mov_b64 {v(r, 2)}, 0" for r in zq] + misc[:4]
        for _ in range(EXP.get('zb', 6)): A(post.pop(0))
    D.waitall()
    A("s_barrier")
    tr('b3')
    OF = 12
    D.op(f"ds_read_b128 {v(OF, 4)}, v{MEMR} offset:{L_OL}", 'o0')
    D.op(f"ds_read_b128 {v(OF + 4, 4)}, v{MEMR} offset:{L_OL + 1024}", 'o1')
    A(post.pop(0))
    D.op(f"ds_write2_b32 v{QKW}, v{VMR}, v{VMR+1} offset0:0 offset1:{QSTR // 4}")
    cur[0] = 0
    wq_ = sorted(SWO)
    def wo_next():
        if wq_:
            k_ = wq_.pop(0)
            lds_frag(SWO[k_], WB, ('wo', k_), areg=11)
    wo_next()
    for _ in range(EXP.get('za', 3)):
        if post: A(post.pop(0))
    def acc(t): return AO + 4 * WORD.index(t)
    def wpost(t):
        c = acc(t)
        o = [f"v_add_f32 v{c}, v{c}, v{c+1}", f"v_add_f32 v{c+1}, v{c+2}, v{c+3}"]
        if t == 8:
            o.append(f"v_cvt_pk_bf16_f32 v{c+2}, v{c}, v{c+1}")
            o.append(f"v_bfi_b32 v{c+2}, 1, v{TMPC}, v{c+2}")
            o.append(f"global_store_dword v{PL}, v{c+2}, s[42:43] {st}")
        elif t & 1:
            p = acc(t - 1); sb = 26 if t == 1 else 88 + 2 * (t // 2)
            o.append(f"v_cvt_pk_bf16_f32 v{c+2}, v{p}, v{c}")
            o.append(f"v_cvt_pk_bf16_f32 v{c+3}, v{p+1}, v{c+1}")
            o.append(f"v_bfi_b32 v{c+2}, 1, v{TMPC}, v{c+2}")
            o.append(f"global_store_dwordx2 v{PS}, {v(c + 2, 2)}, s[{sb}:{sb+1}] {st}")
        return o
    D.wait('o0')
    tr('wo0')
    seq = [(t, k2) for t in WORD for k2 in range(2)]
    if EXP.get('il', 0):
        seq = [(8, 0), (0, 0), (8, 1), (1, 0), (0, 1)]
        for t in range(1, 7): seq += [(t + 1, 0), (t, 1)]
        seq += [(7, 1)]
        assert len(seq) == 18 and not SWO
    vq = list(post); since = {}
    slots = 0
    for k, (t, k2) in enumerate(seq):
        if k2 == 1: D.wait('o1')
        if k in SWO:
            D.wait(('wo', k))
            smf(acc(t), OF + 4 * k2, WB)
            wo_next()
            slots += 2
        else: smf(acc(t), OF + 4 * k2, WO(t, k2))
        slots += 1
        if k2 == 1: since[t] = slots
        em = 0
        for _ in range(EXP.get('wv', 2) + (1 if len(vq) > EXP.get('wq', 1) else 0)):
            for tt_ in list(since):
                if slots - since[tt_] >= EXP.get('wlag', 8): vq += wpost(tt_); del since[tt_]
            if vq: A(vq.pop(0)); slots += 1; em += 1
        if em == 0 and since and EXP.get('wn', 2):
            A(f"s_nop {EXP.get('wn', 2) - 1}"); slots += EXP.get('wn', 2)
    tr('wo1')
    for tt_ in list(since): vq += wpost(tt_)
    for o in vq: A(o)
    tr('wo2')
    D.q = []
    SEL, RD, MS, LA = 12, 16, 8, 9
    LDB = (24, 40)
    kind = (1, 1, 2, 0)[wv]
    lab = f"L_rp1_{sfx}"
    LD = 24
    def wkpre():
        for o in book: A(o)
        for n in sorted(range(3), key=wslot): wk_read(n)
    if kind:
        def loads():
            if kind == 2: A(f"global_load_dwordx4 {v(LD, 4)}, v{LA}, s[28:29] {LF}")
            else:
                for j in range(4): A(f"global_load_dwordx4 {v(LD + 4 * j, 4)}, v{L16}, s[28:29] offset:{j * 1024} {LF}")
        P = Asm()
        if kind == 1:
            P(f"v_bfe_u32 v20, v{L16}, 4, 1")
            P(f"v_bfe_u32 v21, v{L16}, 5, 1")
            P(f"v_bfe_u32 v22, v{L16}, 6, 1")
            P("v_lshl_add_u32 v22, v21, 1, v22")
        else:
            P(f"v_bfe_u32 v20, v{L16}, 6, 1")
            P(f"v_bfe_u32 v22, v{L16}, 4, 2")
            P(f"v_bfe_u32 v23, v{L16}, 8, 1")
            P("v_xor_b32 v23, s12, v23")
        P("v_lshlrev_b32 v20, 4, v20")
        P("v_mov_b32 v21, 0x3f80")
        P("v_lshlrev_b32 v21, v20, v21")
        m_ = Asm(); ms_calc(m_, kind, MS, 10); mq = [i.text.strip() for i in m_.ins]
        for j in range(4):
            P(f"v_cmp_eq_u32 vcc, {j}, v22")
            for _ in range(2):
                if mq: P(mq.pop(0))
            P(f"v_cndmask_b32 v{SEL+j}, 0, v21, vcc")
        for o in mq: P(o)
        P("v_mov_b64 v[10:11], -1")
        pq = [i.text.strip() for i in P.ins]
        if wv == 0:
            wkpre()
            A(f"s_waitcnt vmcnt({EXP.get('k0', 1)})")
            tr('p1s'); loads()
            for o in pq: A(o)
        elif wv == 1:
            wkpre()
            tp = EXP.get('tp', 3)
            A(f"s_waitcnt vmcnt({EXP.get('k1', 0)})")
            for o in pq[:tp]: A(o)
            tr('p1s'); loads()
            for o in pq[tp:]: A(o)
        else:
            lane_const(A, LA, lambda x: (x >> 5) * 256 + ((x >> 4) & 1) * 16, src=L16, nbits=10, tmp=10)
            if 'k2' in EXP:
                wkpre()
                A(f"s_waitcnt vmcnt({EXP['k2']})")
                loads()
            else:
                tr('p1s'); loads()
                wkpre()
            for o in pq: A(o)
        A.label(lab)
        if kind == 1:
            for j in range(4):
                A(f"s_waitcnt vmcnt({3 - j})")
                tr(f'p1w{j}')
                A(f"{MF32} {v(RD, 4)}, {v(SEL, 4)}, {v(LD + 4 * j, 4)}, {v(RD, 4) if j else 0}")
                A(f"v_bitop3_b32 v{20 + j}, v{LD+4*j}, v{LD+4*j+2}, {'s13' if j & 1 else 's12'} bitop3:0x7e")
                if j == 2: A("v_or3_b32 v20, v20, v21, v22")
            A("v_bitop3_b32 v20, v20, v23, 1 bitop3:0xa8")
        else:
            A("s_waitcnt vmcnt(0)")
            A(f"{MF32} {v(RD, 4)}, {v(SEL, 4)}, {v(LD, 4)}, 0")
            A(f"v_bitop3_b32 v20, v{LD}, v{LD+1}, v23 bitop3:0x7e")
            A(f"v_bitop3_b32 v21, v{LD+2}, v{LD+3}, v23 bitop3:0x7e")
            A("v_bitop3_b32 v20, v20, v21, 1 bitop3:0xa8")
        A("v_cmp_ne_u32 vcc, 0, v20")
        for r in range(4): A(f"v_add_f32_dpp v{RD+r}, v{RD+r}, v{RD+r} {ROR8}")
        if kind == 2:
            for r in range(4): A(f"v_add_f32_dpp v{RD+r}, v{RD+r}, v{RD+r} row_ror:4 row_mask:0xf bank_mask:0xf")
            for r in range(4): A(f"v_add_f32_dpp v{RD+r}, v{RD+r}, v{RD+r} quad_perm:[2,3,0,1] row_mask:0xf bank_mask:0xf")
        A(f"v_cvt_pk_bf16_f32 v20, v{RD}, v{RD+1}")
        A(f"v_cvt_pk_bf16_f32 v21, v{RD+2}, v{RD+3}")
        A("s_mov_b64 exec, s[44:45]")
        A(f"s_cbranch_vccnz {lab}_rt")
        tr('p1ok')
        A(f"global_store_dwordx2 v{MS}, v[20:21], s[14:15] {st}")
        A(f"global_store_dwordx2 v{MS}, v[10:11], s[60:61] {st}")
        A("s_mov_b64 exec, -1")
        if EXP.get('rt'): A("s_add_u32 s76, s76, s55")
    else:
        wkpre()
        if nkv:
            A(f"v_mov_b32 v28, {L_QL + 256}")
            A("s_waitcnt vmcnt(5)")
            A("ds_read_b128 v[28:31], v28")
            A("s_waitcnt lgkmcnt(0)")
            A("v_min3_u32 v28, v28, v29, v30")
            A("v_min_u32 v28, v28, v31")
            A("v_readfirstlane_b32 s12, v28")
            A("s_max_u32 s54, s54, s12")
        kv_wait(A, "s25", nkv, kvg0, 28, XIT)
        if EXP.get('steps'):
            A("s_memrealtime s[64:65]")
            A("s_memtime s[66:67]")
            A("s_lshl_b32 s12, s9, 6")
            A("s_add_u32 s12, s12, s24")
            A("s_lshl_b32 s12, s12, 3")
            A(f"s_add_u32 s12, s12, {WS_STAMP + 0x50000}")
            A("v_mov_b32 v28, s12")
            A("s_waitcnt lgkmcnt(0)")
            A("v_mov_b32 v30, s64")
            A("v_mov_b32 v31, s66")
            A("s_mov_b64 exec, 1")
            A("global_store_dwordx2 v28, v[30:31], s[4:5]")
            A("s_mov_b64 exec, -1")
    A("s_barrier")
    tr('b4')
    A("s_mov_b32 s55, 0")
    def loads2():
        for j, ks in enumerate(LDL):
            if ks == 8: A(f"global_load_dwordx4 {v(lreg(j), 4)}, v{L16}, s[16:17] {LF}")
            else: A(f"global_load_dwordx4 {v(lreg(j), 4)}, v{L16}, s[20:21] offset:{(ks - 4) * 1024} {LF}")
    Z2 = EXP.get('z2', 8)
    spill_read(MRING + 8 if P3 else ACCV0)
    zero_qk(12, 12 + 2 * Z2)
    tr('p2s')
    loads2()
    zero_qk(12 + 2 * Z2, 28)
    if P3 and wv: zero_qk(ACCV0, ACCV0 + 4)
    A("s_mov_b32 m0, s62")
    A(f"s_branch {f'L_rp2_{sfx}' if not TR else f'L_rp2ok_{sfx}'}")
    A.label(f"L_rf2_{sfx}")
    if EXP.get('rt'): A("s_add_u32 s77, s77, 1")
    A("s_mov_b64 exec, vcc")
    loads2()
    A("s_mov_b64 exec, -1")
    if SP: zero_qk(ACCQ, ACCQ + 8)
    A("s_add_u32 s55, s55, 1")
    A(f"s_cmp_gt_u32 s55, {SPIN_MAX}")
    A(f"s_cbranch_scc0 L_rp2_{sfx}")
    A(f"s_branch {XIT}")
    if kind:
        A.label(lab + "_rt")
        A("s_mov_b64 exec, vcc")
        loads()
        A("s_mov_b64 exec, -1")
        backoff(A, 55, sleep=EXP.get('bo', 4))
        A("s_add_u32 s55, s55, 1")
        A(f"s_cmp_gt_u32 s55, {SPIN_MAX}")
        A(f"s_cbranch_scc0 {lab}")
        A(f"s_branch {XIT}")
    A.label(f"L_rp2ok_{sfx}")
    tr('p2ok')
    if TR:
        A("s_cmp_lg_u32 s24, 41")
        A(f"s_cbranch_scc1 L_rp2_{sfx}")
        A("s_waitcnt lgkmcnt(0)")
        A("s_lshl_b32 s12, s9, 2")
        A("s_add_u32 s12, s12, s10")
        A("s_lshl_b32 s12, s12, 6")
        A(f"s_add_u32 s12, s12, {WS_STAMP + 16384}")
        A(f"v_mov_b32 v{TMPC}, s12")
        for q in range(11):
            A(f"v_mov_b32 v63, s{64 + 2 * q}")
            A(f"global_store_dword v{TMPC}, v63, s[4:5] offset:{4 * q}")
            A("s_waitcnt vmcnt(0)")
    A(f"s_branch L_rp2_{sfx}")
    A.label(f"L_rlast_{sfx}")
    A("s_lshl_b32 s13, s24, 17")
    add64(A, 38, 50, "s13")
    D.waitall()
    lr = {8: mslot(8), 7: mslot(7), 6: mslot(6), 5: 44, 4: 48, 3: 52, 2: 56, 1: 60, 0: 12}
    if VA: lr = {8: mslot(8), 7: mslot(7), 2: 40, 1: 44, 0: 12}
    for p in ((0,) if VA else (4, 3, 2, 1, 0)): mem_read(ORD[p], lr[p], ('lm', p))
    for p in sorted(lr, reverse=True):
        D.wait(('lm', p))
        smf(ACCV1, lr[p], WV(ORD[p], 1))
        if p < V0S: smf(ACCV0, lr[p], WV(ORD[p], 0))
    for b in range(2):
        A(f"v_add_f32 v{ACCK+4*b}, v{ACCK+4*b}, v{ACCK+4*b+1}")
        A(f"v_add_f32 v{ACCK+4*b+2}, v{ACCK+4*b+2}, v{ACCK+4*b+3}")
    A(f"v_cvt_pk_bf16_f32 v16, v{ACCK}, v{ACCK+4}")
    A(f"v_cvt_pk_bf16_f32 v17, v{ACCK+2}, v{ACCK+6}")
    for a_ in (ACCV1, ACCV0):
        A(f"v_add_f32 v{a_}, v{a_}, v{a_+1}")
        A(f"v_add_f32 v{a_+2}, v{a_+2}, v{a_+3}")
    A(f"v_cvt_pk_bf16_f32 v18, v{ACCV0}, v{ACCV0+2}")
    A(f"v_cvt_pk_bf16_f32 v19, v{ACCV1}, v{ACCV1+2}")
    A(f"global_store_dwordx4 v{T16}, v[16:19], s[38:39] sc1")
    tl(A, 4)
    if EXP.get('rt'):
        A("s_memrealtime s[82:83]")
        A("s_memtime s[98:99]")
        A("s_waitcnt lgkmcnt(0)")
        A("s_sub_u32 s75, s98, s96")
        A("s_sub_u32 s78, s80, s84")
        A("s_sub_u32 s79, s82, s80")
        A("s_lshl_b32 s12, s9, 2")
        A("s_add_u32 s12, s12, s10")
        A("s_lshl_b32 s12, s12, 6")
        A(f"s_add_u32 s12, s12, {WS_STAMP}")
        A("v_mov_b32 v12, s12")
        for q in range(4):
            for r in range(4): A(f"v_mov_b32 v{16+r}, s{64 + 4 * q + r}")
            A(f"global_store_dwordx4 v12, v[16:19], s[4:5] offset:{16 * q}")
            A("s_waitcnt vmcnt(0)")
    A.label(XIT)
    A("s_endpgm")

def role_r(A, restart, nkv, kvg0):
    if EXP.get('rt'):
        A("s_memrealtime s[84:85]")
        A("s_waitcnt lgkmcnt(0)")
    r_setup(A)
    r_swap(A)
    tl(A, 1)
    A("s_waitcnt vmcnt(0)")
    A("s_mov_b32 s54, 0")
    A("v_min3_u32 v6, v8, v9, v10")
    A("v_min_u32 v6, v6, v11")
    mode_check(A, tv=12, pre=4)
    r_consts(A)
    r_pro(A, nkv, kvg0)
    A("s_cmp_eq_u32 s11, 0")
    A("s_cbranch_scc1 L_r_slow")
    for fast in (True, False):
        t = 'f' if fast else 's'
        if not fast: A.label("L_r_slow")
        for w in range(1, 4):
            A(f"s_cmp_eq_u32 s10, {w}")
            A(f"s_cbranch_scc1 L_rent_{t}{w}")
        for w in range(4):
            A.label(f"L_rent_{t}{w}")
            r_main(A, fast, w, nkv, kvg0)
```

```python
from common import *
import math, struct

L_MEM, L_KX, L_VX = 0, 9216, 17408
L_QL, L_KL, L_OL = 25600, 27904, 30208
L_JUNK = 32256
L_WK = 32768
QSTR = 288
KL0 = L_KL - L_QL
T16, WKB, L16, MEMR, QR, QKW, OW, IDX = range(0, 8)
TMPC = WKB
def WQ(ks, b): return 256 + (ks * 2 + b) * 8
def WV(ks, b):
    i = ks * 2 + b
    return 400 + i * 8 if i < 14 else 64 + (i - 14) * 8
def WO(t, k2): return 96 + (t * 2 + k2) * 8
def WK8(b): return 240 + b * 8
ACCV0, ACCQ, ACCK, MRING, WRING, ACCV1 = 8, 12, 20, 28, 40, 40
SMF = "v_smfmac_f32_16x16x64_bf16"
MF32 = "v_mfma_f32_16x16x32_bf16"
MF16 = "v_mfma_f32_16x16x16_bf16"
IDQ = "quad_perm:[0,1,2,3]"
ROR8 = "row_ror:8 row_mask:0xf bank_mask:0xf"
def FSW(i): return 2 * (0, 2, 3, 1)[i >> 1] + (i & 1)
def img(i, pos): return i * 128 + ((pos ^ FSW(i)) * 16)
def mimg(i, pos): return ((pos >> 1) * 16 + 2 * i + (pos & 1)) * 16
PI = [0, 1, 4, 5, 2, 3, 6, 7]
EXP = {}
PF = 1
ORD = [8, 0, 1, 2, 3, 4, 5, 6, 7]
ORD0 = ORD

WORD = [8, 0, 1, 2, 3, 4, 5, 6, 7]
def swap_tab():
    nsw = EXP.get('nsw', 0)
    return list(zip([4, 7, 10, 13, 15, 1][:nsw], [3, 7, 10, 13, 16, 0][:nsw]))
def wo_reg(k): return WO(WORD[k // 2], k & 1)
def wk_off(n): return L_WK + (n >> 1) * 16384 + (n & 1) * 8192

def r_swap(A):
    for n, k in swap_tab():
        A(f"v_lshlrev_b32 v12, 4, v0")
        A(f"v_add_u32 v12, {wk_off(n)}, v12")
        A("ds_read_b128 v[16:19], v12")
        A("ds_read_b128 v[20:23], v12 offset:4096")
        A("s_waitcnt lgkmcnt(0)")
        r = wo_reg(k)
        A(f"ds_write_b128 v12, {v(r, 4)}")
        A(f"ds_write_b128 v12, {v(r + 4, 4)} offset:4096")
        A("s_waitcnt lgkmcnt(0)")
        for q in range(0, 8, 2): A(f"v_mov_b64 {v(r + q, 2)}, {v(16 + q, 2)}")

def r_setup(A):
    A(f"s_load_dwordx4 s[16:19], s[0:1], {KA_WQ}")
    A(f"s_load_dwordx4 s[20:23], s[0:1], {KA_WV}")
    A(f"s_load_dwordx2 s[24:25], s[0:1], {KA_MEM0}")
    def swz(lr): return 2 * ((lr & 1) | ((lr >> 3) & 1) << 1 | ((lr >> 5) & 1) << 2)
    def swz2(row): return 2 * (((row >> 2) & 1) | ((row >> 4) & 1) << 1)
    for ip in range(4):
        def fq(t, last=False):
            w, l = t >> 6, t & 63
            lr = 16 * w + 4 * ip + (l >> 4); e, pos = lr >> 3, lr & 7
            d = 512 + 8 * pos + e if last else 64 * (e & 1) + 4 * pos + (e >> 1)
            return d * 8192 + (((l & 15) ^ swz(lr)) * 16)
        lane_const(A, 12 + ip, fq, tmp=1)
        lane_const(A, 16 + ip, lambda t: fq(t, True), tmp=1)
        lane_const(A, 20 + ip, lambda t: (32 * (t >> 6) + 8 * ip + ((t & 63) >> 3)) * 1152, tmp=1)
        lane_const(A, 20 + ip, lambda t: ((t & 7) ^ swz2(32 * (t >> 6) + 8 * ip + ((t & 63) >> 3))) * 16, tmp=1, acc=True)
    def ftr(t, b):
        w, l = t >> 6, t & 63
        gb, half, bp, c = l >> 4, (l >> 3) & 1, (l >> 2) & 1, l & 3
        lr = 32 * (gb & 1) + 8 * bp + 2 * (gb >> 1) + half
        return L_WK + lr * 256 + (((4 * w + 2 * b + (c >> 1)) ^ swz(lr)) * 16) + (c & 1) * 8
    lane_const(A, 24, lambda t: ftr(t, 0), tmp=1)
    lane_const(A, 25, lambda t: ftr(t, 1), tmp=1)
    def fto(t):
        w, l = t >> 6, t & 63
        gb, half, bp, c = l >> 4, (l >> 3) & 1, (l >> 2) & 1, l & 3
        row = 16 * (gb & 1) + 8 * (gb >> 1) + 4 * half + bp
        return L_WK + row * 128 + (((2 * w + (c >> 1)) ^ swz2(row)) * 16) + (c & 1) * 8
    lane_const(A, 26, fto, tmp=1)
    lane_const(A, 27, lambda t: L_WK + t * 16, tmp=1)
    A("s_waitcnt lgkmcnt(0)")
    A("s_lshl_b32 s12, s9, 8")
    for p in (16, 18, 20):
        add64(A, p, p, "s12")
    A("s_mul_i32 s12, s9, 147456")
    add64(A, 22, 22, "s12")
    A("s_lshl_b32 s26, s10, 12")
    A(f"s_add_u32 s26, s26, {L_WK}")
    chunks = [(m_, k) for m_ in ('qvo', 'oqv', 'vqo', 'ovq')[EXP.get('ro', 0)] for k in range(9)] + [('k', 7)] + [('k', ORD[j % 8]) for j in range(28, 36)]
    ptr = {'q': 16, 'k': 18, 'v': 20, 'o': 22}
    def issue(j):
        m, k = chunks[j]
        slot = j % 8
        if m == 'o': off, vb = k * 128, 20
        elif k < 8: off, vb = (128 * (k >> 1) + 32 * (k & 1)) * 8192, 12
        else: off, vb = 0, 16
        add64(A, 12, ptr[m], off)
        for ip in range(4):
            A(f"s_add_u32 m0, s26, {slot * 16384 + ip * 1024}")
            A(f"global_load_lds_dwordx4 v{vb+ip}, s[12:13] {'nt' if EXP.get('rnt', 1) else ''}")
    def fd(m, t): return 256 * m + t if m < 2 else 512 + (t & 63)
    def fa(m, t):
        d = fd(m, t)
        if d < 512: ks, e, pos = 2 * (d >> 7) + ((d >> 5) & 1), 2 * (d & 3) + ((d >> 6) & 1), (d >> 2) & 7
        else: ks, e, pos = 8, d & 7, (d >> 3) & 7
        return ks * 1024 + mimg(0, pos) + e * 2
    def mem0_issue():
        for m in range(3):
            lane_const(A, 4 + m, lambda t: 2 * fd(m, t), tmp=1)
            lane_const(A, 8 + m, lambda t: fa(m, t), tmp=1)
            for i in range(8):
                A(f"v_add_u32 v2, {i * 1152}, v{4+m}")
                A(f"global_load_ushort v{32+8*m+i}, v2, s[24:25]")
    def mem0_write():
        for m in range(3):
            for i in range(8):
                A(f"ds_write_b16 v{8+m}, v{32+8*m+i} offset:{L_MEM + i * 32}")
    def status0():
        lane_const(A, 2, lambda t: arr_word(t & 7) * 4, tmp=1)
        A("global_load_dword v4, v2, s[6:7] sc1")
    def status_issue():
        A("s_lshl_b32 s12, s9, 7")
        A(f"s_add_u32 s12, s12, {WS_KVPROG + 4096}")
        A("v_mov_b32 v2, s12")
        A("global_load_dwordx4 v[8:11], v2, s[4:5] sc1")
    for j in range(7): issue(j)
    n = len(chunks)
    for j in range(n + 1):
        if j < n:
            ahead = min(n - 1, j + 6) - j
            extra = 24 if 1 <= j <= 7 else (1 if 33 <= j <= 35 else (1 if 25 <= j <= 31 else 0))
            A(f"s_waitcnt vmcnt({4 * ahead + extra})")
        A("s_barrier")
        if j + 7 < n: issue(j + 7)
        if j == 0: mem0_issue()
        if j == 9: mem0_write()
        if j == 24: status0()
        if j == 32: status_issue()
        if j >= 29:
            pk = (j - 1) % 8; tb = 32 + ((j - 1) & 1) * 16
            A(f"v_add_u32 v28, {pk * 16384}, v27")
            for q in range(4):
                A(f"ds_write_b128 v28, {v(tb + 4 * q, 4)} offset:{q * 4096}")
        if j < n:
            m, k = chunks[j]; slot = j % 8
            if m == 'o':
                A(f"v_add_u32 v28, {slot * 16384}, v26")
                for k2 in range(2):
                    for jq in range(4):
                        off = (64 * k2 + 32 * (jq >> 1) + 2 * (jq & 1)) * 128
                        A(f"ds_read_b64_tr_b16 {u(WO(k, k2) + 2 * jq, 2)}, v28 offset:{off}")
            else:
                A(f"v_add_u32 v28, {slot * 16384}, v24")
                A(f"v_add_u32 v29, {slot * 16384}, v25")
                for b in range(2):
                    if m == 'q': dst = WQ(k, b)
                    elif m == 'v': dst = WV(k, b)
                    elif j == 27: dst = WK8(b)
                    else: dst = 32 + (j & 1) * 16 + b * 8
                    for jq in range(4):
                        off = (16 * (jq & 1) + 4 * (jq >> 1)) * 256
                        A(f"ds_read_b64_tr_b16 {u(dst + 2 * jq, 2)}, v{28+b} offset:{off}")
        A("s_waitcnt lgkmcnt(0)")

def r_consts(A):
    lane_const(A, L16, lambda t: (t & 63) * 16, tmp=12)
    lane_const(A, MEMR, lambda t: img((t & 15) >> 1, 2 * ((t >> 4) & 3) + (t & 1)), tmp=12)
    lane_const(A, QR, lambda t: L_QL + (t & 7) * QSTR + ((t >> 4) & 3) * 16, tmp=12)
    lane_const(A, QKW, lambda t: L_QL + (0, 4, 2, 6)[(t >> 4) & 3] * QSTR + (t >> 6) * 64 + (t & 15) * 4, tmp=12)
    lane_const(A, OW, lambda t: (t >> 7) * 1024 + img(PI[t & 7], 4 * ((t >> 6) & 1) + ((t >> 4) & 3)), tmp=12)
    A(f"v_add_u32 v{OW}, {L_OL}, v{OW}")
    lane_const(A, 14, lambda t: L_JUNK + (((t >> 4) & 3) * 8 + (t & 7)) * 16, tmp=12)
    A("v_and_b32 v12, 8, v0")
    A("v_cmp_ne_u32 vcc, 0, v12")
    A(f"v_cndmask_b32 v{OW}, v{OW}, v14, vcc")
    lane_const(A, IDX, lambda t: 0xEEEE if t & 1 else 0x4444, tmp=12)
    A(f"v_lshlrev_b32 v{T16}, 4, v0")
    A("s_and_b32 s12, s10, 1")
    A("s_lshl_b32 s12, s12, 5")
    A("s_add_u32 s37, s12, s9")
    A("v_mov_b32 v14, s37")
    lane_const(A, 15, lambda t: ms_fn(1, t, 0), src=14, nbits=6, tmp=12)
    lane_const(A, 16, lambda t: ms_fn(2, t, 0), src=14, nbits=5, tmp=12)
    if EXP.get('tm', 1): lane_const(A, 17, lambda t: WS_RP + t * 4096, src=14, nbits=6, tmp=12)
    else: lane_const(A, 17, lambda t: WS_RP + (t >> 2) * 16384 + (t & 3) * 128 + 4096, src=14, nbits=6, tmp=12)
    lane_const(A, 18, lambda t: WS_RP + 0x40000 + (t >> 3) * 8192 + (t & 7) * 32, src=14, nbits=5, tmp=12)
    A("v_readfirstlane_b32 s41, v15")
    A("v_readfirstlane_b32 s12, v16")
    A("v_readfirstlane_b32 s13, v17")
    A("v_readfirstlane_b32 s14, v18")
    A("s_cmp_lt_u32 s10, 2")
    A("s_cselect_b32 s41, s41, s12")
    A("s_cselect_b32 s13, s13, s14")
    if EXP.get('rep', 0):
        A("s_cselect_b32 s44, -1, 0x03030303")
        A("s_mov_b32 s45, s44")
        A("s_and_b32 s36, s9, 3")
        A("s_lshl_b32 s36, s36, 15")
        A("s_add_u32 s36, s36, 3072")
    else:
        A("s_mov_b32 s44, 0x00030003")
        A("s_cselect_b32 s44, 0x00FF00FF, s44")
        A("s_mov_b32 s45, 0")
        A("s_movk_i32 s36, 3072")
    add64(A, 28, S_WS, "s13")
    add64(A, 16, 28, 8192)
    A("s_lshl_b32 s12, s10, 5")
    A("s_add_u32 s12, s12, s9")
    A("s_lshl_b32 s13, s12, 9")
    if EXP.get('tm', 1):
        A("s_lshl_b32 s13, s10, 7")
        A("s_add_u32 s13, s13, s9")
        A("s_lshl_b32 s13, s13, 7")
    A(f"s_add_u32 s13, s13, {WS_RP}")
    add64(A, 26, S_WS, "s13")
    for p in range(1, 4): add64(A, 88 + 2 * p, 26, p * 65536)
    A("s_lshl_b32 s13, s12, 8")
    A(f"s_add_u32 s13, s13, {WS_RP + 0x40000}")
    add64(A, 42, S_WS, "s13")
    add64(A, 30, S_WS, WS_RM)
    cc = struct.unpack('<I', struct.pack('<f', (128 ** -0.5) * math.log2(math.e)))[0]
    A(f"s_mov_b32 s46, {cc:#x}")
    A("s_bfe_u32 s40, s9, 0x10003")
    A("s_lshl_b32 s12, s9, 14")
    A(f"s_add_u32 s12, s12, {WS_KV}")
    add64(A, 88, S_WS, "s12")
    A("s_lshl_b32 s13, s10, 11")
    add64(A, 32, 88, "s13")
    add64(A, 86, 32, 8192)
    A("s_lshl_b32 s12, s9, 12")
    A(f"s_add_u32 s12, s12, {WS_KVM}")
    add64(A, 50, S_WS, "s12")
    A("s_lshl_b32 s12, s9, 7")
    A(f"s_add_u32 s12, s12, {WS_KVPROG + 4096}")
    add64(A, 18, S_WS, "s12")
    A("s_lshl_b32 s12, s9, 2")
    A(f"s_add_u32 s12, s12, {WS_RPROG}")
    add64(A, 52, S_WS, "s12")
    A("s_lshl_b32 s12, s9, 7")
    A(f"s_add_u32 s12, s12, {WS_RPROG}")
    add64(A, 22, S_WS, "s12")
    A("s_lshl_b32 s62, s10, 11")
    A(f"s_add_u32 s62, s62, {L_KX}")
    A("s_lshl_b32 s63, s10, 10")
    A(f"s_add_u32 s57, s63, {L_MEM}")
    A(f"s_add_u32 s63, s63, {L_VX}")

def ms_fn(kind, t, l):
    q8, gp = l & 7, (l >> 4) & 1
    rp = 0
    if kind == 1:
        w, g = (t >> 2) & 3, t & 3
        return rp + (t >> 3) * 1024 + mimg(2 * g + gp, 4 * (w & 1) + (q8 >> 1)) + (q8 & 1) * 8
    w, g, nh = t >> 3, (t >> 1) & 3, t & 1
    return rp + 8192 + mimg(2 * g + gp, 2 * w + nh) + (l & 1) * 8

def ms_calc(A, kind, dst, tmp):
    lane_const(A, dst, lambda x: ms_fn(kind, 0, x >> 4) ^ ms_fn(kind, 0, 0), src=L16, nbits=10, tmp=tmp, mode='xor')
    A(f"v_xor_b32 v{dst}, s41, v{dst}")

def kv_wait(A, seg_sgpr, nkv, kvg0, tv, xit='L_exit'):
    if nkv == 0: return
    ok = A.newlabel('L_kvok'); loop = A.newlabel('L_kvp')
    A(f"s_cmp_lt_u32 {seg_sgpr}, s54")
    A(f"s_cbranch_scc1 {ok}")
    A("s_mov_b32 s55, 0")
    A(f"v_bfe_u32 v{tv}, v{L16}, 2, 4")
    A.label(loop)
    A(f"global_load_dword v{tv+1}, v{tv}, s[18:19] sc1")
    A("s_add_u32 s55, s55, 1")
    A(f"s_cmp_gt_u32 s55, {SPIN_MAX}")
    A(f"s_cbranch_scc1 {xit}")
    A("s_waitcnt vmcnt(0)")
    xsum(A, tv + 1, tv, op="v_min_u32", bits=(0, 1))
    A(f"v_readfirstlane_b32 s54, v{tv+1}")
    A(f"s_cmp_lt_u32 {seg_sgpr}, s54")
    A(f"s_cbranch_scc1 {ok}")
    A("s_sleep 4")
    A(f"s_branch {loop}")
    A.label(ok)

def r_pro(A, nkv, kvg0):
    TR = EXP.get('trace', [])
    A("s_mov_b32 s24, 0")
    A("s_mov_b32 s34, 9216")
    A("s_mov_b32 s35, 0")
    if TR or EXP.get('rt'):
        for i in range(22 if TR else 16): A(f"s_mov_b32 s{64+i}, 0")
    tl(A, 2)
    if EXP.get('warm', 1):
        A("s_mul_i32 s12, s9, 9216")
        A(f"s_add_u32 s12, s12, {WS_RP}")
        A(f"v_lshl_add_u32 v12, v{T16}, 2, s12")
        A("s_lshl_b32 s12, s9, 10")
        A(f"s_add_u32 s12, s12, {WS_RM}")
        A(f"v_add_u32 v13, s12, v{L16}")
        A(f"s_mov_b32 m0, {L_JUNK}")
        A("global_load_lds_dword v12, s[4:5] sc1")
        A("global_load_lds_dword v13, s[4:5] sc1")
    A(f"s_mov_b32 s25, {EXP.get('i1', 1)}")
    kv_wait(A, "s25", nkv, kvg0, 12)
    A(f"v_lshlrev_b32 v12, 2, v{T16}")
    A("global_load_lds_dword v12, s[88:89]")
    tl(A, 3)
    if EXP.get('rt'):
        A("s_memrealtime s[80:81]")
        A("s_memtime s[96:97]")
    add64(A, 38, S_WS, WS_STAMP + 0x8000)
    add64(A, 58, 88, EXP.get('i1', 1) << 19)

def r_main(A, fast, wv, nkv, kvg0, nsteps=64):
    st = "" if fast else "sc1"
    LF = "sc1"
    sfx = ("f" if fast else "s") + str(wv)
    XIT = f"L_rx_{sfx}"
    D = Lds(A)
    TR = EXP.get('trace', [])
    def tr(name):
        if name in TR:
            i = TR.index(name)
            A(f"s_memtime s[{64+2*i}:{65+2*i}]")
    ORD = [ORD0[(2 * wv + p) % 8] for p in range(8)] + [7]
    def wk_off(n): return L_WK + ((2 * wv + (n >> 1)) % 8) * 16384 + (n & 1) * 8192
    OWN = EXP.get('own', 2)
    STG = ORD[:2] + ([7] if wv == 0 else [])
    if OWN == 3:
        if wv == 3: ORD = ORD[:2] + [7] + ORD[2:8]
        LDL = ORD[:3]; STG = ORD[:3] if wv == 3 else ORD[:2]
    else: LDL = STG
    WT = EXP.get('wt', 1)
    P3 = EXP.get('p3', 1)
    VA = EXP.get('va', 1)
    ACCV1 = 36 if VA else 40
    J = [(wv + i) % 4 for i in range(4)] if VA else [0, 1, 2, 3]
    def lreg(j): return ACCV0 if (P3 and j == 2) else MRING + 4 * j
    SW = {}; SWO = {}
    LW = [n for n in range(16) if n not in SW]
    cur = [0]
    def lds_frag(n, r, tag, areg=WKB):
        off = wk_off(n); base = (off // 65536) * 65536
        if base and cur[0] != base:
            A(f"v_add_u32 v{areg}, {base:#x}, v{T16}")
            cur[0] = base
        ar = T16 if base == 0 else areg
        D.op(f"ds_read_b128 {v(r, 4)}, v{ar} offset:{off - base}")
        D.op(f"ds_read_b128 {v(r + 4, 4)}, v{ar} offset:{off - base + 4096}", tag)
    RSH = (3 - (len(LW) - 1) % 3) % 3
    def wslot(i): return WRING + ((i + RSH) % 3) * 8
    def wk_read(i):
        cur[0] = 0
        lds_frag(LW[i], wslot(i), ('wk', i))
    def spill_read(r):
        D.op(f"ds_read_b32 v{r}, v{QKW} offset:{KL0}")
        D.op(f"ds_read_b32 v{r+1}, v{QKW} offset:{KL0 + QSTR}")
        D.op(f"ds_read2_b32 {v(r + 2, 2)}, v{QKW} offset0:0 offset1:{QSTR // 4}", 'spill')
    def zero_qk(lo=ACCQ, hi=ACCQ + 16):
        for r in range(lo, hi, 2): A(f"v_mov_b64 {v(r, 2)}, 0")
    for n in sorted(range(3), key=wslot): wk_read(n)
    def mem_read(ks, r, tag):
        D.op(f"ds_read_b128 {v(r, 4)}, v{L16} offset:{L_MEM + ks * 1024}", tag)
    def mslot(p): return MRING + ((p & 1) if VA else (0, 1, 0, 1, 2, 0, 1, 2, 0)[p] if P3 else p % 3) * 4
    for p, ks in enumerate(LDL): mem_read(ks, lreg(p), None)
    if P3 and wv: zero_qk(ACCV0, ACCV0 + 4)
    zero_qk()
    A("s_mov_b32 m0, s62")
    A("s_mov_b32 s55, 0")
    A("s_mov_b32 s47, s40")
    A("s_mov_b64 s[20:21], s[30:31]")
    D.waitall()
    SP = EXP.get('sp', 1)
    def smf(acc, ar, w): A(f"{SMF} {v(acc, 4)}, {v(ar, 4)}, {u(w, 8)}, v{IDX}")
    head = [(ACCQ, WQ(ORD[0], 0)), (ACCQ + 4, WQ(ORD[0], 1))] + ([(ACCV0, WV(ORD[0], 0))] if wv else [])
    top = f"L_rtop_{sfx}"
    assert SP
    smf(head[0][0], mslot(0), head[0][1])
    smf(head[1][0], mslot(0), head[1][1])
    A(f"s_branch L_rgo_{sfx}")
    A.raw(".p2align 6")
    pad = EXP.get('pad%d' % wv, EXP.get('pad', 0))
    if pad: A.raw(f".fill {pad}, 4, 0xbf800000")
    A.label(f"L_rp2_{sfx}")
    ns = len(LDL)
    A(f"s_waitcnt vmcnt({ns - 1})")
    tr('p2w0')
    smf(head[0][0], mslot(0), head[0][1])
    A(f"v_max_u32 v{TMPC}, v{lreg(0)}, v{lreg(0)+2}")
    for j in range(1, ns):
        A(f"s_waitcnt vmcnt({ns - 1 - j})")
        A(f"v_max3_u32 v{TMPC}, v{TMPC}, v{lreg(j)}, v{lreg(j)+2}")
    A(f"v_cmp_eq_u32 vcc, -1, v{TMPC}")
    smf(head[1][0], mslot(0), head[1][1])
    A(f"ds_write_b128 v{L16}, {v(lreg(0), 4)} offset:{L_MEM + STG[0] * 1024}")
    A(f"s_cbranch_vccnz L_rf2_{sfx}")
    A.label(f"L_rgo_{sfx}")
    if wv: smf(head[2][0], mslot(0), head[2][1])
    A(f"ds_write_b128 v{L16}, {v(lreg(1), 4)} offset:{L_MEM + STG[1] * 1024}")
    tr('b1')
    D.q = ['pre'] + ['mw'] * 2
    D.wait('pre')
    KE = EXP.get('kearly', 0)
    loc = {('m', 8): mslot(8), ('m', 7): mslot(7), ('m', 6): mslot(6)}
    NSL = 3 if (nkv and wv == 3) else 2
    def sread(tag, r):
        loc[tag] = r
        if tag[0] == 'q': D.op(f"ds_read_b128 {v(r, 4)}, v{QR} offset:{tag[1] * 64}", tag)
        elif tag[0] == 'km': D.op(f"ds_read_b128 {v(r, 4)}, v{QR} offset:{KL0 + tag[1] * 64}", tag)
        elif tag[0] == 'kx': D.op(f"ds_read_b128 {v(r, 4)}, v{L16} offset:{L_KX + (tag[1] * 4 + tag[2]) * 1024}", tag)
        elif tag[0] == 'm': mem_read(ORD[tag[1]], r, tag)
        elif tag[0] == 'vx':
            if tag[1] == 0: A(f"s_waitcnt vmcnt({NSL})")
            D.op(f"ds_read_b128 {v(r, 4)}, v{T16} offset:{L_VX + tag[1] * 4096}", tag)
    def smf(acc, ar, w): A(f"{SMF} {v(acc, 4)}, {v(ar, 4)}, {u(w, 8)}, v{IDX}")
    V0S = 2 if KE else 3
    BP = EXP.get('bp', 5)
    pos = (1, 2, 4, 5, 7, 9, 10, 13) if KE else (BP + 1, BP + 2, BP + 3, BP + 4, 11, 13, 14, 18)
    ext = {pos[0]: f"global_load_lds_dwordx4 v{L16}, s[32:33]",
           pos[1]: f"global_load_lds_dwordx4 v{L16}, s[32:33] offset:1024\ns_mov_b32 m0, s63",
           pos[2]: f"global_load_lds_dwordx4 v{L16}, s[86:87]\ns_add_u32 m0, s63, 3072",
           pos[3]: f"global_load_lds_dwordx4 v{L16}, s[86:87] offset:1024\ns_mov_b32 m0, {L_JUNK}",
           pos[4]: f"global_store_dwordx4 v{T16}, {v(ACCV0, 4)}, s[38:39] sc1",
           pos[5]: f"v_lshlrev_b32 v{ACCV0}, 2, v{T16}\nv_mov_b64 {v(ACCV0 + 2, 2)}, 0",
           pos[6]: f"global_load_lds_dword v{ACCV0}, s[58:59]\nv_mov_b64 {v(ACCV0, 2)}, 0\ns_mov_b32 m0, {L_QL + 256}"}
    if P3:
        V0S = 1 if wv == 0 else 0
        BP = EXP.get('bp3', 6) - V0S
        if SP: BP = EXP.get('bps', 3)
        r2 = MRING + 8
        pos = tuple(BP + x for x in [(1, 2, 3, 4, 6, 99, 8, 12), (-2, -1, 1, 3, 5, 99, 7, 11), (1, 3, 5, 7, 9, 99, 11, 14), (-2, -1, 2, 5, 8, 99, 10, 13), (1, 2, 4, 6, 9, 99, 11, 14)][EXP.get('pp', 0)])
        ext = {pos[0]: f"global_load_lds_dwordx4 v{L16}, s[32:33]",
               pos[1]: f"global_load_lds_dwordx4 v{L16}, s[32:33] offset:1024\ns_mov_b32 m0, s63",
               pos[2]: f"global_load_lds_dwordx4 v{L16}, s[86:87]\ns_add_u32 m0, s63, 3072",
               pos[3]: f"global_load_lds_dwordx4 v{L16}, s[86:87] offset:1024\ns_mov_b32 m0, {L_JUNK}",
               pos[4]: f"global_store_dwordx4 v{T16}, {v(r2, 4)}, s[38:39] sc1",
               pos[6]: f"v_lshlrev_b32 v{r2}, 2, v{T16}\nglobal_load_lds_dword v{r2}, s[58:59]\ns_mov_b32 m0, {L_QL + 256}"}
        if wv == 0: ext[2] = ext.get(2, "") + f"\nv_mov_b64 {v(ACCV0, 2)}, 0\nv_mov_b64 {v(ACCV0 + 2, 2)}, 0"
    if nkv and wv == 3: ext[pos[7]] = f"s_mov_b64 exec, 1\nglobal_load_lds_dwordx4 v{L16}, s[18:19] sc1\ns_mov_b64 exec, -1"
    sb_ = Asm()
    sb_("s_lshl_b32 s13, s24, 17")
    add64(sb_, 38, 50, "s13")
    sb_("s_add_u32 s25, s24, 2")
    sb_(f"s_min_u32 s25, s25, {nsteps - 1}")
    sb_("s_lshl_b32 s13, s25, 19")
    add64(sb_, 58, 88, "s13")
    add64(sb_, 86, 86, 1 << 19)
    add64(sb_, 32, 32, 1 << 19)
    add64(sb_, 14, 30, "s34")
    add64(sb_, 60, 30, "s35")
    add64(sb_, 20, 14, 4096)
    if wv == 0: add64(sb_, 16, 14, 8192)
    sb_("s_and_b32 s12, s24, 1")
    sb_("s_xor_b32 s13, s12, 1")
    sb_("s_xor_b32 s47, s13, s40")
    sb_("s_add_u32 s24, s24, 1")
    sb_("s_mov_b32 s35, s34")
    sb_("s_add_u32 s34, s34, 9216")
    sb_("s_cmp_eq_u32 s34, 27648")
    sb_("s_cselect_b32 s34, 0, s34")
    sb_("s_mov_b32 s55, 0")
    book = [i.text.strip() for i in sb_.ins]
    sq = []
    cnt_ = [0]
    held = []
    side = []
    class Defer:
        def op(self, text, tag=None): side.append((text, tag))
    def flush_until(tag):
        while any(t == tag for _, t in side):
            x = side.pop(0)
            D.op(*x) if x[0].startswith('ds_') else A(x[0])
    GAPN = EXP.get('gapn', 2)
    def smfs(acc, ar, w, need=()):
        for t in need:
            flush_until(t); D.wait(t)
        smf(acc, ar, w)
        cnt_[0] += 1
    def gap():
        n = 0
        if cnt_[0] == 1 and len(STG) == 3:
            j = 2
            D.op(f"ds_write_b128 v{L16}, {v(lreg(j), 4)} offset:{L_MEM + STG[j] * 1024}", 'mw')
            n += 1
        if cnt_[0] == BP:
            D.wait('mw')
            A("s_barrier")
            if OWN == 2: mem_read(ORD[2], mslot(2), ('m', 2))
            side.extend(held); held.clear()
            n = GAPN if OWN == 2 else 1
        if cnt_[0] in ext:
            A(ext[cnt_[0]]); n += 1
            if P3 and cnt_[0] == pos[6]:
                if VA: A(f"v_mov_b64 {v(r2, 2)}, 0\nv_mov_b64 {v(r2 + 2, 2)}, 0")
                else: mem_read(ORD[4], r2, ('m', 4))
                n += 1
        while side and n < GAPN:
            x = side.pop(0)
            D.op(*x) if x[0].startswith('ds_') else A(x[0])
            n += 1
        while cnt_[0] > pos[7] and sq and n < GAPN:
            A(sq.pop(0)); n += 1
    def d_wk(i):
        off = wk_off(LW[i]); base = (off // 65536) * 65536
        if base and cur[0] != base:
            side.append((f"v_add_u32 v{WKB}, {base:#x}, v{T16}", None)); cur[0] = base
        ar = T16 if base == 0 else WKB
        side.append((f"ds_read_b128 {v(wslot(i), 4)}, v{ar} offset:{off - base}", None))
        side.append((f"ds_read_b128 {v(wslot(i) + 4, 4)}, v{ar} offset:{off - base + 4096}", ('wk', i)))
    def d_kx(kt, j, r):
        loc[('kx', kt, j)] = r
        side.append((f"ds_read_b128 {v(r, 4)}, v{L16} offset:{L_KX + (kt * 4 + j) * 1024}", ('kx', kt, j)))
    cur[0] = 0
    for p in range(8):
        ks = ORD[p]
        m = mslot(p)
        if not (SP and p == 0): smfs(ACCQ, m, WQ(ks, 0), [('m', p)]); gap()
        for b in range(2):
            n = 2 * p + b
            if n in SW: smfs(ACCK + 4 * b, m, wo_reg(SW[n]))
            else:
                i = LW.index(n)
                smfs(ACCK + 4 * b, m, wslot(i), [('wk', i)])
                if i + 3 < len(LW): d_wk(i + 3)
            if P3:
                nx = {1: 3, 2: 5, 3: 6, 4: 7, 5: 8}.get(p)
                if VA: nx = p + 2 if 1 <= p <= 6 else None
                if b == 1 and nx: side.insert(0 if (nx == 3 or VA) else len(side), (f"ds_read_b128 {v(mslot(nx), 4)}, v{L16} offset:{L_MEM + ORD[nx] * 1024}", ('m', nx)))
            elif b == 1 and p + 3 < 9:
                (held if cnt_[0] < BP else side).append((f"ds_read_b128 {v(mslot(p), 4)}, v{L16} offset:{L_MEM + ORD[p + 3] * 1024}", ('m', p + 3)))
            if n == 12:
                side.append((f"s_waitcnt vmcnt({NSL + 2})", None))
                side.append(("s_barrier", None))
            if n == 13: d_kx(0, J[0], 48); d_kx(1, J[0], 52)
            if n == 14: d_kx(0, J[1], 56); d_kx(1, J[1], 60)
            gap()
            if b == 0 and not (SP and p == 0):
                smfs(ACCQ + 4, m, WQ(ks, 1)); gap()
                if p >= V0S: smfs(ACCV0, m, WV(ks, 0)); gap()
                if VA and 3 <= p <= 6: smfs(ACCV1, m, WV(ks, 1)); gap()
        tr(f'a{p+1}')
    assert not side, side
    if VA: sread(('m', 2), 40); sread(('m', 1), 44)
    else: sread(('m', 5), 44)
    D.wait(('m', 8))
    m = mslot(8); ks = ORD[8]
    smfs(ACCQ, m, WQ(ks, 0)); gap(); smfs(ACCQ + 4, m, WQ(ks, 1))
    for o in sq: A(o)
    if not VA: A(f"v_mov_b64 {v(ACCV1, 2)}, 0")
    smf(ACCK, m, WK8(0))
    if not VA: A(f"v_mov_b64 {v(ACCV1 + 2, 2)}, 0")
    smf(ACCK + 4, m, WK8(1))
    A(f"v_mov_b32 v{TMPC}, s47")
    smf(ACCV0, m, WV(ks, 0))
    tr('a9')
    A(f"s_cmp_eq_u32 s24, {nsteps - 1}")
    A(f"s_cbranch_scc1 L_rlast_{sfx}")
    fill = [(p, 1) for p in range(8, V0S - 1, -1)]
    for p in range(V0S - 1, -1, -1): fill += [(p, 1), (p, 0)]
    if VA: fill = [x for x in fill if not (3 <= x[0] <= 6)]
    def filler(cnt=1):
        for _ in range(cnt):
            if fill:
                p, b = fill.pop(0)
                D.wait(('m', p))
                smf(ACCV1 if b else ACCV0, loc[('m', p)], WV(ORD[p], b))
    for acc, lo in ((ACCQ, 0), (ACCK, KL0)):
        for b in range(2):
            A(f"v_add_f32 v{acc+4*b}, v{acc+4*b}, v{acc+4*b+1}")
            A(f"v_add_f32 v{acc+4*b+2}, v{acc+4*b+2}, v{acc+4*b+3}")
        A(f"v_cvt_pk_bf16_f32 v{acc+1}, v{acc}, v{acc+4}")
        A(f"v_cvt_pk_bf16_f32 v{acc+3}, v{acc+2}, v{acc+6}")
        if lo == 0: D.op(f"ds_write2_b32 v{QKW}, v{acc+1}, v{acc+3} offset0:0 offset1:{QSTR // 4}")
        else:
            D.op(f"ds_write_b32 v{QKW}, v{acc+1} offset:{lo}")
            D.op(f"ds_write_b32 v{QKW}, v{acc+3} offset:{lo + QSTR}", 'qkw')
    tr('qkw')
    T0, T1, T2 = 12, 16, 20
    if VA:
        sread(('q', J[0]), 24)
        filler(1)
        sread(('km', J[0]), mslot(8))
        filler(1)
        sread(('m', 0), mslot(7))
        filler(2)
        D.wait('qkw')
        A("s_barrier")
        tr('b2')
        sread(('q', J[1]), 40); sread(('km', J[1]), 44)
        pend = [('q', J[2]), ('kx', 0, J[2]), ('kx', 1, J[2]), ('km', J[2]), ('q', J[3]), ('kx', 0, J[3]), ('kx', 1, J[3]), ('km', J[3]), ('vx', 0), ('vx', 1)]
    else:
        filler(1)
        sread(('m', 4), 16); sread(('m', 3), 24); sread(('m', 2), mslot(8))
        filler(3)
        D.wait('qkw')
        A("s_barrier")
        tr('b2')
        T0, T1, T2 = 12, 16, 20
        sread(('q', 0), mslot(7)); sread(('km', 0), mslot(6)); sread(('q', 1), 44)
        filler(2)
        sread(('km', 1), 24)
        filler(1 if V0S < 3 else 2)
        sread(('q', 2), mslot(8))
        pend = [('kx', 0, 2), ('kx', 1, 2), ('km', 2), ('q', 3), ('kx', 0, 3), ('kx', 1, 3), ('km', 3),
                ('m', 1), ('m', 0), ('vx', 0), ('vx', 1)]
    free = []
    for j in J:
        for T, tag in ((T0, ('kx', 0, j)), (T1, ('kx', 1, j)), (T2, ('km', j))):
            D.wait(tag); D.wait(('q', j))
            A(f"{MF32} {v(T, 4)}, {v(loc[tag], 4)}, {v(loc[('q', j)], 4)}, {v(T, 4) if j != J[0] else 0}")
            if pend: sread(pend.pop(0), loc[tag])
            else: free.append(loc[tag])
        if pend: sread(pend.pop(0), loc[('q', j)])
        else: free.append(loc[('q', j)])
    tr('s_done')
    BX, Z, DA, DB = free[0], free[1], free[2], free[3]
    filler(3 if P3 else 2)
    M, TT, SUM = 16, 17, 18
    VMR = 22
    AO = 28
    busy = set()
    for b_ in (BX, Z, DA, DB, loc[('vx', 0)], loc[('vx', 1)], ACCV1, loc[('m', 0)]): busy |= set(range(b_, b_ + 4))
    zq = [r for r in range(AO, AO + 36, 2) if r not in busy]
    late = set(range(DA, DA + 4)) | set(range(DB, DB + 4))
    zm = [r for r in range(AO, AO + 36, 2) if r in busy and r not in late]
    zl = [r for r in range(AO, AO + 36, 2) if r in late]
    MZ = EXP.get('mz', 1)
    PS, PL, WB = 8, 9, 20
    misc = [f"v_lshrrev_b32 v{PL}, 2, v{L16}", f"v_and_b32 v{PS}, 0x300, v{L16}", f"v_bfe_u32 v10, v{L16}, 1, 7", f"v_lshl_or_b32 v{PS}, v{PS}, 4, v10", "v_mov_b64 v[10:11], 0"]
    mok = [False]
    def zero(cnt=1):
        for _ in range(cnt):
            if MZ:
                if mok[0] and misc: A(misc.pop(0))
            elif zq: A(f"v_mov_b64 {v(zq.pop(0), 2)}, 0")
    assert P3 and not fill
    va0 = [f"v_add_f32 v{ACCV0}, v{ACCV0}, v{ACCV0+1}", f"v_add_f32 v{ACCV0+2}, v{ACCV0+2}, v{ACCV0+3}"]
    A(f"v_mov_b32 v{Z+1}, 0")
    A(f"v_mov_b32 v{Z+2}, 0")
    if V0S == 0:
        for o in va0: A(o)
    for r in range(4): A(f"v_mov_b32_dpp v{T0+r}, v{T1+r} {IDQ} row_mask:0xf bank_mask:0xc")
    A(f"v_mov_b32_dpp v{T2+2}, v{T2+3} {IDQ} row_mask:0xf bank_mask:0xc")
    A(f"v_mov_b32_dpp v{T2}, v{T2+1} {IDQ} row_mask:0x3 bank_mask:0xc")
    A(f"v_max3_f32 v{M}, v12, v13, v14")
    A(f"v_add_f32 v{ACCV1}, v{ACCV1}, v{ACCV1+1}")
    A(f"v_mov_b32_dpp v{T2}, v{T2+2} {IDQ} row_mask:0xc bank_mask:0xf")
    A(f"v_max3_f32 v{M}, v{M}, v15, v20")
    tr('max0')
    for e in (12, 14): A(f"v_pk_mul_f32 {v(e, 2)}, {v(e, 2)}, s[46:47] op_sel_hi:[1,0]")
    A(f"v_max_f32_dpp v{M}, v{M}, v{M} {ROR8}")
    A(f"v_mov_b32 v{TT}, v{M}")
    A("v_mul_f32 v20, s46, v20")
    A(f"v_add_f32 v{ACCV1+2}, v{ACCV1+2}, v{ACCV1+3}")
    A(f"v_permlane16_swap_b32 v{M}, v{TT}")
    A(f"v_max_f32 v{M}, v{M}, v{TT}")
    A(f"v_mov_b32 v{TT}, v{M}")
    if V0S:
        for o in va0: A(o)
    A(f"v_cvt_pk_bf16_f32 v{VMR}, v{ACCV0}, v{ACCV0+2}")
    A(f"v_cvt_pk_bf16_f32 v{VMR+1}, v{ACCV1}, v{ACCV1+2}")
    A(f"v_permlane32_swap_b32 v{M}, v{TT}")
    A(f"v_max_f32 v{M}, v{M}, v{TT}")
    A(f"v_mul_f32 v{M}, s46, v{M}")
    tr('max1')
    for e in (12, 13, 14, 15, 20): A(f"v_sub_f32 v{e}, v{e}, v{M}")
    for e in (12, 13, 14, 15): A(f"v_exp_f32 v{e}, v{e}")
    A(f"v_cvt_pk_bf16_f32 v{BX}, v12, v13")
    A(f"v_cvt_pk_bf16_f32 v{BX+1}, v14, v15")
    A("v_exp_f32 v20, v20")
    A(f"v_mov_b32_dpp v{BX+2}, v{BX} {ROR8}")
    A(f"v_mov_b32_dpp v{BX+3}, v{BX+1} {ROR8}")
    A(f"v_mov_b32_dpp v21, v20 {ROR8}")
    if P3:
        A(f"v_add_f32 v{SUM}, v12, v13")
        D.wait(('vx', 1))
        tr('pv0')
        A(f"{MF32} {v(DA, 4)}, {v(loc[('vx', 0)], 4)}, {v(BX, 4)}, 0")
        A(f"v_cvt_pk_bf16_f32 v{Z}, v20, v21")
        A(f"v_add_f32 v{TT}, v14, v15")
        A(f"{MF32} {v(DB, 4)}, {v(loc[('vx', 1)], 4)}, {v(BX, 4)}, 0")
        A(f"v_add_f32 v{SUM}, v{SUM}, v20")
        A(f"v_add_f32 v{SUM}, v{SUM}, v{TT}")
        A(f"v_cvt_pk_bf16_f32 v{Z+3}, v20, v21")
        A(f"{MF16} {v(DA, 4)}, {v(VMR, 2)}, {v(Z, 2)}, {v(DA, 4)}")
        A(f"v_add_f32_dpp v{SUM}, v{SUM}, v{SUM} {ROR8}")
        A(f"v_mov_b32 v{TT}, v{SUM}")
        A(f"{MF16} {v(DB, 4)}, {v(VMR, 2)}, {v(Z + 2, 2)}, {v(DB, 4)}")
        tr('pv1')
        zq += zm
        zq.sort()
        mok[0] = True
        zero(1)
        A(f"v_permlane16_swap_b32 v{SUM}, v{TT}")
        A(f"v_add_f32 v{SUM}, v{SUM}, v{TT}")
        A(f"v_mov_b32 v{TT}, v{SUM}")
        zero(2)
        A(f"v_permlane32_swap_b32 v{SUM}, v{TT}")
        A(f"v_add_f32 v{SUM}, v{SUM}, v{TT}")
    else:
        A(f"v_add_f32 v{ACCV0}, v{ACCV0}, v{ACCV0+1}")
        D.wait(('vx', 1))
        tr('pv0')
        A(f"{MF32} {v(DA, 4)}, {v(loc[('vx', 0)], 4)}, {v(BX, 4)}, 0")
        A(f"v_add_f32 v{ACCV0+2}, v{ACCV0+2}, v{ACCV0+3}")
        A(f"v_add_f32 v{ACCV1}, v{ACCV1}, v{ACCV1+1}")
        A(f"{MF32} {v(DB, 4)}, {v(loc[('vx', 1)], 4)}, {v(BX, 4)}, 0")
        A(f"v_add_f32 v{ACCV1+2}, v{ACCV1+2}, v{ACCV1+3}")
        A(f"v_cvt_pk_bf16_f32 v{VMR}, v{ACCV0}, v{ACCV0+2}")
        A(f"v_cvt_pk_bf16_f32 v{VMR+1}, v{ACCV1}, v{ACCV1+2}")
        A(f"v_cvt_pk_bf16_f32 v{Z}, v20, v21")
        A(f"v_cvt_pk_bf16_f32 v{Z+3}, v20, v21")
        A(f"v_add_f32 v{SUM}, v12, v13")
        A(f"{MF16} {v(DA, 4)}, {v(VMR, 2)}, {v(Z, 2)}, {v(DA, 4)}")
        A(f"v_add_f32 v{TT}, v14, v15")
        A(f"v_add_f32 v{SUM}, v{SUM}, v20")
        A(f"{MF16} {v(DB, 4)}, {v(VMR, 2)}, {v(Z + 2, 2)}, {v(DB, 4)}")
        tr('pv1')
        A(f"v_add_f32 v{SUM}, v{SUM}, v{TT}")
        zq += zm
        zero(2)
        A(f"v_add_f32_dpp v{SUM}, v{SUM}, v{SUM} {ROR8}")
        A(f"v_mov_b32 v{TT}, v{SUM}")
        zero(2)
        A(f"v_permlane16_swap_b32 v{SUM}, v{TT}")
        A(f"v_add_f32 v{SUM}, v{SUM}, v{TT}")
        A(f"v_mov_b32 v{TT}, v{SUM}")
        zero(2)
        A(f"v_permlane32_swap_b32 v{SUM}, v{TT}")
        A(f"v_add_f32 v{SUM}, v{SUM}, v{TT}")
    A(f"v_rcp_f32 v{SUM}, v{SUM}")
    tr('rcp')
    zero(1)
    for k, Dx in enumerate((DA, DB)):
        for r in (0, 2): A(f"v_pk_mul_f32 {v(Dx + r, 2)}, {v(Dx + r, 2)}, {v(SUM, 2)} op_sel_hi:[1,0]")
    A(f"v_cvt_pk_bf16_f32 v12, v{DA}, v{DA+1}")
    A(f"v_cvt_pk_bf16_f32 v13, v{DA+2}, v{DA+3}")
    A(f"v_cvt_pk_bf16_f32 v14, v{DB}, v{DB+1}")
    A(f"v_cvt_pk_bf16_f32 v15, v{DB+2}, v{DB+3}")
    D.op(f"ds_write_b128 v{OW}, v[12:15]")
    tr('ow')
    zq += zl
    zq.sort()
    if MZ:
        for o in misc: A(o)
        A("v_mfma_f32_32x32x8_bf16 v[28:43], v[10:11], v[10:11], 0")
        A("v_mfma_f32_32x32x8_bf16 v[44:59], v[10:11], v[10:11], 0")
        post = ["v_mov_b64 v[60:61], 0", "v_mov_b64 v[62:63], 0"]
    else:
        post = [f"v_mov_b64 {v(r, 2)}, 0" for r in zq] + misc[:4]
        for _ in range(EXP.get('zb', 6)): A(post.pop(0))
    D.waitall()
    A("s_barrier")
    tr('b3')
    OF = 12
    D.op(f"ds_read_b128 {v(OF, 4)}, v{MEMR} offset:{L_OL}", 'o0')
    D.op(f"ds_read_b128 {v(OF + 4, 4)}, v{MEMR} offset:{L_OL + 1024}", 'o1')
    A(post.pop(0))
    D.op(f"ds_write2_b32 v{QKW}, v{VMR}, v{VMR+1} offset0:0 offset1:{QSTR // 4}")
    cur[0] = 0
    wq_ = sorted(SWO)
    def wo_next():
        if wq_:
            k_ = wq_.pop(0)
            lds_frag(SWO[k_], WB, ('wo', k_), areg=11)
    wo_next()
    for _ in range(EXP.get('za', 3)):
        if post: A(post.pop(0))
    def acc(t): return AO + 4 * WORD.index(t)
    def wpost(t):
        c = acc(t)
        o = [f"v_add_f32 v{c}, v{c}, v{c+1}", f"v_add_f32 v{c+1}, v{c+2}, v{c+3}"]
        if t == 8:
            o.append(f"v_cvt_pk_bf16_f32 v{c+2}, v{c}, v{c+1}")
            o.append(f"v_bfi_b32 v{c+2}, 1, v{TMPC}, v{c+2}")
            o.append(f"global_store_dword v{PL}, v{c+2}, s[42:43] {st}")
        elif t & 1:
            p = acc(t - 1); sb = 26 if t == 1 else 88 + 2 * (t // 2)
            o.append(f"v_cvt_pk_bf16_f32 v{c+2}, v{p}, v{c}")
            o.append(f"v_cvt_pk_bf16_f32 v{c+3}, v{p+1}, v{c+1}")
            o.append(f"v_bfi_b32 v{c+2}, 1, v{TMPC}, v{c+2}")
            o.append(f"global_store_dwordx2 v{PS}, {v(c + 2, 2)}, s[{sb}:{sb+1}] {st}")
        return o
    D.wait('o0')
    tr('wo0')
    seq = [(t, k2) for t in WORD for k2 in range(2)]
    if EXP.get('il', 0):
        seq = [(8, 0), (0, 0), (8, 1), (1, 0), (0, 1)]
        for t in range(1, 7): seq += [(t + 1, 0), (t, 1)]
        seq += [(7, 1)]
        assert len(seq) == 18 and not SWO
    vq = list(post); since = {}
    slots = 0
    for k, (t, k2) in enumerate(seq):
        if k2 == 1: D.wait('o1')
        if k in SWO:
            D.wait(('wo', k))
            smf(acc(t), OF + 4 * k2, WB)
            wo_next()
            slots += 2
        else: smf(acc(t), OF + 4 * k2, WO(t, k2))
        slots += 1
        if k2 == 1: since[t] = slots
        em = 0
        for _ in range(EXP.get('wv', 2) + (1 if len(vq) > EXP.get('wq', 1) else 0)):
            for tt_ in list(since):
                if slots - since[tt_] >= EXP.get('wlag', 8): vq += wpost(tt_); del since[tt_]
            if vq: A(vq.pop(0)); slots += 1; em += 1
        if em == 0 and since and EXP.get('wn', 2):
            A(f"s_nop {EXP.get('wn', 2) - 1}"); slots += EXP.get('wn', 2)
    tr('wo1')
    for tt_ in list(since): vq += wpost(tt_)
    for o in vq: A(o)
    tr('wo2')
    D.q = []
    SEL, RD, MS, LA = 12, 16, 8, 9
    LDB = (24, 40)
    kind = (1, 1, 2, 0)[wv]
    lab = f"L_rp1_{sfx}"
    LD = 24
    def wkpre():
        for o in book: A(o)
        for n in sorted(range(3), key=wslot): wk_read(n)
    if kind:
        def loads():
            if kind == 2: A(f"global_load_dwordx4 {v(LD, 4)}, v{LA}, s[28:29] {LF}")
            else:
                for j in range(4): A(f"global_load_dwordx4 {v(LD + 4 * j, 4)}, v{L16}, s[28:29] offset:{j * 1024} {LF}")
        P = Asm()
        if kind == 1:
            P(f"v_bfe_u32 v20, v{L16}, 4, 1")
            P(f"v_bfe_u32 v21, v{L16}, 5, 1")
            P(f"v_bfe_u32 v22, v{L16}, 6, 1")
            P("v_lshl_add_u32 v22, v21, 1, v22")
        else:
            P(f"v_bfe_u32 v20, v{L16}, 6, 1")
            P(f"v_bfe_u32 v22, v{L16}, 4, 2")
            P(f"v_bfe_u32 v23, v{L16}, 8, 1")
            P("v_xor_b32 v23, s12, v23")
        P("v_lshlrev_b32 v20, 4, v20")
        P("v_mov_b32 v21, 0x3f80")
        P("v_lshlrev_b32 v21, v20, v21")
        m_ = Asm(); ms_calc(m_, kind, MS, 10); mq = [i.text.strip() for i in m_.ins]
        for j in range(4):
            P(f"v_cmp_eq_u32 vcc, {j}, v22")
            for _ in range(2):
                if mq: P(mq.pop(0))
            P(f"v_cndmask_b32 v{SEL+j}, 0, v21, vcc")
        for o in mq: P(o)
        P("v_mov_b64 v[10:11], -1")
        pq = [i.text.strip() for i in P.ins]
        if wv == 0:
            wkpre()
            A(f"s_waitcnt vmcnt({EXP.get('k0', 1)})")
            tr('p1s'); loads()
            for o in pq: A(o)
        elif wv == 1:
            wkpre()
            tp = EXP.get('tp', 3)
            A(f"s_waitcnt vmcnt({EXP.get('k1', 0)})")
            for o in pq[:tp]: A(o)
            tr('p1s'); loads()
            for o in pq[tp:]: A(o)
        else:
            lane_const(A, LA, lambda x: (x >> 5) * 256 + ((x >> 4) & 1) * 16, src=L16, nbits=10, tmp=10)
            if 'k2' in EXP:
                wkpre()
                A(f"s_waitcnt vmcnt({EXP['k2']})")
                loads()
            else:
                tr('p1s'); loads()
                wkpre()
            for o in pq: A(o)
        A.label(lab)
        if kind == 1:
            for j in range(4):
                A(f"s_waitcnt vmcnt({3 - j})")
                tr(f'p1w{j}')
                A(f"{MF32} {v(RD, 4)}, {v(SEL, 4)}, {v(LD + 4 * j, 4)}, {v(RD, 4) if j else 0}")
                A(f"v_bitop3_b32 v{20 + j}, v{LD+4*j}, v{LD+4*j+2}, {'s13' if j & 1 else 's12'} bitop3:0x7e")
                if j == 2: A("v_or3_b32 v20, v20, v21, v22")
            A("v_bitop3_b32 v20, v20, v23, 1 bitop3:0xa8")
        else:
            A("s_waitcnt vmcnt(0)")
            A(f"{MF32} {v(RD, 4)}, {v(SEL, 4)}, {v(LD, 4)}, 0")
            A(f"v_bitop3_b32 v20, v{LD}, v{LD+1}, v23 bitop3:0x7e")
            A(f"v_bitop3_b32 v21, v{LD+2}, v{LD+3}, v23 bitop3:0x7e")
            A("v_bitop3_b32 v20, v20, v21, 1 bitop3:0xa8")
        A("v_cmp_ne_u32 vcc, 0, v20")
        for r in range(4): A(f"v_add_f32_dpp v{RD+r}, v{RD+r}, v{RD+r} {ROR8}")
        if kind == 2:
            for r in range(4): A(f"v_add_f32_dpp v{RD+r}, v{RD+r}, v{RD+r} row_ror:4 row_mask:0xf bank_mask:0xf")
            for r in range(4): A(f"v_add_f32_dpp v{RD+r}, v{RD+r}, v{RD+r} quad_perm:[2,3,0,1] row_mask:0xf bank_mask:0xf")
        A(f"v_cvt_pk_bf16_f32 v20, v{RD}, v{RD+1}")
        A(f"v_cvt_pk_bf16_f32 v21, v{RD+2}, v{RD+3}")
        A("s_mov_b64 exec, s[44:45]")
        A(f"s_cbranch_vccnz {lab}_rt")
        tr('p1ok')
        A(f"global_store_dwordx2 v{MS}, v[20:21], s[14:15] {st}")
        A(f"global_store_dwordx2 v{MS}, v[10:11], s[60:61] {st}")
        A("s_mov_b64 exec, -1")
        if EXP.get('rt'): A("s_add_u32 s76, s76, s55")
    else:
        wkpre()
        if nkv:
            A(f"v_mov_b32 v28, {L_QL + 256}")
            A("s_waitcnt vmcnt(5)")
            A("ds_read_b128 v[28:31], v28")
            A("s_waitcnt lgkmcnt(0)")
            A("v_min3_u32 v28, v28, v29, v30")
            A("v_min_u32 v28, v28, v31")
            A("v_readfirstlane_b32 s12, v28")
            A("s_max_u32 s54, s54, s12")
        kv_wait(A, "s25", nkv, kvg0, 28, XIT)
        if EXP.get('steps'):
            A("s_memrealtime s[64:65]")
            A("s_memtime s[66:67]")
            A("s_lshl_b32 s12, s9, 6")
            A("s_add_u32 s12, s12, s24")
            A("s_lshl_b32 s12, s12, 3")
            A(f"s_add_u32 s12, s12, {WS_STAMP + 0x50000}")
            A("v_mov_b32 v28, s12")
            A("s_waitcnt lgkmcnt(0)")
            A("v_mov_b32 v30, s64")
            A("v_mov_b32 v31, s66")
            A("s_mov_b64 exec, 1")
            A("global_store_dwordx2 v28, v[30:31], s[4:5]")
            A("s_mov_b64 exec, -1")
    A("s_barrier")
    tr('b4')
    A("s_mov_b32 s55, 0")
    def loads2():
        for j, ks in enumerate(LDL):
            if ks == 8: A(f"global_load_dwordx4 {v(lreg(j), 4)}, v{L16}, s[16:17] {LF}")
            else: A(f"global_load_dwordx4 {v(lreg(j), 4)}, v{L16}, s[20:21] offset:{(ks - 4) * 1024} {LF}")
    Z2 = EXP.get('z2', 8)
    spill_read(MRING + 8 if P3 else ACCV0)
    zero_qk(12, 12 + 2 * Z2)
    tr('p2s')
    loads2()
    zero_qk(12 + 2 * Z2, 28)
    if P3 and wv: zero_qk(ACCV0, ACCV0 + 4)
    A("s_mov_b32 m0, s62")
    A(f"s_branch {f'L_rp2_{sfx}' if not TR else f'L_rp2ok_{sfx}'}")
    A.label(f"L_rf2_{sfx}")
    if EXP.get('rt'): A("s_add_u32 s77, s77, 1")
    A("s_mov_b64 exec, vcc")
    loads2()
    A("s_mov_b64 exec, -1")
    if SP: zero_qk(ACCQ, ACCQ + 8)
    A("s_add_u32 s55, s55, 1")
    A(f"s_cmp_gt_u32 s55, {SPIN_MAX}")
    A(f"s_cbranch_scc0 L_rp2_{sfx}")
    A(f"s_branch {XIT}")
    if kind:
        A.label(lab + "_rt")
        A("s_mov_b64 exec, vcc")
        loads()
        A("s_mov_b64 exec, -1")
        backoff(A, 55, sleep=EXP.get('bo', 4))
        A("s_add_u32 s55, s55, 1")
        A(f"s_cmp_gt_u32 s55, {SPIN_MAX}")
        A(f"s_cbranch_scc0 {lab}")
        A(f"s_branch {XIT}")
    A.label(f"L_rp2ok_{sfx}")
    tr('p2ok')
    if TR:
        A("s_cmp_lg_u32 s24, 41")
        A(f"s_cbranch_scc1 L_rp2_{sfx}")
        A("s_waitcnt lgkmcnt(0)")
        A("s_lshl_b32 s12, s9, 2")
        A("s_add_u32 s12, s12, s10")
        A("s_lshl_b32 s12, s12, 6")
        A(f"s_add_u32 s12, s12, {WS_STAMP + 16384}")
        A(f"v_mov_b32 v{TMPC}, s12")
        for q in range(11):
            A(f"v_mov_b32 v63, s{64 + 2 * q}")
            A(f"global_store_dword v{TMPC}, v63, s[4:5] offset:{4 * q}")
            A("s_waitcnt vmcnt(0)")
    A(f"s_branch L_rp2_{sfx}")
    A.label(f"L_rlast_{sfx}")
    A("s_lshl_b32 s13, s24, 17")
    add64(A, 38, 50, "s13")
    D.waitall()
    lr = {8: mslot(8), 7: mslot(7), 6: mslot(6), 5: 44, 4: 48, 3: 52, 2: 56, 1: 60, 0: 12}
    if VA: lr = {8: mslot(8), 7: mslot(7), 2: 40, 1: 44, 0: 12}
    for p in ((0,) if VA else (4, 3, 2, 1, 0)): mem_read(ORD[p], lr[p], ('lm', p))
    for p in sorted(lr, reverse=True):
        D.wait(('lm', p))
        smf(ACCV1, lr[p], WV(ORD[p], 1))
        if p < V0S: smf(ACCV0, lr[p], WV(ORD[p], 0))
    for b in range(2):
        A(f"v_add_f32 v{ACCK+4*b}, v{ACCK+4*b}, v{ACCK+4*b+1}")
        A(f"v_add_f32 v{ACCK+4*b+2}, v{ACCK+4*b+2}, v{ACCK+4*b+3}")
    A(f"v_cvt_pk_bf16_f32 v16, v{ACCK}, v{ACCK+4}")
    A(f"v_cvt_pk_bf16_f32 v17, v{ACCK+2}, v{ACCK+6}")
    for a_ in (ACCV1, ACCV0):
        A(f"v_add_f32 v{a_}, v{a_}, v{a_+1}")
        A(f"v_add_f32 v{a_+2}, v{a_+2}, v{a_+3}")
    A(f"v_cvt_pk_bf16_f32 v18, v{ACCV0}, v{ACCV0+2}")
    A(f"v_cvt_pk_bf16_f32 v19, v{ACCV1}, v{ACCV1+2}")
    A(f"global_store_dwordx4 v{T16}, v[16:19], s[38:39] sc1")
    tl(A, 4)
    if EXP.get('rt'):
        A("s_memrealtime s[82:83]")
        A("s_memtime s[98:99]")
        A("s_waitcnt lgkmcnt(0)")
        A("s_sub_u32 s75, s98, s96")
        A("s_sub_u32 s78, s80, s84")
        A("s_sub_u32 s79, s82, s80")
        A("s_lshl_b32 s12, s9, 2")
        A("s_add_u32 s12, s12, s10")
        A("s_lshl_b32 s12, s12, 6")
        A(f"s_add_u32 s12, s12, {WS_STAMP}")
        A("v_mov_b32 v12, s12")
        for q in range(4):
            for r in range(4): A(f"v_mov_b32 v{16+r}, s{64 + 4 * q + r}")
            A(f"global_store_dwordx4 v12, v[16:19], s[4:5] offset:{16 * q}")
            A("s_waitcnt vmcnt(0)")
    A.label(XIT)
    A("s_endpgm")

def role_r(A, restart, nkv, kvg0):
    if EXP.get('rt'):
        A("s_memrealtime s[84:85]")
        A("s_waitcnt lgkmcnt(0)")
    r_setup(A)
    r_swap(A)
    tl(A, 1)
    A("s_waitcnt vmcnt(0)")
    A("s_mov_b32 s54, 0")
    A("v_min3_u32 v6, v8, v9, v10")
    A("v_min_u32 v6, v6, v11")
    mode_check(A, tv=12, pre=4)
    r_consts(A)
    r_pro(A, nkv, kvg0)
    A("s_cmp_eq_u32 s11, 0")
    A("s_cbranch_scc1 L_r_slow")
    for fast in (True, False):
        t = 'f' if fast else 's'
        if not fast: A.label("L_r_slow")
        for w in range(1, 4):
            A(f"s_cmp_eq_u32 s10, {w}")
            A(f"s_cbranch_scc1 L_rent_{t}{w}")
        for w in range(4):
            A.label(f"L_rent_{t}{w}")
            r_main(A, fast, w, nkv, kvg0)
```

```python
from common import *
import math
PROW = 1152
ROWB = 32 * PROW
T16, L16, XS, XS8, XL, RW, XL8, L4 = range(8)
EXP = {}
TRN = ['top', 'go', 'mm', 'flag', 'op0', 'op1', 'ack', 'xf', 'red', 'end']
def tr(A, name):
    if not EXP.get('aftrace'): return
    if name not in TRN: TRN.append(name)
    i = TRN.index(name)
    assert i < 11
    A(f"s_memtime s[{80+2*i}:{81+2*i}]")
def tr_dump(A, seg):
    if not EXP.get('aftrace'): return
    l = A.newlabel('L_trd')
    A(f"s_cmp_lg_u32 s47, {seg}")
    A(f"s_cbranch_scc1 {l}")
    A("s_waitcnt lgkmcnt(0)")
    A("s_lshl_b32 s12, s8, 5")
    A("s_add_u32 s12, s12, s9")
    A("s_lshl_b32 s12, s12, 2")
    A("s_add_u32 s12, s12, s10")
    A("s_lshl_b32 s12, s12, 6")
    A(f"s_add_u32 s12, s12, {WS_STAMP + 0x10000}")
    A("v_mov_b32 v8, s12")
    for q in range(11):
        A(f"v_mov_b32 v9, s{80 + 2 * q}")
        A(f"global_store_dword v8, v9, s[4:5] offset:{4 * q}")
        A("s_waitcnt vmcnt(0)")
    A.label(l)

def af_consts(A, l_red):
    lane_const(A, L16, lambda t: (t & 63) * 16, tmp=12)
    lane_const(A, XS, lambda t: ((t >> 4) & 3) * 4 * ROWB + (t & 15) * 8 + (t >> 6) * 256, tmp=12)
    lane_const(A, XS8, lambda t: (t & 15) * ROWB + ((t >> 4) & 3) * 8 + (t >> 6) * 32 + 1024, tmp=12)
    lane_const(A, XL, lambda t: ((t >> 4) & 3) * PROW + (t >> 6) * 256 + (t & 15) * 16, tmp=12)
    lane_const(A, XL8, lambda t: (8 * (t >> 6) + ((t >> 3) & 7)) * PROW + 1024 + (t & 7) * 16, tmp=12)
    lane_const(A, RW, lambda t: l_red + (256 * ((t >> 3) & 1) + 16 * (t >> 6) + 2 * (t & 7) + ((t >> 4) & 1)) * 4, tmp=12)
    lane_const(A, L4, lambda t: (t & 63) * 4, tmp=12)
    A(f"s_mul_i32 s12, s8, {32 * ROWB}")
    A(f"s_add_u32 s12, s12, {WS_XP}")
    A(f"s_mul_i32 s13, s9, {PROW}")
    A("s_add_u32 s13, s13, s12")
    add64(A, 40, S_WS, "s13")
    A(f"s_mul_i32 s13, s9, {ROWB}")
    A("s_add_u32 s13, s13, s12")
    add64(A, 42, S_WS, "s13")
    A("s_lshl_b32 s12, s8, 7")
    A(f"s_add_u32 s12, s12, {WS_XF}")
    add64(A, 44, S_WS, "s12")
    A("s_mov_b32 s47, 0")

def post_flag(A, wave, off, st):
    l = A.newlabel('L_pf')
    A(f"s_cmp_lg_u32 s10, {wave}")
    A(f"s_cbranch_scc1 {l}")
    A("s_lshl_b32 s12, s9, 2")
    A("v_mov_b32 v8, s12")
    A("v_mov_b32 v9, s47")
    A("s_mov_b64 exec, 1")
    A(f"global_store_dword v8, v9, s[44:45] offset:{off} {st}")
    A("s_mov_b64 exec, -1")
    A.label(l)

def out_proj(A, st, wfrag, l_red, k16=None, pre=None):
    D = Lds(A)
    FR, AC, NA_, G, W16, F16 = 8, 28, 6, 52, 68, 72
    tr(A, 'op0')
    A("s_add_u32 s47, s47, 1")
    A("s_xor_b32 s46, s47, s9")
    A("s_and_b32 s46, s46, 1")
    A("v_mov_b32 v24, s46")
    order = [8, 0, 1, 2, 3, 4, 5, 6, 7]
    seq = [(tt, t) for tt in range(2) for t in order]
    pend = []
    def slot(k): return AC + 4 * (k % NA_)
    def chk(k):
        regs = {('v', slot(k) + i) for i in range(4)}
        while any(Ins(line).rd & regs for _, o in pend for line in o.split('\n')):
            A(pend.pop(0)[1])
    def wreg(k): return (68, 70, 76, 78)[k & 3]
    def w16rd(k): D.op(f"ds_read_b64_tr_b16 {v(wreg(k), 2)}, v{k16[1]} offset:{seq[k][1] * 128}", ('w16', k))
    def m16(k):
        D.wait(('w16', k))
        a_, b_ = v(F16 + 2 * seq[k][0], 2), v(wreg(k), 2)
        if seq[k][1] == 8: a_, b_ = b_, a_
        A(f"{MF16} {v(slot(k), 4)}, {a_}, {b_}, {v(slot(k), 4)}")
    def post(grp, rdy):
        for k in grp:
            tt, t = seq[k]; c = slot(k); cp = slot(k - 1)
            if t == 8:
                pend.append((rdy, f"v_cvt_pk_bf16_f32 v{c}, v{c}, v{c+1}"))
                pend.append((rdy, f"v_cvt_pk_bf16_f32 v{c+1}, v{c+2}, v{c+3}"))
                pend.append((rdy, f"v_bfi_b32 v{c}, 1, v24, v{c}"))
                pend.append((rdy, sa.format(16 * tt * ROWB) + f"global_store_dwordx2 v{XS8}, {v(c, 2)}, s[12:13] {st}"))
            elif t & 1:
                for r in range(4): pend.append((rdy, f"v_cvt_pk_bf16_f32 v{G + 4 * r + t // 2}, v{cp+r}, v{c+r}"))
                for r in range(4):
                    if t in (1, 5): pend.append((rdy, f"v_bfi_b32 v{G + 4 * r + t // 2}, 1, v24, v{G + 4 * r + t // 2}"))
                    else: pend.append((rdy + 2 + r, sa.format((16 * tt + r) * ROWB) + f"global_store_dwordx2 v{XS}, {v(G + 4 * r + (t >> 2) * 2, 2)}, s[12:13] offset:{(t >> 2) * 128} {st}"))
    if k16:
        for q in range(4): D.op(f"ds_read_b128 {v(G + 4 * q, 4)}, v{L16} offset:{k16[0] + (q >> 1) * 1024 + (q & 1) * 2048}", ('x9', q))
        for k_ in range(4): w16rd(k_)
    sa = f"s_add_u32 s12, s40, {{}}\ns_addc_u32 s13, s41, 0\n"
    mc = [0]
    groups = []
    for tt in range(2): groups += [[9 * tt, 9 * tt + 1, 9 * tt + 2]] + [[9 * tt + 3 + 2 * q, 9 * tt + 4 + 2 * q] for q in range(3)]
    for gi, grp in enumerate(groups):
        tt = seq[grp[0]][0]
        if seq[grp[0]][1] == 8:
            for j in range(4): D.op(f"ds_read_b128 {v(FR + 4 * j, 4)}, v{L16} offset:{(tt * 4 + j) * 1024}", ('f', j))
        if k16 and gi == 0:
            for tt_ in range(2):
                D.wait(('x9', 2 * tt_ + 1))
                g_ = G + 8 * tt_
                for r in (0, 2): A(f"v_pk_mul_f32 {v(g_ + r, 2)}, {v(g_ + r, 2)}, {v(g_ + 4 + r, 2)}")
                for r in (0, 2): A(f"v_cvt_pk_bf16_f32 v{F16 + 2 * tt_ + r // 2}, v{g_+r}, v{g_+r+1}")
        for k in grp: chk(k)
        def drain():
            mc[0] += 1
            for _ in range(2):
                if pend and pend[0][0] <= mc[0]: A(pend.pop(0)[1])
        for j in range(4):
            D.wait(('f', j))
            for k in grp:
                t = seq[k][1]; c = slot(k)
                a_, b_ = v(FR + 4 * j, 4), u(wfrag(t, j), 4)
                if t == 8: a_, b_ = b_, a_
                A(f"{MF32} {v(c, 4)}, {a_}, {b_}, {v(c, 4) if j else 0}")
                drain()
            if k16 and j == 0 and gi:
                for k in groups[gi - 1]:
                    m16(k); drain()
                    if k + 4 < 18: w16rd(k + 4)
                post(groups[gi - 1], mc[0] + 4)
        if not k16: post(grp, mc[0] + 4)
    if k16:
        for k in groups[-1]: m16(k)
        post(groups[-1], 0)
    for o in pend: A(o[1])
    tr(A, 'op1')
    SEL = 12
    A(f"v_bfe_u32 v10, v{L4}, 2, 1")
    A("v_lshlrev_b32 v10, 4, v10")
    A("v_mov_b32 v11, 0x3f80")
    A("v_lshlrev_b32 v11, v10, v11")
    A(f"v_bfe_u32 v10, v{L4}, 3, 2")
    for j in range(4):
        A(f"v_cmp_eq_u32 vcc, {j}, v10")
        A(f"v_cndmask_b32 v{SEL+j}, 0, v11, vcc")
    lane_const(A, 26, lambda x: l_red + 2048 + (x >> 10) * 256 + ((x >> 4) & 7) * 32 + ((x >> 8) & 1) * 16, src=T16, nbits=12, tmp=10)
    A("s_and_b32 s12, s47, 1")
    A("s_sub_u32 s12, 0, s12")
    A(f"v_bfe_i32 v10, v{L4}, 6, 1")
    A(f"v_bfe_i32 v11, v{L4}, 5, 1")
    A("v_xor_b32 v10, s12, v10")
    A("v_xor_b32 v11, s12, v11")
    A("s_waitcnt vmcnt(0)")
    tr(A, 'ack')
    lnf = A.newlabel('L_nf')
    A("s_cmp_lg_u32 s47, 1")
    A(f"s_cbranch_scc1 {lnf}")
    A("s_barrier")
    post_flag(A, 0, 0, st)
    A(f"v_and_b32 v8, 0x7c, v{L4}")
    flag_wait(A, 8, 44, 47, 9, 12, sleep=8)
    A.label(lnf)
    tr(A, 'xf')
    LD = 28
    A("s_mov_b32 s14, 0")
    lrt = A.newlabel('L_xr')
    A.label(lrt)
    A("s_mov_b64 s[12:13], s[42:43]")
    A(f"global_load_dwordx4 {v(LD + 32, 4)}, v{XL8}, s[12:13] sc1")
    for i in range(8):
        A(f"global_load_dwordx4 {v(LD + 4 * i, 4)}, v{XL}, s[12:13] sc1")
        if i < 7: add64(A, 12, 12, 4 * PROW)
    A("s_mov_b64 exec, -1")
    A("s_add_u32 s14, s14, 1")
    A(f"s_cmp_gt_u32 s14, {SPIN_MAX}")
    A("s_cbranch_scc1 L_exit")
    A("s_waitcnt vmcnt(8)")
    A(f"{MF32} v[20:23], {v(SEL, 4)}, {v(LD + 32, 4)}, 0")
    A(f"v_bitop3_b32 v8, v{LD+32}, v{LD+34}, v11 bitop3:0x7e")
    A("v_and_b32 v8, 1, v8")
    for i in range(8):
        A(f"s_waitcnt vmcnt({7 - i})")
        A(f"{MF32} v[16:19], {v(SEL, 4)}, {v(LD + 4 * i, 4)}, {'v[16:19]' if i else 0}")
        A(f"v_bitop3_b32 v9, v{LD+4*i}, v{LD+4*i+2}, v10 bitop3:0x7e")
        A("v_and_or_b32 v8, v9, 1, v8")
        if i == 4:
            for r in range(4): A(f"v_add_f32_dpp v{20+r}, v{20+r}, v{20+r} row_ror:8 row_mask:0xf bank_mask:0xf")
            A("ds_write_b128 v26, v[20:23]")
    A("v_cmp_ne_u32 vcc, 0, v8")
    A("s_mov_b64 exec, vcc")
    A(f"s_cbranch_vccnz {lrt}")
    A("s_mov_b64 exec, -1")
    for r in range(4): A(f"ds_write_b32 v{RW}, v{16+r} offset:{256 * r}")
    A("s_waitcnt lgkmcnt(0)")
    A("s_barrier")
    tr(A, 'red')
    post_flag(A, 1, 1024, st)

def consumed_wait(A, tv):
    A(f"v_and_b32 v{tv}, 0x7c, v{L4}")
    A(f"v_add_u32 v{tv}, 1024, v{tv}")
    flag_wait(A, tv, 44, 47, tv + 1, 12, sleep=0)

def row_gather(A, l_red):
    A(f"v_lshlrev_b32 v48, 1, v{L4}")
    for w in range(4): A(f"ds_read_b64 {v(16 + 2 * w, 2)}, v48 offset:{l_red + 2048 + w * 256}")
    for i in range(4): A(f"ds_read_b64 {v(8 + 2 * i, 2)}, v48 offset:{l_red + i * 512}")
    A("s_waitcnt lgkmcnt(4)")
    A("v_pk_add_f32 v[16:17], v[16:17], v[18:19]")
    A("v_pk_add_f32 v[20:21], v[20:21], v[22:23]")
    A("v_pk_add_f32 v[16:17], v[16:17], v[20:21]")
    A("s_waitcnt lgkmcnt(0)")
    for i in range(5): rnd2(A, 8 + 2 * i)

def unpack(A, dst, src):
    A(f"v_lshlrev_b32 v{dst}, 16, v{src}")
    A(f"v_and_b32 v{dst+1}, 0xffff0000, v{src}")

def cached_wait(A, base, val_s, cache_s, tv):
    ok = A.newlabel('L_cw')
    A(f"s_cmp_ge_u32 s{cache_s}, s{val_s}")
    A(f"s_cbranch_scc1 {ok}")
    A(f"v_and_b32 v{tv}, 12, v{L4}")
    flag_wait(A, tv, base, val_s, tv + 1, 12, sleep=16)
    xsum(A, tv + 1, tv, op="v_min_u32", bits=(0, 1))
    A(f"v_readfirstlane_b32 s{cache_s}, v{tv+1}")
    A.label(ok)

def WA(i): return 256 + 4 * i if i < 64 else 224 + 4 * (i - 64)

def role_a(A, restart, na, ag0, kvg0, standalone=False):
    LQ, LO, LRED = 2 * SEG_H, 2 * SEG_H + 8192, 2 * SEG_H + 16384
    LKM, LVM = LRED + 4096, LRED + 8192
    A(f"s_load_dwordx2 s[16:17], s[0:1], {KA_WQ}")
    A(f"s_load_dwordx2 s[18:19], s[0:1], {KA_WO}")
    A(f"s_load_dwordx2 s[34:35], s[0:1], {KA_X}")
    dense256_consts(A, 12, 16, 8192, 1)
    dense128_consts(A, 20, 18, 1)
    A("s_lshl_b32 s12, s9, 8")
    A("s_waitcnt lgkmcnt(0)")
    add64(A, 16, 16, "s12")
    A("s_mul_i32 s12, s9, 147456")
    add64(A, 18, 18, "s12")
    def wq(ks, b): return WA(ks * 2 + b)
    def wo(t, j): return WA(36 + t * 4 + j)
    chunks = [dict(ptr=16, off=c * 64 * 8192, vb=12, reads=dense256_reads(wq, 16, c)) for c in range(9)]
    chunks += [dict(ptr=18, off=t * 128, vb=20, reads=dense128_reads(wo, 18, t)) for t in range(9)]
    if EXP.get('ord', 0) & 1: chunks = chunks[9:] + chunks[:9][::-1]
    ring_load(A, chunks)
    tl(A, 1)
    mode_check(A, tv=12)
    af_consts(A, LRED)
    HA, QRD, OWR, KMA, VOF, NEG, H2A = 80, 81, 82, 83, 84, 85, 86
    MODR, XR = 88, 104
    KF, VF, KM, VM = 112, 144, 160, 176
    lane_const(A, QRD, lambda t: LQ + (t >> 7) * 4096 + (t & 63) * 16, tmp=12)
    lane_const(A, OWR, lambda t: LO + (t >> 6) * 2048 + (t & 63) * 16, tmp=12)
    KMW, VMW = 87, 109
    lane_const(A, KMW, lambda t: LKM + 2 * ((t >> 4) & 3) * 288 + (t >> 6) * 64 + (t & 15) * 4, tmp=12)
    lane_const(A, KMA, lambda t: LKM + (2 * ((t & 15) >> 2) + (t & 1)) * 288 + ((t >> 4) & 3) * 16, tmp=12)
    lane_const(A, VMW, lambda t: LVM + t * 8, tmp=12)
    lane_const(A, VOF, lambda t: LVM + ((t >> 6) & 1) * 1024 + (t & 63) * 8, tmp=12)
    A(f"v_mov_b32 v{NEG}, {f32bits(-1e9):#x}")
    A("s_bfe_u32 s12, s9, 0x30001")
    A("s_lshl_b32 s12, s12, 4")
    A(f"v_xor_b32 v{H2A}, s12, v{L4}")
    lane_const(A, 12, lambda t: 16 * (t >> 7) + (t & 15) - 4 * ((t >> 4) & 3), tmp=13)
    for k in range(8): A(f"v_cmp_le_i32 s[{64+2*k}:{65+2*k}], {(k & 3) + 16 * (k >> 2)}, v12")
    A(f"v_lshlrev_b32 v{T16}, 4, v0")
    A(f"s_sub_u32 s24, s8, {ag0}")
    A(f"s_mul_i32 s12, s24, {SEG_H}")
    A(f"s_add_u32 s13, s12, {WS_H}")
    add64(A, 20, S_WS, "s13")
    A("s_mul_i32 s13, s9, 1152")
    A("s_add_u32 s12, s12, s13")
    add64(A, 34, 34, "s12")
    A(f"s_add_u32 s13, s12, {WS_X1}")
    add64(A, 36, S_WS, "s13")
    A(f"s_add_u32 s13, s12, {WS_H2}")
    add64(A, 38, S_WS, "s13")
    A("s_lshl_b32 s12, s24, 5")
    A("s_add_u32 s12, s12, s9")
    A("s_lshl_b32 s13, s12, 14")
    A(f"s_add_u32 s13, s13, {WS_KV + 4096}")
    add64(A, 22, S_WS, "s13")
    A("s_lshl_b32 s13, s12, 12")
    A(f"s_add_u32 s13, s13, {WS_KVM}")
    add64(A, 30, S_WS, "s13")
    A("s_lshl_b32 s13, s12, 2")
    A(f"s_add_u32 s13, s13, {WS_H2FLAG}")
    add64(A, 52, S_WS, "s13")
    A("s_lshl_b32 s12, s9, 7")
    A(f"s_add_u32 s13, s12, {WS_KVPROG + kvg0 * 4096}")
    add64(A, 54, S_WS, "s13")
    A(f"s_add_u32 s13, s12, {WS_RPROG}")
    add64(A, 56, S_WS, "s13")
    A(f"s_mov_b32 s58, {64 if standalone else 0}")
    A(f"s_mov_b32 s59, {64 if standalone else 0}")
    A("s_lshl_b32 s26, s10, 10")
    A("s_mov_b32 s27, 0")
    A(f"s_mov_b32 s60, {f32bits(128 ** -0.5):#x}")
    A(f"s_mov_b32 s61, {f32bits(math.log2(math.e)):#x}")
    if not standalone:
        h_wait(A, 12)
        counter_wait(A, DBG_MODCNT, 36, tv=12)
    for k, ch in enumerate((2, 4, 3)):
        add64(A, 12, S_WS, WS_MOD + ch * 1152)
        for i in range(5): A(f"global_load_dword v{MODR+5*k+i}, v{L4}, s[12:13] offset:{256 * i} sc1")
    def hdma():
        seg_dma(A, T16, 20, 26)
        add64(A, 20, 20, na * SEG_H)
        A(f"s_xor_b32 s26, s26, {SEG_H}")
    assert SEG_H & 3072 == 0
    hdma()
    A("s_waitcnt vmcnt(0)")
    A("s_cmp_eq_u32 s11, 0")
    A("s_cbranch_scc1 L_a_top_s")
    for fast in (True, False):
        st = "" if fast else "sc1"; sfx = "f" if fast else "s"
        A.label(f"L_a_top_{sfx}")
        tr(A, 'top')
        A("s_add_u32 s25, s24, 1")
        cached_wait(A, 54, 25, 58, 8)
        for i in range(8): A(f"global_load_dwordx4 {v(KF + 4 * i, 4)}, v{L16}, s[22:23] offset:{i * 1024 - 4096}")
        A("s_and_b32 s12, s10, 1")
        A("s_lshl_b32 s12, s12, 12")
        A("s_add_u32 s12, s12, 4096")
        add64(A, 12, 22, "s12")
        for i in range(4): A(f"global_load_dwordx4 {v(VF + 4 * i, 4)}, v{L16}, s[12:13] offset:{i * 1024}")
        A("s_mov_b32 exec_hi, 0")
        A(f"global_load_dword v{XR+4}, v{L4}, s[34:35] offset:1024")
        A("s_mov_b64 exec, -1")
        for i in range(4): A(f"global_load_dword v{XR+i}, v{L4}, s[34:35] offset:{256 * i}")
        A(f"v_add_u32 v{HA}, s27, v{L16}")
        A("s_barrier")
        tr(A, 'go')
        D = Lds(A)
        ACC, RING, NR = 8, 24, 6
        seq = [(ks, tt) for ks in range(18) for tt in range(2)]
        def rd(i):
            ks, tt = seq[i]
            D.op(f"ds_read_b128 {v(RING + 4 * (i % NR), 4)}, v{HA} offset:{(tt * 18 + ks) * 1024}", i)
        for i in range(NR - 1): rd(i)
        hdma()
        A(f"s_xor_b32 s27, s27, {SEG_H}")
        for i, (ks, tt) in enumerate(seq):
            if i + NR - 1 < 36: rd(i + NR - 1)
            D.wait(i)
            for b in range(2):
                d = v(ACC + (b * 2 + tt) * 4, 4)
                A(f"{MF32} {d}, {u(wq(ks, b), 4)}, {v(RING + 4 * (i % NR), 4)}, {d if ks else 0}")
        for tt in range(2):
            for r in range(4): A(f"v_cvt_pk_bf16_f32 v{48+4*tt+r}, v{ACC+4*tt+r}, v{ACC+8+4*tt+r}")
            A(f"v_add_u32 v56, {LQ + tt * 4096}, v{T16}")
            A(f"ds_write_b128 v56, {v(48 + 4 * tt, 4)}")
        A("s_waitcnt lgkmcnt(0)")
        A("s_barrier")
        QF = 24
        for j in range(4): A(f"ds_read_b128 {v(QF + 4 * j, 4)}, v{QRD} offset:{j * 1024}")
        A("s_waitcnt vmcnt(9) lgkmcnt(0)")
        T0, T1, T2 = 8, 12, 16
        for j in range(4):
            for kt in range(2):
                d = v(T0 + 4 * kt, 4)
                A(f"{MF32} {d}, {v(KF + 4 * (kt * 4 + j), 4)}, {v(QF + 4 * j, 4)}, {d if j else 0}")
        consumed_wait(A, 40)
        tr(A, 'mm')
        def scale(r):
            if not EXP.get('nosr'): rnd2(A, r)
            A(f"v_pk_mul_f32 {v(r, 2)}, {v(r, 2)}, s[60:61] op_sel_hi:[1,0]")
            if not EXP.get('nosr'): rnd2(A, r)
        for r in range(T0, T0 + 8, 2): scale(r)
        for k in range(8): A(f"v_cndmask_b32 v{T0+k}, v{NEG}, v{T0+k}, s[{64+2*k}:{65+2*k}]")
        M, TT, SUM = 20, 21, 22
        A(f"v_max3_f32 v{M}, v8, v9, v10")
        A(f"v_max3_f32 v{M}, v{M}, v11, v12")
        A(f"v_max3_f32 v{M}, v{M}, v13, v14")
        A(f"v_max_f32 v{M}, v{M}, v15")
        lp = A.newlabel('L_km'); lok = A.newlabel('L_kmok')
        A("s_mov_b32 s12, 0")
        A.label(lp)
        A(f"global_load_dwordx4 v[40:43], v{T16}, s[30:31] sc1")
        A("s_add_u32 s12, s12, 1")
        A(f"s_cmp_gt_u32 s12, {SPIN_MAX}")
        A("s_cbranch_scc1 L_exit")
        A("s_waitcnt vmcnt(0)")
        A(f"ds_write2_b32 v{KMW}, v40, v41 offset0:0 offset1:72")
        A(f"ds_write_b64 v{VMW}, v[42:43]")
        A("v_max3_u32 v44, v40, v41, v42")
        A("v_max_u32 v44, v44, v43")
        A("v_cmp_eq_u32 vcc, -1, v44")
        A(f"s_cbranch_vccz {lok}")
        A(f"s_sleep {EXP.get('asl', 1)}")
        A(f"s_branch {lp}")
        A.label(lok)
        A("s_waitcnt lgkmcnt(0)")
        A("s_barrier")
        tr(A, 'flag')
        for j in range(4): A(f"ds_read_b128 {v(KM + 4 * j, 4)}, v{KMA} offset:{j * 64}")
        for i in range(2): A(f"ds_read_b64 {v(VM + 2 * i, 2)}, v{VOF} offset:{i * 512}")
        for j in range(4):
            A(f"s_waitcnt lgkmcnt({5 - j})")
            A(f"{MF32} {v(T2, 4)}, {v(KM + 4 * j, 4)}, {v(QF + 4 * j, 4)}, {v(T2, 4) if j else 0}")
        scale(T2)
        A(f"v_max3_f32 v{M}, v{M}, v16, v17")
        xsum(A, M, TT, op="v_max_f32", bits=(4, 5))
        for r in range(8, 18, 2): A(f"v_pk_add_f32 {v(r, 2)}, {v(r, 2)}, {v(M, 2)} op_sel_hi:[1,0] neg_lo:[0,1] neg_hi:[0,1]")
        for r in range(8, 18, 2): A(f"v_pk_mul_f32 {v(r, 2)}, {v(r, 2)}, s[60:61] op_sel:[0,1]")
        for r in range(8, 18): A(f"v_exp_f32 v{r}, v{r}")
        A(f"v_pk_add_f32 {v(SUM, 2)}, v[8:9], v[10:11]")
        for r in (12, 14, 16): A(f"v_pk_add_f32 {v(SUM, 2)}, {v(SUM, 2)}, {v(r, 2)}")
        A(f"v_add_f32 v{SUM}, v{SUM}, v{SUM+1}")
        xsum(A, SUM, TT, bits=(4, 5))
        A(f"v_rcp_f32 v{SUM}, v{SUM}")
        for r in range(8, 18, 2): A(f"v_pk_mul_f32 {v(r, 2)}, {v(r, 2)}, {v(SUM, 2)} op_sel_hi:[1,0]")
        BX, Z = 40, 44
        for q in range(4): A(f"v_cvt_pk_bf16_f32 v{BX+q}, v{8+2*q}, v{9+2*q}")
        A(f"v_cvt_pk_bf16_f32 v{Z}, v16, v17")
        A(f"v_mov_b32 v{Z+1}, 0")
        A(f"v_mov_b32 v{Z+2}, 0")
        A(f"v_mov_b32 v{Z+3}, v{Z}")
        OA = 24
        for t in range(4): A(f"{MF32} {v(OA + 4 * t, 4)}, {v(VF + 4 * t, 4)}, {v(BX, 4)}, 0")
        A("s_waitcnt lgkmcnt(0)")
        for t in range(4): A(f"{MF16} {v(OA + 4 * t, 4)}, {v(VM + 2 * (t >> 1), 2)}, {v(Z + 2 * (t & 1), 2)}, {v(OA + 4 * t, 4)}")
        for q in range(8): A(f"v_cvt_pk_bf16_f32 v{48+q}, v{OA+2*q}, v{OA+2*q+1}")
        A(f"ds_write_b128 v{OWR}, v[48:51]")
        A(f"ds_write_b128 v{OWR}, v[52:55] offset:1024")
        A("s_waitcnt lgkmcnt(0)")
        A("s_barrier")
        oa = Asm()
        A(f"v_add_u32 v{L16}, {LO}, v{L16}")
        out_proj(A, st, wo, LRED)
        A(f"v_subrev_u32 v{L16}, {LO}, v{L16}")
        A("s_cmp_lg_u32 s10, 0")
        A(f"s_cbranch_scc1 L_a_next_{sfx}")
        A(f"v_add_u32 v{L4}, {LRED // 2}, v{L4}")
        row_gather(A, 0)
        A(f"v_subrev_u32 v{L4}, {LRED // 2}, v{L4}")
        A("v_mov_b64 v[20:21], 0")
        for i in range(5):
            r = 8 + 2 * i
            if i == 4: A("s_mov_b32 exec_hi, 0")
            unpack(A, 18, MODR + i)
            A(f"v_pk_mul_f32 {v(r, 2)}, {v(r, 2)}, v[18:19]")
            rnd2(A, r)
            unpack(A, 18, XR + i)
            A(f"v_pk_add_f32 {v(r, 2)}, {v(r, 2)}, v[18:19]")
            A(f"v_cvt_pk_bf16_f32 v{24+i}, v{r}, v{r+1}")
            unpack(A, r, 24 + i)
            A(f"global_store_dword v{L4}, v{24+i}, s[36:37] offset:{256 * i} sc1")
            A(f"v_pk_add_f32 v[20:21], v[20:21], {v(r, 2)}")
        A("s_mov_b64 exec, -1")
        A("v_add_f32 v20, v20, v21")
        xsum(A, 20, 21)
        A(f"v_mul_f32 v20, {f32bits(1.0 / 576):#x}, v20")
        A("v_mov_b64 v[22:23], 0")
        for i in range(5):
            if i == 4: A("s_mov_b32 exec_hi, 0")
            A(f"v_pk_add_f32 v[18:19], {v(8 + 2 * i, 2)}, v[20:21] op_sel_hi:[1,0] neg_lo:[0,1] neg_hi:[0,1]")
            A("v_pk_fma_f32 v[22:23], v[18:19], v[18:19], v[22:23]")
        A("s_mov_b64 exec, -1")
        A("v_add_f32 v22, v22, v23")
        xsum(A, 22, 23)
        A(f"v_mul_f32 v22, {f32bits(1.0 / 576):#x}, v22")
        rnd1(A, 22); rnd1(A, 20)
        A(f"v_add_f32 v22, {f32bits(1e-5):#x}, v22")
        rnd1(A, 22)
        A("v_sqrt_f32 v22, v22")
        rnd1(A, 22)
        A("v_rcp_f32 v22, v22")
        for i in range(5):
            r = 8 + 2 * i
            if i == 4: A("s_mov_b32 exec_hi, 0")
            A(f"v_pk_add_f32 {v(r, 2)}, {v(r, 2)}, v[20:21] op_sel_hi:[1,0] neg_lo:[0,1] neg_hi:[0,1]")
            rnd2(A, r)
            A(f"v_pk_mul_f32 {v(r, 2)}, {v(r, 2)}, v[22:23] op_sel_hi:[1,0]")
            rnd2(A, r)
            unpack(A, 18, MODR + 5 + i)
            A(f"v_pk_mul_f32 {v(r, 2)}, {v(r, 2)}, v[18:19]")
            rnd2(A, r)
            unpack(A, 18, MODR + 10 + i)
            A(f"v_pk_add_f32 {v(r, 2)}, {v(r, 2)}, v[18:19]")
            A(f"v_cvt_pk_bf16_f32 v{30+i}, v{r}, v{r+1}")
            A(f"global_store_dword v{H2A}, v{30+i}, s[38:39] offset:{256 * i} sc1")
        A("s_mov_b64 exec, 1")
        A("v_mov_b32 v18, 1")
        A("s_waitcnt vmcnt(0)")
        A(f"global_store_dword v{L4}, v18, s[52:53] sc1")
        A("s_mov_b64 exec, -1")
        A.label(f"L_a_next_{sfx}")
        tr(A, 'end'); tr_dump(A, EXP.get('aftrace', 0))
        add64(A, 34, 34, na * SEG_H); add64(A, 36, 36, na * SEG_H); add64(A, 38, 38, na * SEG_H)
        add64(A, 22, 22, na << 19); add64(A, 30, 30, na << 17); add64(A, 52, 52, na * 128)
        A(f"s_add_u32 s24, s24, {na}")
        A("s_cmp_lt_u32 s24, 64")
        A(f"s_cbranch_scc1 L_a_top_{sfx}")
        tl(A, 4)
        A("s_branch L_exit")

def WFF(i): return 256 + 4 * i if i < 64 else 80 + 4 * (i - 64)

def role_f(A, nf, fg0, standalone=False):
    LG8, LW16, LRING = 0, 36864, 57344
    LH2, LACT = LRING, LRING + 40960
    LRED = LACT + 12288
    LX = LRED + 4096
    A(f"s_load_dwordx4 s[16:19], s[0:1], {KA_WG}")
    A(f"s_load_dwordx2 s[20:21], s[0:1], {KA_WD}")
    A(f"s_load_dwordx2 s[34:35], s[0:1], {KA_OUT}")
    dense256_consts(A, 12, 16, 9216, 1)
    dense128_consts(A, 20, 18, 1)
    lane_const(A, 24, lambda t: (t >> 1) * 9216 + (t & 1) * 16 + 256, tmp=1)
    lane_const(A, 25, lambda t: t * 16, tmp=1)
    A("s_mul_i32 s12, s9, 288")
    A("s_waitcnt lgkmcnt(0)")
    add64(A, 16, 16, "s12"); add64(A, 18, 18, "s12")
    A(f"s_mul_i32 s12, s9, {144 * 1152}")
    add64(A, 20, 20, "s12")
    A("s_lshl_b32 s26, s10, 10")
    for m in range(2):
        for i in range(5):
            if i == 4:
                A("s_cmp_ge_u32 s10, 2"); l = A.newlabel('L_f8'); A(f"s_cbranch_scc1 {l}")
            add64(A, 12, 16 + 2 * m, i * 128 * 9216)
            A(f"s_add_u32 m0, s26, {LG8 + m * 18432 + i * 4096}")
            A("global_load_lds_dwordx4 v24, s[12:13]")
            if i == 4: A.label(l)
    for i in range(5):
        if i == 4:
            A("s_cmp_ge_u32 s10, 2"); l = A.newlabel('L_f16'); A(f"s_cbranch_scc1 {l}")
        add64(A, 12, 20, 128 * 1152 + i * 4096)
        A(f"s_add_u32 m0, s26, {LW16 + i * 4096}")
        A("global_load_lds_dwordx4 v25, s[12:13]")
        if i == 4: A.label(l)
    def wg(m, ks, b): return WFF(ks * 4 + m * 2 + b)
    def wd(t, j): return WFF(72 + t * 4 + j)
    chunks = []
    for c in range(9):
        for m in range(2):
            chunks.append(dict(ptr=16 + 2 * m, off=c * 64 * 9216, vb=12, reads=dense256_reads(lambda ks, b, m=m: wg(m, ks, b), 16, c)))
    chunks += [dict(ptr=20, off=t * 128, vb=20, reads=dense128_reads(wd, 18, t)) for t in range(9)]
    ring_load(A, chunks, nslots=6, lbase=LRING)
    tl(A, 1)
    mode_check(A, tv=12)
    af_consts(A, LRED)
    A(f"v_lshlrev_b32 v{T16}, 4, v0")
    A(f"s_sub_u32 s24, s8, {fg0}")
    A(f"s_mul_i32 s12, s24, {SEG_H}")
    A(f"s_add_u32 s13, s12, {WS_H2}")
    add64(A, 20, S_WS, "s13")
    A("s_mul_i32 s13, s9, 1152")
    A("s_add_u32 s12, s12, s13")
    add64(A, 34, 34, "s12")
    A(f"s_add_u32 s13, s12, {WS_X1}")
    add64(A, 36, S_WS, "s13")
    A("s_lshl_b32 s13, s24, 7")
    A(f"s_add_u32 s13, s13, {WS_H2FLAG}")
    add64(A, 52, S_WS, "s13")
    add64(A, 54, S_WS, WS_MOD + 5 * 1152)
    A("s_lshl_b32 s26, s10, 10")
    A(f"s_add_u32 s26, s26, {LH2}")
    A("s_mov_b32 s25, 1")
    A(f"s_mov_b32 s60, {f32bits(-math.log2(math.e)):#x}")
    A("s_cmp_ge_u32 s10, 2")
    A("s_cselect_b64 s[62:63], -1, 0")
    A("s_mov_b32 s59, 0")
    A("s_cmp_eq_u32 s11, 0")
    A("s_cbranch_scc1 L_f_top_s")
    for fast in (True, False):
        st = "" if fast else "sc1"; sfx = "f" if fast else "s"
        A.label(f"L_f_top_{sfx}")
        tr(A, 'top')
        lpd = A.newlabel('L_fpd')
        A("s_cmp_lg_u32 s59, 0")
        A(f"s_cbranch_scc1 {lpd}")
        if not standalone:
            A(f"v_and_b32 v8, 0x7c, v{L4}")
            flag_wait(A, 8, 52, 25, 9, 12, sleep=1)
        tr(A, 'flag')
        seg_dma(A, T16, 20, 26)
        A.label(lpd)
        lx = A.newlabel('L_fx')
        A("s_cmp_lg_u32 s10, 0")
        A(f"s_cbranch_scc1 {lx}")
        for k_, sb in enumerate((36, 54)):
            A(f"s_mov_b32 m0, {LX + k_ * 2048}")
            A(f"global_load_lds_dwordx4 v{L16}, s[{sb}:{sb+1}]")
            A("s_mov_b64 exec, 0xff")
            A(f"global_load_lds_dwordx4 v{L16}, s[{sb}:{sb+1}] offset:1024")
            A("s_mov_b64 exec, -1")
        A.label(lx)
        HA, G8A, AW = 72, 76, 77
        A(f"v_lshrrev_b32 v78, 4, v{T16}")
        for ttl in range(2):
            for par in range(2):
                r = HA + 2 * ttl + par
                lane_const(A, r, lambda t: LH2 + (t & 15) * 1152 + ((ttl ^ (t >> 6)) & 1) * 18432, src=78, tmp=8)
                lane_const(A, r, lambda t: ((4 * par + ((t >> 4) & 3)) ^ ((t & 15) >> 1)) * 16, src=78, tmp=8, acc=True)
        lane_const(A, G8A, lambda t: LG8 + (t >> 7) * 18432 + ((t >> 4) & 3) * 256 + (t & 15) * 8, src=78, tmp=8)
        lane_const(A, AW, lambda t: LACT + t * 16 + ((t >> 6) & 1) * 4096, src=78, tmp=8)
        A("s_waitcnt vmcnt(0)")
        A("s_barrier")
        tr(A, 'go')
        A(f"v_and_b32 v68, 0x7c, v{L4}")
        A(f"global_load_dword v79, v68, s[52:53] offset:{nf * 128} sc1")
        A("global_load_dword v69, v68, s[44:45] offset:1024 sc1")
        def swiglu(g, u_, dst, t0, pk):
            B = Asm()
            for r in (0, 2):
                rnd2(B, g + r); rnd2(B, u_ + r)
                if pk: B(f"v_pk_mul_f32 {v(t0, 2)}, {v(g + r, 2)}, s[60:61] op_sel_hi:[1,0]")
                else:
                    for q in range(2): B(f"v_mul_f32 v{t0+q}, s60, v{g+r+q}")
                for q in range(2): B(f"v_exp_f32 v{t0+q}, v{t0+q}")
                if pk: B(f"v_pk_add_f32 {v(t0, 2)}, {v(t0, 2)}, 1.0 op_sel_hi:[1,0]")
                else:
                    for q in range(2): B(f"v_add_f32 v{t0+q}, 1.0, v{t0+q}")
                for q in range(2): B(f"v_rcp_f32 v{t0+q}, v{t0+q}")
                if pk: B(f"v_pk_mul_f32 {v(g + r, 2)}, {v(g + r, 2)}, {v(t0, 2)}")
                else:
                    for q in range(2): B(f"v_mul_f32 v{g+r+q}, v{g+r+q}, v{t0+q}")
                rnd2(B, g + r)
                if pk: B(f"v_pk_mul_f32 {v(g + r, 2)}, {v(g + r, 2)}, {v(u_ + r, 2)}")
                else:
                    for q in range(2): B(f"v_mul_f32 v{g+r+q}, v{g+r+q}, v{u_+r+q}")
                B(f"v_cvt_pk_bf16_f32 v{dst + r // 2}, v{g+r}, v{g+r+1}")
            return [i.text.strip() for i in B.ins]
        D = Lds(A)
        RING, NR = 48, 4
        seq = [(ttl, ks) for ttl in range(2) for ks in range(18)]
        def rd(i):
            ttl, ks = seq[i]
            D.op(f"ds_read_b128 {v(RING + 4 * (i % NR), 4)}, v{HA + 2 * ttl + (ks & 1)} offset:{(ks >> 1) * 128}", i)
        def rd9(ks):
            for hq in range(2):
                D.op(f"ds_read_b64_tr_b16 {v(24 + 4 * (ks % 4) + 2 * hq, 2)}, v{G8A} offset:{ks * 1024 + hq * 128}", ('w9', ks))
        def ac(m, b, ttl): return 8 + 16 * ttl + (m * 2 + b) * 4
        for i in range(NR - 1): rd(i); rd9(i)
        vq = []
        for i, (ttl, ks) in enumerate(seq):
            D.wait(i)
            h = v(RING + 4 * (i % NR), 4)
            if i == 20:
                for b in range(2): vq += swiglu(ac(0, b, 0), ac(1, b, 0), 64 + 2 * b, 70, False)
                vq.append(f"ds_write_b128 v{AW}, v[64:67]")
                B = Asm()
                rnd2(B, 40); rnd2(B, 42)
                for q in range(4): B(f"v_mul_f32 v{44+q}, s60, v{40+q}")
                for q in range(4): B(f"v_exp_f32 v{44+q}, v{44+q}")
                for q in range(4): B(f"v_add_f32 v{44+q}, 1.0, v{44+q}")
                for q in range(4): B(f"v_rcp_f32 v{44+q}, v{44+q}")
                for q in range(4): B(f"v_mul_f32 v{44+q}, v{40+q}, v{44+q}")
                rnd2(B, 44); rnd2(B, 46)
                for q in range(4): B(f"v_cndmask_b32 v{40+q}, v{44+q}, v{40+q}, s[62:63]")
                B(f"v_add_u32 v70, {LACT + 8192}, v{T16}")
                B("ds_write_b128 v70, v[40:43]")
                vq += [x.text.strip() for x in B.ins]
            k4 = 0
            for m in range(2):
                for b in range(2):
                    d = v(ac(m, b, ttl), 4)
                    A(f"{MF32} {d}, {u(wg(m, ks, b), 4)}, {h}, {d if ks else 0}")
                    if k4 == 0 and i + NR - 1 < 36: rd(i + NR - 1)
                    if k4 == 1 and ttl == 0 and ks + 3 < 18: rd9(ks + 3)
                    k4 += 1
                    for _ in range(2):
                        if vq:
                            o = vq.pop(0)
                            if o.startswith('ds_'): D.op(o)
                            else: A(o)
            if ttl == 0:
                D.wait(('w9', ks))
                A(f"{MF32} v[40:43], {v(24 + 4 * (ks % 4), 4)}, {h}, {'v[40:43]' if ks else 0}")
        for o in vq: A(o)
        tr(A, 'mm')
        o0 = swiglu(24, 32, 48, 52, True); o1 = swiglu(28, 36, 50, 54, True)
        for a_, b_ in zip(o0, o1): A(a_); A(b_)
        A(f"v_xor_b32 v{AW}, 4096, v{AW}")
        A(f"ds_write_b128 v{AW}, v[48:51]")
        lane_const(A, 27, lambda t: LW16 + (4 * ((t >> 4) & 3) + ((t >> 2) & 3)) * 1152 + (t >> 6) * 32 + (t & 3) * 8, src=78, tmp=8)
        A("s_waitcnt vmcnt(0)")
        lcw = A.newlabel('L_fcw')
        A("v_cmp_gt_u32 vcc, s47, v69")
        A(f"s_cbranch_vccz {lcw}")
        consumed_wait(A, 8)
        A.label(lcw)
        A("v_cmp_eq_u32 vcc, 0, v79")
        A("s_waitcnt lgkmcnt(0)")
        A("s_barrier")
        A("s_mov_b32 s59, 0")
        lnp = A.newlabel('L_fnp')
        A(f"s_cbranch_vccnz {lnp}")
        A(f"s_cmp_ge_u32 s24, {64 - nf}")
        A(f"s_cbranch_scc1 {lnp}")
        add64(A, 56, 20, nf * SEG_H)
        seg_dma(A, T16, 56, 26)
        A("s_mov_b32 s59, 1")
        A.label(lnp)
        A(f"v_add_u32 v{L16}, {LACT}, v{L16}")
        out_proj(A, st, wd, LRED, k16=(8192, 27))
        A(f"v_subrev_u32 v{L16}, {LACT}, v{L16}")
        A("s_cmp_lg_u32 s10, 0")
        A(f"s_cbranch_scc1 L_f_next_{sfx}")
        A(f"v_add_u32 v49, {LX}, v{L4}")
        for i in range(5):
            A(f"ds_read_b32 v{56+i}, v49 offset:{256 * i}")
            A(f"ds_read_b32 v{50+i}, v49 offset:{2048 + 256 * i}")
        A(f"v_add_u32 v{L4}, {LRED // 2}, v{L4}")
        row_gather(A, 0)
        A(f"v_subrev_u32 v{L4}, {LRED // 2}, v{L4}")
        for i in range(5):
            r = 8 + 2 * i
            if i == 4: A("s_mov_b32 exec_hi, 0")
            unpack(A, 18, 50 + i)
            A(f"v_pk_mul_f32 {v(r, 2)}, {v(r, 2)}, v[18:19]")
            rnd2(A, r)
            unpack(A, 18, 56 + i)
            A(f"v_pk_add_f32 {v(r, 2)}, {v(r, 2)}, v[18:19]")
            A(f"v_cvt_pk_bf16_f32 v{24+i}, v{r}, v{r+1}")
            A(f"global_store_dword v{L4}, v{24+i}, s[34:35] offset:{256 * i}")
        A("s_mov_b64 exec, -1")
        A.label(f"L_f_next_{sfx}")
        tr(A, 'end'); tr_dump(A, EXP.get('aftrace', 0))
        add64(A, 20, 20, nf * SEG_H); add64(A, 34, 34, nf * SEG_H); add64(A, 36, 36, nf * SEG_H); add64(A, 52, 52, nf * 128)
        A(f"s_add_u32 s24, s24, {nf}")
        A("s_cmp_lt_u32 s24, 64")
        A(f"s_cbranch_scc1 L_f_top_{sfx}")
        tl(A, 4)
        A("s_branch L_exit")
```

```python
from common import *
import math

def stage_mod(A, idx_s):
    A(f"s_load_dwordx4 s[16:19], s[0:1], {KA_C}")
    lane_const(A, 2, lambda t: (t >> 3) * 6912 + (t & 7) * 16, tmp=1)
    lane_const(A, 3, lambda t: (t >> 3) * 2, tmp=1)
    A(f"s_lshl_b32 s12, {idx_s}, 7")
    A("s_waitcnt lgkmcnt(0)")
    add64(A, 18, 18, "s12")
    for i in range(18): A(f"global_load_ushort v{8+i}, v3, s[16:17] offset:{64 * i}")
    for i in range(18):
        A(f"global_load_dwordx4 {v(40 + 4 * i, 4)}, v2, s[18:19]")
        if i < 17: add64(A, 18, 18, 32 * 6912)
    A(f"s_mov_b32 s12, {f32bits(-math.log2(math.e)):#x}")
    A("s_waitcnt vmcnt(18)")
    for i in range(18):
        r = 8 + i
        A(f"v_lshlrev_b32 v{r}, 16, v{r}")
        A(f"v_mul_f32 v4, s12, v{r}")
        A("v_exp_f32 v4, v4")
        A("v_add_f32 v4, 1.0, v4")
        A("v_rcp_f32 v4, v4")
        A(f"v_mul_f32 v{r}, v{r}, v4")
        rnd1(A, r)
    for k in range(8): A(f"v_mov_b32 v{28+k}, 0")
    for i in range(18):
        A(f"s_waitcnt vmcnt({17 - i})")
        for q in range(4):
            A(f"v_lshlrev_b32 v4, 16, v{40+4*i+q}")
            A(f"v_and_b32 v5, 0xffff0000, v{40+4*i+q}")
            A(f"v_fmac_f32 v{28+2*q}, v4, v{8+i}")
            A(f"v_fmac_f32 v{29+2*q}, v5, v{8+i}")
    A("v_lshlrev_b32 v4, 5, v0")
    A("ds_write_b128 v4, v[28:31]")
    A("ds_write_b128 v4, v[32:35] offset:16")
    A("s_waitcnt lgkmcnt(0)")
    A("s_barrier")
    l = A.newlabel('L_md')
    A("s_cmp_lg_u32 s10, 0")
    A(f"s_cbranch_scc1 {l}")
    A("v_lshlrev_b32 v4, 2, v0")
    for i in range(32): A(f"ds_read_b32 v{8+i}, v4 offset:{256 * i}")
    A("s_waitcnt lgkmcnt(0)")
    for st in (16, 8, 4, 2, 1):
        for i in range(st): A(f"v_add_f32 v{8+i}, v{8+i}, v{8+i+st}")
    rnd1(A, 8)
    A("v_add_f32 v9, 1.0, v8")
    A(f"s_sub_u32 s12, {idx_s}, 9")
    A(f"s_sub_u32 s13, {idx_s}, 36")
    A("s_min_u32 s12, s12, s13")
    A("s_cmp_lt_u32 s12, 9")
    A("s_cselect_b64 vcc, -1, 0")
    A("v_cndmask_b32 v8, v8, v9, vcc")
    A("v_cvt_pk_bf16_f32 v8, v8, v8")
    A(f"s_lshl_b32 s12, {idx_s}, 7")
    A("v_lshl_add_u32 v4, v0, 1, s12")
    A(f"global_store_short v4, v8, s[4:5] offset:{WS_MOD} sc1")
    A("s_waitcnt vmcnt(0)")
    A.label(l)
    l2 = A.newlabel('L_md2'); l3 = A.newlabel('L_md3')
    A(f"s_cmp_lt_u32 {idx_s}, 18")
    A(f"s_cbranch_scc1 {l2}")
    counter_arrive(A, DBG_MODCNT, tv=4)
    A(f"s_branch {l3}")
    A.label(l2)
    counter_arrive(A, DBG_MOD1, tv=4)
    A.label(l3)
    A("s_barrier")

def stage_ln1(A, idx_s):
    X = 16
    A(f"s_load_dwordx2 s[16:17], s[0:1], {KA_X}")
    A(f"s_lshl_b32 s15, {idx_s}, 2")
    A("s_add_u32 s15, s15, s10")
    A("s_mul_hi_u32 s20, s15, 0x55555556")
    A("s_mul_i32 s21, s20, 3")
    A("s_sub_u32 s21, s15, s21")
    lane_const(A, 2, lambda t: (t & 15) * 1152 + ((t >> 4) & 3) * 16, tmp=1)
    lane_const(A, 3, lambda t: ((t >> 4) & 3) * 16, tmp=1)
    lane_const(A, 4, lambda t: (t & 63) * 16, tmp=1)
    A("s_mul_i32 s12, s20, 18432")
    A("s_waitcnt lgkmcnt(0)")
    add64(A, 16, 16, "s12")
    A("s_mul_i32 s13, s21, 6144")
    A("s_add_u32 s12, s12, s13")
    A(f"s_add_u32 s12, s12, {WS_H + 2048}")
    add64(A, 18, S_WS, "s12")
    A("s_mul_i32 s22, s21, 384")
    A(f"v_add_u32 v3, s22, v3")
    for bt in range(3):
        add64(A, 12, 16, "s22")
        for k in range(6): A(f"global_load_dwordx4 {v(160 + 24 * bt + 4 * k, 4)}, v2, s[12:13] offset:{64 * k}")
        if bt < 2:
            A("s_add_u32 s22, s22, 384")
            A("s_cmp_eq_u32 s22, 1152")
            A("s_cselect_b32 s22, 0, s22")
    A("v_mov_b64 v[6:7], 0")
    for ks in range(18):
        A(f"s_waitcnt vmcnt({17 - ks})")
        for q in range(4):
            r = X + 8 * ks + 2 * q
            A(f"v_lshlrev_b32 v{r}, 16, v{160+4*ks+q}")
            A(f"v_and_b32 v{r+1}, 0xffff0000, v{160+4*ks+q}")
            A(f"v_pk_add_f32 v[6:7], v[6:7], {v(r, 2)}")
    A("v_add_f32 v6, v6, v7")
    xsum(A, 6, 7, bits=(4, 5))
    A(f"v_mul_f32 v6, {f32bits(1.0 / 576):#x}, v6")
    A("v_mov_b64 v[8:9], 0")
    for i in range(72):
        A(f"v_pk_add_f32 v[10:11], {v(X + 2 * i, 2)}, v[6:7] op_sel_hi:[1,0] neg_lo:[0,1] neg_hi:[0,1]")
        A("v_pk_fma_f32 v[8:9], v[10:11], v[10:11], v[8:9]")
    A("v_add_f32 v8, v8, v9")
    xsum(A, 8, 9, bits=(4, 5))
    A(f"v_mul_f32 v8, {f32bits(1.0 / 576):#x}, v8")
    rnd1(A, 8); rnd1(A, 6)
    A(f"v_add_f32 v8, {f32bits(1e-5):#x}, v8")
    rnd1(A, 8)
    A("v_sqrt_f32 v8, v8")
    rnd1(A, 8)
    A("v_rcp_f32 v8, v8")
    for i in range(24):
        r = X + 2 * i
        A(f"v_pk_add_f32 {v(r, 2)}, {v(r, 2)}, v[6:7] op_sel_hi:[1,0] neg_lo:[0,1] neg_hi:[0,1]")
        rnd2(A, r)
        A(f"v_pk_mul_f32 {v(r, 2)}, {v(r, 2)}, v[8:9] op_sel_hi:[1,0]")
        rnd2(A, r)
    tl(A, 5, 10)
    mode_check(A, tv=10)
    counter_wait(A, DBG_MOD1, 18, tv=10, sleep=4)
    tl(A, 6, 10)
    for k in range(6):
        A(f"global_load_dwordx4 {v(160 + 8 * k, 4)}, v3, s[4:5] offset:{WS_MOD + 1152 + 64 * k} sc1")
        A(f"global_load_dwordx4 {v(164 + 8 * k, 4)}, v3, s[4:5] offset:{WS_MOD + 64 * k} sc1")
    for k in range(6):
        rb = 160 + 8 * k
        A(f"s_waitcnt vmcnt({2 * (5 - k) + k})")
        for q in range(4):
            r = X + 8 * k + 2 * q
            A(f"v_lshlrev_b32 v10, 16, v{rb+q}")
            A(f"v_and_b32 v11, 0xffff0000, v{rb+q}")
            A(f"v_lshlrev_b32 v12, 16, v{rb+4+q}")
            A(f"v_and_b32 v13, 0xffff0000, v{rb+4+q}")
            A(f"v_pk_mul_f32 {v(r, 2)}, {v(r, 2)}, v[10:11]")
            rnd2(A, r)
            A(f"v_pk_add_f32 {v(r, 2)}, {v(r, 2)}, v[12:13]")
            A(f"v_cvt_pk_bf16_f32 v{X+8*k+q}, v{r}, v{r+1}")
        A(f"global_store_dwordx4 v4, {v(X + 8 * k, 4)}, s[18:19] offset:{k * 1024 - 2048} sc1")
    A(f"s_lshl_b32 s12, {idx_s}, 2")
    A(f"s_add_u32 s12, s12, {WS_HINT}")
    A("v_mov_b32 v10, s12")
    A("v_mov_b32 v11, 1")
    A("s_waitcnt vmcnt(0)")
    A("s_barrier")
    l = A.newlabel('L_lnf')
    A("s_cmp_lg_u32 s10, 0")
    A(f"s_cbranch_scc1 {l}")
    A("s_mov_b64 exec, 1")
    A("global_store_dword v10, v11, s[4:5] sc1")
    A("s_mov_b64 exec, -1")
    A.label(l)

def WF(i):
    return 256 + 4 * i if i < 64 else 224 + 4 * (i - 64)

def role_kv(A, restart, nkv, kvg0, wait_h=True):
    A(f"s_load_dwordx4 s[16:19], s[0:1], {KA_WK}")
    dense256_consts(A, 12, 16, 8192, 1)
    A("s_lshl_b32 s12, s9, 8")
    A("s_waitcnt lgkmcnt(0)")
    add64(A, 16, 16, "s12"); add64(A, 18, 18, "s12")
    def fr(m, ks, b): return WF(ks * 4 + m * 2 + b)
    chunks = []
    for c in range(9):
        for m in range(2):
            chunks.append(dict(ptr=16 + 2 * m, off=c * 64 * 8192, vb=12, reads=dense256_reads(lambda ks, b, m=m: fr(m, ks, b), 16, c)))
    if FORCE.get('ord', 0) & 2: chunks = chunks[1::2] + chunks[0::2]
    ring_load(A, chunks)
    tl(A, 1)
    mode_check(A, tv=12)
    T16, L16, HA = 1, 2, 3
    A(f"v_lshlrev_b32 v{T16}, 4, v0")
    lane_const(A, L16, lambda t: (t & 63) * 16, tmp=12)
    A(f"s_sub_u32 s24, s8, {kvg0}")
    A(f"s_mul_i32 s12, s24, {SEG_H}")
    A(f"s_add_u32 s12, s12, {WS_H}")
    add64(A, 20, S_WS, "s12")
    A("s_lshl_b32 s12, s24, 5")
    A("s_add_u32 s12, s12, s9")
    A("s_lshl_b32 s13, s12, 12")
    A(f"s_add_u32 s13, s13, {WS_KVM}")
    add64(A, 34, S_WS, "s13")
    for r in range(4): A(f"v_mov_b32 v{80+r}, -1")
    A("s_lshl_b32 s12, s12, 14")
    A(f"s_add_u32 s12, s12, {WS_KV + 2048}")
    add64(A, 22, S_WS, "s12")
    A("s_lshl_b32 s13, s10, 11")
    A("s_add_u32 s12, s12, s13")
    A("s_add_u32 s12, s12, 6144")
    add64(A, 30, S_WS, "s12")
    A("s_lshl_b32 s12, s8, 5")
    A("s_add_u32 s12, s12, s9")
    A("s_lshl_b32 s12, s12, 5")
    A("s_add_u32 s12, s12, s10")
    A("s_lshl_b32 s12, s12, 2")
    A(f"s_add_u32 s12, s12, {WS_KVPROG}")
    add64(A, 32, S_WS, "s12")
    A("s_lshl_b32 s26, s10, 10")
    A("s_mov_b32 s27, 0")
    A("s_mov_b32 s28, 0")
    A("s_mov_b32 s29, 0")
    if wait_h: h_wait(A, 12)
    tl(A, 2)
    def adv():
        add64(A, 20, 20, nkv * SEG_H)
        A(f"s_add_u32 s26, s26, {SEG_H}")
        A(f"s_cmp_ge_u32 s26, {3 * SEG_H}")
        A(f"s_cselect_b32 s12, {3 * SEG_H}, 0")
        A("s_sub_u32 s26, s26, s12")
    for _ in range(2):
        seg_dma(A, T16, 20, 26); adv()
    A("s_waitcnt vmcnt(9)")
    A("s_branch L_kv_first")
    A.label("L_kv_top")
    A("s_waitcnt vmcnt(15)")
    A.label("L_kv_first")
    A("s_barrier")
    A(f"v_add_u32 v{HA}, s27, v{L16}")
    A("v_mov_b32 v4, s28")
    D = Lds(A)
    ACC, RING, NR = 8, 40, 6
    seq = [(ks, tt) for ks in range(18) for tt in range(2)]
    def rd(i):
        ks, tt = seq[i]
        D.op(f"ds_read_b128 {v(RING + 4 * (i % NR), 4)}, v{HA} offset:{(tt * 18 + ks) * 1024}", i)
    for i in range(NR - 1): rd(i)
    A("s_mov_b64 s[12:13], s[20:21]")
    for i, (ks, tt) in enumerate(seq):
        if i + NR - 1 < 36: rd(i + NR - 1)
        D.wait(i)
        h = v(RING + 4 * (i % NR), 4)
        for m in range(2):
            for b in range(2):
                d = v(ACC + ((m * 2 + b) * 2 + tt) * 4, 4)
                w = u(fr(m, ks, b), 4)
                A(f"{MF32} {d}, {w if m == 0 else h}, {h if m == 0 else w}, {d if ks else 0}")
                if i < 9 and (m, b) == (0, 0): A(f"s_add_u32 m0, s26, {i * 4096}")
                if i < 9 and (m, b) == (0, 1): A(f"global_load_lds_dwordx4 v{T16}, s[12:13]")
                if i < 8 and (m, b) == (1, 0): add64(A, 12, 12, 4096)
                if i == 10 and (m, b) == (0, 0): adv()
                if i == 20 and (m, b) == (0, 0):
                    A("s_waitcnt vmcnt(9)")
                    A("s_mov_b64 exec, 1")
                    A(f"global_store_dword v{L16}, v4, s[32:33] sc1")
                    A("s_mov_b64 exec, -1")
                if i == 24 and (m, b) == (0, 0): A(f"global_store_dwordx4 v{T16}, v[80:83], s[34:35] sc1")
    def ac(m, b, tt): return ACC + ((m * 2 + b) * 2 + tt) * 4
    O = 64
    for tt in range(2):
        for r in range(4): A(f"v_cvt_pk_bf16_f32 v{O+4*tt+r}, v{ac(0,0,tt)+r}, v{ac(0,1,tt)+r}")
        A(f"global_store_dwordx4 v{T16}, {v(O + 4 * tt, 4)}, s[22:23] offset:{tt * 4096 - 2048} sc1")
    for b in range(2):
        for q in range(4): A(f"v_cvt_pk_bf16_f32 v{O+8+4*b+q}, v{ac(1,b,q>>1)+2*(q&1)}, v{ac(1,b,q>>1)+2*(q&1)+1}")
        A(f"global_store_dwordx4 v{L16}, {v(O + 8 + 4 * b, 4)}, s[30:31] offset:{b * 1024} sc1")
    add64(A, 22, 22, nkv << 19); add64(A, 30, 30, nkv << 19); add64(A, 34, 34, nkv << 17)
    A(f"s_add_u32 s27, s27, {SEG_H}")
    A(f"s_cmp_ge_u32 s27, {3 * SEG_H}")
    A("s_cselect_b32 s27, 0, s27")
    A("s_add_u32 s28, s28, 1")
    A(f"s_add_u32 s24, s24, {nkv}")
    A("s_cmp_lt_u32 s24, 64")
    A("s_cbranch_scc1 L_kv_top")
    A("s_waitcnt vmcnt(0)")
    tl(A, 4)
    A("v_mov_b32 v4, s28")
    A("s_mov_b64 exec, 1")
    A(f"global_store_dword v{L16}, v4, s[32:33] sc1")
    A("s_branch L_exit")
```
